```python
import torch

def _softmax(x, axis=-1):
    return torch.softmax(x, dim=axis)
def _gelu(x):
    return torch.nn.functional.gelu(x, approximate="tanh")
def _silu(x):
    return torch.nn.functional.silu(x)
def _sigmoid(x):
    return torch.sigmoid(x)
def _layernorm(x, axis=-1, eps=1e-5):
    m = x.mean(dim=axis, keepdim=True)
    v = x.var(dim=axis, keepdim=True, unbiased=False)
    return (x - m) / torch.sqrt(v + eps)
def _scatter_add(tgt, idx, src, axis=0):
    return tgt.clone().index_add_(axis, idx, src)
def _segment_sum(src, seg, n):
    out = torch.zeros((n,) + src.shape[1:], dtype=src.dtype)
    return out.index_add_(0, seg, src)
def _pad(x, pw):
    flat = tuple(v for pair in reversed(pw) for v in pair)
    return torch.nn.functional.pad(x, flat)

kernel_name = 'concat_heads__gqa_block_cached__mha_block_cached__near_ridge'

def setup_inputs():

    _w = (lambda a: (lambda t: t.to(torch.bfloat16) if t.is_floating_point() else t)(torch.as_tensor(a)))
    def _A_setup():
        B, Sq, D = 16, 48, 512
        Hq, Hkv, Sk, Dh = 32, 8, 512, 128
        assert Hq % Hkv == 0, (Hq, Hkv)
        return {
            "x": _w((lambda *s: torch.randn(*s, dtype=torch.bfloat16) * 0.8)(B, Sq, D)),
            "k_cache": _w((lambda *s: torch.randn(*s, dtype=torch.bfloat16) * 0.8)(B, Hkv, Sk, Dh)),
            "v_cache": _w((lambda *s: torch.randn(*s, dtype=torch.bfloat16) * 0.05)(B, Hkv, Sk, Dh)),
            "wq": _w((lambda *s: torch.randn(*s, dtype=torch.bfloat16) * 0.8)(D, Hq * Dh) * (D ** -0.5)),
            "wo": _w((lambda *s: torch.randn(*s, dtype=torch.bfloat16) * 0.05)(Hq * Dh, D) * ((Hq * Dh) ** -0.5)),
        }
    _A_in = _A_setup()

    def _B_setup():
        B, Sq, D = 16, 48, 512
        H, Sk, Dh = 32, 512, 128
        return {
            "x": _w((lambda *s: torch.randn(*s, dtype=torch.bfloat16) * 0.8)(B, Sq, D)),
            "k_cache": _w((lambda *s: torch.randn(*s, dtype=torch.bfloat16) * 0.8)(B, H, Sk, Dh)),
            "v_cache": _w((lambda *s: torch.randn(*s, dtype=torch.bfloat16) * 0.05)(B, H, Sk, Dh)),
            "wq": _w((lambda *s: torch.randn(*s, dtype=torch.bfloat16) * 0.8)(D, H * Dh) * (D ** -0.5)),
            "wo": _w((lambda *s: torch.randn(*s, dtype=torch.bfloat16) * 0.05)(H * Dh, D) * ((H * Dh) ** -0.5)),
        }
    _B_in = _B_setup()

    return {
        "A_x": _A_in["x"],
        "A_k_cache": _A_in["k_cache"],
        "A_v_cache": _A_in["v_cache"],
        "A_wq": _A_in["wq"],
        "A_wo": _A_in["wo"],
        "B_x": _B_in["x"],
        "B_k_cache": _B_in["k_cache"],
        "B_v_cache": _B_in["v_cache"],
        "B_wq": _B_in["wq"],
        "B_wo": _B_in["wo"],
    }

def reference(A_x, A_k_cache, A_v_cache, A_wq, A_wo, B_x, B_k_cache, B_v_cache, B_wq, B_wo):
    def _A_ref(x, k_cache, v_cache, wq, wo):
        B, Sq, D = x.shape
        Hq, Dh = 32, 128
        Hkv = k_cache.shape[1]
        rep = Hq // Hkv
        q = (lambda x, *d: x.permute(*d))((x @ wq).reshape(B, Sq, Hq, Dh), 0, 2, 1, 3)
        k = (lambda x, n, axis: torch.repeat_interleave(x, n, dim=axis))(k_cache, rep, axis=1)
        v = (lambda x, n, axis: torch.repeat_interleave(x, n, dim=axis))(v_cache, rep, axis=1)
        scores = torch.einsum("bhqd,bhkd->bhqk", q, k) * (Dh ** -0.5)
        p = _softmax(scores, axis=-1)
        o = torch.einsum("bhqk,bhkd->bhqd", p, v)
        return (lambda x, *d: x.permute(*d))(o, 0, 2, 1, 3).reshape(B, Sq, Hq * Dh) @ wo

    def _B_ref(x, k_cache, v_cache, wq, wo):
        B, Sq, D = x.shape
        H, Dh = 32, 128
        q = (lambda x, *d: x.permute(*d))((x @ wq).reshape(B, Sq, H, Dh), 0, 2, 1, 3)
        scores = torch.einsum("bhqd,bhkd->bhqk", q, k_cache) * (Dh ** -0.5)
        p = _softmax(scores, axis=-1)
        o = torch.einsum("bhqk,bhkd->bhqd", p, v_cache)
        return (lambda x, *d: x.permute(*d))(o, 0, 2, 1, 3).reshape(B, Sq, H * Dh) @ wo

    a = _A_ref(A_x, A_k_cache, A_v_cache, A_wq, A_wo)
    b = _B_ref(B_x, B_k_cache, B_v_cache, B_wq, B_wo)
    return torch.concatenate([a, b], axis=-1)
```

```python
import sys, math

NAME = "concat_heads__gqa_block_cached__mha_block_cached__near_ridge"

HEADER = """; Kernarg layout for this problem (104 bytes, ptrs only, base s[0:1]):
"""

TILE = 32768
NSLOT = 3
XB = NSLOT * TILE
XROW = 1280
XN = 16 * XROW
ST = XB + 48 * XROW
LDS_BYTES = 163840
PART = 49152
PART_A_BASE = 16 * 16 * PART
NULL_OFF = 0x40000000

sW, sC, sI, sIdx, sE = 3, 4, 5, 6, 7
SRD_WQ, SRD_K, SRD_V, SRD_WO, SRD_X, SRD_WS = 8, 12, 16, 20, 24, 28
sAx, sAk, sAv, sAwq, sAwo = 32, 34, 36, 38, 40
sBx, sBk, sBv, sBwq, sBwo = 44, 46, 48, 50, 52
sWs = 54
sB, sG, sRole, sHead, sHook, sScale, sW1024, sBlk, sThr, sIter = 56, 57, 58, 59, 60, 61, 62, 63, 64, 65
sT0, sT1, sT2, sT3, sT4, sT5 = 66, 67, 68, 69, 70, 71
sOff, sTy = 72, 73
sStamp = 76
LINK_I, LINK_S = 90, 92

vL, vTab, vWq, vKV, vWo, vTRw, vTRo, vKb = 0, 1, 2, 3, 4, 5, 6, 7
vXB = 8
vQW, vPW, vSTw, vSTr = 12, 13, 14, 15
vT = 16
vAcc = 24
vQs = 36
vAf = 48
vBf = 64
vS = 112
vY = 160
vX = 208
vKa, vTRa = 5, 7
vMc, vLs = 12, 20
vO = 160
vAfA = 24


def vr(a, n=1):
    return f"v{a}" if n == 1 else f"v[{a}:{a+n-1}]"


def sr(a, n=1):
    return f"s{a}" if n == 1 else f"s[{a}:{a+n-1}]"


class G:
    def __init__(self, opt):
        self.L = []
        self.opt = opt
        self.uid = 0

    def A(self, s):
        self.L.append("  " + s)

    def lab(self, s):
        self.L.append(s + ":")

    def c(self, s):
        self.L.append("  ; " + s)

    def new(self, p):
        self.uid += 1
        return f"L_{p}{self.uid}"

    def mfma(self, d, a, b, c=None):
        cs = "0" if c == 0 else vr(d if c is None else c, 4)
        self.A(f"v_mfma_f32_16x16x32_bf16 {vr(d,4)}, {vr(a,4)}, {vr(b,4)}, {cs}")

    def bf(self, n, s):
        return vBf + (n * 4 + s) * 4

    def step_head(self, lgkm0=False):
        self.A("s_waitcnt vmcnt(4)" + (" lgkmcnt(0)" if lgkm0 else ""))
        self.A("s_barrier")

    def issue(self):
        self.A(f"s_call_b64 {sr(LINK_I,2)}, L_issue")

    def tr_pair(self, dst, addr, off):
        self.A(f"ds_read_b64_tr_b16 {vr(dst,2)}, {vr(addr)} offset:{off}")
        self.A(f"ds_read_b64_tr_b16 {vr(dst+2,2)}, {vr(addr)} offset:{off+1024}")

    def wstep(self, blk, first, lgkm0=False):
        self.step_head(lgkm0)
        self.A(f"v_add_u32 {vr(vT)}, {sr(sC)}, {vr(vTRw)}")
        for s in range(4):
            self.tr_pair(vAf + 4 * s, vT, s * 8192)
            for n in range(3):
                self.A(f"ds_read_b128 {vr(self.bf(n,s),4)}, {vr(vXB+s)} offset:{n*XN+blk*256}")
        self.issue()
        for s in range(4):
            self.A(f"s_waitcnt lgkmcnt({15-5*s})")
            for n in range(3):
                self.mfma(vAcc + 4 * n, vAf + 4 * s, self.bf(n, s), 0 if (first and s == 0) else None)

    def load_bfrags_dyn(self):
        for s in range(4):
            self.A(f"v_add_u32 {vr(vAf+s)}, {sr(sBlk)}, {vr(vXB+s)}")
        for s in range(4):
            for n in range(3):
                self.A(f"ds_read_b128 {vr(self.bf(n,s),4)}, {vr(vAf+s)} offset:{n*XN}")

    def x_loads(self):
        self.A(f"s_mul_i32 {sr(sT0)}, {sr(sW)}, 6")
        self.A(f"s_mul_i32 {sr(sT1)}, {sr(sB)}, 49152")
        self.A(f"v_lshlrev_b32 {vr(vT+1)}, 4, {vr(vL)}")
        for j in range(6):
            self.A(f"s_add_u32 {sr(sT2)}, {sr(sT0)}, {j}")
            self.A(f"s_and_b32 {sr(sT3)}, {sr(sT2)}, 15")
            self.A(f"s_lshl_b32 {sr(sT3)}, {sr(sT3)}, 4")
            self.A(f"v_xor_b32 {vr(vT)}, {sr(sT3)}, {vr(vT+1)}")
            self.A(f"s_mul_i32 {sr(sT3)}, {sr(sT2)}, {XROW}")
            self.A(f"s_add_u32 m0, {sr(sT3)}, {XB}")
            self.A(f"s_lshl_b32 {sr(sT2)}, {sr(sT2)}, 10")
            self.A(f"s_add_u32 {sr(sT2)}, {sr(sT2)}, {sr(sT1)}")
            self.A(f"buffer_load_dwordx4 {vr(vT)}, {sr(SRD_X,4)}, {sr(sT2)} offen lds")

    def srd(self, d, p, size):
        self.A(f"s_mov_b32 {sr(d)}, {sr(p)}")
        self.A(f"s_mov_b32 {sr(d+1)}, {sr(p+1)}")
        self.A(f"s_mov_b32 {sr(d+2)}, {size}")
        self.A(f"s_mov_b32 {sr(d+3)}, 0x20000")

    def reduce4(self, x, op):
        self.A(f"v_mov_b32 {vr(x+3)}, {vr(x+2)}")
        self.A("s_nop 1")
        self.A(f"v_permlane32_swap_b32 {vr(x)}, {vr(x+1)}")
        self.A(f"v_permlane32_swap_b32 {vr(x+2)}, {vr(x+3)}")
        self.A("s_nop 1")
        self.A(f"{op} {vr(x)}, {vr(x)}, {vr(x+1)}")
        self.A(f"{op} {vr(x+2)}, {vr(x+2)}, {vr(x+3)}")
        self.A("s_nop 1")
        self.A(f"v_permlane16_swap_b32 {vr(x)}, {vr(x+2)}")
        self.A("s_nop 1")
        self.A(f"{op} {vr(x)}, {vr(x)}, {vr(x+2)}")

    def allreduce3(self, x, t, op):
        for sw in ("v_permlane32_swap_b32", "v_permlane16_swap_b32"):
            for n in range(3):
                self.A(f"v_mov_b32 {vr(t+n)}, {vr(x+n)}")
            self.A("s_nop 1")
            for n in range(3):
                self.A(f"{sw} {vr(x+n)}, {vr(t+n)}")
            self.A("s_nop 1")
            for n in range(3):
                self.A(f"{op} {vr(x+n)}, {vr(x+n)}, {vr(t+n)}")

    def max16(self, dst, regs):
        self.A(f"v_max3_f32 {vr(dst)}, {vr(regs[0])}, {vr(regs[1])}, {vr(regs[2])}")
        k = 3
        while k + 1 < len(regs):
            self.A(f"v_max3_f32 {vr(dst)}, {vr(dst)}, {vr(regs[k])}, {vr(regs[k+1])}")
            k += 2
        if k < len(regs):
            self.A(f"v_max_f32 {vr(dst)}, {vr(dst)}, {vr(regs[k])}")

    def stamp(self, idx):
        if not self.opt.get("stamps"):
            return
        self.A(f"s_memrealtime {sr(sStamp,2)}")
        self.A("s_waitcnt lgkmcnt(0)")
        self.A(f"v_writelane_b32 {vr(23)}, {sr(sStamp)}, {idx}")

    def store_y(self):
        self.A("s_nop 7")
        for n in range(3):
            for jp in range(2):
                q = vS + (n * 2 + jp) * 4
                for h in range(2):
                    y = vY + ((2 * jp + h) * 3 + n) * 4
                    self.A(f"v_cvt_pk_bf16_f32 {vr(q+2*h)}, {vr(y)}, {vr(y+1)}")
                    self.A(f"v_cvt_pk_bf16_f32 {vr(q+2*h+1)}, {vr(y+2)}, {vr(y+3)}")
        self.A(f"s_mul_i32 {sr(sT1)}, {sr(sW)}, 6144")
        self.A(f"s_add_u32 {sr(sT0)}, {sr(sT0)}, {sr(sT1)}")
        self.A(f"v_lshlrev_b32 {vr(vT)}, 4, {vr(vL)}")
        for k in range(6):
            q = vS + k * 4
            self.A(f"v_permlane16_swap_b32 {vr(q)}, {vr(q+2)}")
            self.A(f"v_permlane16_swap_b32 {vr(q+1)}, {vr(q+3)}")
        for k in range(6):
            q = vS + k * 4
            if k == 4:
                self.A(f"s_add_u32 {sr(sT0)}, {sr(sT0)}, 4096")
            self.A(f"buffer_store_dwordx4 {vr(q,4)}, {vr(vT)}, {sr(SRD_WS,4)}, {sr(sT0)} offen offset:{(k%4)*1024}")

    def zero_y(self):
        for k in range(48):
            self.A(f"v_mov_b32 {vr(vY+k)}, 0")

    def main_kernel(self):
        A, lab, c = self.A, self.lab, self.c
        opt = self.opt
        kvf = opt.get("kvflag", " nt")
        K1 = NAME + "_kernel"
        self.L += [f".globl {K1}", ".p2align 8", f".type {K1},@function"]
        lab(K1)
        A("s_cmp_ge_u32 s2, 256")
        A("s_cbranch_scc1 L_end")
        A(f"s_load_dwordx8 {sr(32,8)}, s[0:1], 0")
        A(f"s_load_dwordx2 {sr(40,2)}, s[0:1], 32")
        A(f"s_load_dwordx8 {sr(44,8)}, s[0:1], 40")
        A(f"s_load_dwordx2 {sr(52,2)}, s[0:1], 72")
        A(f"s_load_dwordx2 {sr(54,2)}, s[0:1], 96")
        if opt.get("stamps"):
            A(f"v_mov_b32 {vr(23)}, 0")
        A(f"v_lshrrev_b32 {vr(vT)}, 6, v0")
        A(f"v_and_b32 {vr(vL)}, 63, v0")
        A(f"v_readfirstlane_b32 {sr(sW)}, {vr(vT)}")
        A(f"s_and_b32 {sr(sG)}, s2, 7")
        A(f"s_lshr_b32 {sr(sT0)}, s2, 3")
        A(f"s_and_b32 {sr(sB)}, {sr(sT0)}, 15")
        A(f"s_lshr_b32 {sr(sRole)}, {sr(sT0)}, 4")
        A(f"s_lshl_b32 {sr(sW1024)}, {sr(sW)}, 10")
        c("DMA lane offsets: row = 4w + (l>>4), 32-byte chunk XOR key(row)")
        t0, t1, t2, t3, t4, t5 = vT, vT + 1, vT + 2, vT + 3, vT + 4, vT + 5
        A(f"v_lshrrev_b32 {vr(t0)}, 4, {vr(vL)}")
        A(f"s_lshr_b32 {sr(sT0)}, {sr(sW)}, 1")
        A(f"s_and_b32 {sr(sT0)}, {sr(sT0)}, 1")
        A(f"s_lshl_b32 {sr(sT0)}, {sr(sT0)}, 2")
        A(f"v_or_b32 {vr(t1)}, {sr(sT0)}, {vr(t0)}")
        A(f"v_bfe_u32 {vr(t2)}, {vr(vL)}, 1, 3")
        A(f"v_xor_b32 {vr(t1)}, {vr(t1)}, {vr(t2)}")
        A(f"v_lshlrev_b32 {vr(t1)}, 5, {vr(t1)}")
        A(f"v_and_b32 {vr(t2)}, 1, {vr(vL)}")
        A(f"v_lshl_or_b32 {vr(t1)}, {vr(t2)}, 4, {vr(t1)}")
        A(f"s_lshl_b32 {sr(sT0)}, {sr(sW)}, 2")
        A(f"v_add_u32 {vr(t2)}, {sr(sT0)}, {vr(t0)}")
        A(f"v_lshl_add_u32 {vr(vWq)}, {vr(t2)}, 13, {vr(t1)}")
        A(f"v_lshl_add_u32 {vr(vKV)}, {vr(t2)}, 8, {vr(t1)}")
        A(f"v_lshl_add_u32 {vr(vWo)}, {vr(t2)}, 10, {vr(t1)}")
        A("s_waitcnt lgkmcnt(0)")
        self.srd(SRD_X, sBx, 786432)
        self.x_loads()
        self.srd(SRD_WQ, sBwq, 4194304)
        self.srd(SRD_K, sBk, 67108864)
        self.srd(SRD_V, sBv, 67108864)
        self.srd(SRD_WO, sBwo, 4194304)
        c("first B head: 4g for the A role, 4g+1 for the B role")
        A(f"s_lshl_b32 {sr(sT4)}, {sr(sG)}, 2")
        A(f"s_add_u32 {sr(sT4)}, {sr(sT4)}, 1")
        A(f"s_sub_u32 {sr(sT4)}, {sr(sT4)}, {sr(sRole)}")
        A(f"s_lshl_b32 {sr(sE)}, {sr(sT4)}, 8")
        A(f"v_mov_b32 {vr(vTab)}, {NULL_OFF}")
        A(f"s_add_u32 {sr(sT5)}, {sr(sE)}, {128*8192}")
        A(f"v_writelane_b32 {vr(vTab)}, {sr(sT5)}, 1")
        A(f"s_mov_b32 {sr(sI)}, {sr(sW1024)}")
        A(f"s_mov_b32 {sr(sC)}, {TILE}")
        A(f"s_mov_b32 {sr(sIdx)}, 0")
        self.issue()
        self.issue()
        self.srd(SRD_WS, sWs, 268435456)
        c("tile table: entry = soffset | type (0 Wq, 1 K, 2 V, 3 Wo)")
        bq, bkv, bo = sT0, sT1, sT2
        A(f"s_lshl_b32 {sr(bq)}, {sr(sT4)}, 8")
        A(f"s_lshl_b32 {sr(bkv)}, {sr(sB)}, 5")
        A(f"s_add_u32 {sr(bkv)}, {sr(bkv)}, {sr(sT4)}")
        A(f"s_lshl_b32 {sr(bkv)}, {sr(bkv)}, 17")
        A(f"s_lshl_b32 {sr(bo)}, {sr(sT4)}, 17")

        def ent(lane, base, const):
            A(f"s_add_u32 {sr(sT5)}, {sr(base)}, {const}")
            A(f"v_writelane_b32 {vr(vTab)}, {sr(sT5)}, {lane}")

        def seq(tiles, start):
            for k, (ty, hh, t) in enumerate(tiles):
                if ty == 0:
                    ent(start + k, bq, t * 128 * 8192 + hh * 256 + 0)
                elif ty in (1, 2):
                    ent(start + k, bkv, hh * 131072 + t * 32768 + ty)
                else:
                    ent(start + k, bo, (hh * 128 + 32 * t) * 1024 + 3)

        seq([(0, 0, 2), (0, 0, 3)] + [(1, 0, t) for t in range(4)], 2)
        A(f"s_cmp_eq_u32 {sr(sRole)}, 1")
        A("s_cbranch_scc1 L_tabA")
        tb = [(0, 1, t) for t in range(4)] + [(0, 2, t) for t in range(4)]
        tb += [(2, 0, t) for t in range(4)] + [(3, 0, t) for t in range(4)]
        for hh in (1, 2):
            tb += [(1, hh, t) for t in range(4)] + [(2, hh, t) for t in range(4)] + [(3, hh, t) for t in range(4)]
        seq(tb, 8)
        A(f"s_mov_b32 {sr(sHead)}, 3")
        A("s_branch L_tabdone")
        lab("L_tabA")
        seq([(2, 0, t) for t in range(4)] + [(3, 0, t) for t in range(4)], 8)
        A(f"s_lshl_b32 {sr(bkv)}, {sr(sB)}, 3")
        A(f"s_add_u32 {sr(bkv)}, {sr(bkv)}, {sr(sG)}")
        A(f"s_lshl_b32 {sr(bkv)}, {sr(bkv)}, 17")
        ta = [(0, hh, t) for hh in range(4) for t in range(4)]
        for t in range(4):
            ta += [(1, 0, t), (2, 0, t)]
        ta += [(3, hh, t) for hh in range(4) for t in range(4)]
        seq(ta, 16)
        A(f"s_mov_b32 {sr(sHead)}, 1")
        lab("L_tabdone")
        A("s_nop 0")
        A(f"v_readlane_b32 {sr(sE)}, {vr(vTab)}, {sr(sIdx)}")
        c("fragment addresses")
        A(f"v_lshrrev_b32 {vr(t0)}, 4, {vr(vL)}")
        A(f"v_and_b32 {vr(t1)}, 15, {vr(vL)}")
        A(f"v_bfe_u32 {vr(t2)}, {vr(vL)}, 2, 2")
        A(f"v_and_b32 {vr(t3)}, 3, {vr(vL)}")
        A(f"v_lshl_add_u32 {vr(t4)}, {vr(t0)}, 3, {vr(t2)}")
        A(f"v_lshlrev_b32 {vr(t4)}, 8, {vr(t4)}")
        A(f"v_and_b32 {vr(t5)}, 1, {vr(t0)}")
        A(f"v_lshl_or_b32 {vr(t5)}, {vr(t5)}, 2, {vr(t2)}")
        A(f"v_lshl_or_b32 {vr(t4)}, {vr(t5)}, 5, {vr(t4)}")
        A(f"v_lshl_or_b32 {vr(t4)}, {vr(t3)}, 3, {vr(t4)}")
        A(f"s_lshl_b32 {sr(sT0)}, {sr(sW)}, 5")
        A(f"v_xor_b32 {vr(vTRw)}, {sr(sT0)}, {vr(t4)}")
        A(f"s_and_b32 {sr(sT0)}, {sr(sW)}, 1")
        A(f"s_lshl_b32 {sr(sT0)}, {sr(sT0)}, 7")
        A(f"v_xor_b32 {vr(vTRo)}, {sr(sT0)}, {vr(t4)}")
        A(f"s_lshr_b32 {sr(sT1)}, {sr(sW)}, 1")
        A(f"s_lshl_b32 {sr(sT1)}, {sr(sT1)}, 13")
        A(f"v_add_u32 {vr(vTRo)}, {sr(sT1)}, {vr(vTRo)}")
        A(f"v_lshrrev_b32 {vr(t4)}, 2, {vr(t1)}")
        A(f"v_lshl_or_b32 {vr(t4)}, {vr(t4)}, 3, {vr(t3)}")
        A(f"v_lshlrev_b32 {vr(t4)}, 8, {vr(t4)}")
        A(f"v_lshrrev_b32 {vr(t5)}, 1, {vr(t0)}")
        A(f"v_and_b32 {vr(vKb)}, 7, {vr(t1)}")
        A(f"v_xor_b32 {vr(t5)}, {vr(t5)}, {vr(vKb)}")
        A(f"v_lshl_or_b32 {vr(t4)}, {vr(t5)}, 5, {vr(t4)}")
        A(f"v_and_b32 {vr(t5)}, 1, {vr(t0)}")
        A(f"v_lshl_or_b32 {vr(t4)}, {vr(t5)}, 4, {vr(t4)}")
        A(f"s_and_b32 {sr(sT0)}, {sr(sW)}, 1")
        A(f"s_lshl_b32 {sr(sT0)}, {sr(sT0)}, 10")
        A(f"s_add_u32 {sr(sT0)}, {sr(sT0)}, {sr(sT1)}")
        A(f"v_add_u32 {vr(vKb)}, {sr(sT0)}, {vr(t4)}")
        A(f"v_mul_u32_u24 {vr(t4)}, {XROW}, {vr(t1)}")
        A(f"v_add_u32 {vr(t4)}, {XB}, {vr(t4)}")
        A(f"v_xor_b32 {vr(t5)}, {vr(t0)}, {vr(t1)}")
        A(f"v_lshlrev_b32 {vr(t5)}, 4, {vr(t5)}")
        for s in range(4):
            A(f"v_xor_b32 {vr(vXB+s)}, {s*64}, {vr(t5)}")
            A(f"v_add_u32 {vr(vXB+s)}, {vr(vXB+s)}, {vr(t4)}")
        A(f"v_lshrrev_b32 {vr(t5)}, 1, {vr(t0)}")
        A(f"s_lshl_b32 {sr(sT0)}, {sr(sW)}, 1")
        A(f"v_add_u32 {vr(t5)}, {sr(sT0)}, {vr(t5)}")
        A(f"v_xor_b32 {vr(t5)}, {vr(t5)}, {vr(t1)}")
        A(f"v_lshl_add_u32 {vr(vQW)}, {vr(t5)}, 4, {vr(t4)}")
        A(f"v_and_b32 {vr(t5)}, 1, {vr(t0)}")
        A(f"v_lshl_add_u32 {vr(vQW)}, {vr(t5)}, 3, {vr(vQW)}")
        A(f"s_lshr_b32 {sr(sT0)}, {sr(sW)}, 1")
        A(f"s_lshl_b32 {sr(sT0)}, {sr(sT0)}, 2")
        A(f"v_add_u32 {vr(t5)}, {sr(sT0)}, {vr(t0)}")
        A(f"v_xor_b32 {vr(t5)}, {vr(t5)}, {vr(t1)}")
        A(f"v_lshl_add_u32 {vr(vPW)}, {vr(t5)}, 4, {vr(t4)}")
        A(f"s_and_b32 {sr(sT0)}, {sr(sW)}, 1")
        A(f"s_lshl_b32 {sr(sT0)}, {sr(sT0)}, 3")
        A(f"v_add_u32 {vr(vPW)}, {sr(sT0)}, {vr(vPW)}")
        A(f"v_lshlrev_b32 {vr(vSTr)}, 5, {vr(t1)}")
        A(f"v_add_u32 {vr(vSTr)}, {ST}, {vr(vSTr)}")
        A(f"v_lshlrev_b32 {vr(t5)}, 1, {vr(t0)}")
        A(f"v_mov_b32 {vr(t4)}, 0x98")
        A(f"v_lshrrev_b32 {vr(t5)}, {vr(t5)}, {vr(t4)}")
        A(f"v_and_b32 {vr(t5)}, 3, {vr(t5)}")
        A(f"v_lshl_add_u32 {vr(vSTw)}, {vr(t5)}, 9, {vr(vSTr)}")
        A(f"s_lshl_b32 {sr(sT0)}, {sr(sW)}, 2")
        A(f"v_add_u32 {vr(vSTw)}, {sr(sT0)}, {vr(vSTw)}")
        cs = math.log2(math.e) / math.sqrt(128.0)
        import struct
        A(f"s_mov_b32 {sr(sScale)}, {hex(struct.unpack('<I', struct.pack('<f', cs))[0])}")
        A(f"s_mov_b32 {sr(sThr)}, 0x41000000")
        A(f"s_mov_b32 {sr(sIter)}, 1")
        self.zero_y()
        self.stamp(0)

        c("Q projection of the first head")
        A(f"s_call_b64 {sr(LINK_S,2)}, L_qproj")
        for n in range(3):
            A(f"ds_write_b64 {vr(vQW)}, {vr(vAcc+2*n,2)} offset:{n*XN+1024}")
        self.stamp(1)

        lab("L_head")
        c("scores of one B head")
        for T in range(4):
            self.step_head(lgkm0=(T == 0))
            A(f"v_add_u32 {vr(vT)}, {sr(sC)}, {vr(vKb)}")
            for s in range(1, 4):
                A(f"v_xor_b32 {vr(vT+s)}, {s*64}, {vr(vT)}")
            for s in range(4):
                A(f"ds_read_b128 {vr(vAf+4*s,4)}, {vr(vT+s)}")
                if T == 0:
                    for n in range(3):
                        A(f"ds_read_b128 {vr(self.bf(n,s),4)}, {vr(vXB+s)} offset:{n*XN+1024}")
            self.issue()
            for s in range(4):
                A(f"s_waitcnt lgkmcnt({(12-4*s) if T == 0 else (3-s)})")
                for n in range(3):
                    self.mfma(vS + (T * 3 + n) * 4, vAf + 4 * s, self.bf(n, s), 0 if s == 0 else None)
        self.stamp(2)
        c("B role, first head: remaining Q projections while x is still live")
        A(f"s_cmp_eq_u32 {sr(sHead)}, 3")
        A("s_cbranch_scc0 L_noq")
        for k in range(2):
            A(f"s_call_b64 {sr(LINK_S,2)}, L_qproj")
            for r in range(6):
                A(f"v_mov_b32 {vr(vQs+6*k+r)}, {vr(vAcc+r)}")
        lab("L_noq")
        A(f"s_cmp_eq_u32 {sr(sRole)}, 1")
        A("s_cbranch_scc0 L_nosw1")
        self.srd(SRD_WQ, sAwq, 4194304)
        self.srd(SRD_K, sAk, 16777216)
        self.srd(SRD_X, sAx, 786432)
        lab("L_nosw1")
        c("softmax: row max across waves")
        A("s_nop 4")
        for n in range(3):
            self.max16(vT + n, [vS + (T * 3 + n) * 4 + r for T in range(4) for r in range(4)])
        self.reduce4(vT, "v_max_f32")
        A(f"ds_write_b32 {vr(vSTw)}, {vr(vT)}")
        A("s_waitcnt lgkmcnt(0)")
        A("s_barrier")
        for n in range(3):
            A(f"ds_read_b128 {vr(vBf+8*n,4)}, {vr(vSTr)} offset:{n*512}")
            A(f"ds_read_b128 {vr(vBf+8*n+4,4)}, {vr(vSTr)} offset:{n*512+16}")
        for n in range(3):
            A(f"s_waitcnt lgkmcnt({4-2*n})")
            self.max16(vT + n, [vBf + 8 * n + r for r in range(8)])
            A(f"v_mul_f32 {vr(vT+n)}, {sr(sScale)}, {vr(vT+n)}")
        for T in range(4):
            for n in range(3):
                b = vS + (T * 3 + n) * 4
                for r in range(4):
                    A(f"v_fma_f32 {vr(b+r)}, {vr(b+r)}, {sr(sScale)}, -{vr(vT+n)}")
                for r in range(4):
                    A(f"v_exp_f32 {vr(b+r)}, {vr(b+r)}")
            for n in range(3):
                b = vS + (T * 3 + n) * 4
                if T == 0:
                    A(f"v_add_f32 {vr(vT+4+n)}, {vr(b)}, {vr(b+1)}")
                else:
                    A(f"v_add_f32 {vr(vT+4+n)}, {vr(vT+4+n)}, {vr(b)}")
                    A(f"v_add_f32 {vr(vT+4+n)}, {vr(vT+4+n)}, {vr(b+1)}")
                A(f"v_add_f32 {vr(vT+4+n)}, {vr(vT+4+n)}, {vr(b+2)}")
                A(f"v_add_f32 {vr(vT+4+n)}, {vr(vT+4+n)}, {vr(b+3)}")
                A(f"v_cvt_pk_bf16_f32 {vr(b)}, {vr(b)}, {vr(b+1)}")
                A(f"v_cvt_pk_bf16_f32 {vr(b+1)}, {vr(b+2)}, {vr(b+3)}")
                A(f"ds_write_b64 {vr(vPW)}, {vr(b,2)} offset:{n*XN+T*256}")
        for n in range(3):
            A(f"v_mov_b32 {vr(vT+n)}, {vr(vT+4+n)}")
        self.reduce4(vT, "v_add_f32")
        A(f"ds_write_b32 {vr(vSTw)}, {vr(vT)} offset:1536")
        self.stamp(3)
        c("P x V")
        for T in range(4):
            self.wstep(T, T == 0, lgkm0=(T == 0))
        for n in range(3):
            A(f"ds_read_b128 {vr(vBf+8*n,4)}, {vr(vSTr)} offset:{n*512+1536}")
            A(f"ds_read_b128 {vr(vBf+8*n+4,4)}, {vr(vSTr)} offset:{n*512+1536+16}")
        for n in range(3):
            A(f"s_waitcnt lgkmcnt({4-2*n})")
            b = vBf + 8 * n
            for k in range(4):
                A(f"v_add_f32 {vr(b+k)}, {vr(b+k)}, {vr(b+4+k)}")
            A(f"v_add_f32 {vr(b)}, {vr(b)}, {vr(b+1)}")
            A(f"v_add_f32 {vr(b+2)}, {vr(b+2)}, {vr(b+3)}")
            A(f"v_add_f32 {vr(b)}, {vr(b)}, {vr(b+2)}")
            A(f"v_rcp_f32 {vr(vT+n)}, {vr(b)}")
        A("s_nop 0")
        for n in range(3):
            a = vAcc + 4 * n
            for r in range(4):
                A(f"v_mul_f32 {vr(a+r)}, {vr(a+r)}, {vr(vT+n)}")
            A(f"v_cvt_pk_bf16_f32 {vr(a)}, {vr(a)}, {vr(a+1)}")
            A(f"v_cvt_pk_bf16_f32 {vr(a+1)}, {vr(a+2)}, {vr(a+3)}")
            A(f"ds_write_b64 {vr(vQW)}, {vr(a,2)} offset:{n*XN+1024}")
        self.stamp(4)
        c("output projection; hook 1 publishes the next Q, hook 2 loads the A-branch x")
        A(f"s_sub_u32 {sr(sHead)}, {sr(sHead)}, 1")
        A(f"s_cmp_gt_u32 {sr(sHead)}, 0")
        A(f"s_cselect_b32 {sr(sHook)}, 1, 0")
        A(f"s_cmp_eq_u32 {sr(sRole)}, 1")
        A(f"s_cselect_b32 {sr(sHook)}, 2, {sr(sHook)}")
        A(f"s_cbranch_scc0 L_nosw2")
        self.srd(SRD_V, sAv, 16777216)
        lab("L_nosw2")
        A(f"s_mov_b32 {sr(sBlk)}, 1024")
        A(f"s_call_b64 {sr(LINK_S,2)}, L_oproj")
        self.stamp(5)
        A(f"s_cmp_gt_u32 {sr(sHead)}, 0")
        A("s_cbranch_scc1 L_head")
        c("store the B-branch partial")
        A(f"s_lshl_b32 {sr(sT0)}, {sr(sB)}, 4")
        A(f"s_lshl_b32 {sr(sT1)}, {sr(sG)}, 1")
        A(f"s_add_u32 {sr(sT0)}, {sr(sT0)}, {sr(sT1)}")
        A(f"s_add_u32 {sr(sT0)}, {sr(sT0)}, {sr(sRole)}")
        A(f"s_mul_i32 {sr(sT0)}, {sr(sT0)}, {PART}")
        self.store_y()
        self.stamp(6)
        A(f"s_cmp_eq_u32 {sr(sRole)}, 1")
        A("s_cbranch_scc0 L_fin")

        c("GQA group: four query heads sharing one K/V")
        self.srd(SRD_WO, sAwo, 4194304)
        for hh in range(4):
            A(f"s_call_b64 {sr(LINK_S,2)}, L_qproj")
            for r in range(6):
                A(f"v_mov_b32 {vr(vX+6*hh+r)}, {vr(vAcc+r)}")
        A("s_barrier")
        for hh in range(4):
            for n in range(3):
                A(f"ds_write_b64 {vr(vQW)}, {vr(vX+6*hh+2*n,2)} offset:{n*XN+hh*256}")
        self.stamp(7)
        A(f"s_and_b32 {sr(sT0)}, {sr(sW)}, 1")
        A(f"s_lshl_b32 {sr(sT2)}, {sr(sT0)}, 14")
        A(f"s_lshl_b32 {sr(sT0)}, {sr(sT0)}, 10")
        A(f"s_lshr_b32 {sr(sT1)}, {sr(sW)}, 1")
        A(f"s_lshl_b32 {sr(sBlk)}, {sr(sT1)}, 8")
        A(f"s_lshl_b32 {sr(sT1)}, {sr(sT1)}, 13")
        A(f"s_add_u32 {sr(sT0)}, {sr(sT0)}, {sr(sT1)}")
        A(f"s_sub_u32 {sr(sT0)}, {sr(sT2)}, {sr(sT0)}")
        A(f"v_add_u32 {vr(vT)}, {sr(sT0)}, {vr(vKb)}")
        A(f"s_lshl_b32 {sr(sT0)}, {sr(sW)}, 5")
        A(f"v_xor_b32 {vr(vT+1)}, {sr(sT0)}, {vr(vTRw)}")
        A(f"v_add_u32 {vr(vTRa)}, {sr(sT2)}, {vr(vT+1)}")
        A(f"v_mov_b32 {vr(vKa)}, {vr(vT)}")
        A("s_waitcnt lgkmcnt(0)")
        A("s_barrier")
        self.load_bfrags_dyn()
        for k in range(96):
            A(f"v_mov_b32 {vr(vO+k)}, 0")
        A("s_waitcnt lgkmcnt(0)")
        for n in range(3):
            A(f"v_mov_b32 {vr(vMc+n)}, 0xf149f2ca")
            A(f"v_mov_b32 {vr(vLs+n)}, 0")
        A(f"s_mov_b32 {sr(sIter)}, 4")
        lab("L_attA")

        def sa(sg, n, t):
            return vS + ((sg * 3 + n) * 2 + t) * 4

        self.step_head()
        A(f"v_add_u32 {vr(vT)}, {sr(sC)}, {vr(vKa)}")
        for s in range(1, 4):
            A(f"v_xor_b32 {vr(vT+s)}, {s*64}, {vr(vT)}")
        tiles = [(0, 0), (0, 1), (1, 0), (1, 1)]

        def kreads(j):
            sg, t = tiles[j]
            for s in range(4):
                A(f"ds_read_b128 {vr(vAfA+((j%2)*4+s)*4,4)}, {vr(vT+s)} offset:{sg*8192+t*1024}")

        kreads(0)
        kreads(1)
        self.issue()
        for j in range(4):
            sg, t = tiles[j]
            for s in range(4):
                A(f"s_waitcnt lgkmcnt({(7-s) if j < 3 else (3-s)})")
                for n in range(3):
                    self.mfma(sa(sg, n, t), vAfA + ((j % 2) * 4 + s) * 4, self.bf(n, s), 0 if s == 0 else None)
            if j < 2:
                kreads(j + 2)
        A("s_nop 7")
        for n in range(3):
            self.max16(vT + n, [sa(sg, n, t) + r for sg in range(2) for t in range(2) for r in range(4)])
        for n in range(3):
            A(f"v_fma_f32 {vr(vAfA+n)}, {vr(vT+n)}, {sr(sScale)}, -{vr(vMc+n)}")
        A(f"v_max3_f32 {vr(vAfA)}, {vr(vAfA)}, {vr(vAfA+1)}, {vr(vAfA+2)}")
        A(f"v_cmp_lt_f32 vcc, {sr(sThr)}, {vr(vAfA)}")
        A("s_cbranch_vccnz L_rescale")
        lab("L_norescale")
        for sg in range(2):
            for n in range(3):
                b = sa(sg, n, 0)
                for r in range(8):
                    A(f"v_fma_f32 {vr(b+r)}, {vr(b+r)}, {sr(sScale)}, -{vr(vMc+n)}")
                for r in range(8):
                    A(f"v_exp_f32 {vr(b+r)}, {vr(b+r)}")
            for n in range(3):
                b = sa(sg, n, 0)
                for r in range(8):
                    A(f"v_add_f32 {vr(vLs+n)}, {vr(vLs+n)}, {vr(b+r)}")
                for r in range(4):
                    A(f"v_cvt_pk_bf16_f32 {vr(b+r)}, {vr(b+2*r)}, {vr(b+2*r+1)}")
        self.step_head()
        A(f"v_add_u32 {vr(vT)}, {sr(sC)}, {vr(vTRa)}")

        def vreads(mt):
            a = vT if mt == 0 else vT + 1 + (mt % 2)
            if mt:
                A(f"v_xor_b32 {vr(a)}, {mt*32}, {vr(vT)}")
            for sg in range(2):
                self.tr_pair(vAfA + ((mt % 4) * 2 + sg) * 4, a, sg * 8192)

        for mt in range(3):
            vreads(mt)
        self.issue()
        for mt in range(8):
            if mt + 3 < 8:
                vreads(mt + 3)
            rem = min(3, 7 - mt) * 4
            for sg in range(2):
                A(f"s_waitcnt lgkmcnt({rem + 2 - 2*sg})")
                for n in range(3):
                    self.mfma(vO + (mt * 3 + n) * 4, vAfA + ((mt % 4) * 2 + sg) * 4, sa(sg, n, 0))
        A(f"s_sub_u32 {sr(sIter)}, {sr(sIter)}, 1")
        A(f"s_cmp_gt_u32 {sr(sIter)}, 0")
        A("s_cbranch_scc1 L_attA")
        self.stamp(8)
        c("merge the two key halves of each head")
        self.allreduce3(vLs, vT, "v_add_f32")
        A(f"v_and_b32 {vr(vT)}, 15, {vr(vL)}")
        A(f"v_lshlrev_b32 {vr(vT)}, 3, {vr(vT)}")
        A(f"s_mul_i32 {sr(sT0)}, {sr(sW)}, 384")
        A(f"s_add_u32 {sr(sT0)}, {sr(sT0)}, {ST}")
        A(f"v_add_u32 {vr(vT+1)}, {sr(sT0)}, {vr(vT)}")
        A(f"s_xor_b32 {sr(sT1)}, {sr(sW)}, 1")
        A(f"s_mul_i32 {sr(sT0)}, {sr(sT1)}, 384")
        A(f"s_add_u32 {sr(sT0)}, {sr(sT0)}, {ST}")
        A(f"v_add_u32 {vr(vT+2)}, {sr(sT0)}, {vr(vT)}")
        for n in range(3):
            A(f"v_mov_b32 {vr(vAfA+2*n)}, {vr(vMc+n)}")
            A(f"v_mov_b32 {vr(vAfA+2*n+1)}, {vr(vLs+n)}")
            A(f"ds_write_b64 {vr(vT+1)}, {vr(vAfA+2*n,2)} offset:{n*128}")
        A("s_waitcnt lgkmcnt(0)")
        A("s_barrier")
        for n in range(3):
            A(f"ds_read_b64 {vr(vAfA+8+2*n,2)}, {vr(vT+2)} offset:{n*128}")
        A("s_waitcnt lgkmcnt(0)")
        for n in range(3):
            mo, lo = vAfA + 8 + 2 * n, vAfA + 9 + 2 * n
            m, f, fo = vAfA + 16 + n, vAfA + 20 + n, vAfA + 24 + n
            A(f"v_max_f32 {vr(m)}, {vr(vMc+n)}, {vr(mo)}")
            A(f"v_sub_f32 {vr(f)}, {vr(vMc+n)}, {vr(m)}")
            A(f"v_sub_f32 {vr(fo)}, {vr(mo)}, {vr(m)}")
            A(f"v_exp_f32 {vr(f)}, {vr(f)}")
            A(f"v_exp_f32 {vr(fo)}, {vr(fo)}")
            A("s_nop 0")
            A(f"v_mul_f32 {vr(m)}, {vr(f)}, {vr(vLs+n)}")
            A(f"v_fma_f32 {vr(m)}, {vr(fo)}, {vr(lo)}, {vr(m)}")
            A(f"v_rcp_f32 {vr(m)}, {vr(m)}")
            A("s_nop 0")
            A(f"v_mul_f32 {vr(vAfA+20+n)}, {vr(f)}, {vr(m)}")
        for mt in range(8):
            for n in range(3):
                for r in range(4):
                    o = vO + (mt * 3 + n) * 4 + r
                    A(f"v_mul_f32 {vr(o)}, {vr(o)}, {vr(vAfA+20+n)}")
        A(f"s_mul_i32 {sr(sT0)}, {sr(sW)}, 6144")
        A(f"s_add_u32 {sr(sT0)}, {sr(sT0)}, {XB}")
        A(f"s_mul_i32 {sr(sT1)}, {sr(sT1)}, 6144")
        A(f"s_add_u32 {sr(sT1)}, {sr(sT1)}, {XB}")
        A(f"v_lshlrev_b32 {vr(vT)}, 4, {vr(vL)}")
        A(f"v_add_u32 {vr(vT+1)}, {sr(sT0)}, {vr(vT)}")
        A(f"v_add_u32 {vr(vT+2)}, {sr(sT1)}, {vr(vT)}")
        A(f"s_bitcmp1_b32 {sr(sW)}, 0")
        A("s_cbranch_scc1 L_kh1")
        for k in range(24):
            A(f"v_cvt_pk_bf16_f32 {vr(vS+k)}, {vr(vO+48+2*k)}, {vr(vO+48+2*k+1)}")
        A("s_branch L_khdone")
        lab("L_kh1")
        for k in range(24):
            A(f"v_cvt_pk_bf16_f32 {vr(vS+k)}, {vr(vO+2*k)}, {vr(vO+2*k+1)}")
        for k in range(48):
            A(f"v_mov_b32 {vr(vO+k)}, {vr(vO+48+k)}")
        lab("L_khdone")
        for k in range(6):
            A(f"ds_write_b128 {vr(vT+1)}, {vr(vS+4*k,4)} offset:{k*1024}")
        A("s_waitcnt lgkmcnt(0)")
        A("s_barrier")
        for k in range(6):
            A(f"ds_read_b128 {vr(vS+24+4*k,4)}, {vr(vT+2)} offset:{k*1024}")
        A(f"s_mov_b32 {sr(sT2)}, 0xffff0000")
        A("s_waitcnt lgkmcnt(0)")
        A("s_barrier")
        for k in range(24):
            A(f"v_lshlrev_b32 {vr(vS)}, 16, {vr(vS+24+k)}")
            A(f"v_and_b32 {vr(vS+1)}, {sr(sT2)}, {vr(vS+24+k)}")
            A(f"v_add_f32 {vr(vO+2*k)}, {vr(vO+2*k)}, {vr(vS)}")
            A(f"v_add_f32 {vr(vO+2*k+1)}, {vr(vO+2*k+1)}, {vr(vS+1)}")
            A(f"v_cvt_pk_bf16_f32 {vr(vO+48+k)}, {vr(vO+2*k)}, {vr(vO+2*k+1)}")
        A(f"v_lshrrev_b32 {vr(vT)}, 4, {vr(vL)}")
        A(f"v_and_b32 {vr(vT+1)}, 15, {vr(vL)}")
        A(f"v_lshrrev_b32 {vr(vT+2)}, 1, {vr(vT)}")
        A(f"s_and_b32 {sr(sT0)}, {sr(sW)}, 1")
        A(f"s_lshl_b32 {sr(sT0)}, {sr(sT0)}, 3")
        A(f"v_add_u32 {vr(vT+2)}, {sr(sT0)}, {vr(vT+2)}")
        A(f"v_xor_b32 {vr(vT+2)}, {vr(vT+2)}, {vr(vT+1)}")
        A(f"v_lshlrev_b32 {vr(vT+2)}, 4, {vr(vT+2)}")
        A(f"v_and_b32 {vr(vT)}, 1, {vr(vT)}")
        A(f"v_lshl_or_b32 {vr(vT+2)}, {vr(vT)}, 3, {vr(vT+2)}")
        A(f"v_mul_u32_u24 {vr(vT+1)}, {XROW}, {vr(vT+1)}")
        A(f"s_add_u32 {sr(sT0)}, {sr(sBlk)}, {XB}")
        A(f"v_add_u32 {vr(vT+1)}, {sr(sT0)}, {vr(vT+1)}")
        for jj in range(4):
            A(f"v_xor_b32 {vr(vT+3)}, {jj*32}, {vr(vT+2)}")
            A(f"v_add_u32 {vr(vT+3)}, {vr(vT+3)}, {vr(vT+1)}")
            for n in range(3):
                A(f"ds_write_b64 {vr(vT+3)}, {vr(vO+48+(jj*3+n)*2,2)} offset:{n*XN}")
        A("s_waitcnt lgkmcnt(0)")
        self.zero_y()
        self.stamp(9)
        A(f"s_mov_b32 {sr(sHook)}, 0")
        A(f"s_mov_b32 {sr(sBlk)}, 0")
        lab("L_oprojA")
        A(f"s_call_b64 {sr(LINK_S,2)}, L_oproj")
        A(f"s_add_u32 {sr(sBlk)}, {sr(sBlk)}, 256")
        A(f"s_cmp_lt_u32 {sr(sBlk)}, 1024")
        A("s_cbranch_scc1 L_oprojA")
        A(f"s_lshl_b32 {sr(sT0)}, {sr(sB)}, 3")
        A(f"s_add_u32 {sr(sT0)}, {sr(sT0)}, {sr(sG)}")
        A(f"s_mul_i32 {sr(sT0)}, {sr(sT0)}, {PART}")
        A(f"s_add_u32 {sr(sT0)}, {sr(sT0)}, {PART_A_BASE}")
        self.store_y()
        self.stamp(10)
        lab("L_fin")
        if opt.get("stamps"):
            A("s_waitcnt vmcnt(0)")
            self.stamp(11)
            A(f"s_lshl_b32 {sr(sT0)}, s2, 3")
            A(f"s_add_u32 {sr(sT0)}, {sr(sT0)}, {sr(sW)}")
            A(f"s_lshl_b32 {sr(sT0)}, {sr(sT0)}, 8")
            A(f"s_add_u32 {sr(sT0)}, {sr(sT0)}, {64*1024*1024}")
            A(f"v_lshlrev_b32 {vr(vT)}, 2, {vr(vL)}")
            A(f"buffer_store_dword {vr(23)}, {vr(vT)}, {sr(SRD_WS,4)}, {sr(sT0)} offen")
        lab("L_end")
        A("s_endpgm")

        lab("L_rescale")
        self.allreduce3(vT, vAfA, "v_max_f32")
        for n in range(3):
            A(f"v_mul_f32 {vr(vT+n)}, {sr(sScale)}, {vr(vT+n)}")
            A(f"v_max_f32 {vr(vT+n)}, {vr(vT+n)}, {vr(vMc+n)}")
            A(f"v_sub_f32 {vr(vAfA+n)}, {vr(vMc+n)}, {vr(vT+n)}")
            A(f"v_mov_b32 {vr(vMc+n)}, {vr(vT+n)}")
            A(f"v_exp_f32 {vr(vAfA+n)}, {vr(vAfA+n)}")
        A("s_nop 0")
        for n in range(3):
            A(f"v_mul_f32 {vr(vLs+n)}, {vr(vLs+n)}, {vr(vAfA+n)}")
        for mt in range(8):
            for n in range(3):
                for r in range(4):
                    o = vO + (mt * 3 + n) * 4 + r
                    A(f"v_mul_f32 {vr(o)}, {vr(o)}, {vr(vAfA+n)}")
        A("s_branch L_norescale")

        lab("L_qproj")
        for s in range(4):
            self.wstep(s, s == 0)
        A("s_nop 7")
        for n in range(3):
            a = vAcc + 4 * n
            A(f"v_cvt_pk_bf16_f32 {vr(vAcc+2*n)}, {vr(a)}, {vr(a+1)}")
            A(f"v_cvt_pk_bf16_f32 {vr(vAcc+2*n+1)}, {vr(a+2)}, {vr(a+3)}")
        A(f"s_setpc_b64 {sr(LINK_S,2)}")

        lab("L_oproj")
        for ks in range(4):
            self.step_head(lgkm0=(ks <= 1))
            A(f"v_add_u32 {vr(vT)}, {sr(sC)}, {vr(vTRo)}")
            for j in range(1, 4):
                A(f"v_xor_b32 {vr(vT+j)}, {j*32}, {vr(vT)}")
            if ks == 0:
                self.load_bfrags_dyn()
            for j in range(4):
                self.tr_pair(vAf + 4 * j, vT + j, 0)
            self.issue()
            if ks == 1:
                A(f"s_cmp_eq_u32 {sr(sHook)}, 0")
                A("s_cbranch_scc1 L_hookdone")
                A(f"s_cmp_eq_u32 {sr(sHook)}, 1")
                A("s_cbranch_scc1 L_hook1")
                self.x_loads()
                A("s_branch L_hookdone")
                lab("L_hook1")
                A("s_waitcnt lgkmcnt(0)")
                for n in range(3):
                    A(f"ds_write_b64 {vr(vQW)}, {vr(vQs+2*n,2)} offset:{n*XN+1024}")
                A("s_waitcnt lgkmcnt(0)")
                for r in range(6):
                    A(f"v_mov_b32 {vr(vQs+r)}, {vr(vQs+6+r)}")
                lab("L_hookdone")
            for j in range(4):
                A(f"s_waitcnt lgkmcnt({6-2*j})")
                for n in range(3):
                    self.mfma(vY + (j * 3 + n) * 4, vAf + 4 * j, self.bf(n, ks))
        A(f"s_setpc_b64 {sr(LINK_S,2)}")

        lab("L_issue")
        A(f"s_and_b32 {sr(sOff)}, {sr(sE)}, 0xfffffffc")
        A(f"s_mov_b32 m0, {sr(sI)}")
        A(f"s_bitcmp1_b32 {sr(sE)}, 1")
        A("s_cbranch_scc1 L_iss23")
        A(f"s_bitcmp1_b32 {sr(sE)}, 0")
        A("s_cbranch_scc1 L_iss1")

        def loads(v, srd, stride, fl, last):
            for k in range(4):
                A(f"buffer_load_dwordx4 {vr(v)}, {sr(srd,4)}, {sr(sOff)} offen{fl} lds")
                if k < 3:
                    A("s_add_u32 m0, m0, 8192")
                    A(f"s_add_u32 {sr(sOff)}, {sr(sOff)}, {stride}")
            if not last:
                A("s_branch L_issd")

        loads(vWq, SRD_WQ, 32 * 8192, "", False)
        lab("L_iss1")
        loads(vKV, SRD_K, 8192, kvf, False)
        lab("L_iss23")
        A(f"s_bitcmp1_b32 {sr(sE)}, 0")
        A("s_cbranch_scc1 L_iss3")
        loads(vKV, SRD_V, 8192, kvf, False)
        lab("L_iss3")
        loads(vWo, SRD_WO, 256, "", True)
        lab("L_issd")
        A(f"s_add_u32 {sr(sIdx)}, {sr(sIdx)}, 1")
        A(f"s_add_u32 {sr(sI)}, {sr(sC)}, {sr(sW1024)}")
        A(f"v_readlane_b32 {sr(sE)}, {vr(vTab)}, {sr(sIdx)}")
        A(f"s_add_u32 {sr(sC)}, {sr(sC)}, {TILE}")
        A(f"s_cmp_eq_u32 {sr(sC)}, {NSLOT*TILE}")
        A(f"s_cselect_b32 {sr(sC)}, 0, {sr(sC)}")
        A(f"s_setpc_b64 {sr(LINK_I,2)}")

    def reduce_kernel(self):
        A, lab = self.A, self.lab
        K2 = "reduce_partials_kernel"
        self.L += [f".globl {K2}", ".p2align 8", f".type {K2},@function"]
        lab(K2)
        A("s_cmp_ge_u32 s2, 384")
        A("s_cbranch_scc1 L_r_end")
        A("s_load_dwordx2 s[4:5], s[0:1], 80")
        A("s_load_dwordx2 s[6:7], s[0:1], 96")
        A("s_mul_i32 s3, s2, 43691")
        A("s_lshr_b32 s3, s3, 19")
        A("s_mul_i32 s16, s3, 12")
        A("s_sub_u32 s16, s2, s16")
        A("s_and_b32 s17, s3, 15")
        A("s_lshr_b32 s18, s3, 4")
        A("s_lshl_b32 s19, s16, 8")
        A("v_add_u32 v1, s19, v0")
        A("v_lshlrev_b32 v2, 4, v1")
        A("v_lshrrev_b32 v3, 6, v1")
        A("v_mul_u32_u24 v4, 43, v3")
        A("v_lshrrev_b32 v4, 8, v4")
        A("v_mul_u32_u24 v5, 6, v4")
        A("v_sub_u32 v5, v3, v5")
        A("v_lshrrev_b32 v6, 1, v5")
        A("v_and_b32 v5, 1, v5")
        A("v_and_b32 v7, 15, v0")
        A("v_lshl_add_u32 v6, v6, 4, v7")
        A("v_lshlrev_b32 v6, 11, v6")
        A("v_lshl_add_u32 v6, v4, 7, v6")
        A("v_lshl_add_u32 v6, v5, 6, v6")
        A("v_bfe_u32 v7, v0, 4, 1")
        A("v_lshl_add_u32 v6, v7, 5, v6")
        A("v_bfe_u32 v7, v0, 5, 1")
        A("v_lshl_add_u32 v6, v7, 4, v6")
        A("s_waitcnt lgkmcnt(0)")
        A("s_mov_b32 s8, s4"); A("s_mov_b32 s9, s5"); A("s_mov_b32 s10, 1572864"); A("s_mov_b32 s11, 0x20000")
        A("s_mov_b32 s12, s6"); A("s_mov_b32 s13, s7"); A("s_mov_b32 s14, 268435456"); A("s_mov_b32 s15, 0x20000")
        A("s_mul_i32 s20, s17, 98304")
        A("s_mov_b32 s22, 0xffff0000")
        A("s_cmp_eq_u32 s18, 1")
        A("s_cbranch_scc1 L_r_A")

        def body(np_):
            for p in range(np_):
                A(f"buffer_load_dwordx4 v[{16+4*p}:{19+4*p}], v2, s[12:15], s21 offen")
                if p + 1 < np_:
                    A(f"s_add_u32 s21, s21, {PART}")
            for p in range(np_):
                A(f"s_waitcnt vmcnt({np_-1-p})")
                for k in range(4):
                    r = 16 + 4 * p + k
                    if p == 0:
                        A(f"v_lshlrev_b32 v{8+2*k}, 16, v{r}")
                        A(f"v_and_b32 v{9+2*k}, s22, v{r}")
                    else:
                        A(f"v_lshlrev_b32 v3, 16, v{r}")
                        A(f"v_and_b32 v4, s22, v{r}")
                        A(f"v_add_f32 v{8+2*k}, v{8+2*k}, v3")
                        A(f"v_add_f32 v{9+2*k}, v{9+2*k}, v4")

        A(f"s_mul_i32 s21, s17, {16*PART}")
        A("s_add_u32 s20, s20, 1024")
        body(16)
        A("s_branch L_r_st")
        lab("L_r_A")
        A(f"s_mul_i32 s21, s17, {8*PART}")
        A(f"s_add_u32 s21, s21, {PART_A_BASE}")
        body(8)
        lab("L_r_st")
        for k in range(4):
            A(f"v_cvt_pk_bf16_f32 v{16+k}, v{8+2*k}, v{9+2*k}")
        A("buffer_store_dwordx4 v[16:19], v6, s[8:11], s20 offen")
        lab("L_r_end")
        A("s_endpgm")

    def desc(self, name, nv, ns):
        self.L += [".p2align 6", f".amdhsa_kernel {name}", f"  .amdhsa_next_free_vgpr {nv}",
                   f"  .amdhsa_next_free_sgpr {ns}", f"  .amdhsa_accum_offset {nv}",
                   "  .amdhsa_group_segment_fixed_size 0", "  .amdhsa_kernarg_size 104",
                   "  .amdhsa_user_sgpr_count 2", "  .amdhsa_user_sgpr_kernarg_segment_ptr 1",
                   "  .amdhsa_system_sgpr_workgroup_id_x 1", ".end_amdhsa_kernel"]

    def build(self):
        K1 = NAME + "_kernel"
        head = HEADER + f"; @launch kernel={K1} grid=(256,1,1) block=(512,1,1) lds={LDS_BYTES}\n"
        head += "; @launch kernel=reduce_partials_kernel grid=(384,1,1) block=(256,1,1) lds=0\n"
        self.L += ['.amdgcn_target "amdgcn-amd-amdhsa--gfx950"', ".text"]
        self.main_kernel()
        self.reduce_kernel()
        self.L += ['.section .rodata,"a"']
        self.desc(K1, 256, 96)
        self.desc("reduce_partials_kernel", 80, 32)
        return head + "\n".join(self.L) + "\n"


def gen(**opt):
    return G(opt).build()


if __name__ == "__main__":
    out = sys.argv[1] if len(sys.argv) > 1 else f"cdna_kernels/{NAME}.s"
    opt = {}
    for a in sys.argv[2:]:
        k, v = a.split("=", 1)
        opt[k] = int(v) if v.lstrip("-").isdigit() else v
    open(out, "w").write(gen(**opt))
    print("wrote", out)
```

```python
import sys
def gen(nwg, waves, bytes_per_wave, inflight, nt, wbytes_per_wave=0, winfl=0, name="concat_heads__gqa_block_cached__mha_block_cached__near_ridge_kernel"):
    L = []
    ring = inflight + 4
    lds = waves * (ring + (winfl + 2 if wbytes_per_wave else 0)) * 1024
    A = L.append
    A(f"; @launch grid=({nwg},1,1) block=({waves*64},1,1) lds={lds}")
    A('.amdgcn_target "amdgcn-amd-amdhsa--gfx950"')
    A(".text"); A(f".globl {name}"); A(".p2align 8"); A(f".type {name},@function"); A(f"{name}:")
    A(f"  s_cmp_ge_u32 s2, {nwg}"); A("  s_cbranch_scc1 L_end")
    A("  s_memrealtime s[40:41]")
    A("  s_load_dwordx4 s[4:7], s[0:1], 48")
    A("  s_load_dwordx2 s[20:21], s[0:1], 96")
    A("  s_load_dwordx2 s[22:23], s[0:1], 64")
    A("  v_lshrrev_b32 v1, 6, v0"); A("  s_nop 0"); A("  v_readfirstlane_b32 s3, v1")
    A("  v_and_b32 v2, 63, v0"); A("  v_lshlrev_b32 v2, 4, v2")
    A("  s_waitcnt lgkmcnt(0)")
    A(f"  s_mul_i32 s12, s2, {waves}"); A("  s_add_u32 s12, s12, s3")
    total = nwg * waves
    half = total // 2
    A(f"  s_cmp_ge_u32 s12, {half}")
    A("  s_cselect_b32 s8, s6, s4"); A("  s_cselect_b32 s9, s7, s5")
    A(f"  s_cselect_b32 s13, {half}, 0"); A("  s_sub_u32 s12, s12, s13")
    A("  s_mov_b32 s10, 67108864"); A("  s_mov_b32 s11, 0x20000")
    A(f"  s_mul_i32 s14, s12, {bytes_per_wave}")
    A(f"  s_mul_i32 s15, s3, {(ring + (winfl + 2 if wbytes_per_wave else 0)) * 1024}")
    A("  s_mov_b32 s16, 0")
    A(f"  s_mov_b32 s17, {bytes_per_wave // 1024}")
    if wbytes_per_wave:
        A("  s_mov_b32 s24, s22"); A("  s_mov_b32 s25, s23"); A("  s_mov_b32 s26, 4194304"); A("  s_mov_b32 s27, 0x20000")
        A("  s_and_b32 s28, s2, 7"); A("  s_lshl_b32 s28, s28, 19"); A("  s_lshl_b32 s29, s3, 17"); A("  s_add_u32 s28, s28, s29")
        A("  s_mov_b32 s29, 0")
    ntf = " nt" if nt else ""
    A("L_loop:")
    ratio = (wbytes_per_wave * 4 // bytes_per_wave) if wbytes_per_wave else 0
    for j in range(4):
        A("  s_add_u32 m0, s15, s16")
        A("  s_add_u32 s16, s16, 1024")
        A(f"  s_cmp_ge_u32 s16, {ring*1024}")
        A("  s_cselect_b32 s16, 0, s16")
        A(f"  buffer_load_dwordx4 v2, s[8:11], s14 offen{ntf} lds")
        A("  s_add_u32 s14, s14, 1024")
        if j < ratio:
            A(f"  s_add_u32 m0, s15, {ring*1024}")
            A("  s_add_u32 s30, s28, s29")
            A("  s_add_u32 s29, s29, 1024"); A("  s_and_b32 s29, s29, 0x1ffff")
            A(f"  buffer_load_dwordx4 v2, s[24:27], s30 offen lds")
    tot_infl = inflight + (inflight * ratio // 4)
    A(f"  s_waitcnt vmcnt({min(63, max(0, tot_infl - 4 - ratio))})")
    A("  s_sub_u32 s17, s17, 4"); A("  s_cmp_gt_u32 s17, 0"); A("  s_cbranch_scc1 L_loop")
    A("  s_waitcnt vmcnt(0)")
    A("  s_memrealtime s[42:43]")
    A("  s_getreg_b32 s44, hwreg(HW_REG_XCC_ID)")
    A("  s_waitcnt lgkmcnt(0)")
    A("  v_mov_b32 v4, s40"); A("  v_mov_b32 v5, s41"); A("  v_mov_b32 v6, s42"); A("  v_mov_b32 v7, s44")
    A(f"  s_mul_i32 s12, s2, {waves}"); A("  s_add_u32 s12, s12, s3"); A("  s_lshl_b32 s12, s12, 4")
    A("  v_mov_b32 v8, s12")
    A("  v_cmp_eq_u32 vcc, 0, v2"); A("  s_and_saveexec_b64 s[30:31], vcc")
    A("  global_store_dwordx4 v8, v[4:7], s[20:21]")
    A("L_end:"); A("  s_endpgm")
    A('.section .rodata,"a"'); A(".p2align 6"); A(f".amdhsa_kernel {name}")
    A("  .amdhsa_next_free_vgpr 16"); A("  .amdhsa_next_free_sgpr 64"); A("  .amdhsa_accum_offset 16")
    A("  .amdhsa_group_segment_fixed_size 0"); A("  .amdhsa_kernarg_size 104"); A("  .amdhsa_user_sgpr_count 2")
    A("  .amdhsa_user_sgpr_kernarg_segment_ptr 1"); A("  .amdhsa_system_sgpr_workgroup_id_x 1"); A(".end_amdhsa_kernel")
    return "\n".join(L) + "\n"
```

```python
import gen, gen_stream, re
base = gen.gen()
def add(base, pre=None, nempty=0):
    lines = base.split("\n")
    idx = [i for i, l in enumerate(lines) if l.startswith("; @launch")]
    extra_text = ""; extra_desc = ""
    new_first = []; new_last = []
    if pre is not None:
        s = gen_stream.gen(256, 4, 131072, 12, 0, name="prestream_kernel").replace("s14 offen lds", f"s14 offen{pre} lds")
        s = s.replace("L_loop", "LP_loop").replace("L_end", "LP_end")
        body = s.split(".text\n")[1].split('.section .rodata,"a"')
        code = re.sub(r"  global_store_dwordx4.*\n", "", body[0])
        extra_text += code; extra_desc += body[1]
        new_first.append("; @launch kernel=prestream_kernel grid=(256,1,1) block=(256,1,1) lds=65536")
    if nempty:
        extra_text += ".globl empty_kernel\n.p2align 8\n.type empty_kernel,@function\nempty_kernel:\n  s_endpgm\n"
        extra_desc += "\n.p2align 6\n.amdhsa_kernel empty_kernel\n  .amdhsa_next_free_vgpr 8\n  .amdhsa_next_free_sgpr 16\n  .amdhsa_accum_offset 8\n  .amdhsa_group_segment_fixed_size 0\n  .amdhsa_kernarg_size 104\n  .amdhsa_user_sgpr_count 2\n  .amdhsa_user_sgpr_kernarg_segment_ptr 1\n  .amdhsa_system_sgpr_workgroup_id_x 1\n.end_amdhsa_kernel\n"
        new_last += ["; @launch kernel=empty_kernel grid=(1,1,1) block=(64,1,1) lds=0"] * nempty
    lines = lines[:idx[0]] + new_first + lines[idx[0]:idx[-1]+1] + new_last + lines[idx[-1]+1:]
    t = "\n".join(lines)
    t = t.replace('.section .rodata,"a"', extra_text + '.section .rodata,"a"') + extra_desc
    return t
open("e_base.s", "w").write(base)
open("e_empty2.s", "w").write(add(base, nempty=2))
open("e_prent.s", "w").write(add(base, pre=" nt"))
open("e_predef.s", "w").write(add(base, pre=""))
```

```python
import sys, math, struct

NAME = "concat_heads__gqa_block_cached__mha_block_cached__near_ridge"

HEADER = """; Kernarg layout for this problem (104 bytes, ptrs only, base s[0:1]):
;   offset  24: d_in[3] A_wq  shape=(512, 4096) dtype=bfloat16
;   offset  64: d_in[8] B_wq  shape=(512, 4096) dtype=bfloat16
"""

TILE = 32768
NSLOT = 3
XB = NSLOT * TILE
XROW = 256
XN = 16 * XROW
BLK = 48 * XROW
ST = XB + 5 * BLK
LDS_BYTES = 163840
PART = 49152
PART_A_BASE = 16 * 16 * PART
NULL_OFF = 0x40000000

T_WQ, T_K, T_V, T_WO, T_WQW = 0, 1, 2, 3, 4
ROWSH = [13, 8, 8, 10, 13]
SLABSH = [18, 13, 13, 8, 8]

sW, sC, sIdx, sE = 3, 4, 6, 7
SRD_WQ, SRD_K, SRD_V, SRD_WO, SRD_WQW, SRD_AUX = 8, 12, 16, 20, 24, 28
sAx, sAk, sAv, sAwq, sAwo = 32, 34, 36, 38, 40
sP0, sP1 = 42, 43
sBx, sBk, sBv, sBwq, sBwo = 44, 46, 48, 50, 52
sWs = 54
sB, sG, sRole, sHead, sHook, sScale, sW1024, sBlk, sThr, sIter = 56, 57, 58, 59, 60, 61, 62, 63, 64, 65
sT0, sT1, sT2, sT3, sT4, sT5 = 66, 67, 68, 69, 70, 71
sBlkEnd = 75
sStamp = 76
sFix = 79
sLate = 65
sZero = 91
SRD_CUR = [80, 84]
sOff, sTy, sStr, sI, sHalf = [72, 94], [73, 95], [74, 96], [5, 97], [88, 89]
sOff2 = 90
LINK_S = 92

vTab, vRow, vChunk, vTRw, vTR0, vKb = 1, 2, 3, 5, 6, 7
vCur = [4, 0]
vXB = 8
vQW, vPW, vSTw, vSTr = 12, 13, 14, 15
vT = 16
vAcc = 24
vQs = 48
vFr = 72
vS = 112
vY = 160
QF = [24, 28, 32, 36, 40, 44, 72, 76, 80, 84, 88, 92]
vKf = 96
vKa, vTRa = 5, 7
vNm = [12, 56, 60]
vLs = 20
vO = 160
vAfA = 24
QA = [64 + 4 * k for k in range(12)]
sQ = [98, 99, 100, 101]


def vr(a, n=1):
    return f"v{a}" if n == 1 else f"v[{a}:{a+n-1}]"


def sr(a, n=1):
    return f"s{a}" if n == 1 else f"s[{a}:{a+n-1}]"


def f32(x):
    return hex(struct.unpack('<I', struct.pack('<f', x))[0])


class G:
    def __init__(self, opt):
        self.L = []
        self.opt = opt
        self.uid = 0
        self.kvf = opt.get("kvflag", " nt")
        self.wf = opt.get("wflag", "")

    def A(self, s):
        self.L.append("  " + s)

    def lab(self, s):
        self.L.append(s + ":")

    def c(self, s):
        self.L.append("  ; " + s)

    def new(self, p):
        self.uid += 1
        return f"L_{p}{self.uid}"

    def mfma(self, d, a, b, c=None):
        cs = "0" if c == 0 else vr(d if c is None else c, 4)
        self.A(f"v_mfma_f32_16x16x32_bf16 {vr(d,4)}, {vr(a,4)}, {vr(b,4)}, {cs}")

    def M(self, d, a, b, c=None):
        return ("m", self.cap(self.mfma, d, a, b, c))

    def lane(self, v):
        self.A(f"v_mbcnt_lo_u32_b32 {vr(v)}, -1, 0")
        self.A(f"v_mbcnt_hi_u32_b32 {vr(v)}, -1, {vr(v)}")

    def rot(self):
        return [[f"s_add_u32 {sr(sC)}, {sr(sC)}, {TILE}"],
                [f"s_cmp_eq_u32 {sr(sC)}, {NSLOT*TILE}", f"s_cselect_b32 {sr(sC)}, 0, {sr(sC)}"]]

    def prep(self, p, slots=True):
        k1 = sum(v << (5 * i) for i, v in enumerate(ROWSH))
        k2 = sum(v << (5 * i) for i, v in enumerate(SLABSH))
        pre = [[f"s_add_u32 {sr(sI[p])}, {sr(sC)}, {sr(sW1024)}"]] + self.rot() if slots else []
        return pre + [
            [f"s_and_b32 {sr(sOff[p])}, {sr(sE)}, 0xffffff00"],
            [f"s_and_b32 {sr(sTy[p])}, {sr(sE)}, 7"],
            [f"s_add_u32 {sr(sIdx)}, {sr(sIdx)}, 1"],
            [f"s_lshl_b32 m0, {sr(sTy[p])}, 2", f"s_mul_i32 {sr(sP0)}, {sr(sTy[p])}, 5",
             f"s_movrels_b64 {sr(SRD_CUR[p],2)}, {sr(SRD_WQ,2)}", f"s_movrels_b32 {sr(SRD_CUR[p]+2)}, {sr(SRD_WQ+2)}"],
            [f"v_readlane_b32 {sr(sE)}, {vr(vTab)}, {sr(sIdx)}"],
            [f"s_lshr_b32 {sr(sP1)}, {hex(k1)}, {sr(sP0)}"],
            [f"s_lshr_b32 {sr(sP0)}, {hex(k2)}, {sr(sP0)}"],
            [f"v_lshl_add_u32 {vr(vCur[p])}, {vr(vRow)}, {sr(sP1)}, {vr(vChunk)}"],
            [f"s_lshl_b32 {sr(sStr[p])}, 1, {sr(sP0)}"],
            [f"s_lshl_b32 {sr(sHalf[p])}, 16, {sr(sP1)}"],
        ]

    def weave(self, prim, fill, per=2, start=0):
        fill = list(fill)
        for idx, (kind, ins) in enumerate(prim):
            self.L += ins
            if kind == "m" and idx >= start:
                k = 0
                while fill and k < per:
                    f = fill[0]
                    if isinstance(f, tuple):
                        if f[0] > idx:
                            break
                        f = f[1]
                    self.emit(f)
                    fill.pop(0)
                    k += 1
        for f in fill:
            self.emit(f[1] if isinstance(f, tuple) else f)

    def emit(self, f):
        for x in f:
            if x.endswith(":"):
                self.L.append(x)
            else:
                self.A(x)

    def cap(self, fn, *a, **k):
        keep, self.L = self.L, []
        fn(*a, **k)
        out, self.L = self.L, keep
        return out

    def head(self, vm):
        self.A("s_waitcnt " + (f"vmcnt({vm}) " if vm is not None else "") + "lgkmcnt(0)")
        if self.opt.get("allsteps") == 2:
            self.stamp(15)
        self.A("s_barrier")
        if self.opt.get("allsteps") == 1:
            self.stamp(14)

    def dma(self, k, p, kv, guard=True):
        A = self.A
        skip = self.new("sk")
        if guard:
            A(f"s_bitcmp1_b32 {sr(sW)}, 2")
            A(f"s_cbranch_scc0 {skip}")
        if k:
            A(f"s_add_u32 {sr(sOff[p])}, {sr(sOff[p])}, {sr(sStr[p])}")
        A(f"s_add_u32 m0, {sr(sI[p])}, {k*8192}")
        A(f"s_add_u32 {sr(sOff2)}, {sr(sOff[p])}, {sr(sHalf[p])}")

        def pair(fl):
            A(f"buffer_load_dwordx4 {vr(vCur[p])}, {sr(SRD_CUR[p],4)}, {sr(sOff[p])} offen{fl} lds")
            A("s_add_u32 m0, m0, 4096")
            A("s_nop 0")
            A(f"buffer_load_dwordx4 {vr(vCur[p])}, {sr(SRD_CUR[p],4)}, {sr(sOff2)} offen{fl} lds")

        if self.kvf == self.wf:
            kv = False
        if kv is not None:
            pair(self.kvf if kv else self.wf)
        else:
            l1 = self.new("kv")
            A(f"s_bitcmp1_b32 6, {sr(sTy[p])}")
            A(f"s_cbranch_scc1 {l1}")
            pair(self.wf)
            A(f"s_branch {skip}")
            self.lab(l1)
            pair(self.kvf)
        self.lab(skip)

    def D(self, k, p, kv):
        return ("d", self.cap(self.dma, k, p, kv))

    def tr_pair(self, dst, addr, off):
        self.A(f"ds_read_b64_tr_b16 {vr(dst,2)}, {vr(addr)} offset:{off}")
        self.A(f"ds_read_b64_tr_b16 {vr(dst+2,2)}, {vr(addr)} offset:{off+1024}")

    def narrow(self, pre=None, extra=None, early=None):
        A = self.A

        def fr(st, k):
            return vFr + (st * 5 + k) * 4

        def reads(T, s):
            p = T % 2
            for m in range(2):
                self.tr_pair(fr(s % 2, m), vT + 2 * p + m, s * 8192)
            for n in range(3):
                A(f"ds_read_b128 {vr(fr(s%2,2+n),4)}, {vr(vXB+s)} offset:{n*XN+T*BLK}")

        def addr(p):
            return [[f"v_add_u32 {vr(vT+2*p)}, {sr(sC)}, {vr(vTRw)}"], [f"v_xor_b32 {vr(vT+2*p+1)}, 32, {vr(vT+2*p)}"]]

        def mf(s, zero=False):
            return [self.M(vAcc + (m * 3 + n) * 4, fr(s % 2, m), fr(s % 2, 2 + n), 0 if zero else None)
                    for m in range(2) for n in range(3)]

        self.weave([], addr(0))
        for T in range(4):
            self.head(None)
            self.emit((pre or {}).get(T, []))
            prim = [("r", self.cap(reads, T, 0))]
            if T:
                prim += mf(3)
            prim.append(("r", self.cap(reads, T, 1)))
            for s in range(3):
                prim.append(("w", ["  s_waitcnt lgkmcnt(7)"]))
                prim += mf(s, T == 0 and s == 0)
                if s < 2:
                    prim.append(("r", self.cap(reads, T, s + 2)))
            late = [(10, g) for g in (extra or {}).get(T, [])]
            self.weave(prim, self.rot() + (addr(1 - T % 2) if T < 3 else []) + late, per=1 + bool(late))
        A("s_waitcnt lgkmcnt(0)")
        if early is True:
            A("s_barrier")
        elif early is None:
            l = self.new("e")
            A(f"s_cmp_eq_u32 {sr(sLate)}, 0")
            A(f"s_cbranch_scc0 {l}")
            A("s_barrier")
            self.lab(l)
        self.weave(mf(3), [])

    def load_bfrags_dyn(self, tmp, quads):
        for s in range(4):
            self.A(f"v_add_u32 {vr(tmp+s)}, {sr(sBlk)}, {vr(vXB+s)}")
        for s in range(4):
            for n in range(3):
                self.A(f"ds_read_b128 {vr(quads[n*4+s],4)}, {vr(tmp+s)} offset:{n*XN}")

    def is_loader(self, label):
        self.A(f"s_bitcmp1_b32 {sr(sW)}, 2")
        self.A(f"s_cbranch_scc1 {label}")

    def x_setup(self, va):
        A = self.A
        self.lane(va + 2)
        A(f"v_lshrrev_b32 {vr(va+1)}, 4, {vr(va+2)}")
        A(f"v_and_b32 {vr(va+2)}, 15, {vr(va+2)}")
        A(f"v_xor_b32 {vr(va+2)}, {vr(va+2)}, {vr(va+1)}")
        A(f"v_lshlrev_b32 {vr(va+2)}, 4, {vr(va+2)}")
        A(f"v_lshl_or_b32 {vr(va+2)}, {vr(va+1)}, 10, {vr(va+2)}")
        A(f"s_mul_i32 {sr(sT0)}, {sr(sW1024)}, 3")
        A(f"s_add_u32 {sr(sT2)}, {sr(sT0)}, {XB}")
        A(f"s_mul_i32 {sr(sT1)}, {sr(sB)}, 49152")
        A(f"s_lshl_b32 {sr(sT3)}, {sr(sT0)}, 2")
        A(f"s_add_u32 {sr(sT1)}, {sr(sT1)}, {sr(sT3)}")
        A(f"s_lshr_b32 {sr(sT0)}, {sr(sT0)}, 4")
        for j in range(3):
            A(f"s_add_u32 {sr(sT3)}, {sr(sT0)}, {j*64}")
            A(f"s_and_b32 {sr(sT3)}, {sr(sT3)}, 0xc0")
            A(f"v_xor_b32 {vr(va+j)}, {sr(sT3)}, {vr(va+2)}")

    def x_block(self, va, blk):
        for j in range(3):
            self.A(f"s_add_u32 m0, {sr(sT2)}, {blk*BLK+j*1024}")
            self.A(f"s_add_u32 {sr(sT3)}, {sr(sT1)}, {blk*256+j*4096}")
            self.A(f"buffer_load_dwordx4 {vr(va+j)}, {sr(SRD_AUX,4)}, {sr(sT3)} offen lds")

    def weight_prefetch(self, items, single=False):
        A = self.A
        j, off, cur = sT0, sT1, SRD_CUR[1]
        self.lane(vT + 2)
        A(f"s_lshr_b32 {sr(j)}, s2, 3")
        A(f"v_lshrrev_b32 {vr(vT)}, 1, {vr(vT+2)}")
        A(f"v_and_b32 {vr(vT+1)}, 1, {vr(vT+2)}")
        A(f"v_lshlrev_b32 {vr(vT)}, 13, {vr(vT)}")
        A(f"v_lshl_or_b32 {vr(vT)}, {vr(vT+1)}, 7, {vr(vT)}")
        A(f"v_lshlrev_b32 {vr(vT+1)}, 7, {vr(vT+2)}")
        for ptr, is_wq, h0, wave in items:
            skip = self.new("pf")
            if single:
                A(f"s_cmp_eq_u32 {sr(sW)}, {wave}")
                A(f"s_cbranch_scc0 {skip}")
                A(f"s_lshl_b32 {sr(sT2)}, {sr(sG)}, 2")
                A(f"s_add_u32 {sr(sT2)}, {sr(sT2)}, {h0}")
                A(f"s_lshl_b32 {sr(off)}, {sr(sB)}, {18 if is_wq else 13}")
                A(f"s_lshl_b32 {sr(sT2)}, {sr(sT2)}, {8 if is_wq else 17}")
                A(f"s_add_u32 {sr(off)}, {sr(off)}, {sr(sT2)}")
                A(f"s_mov_b64 {sr(cur,2)}, {sr(ptr,2)}")
                A(f"s_mov_b32 {sr(cur+2)}, 4194304")
                A(f"buffer_load_dword {vr(vRow)}, {vr(vT if is_wq else vT+1)}, {sr(cur,4)}, {sr(off)} offen")
                A(f"s_add_u32 {sr(off)}, {sr(off)}, {256 if is_wq else 131072}")
                A(f"buffer_load_dword {vr(vRow)}, {vr(vT if is_wq else vT+1)}, {sr(cur,4)}, {sr(off)} offen")
                self.lab(skip)
                continue
            A(f"s_cmp_eq_u32 {sr(sW)}, {wave}")
            A(f"s_cbranch_scc0 {skip}")
            A(f"s_lshr_b32 {sr(sT2)}, {sr(j)}, 4")
            A(f"s_lshl_b32 {sr(sT3)}, {sr(sG)}, 2")
            A(f"s_add_u32 {sr(sT2)}, {sr(sT2)}, {sr(sT3)}")
            A(f"s_add_u32 {sr(sT2)}, {sr(sT2)}, {h0}")
            A(f"s_and_b32 {sr(off)}, {sr(j)}, 15")
            A(f"s_lshl_b32 {sr(off)}, {sr(off)}, {18 if is_wq else 13}")
            A(f"s_lshl_b32 {sr(sT2)}, {sr(sT2)}, {8 if is_wq else 17}")
            A(f"s_add_u32 {sr(off)}, {sr(off)}, {sr(sT2)}")
            A(f"s_mov_b64 {sr(cur,2)}, {sr(ptr,2)}")
            A(f"s_mov_b32 {sr(cur+2)}, 4194304")
            A(f"buffer_load_dword {vr(vRow)}, {vr(vT if is_wq else vT+1)}, {sr(cur,4)}, {sr(off)} offen")
            self.lab(skip)

    def srd(self, d, p, size):
        self.A(f"s_mov_b32 {sr(d)}, {sr(p)}")
        self.A(f"s_mov_b32 {sr(d+1)}, {sr(p+1)}")
        self.A(f"s_mov_b32 {sr(d+2)}, {size}")
        self.A(f"s_mov_b32 {sr(d+3)}, 0x20000")

    def reduce4(self, x, op):
        self.A(f"v_mov_b32 {vr(x+3)}, {vr(x+2)}")
        self.A("s_nop 1")
        self.A(f"v_permlane32_swap_b32 {vr(x)}, {vr(x+1)}")
        self.A(f"v_permlane32_swap_b32 {vr(x+2)}, {vr(x+3)}")
        self.A("s_nop 1")
        self.A(f"{op} {vr(x)}, {vr(x)}, {vr(x+1)}")
        self.A(f"{op} {vr(x+2)}, {vr(x+2)}, {vr(x+3)}")
        self.A("s_nop 1")
        self.A(f"v_permlane16_swap_b32 {vr(x)}, {vr(x+2)}")
        self.A("s_nop 1")
        self.A(f"{op} {vr(x)}, {vr(x)}, {vr(x+2)}")

    def allreduce3(self, x, t, op):
        for sw in ("v_permlane32_swap_b32", "v_permlane16_swap_b32"):
            for n in range(3):
                self.A(f"v_mov_b32 {vr(t+n)}, {vr(x+n)}")
            self.A("s_nop 1")
            for n in range(3):
                self.A(f"{sw} {vr(x+n)}, {vr(t+n)}")
            self.A("s_nop 1")
            for n in range(3):
                self.A(f"{op} {vr(x+n)}, {vr(x+n)}, {vr(t+n)}")

    def maxn(self, dst, regs):
        out = [f"v_max3_f32 {vr(dst)}, {vr(regs[0])}, {vr(regs[1])}, {vr(regs[2])}"]
        k = 3
        while k + 1 < len(regs):
            out.append(f"v_max3_f32 {vr(dst)}, {vr(dst)}, {vr(regs[k])}, {vr(regs[k+1])}")
            k += 2
        if k < len(regs):
            out.append(f"v_max_f32 {vr(dst)}, {vr(dst)}, {vr(regs[k])}")
        return out

    def pkmul(self, a, f):
        sel = "op_sel_hi:[1,0]" if f % 2 == 0 else "op_sel:[0,1] op_sel_hi:[1,1]"
        return f"v_pk_mul_f32 {vr(a,2)}, {vr(a,2)}, {vr(f - f % 2,2)} {sel}"

    def stamp(self, idx):
        if not self.opt.get("stamps"):
            return
        self.A(("s_memtime" if self.opt.get("cyc") else "s_memrealtime") + f" {sr(sStamp,2)}")
        self.A("s_waitcnt lgkmcnt(0)")
        self.A(f"s_and_b32 {sr(sStamp)}, {sr(sStamp)}, 0xffffff")
        self.A(f"s_or_b32 {sr(sStamp)}, {sr(sStamp)}, {(idx+1) << 24}")
        self.A("s_mov_b32 m0, s78")
        if self.opt.get("skip"):
            l = self.new("st")
            self.A(f"s_cmp_lt_i32 s78, 0")
            self.A(f"s_cbranch_scc1 {l}")
            self.A(f"s_cmp_ge_i32 s78, 63")
            self.A(f"s_cbranch_scc1 {l}")
            self.A(f"v_writelane_b32 {vr(23)}, {sr(sStamp)}, m0")
            self.lab(l)
        else:
            self.A(f"v_writelane_b32 {vr(23)}, {sr(sStamp)}, m0")
        self.A("s_add_u32 s78, s78, 1")

    def store_y(self):
        A = self.A
        skip = self.new("sty")
        self.is_loader(skip)

        def pack(jp):
            g = []
            for n in range(3):
                q = vS + (n * 4 + jp) * 4
                for h in range(2):
                    y = vY + ((2 * jp + h) * 3 + n) * 4
                    g.append([f"v_cvt_pk_bf16_f32 {vr(q+2*h)}, {vr(y)}, {vr(y+1)}"])
                    g.append([f"v_cvt_pk_bf16_f32 {vr(q+2*h+1)}, {vr(y+2)}, {vr(y+3)}"])
            return g

        self.srd(SRD_AUX, sWs, 268435456)
        A(f"s_mul_i32 {sr(sT1)}, {sr(sW)}, 12288")
        A(f"s_add_u32 {sr(sT0)}, {sr(sT0)}, {sr(sT1)}")
        self.lane(vT)
        A(f"v_lshlrev_b32 {vr(vT)}, 4, {vr(vT)}")
        self.wide_drain(pack)
        A("s_barrier")
        for k in range(12):
            q = vS + k * 4
            A(f"v_permlane16_swap_b32 {vr(q)}, {vr(q+2)}")
            A(f"v_permlane16_swap_b32 {vr(q+1)}, {vr(q+3)}")
            A(f"buffer_store_dwordx4 {vr(q,4)}, {vr(vT)}, {sr(SRD_AUX,4)}, {sr(sT0)} offen offset:{(k%4)*1024}")
            if k in (3, 7):
                A(f"s_add_u32 {sr(sT0)}, {sr(sT0)}, 4096")
        self.lab(skip)

    def wide_drain(self, per_pair=None):
        prim = [self.M(vY + (j * 3 + n) * 4, vFr + 4 * (j + 2 if j >= 6 else j), vAcc + (3 + n) * 4) for j in range(8) for n in range(3)]
        fill = []
        if per_pair:
            for jp in range(4):
                g = per_pair(jp)
                fill += [(6 * jp + 13, x) for x in g]
        self.weave(prim, fill, per=4)

    def zero(self, base, n):
        for k in range(0, n, 2):
            self.A(f"v_mov_b64 {vr(base+k,2)}, 0")

    def act_write_addr(self, sblk, stile):
        A = self.A
        self.lane(vT + 1)
        A(f"v_lshrrev_b32 {vr(vT)}, 4, {vr(vT+1)}")
        A(f"v_and_b32 {vr(vT+1)}, 15, {vr(vT+1)}")
        A(f"v_lshrrev_b32 {vr(vT+2)}, 1, {vr(vT)}")
        if stile is not None:
            A(f"v_add_u32 {vr(vT+2)}, {sr(stile)}, {vr(vT+2)}")
        A(f"v_xor_b32 {vr(vT+2)}, {vr(vT+2)}, {vr(vT+1)}")
        A(f"v_lshlrev_b32 {vr(vT+2)}, 4, {vr(vT+2)}")
        A(f"v_and_b32 {vr(vT)}, 1, {vr(vT)}")
        A(f"v_lshl_or_b32 {vr(vT+2)}, {vr(vT)}, 3, {vr(vT+2)}")
        A(f"v_mul_u32_u24 {vr(vT+1)}, {XROW}, {vr(vT+1)}")
        A(f"s_add_u32 {sr(sT5)}, {sr(sblk)}, {XB}")
        A(f"v_add3_u32 {vr(vT+1)}, {vr(vT+1)}, {sr(sT5)}, {vr(vT+2)}")

    def frag_addrs(self):
        A = self.A
        t0, t1, t2, t3, t4, t5, vL = vT, vT + 1, vT + 2, vT + 3, vT + 4, vT + 5, vT + 6
        self.lane(vL)
        A(f"v_lshrrev_b32 {vr(t0)}, 4, {vr(vL)}")
        A(f"v_and_b32 {vr(t1)}, 15, {vr(vL)}")
        A(f"v_bfe_u32 {vr(t2)}, {vr(vL)}, 2, 2")
        A(f"v_and_b32 {vr(t3)}, 3, {vr(vL)}")
        A(f"v_lshl_add_u32 {vr(t4)}, {vr(t0)}, 3, {vr(t2)}")
        A(f"v_lshlrev_b32 {vr(t4)}, 8, {vr(t4)}")
        A(f"v_and_b32 {vr(t5)}, 1, {vr(t0)}")
        A(f"v_lshl_or_b32 {vr(t5)}, {vr(t5)}, 2, {vr(t2)}")
        A(f"v_lshl_or_b32 {vr(t4)}, {vr(t5)}, 5, {vr(t4)}")
        A(f"v_lshl_or_b32 {vr(vTR0)}, {vr(t3)}, 3, {vr(t4)}")
        A(f"s_lshr_b32 {sr(sT0)}, {sr(sW1024)}, 4")
        A(f"v_xor_b32 {vr(vTRw)}, {sr(sT0)}, {vr(vTR0)}")
        A(f"s_lshr_b32 {sr(sT1)}, {sr(sW)}, 1")
        A(f"s_lshl_b32 {sr(sT1)}, {sr(sT1)}, 13")
        A(f"v_lshrrev_b32 {vr(t4)}, 2, {vr(t1)}")
        A(f"v_lshl_or_b32 {vr(t4)}, {vr(t4)}, 3, {vr(t3)}")
        A(f"v_lshlrev_b32 {vr(t4)}, 8, {vr(t4)}")
        A(f"v_lshrrev_b32 {vr(t5)}, 1, {vr(t0)}")
        A(f"v_and_b32 {vr(vKb)}, 7, {vr(t1)}")
        A(f"v_xor_b32 {vr(t5)}, {vr(t5)}, {vr(vKb)}")
        A(f"v_lshl_or_b32 {vr(t4)}, {vr(t5)}, 5, {vr(t4)}")
        A(f"v_and_b32 {vr(t5)}, 1, {vr(t0)}")
        A(f"v_lshl_or_b32 {vr(t4)}, {vr(t5)}, 4, {vr(t4)}")
        A(f"s_and_b32 {sr(sT0)}, {sr(sW)}, 1")
        A(f"s_lshl_b32 {sr(sT0)}, {sr(sT0)}, 10")
        A(f"s_add_u32 {sr(sT0)}, {sr(sT0)}, {sr(sT1)}")
        A(f"v_add_u32 {vr(vKb)}, {sr(sT0)}, {vr(t4)}")
        A(f"v_mul_u32_u24 {vr(t4)}, {XROW}, {vr(t1)}")
        A(f"v_add_u32 {vr(t4)}, {XB}, {vr(t4)}")
        A(f"v_xor_b32 {vr(t5)}, {vr(t0)}, {vr(t1)}")
        A(f"v_lshlrev_b32 {vr(t5)}, 4, {vr(t5)}")
        for s in range(4):
            A(f"v_xor_b32 {vr(vXB+s)}, {s*64}, {vr(t5)}")
            A(f"v_add_u32 {vr(vXB+s)}, {vr(vXB+s)}, {vr(t4)}")
        A(f"v_lshrrev_b32 {vr(t5)}, 1, {vr(t0)}")
        A(f"s_lshr_b32 {sr(sT0)}, {sr(sW1024)}, 8")
        A(f"v_add_u32 {vr(t5)}, {sr(sT0)}, {vr(t5)}")
        A(f"v_xor_b32 {vr(t5)}, {vr(t5)}, {vr(t1)}")
        A(f"v_lshl_add_u32 {vr(vQW)}, {vr(t5)}, 4, {vr(t4)}")
        A(f"v_and_b32 {vr(t5)}, 1, {vr(t0)}")
        A(f"v_lshl_add_u32 {vr(vQW)}, {vr(t5)}, 3, {vr(vQW)}")
        A(f"s_lshr_b32 {sr(sT0)}, {sr(sW)}, 1")
        A(f"s_lshl_b32 {sr(sT0)}, {sr(sT0)}, 2")
        A(f"v_add_u32 {vr(t5)}, {sr(sT0)}, {vr(t0)}")
        A(f"v_xor_b32 {vr(t5)}, {vr(t5)}, {vr(t1)}")
        A(f"v_lshl_add_u32 {vr(vPW)}, {vr(t5)}, 4, {vr(t4)}")
        A(f"s_and_b32 {sr(sT0)}, {sr(sW)}, 1")
        A(f"s_lshl_b32 {sr(sT0)}, {sr(sT0)}, 3")
        A(f"v_add_u32 {vr(vPW)}, {sr(sT0)}, {vr(vPW)}")
        A(f"v_lshlrev_b32 {vr(vSTr)}, 5, {vr(t1)}")
        A(f"v_add_u32 {vr(vSTr)}, {ST}, {vr(vSTr)}")
        A(f"v_lshlrev_b32 {vr(t5)}, 1, {vr(t0)}")
        A(f"v_mov_b32 {vr(t4)}, 0x98")
        A(f"v_lshrrev_b32 {vr(t5)}, {vr(t5)}, {vr(t4)}")
        A(f"v_and_b32 {vr(t5)}, 3, {vr(t5)}")
        A(f"v_lshl_add_u32 {vr(vSTw)}, {vr(t5)}, 9, {vr(vSTr)}")
        A(f"s_lshl_b32 {sr(sT0)}, {sr(sW)}, 2")
        A(f"v_add_u32 {vr(vSTw)}, {sr(sT0)}, {vr(vSTw)}")

    def main_kernel(self):
        A, lab, c = self.A, self.lab, self.c
        opt = self.opt
        K1 = NAME + "_kernel"
        self.L += [f".globl {K1}", ".p2align 8", f".type {K1},@function"]
        lab(K1)
        A("s_cmp_ge_u32 s2, 256")
        A("s_cbranch_scc1 L_end")
        if opt.get("only"):
            A("s_bitcmp1_b32 s2, 7")
            A("s_cbranch_scc%d L_end" % (1 if opt["only"] == "B" else 0))
        A(f"s_load_dwordx8 {sr(44,8)}, s[0:1], 40")
        A(f"s_load_dwordx2 {sr(52,2)}, s[0:1], 72")
        A(f"s_load_dwordx8 {sr(32,8)}, s[0:1], 0")
        A(f"s_load_dwordx2 {sr(40,2)}, s[0:1], 32")
        A(f"s_load_dwordx2 {sr(54,2)}, s[0:1], 96")
        if opt.get("stamps"):
            A(f"v_mov_b32 {vr(23)}, 0")
            A(f"s_mov_b32 s78, {-(opt.get('skip', 1) - 1)}")
        vL = vT + 6
        A(f"v_lshrrev_b32 {vr(vT)}, 6, v0")
        A(f"v_and_b32 {vr(vL)}, 63, v0")
        A(f"v_readfirstlane_b32 {sr(sW)}, {vr(vT)}")
        A(f"s_and_b32 {sr(sG)}, s2, 7")
        A(f"s_lshr_b32 {sr(sT0)}, s2, 3")
        A(f"s_and_b32 {sr(sB)}, {sr(sT0)}, 15")
        A(f"s_lshr_b32 {sr(sRole)}, {sr(sT0)}, 4")
        A(f"s_and_b32 {sr(sT1)}, {sr(sW)}, 3")
        A(f"s_lshl_b32 {sr(sW1024)}, {sr(sT1)}, 10")
        c("DMA lane offsets: row = 4(w&3) + (l>>4) (+16), 32-byte chunk XOR key(row)")
        t0, t1, t2, t3, t4, t5 = vT, vT + 1, vT + 2, vT + 3, vT + 4, vT + 5
        A(f"v_lshrrev_b32 {vr(t0)}, 4, {vr(vL)}")
        A(f"s_lshl_b32 {sr(sT0)}, {sr(sW)}, 1")
        A(f"s_and_b32 {sr(sT0)}, {sr(sT0)}, 4")
        A(f"v_or_b32 {vr(t1)}, {sr(sT0)}, {vr(t0)}")
        A(f"v_bfe_u32 {vr(t2)}, {vr(vL)}, 1, 3")
        A(f"v_xor_b32 {vr(t1)}, {vr(t1)}, {vr(t2)}")
        A(f"v_lshlrev_b32 {vr(t1)}, 5, {vr(t1)}")
        A(f"v_and_b32 {vr(t2)}, 1, {vr(vL)}")
        A(f"v_lshl_or_b32 {vr(vChunk)}, {vr(t2)}, 4, {vr(t1)}")
        A(f"s_lshl_b32 {sr(sT0)}, {sr(sT1)}, 2")
        A(f"v_add_u32 {vr(vRow)}, {sr(sT0)}, {vr(t0)}")
        A(f"v_lshl_add_u32 {vr(vCur[0])}, {vr(vRow)}, {ROWSH[T_WQ]}, {vr(vChunk)}")
        c("first B head: 4g for the A role, 4g+1 for the B role")
        A(f"s_lshl_b32 {sr(sT4)}, {sr(sG)}, 2")
        A(f"s_add_u32 {sr(sT4)}, {sr(sT4)}, 1")
        A(f"s_sub_u32 {sr(sT4)}, {sr(sT4)}, {sr(sRole)}")
        A(f"s_lshl_b32 {sr(sE)}, {sr(sT4)}, 8")
        A(f"v_mov_b32 {vr(vTab)}, {NULL_OFF}")
        self.x_setup(vY)
        A(f"s_bitcmp1_b32 {sr(sW)}, 2")
        A("s_waitcnt lgkmcnt(0)")
        self.srd(SRD_AUX, sBx, 786432)
        self.srd(SRD_WQ, sBwq, 4194304)
        self.srd(SRD_CUR[0], sBwq, 4194304)
        self.srd(SRD_CUR[1], sBwq, 4194304)
        A("s_cbranch_scc1 L_pro_ld")
        self.weight_prefetch([(sBwq, True, 0, 0), (sAwq, True, 0, 1), (sAwq, True, 2, 2)])
        if opt.get("codepf", 1):
            A(f"s_cmp_eq_u32 {sr(sW)}, 3")
            A("s_cbranch_scc0 L_pro_done")
            A(f"s_getpc_b64 {sr(sT2,2)}")
            lab("L_pc")
            A(f"s_and_b32 {sr(sT0)}, {sr(sT0)}, 7")
            A(f"s_lshl_b32 {sr(sT0)}, {sr(sT0)}, 13")
            A(f"v_add_u32 {vr(vT+1)}, {sr(sT0)}, {vr(vT+1)}")
            A(f"v_min_u32 {vr(vT+1)}, L_code_end-L_pc-4, {vr(vT+1)}")
            A(f"global_load_dword {vr(vRow)}, {vr(vT+1)}, {sr(sT2,2)}")
        A("s_branch L_pro_done")
        lab("L_pro_ld")
        for k in range(24):
            for blk in {0: {0: (0, 1, 2, 3)}, 1: {0: (0,), 8: (1, 2, 3)}}[opt.get("xorder", 0)].get(k, ()):
                self.x_block(vY, blk)
            A(f"s_add_u32 m0, {sr(sW1024)}, {k*4096}")
            if k:
                A(f"s_add_u32 {sr(sE)}, {sr(sE)}, {16*8192}")
            else:
                A("s_nop 0")
            A(f"buffer_load_dwordx4 {vr(vCur[0])}, {sr(SRD_WQ,4)}, {sr(sE)} offen{self.wf} lds")
        lab("L_pro_done")
        self.srd(SRD_WQW, sAwq, 4194304)
        A(f"s_cmp_eq_u32 {sr(sRole)}, 1")
        for d, pa, pb, za, zb in ((SRD_K, sAk, sBk, 16777216, 67108864), (SRD_V, sAv, sBv, 16777216, 67108864), (SRD_WO, sAwo, sBwo, 4194304, 4194304)):
            A(f"s_cselect_b64 {sr(d,2)}, {sr(pa,2)}, {sr(pb,2)}")
            A(f"s_mov_b32 {sr(d+2)}, {zb}")
            if za != zb:
                A(f"s_cselect_b32 {sr(d+2)}, {za}, {sr(d+2)}")
            A(f"s_mov_b32 {sr(d+3)}, 0x20000")
        A(f"s_mov_b64 {sr(SRD_AUX,2)}, {sr(sAx,2)}")
        c("tile table: entry = soffset | type")
        bq, bkv, bo = sT0, sT1, sT2
        A(f"s_lshl_b32 {sr(bq)}, {sr(sT4)}, 8")
        A(f"s_lshl_b32 {sr(bkv)}, {sr(sB)}, 5")
        A(f"s_add_u32 {sr(bkv)}, {sr(bkv)}, {sr(sT4)}")
        A(f"s_lshl_b32 {sr(bkv)}, {sr(bkv)}, 17")
        A(f"s_lshl_b32 {sr(bo)}, {sr(sT4)}, 17")

        def ent(lane, base, const):
            A(f"s_add_u32 {sr(sT5)}, {sr(base)}, {const}")
            A(f"v_writelane_b32 {vr(vTab)}, {sr(sT5)}, {lane}")

        def seq(tiles, start):
            for k, (ty, hh, t) in enumerate(tiles):
                if ty == T_WQ:
                    ent(start + k, bq, t * 128 * 8192 + hh * 256 + ty)
                elif ty == T_WQW:
                    ent(start + k, bq, t * 32 * 8192 + ty)
                elif ty in (T_K, T_V):
                    ent(start + k, bkv, hh * 131072 + t * 32768 + ty)
                else:
                    ent(start + k, bo, (hh * 128 + 32 * t) * 1024 + ty)

        A(f"s_mov_b32 {sr(sHead)}, 3")
        A(f"s_cmp_eq_u32 {sr(sRole)}, 1")
        A(f"s_cselect_b32 {sr(sHead)}, 1, 3")
        A(f"s_bitcmp1_b32 {sr(sW)}, 2")
        A("s_cbranch_scc0 L_tabdone")
        seq([(T_WQ, 0, 3)], 3)
        A(f"s_cmp_eq_u32 {sr(sRole)}, 1")
        A("s_cbranch_scc1 L_tabA")
        tb = [(T_K, 0, t) for t in range(4)]
        tb += [(T_WQ, 1, t) for t in range(4)] + [(T_WQ, 2, t) for t in range(4)]
        tb += [(T_V, 0, t) for t in range(4)] + [(T_WO, 0, t) for t in range(4)]
        for hh in (1, 2):
            tb += [(ty, hh, t) for ty in (T_K, T_V, T_WO) for t in range(4)]
        seq(tb, 4)
        A("s_branch L_tabdone")
        lab("L_tabA")
        seq([(T_WQW, 0, t) for t in range(16)], 4)
        seq([(T_WO, hh, t) for hh in range(4) for t in range(4)], 28)
        seq([(ty, 0, t) for ty in (T_K, T_V, T_WO) for t in range(4)], 44)
        A(f"s_lshl_b32 {sr(bkv)}, {sr(sB)}, 3")
        A(f"s_add_u32 {sr(bkv)}, {sr(bkv)}, {sr(sG)}")
        A(f"s_lshl_b32 {sr(bkv)}, {sr(bkv)}, 17")
        seq([(ty, 0, t) for t in range(4) for ty in (T_K, T_V)], 20)
        lab("L_tabdone")
        A(f"s_mov_b32 {sr(sIdx)}, 3")
        A(f"v_readlane_b32 {sr(sE)}, {vr(vTab)}, 3")
        A(f"s_mov_b32 {sr(sC)}, 0")
        self.frag_addrs()
        A(f"s_mov_b32 {sr(sScale)}, {f32(math.log2(math.e) / math.sqrt(128.0))}")
        A(f"s_mov_b32 {sr(sThr)}, 0x41000000")
        A(f"s_mov_b32 {sr(sZero)}, 1")
        self.stamp(0)

        if opt.get("bench"):
            A(f"s_lshl_b32 {sr(bo)}, {sr(sG)}, 19")
            A(f"s_lshl_b32 {sr(bq)}, {sr(sG)}, 10")
            bt = T_WQW if opt.get("bench") == "wq" else T_WO
            seq([(bt, (t >> 2) & 3, (t & 3) if bt == T_WO else (t & 15)) for t in range(64)], 0)
            A(f"s_mov_b32 {sr(sHook)}, 0")
            for nm, cnt, st in (("a", 4, 1), ("b", 16, 2)):
                A(f"s_mov_b32 {sr(sIter)}, {cnt}")
                lab("L_benchw" + nm)
                A(f"s_mov_b32 {sr(sBlk)}, 0")
                A(f"s_mov_b32 {sr(sBlkEnd)}, {3*BLK}")
                A(f"s_call_b64 {sr(LINK_S,2)}, L_wide")
                self.is_loader("L_bb" + nm)
                self.wide_drain()
                A("s_barrier")
                lab("L_bb" + nm)
                A(f"s_sub_u32 {sr(sIter)}, {sr(sIter)}, 1")
                A(f"s_cmp_gt_u32 {sr(sIter)}, 0")
                A("s_cbranch_scc1 L_benchw" + nm)
                self.stamp(st)
            A("s_branch L_fin")
        c("Q projection of the first B head (scaled by log2(e)/sqrt(128)); the hook streams in the A-branch x behind it")
        A(f"s_mov_b32 {sr(sHook)}, {sr(sRole)}")
        A(f"s_xor_b32 {sr(sLate)}, {sr(sRole)}, 1")
        A(f"s_call_b64 {sr(LINK_S,2)}, L_qproj")
        def q_write(src, blk):
            A(f"v_xor_b32 {vr(vT+6)}, 32, {vr(vQW)}")
            for m in range(2):
                for n in range(3):
                    A(f"ds_write_b64 {vr(vT+6 if m else vQW)}, {vr(src+(m*3+n)*2,2)} offset:{n*XN+blk*BLK}")

        self.is_loader("L_q0done")
        q_write(vAcc, 4)
        A(f"s_cmp_eq_u32 {sr(sRole)}, 1")
        A("s_cbranch_scc1 L_q0done")
        A("s_barrier")
        self.weight_prefetch([(sBwq, True, 2, 0), (sBwo, False, 0, 1), (sBwo, False, 2, 2), (sAwo, False, 0, 3), (sAwo, False, 2, 0)], single=True)
        lab("L_q0done")
        self.stamp(1)
        A(f"s_cmp_eq_u32 {sr(sRole)}, 1")
        A("s_cbranch_scc0 L_bpath")
        c("GQA group: four query heads sharing one K/V")
        A(f"s_mov_b32 {sr(sHook)}, 0")
        A(f"s_mov_b32 {sr(sBlk)}, 0")
        A(f"s_mov_b32 {sr(sBlkEnd)}, {3*BLK}")
        A(f"s_call_b64 {sr(LINK_S,2)}, L_wide")
        c("wave c < 4 holds Q of head c; x is dead after the drain barrier")
        A(f"s_bitcmp1_b32 {sr(sW)}, 2")
        A("s_cbranch_scc1 L_qa_done")
        A(f"s_mul_i32 {sr(sT0)}, {sr(sW)}, {BLK}")
        self.act_write_addr(sT0, None)
        A(f"v_mov_b32 {vr(vT+4)}, {sr(sScale)}")
        def qpack(jp):
            g = []
            for k in range(6 * jp, 6 * jp + 6):
                y = vY + k * 4
                g += [[self.pkmul(y, vT + 4)], [self.pkmul(y + 2, vT + 4)],
                      [f"v_cvt_pk_bf16_f32 {vr(y)}, {vr(y)}, {vr(y+1)}"], [f"v_cvt_pk_bf16_f32 {vr(y+1)}, {vr(y+2)}, {vr(y+3)}"]]
            return g

        self.wide_drain(qpack)
        A("s_barrier")
        for j in range(8):
            if j:
                A(f"v_xor_b32 {vr(vT+3)}, {j*32}, {vr(vT+1)}")
            for n in range(3):
                y = vY + (j * 3 + n) * 4
                A(f"ds_write_b64 {vr(vT+3 if j else vT+1)}, {vr(y,2)} offset:{n*XN}")
        lab("L_qa_done")
        self.stamp(7)
        c("wave = (head w>>1, key half w&1); O slot j holds d tile j ^ 4(w&1)")
        A(f"s_and_b32 {sr(sT0)}, {sr(sW)}, 1")
        A(f"s_lshl_b32 {sr(sT2)}, {sr(sT0)}, 14")
        A(f"s_lshl_b32 {sr(sT3)}, {sr(sT0)}, 7")
        A(f"s_lshl_b32 {sr(sT0)}, {sr(sT0)}, 10")
        A(f"s_lshr_b32 {sr(sT1)}, {sr(sW)}, 1")
        A(f"s_mul_i32 {sr(sBlk)}, {sr(sT1)}, {BLK}")
        A(f"s_lshl_b32 {sr(sT1)}, {sr(sT1)}, 13")
        A(f"s_add_u32 {sr(sT0)}, {sr(sT0)}, {sr(sT1)}")
        A(f"s_sub_u32 {sr(sT0)}, {sr(sT2)}, {sr(sT0)}")
        A(f"v_add_u32 {vr(vKa)}, {sr(sT0)}, {vr(vKb)}")
        A(f"v_xor_b32 {vr(vTRa)}, {sr(sT3)}, {vr(vTR0)}")
        A(f"v_add_u32 {vr(vTRa)}, {sr(sT2)}, {vr(vTRa)}")
        c("slot queue: the three ring slots in order, then the activation region as a fourth slot")
        for k in range(3):
            A(f"s_mov_b32 {sr(sQ[k])}, {sr(sC)}")
            self.weave([], self.rot())
        A(f"s_mov_b32 {sr(sQ[3])}, {XB}")
        A(f"v_add_u32 {vr(vT)}, {sr(sQ[0])}, {vr(vKa)}")
        for s in range(1, 4):
            A(f"v_xor_b32 {vr(vT+s)}, {s*64}, {vr(vT)}")
        for n in range(3):
            self.zero(vNm[n], 4)
            A(f"v_mov_b32 {vr(vLs+n)}, 0")
        A(f"s_mov_b32 {sr(sFix)}, 0")
        A(f"s_mov_b32 {sr(sIter)}, 4")

        def sa(sg, n, t):
            return vS + ((sg * 3 + n) * 2 + t) * 4

        tiles = [(0, 0), (0, 1), (1, 0), (1, 1)]

        def kreads(j):
            sg, t = tiles[j]
            for s in range(4):
                A(f"ds_read_b128 {vr(vAfA+((j%2)*4+s)*4,4)}, {vr(vT+s)} offset:{sg*8192+t*1024}")

        def sm_max(sg):
            f = []
            for n in range(3):
                f += [[x] for x in self.maxn(vT + n, [sa(sg, n, 0) + r for r in range(8)])]
            return f

        def sm_check(lr, ln):
            return [[f"v_max3_f32 {vr(vT+3)}, {vr(vT)}, {vr(vT+1)}, {vr(vT+2)}"],
                    [f"v_cmp_lt_f32 vcc, {sr(sThr)}, {vr(vT+3)}", f"s_cbranch_vccnz {lr}", ln + ":"]]

        def sm_exp(sg):
            f = []
            for n in range(3):
                b = sa(sg, n, 0)
                for r in range(8):
                    f.append([f"v_exp_f32 {vr(b+r)}, {vr(b+r)}"])
                    if r >= 2:
                        f.append([f"v_add_f32 {vr(vLs+n)}, {vr(vLs+n)}, {vr(b+r-2)}"])
                f.append([f"v_add_f32 {vr(vLs+n)}, {vr(vLs+n)}, {vr(b+6)}"])
                f.append([f"v_add_f32 {vr(vLs+n)}, {vr(vLs+n)}, {vr(b+7)}"])
                for r in range(4):
                    f.append([f"v_cvt_pk_bf16_f32 {vr(b+r)}, {vr(b+2*r)}, {vr(b+2*r+1)}"])
            return f

        def qrot(p):
            return [[f"s_add_u32 {sr(sI[p])}, {sr(sQ[0])}, {sr(sW1024)}"],
                    [f"s_mov_b32 {sr(sT0)}, {sr(sQ[0])}"], [f"s_mov_b32 {sr(sQ[0])}, {sr(sQ[1])}"],
                    [f"s_mov_b32 {sr(sQ[1])}, {sr(sQ[2])}"], [f"s_mov_b32 {sr(sQ[2])}, {sr(sQ[3])}"],
                    [f"s_mov_b32 {sr(sQ[3])}, {sr(sT0)}"]]

        def kstep(first):
            u = "f" if first else "l"
            self.head(8)
            kreads(0)
            kreads(1)
            prim = []
            for j in range(4):
                sg, t = tiles[j]
                prim.append(self.D(j, 1, None))
                for s in range(4):
                    prim.append(("w", [f"  s_waitcnt lgkmcnt({(7-s) if j < 3 else (3-s)})"]))
                    for n in range(3):
                        prim.append(self.M(sa(sg, n, t), vAfA + ((j % 2) * 4 + s) * 4, QA[n * 4 + s], vNm[n] if s == 0 else None))
                if j < 2:
                    prim.append(("r", self.cap(kreads, j + 2)))
                if j == 1:
                    half = len(prim)
            self.weave(prim[:half], qrot(0) + self.prep(0, False), per=1)
            fill = sm_max(0)
            if first:
                fill.append([f"s_branch L_r0first", "L_n0f:"])
            else:
                fill += sm_check("L_r0", "L_n0l")
            fill += sm_exp(0)
            self.weave(prim[half:], fill, per=4, start=6)
            A(f"s_cmp_eq_u32 {sr(sFix)}, 0")
            A("s_nop 6")
            A(f"s_cbranch_scc0 L_r0b{u}")
            lab(f"L_n0b{u}")
            self.weave([], sm_max(1) + sm_check(f"L_r1{u}", f"L_n1{u}"))
            A(f"v_add_u32 {vr(vT)}, {sr(sQ[0])}, {vr(vTRa)}")

        def vreads(q):
            sg, mt = q // 8, q % 8
            a = vT if mt == 0 else vT + 1 + (mt % 2)
            if mt:
                A(f"v_xor_b32 {vr(a)}, {mt*32}, {vr(vT)}")
            self.tr_pair(vAfA + (q % 8) * 4, a, sg * 8192)

        c("Q becomes visible; waves 4-7 then run one interval behind waves 0-3")
        self.head(16)
        self.load_bfrags_dyn(vAfA, QA)
        self.zero(vO, 96)
        A(f"s_bitcmp1_b32 {sr(sW)}, 2")
        A("s_cbranch_scc0 L_att0")
        A(f"s_add_u32 {sr(sI[1])}, {sr(sQ[3])}, {sr(sW1024)}")
        self.weave([], self.prep(1, False))
        self.head(None)
        lab("L_att0")
        kstep(True)
        lab("L_attA")
        self.head(8)
        for q in range(6):
            vreads(q)
        prim = []
        for q in range(16):
            sg, mt = q // 8, q % 8
            if q % 2 == 0 and q < 8:
                prim.append(self.D(q // 2, 0, None))
            if q + 6 < 16:
                prim.append(("r", self.cap(vreads, q + 6)))
                lastr = len(prim)
            prim.append(("w", [f"  s_waitcnt lgkmcnt({2*min(6, 15-q)})"]))
            for n in range(3):
                prim.append(self.M(vO + (mt * 3 + n) * 4, vAfA + (q % 8) * 4, sa(sg, n, 0)))
            if q == 7:
                half = len(prim)
        self.weave(prim[:half], sm_exp(1), per=3)
        A(f"s_cmp_eq_u32 {sr(sIter)}, 1")
        A("s_cbranch_scc1 L_attlast")
        fill = qrot(1) + self.prep(1, False)
        fill.append((lastr - half, [f"v_add_u32 {vr(vT)}, {sr(sQ[0])}, {vr(vKa)}"]))
        for s in range(1, 4):
            fill.append([f"v_xor_b32 {vr(vT+s)}, {s*64}, {vr(vT)}"])
        self.weave(prim[half:], fill, per=2)
        self.stamp(13)
        A(f"s_sub_u32 {sr(sIter)}, {sr(sIter)}, 1")
        kstep(False)
        A("s_branch L_attA")
        lab("L_attlast")
        self.weave(prim[half:], [])
        self.is_loader("L_attdone")
        self.head(None)
        lab("L_attdone")
        self.stamp(8)
        c("merge the two key halves of each head")
        self.srd(SRD_K, sBk, 67108864)
        self.srd(SRD_V, sBv, 67108864)
        self.allreduce3(vLs, vT, "v_add_f32")
        self.lane(vT + 3)
        A(f"v_and_b32 {vr(vT)}, 15, {vr(vT+3)}")
        A(f"v_lshlrev_b32 {vr(vT)}, 3, {vr(vT)}")
        A(f"s_mul_i32 {sr(sT0)}, {sr(sW)}, 384")
        A(f"s_add_u32 {sr(sT0)}, {sr(sT0)}, {ST}")
        A(f"v_add_u32 {vr(vT+1)}, {sr(sT0)}, {vr(vT)}")
        A(f"s_xor_b32 {sr(sT1)}, {sr(sW)}, 1")
        A(f"s_mul_i32 {sr(sT0)}, {sr(sT1)}, 384")
        A(f"s_add_u32 {sr(sT0)}, {sr(sT0)}, {ST}")
        A(f"v_add_u32 {vr(vT+2)}, {sr(sT0)}, {vr(vT)}")
        for n in range(3):
            A(f"v_mov_b32 {vr(vAfA+2*n)}, {vr(vNm[n])}")
            A(f"v_mov_b32 {vr(vAfA+2*n+1)}, {vr(vLs+n)}")
            A(f"ds_write_b64 {vr(vT+1)}, {vr(vAfA+2*n,2)} offset:{n*128}")
        self.head(None)
        for n in range(3):
            A(f"ds_read_b64 {vr(vAfA+8+2*n,2)}, {vr(vT+2)} offset:{n*128}")
        A(f"s_mul_i32 {sr(sT0)}, {sr(sW)}, 6144")
        A(f"s_add_u32 {sr(sT0)}, {sr(sT0)}, {XB}")
        A(f"s_mul_i32 {sr(sT1)}, {sr(sT1)}, 6144")
        A(f"s_add_u32 {sr(sT1)}, {sr(sT1)}, {XB}")
        A(f"v_lshlrev_b32 {vr(vT)}, 4, {vr(vT+3)}")
        A(f"v_add_u32 {vr(vT+1)}, {sr(sT0)}, {vr(vT)}")
        A(f"v_add_u32 {vr(vT+2)}, {sr(sT1)}, {vr(vT)}")
        A("s_waitcnt lgkmcnt(0)")
        fr = [vAfA + 20 + 2 * n for n in range(3)]
        for n in range(3):
            mo, lo = vAfA + 8 + 2 * n, vAfA + 9 + 2 * n
            m, f, fo = vAfA + 16 + n, fr[n], fr[n] + 1
            A(f"v_min_f32 {vr(m)}, {vr(vNm[n])}, {vr(mo)}")
            A(f"v_sub_f32 {vr(f)}, {vr(m)}, {vr(vNm[n])}")
            A(f"v_sub_f32 {vr(fo)}, {vr(m)}, {vr(mo)}")
            A(f"v_exp_f32 {vr(f)}, {vr(f)}")
            A(f"v_exp_f32 {vr(fo)}, {vr(fo)}")
            A("s_nop 0")
            A(f"v_mul_f32 {vr(m)}, {vr(f)}, {vr(vLs+n)}")
            A(f"v_fma_f32 {vr(m)}, {vr(fo)}, {vr(lo)}, {vr(m)}")
            A(f"v_rcp_f32 {vr(m)}, {vr(m)}")
            A("s_nop 0")
            A(f"v_mul_f32 {vr(f)}, {vr(f)}, {vr(m)}")
        c("slots 4-7 go to the partner wave, scaled and packed to bf16")
        for k in range(24):
            o = vO + 48 + 2 * k
            A(self.pkmul(o, fr[(k // 2) % 3]))
        for k in range(24):
            o = vO + 48 + 2 * k
            A(f"v_cvt_pk_bf16_f32 {vr(vS+k)}, {vr(o)}, {vr(o+1)}")
            if k % 4 == 3:
                A(f"ds_write_b128 {vr(vT+1)}, {vr(vS+k-3,4)} offset:{(k//4)*1024}")
        A(f"s_and_b32 {sr(sT0)}, {sr(sW)}, 1")
        A(f"s_lshl_b32 {sr(sT0)}, {sr(sT0)}, 3")
        A(f"s_mov_b32 {sr(sT2)}, 0xffff0000")
        self.head(None)
        for k in range(6):
            A(f"ds_read_b128 {vr(vS+24+4*k,4)}, {vr(vT+2)} offset:{k*1024}")
        self.act_write_addr(sBlk, sT0)
        self.head(None)
        for jj in range(4):
            if jj:
                A(f"v_xor_b32 {vr(vT+3)}, {jj*32}, {vr(vT+1)}")
            for n in range(3):
                k = (jj * 3 + n) * 2
                for h in range(2):
                    x = vS + 2 * h
                    A(f"v_lshlrev_b32 {vr(x)}, 16, {vr(vS+24+k+h)}")
                    A(f"v_and_b32 {vr(x+1)}, {sr(sT2)}, {vr(vS+24+k+h)}")
                    A(f"v_pk_fma_f32 {vr(x,2)}, {vr(vO+2*(k+h),2)}, {vr(fr[n],2)}, {vr(x,2)} op_sel_hi:[1,0,1]")
                    A(f"v_cvt_pk_bf16_f32 {vr(vS+4+(k+h)%8)}, {vr(x)}, {vr(x+1)}")
                A(f"ds_write_b64 {vr(vT+3 if jj else vT+1)}, {vr(vS+4+k%8,2)} offset:{n*XN}")
        A(f"s_mov_b32 {sr(sZero)}, 1")
        self.stamp(9)
        A(f"s_mov_b32 {sr(sBlk)}, 0")
        A(f"s_call_b64 {sr(LINK_S,2)}, L_wide")
        A(f"s_lshl_b32 {sr(sT0)}, {sr(sB)}, 3")
        A(f"s_add_u32 {sr(sT0)}, {sr(sT0)}, {sr(sG)}")
        A(f"s_mul_i32 {sr(sT0)}, {sr(sT0)}, {PART}")
        A(f"s_add_u32 {sr(sT0)}, {sr(sT0)}, {PART_A_BASE}")
        self.store_y()
        self.srd(SRD_WO, sBwo, 4194304)
        A(f"s_mov_b32 {sr(sZero)}, 1")
        self.frag_addrs()
        self.stamp(10)
        lab("L_bpath")
        A(f"s_mov_b32 {sr(sBlk)}, {4*BLK}")

        lab("L_head")
        c("scores of one B head")
        A(f"v_add_u32 {vr(vT)}, {sr(sC)}, {vr(vKb)}")
        for s in range(1, 4):
            A(f"v_xor_b32 {vr(vT+s)}, {s*64}, {vr(vT)}")
        rf = [vQs + 12, vQs + 14, vQs + 16]
        sm = [vQs + 18, vQs + 20, vQs + 22]

        def st(t, n):
            return vS + (t * 3 + n) * 4

        def b_sub(t):
            return [[f"v_pk_add_f32 {vr(st(t,n)+r,2)}, {vr(st(t,n)+r,2)}, {vr(rf[n],2)} op_sel_hi:[1,0] neg_lo:[0,1] neg_hi:[0,1]"]
                    for n in range(3) for r in (0, 2)]

        def b_check(t):
            f = [[x] for x in self.maxn(vT + 5, [st(t, 0) + r for r in range(12)])]
            return f + [[f"v_cmp_lt_f32 vcc, {sr(sThr)}, {vr(vT+5)}", f"s_cbranch_vccnz L_rb{t}", f"L_nb{t}:"]]

        def b_exp(t):
            f = [[f"v_exp_f32 {vr(st(t,0)+r)}, {vr(st(t,0)+r)}"] for r in range(12)]
            for n in range(3):
                if t == 0:
                    f.append([f"v_pk_add_f32 {vr(sm[n],2)}, {vr(st(t,n),2)}, {vr(st(t,n)+2,2)}"])
                else:
                    f.append([f"v_pk_add_f32 {vr(sm[n],2)}, {vr(sm[n],2)}, {vr(st(t,n),2)}"])
                    f.append([f"v_pk_add_f32 {vr(sm[n],2)}, {vr(sm[n],2)}, {vr(st(t,n)+2,2)}"])
            return f

        def b_ref0():
            f = []
            for n in range(3):
                f += [[x] for x in self.maxn(rf[n], [st(0, n) + r for r in range(4)])]
            for sw in ("v_permlane32_swap_b32", "v_permlane16_swap_b32"):
                f.append([f"v_mov_b32 {vr(rf[n]+1)}, {vr(rf[n])}" for n in range(3)] + ["s_nop 1"] +
                         [f"{sw} {vr(rf[n])}, {vr(rf[n]+1)}" for n in range(3)] + ["s_nop 1"] +
                         [f"v_max_f32 {vr(rf[n])}, {vr(rf[n])}, {vr(rf[n]+1)}" for n in range(3)])
            return f

        for T in range(5):
            p = T % 2
            prim, last = [], {}
            self.head(16 if T == 0 else (8 if T < 4 else None))
            if T == 0:
                self.load_bfrags_dyn(vKf, QF)
            for s in range(4):
                if T > 0:
                    for n in range(3):
                        prim.append(self.M(st(T - 1, n), vKf + 4 * s, QF[n * 4 + s], 0 if s == 0 else None))
                if T < 4:
                    prim.append(("r", [f"  ds_read_b128 {vr(vKf+4*s,4)}, {vr(vT+s)}"]))
                    last[s] = len(prim)
                if T > 0:
                    prim.append(self.D(s, p, True if T < 2 else None))
            fill = []
            if T < 4:
                fill = self.prep(1 - p)
            if T >= 2:
                t = T - 2
                fill += (b_ref0() + b_sub(0) if t == 0 else b_sub(t) + b_check(t)) + b_exp(t)
            if T < 3:
                fill.append([f"v_add_u32 {vr(vT+4)}, {sr(sC)}, {vr(vKb)}"])
                for s in range(4):
                    fill.append((last[s], [f"v_xor_b32 {vr(vT+s)}, {s*64}, {vr(vT+4)}"]))
            self.weave(prim, fill, per=2 if T < 2 else 4)
        self.stamp(2)
        c("last score tile, then bring the eight waves to a common reference")
        A(f"s_lshl_b32 {sr(sT0)}, {sr(sW)}, 2")
        A(f"v_add_u32 {vr(vT)}, {sr(sT0)}, {vr(vSTr)}")
        A("s_nop 5")
        self.weave([], b_sub(3) + b_check(3))
        for n in range(3):
            A(f"ds_write_b32 {vr(vT)}, {vr(rf[n])} offset:{n*512}")
        self.weave([], b_exp(3))
        self.head(None)
        for n in range(3):
            A(f"ds_read_b128 {vr(vFr+8*n,4)}, {vr(vSTr)} offset:{n*512}")
            A(f"ds_read_b128 {vr(vFr+8*n+4,4)}, {vr(vSTr)} offset:{n*512+16}")
        for n in range(3):
            A(f"v_add_f32 {vr(vT+n)}, {vr(sm[n])}, {vr(sm[n]+1)}")
        for n in range(3):
            A(f"s_waitcnt lgkmcnt({4-2*n})")
            self.emit(self.maxn(rf[n] + 1, [vFr + 8 * n + r for r in range(8)]))
            A(f"v_sub_f32 {vr(rf[n])}, {vr(rf[n])}, {vr(rf[n]+1)}")
            A(f"v_exp_f32 {vr(rf[n])}, {vr(rf[n])}")
        A("s_nop 0")
        for n in range(3):
            A(f"v_mul_f32 {vr(vT+n)}, {vr(vT+n)}, {vr(rf[n])}")
        self.reduce4(vT, "v_add_f32")
        A(f"ds_write_b32 {vr(vSTw)}, {vr(vT)} offset:1536")
        for t in range(4):
            for n in range(3):
                b = st(t, n)
                A(self.pkmul(b, rf[n]))
                A(self.pkmul(b + 2, rf[n]))
                A(f"v_cvt_pk_bf16_f32 {vr(b)}, {vr(b)}, {vr(b+1)}")
                A(f"v_cvt_pk_bf16_f32 {vr(b+1)}, {vr(b+2)}, {vr(b+3)}")
        self.bsm = (rf, sm, st)
        c("B role, first head: remaining Q projections while x is still live")
        A(f"s_mov_b32 {sr(sHook)}, 0")
        A(f"s_cmp_eq_u32 {sr(sHead)}, 3")
        A("s_cbranch_scc0 L_noq")
        for k in range(2):
            A(f"s_mov_b32 {sr(sLate)}, {k}")
            A(f"s_call_b64 {sr(LINK_S,2)}, L_qproj")
            l = self.new("q")
            self.is_loader(l)
            for r in range(0, 12, 2):
                A(f"v_mov_b64 {vr(vQs+12*k+r,2)}, {vr(vAcc+r,2)}")
            if k:
                A("s_barrier")
            lab(l)
        self.stamp(12)
        lab("L_noq")
        for t in range(4):
            for n in range(3):
                A(f"ds_write_b64 {vr(vPW)}, {vr(st(t,n),2)} offset:{n*XN+t*BLK}")
        mreg = [vS, vS + 8, vS + 16]
        self.stamp(3)
        c("P x V")
        A(f"s_mov_b32 {sr(sHook)}, 0")
        A(f"s_mov_b32 {sr(sBlkEnd)}, 0")
        self.is_loader("L_pv_ld")
        pre1 = []
        for n in range(3):
            pre1.append(f"ds_read_b128 {vr(vS+8*n,4)}, {vr(vSTr)} offset:{n*512+1536}")
            pre1.append(f"ds_read_b128 {vr(vS+8*n+4,4)}, {vr(vSTr)} offset:{n*512+1536+16}")
        ex1 = []
        for n in range(3):
            b = vS + 8 * n
            ex1 += [[f"v_pk_add_f32 {vr(b,2)}, {vr(b,2)}, {vr(b+2,2)}"], [f"v_pk_add_f32 {vr(b+4,2)}, {vr(b+4,2)}, {vr(b+6,2)}"],
                    [f"v_pk_add_f32 {vr(b,2)}, {vr(b,2)}, {vr(b+4,2)}"], [f"v_add_f32 {vr(b)}, {vr(b)}, {vr(b+1)}"],
                    [f"v_rcp_f32 {vr(b)}, {vr(b)}"]]
        pre2 = [x.strip() for x in self.cap(q_write, vQs, 0)]
        ex2 = [[f"v_mov_b64 {vr(vQs+r,2)}, {vr(vQs+12+r,2)}"] for r in range(0, 12, 2)]
        self.narrow(pre={1: pre1, 2: pre2}, extra={1: ex1, 2: ex2}, early=True)
        A("s_nop 7")
        for k in range(6):
            a = vAcc + 4 * k
            A(self.pkmul(a, mreg[k % 3]))
            A(self.pkmul(a + 2, mreg[k % 3]))
            A(f"v_cvt_pk_bf16_f32 {vr(vAcc+2*k)}, {vr(a)}, {vr(a+1)}")
            A(f"v_cvt_pk_bf16_f32 {vr(vAcc+2*k+1)}, {vr(a+2)}, {vr(a+3)}")
        q_write(vAcc, 4)
        A("s_branch L_pv_done")
        lab("L_pv_ld")
        A(f"s_call_b64 {sr(LINK_S,2)}, L_load")
        lab("L_pv_done")
        self.stamp(4)
        c("output projection")
        A(f"s_sub_u32 {sr(sHead)}, {sr(sHead)}, 1")
        A(f"s_mov_b32 {sr(sBlk)}, {4*BLK}")
        A(f"s_call_b64 {sr(LINK_S,2)}, L_wide")
        self.stamp(5)
        A(f"s_mov_b32 {sr(sBlk)}, 0")
        A(f"s_cmp_eq_u32 {sr(sHead)}, 0")
        A("s_cbranch_scc1 L_bdone")
        self.is_loader("L_head")
        self.wide_drain()
        A("s_barrier")
        A("s_branch L_head")
        lab("L_bdone")
        c("store the B-branch partial")
        A(f"s_lshl_b32 {sr(sT0)}, {sr(sB)}, 4")
        A(f"s_lshl_b32 {sr(sT1)}, {sr(sG)}, 1")
        A(f"s_add_u32 {sr(sT0)}, {sr(sT0)}, {sr(sT1)}")
        A(f"s_add_u32 {sr(sT0)}, {sr(sT0)}, {sr(sRole)}")
        A(f"s_mul_i32 {sr(sT0)}, {sr(sT0)}, {PART}")
        self.store_y()
        self.stamp(6)
        lab("L_fin")
        if opt.get("stamps"):
            A("s_waitcnt vmcnt(0)")
            self.stamp(11)
            self.srd(SRD_AUX, sWs, 268435456)
            A(f"s_lshl_b32 {sr(sT0)}, s2, 3")
            A(f"s_add_u32 {sr(sT0)}, {sr(sT0)}, {sr(sW)}")
            A(f"s_lshl_b32 {sr(sT0)}, {sr(sT0)}, 8")
            A(f"s_add_u32 {sr(sT0)}, {sr(sT0)}, {64*1024*1024}")
            self.lane(vT)
            A(f"v_lshlrev_b32 {vr(vT)}, 2, {vr(vT)}")
            A(f"buffer_store_dword {vr(23)}, {vr(vT)}, {sr(SRD_AUX,4)}, {sr(sT0)} offen")
        lab("L_end")
        A("s_endpgm")

        def sub_delta(sg):
            for n in range(3):
                for r in range(8):
                    b = sa(sg, n, 0) + r
                    A(f"v_sub_f32 {vr(b)}, {vr(b)}, {vr(vT+n)}")

        def nm_delta():
            for n in range(3):
                for r in range(4):
                    A(f"v_sub_f32 {vr(vNm[n]+r)}, {vr(vNm[n]+r)}, {vr(vT+n)}")

        def allmax1():
            for n in range(3):
                for sw in ("v_permlane32_swap_b32", "v_permlane16_swap_b32"):
                    A(f"v_mov_b32 {vr(vT+3)}, {vr(vT+n)}")
                    A("s_nop 1")
                    A(f"{sw} {vr(vT+n)}, {vr(vT+3)}")
                    A("s_nop 1")
                    A(f"v_max_f32 {vr(vT+n)}, {vr(vT+n)}, {vr(vT+3)}")

        def scale_state(with_p0):
            for n in range(3):
                A(f"v_max_f32 {vr(vT+n)}, 0, {vr(vT+n)}")
                A(f"v_exp_f32 {vr(vT+3)}, -{vr(vT+n)}")
                A("s_nop 0")
                A(f"v_mul_f32 {vr(vLs+n)}, {vr(vLs+n)}, {vr(vT+3)}")
                for mt in range(8):
                    for r in range(4):
                        o = vO + (mt * 3 + n) * 4 + r
                        A(f"v_mul_f32 {vr(o)}, {vr(o)}, {vr(vT+3)}")
                if with_p0:
                    b = sa(0, n, 0)
                    for r in range(4):
                        A(f"v_lshlrev_b32 {vr(b+4)}, 16, {vr(b+r)}")
                        A(f"v_and_b32 {vr(b+5)}, 0xffff0000, {vr(b+r)}")
                        A(f"v_mul_f32 {vr(b+4)}, {vr(b+4)}, {vr(vT+3)}")
                        A(f"v_mul_f32 {vr(b+5)}, {vr(b+5)}, {vr(vT+3)}")
                        A(f"v_cvt_pk_bf16_f32 {vr(b+r)}, {vr(b+4)}, {vr(b+5)}")

        lab("L_r0first")
        allmax1()
        sub_delta(0)
        A(f"s_mov_b32 {sr(sFix)}, 1")
        A("s_branch L_n0f")
        lab("L_r0")
        allmax1()
        scale_state(False)
        sub_delta(0)
        A(f"s_mov_b32 {sr(sFix)}, 1")
        A("s_branch L_n0l")
        for u in "fl":
            lab(f"L_r0b{u}")
            A(f"s_call_b64 {sr(LINK_S,2)}, L_fix1")
            A(f"s_branch L_n0b{u}")
            lab(f"L_r1{u}")
            allmax1()
            A(f"s_call_b64 {sr(LINK_S,2)}, L_scale1")
            A(f"s_branch L_n1{u}")
        lab("L_scale1")
        scale_state(True)
        lab("L_fix1")
        sub_delta(1)
        nm_delta()
        A(f"s_mov_b32 {sr(sFix)}, 0")
        A(f"s_setpc_b64 {sr(LINK_S,2)}")

        rf, sm, st = self.bsm
        for t in range(1, 4):
            lab(f"L_rb{t}")
            d, f = vT + 5, vT + 6
            for n in range(3):
                self.emit(self.maxn(d, [st(t, n) + r for r in range(4)]))
                for sw in ("v_permlane32_swap_b32", "v_permlane16_swap_b32"):
                    A(f"v_mov_b32 {vr(f)}, {vr(d)}")
                    A("s_nop 1")
                    A(f"{sw} {vr(d)}, {vr(f)}")
                    A("s_nop 1")
                    A(f"v_max_f32 {vr(d)}, {vr(d)}, {vr(f)}")
                A(f"v_max_f32 {vr(d)}, 0, {vr(d)}")
                A(f"v_exp_f32 {vr(f)}, -{vr(d)}")
                A(f"v_add_f32 {vr(rf[n])}, {vr(rf[n])}, {vr(d)}")
                for r in range(4):
                    A(f"v_sub_f32 {vr(st(t,n)+r)}, {vr(st(t,n)+r)}, {vr(d)}")
                for r in [sm[n], sm[n] + 1] + [st(u, n) + k for u in range(t) for k in range(4)]:
                    A(f"v_mul_f32 {vr(r)}, {vr(r)}, {vr(f)}")
            A(f"s_branch L_nb{t}")

        lab("L_qproj")
        A(f"s_mov_b32 {sr(sBlkEnd)}, 0")
        self.is_loader("L_load")
        self.narrow()
        A(f"v_mov_b32 {vr(vT)}, {sr(sScale)}")
        A("s_nop 6")
        for k in range(6):
            a = vAcc + 4 * k
            A(self.pkmul(a, vT))
            A(self.pkmul(a + 2, vT))
            A(f"v_cvt_pk_bf16_f32 {vr(vAcc+2*k)}, {vr(a)}, {vr(a+1)}")
            A(f"v_cvt_pk_bf16_f32 {vr(vAcc+2*k+1)}, {vr(a+2)}, {vr(a+3)}")
        A(f"s_setpc_b64 {sr(LINK_S,2)}")

        def af(j, p):
            return vFr + 4 * (j + 2 * p if j >= 6 else j)

        def wb(n, p):
            return vAcc + (p * 3 + n) * 4

        def wide_rd(j, p):
            a = vT + 1 + (j % 2)
            A(f"v_xor_b32 {vr(a)}, {j*32}, {vr(vT+3+3*p)}")
            self.tr_pair(af(j, p), a, 0)

        def wide_addr(t):
            return [[f"s_add_u32 {sr(sT0)}, {sr(sC)}, {sr(sT1)}"],
                    [f"v_add_u32 {vr(vT+3+3*(t%2))}, {sr(sT0)}, {vr(vTR0)}"],
                    [f"v_add_u32 {vr(vT+5)}, {sr(sBlk)}, {vr(vXB+t)}"]]

        def wide_step(t, pending, reads=True, zero=False):
            p = t % 2
            if reads:
                self.head(None)
            else:
                A("s_waitcnt lgkmcnt(0)")
            prim = []
            for j in range(8):
                if pending and not opt.get("nomfma"):
                    for n in range(3):
                        prim.append(self.M(vY + (j * 3 + n) * 4, af(j, 1 - p), wb(n, 1 - p), 0 if zero else None))
                if reads and not opt.get("nords"):
                    if j == 0:
                        prim.append(("r", [f"  ds_read_b128 {vr(wb(n,p),4)}, {vr(vT+5)} offset:{n*XN}" for n in range(3)]))
                    if j < 6:
                        prim.append(("r", self.cap(wide_rd, j, p)))
                    if j < 2:
                        prim.append(("r", self.cap(wide_rd, 6 + j, p)))
            fill = []
            if reads:
                fill = self.rot()
                if t == 3:
                    fill.append([f"s_add_u32 {sr(sBlk)}, {sr(sBlk)}, {BLK}"])
                fill += wide_addr((t + 1) % 4)
            self.weave(prim, fill, per=1, start=5)

        lab("L_wide")
        self.is_loader("L_load")
        A(f"s_lshl_b32 {sr(sT1)}, {sr(sW)}, 13")
        self.weave([], wide_addr(0))
        wide_step(0, False)
        A(f"s_cmp_eq_u32 {sr(sZero)}, 0")
        A("s_cbranch_scc1 L_wide_loop")
        A(f"s_mov_b32 {sr(sZero)}, 0")
        wide_step(1, True, zero=True)
        A("s_branch L_wide_s2")
        lab("L_wide_loop")
        wide_step(1, True)
        lab("L_wide_s2")
        wide_step(2, True)
        wide_step(3, True)
        A(f"s_cmp_gt_u32 {sr(sBlk)}, {sr(sBlkEnd)}")
        A("s_cbranch_scc1 L_wide_drain")
        wide_step(0, True)
        A("s_branch L_wide_loop")
        lab("L_wide_drain")
        A("s_waitcnt lgkmcnt(0)")
        A(f"s_setpc_b64 {sr(LINK_S,2)}")

        def ld_step(p, vm, prep=True, xblk=None):
            self.head(vm)
            l1, l2 = self.new("kv"), self.new("dd")
            variants = [self.wf] if self.kvf == self.wf else [self.wf, self.kvf]
            if len(variants) > 1:
                A(f"s_bitcmp1_b32 6, {sr(sTy[p])}")
                A(f"s_cbranch_scc1 {l1}")
            for vi, fl in enumerate(variants):
                if vi:
                    A(f"s_branch {l2}")
                    lab(l1)
                prim = []
                for k in range(8):
                    ins = [f"  s_add_u32 m0, {sr(sI[p])}, {k*4096}"]
                    if k % 2:
                        ins.append(f"  s_add_u32 {sr(sOff2)}, {sr(sOff[p])}, {sr(sHalf[p])}")
                    elif k:
                        ins.append(f"  s_add_u32 {sr(sOff[p])}, {sr(sOff[p])}, {sr(sStr[p])}")
                    else:
                        ins.append("  s_nop 0")
                    ins.append(f"  buffer_load_dwordx4 {vr(vCur[p])}, {sr(SRD_CUR[p],4)}, {sr(sOff2 if k % 2 else sOff[p])} offen{fl} lds")
                    if opt.get("nodma"):
                        ins = ins[:-1]
                    prim.append(("m", ins))
                self.weave(prim, self.prep(1 - p) if prep else [], per=2)
            lab(l2)
            if xblk is not None:
                l3 = self.new("hk")
                A(f"s_cmp_eq_u32 {sr(sHook)}, 0")
                A(f"s_cbranch_scc1 {l3}")
                if xblk == 0:
                    self.x_setup(vY)
                self.x_block(vY, xblk)
                lab(l3)

        lab("L_load")
        A(f"s_mov_b32 {sr(sT4)}, 0")
        self.head(16)
        self.weave([], self.prep(1))
        lab("L_ldloop")
        ld_step(1, 8, xblk=0)
        ld_step(0, 8, xblk=1)
        ld_step(1, 8, xblk=2)
        A(f"s_add_u32 {sr(sT4)}, {sr(sT4)}, {BLK}")
        A(f"s_cmp_gt_u32 {sr(sT4)}, {sr(sBlkEnd)}")
        A("s_cbranch_scc1 L_lddrain")
        ld_step(0, 8)
        A("s_branch L_ldloop")
        lab("L_lddrain")
        ld_step(0, None, prep=False, xblk=3)
        A(f"s_setpc_b64 {sr(LINK_S,2)}")

    def reduce_kernel(self):
        A, lab = self.A, self.lab
        K2 = "reduce_partials_kernel"
        self.L += [f".globl {K2}", ".p2align 8", f".type {K2},@function"]
        lab(K2)
        A("s_cmp_ge_u32 s2, 384")
        A("s_cbranch_scc1 L_r_end")
        A("s_load_dwordx2 s[4:5], s[0:1], 80")
        A("s_load_dwordx2 s[6:7], s[0:1], 96")
        A("s_mul_i32 s3, s2, 43691")
        A("s_lshr_b32 s3, s3, 19")
        A("s_mul_i32 s16, s3, 12")
        A("s_sub_u32 s16, s2, s16")
        A("s_and_b32 s17, s3, 15")
        A("s_lshr_b32 s18, s3, 4")
        A("s_lshl_b32 s19, s16, 12")
        A("v_lshlrev_b32 v2, 4, v0")
        A("v_add_u32 v2, s19, v2")
        A("s_mul_i32 s23, s16, 86")
        A("s_lshr_b32 s23, s23, 8")
        A("s_mul_i32 s24, s23, 3")
        A("s_sub_u32 s24, s16, s24")
        A("s_lshl_b32 s24, s24, 15")
        A("s_lshl_b32 s23, s23, 8")
        A("s_add_u32 s24, s24, s23")
        A("v_and_b32 v6, 15, v0")
        A("v_lshlrev_b32 v6, 11, v6")
        A("v_lshrrev_b32 v7, 6, v0")
        A("v_lshl_add_u32 v6, v7, 6, v6")
        A("v_bfe_u32 v7, v0, 4, 1")
        A("v_lshl_add_u32 v6, v7, 5, v6")
        A("v_bfe_u32 v7, v0, 5, 1")
        A("v_lshl_add_u32 v6, v7, 4, v6")
        A("s_waitcnt lgkmcnt(0)")
        A("s_mov_b32 s8, s4"); A("s_mov_b32 s9, s5"); A("s_mov_b32 s10, 1572864"); A("s_mov_b32 s11, 0x20000")
        A("s_mov_b32 s12, s6"); A("s_mov_b32 s13, s7"); A("s_mov_b32 s14, 268435456"); A("s_mov_b32 s15, 0x20000")
        A("s_mul_i32 s20, s17, 98304")
        A("s_add_u32 s20, s20, s24")
        A("s_mov_b32 s22, 0xffff0000")
        A("s_cmp_eq_u32 s18, 1")
        A("s_cbranch_scc1 L_r_A")

        def body(np_):
            for p in range(np_):
                A(f"buffer_load_dwordx4 v[{16+4*p}:{19+4*p}], v2, s[12:15], s21 offen")
                if p + 1 < np_:
                    A(f"s_add_u32 s21, s21, {PART}")
            for p in range(np_):
                A(f"s_waitcnt vmcnt({np_-1-p})")
                for k in range(4):
                    r = 16 + 4 * p + k
                    if p == 0:
                        A(f"v_lshlrev_b32 v{8+2*k}, 16, v{r}")
                        A(f"v_and_b32 v{9+2*k}, s22, v{r}")
                    else:
                        A(f"v_lshlrev_b32 v4, 16, v{r}")
                        A(f"v_and_b32 v5, s22, v{r}")
                        A(f"v_pk_add_f32 v[{8+2*k}:{9+2*k}], v[{8+2*k}:{9+2*k}], v[4:5]")

        A(f"s_mul_i32 s21, s17, {16*PART}")
        A("s_add_u32 s20, s20, 1024")
        body(16)
        A("s_branch L_r_st")
        lab("L_r_A")
        A(f"s_mul_i32 s21, s17, {8*PART}")
        A(f"s_add_u32 s21, s21, {PART_A_BASE}")
        body(8)
        lab("L_r_st")
        for k in range(4):
            A(f"v_cvt_pk_bf16_f32 v{16+k}, v{8+2*k}, v{9+2*k}")
        A("buffer_store_dwordx4 v[16:19], v6, s[8:11], s20 offen")
        lab("L_r_end")
        A("s_endpgm")
        lab("L_code_end")

    def desc(self, name, nv, ns):
        self.L += [".p2align 6", f".amdhsa_kernel {name}", f"  .amdhsa_next_free_vgpr {nv}",
                   f"  .amdhsa_next_free_sgpr {ns}", f"  .amdhsa_accum_offset {nv}",
                   "  .amdhsa_group_segment_fixed_size 0", "  .amdhsa_kernarg_size 104",
                   "  .amdhsa_user_sgpr_count 2", "  .amdhsa_user_sgpr_kernarg_segment_ptr 1",
                   "  .amdhsa_system_sgpr_workgroup_id_x 1", ".end_amdhsa_kernel"]

    def build(self):
        K1 = NAME + "_kernel"
        head = HEADER + f"; @launch kernel={K1} grid=(256,1,1) block=(512,1,1) lds={LDS_BYTES}\n"
        head += "; @launch kernel=reduce_partials_kernel grid=(384,1,1) block=(256,1,1) lds=0\n"
        self.L += ['.amdgcn_target "amdgcn-amd-amdhsa--gfx950"', ".text"]
        self.main_kernel()
        self.reduce_kernel()
        self.L += ['.section .rodata,"a"']
        self.desc(K1, 256, 102)
        self.desc("reduce_partials_kernel", 80, 32)
        return head + "\n".join(self.L) + "\n"


def gen(**opt):
    return G(opt).build()


if __name__ == "__main__":
    out = sys.argv[1] if len(sys.argv) > 1 else f"cdna_kernels/{NAME}.s"
    opt = {}
    for a in sys.argv[2:]:
        k, v = a.split("=", 1)
        opt[k] = int(v) if v.lstrip("-").isdigit() else v
    open(out, "w").write(gen(**opt))
    print("wrote", out)
```

```python
import sys, math, struct

NAME = "concat_heads__gqa_block_cached__mha_block_cached__near_ridge"

HEADER = """; Kernarg layout for this problem (104 bytes, ptrs only, base s[0:1]):
"""

TILE = 32768
NSLOT = 3
XB = NSLOT * TILE
XROW = 256
XN = 16 * XROW
BLK = 48 * XROW
ST = XB + 5 * BLK
FLAG = ST + 3072
LDS_BYTES = 163840
PART = 49152
PART_A_BASE = 16 * 16 * PART
NULL_OFF = 0x40000000

T_WQ, T_K, T_V, T_WO, T_WQW = 0, 1, 2, 3, 4
ROWSH = [13, 8, 8, 10, 13]
SLABSH = [18, 13, 13, 8, 8]

sW, sC, sIdx, sE = 3, 4, 6, 7
SRD_WQ, SRD_K, SRD_V, SRD_WO, SRD_WQW, SRD_AUX = 8, 12, 16, 20, 24, 28
sAx, sAk, sAv, sAwq, sAwo = 32, 34, 36, 38, 40
sP0, sP1 = 42, 43
sBx, sBk, sBv, sBwq, sBwo = 44, 46, 48, 50, 52
sWs = 54
sB, sG, sRole, sHead, sHook, sScale, sW1024, sBlk, sThr, sIter = 56, 57, 58, 59, 60, 61, 62, 63, 64, 65
sT0, sT1, sT2, sT3, sT4, sT5 = 66, 67, 68, 69, 70, 71
sBlkEnd = 75
sStamp = 76
sFix = 79
sThrot = 100
sPend, sPendOff = 98, 99
sLate = 65
sZero = 91
SRD_CUR = [80, 84]
sOff, sTy, sStr, sI, sHalf = [72, 94], [73, 95], [74, 96], [5, 97], [88, 89]
sOff2 = 90
LINK_S = 92

vTab, vRow, vChunk, vTRw, vTR0, vKb = 1, 2, 3, 5, 6, 7
vCur = [4, 0]
vXB = 8
vQW, vPW, vSTw, vSTr = 12, 13, 14, 15
vT = 16
vAcc = 24
vQs = 48
vFr = 72
vS = 112
vY = 160
QF = [24, 28, 32, 36, 40, 44, 72, 76, 80, 84, 88, 92]
vKf = 96
vKa, vTRa = 5, 7
vNm = [12, 56, 60]
vLs = 20
vO = 160
vAfA = 24
QA = [64 + 4 * k for k in range(12)]
sQ = [98, 99, 100, 101]


def vr(a, n=1):
    return f"v{a}" if n == 1 else f"v[{a}:{a+n-1}]"


def sr(a, n=1):
    return f"s{a}" if n == 1 else f"s[{a}:{a+n-1}]"


def f32(x):
    return hex(struct.unpack('<I', struct.pack('<f', x))[0])


class G:
    def __init__(self, opt):
        self.L = []
        self.opt = opt
        self.uid = 0
        self.cold = []
        self.kvf = opt.get("kvflag", " nt")
        self.wf = opt.get("wflag", "")

    def A(self, s):
        self.L.append("  " + s)

    def lab(self, s):
        self.L.append(s + ":")

    def c(self, s):
        self.L.append("  ; " + s)

    def new(self, p):
        self.uid += 1
        return f"L_{p}{self.uid}"

    def mfma(self, d, a, b, c=None):
        cs = "0" if c == 0 else vr(d if c is None else c, 4)
        self.A(f"v_mfma_f32_16x16x32_bf16 {vr(d,4)}, {vr(a,4)}, {vr(b,4)}, {cs}")

    def M(self, d, a, b, c=None):
        return ("m", self.cap(self.mfma, d, a, b, c))

    def lane(self, v):
        self.A(f"v_mbcnt_lo_u32_b32 {vr(v)}, -1, 0")
        self.A(f"v_mbcnt_hi_u32_b32 {vr(v)}, -1, {vr(v)}")

    def rot(self):
        return [[f"s_add_u32 {sr(sC)}, {sr(sC)}, {TILE}"],
                [f"s_cmp_eq_u32 {sr(sC)}, {NSLOT*TILE}", f"s_cselect_b32 {sr(sC)}, 0, {sr(sC)}"]]

    def prep(self, p, slots=True):
        k1 = sum(v << (5 * i) for i, v in enumerate(ROWSH))
        k2 = sum(v << (5 * i) for i, v in enumerate(SLABSH))
        pre = [[f"s_add_u32 {sr(sI[p])}, {sr(sC)}, {sr(sW1024)}"]] + self.rot() if slots else []
        return pre + [
            [f"s_and_b32 {sr(sOff[p])}, {sr(sE)}, 0xffffff00"],
            [f"s_and_b32 {sr(sTy[p])}, {sr(sE)}, 7"],
            [f"s_add_u32 {sr(sIdx)}, {sr(sIdx)}, 1"],
            [f"s_lshl_b32 m0, {sr(sTy[p])}, 2", f"s_mul_i32 {sr(sP0)}, {sr(sTy[p])}, 5",
             f"s_movrels_b64 {sr(SRD_CUR[p],2)}, {sr(SRD_WQ,2)}", f"s_movrels_b32 {sr(SRD_CUR[p]+2)}, {sr(SRD_WQ+2)}"],
            [f"v_readlane_b32 {sr(sE)}, {vr(vTab)}, {sr(sIdx)}"],
            [f"s_lshr_b32 {sr(sP1)}, {hex(k1)}, {sr(sP0)}"],
            [f"s_lshr_b32 {sr(sP0)}, {hex(k2)}, {sr(sP0)}"],
            [f"v_lshl_add_u32 {vr(vCur[p])}, {vr(vRow)}, {sr(sP1)}, {vr(vChunk)}"],
            [f"s_lshl_b32 {sr(sStr[p])}, 1, {sr(sP0)}"],
            [f"s_lshl_b32 {sr(sHalf[p])}, 16, {sr(sP1)}"],
        ]

    def weave(self, prim, fill, per=2, start=0):
        fill = list(fill)
        for idx, (kind, ins) in enumerate(prim):
            self.L += ins
            if kind == "m" and idx >= start:
                k = 0
                while fill and k < per:
                    f = fill[0]
                    if isinstance(f, tuple):
                        if f[0] > idx:
                            break
                        f = f[1]
                    self.emit(f)
                    fill.pop(0)
                    k += 1
        for f in fill:
            self.emit(f[1] if isinstance(f, tuple) else f)

    def emit(self, f):
        for x in f:
            if x.endswith(":"):
                self.L.append(x)
            else:
                self.A(x)

    def cap(self, fn, *a, **k):
        keep, self.L = self.L, []
        fn(*a, **k)
        out, self.L = self.L, keep
        return out

    def head(self, vm):
        self.A("s_waitcnt " + (f"vmcnt({vm}) " if vm is not None else "") + "lgkmcnt(0)")
        if self.opt.get("allsteps") == 2:
            self.stamp(15)
        self.A("s_barrier")
        if self.opt.get("allsteps") == 1:
            self.stamp(14)

    def throttle(self):
        if self.opt.get('thr'):
            l = self.new('th')
            self.A(f"s_cmp_eq_u32 {sr(sThrot)}, 0")
            self.A(f"s_cbranch_scc1 {l}")
            self.A(f"s_waitcnt vmcnt({self.opt['thr']})")
            self.lab(l)

    def dma(self, k, p, kv, guard=True, throttle=False):
        A = self.A
        skip = self.new("sk")
        if guard:
            A(f"s_bitcmp1_b32 {sr(sW)}, 2")
            A(f"s_cbranch_scc0 {skip}")
        if k:
            A(f"s_add_u32 {sr(sOff[p])}, {sr(sOff[p])}, {sr(sStr[p])}")
        A(f"s_add_u32 m0, {sr(sI[p])}, {k*8192}")
        A(f"s_add_u32 {sr(sOff2)}, {sr(sOff[p])}, {sr(sHalf[p])}")

        def pair(fl):
            if throttle and fl == self.kvf:
                self.throttle()
            A(f"buffer_load_dwordx4 {vr(vCur[p])}, {sr(SRD_CUR[p],4)}, {sr(sOff[p])} offen{fl} lds")
            A("s_add_u32 m0, m0, 4096")
            A("s_nop 0")
            A(f"buffer_load_dwordx4 {vr(vCur[p])}, {sr(SRD_CUR[p],4)}, {sr(sOff2)} offen{fl} lds")

        if self.kvf == self.wf:
            kv = False
        if kv is not None:
            pair(self.kvf if kv else self.wf)
        else:
            l1 = self.new("kv")
            A(f"s_bitcmp1_b32 6, {sr(sTy[p])}")
            A(f"s_cbranch_scc1 {l1}")
            pair(self.wf)
            A(f"s_branch {skip}")
            self.lab(l1)
            pair(self.kvf)
        self.lab(skip)

    def D1(self, k, p, guard=False):
        l1, l2 = self.new("w"), self.new("d")
        ld = f"  buffer_load_dwordx4 {vr(vCur[p])}, {sr(SRD_CUR[p],4)}, {sr(sOff[p])} offen"
        ins = [f"  s_bitcmp1_b32 {sr(sW)}, 2", f"  s_cbranch_scc0 {l2}"] if guard else []
        ins.append(f"  s_add_u32 m0, {sr(sI[p])}, {k*8192}")
        if k:
            ins.append(f"  s_add_u32 {sr(sOff[p])}, {sr(sOff[p])}, {sr(sStr[p])}")
        if self.kvf == self.wf:
            ins += ["  s_nop 0", f"{ld}{self.wf} lds"]
        else:
            ins += [f"  s_bitcmp1_b32 6, {sr(sTy[p])}", f"  s_cbranch_scc0 {l1}", f"{ld}{self.kvf} lds"]
            self.cold += [l1 + ":", f"{ld}{self.wf} lds", f"  s_branch {l2}"]
        return ("d", ins + [l2 + ":"])

    def D(self, k, p, kv, throttle=False):
        return ("d", self.cap(self.dma, k, p, kv, True, throttle))

    def tr_pair(self, dst, addr, off):
        self.A(f"ds_read_b64_tr_b16 {vr(dst,2)}, {vr(addr)} offset:{off}")
        self.A(f"ds_read_b64_tr_b16 {vr(dst+2,2)}, {vr(addr)} offset:{off+1024}")

    def narrow(self, pre=None, extra=None, early=None):
        A = self.A

        def fr(st, k):
            return vFr + (st * 5 + k) * 4

        def reads(T, s):
            p = T % 2
            for m in range(2):
                self.tr_pair(fr(s % 2, m), vT + 2 * p + m, s * 8192)
            for n in range(3):
                A(f"ds_read_b128 {vr(fr(s%2,2+n),4)}, {vr(vXB+s)} offset:{n*XN+T*BLK}")

        def addr(p):
            return [[f"v_add_u32 {vr(vT+2*p)}, {sr(sC)}, {vr(vTRw)}"], [f"v_xor_b32 {vr(vT+2*p+1)}, 32, {vr(vT+2*p)}"]]

        def mf(s, zero=False):
            return [self.M(vAcc + (m * 3 + n) * 4, fr(s % 2, m), fr(s % 2, 2 + n), 0 if zero else None)
                    for m in range(2) for n in range(3)]

        self.weave([], addr(0))
        for T in range(4):
            self.head(None)
            self.emit((pre or {}).get(T, []))
            prim = [("r", self.cap(reads, T, 0))]
            if T:
                prim += mf(3)
            prim.append(("r", self.cap(reads, T, 1)))
            for s in range(3):
                prim.append(("w", ["  s_waitcnt lgkmcnt(7)"]))
                prim += mf(s, T == 0 and s == 0)
                if s < 2:
                    prim.append(("r", self.cap(reads, T, s + 2)))
            late = [(10, g) for g in (extra or {}).get(T, [])]
            self.weave(prim, self.rot() + (addr(1 - T % 2) if T < 3 else []) + late, per=1 + bool(late))
        A("s_waitcnt lgkmcnt(0)")
        if early is True:
            A("s_barrier")
        elif early is None:
            l = self.new("e")
            A(f"s_cmp_eq_u32 {sr(sLate)}, 0")
            A(f"s_cbranch_scc0 {l}")
            A("s_barrier")
            self.lab(l)
        self.weave(mf(3), [])

    def load_bfrags_dyn(self, tmp, quads):
        for s in range(4):
            self.A(f"v_add_u32 {vr(tmp+s)}, {sr(sBlk)}, {vr(vXB+s)}")
        for s in range(4):
            for n in range(3):
                self.A(f"ds_read_b128 {vr(quads[n*4+s],4)}, {vr(tmp+s)} offset:{n*XN}")

    def is_loader(self, label):
        self.A(f"s_bitcmp1_b32 {sr(sW)}, 2")
        self.A(f"s_cbranch_scc1 {label}")

    def x_setup(self, va):
        A = self.A
        self.lane(va + 2)
        A(f"v_lshrrev_b32 {vr(va+1)}, 4, {vr(va+2)}")
        A(f"v_and_b32 {vr(va+2)}, 15, {vr(va+2)}")
        A(f"v_xor_b32 {vr(va+2)}, {vr(va+2)}, {vr(va+1)}")
        A(f"v_lshlrev_b32 {vr(va+2)}, 4, {vr(va+2)}")
        A(f"v_lshl_or_b32 {vr(va+2)}, {vr(va+1)}, 10, {vr(va+2)}")
        A(f"s_mul_i32 {sr(sT0)}, {sr(sW1024)}, 3")
        A(f"s_add_u32 {sr(sT2)}, {sr(sT0)}, {XB}")
        A(f"s_mul_i32 {sr(sT1)}, {sr(sB)}, 49152")
        A(f"s_lshl_b32 {sr(sT3)}, {sr(sT0)}, 2")
        A(f"s_add_u32 {sr(sT1)}, {sr(sT1)}, {sr(sT3)}")
        A(f"s_lshr_b32 {sr(sT0)}, {sr(sT0)}, 4")
        for j in range(3):
            A(f"s_add_u32 {sr(sT3)}, {sr(sT0)}, {j*64}")
            A(f"s_and_b32 {sr(sT3)}, {sr(sT3)}, 0xc0")
            A(f"v_xor_b32 {vr(va+j)}, {sr(sT3)}, {vr(va+2)}")

    def x_block(self, va, blk):
        for j in range(3):
            self.A(f"s_add_u32 m0, {sr(sT2)}, {blk*BLK+j*1024}")
            self.A(f"s_add_u32 {sr(sT3)}, {sr(sT1)}, {blk*256+j*4096}")
            self.A(f"buffer_load_dwordx4 {vr(va+j)}, {sr(SRD_AUX,4)}, {sr(sT3)} offen lds")

    def weight_prefetch(self, items, single=False):
        A = self.A
        off, cur = sT1, SRD_CUR[1]
        self.lane(vT + 1)
        A(f"v_lshrrev_b32 {vr(vT)}, 4, {vr(vT+1)}")
        A(f"v_lshlrev_b32 {vr(vT+1)}, 4, {vr(vT+1)}")
        A(f"v_and_b32 {vr(vT+2)}, 0xf0, {vr(vT+1)}")
        A(f"v_lshl_or_b32 {vr(vT)}, {vr(vT)}, 13, {vr(vT+2)}")
        A(f"s_lshl_b32 {sr(sT0)}, {sr(sG)}, 2")
        if not single:
            A(f"s_add_u32 {sr(sT0)}, {sr(sT0)}, {sr(sRole)}")
        A(f"s_lshl_b32 {sr(sT2)}, {sr(sB)}, 2")
        A(f"s_add_u32 {sr(sT2)}, {sr(sT2)}, {sr(sW)}")
        A(f"s_mov_b32 {sr(cur+2)}, 4194304")
        for ptr, is_wq, h0 in items:
            A(f"s_add_u32 {sr(sT3)}, {sr(sT0)}, {h0}")
            A(f"s_lshl_b32 {sr(sT3)}, {sr(sT3)}, {8 if is_wq else 17}")
            A(f"s_lshl_b32 {sr(off)}, {sr(sT2)}, {16 if is_wq else 11}")
            A(f"s_add_u32 {sr(off)}, {sr(off)}, {sr(sT3)}")
            A(f"s_mov_b64 {sr(cur,2)}, {sr(ptr,2)}")
            for hh in range(2 if single else 1):
                for k in range(2):
                    d = hh * (256 if is_wq else 131072) + k * (32768 if is_wq else 1024)
                    if d:
                        A(f"s_add_u32 {sr(sT3)}, {sr(off)}, {d}")
                    A(f"buffer_load_dwordx4 v[156:159], {vr(vT if is_wq else vT+1)}, {sr(cur,4)}, {sr(sT3 if d else off)} offen")

    def srd(self, d, p, size):
        self.A(f"s_mov_b32 {sr(d)}, {sr(p)}")
        self.A(f"s_mov_b32 {sr(d+1)}, {sr(p+1)}")
        self.A(f"s_mov_b32 {sr(d+2)}, {size}")
        self.A(f"s_mov_b32 {sr(d+3)}, 0x20000")

    def reduce4(self, x, op):
        self.A(f"v_mov_b32 {vr(x+3)}, {vr(x+2)}")
        self.A("s_nop 1")
        self.A(f"v_permlane32_swap_b32 {vr(x)}, {vr(x+1)}")
        self.A(f"v_permlane32_swap_b32 {vr(x+2)}, {vr(x+3)}")
        self.A("s_nop 1")
        self.A(f"{op} {vr(x)}, {vr(x)}, {vr(x+1)}")
        self.A(f"{op} {vr(x+2)}, {vr(x+2)}, {vr(x+3)}")
        self.A("s_nop 1")
        self.A(f"v_permlane16_swap_b32 {vr(x)}, {vr(x+2)}")
        self.A("s_nop 1")
        self.A(f"{op} {vr(x)}, {vr(x)}, {vr(x+2)}")

    def allreduce3(self, x, t, op):
        for sw in ("v_permlane32_swap_b32", "v_permlane16_swap_b32"):
            for n in range(3):
                self.A(f"v_mov_b32 {vr(t+n)}, {vr(x+n)}")
            self.A("s_nop 1")
            for n in range(3):
                self.A(f"{sw} {vr(x+n)}, {vr(t+n)}")
            self.A("s_nop 1")
            for n in range(3):
                self.A(f"{op} {vr(x+n)}, {vr(x+n)}, {vr(t+n)}")

    def maxn(self, dst, regs):
        out = [f"v_max3_f32 {vr(dst)}, {vr(regs[0])}, {vr(regs[1])}, {vr(regs[2])}"]
        k = 3
        while k + 1 < len(regs):
            out.append(f"v_max3_f32 {vr(dst)}, {vr(dst)}, {vr(regs[k])}, {vr(regs[k+1])}")
            k += 2
        if k < len(regs):
            out.append(f"v_max_f32 {vr(dst)}, {vr(dst)}, {vr(regs[k])}")
        return out

    def pkmul(self, a, f):
        sel = "op_sel_hi:[1,0]" if f % 2 == 0 else "op_sel:[0,1] op_sel_hi:[1,1]"
        return f"v_pk_mul_f32 {vr(a,2)}, {vr(a,2)}, {vr(f - f % 2,2)} {sel}"

    def stamp(self, idx):
        if not self.opt.get("stamps"):
            return
        self.A(("s_memtime" if self.opt.get("cyc") else "s_memrealtime") + f" {sr(sStamp,2)}")
        self.A("s_waitcnt lgkmcnt(0)")
        self.A(f"s_and_b32 {sr(sStamp)}, {sr(sStamp)}, 0xffffff")
        self.A(f"s_or_b32 {sr(sStamp)}, {sr(sStamp)}, {(idx+1) << 24}")
        self.A("s_mov_b32 m0, s78")
        if self.opt.get("skip"):
            l = self.new("st")
            self.A(f"s_cmp_lt_i32 s78, 0")
            self.A(f"s_cbranch_scc1 {l}")
            self.A(f"s_cmp_ge_i32 s78, 63")
            self.A(f"s_cbranch_scc1 {l}")
            self.A(f"v_writelane_b32 {vr(23)}, {sr(sStamp)}, m0")
            self.lab(l)
        else:
            self.A(f"v_writelane_b32 {vr(23)}, {sr(sStamp)}, m0")
        self.A("s_add_u32 s78, s78, 1")

    def pack_y(self):
        def pack(jp):
            g = []
            for n in range(3):
                q = vY + (2 * jp * 3 + n) * 4
                for h in range(2):
                    y = vY + ((2 * jp + h) * 3 + n) * 4
                    g.append([f"v_cvt_pk_bf16_f32 {vr(q+2*h)}, {vr(y)}, {vr(y+1)}"])
                    g.append([f"v_cvt_pk_bf16_f32 {vr(q+2*h+1)}, {vr(y+2)}, {vr(y+3)}"])
            return g

        self.srd(SRD_AUX, sWs, 268435456)
        self.A(f"s_mul_i32 {sr(sT1)}, {sr(sW)}, 12288")
        self.A(f"s_add_u32 {sr(sPendOff)}, {sr(sT0)}, {sr(sT1)}")
        self.wide_drain(pack)
        self.A("s_barrier")

    def store_y(self, n, va):
        A = self.A
        self.lane(va)
        A(f"v_lshlrev_b32 {vr(va)}, 4, {vr(va)}")
        for jp in range(4):
            q = vY + (2 * jp * 3 + n) * 4
            A(f"v_permlane16_swap_b32 {vr(q)}, {vr(q+2)}")
            A(f"v_permlane16_swap_b32 {vr(q+1)}, {vr(q+3)}")
            A(f"buffer_store_dwordx4 {vr(q,4)}, {vr(va)}, {sr(SRD_AUX,4)}, {sr(sPendOff)} offen offset:{jp*1024}")
        A(f"s_add_u32 {sr(sPendOff)}, {sr(sPendOff)}, 4096")

    def wide_drain(self, per_pair=None):
        prim = [self.M(vY + (j * 3 + n) * 4, vFr + 4 * (j + 2 if j >= 6 else j), vAcc + (3 + n) * 4) for j in range(8) for n in range(3)]
        fill = []
        if per_pair:
            for jp in range(4):
                g = per_pair(jp)
                fill += [(6 * jp + 13, x) for x in g]
        self.weave(prim, fill, per=4)

    def zero(self, base, n):
        for k in range(0, n, 2):
            self.A(f"v_mov_b64 {vr(base+k,2)}, 0")

    def act_write_addr(self, sblk, stile):
        A = self.A
        self.lane(vT + 1)
        A(f"v_lshrrev_b32 {vr(vT)}, 4, {vr(vT+1)}")
        A(f"v_and_b32 {vr(vT+1)}, 15, {vr(vT+1)}")
        A(f"v_lshrrev_b32 {vr(vT+2)}, 1, {vr(vT)}")
        if stile is not None:
            A(f"v_add_u32 {vr(vT+2)}, {sr(stile)}, {vr(vT+2)}")
        A(f"v_xor_b32 {vr(vT+2)}, {vr(vT+2)}, {vr(vT+1)}")
        A(f"v_lshlrev_b32 {vr(vT+2)}, 4, {vr(vT+2)}")
        A(f"v_and_b32 {vr(vT)}, 1, {vr(vT)}")
        A(f"v_lshl_or_b32 {vr(vT+2)}, {vr(vT)}, 3, {vr(vT+2)}")
        A(f"v_mul_u32_u24 {vr(vT+1)}, {XROW}, {vr(vT+1)}")
        A(f"s_add_u32 {sr(sT5)}, {sr(sblk)}, {XB}")
        A(f"v_add3_u32 {vr(vT+1)}, {vr(vT+1)}, {sr(sT5)}, {vr(vT+2)}")

    def frag_addrs(self):
        A = self.A
        t0, t1, t2, t3, t4, t5, vL = vT, vT + 1, vT + 2, vT + 3, vT + 4, vT + 5, vT + 6
        self.lane(vL)
        A(f"v_lshrrev_b32 {vr(t0)}, 4, {vr(vL)}")
        A(f"v_and_b32 {vr(t1)}, 15, {vr(vL)}")
        A(f"v_bfe_u32 {vr(t2)}, {vr(vL)}, 2, 2")
        A(f"v_and_b32 {vr(t3)}, 3, {vr(vL)}")
        A(f"v_lshl_add_u32 {vr(t4)}, {vr(t0)}, 3, {vr(t2)}")
        A(f"v_lshlrev_b32 {vr(t4)}, 8, {vr(t4)}")
        A(f"v_and_b32 {vr(t5)}, 1, {vr(t0)}")
        A(f"v_lshl_or_b32 {vr(t5)}, {vr(t5)}, 2, {vr(t2)}")
        A(f"v_lshl_or_b32 {vr(t4)}, {vr(t5)}, 5, {vr(t4)}")
        A(f"v_lshl_or_b32 {vr(vTR0)}, {vr(t3)}, 3, {vr(t4)}")
        A(f"s_lshr_b32 {sr(sT0)}, {sr(sW1024)}, 4")
        A(f"v_xor_b32 {vr(vTRw)}, {sr(sT0)}, {vr(vTR0)}")
        A(f"s_lshr_b32 {sr(sT1)}, {sr(sW)}, 1")
        A(f"s_lshl_b32 {sr(sT1)}, {sr(sT1)}, 13")
        A(f"v_lshrrev_b32 {vr(t4)}, 2, {vr(t1)}")
        A(f"v_lshl_or_b32 {vr(t4)}, {vr(t4)}, 3, {vr(t3)}")
        A(f"v_lshlrev_b32 {vr(t4)}, 8, {vr(t4)}")
        A(f"v_lshrrev_b32 {vr(t5)}, 1, {vr(t0)}")
        A(f"v_and_b32 {vr(vKb)}, 7, {vr(t1)}")
        A(f"v_xor_b32 {vr(t5)}, {vr(t5)}, {vr(vKb)}")
        A(f"v_lshl_or_b32 {vr(t4)}, {vr(t5)}, 5, {vr(t4)}")
        A(f"v_and_b32 {vr(t5)}, 1, {vr(t0)}")
        A(f"v_lshl_or_b32 {vr(t4)}, {vr(t5)}, 4, {vr(t4)}")
        A(f"s_and_b32 {sr(sT0)}, {sr(sW)}, 1")
        A(f"s_lshl_b32 {sr(sT0)}, {sr(sT0)}, 10")
        A(f"s_add_u32 {sr(sT0)}, {sr(sT0)}, {sr(sT1)}")
        A(f"v_add_u32 {vr(vKb)}, {sr(sT0)}, {vr(t4)}")
        A(f"v_mul_u32_u24 {vr(t4)}, {XROW}, {vr(t1)}")
        A(f"v_add_u32 {vr(t4)}, {XB}, {vr(t4)}")
        A(f"v_xor_b32 {vr(t5)}, {vr(t0)}, {vr(t1)}")
        A(f"v_lshlrev_b32 {vr(t5)}, 4, {vr(t5)}")
        for s in range(4):
            A(f"v_xor_b32 {vr(vXB+s)}, {s*64}, {vr(t5)}")
            A(f"v_add_u32 {vr(vXB+s)}, {vr(vXB+s)}, {vr(t4)}")
        A(f"v_lshrrev_b32 {vr(t5)}, 1, {vr(t0)}")
        A(f"s_lshr_b32 {sr(sT0)}, {sr(sW1024)}, 8")
        A(f"v_add_u32 {vr(t5)}, {sr(sT0)}, {vr(t5)}")
        A(f"v_xor_b32 {vr(t5)}, {vr(t5)}, {vr(t1)}")
        A(f"v_lshl_add_u32 {vr(vQW)}, {vr(t5)}, 4, {vr(t4)}")
        A(f"v_and_b32 {vr(t5)}, 1, {vr(t0)}")
        A(f"v_lshl_add_u32 {vr(vQW)}, {vr(t5)}, 3, {vr(vQW)}")
        A(f"s_lshr_b32 {sr(sT0)}, {sr(sW)}, 1")
        A(f"s_lshl_b32 {sr(sT0)}, {sr(sT0)}, 2")
        A(f"v_add_u32 {vr(t5)}, {sr(sT0)}, {vr(t0)}")
        A(f"v_xor_b32 {vr(t5)}, {vr(t5)}, {vr(t1)}")
        A(f"v_lshl_add_u32 {vr(vPW)}, {vr(t5)}, 4, {vr(t4)}")
        A(f"s_and_b32 {sr(sT0)}, {sr(sW)}, 1")
        A(f"s_lshl_b32 {sr(sT0)}, {sr(sT0)}, 3")
        A(f"v_add_u32 {vr(vPW)}, {sr(sT0)}, {vr(vPW)}")
        A(f"v_lshlrev_b32 {vr(vSTr)}, 5, {vr(t1)}")
        A(f"v_add_u32 {vr(vSTr)}, {ST}, {vr(vSTr)}")
        A(f"v_lshlrev_b32 {vr(t5)}, 1, {vr(t0)}")
        A(f"v_mov_b32 {vr(t4)}, 0x98")
        A(f"v_lshrrev_b32 {vr(t5)}, {vr(t5)}, {vr(t4)}")
        A(f"v_and_b32 {vr(t5)}, 3, {vr(t5)}")
        A(f"v_lshl_add_u32 {vr(vSTw)}, {vr(t5)}, 9, {vr(vSTr)}")
        A(f"s_lshl_b32 {sr(sT0)}, {sr(sW)}, 2")
        A(f"v_add_u32 {vr(vSTw)}, {sr(sT0)}, {vr(vSTw)}")

    def main_kernel(self):
        A, lab, c = self.A, self.lab, self.c
        opt = self.opt
        K1 = NAME + "_kernel"
        self.L += [f".globl {K1}", ".p2align 8", f".type {K1},@function"]
        lab(K1)
        A("s_cmp_ge_u32 s2, 256")
        A("s_cbranch_scc1 L_end")
        if opt.get("only"):
            A("s_bitcmp1_b32 s2, 7")
            A("s_cbranch_scc%d L_end" % (1 if opt["only"] == "B" else 0))
        A(f"s_load_dwordx8 {sr(44,8)}, s[0:1], 40")
        A(f"s_load_dwordx2 {sr(52,2)}, s[0:1], 72")
        A(f"s_load_dwordx8 {sr(32,8)}, s[0:1], 0")
        A(f"s_load_dwordx2 {sr(40,2)}, s[0:1], 32")
        A(f"s_load_dwordx2 {sr(54,2)}, s[0:1], 96")
        if opt.get("stamps"):
            A(f"v_mov_b32 {vr(23)}, 0")
            A(f"s_mov_b32 s78, {-(opt.get('skip', 1) - 1)}")
        if opt.get("prost"):
            self.stamp(15)
        vL = vT + 6
        A(f"v_lshrrev_b32 {vr(vT)}, 6, v0")
        A(f"v_and_b32 {vr(vL)}, 63, v0")
        A(f"v_readfirstlane_b32 {sr(sW)}, {vr(vT)}")
        A(f"s_and_b32 {sr(sG)}, s2, 7")
        A(f"s_lshr_b32 {sr(sT0)}, s2, 3")
        A(f"s_and_b32 {sr(sB)}, {sr(sT0)}, 15")
        A(f"s_lshr_b32 {sr(sRole)}, {sr(sT0)}, 4")
        A(f"s_and_b32 {sr(sT1)}, {sr(sW)}, 3")
        A(f"s_lshl_b32 {sr(sW1024)}, {sr(sT1)}, 10")
        c("DMA lane offsets: row = 4(w&3) + (l>>4) (+16), 32-byte chunk XOR key(row)")
        t0, t1, t2, t3, t4, t5 = vT, vT + 1, vT + 2, vT + 3, vT + 4, vT + 5
        A(f"v_lshrrev_b32 {vr(t0)}, 4, {vr(vL)}")
        A(f"s_lshl_b32 {sr(sT0)}, {sr(sW)}, 1")
        A(f"s_and_b32 {sr(sT0)}, {sr(sT0)}, 4")
        A(f"v_or_b32 {vr(t1)}, {sr(sT0)}, {vr(t0)}")
        A(f"v_bfe_u32 {vr(t2)}, {vr(vL)}, 1, 3")
        A(f"v_xor_b32 {vr(t1)}, {vr(t1)}, {vr(t2)}")
        A(f"v_lshlrev_b32 {vr(t1)}, 5, {vr(t1)}")
        A(f"v_and_b32 {vr(t2)}, 1, {vr(vL)}")
        A(f"v_lshl_or_b32 {vr(vChunk)}, {vr(t2)}, 4, {vr(t1)}")
        A(f"s_lshl_b32 {sr(sT0)}, {sr(sT1)}, 2")
        A(f"v_add_u32 {vr(vRow)}, {sr(sT0)}, {vr(t0)}")
        A(f"v_lshl_add_u32 {vr(vCur[0])}, {vr(vRow)}, {ROWSH[T_WQ]}, {vr(vChunk)}")
        c("first B head: 4g for the A role, 4g+1 for the B role")
        A(f"s_lshl_b32 {sr(sT4)}, {sr(sG)}, 2")
        A(f"s_add_u32 {sr(sT4)}, {sr(sT4)}, 1")
        A(f"s_sub_u32 {sr(sT4)}, {sr(sT4)}, {sr(sRole)}")
        A(f"s_lshl_b32 {sr(sE)}, {sr(sT4)}, 8")
        A(f"s_getpc_b64 {sr(sT2,2)}")
        lab("L_pc0")
        A(f"s_lshl_b32 {sr(sT0)}, {sr(sRole)}, 8")
        A(f"s_add_u32 {sr(sT0)}, {sr(sT0)}, L_table-L_pc0")
        A(f"v_lshl_add_u32 {vr(vTab)}, {vr(vL)}, 2, {sr(sT0)}")
        A(f"global_load_dword {vr(vTab)}, {vr(vTab)}, {sr(sT2,2)}")
        self.x_setup(vY)
        if opt.get("prost"):
            self.stamp(15)
        A(f"s_bitcmp1_b32 {sr(sW)}, 2")
        A("s_waitcnt lgkmcnt(0)")
        self.srd(SRD_AUX, sBx, 786432)
        self.srd(SRD_WQ, sBwq, 4194304)
        self.srd(SRD_CUR[0], sBwq, 4194304)
        self.srd(SRD_CUR[1], sBwq, 4194304)
        A("s_cbranch_scc1 L_pro_ld")
        self.weight_prefetch([(sBwq, True, 0), (sAwq, True, 0), (sAwq, True, 2)][:opt.get("pfn", 3)])
        if opt.get("xapf", 1):
            A(f"s_cmp_eq_u32 {sr(sRole)}, 1")
            A("s_cbranch_scc1 L_pro_done")
            A(f"s_mov_b64 {sr(SRD_CUR[1],2)}, {sr(sAx,2)}")
            A(f"s_mov_b32 {sr(SRD_CUR[1]+2)}, 786432")
            A(f"s_lshl_b32 {sr(sT0)}, {sr(sB)}, 2")
            A(f"s_add_u32 {sr(sT0)}, {sr(sT0)}, {sr(sW)}")
            A(f"s_mul_i32 {sr(sT0)}, {sr(sT0)}, 12288")
            for k in range(12):
                if k and k % 4 == 0:
                    A(f"s_add_u32 {sr(sT0)}, {sr(sT0)}, 4096")
                A(f"buffer_load_dwordx4 v[156:159], {vr(vT+1)}, {sr(SRD_CUR[1],4)}, {sr(sT0)} offen offset:{(k%4)*1024}")
        A("s_branch L_pro_done")
        lab("L_pro_ld")
        for k in range(24):
            for blk in {0: {0: (0, 1, 2, 3)}, 1: {0: (0,), 8: (1, 2, 3)}}[opt.get("xorder", 0)].get(k, ()):
                self.x_block(vY, blk)
            if opt.get("prost") and k % 8 == 0:
                self.stamp(15)
            A(f"s_add_u32 m0, {sr(sW1024)}, {k*4096}")
            if k:
                A(f"s_add_u32 {sr(sE)}, {sr(sE)}, {16*8192}")
            else:
                A("s_nop 0")
            A(f"buffer_load_dwordx4 {vr(vCur[0])}, {sr(SRD_WQ,4)}, {sr(sE)} offen{self.wf} lds")
        if opt.get("prost"):
            self.stamp(15)
            for n in (33, 24, 16, 8, 0):
                A(f"s_waitcnt vmcnt({n})")
                self.stamp(14)
        lab("L_pro_done")
        self.frag_addrs()
        self.srd(SRD_WQW, sAwq, 4194304)
        A(f"s_cmp_eq_u32 {sr(sRole)}, 1")
        for d, pa, pb, za, zb in ((SRD_K, sAk, sBk, 16777216, 67108864), (SRD_V, sAv, sBv, 16777216, 67108864), (SRD_WO, sAwo, sBwo, 4194304, 4194304)):
            A(f"s_cselect_b64 {sr(d,2)}, {sr(pa,2)}, {sr(pb,2)}")
            A(f"s_mov_b32 {sr(d+2)}, {zb}")
            if za != zb:
                A(f"s_cselect_b32 {sr(d+2)}, {za}, {sr(d+2)}")
            A(f"s_mov_b32 {sr(d+3)}, 0x20000")
        A(f"s_mov_b64 {sr(SRD_AUX,2)}, {sr(sAx,2)}")
        c("tile table: entry = constant + base selected by bits 4:3 (Wq head, B K/V unit, Wo head, A K/V unit)")
        bq, bkv, bo, bka = sT0, sT1, sT2, sT3
        A(f"s_lshl_b32 {sr(bq)}, {sr(sT4)}, 8")
        A(f"s_lshl_b32 {sr(bkv)}, {sr(sB)}, 5")
        A(f"s_add_u32 {sr(bkv)}, {sr(bkv)}, {sr(sT4)}")
        A(f"s_lshl_b32 {sr(bkv)}, {sr(bkv)}, 17")
        A(f"s_lshl_b32 {sr(bo)}, {sr(sT4)}, 17")
        A(f"s_lshl_b32 {sr(bka)}, {sr(sB)}, 3")
        A(f"s_add_u32 {sr(bka)}, {sr(bka)}, {sr(sG)}")
        A(f"s_lshl_b32 {sr(bka)}, {sr(bka)}, 17")
        A(f"s_cmp_eq_u32 {sr(sRole)}, 1")
        A(f"s_cselect_b32 {sr(sHead)}, 1, 3")
        A(f"v_mov_b32 {vr(vT+1)}, {sr(bq)}")
        self.is_loader("L_tabw")
        A("s_waitcnt vmcnt(0)")
        lab("L_tabw")
        A("s_waitcnt vmcnt(36)")
        A(f"v_bfe_u32 {vr(vT)}, {vr(vTab)}, 3, 2")
        for k, base in ((1, bkv), (2, bo), (3, bka)):
            A(f"v_cmp_eq_u32 vcc, {k}, {vr(vT)}")
            A(f"v_mov_b32 {vr(vT+2)}, {sr(base)}")
            A("s_nop 0")
            A(f"v_cndmask_b32 {vr(vT+1)}, {vr(vT+1)}, {vr(vT+2)}, vcc")
        A(f"v_add_u32 {vr(vTab)}, {vr(vTab)}, {vr(vT+1)}")
        A(f"s_mov_b32 {sr(sIdx)}, 3")
        A(f"s_mov_b32 {sr(sC)}, 0")
        A(f"v_readlane_b32 {sr(sE)}, {vr(vTab)}, 3")

        def const(ty, hh, t, a_unit=False):
            if ty == T_WQ:
                return t * 128 * 8192 + hh * 256 + ty
            if ty == T_WQW:
                return t * 32 * 8192 + ty
            if ty in (T_K, T_V):
                return hh * 131072 + t * 32768 + ty + (24 if a_unit else 8)
            return (hh * 128 + 32 * t) * 1024 + ty + 16

        tb = [const(T_WQ, 0, t) for t in range(4)] + [const(T_K, 0, t) for t in range(4)]
        tb += [const(T_WQ, hh, t) for hh in (1, 2) for t in range(4)]
        tb += [const(ty, 0, t) for ty in (T_V, T_WO) for t in range(4)]
        tb += [const(ty, hh, t) for hh in (1, 2) for ty in (T_K, T_V, T_WO) for t in range(4)]
        ta = [const(T_WQ, 0, t) for t in range(4)] + [const(T_WQW, 0, t) for t in range(16)]
        ta += [const(ty, 0, t, True) for t in range(4) for ty in (T_K, T_V)]
        ta += [const(T_WO, hh, t) for hh in range(4) for t in range(4)]
        ta += [const(ty, 0, t) for ty in (T_K, T_V, T_WO) for t in range(4)]
        self.table = tb + [NULL_OFF] * (64 - len(tb)) + ta + [NULL_OFF] * (64 - len(ta))
        A(f"s_mov_b32 {sr(sScale)}, {f32(math.log2(math.e) / math.sqrt(128.0))}")
        A(f"s_mov_b32 {sr(sThr)}, 0x41000000")
        A(f"s_mov_b32 {sr(sZero)}, 1")
        self.stamp(0)

        c("Q projection of the first B head (scaled by log2(e)/sqrt(128)); the hook streams in the A-branch x behind it")
        A(f"s_mov_b32 {sr(sHook)}, {sr(sRole)}")
        A(f"s_mov_b32 {sr(sThrot)}, 0")
        A(f"s_xor_b32 {sr(sLate)}, {sr(sRole)}, 1")
        A(f"s_call_b64 {sr(LINK_S,2)}, L_qproj")
        def q_write(src, blk):
            A(f"v_xor_b32 {vr(vT+6)}, 32, {vr(vQW)}")
            for m in range(2):
                for n in range(3):
                    A(f"ds_write_b64 {vr(vT+6 if m else vQW)}, {vr(src+(m*3+n)*2,2)} offset:{n*XN+blk*BLK}")

        self.is_loader("L_q0done")
        q_write(vAcc, 4)
        A(f"s_cmp_eq_u32 {sr(sRole)}, 1")
        A("s_cbranch_scc1 L_q0done")
        A("s_barrier")
        self.weight_prefetch([(sBwq, True, 2), (sBwo, False, 0), (sBwo, False, 2), (sAwo, False, 0), (sAwo, False, 2)], single=True)
        lab("L_q0done")
        self.stamp(1)
        A(f"s_cmp_eq_u32 {sr(sRole)}, 1")
        A(f"s_mov_b32 {sr(sThrot)}, 0")
        A("s_cbranch_scc0 L_bpath")
        c("GQA group: four query heads sharing one K/V")
        A(f"s_mov_b32 {sr(sHook)}, 0")
        A(f"s_mov_b32 {sr(sBlk)}, 0")
        A(f"s_mov_b32 {sr(sBlkEnd)}, {3*BLK}")
        A(f"s_call_b64 {sr(LINK_S,2)}, L_wide")
        c("wave c < 4 holds Q of head c; x is dead after the drain barrier")
        A(f"s_bitcmp1_b32 {sr(sW)}, 2")
        A("s_cbranch_scc1 L_qa_done")
        A(f"s_mul_i32 {sr(sT0)}, {sr(sW)}, {BLK}")
        self.act_write_addr(sT0, None)
        A(f"v_mov_b32 {vr(vT+4)}, {sr(sScale)}")
        def qpack(jp):
            g = []
            for k in range(6 * jp, 6 * jp + 6):
                y = vY + k * 4
                g += [[self.pkmul(y, vT + 4)], [self.pkmul(y + 2, vT + 4)],
                      [f"v_cvt_pk_bf16_f32 {vr(y)}, {vr(y)}, {vr(y+1)}"], [f"v_cvt_pk_bf16_f32 {vr(y+1)}, {vr(y+2)}, {vr(y+3)}"]]
            return g

        self.wide_drain(qpack)
        A("s_barrier")
        for j in range(8):
            if j:
                A(f"v_xor_b32 {vr(vT+3)}, {j*32}, {vr(vT+1)}")
            for n in range(3):
                y = vY + (j * 3 + n) * 4
                A(f"ds_write_b64 {vr(vT+3 if j else vT+1)}, {vr(y,2)} offset:{n*XN}")
        lab("L_qa_done")
        self.stamp(7)
        c("wave = (head w>>1, key half w&1); O slot j holds d tile j ^ 4(w&1)")
        A(f"s_and_b32 {sr(sT0)}, {sr(sW)}, 1")
        A(f"s_lshl_b32 {sr(sT2)}, {sr(sT0)}, 14")
        A(f"s_lshl_b32 {sr(sT3)}, {sr(sT0)}, 7")
        A(f"s_lshl_b32 {sr(sT0)}, {sr(sT0)}, 10")
        A(f"s_lshr_b32 {sr(sT1)}, {sr(sW)}, 1")
        A(f"s_mul_i32 {sr(sBlk)}, {sr(sT1)}, {BLK}")
        A(f"s_lshl_b32 {sr(sT1)}, {sr(sT1)}, 13")
        A(f"s_add_u32 {sr(sT0)}, {sr(sT0)}, {sr(sT1)}")
        A(f"s_sub_u32 {sr(sT0)}, {sr(sT2)}, {sr(sT0)}")
        A(f"v_add_u32 {vr(vKa)}, {sr(sT0)}, {vr(vKb)}")
        A(f"v_xor_b32 {vr(vTRa)}, {sr(sT3)}, {vr(vTR0)}")
        A(f"v_add_u32 {vr(vTRa)}, {sr(sT2)}, {vr(vTRa)}")
        c("slot queue: the three ring slots in order, then the activation region as a fourth slot")
        for k in range(3):
            A(f"s_mov_b32 {sr(sQ[k])}, {sr(sC)}")
            self.weave([], self.rot())
        A(f"s_mov_b32 {sr(sQ[3])}, {XB}")
        A(f"v_add_u32 {vr(vT)}, {sr(sQ[0])}, {vr(vKa)}")
        for s in range(1, 4):
            A(f"v_xor_b32 {vr(vT+s)}, {s*64}, {vr(vT)}")
        for n in range(3):
            self.zero(vNm[n], 4)
            A(f"v_mov_b32 {vr(vLs+n)}, 0")
        A(f"s_mov_b32 {sr(sFix)}, 0")
        A(f"s_mov_b32 {sr(sIter)}, 4")

        def sa(sg, n, t):
            return vS + ((sg * 3 + n) * 2 + t) * 4

        tiles = [(0, 0), (0, 1), (1, 0), (1, 1)]

        def kreads(j):
            sg, t = tiles[j]
            for s in range(4):
                A(f"ds_read_b128 {vr(vAfA+((j%2)*4+s)*4,4)}, {vr(vT+s)} offset:{sg*8192+t*1024}")

        def sm_max(sg):
            f = []
            for n in range(3):
                f += [[x] for x in self.maxn(vT + n, [sa(sg, n, 0) + r for r in range(8)])]
            return f

        def sm_check(lr, ln):
            return [[f"v_max3_f32 {vr(vT+3)}, {vr(vT)}, {vr(vT+1)}, {vr(vT+2)}"],
                    [f"v_cmp_lt_f32 vcc, {sr(sThr)}, {vr(vT+3)}", f"s_cbranch_vccnz {lr}", ln + ":"]]

        def sm_exp(sg):
            f = []
            for n in range(3):
                b = sa(sg, n, 0)
                for r in range(8):
                    f.append([f"v_exp_f32 {vr(b+r)}, {vr(b+r)}"])
                    if r >= 2:
                        f.append([f"v_add_f32 {vr(vLs+n)}, {vr(vLs+n)}, {vr(b+r-2)}"])
                f.append([f"v_add_f32 {vr(vLs+n)}, {vr(vLs+n)}, {vr(b+6)}"])
                f.append([f"v_add_f32 {vr(vLs+n)}, {vr(vLs+n)}, {vr(b+7)}"])
                for r in range(4):
                    f.append([f"v_cvt_pk_bf16_f32 {vr(b+r)}, {vr(b+2*r)}, {vr(b+2*r+1)}"])
            return f

        def qrot(p):
            return [[f"s_bitcmp1_b32 {sr(sW)}, 2", f"s_cselect_b32 {sr(sI[p])}, {sr(sQ[0])}, {sr(sQ[3])}"],
                    [f"s_add_u32 {sr(sI[p])}, {sr(sI[p])}, {sr(sT1)}"],
                    [f"s_mov_b32 {sr(sT0)}, {sr(sQ[0])}"], [f"s_mov_b32 {sr(sQ[0])}, {sr(sQ[1])}"],
                    [f"s_mov_b32 {sr(sQ[1])}, {sr(sQ[2])}"], [f"s_mov_b32 {sr(sQ[2])}, {sr(sQ[3])}"],
                    [f"s_mov_b32 {sr(sQ[3])}, {sr(sT0)}"]]

        def aprep(p):
            return self.prep(p, False) + [[f"s_and_b32 {sr(sHalf[p])}, {sr(sHalf[p])}, {sr(sT2)}"],
                                          [f"s_add_u32 {sr(sOff[p])}, {sr(sOff[p])}, {sr(sHalf[p])}"]]

        def kstep(first):
            u = "f" if first else "l"
            self.head(8 if first else 4)
            if first:
                self.is_loader("L_att1")
                self.load_bfrags_dyn(vAfA + 28, QA)
                lab("L_att1")
            kreads(0)
            kreads(1)
            prim = []
            for j in range(4):
                sg, t = tiles[j]
                prim.append(self.D1(j, 1, first))
                for s in range(4):
                    prim.append(("w", [f"  s_waitcnt lgkmcnt({(7-s) if j < 3 else (3-s)})"]))
                    for n in range(3):
                        prim.append(self.M(sa(sg, n, t), vAfA + ((j % 2) * 4 + s) * 4, QA[n * 4 + s], vNm[n] if s == 0 else None))
                if j < 2:
                    prim.append(("r", self.cap(kreads, j + 2)))
                if j == 1:
                    half = len(prim)
            zf = [[f"v_mov_b64 {vr(vO+k,2)}, 0"] for k in range(0, 96, 2)] if first else []
            self.weave(prim[:half], qrot(0) + aprep(0) + zf, per=3 if first else 1)
            fill = sm_max(0)
            if first:
                fill.append([f"s_branch L_r0first", "L_n0f:"])
            else:
                fill += sm_check("L_r0", "L_n0l")
            fill += sm_exp(0)
            self.weave(prim[half:], fill, per=4, start=6)
            A(f"s_cmp_eq_u32 {sr(sFix)}, 0")
            A("s_nop 6")
            A(f"s_cbranch_scc0 L_r0b{u}")
            lab(f"L_n0b{u}")
            self.weave([], sm_max(1) + sm_check(f"L_r1{u}", f"L_n1{u}"))
            A(f"v_add_u32 {vr(vT)}, {sr(sQ[0])}, {vr(vTRa)}")

        def vreads(q):
            sg, mt = q // 8, q % 8
            a = vT if mt == 0 else vT + 1 + (mt % 2)
            if mt:
                A(f"v_xor_b32 {vr(a)}, {mt*32}, {vr(vT)}")
            self.tr_pair(vAfA + (q % 8) * 4, a, sg * 8192)

        c("waves 4-7 run one interval behind waves 0-3")
        A(f"s_lshl_b32 {sr(sT1)}, {sr(sW)}, 10")
        A(f"s_mov_b32 {sr(sIdx)}, 23")
        A(f"v_readlane_b32 {sr(sE)}, {vr(vTab)}, 23")
        A(f"s_bitcmp1_b32 {sr(sW)}, 2")
        A(f"s_cselect_b32 {sr(sT2)}, -1, 0")
        A("s_cbranch_scc0 L_att0")
        A(f"s_add_u32 {sr(sI[1])}, {sr(sQ[3])}, {sr(sT1)}")
        self.weave([], aprep(1))
        self.head(16)
        self.load_bfrags_dyn(vAfA, QA)
        lab("L_att0")
        kstep(True)
        lab("L_attA")
        self.head(4)
        for q in range(6):
            vreads(q)
        prim = []
        for q in range(16):
            sg, mt = q // 8, q % 8
            if q % 2 == 0 and q < 8:
                prim.append(self.D1(q // 2, 0))
            if q + 6 < 16:
                prim.append(("r", self.cap(vreads, q + 6)))
                lastr = len(prim)
            prim.append(("w", [f"  s_waitcnt lgkmcnt({2*min(6, 15-q)})"]))
            for n in range(3):
                prim.append(self.M(vO + (mt * 3 + n) * 4, vAfA + (q % 8) * 4, sa(sg, n, 0)))
            if q == 7:
                half = len(prim)
        self.weave(prim[:half], sm_exp(1), per=3)
        A(f"s_cmp_eq_u32 {sr(sIter)}, 1")
        A("s_cbranch_scc1 L_attlast")
        fill = qrot(1) + aprep(1)
        fill.append((lastr - half, [f"v_add_u32 {vr(vT)}, {sr(sQ[0])}, {vr(vKa)}"]))
        for s in range(1, 4):
            fill.append([f"v_xor_b32 {vr(vT+s)}, {s*64}, {vr(vT)}"])
        self.weave(prim[half:], fill, per=2)
        self.stamp(13)
        A(f"s_sub_u32 {sr(sIter)}, {sr(sIter)}, 1")
        kstep(False)
        A("s_branch L_attA")
        lab("L_attlast")
        self.is_loader("L_attlast_y")
        self.weave(prim[half:], qrot(1) + aprep(1), per=2)
        self.head(None)
        for k in range(4):
            self.L += self.D1(k, 1)[1]
        A("s_branch L_attdone")
        lab("L_attlast_y")
        self.weave(prim[half:], [])
        lab("L_attdone")
        self.stamp(8)
        c("merge the two key halves of each head")
        self.srd(SRD_K, sBk, 67108864)
        self.srd(SRD_V, sBv, 67108864)
        self.allreduce3(vLs, vT, "v_add_f32")
        self.lane(vT + 3)
        A(f"v_and_b32 {vr(vT)}, 15, {vr(vT+3)}")
        A(f"v_lshlrev_b32 {vr(vT)}, 3, {vr(vT)}")
        A(f"s_mul_i32 {sr(sT0)}, {sr(sW)}, 384")
        A(f"s_add_u32 {sr(sT0)}, {sr(sT0)}, {ST}")
        A(f"v_add_u32 {vr(vT+1)}, {sr(sT0)}, {vr(vT)}")
        A(f"s_xor_b32 {sr(sT1)}, {sr(sW)}, 1")
        A(f"s_mul_i32 {sr(sT0)}, {sr(sT1)}, 384")
        A(f"s_add_u32 {sr(sT0)}, {sr(sT0)}, {ST}")
        A(f"v_add_u32 {vr(vT+2)}, {sr(sT0)}, {vr(vT)}")
        for n in range(3):
            A(f"v_mov_b32 {vr(vAfA+2*n)}, {vr(vNm[n])}")
            A(f"v_mov_b32 {vr(vAfA+2*n+1)}, {vr(vLs+n)}")
            A(f"ds_write_b64 {vr(vT+1)}, {vr(vAfA+2*n,2)} offset:{n*128}")
        self.head(None)
        for n in range(3):
            A(f"ds_read_b64 {vr(vAfA+8+2*n,2)}, {vr(vT+2)} offset:{n*128}")
        A(f"s_mul_i32 {sr(sT0)}, {sr(sW)}, 6144")
        A(f"s_add_u32 {sr(sT0)}, {sr(sT0)}, {XB}")
        A(f"s_mul_i32 {sr(sT1)}, {sr(sT1)}, 6144")
        A(f"s_add_u32 {sr(sT1)}, {sr(sT1)}, {XB}")
        A(f"v_lshlrev_b32 {vr(vT)}, 4, {vr(vT+3)}")
        A(f"v_add_u32 {vr(vT+1)}, {sr(sT0)}, {vr(vT)}")
        A(f"v_add_u32 {vr(vT+2)}, {sr(sT1)}, {vr(vT)}")
        A("s_waitcnt lgkmcnt(0)")
        fr = [vAfA + 20 + 2 * n for n in range(3)]
        for n in range(3):
            mo, lo = vAfA + 8 + 2 * n, vAfA + 9 + 2 * n
            m, f, fo = vAfA + 16 + n, fr[n], fr[n] + 1
            A(f"v_min_f32 {vr(m)}, {vr(vNm[n])}, {vr(mo)}")
            A(f"v_sub_f32 {vr(f)}, {vr(m)}, {vr(vNm[n])}")
            A(f"v_sub_f32 {vr(fo)}, {vr(m)}, {vr(mo)}")
            A(f"v_exp_f32 {vr(f)}, {vr(f)}")
            A(f"v_exp_f32 {vr(fo)}, {vr(fo)}")
            A("s_nop 0")
            A(f"v_mul_f32 {vr(m)}, {vr(f)}, {vr(vLs+n)}")
            A(f"v_fma_f32 {vr(m)}, {vr(fo)}, {vr(lo)}, {vr(m)}")
            A(f"v_rcp_f32 {vr(m)}, {vr(m)}")
            A("s_nop 0")
            A(f"v_mul_f32 {vr(f)}, {vr(f)}, {vr(m)}")
        c("slots 4-7 go to the partner wave, scaled and packed to bf16")
        for k in range(24):
            o = vO + 48 + 2 * k
            A(self.pkmul(o, fr[(k // 2) % 3]))
        for k in range(24):
            o = vO + 48 + 2 * k
            A(f"v_cvt_pk_bf16_f32 {vr(vS+k)}, {vr(o)}, {vr(o+1)}")
            if k % 4 == 3:
                A(f"ds_write_b128 {vr(vT+1)}, {vr(vS+k-3,4)} offset:{(k//4)*1024}")
        A(f"s_and_b32 {sr(sT0)}, {sr(sW)}, 1")
        A(f"s_lshl_b32 {sr(sT0)}, {sr(sT0)}, 3")
        A(f"s_mov_b32 {sr(sT2)}, 0xffff0000")
        self.head(None)
        for k in range(6):
            A(f"ds_read_b128 {vr(vS+24+4*k,4)}, {vr(vT+2)} offset:{k*1024}")
        self.act_write_addr(sBlk, sT0)
        self.head(0)
        for jj in range(4):
            if jj:
                A(f"v_xor_b32 {vr(vT+3)}, {jj*32}, {vr(vT+1)}")
            for n in range(3):
                k = (jj * 3 + n) * 2
                for h in range(2):
                    x = vS + 2 * h
                    A(f"v_lshlrev_b32 {vr(x)}, 16, {vr(vS+24+k+h)}")
                    A(f"v_and_b32 {vr(x+1)}, {sr(sT2)}, {vr(vS+24+k+h)}")
                    A(f"v_pk_fma_f32 {vr(x,2)}, {vr(vO+2*(k+h),2)}, {vr(fr[n],2)}, {vr(x,2)} op_sel_hi:[1,0,1]")
                    A(f"v_cvt_pk_bf16_f32 {vr(vS+4+(k+h)%8)}, {vr(x)}, {vr(x+1)}")
                A(f"ds_write_b64 {vr(vT+3 if jj else vT+1)}, {vr(vS+4+k%8,2)} offset:{n*XN}")
        A(f"s_mov_b32 {sr(sZero)}, 1")
        self.stamp(9)
        A(f"s_mov_b32 {sr(sBlk)}, 0")
        A(f"s_call_b64 {sr(LINK_S,2)}, L_wide")
        A(f"s_lshl_b32 {sr(sT0)}, {sr(sB)}, 3")
        A(f"s_add_u32 {sr(sT0)}, {sr(sT0)}, {sr(sG)}")
        A(f"s_mul_i32 {sr(sT0)}, {sr(sT0)}, {PART}")
        A(f"s_add_u32 {sr(sT0)}, {sr(sT0)}, {PART_A_BASE}")
        self.is_loader("L_apk")
        self.pack_y()
        lab("L_apk")
        A(f"s_mov_b32 {sr(sPend)}, 1")
        self.srd(SRD_WO, sBwo, 4194304)
        A(f"s_mov_b32 {sr(sZero)}, 1")
        self.frag_addrs()
        self.stamp(10)
        A(f"s_mov_b32 {sr(sThrot)}, 0")
        A("s_branch L_bpath2")
        lab("L_bpath")
        A(f"s_mov_b32 {sr(sPend)}, 0")
        lab("L_bpath2")
        A(f"s_mov_b32 {sr(sBlk)}, {4*BLK}")

        lab("L_head")
        c("scores of one B head")
        if opt.get("thr"):
            A(f"s_lshl_b32 {sr(sT0)}, {sr(sHead)}, 2")
            A(f"s_add_u32 {sr(sT0)}, {sr(sT0)}, 0")
            A(f"s_lshr_b32 {sr(sThrot)}, {opt.get('thm', 0)}, {sr(sT0)}")
            A(f"s_andn2_b32 {sr(sThrot)}, {sr(sThrot)}, {sr(sRole)}")
            A(f"s_and_b32 {sr(sThrot)}, {sr(sThrot)}, 1")
        A(f"v_add_u32 {vr(vT)}, {sr(sC)}, {vr(vKb)}")
        for s in range(1, 4):
            A(f"v_xor_b32 {vr(vT+s)}, {s*64}, {vr(vT)}")
        rf = [vQs + 12, vQs + 14, vQs + 16]
        sm = [vQs + 18, vQs + 20, vQs + 22]

        def st(t, n):
            return vS + (t * 3 + n) * 4

        def b_sub(t):
            return [[f"v_pk_add_f32 {vr(st(t,n)+r,2)}, {vr(st(t,n)+r,2)}, {vr(rf[n],2)} op_sel_hi:[1,0] neg_lo:[0,1] neg_hi:[0,1]"]
                    for n in range(3) for r in (0, 2)]

        def b_check(t):
            f = [[x] for x in self.maxn(vT + 5, [st(t, 0) + r for r in range(12)])]
            return f + [[f"v_cmp_lt_f32 vcc, {sr(sThr)}, {vr(vT+5)}", f"s_cbranch_vccnz L_rb{t}", f"L_nb{t}:"]]

        def b_exp(t):
            f = [[f"v_exp_f32 {vr(st(t,0)+r)}, {vr(st(t,0)+r)}"] for r in range(12)]
            for n in range(3):
                b = st(t, n)
                if t == 0:
                    f.append([f"v_pk_add_f32 {vr(sm[n],2)}, {vr(b,2)}, {vr(b+2,2)}"])
                else:
                    f.append([f"v_pk_add_f32 {vr(sm[n],2)}, {vr(sm[n],2)}, {vr(b,2)}"])
                    f.append([f"v_pk_add_f32 {vr(sm[n],2)}, {vr(sm[n],2)}, {vr(b+2,2)}"])
                f.append([f"v_cvt_pk_bf16_f32 {vr(b)}, {vr(b)}, {vr(b+1)}"])
                f.append([f"v_cvt_pk_bf16_f32 {vr(b+1)}, {vr(b+2)}, {vr(b+3)}"])
            return f

        def b_max0():
            f = []
            for n in range(3):
                f += [[x] for x in self.maxn(sm[0] + n, [st(0, n) + r for r in range(4)])]
            f.append([x.strip() for x in self.cap(self.reduce4, sm[0], "v_max_f32")])
            f.append([f"ds_write_b32 {vr(vSTw)}, {vr(sm[0])}"])
            return f

        def b_ref0():
            f = [["s_waitcnt lgkmcnt(0)"] + [f"v_max_f32 {vr(rf[n])}, {vr(rf[n])}, {vr(rf[n]+1)}" for n in range(3)]]
            for sw in ("v_permlane32_swap_b32", "v_permlane16_swap_b32"):
                f.append([f"v_mov_b32 {vr(rf[n]+1)}, {vr(rf[n])}" for n in range(3)] + ["s_nop 1"] +
                         [f"{sw} {vr(rf[n])}, {vr(rf[n]+1)}" for n in range(3)] + ["s_nop 1"] +
                         [f"v_max_f32 {vr(rf[n])}, {vr(rf[n])}, {vr(rf[n]+1)}" for n in range(3)])
            return f

        for T in range(5):
            p = T % 2
            prim, last = [], {}
            self.head(16 if T == 0 else (8 if T < 4 else None))
            if T == 0:
                self.load_bfrags_dyn(vKf, QF)
                A(f"v_mov_b32 {vr(vT+5)}, {FLAG}")
                A(f"v_mov_b32 {vr(vT+6)}, 0")
                A(f"ds_write_b32 {vr(vT+5)}, {vr(vT+6)}")
            if T == 3:
                l = self.new("pw")
                self.is_loader(l)
                A("s_waitcnt vmcnt(0)")
                lab(l)
                for n in range(3):
                    A(f"ds_read_b64 {vr(rf[n],2)}, {vr(vT+5)} offset:{n*512}")
            for s in range(4):
                if T > 0:
                    for n in range(3):
                        prim.append(self.M(st(T - 1, n), vKf + 4 * s, QF[n * 4 + s], 0 if s == 0 else None))
                if T < 4:
                    prim.append(("r", [f"  ds_read_b128 {vr(vKf+4*s,4)}, {vr(vT+s)}"]))
                    last[s] = len(prim)
                if T > 0:
                    prim.append(self.D(s, p, True if T < 2 else None, True))
            fill = []
            if T == 3:
                fill += b_ref0()
            if T < 4:
                fill += self.prep(1 - p)
            if T == 2:
                fill += b_max0()
                fill.append([x.strip() for x in self.cap(self.lane, vT + 5)] +
                            [f"v_lshrrev_b32 {vr(vT+5)}, 4, {vr(vT+5)}", f"v_lshl_add_u32 {vr(vT+5)}, {vr(vT+5)}, 3, {vr(vSTr)}"])
            if T == 3:
                fill += b_sub(0) + b_exp(0) + b_sub(1) + b_check(1) + b_exp(1)
            if T == 4:
                fill += b_sub(2) + b_check(2) + b_exp(2)
            if T < 3:
                fill.append([f"v_add_u32 {vr(vT+4)}, {sr(sC)}, {vr(vKb)}"])
                for s in range(4):
                    fill.append((last[s], [f"v_xor_b32 {vr(vT+s)}, {s*64}, {vr(vT+4)}"]))
            self.weave(prim, fill, per=[2, 2, 3, 8, 4][T])
        self.stamp(2)
        c("last score tile; a wave that had to raise its reference left a flag")
        A(f"v_mov_b32 {vr(vT+4)}, {FLAG}")
        A("s_nop 6")
        self.weave([], b_sub(3) + b_check(3) + b_exp(3))
        self.head(None)
        A(f"ds_read_b32 {vr(vT+4)}, {vr(vT+4)}")
        for n in range(3):
            A(f"v_add_f32 {vr(vT+n)}, {vr(sm[n])}, {vr(sm[n]+1)}")
        A("s_waitcnt lgkmcnt(0)")
        A(f"v_cmp_ne_u32 vcc, 0, {vr(vT+4)}")
        A("s_cbranch_vccnz L_bfix")
        lab("L_bfixed")
        self.reduce4(vT, "v_add_f32")
        A(f"ds_write_b32 {vr(vSTw)}, {vr(vT)} offset:1536")
        self.bsm = (rf, sm, st)
        if opt.get("thr"):
            A(f"s_lshl_b32 {sr(sT0)}, {sr(sHead)}, 2")
            A(f"s_add_u32 {sr(sT0)}, {sr(sT0)}, 1")
            A(f"s_lshr_b32 {sr(sThrot)}, {opt.get('thm', 0)}, {sr(sT0)}")
            A(f"s_andn2_b32 {sr(sThrot)}, {sr(sThrot)}, {sr(sRole)}")
            A(f"s_and_b32 {sr(sThrot)}, {sr(sThrot)}, 1")
        c("B role, first head: remaining Q projections while x is still live")
        A(f"s_mov_b32 {sr(sHook)}, 0")
        A(f"s_cmp_eq_u32 {sr(sHead)}, 3")
        A("s_cbranch_scc0 L_noq")
        for k in range(2):
            A(f"s_mov_b32 {sr(sLate)}, {k}")
            A(f"s_call_b64 {sr(LINK_S,2)}, L_qproj")
            l = self.new("q")
            self.is_loader(l)
            for r in range(0, 12, 2):
                A(f"v_mov_b64 {vr(vQs+12*k+r,2)}, {vr(vAcc+r,2)}")
            if k:
                A("s_barrier")
            lab(l)
        self.stamp(12)
        lab("L_noq")
        for t in range(4):
            for n in range(3):
                A(f"ds_write_b64 {vr(vPW)}, {vr(st(t,n),2)} offset:{n*XN+t*BLK}")
        mreg = [vS, vS + 8, vS + 16]
        self.stamp(3)
        c("P x V")
        A(f"s_mov_b32 {sr(sHook)}, 0")
        A(f"s_mov_b32 {sr(sBlkEnd)}, 0")
        self.is_loader("L_pv_ld")
        pre1 = []
        for n in range(3):
            pre1.append(f"ds_read_b128 {vr(vS+8*n,4)}, {vr(vSTr)} offset:{n*512+1536}")
            pre1.append(f"ds_read_b128 {vr(vS+8*n+4,4)}, {vr(vSTr)} offset:{n*512+1536+16}")
        ex1 = []
        for n in range(3):
            b = vS + 8 * n
            ex1 += [[f"v_pk_add_f32 {vr(b,2)}, {vr(b,2)}, {vr(b+2,2)}"], [f"v_pk_add_f32 {vr(b+4,2)}, {vr(b+4,2)}, {vr(b+6,2)}"],
                    [f"v_pk_add_f32 {vr(b,2)}, {vr(b,2)}, {vr(b+4,2)}"], [f"v_add_f32 {vr(b)}, {vr(b)}, {vr(b+1)}"],
                    [f"v_rcp_f32 {vr(b)}, {vr(b)}"]]
        pre2 = [x.strip() for x in self.cap(q_write, vQs, 0)]
        ex2 = [[f"v_mov_b64 {vr(vQs+r,2)}, {vr(vQs+12+r,2)}"] for r in range(0, 12, 2)]
        def pend(n):
            l = self.new("pd")
            body = [x.strip() for x in self.cap(self.store_y, n, vT + 6)]
            return [f"s_cmp_eq_u32 {sr(sPend)}, 0", f"s_cbranch_scc1 {l}"] + body + [l + ":"]

        self.narrow(pre={1: pre1, 2: pre2}, extra={0: [pend(0)], 1: ex1 + [pend(1)], 2: ex2 + [pend(2)]}, early=True)
        A("s_nop 7")
        for k in range(6):
            a = vAcc + 4 * k
            A(self.pkmul(a, mreg[k % 3]))
            A(self.pkmul(a + 2, mreg[k % 3]))
            A(f"v_cvt_pk_bf16_f32 {vr(vAcc+2*k)}, {vr(a)}, {vr(a+1)}")
            A(f"v_cvt_pk_bf16_f32 {vr(vAcc+2*k+1)}, {vr(a+2)}, {vr(a+3)}")
        q_write(vAcc, 4)
        A("s_branch L_pv_done")
        lab("L_pv_ld")
        A(f"s_call_b64 {sr(LINK_S,2)}, L_load")
        lab("L_pv_done")
        self.stamp(4)
        if opt.get("thr"):
            A(f"s_lshl_b32 {sr(sT0)}, {sr(sHead)}, 2")
            A(f"s_add_u32 {sr(sT0)}, {sr(sT0)}, 2")
            A(f"s_lshr_b32 {sr(sThrot)}, {opt.get('thm', 0)}, {sr(sT0)}")
            A(f"s_andn2_b32 {sr(sThrot)}, {sr(sThrot)}, {sr(sRole)}")
            A(f"s_and_b32 {sr(sThrot)}, {sr(sThrot)}, 1")
        c("output projection")
        A(f"s_sub_u32 {sr(sHead)}, {sr(sHead)}, 1")
        A(f"s_mov_b32 {sr(sBlk)}, {4*BLK}")
        A(f"s_call_b64 {sr(LINK_S,2)}, L_wide")
        self.stamp(5)
        A(f"s_mov_b32 {sr(sBlk)}, 0")
        A(f"s_cmp_eq_u32 {sr(sHead)}, 0")
        A("s_cbranch_scc1 L_bdone")
        self.is_loader("L_head")
        self.wide_drain()
        A("s_barrier")
        A("s_branch L_head")
        lab("L_bdone")
        c("store the B-branch partial")
        A(f"s_lshl_b32 {sr(sT0)}, {sr(sB)}, 4")
        A(f"s_lshl_b32 {sr(sT1)}, {sr(sG)}, 1")
        A(f"s_add_u32 {sr(sT0)}, {sr(sT0)}, {sr(sT1)}")
        A(f"s_add_u32 {sr(sT0)}, {sr(sT0)}, {sr(sRole)}")
        A(f"s_mul_i32 {sr(sT0)}, {sr(sT0)}, {PART}")
        self.is_loader("L_bpk")
        self.pack_y()
        for n in range(3):
            self.store_y(n, vT)
        lab("L_bpk")
        self.stamp(6)
        lab("L_fin")
        if opt.get("stamps"):
            A("s_waitcnt vmcnt(0)")
            self.stamp(11)
            self.srd(SRD_AUX, sWs, 268435456)
            A(f"s_lshl_b32 {sr(sT0)}, s2, 3")
            A(f"s_add_u32 {sr(sT0)}, {sr(sT0)}, {sr(sW)}")
            A(f"s_lshl_b32 {sr(sT0)}, {sr(sT0)}, 8")
            A(f"s_add_u32 {sr(sT0)}, {sr(sT0)}, {64*1024*1024}")
            self.lane(vT)
            A(f"v_lshlrev_b32 {vr(vT)}, 2, {vr(vT)}")
            A(f"buffer_store_dword {vr(23)}, {vr(vT)}, {sr(SRD_AUX,4)}, {sr(sT0)} offen")
        lab("L_end")
        A("s_endpgm")

        def sub_delta(sg):
            for n in range(3):
                for r in range(8):
                    b = sa(sg, n, 0) + r
                    A(f"v_sub_f32 {vr(b)}, {vr(b)}, {vr(vT+n)}")

        def nm_delta():
            for n in range(3):
                for r in range(4):
                    A(f"v_sub_f32 {vr(vNm[n]+r)}, {vr(vNm[n]+r)}, {vr(vT+n)}")

        def allmax1():
            for n in range(3):
                for sw in ("v_permlane32_swap_b32", "v_permlane16_swap_b32"):
                    A(f"v_mov_b32 {vr(vT+3)}, {vr(vT+n)}")
                    A("s_nop 1")
                    A(f"{sw} {vr(vT+n)}, {vr(vT+3)}")
                    A("s_nop 1")
                    A(f"v_max_f32 {vr(vT+n)}, {vr(vT+n)}, {vr(vT+3)}")

        def scale_state(with_p0):
            for n in range(3):
                A(f"v_max_f32 {vr(vT+n)}, 0, {vr(vT+n)}")
                A(f"v_exp_f32 {vr(vT+3)}, -{vr(vT+n)}")
                A("s_nop 0")
                A(f"v_mul_f32 {vr(vLs+n)}, {vr(vLs+n)}, {vr(vT+3)}")
                for mt in range(8):
                    for r in range(4):
                        o = vO + (mt * 3 + n) * 4 + r
                        A(f"v_mul_f32 {vr(o)}, {vr(o)}, {vr(vT+3)}")
                if with_p0:
                    b = sa(0, n, 0)
                    for r in range(4):
                        A(f"v_lshlrev_b32 {vr(b+4)}, 16, {vr(b+r)}")
                        A(f"v_and_b32 {vr(b+5)}, 0xffff0000, {vr(b+r)}")
                        A(f"v_mul_f32 {vr(b+4)}, {vr(b+4)}, {vr(vT+3)}")
                        A(f"v_mul_f32 {vr(b+5)}, {vr(b+5)}, {vr(vT+3)}")
                        A(f"v_cvt_pk_bf16_f32 {vr(b+r)}, {vr(b+4)}, {vr(b+5)}")

        lab("L_r0first")
        allmax1()
        sub_delta(0)
        A(f"s_mov_b32 {sr(sFix)}, 1")
        A("s_branch L_n0f")
        lab("L_r0")
        allmax1()
        scale_state(False)
        sub_delta(0)
        A(f"s_mov_b32 {sr(sFix)}, 1")
        A("s_branch L_n0l")
        for u in "fl":
            lab(f"L_r0b{u}")
            A(f"s_call_b64 {sr(LINK_S,2)}, L_fix1")
            A(f"s_branch L_n0b{u}")
            lab(f"L_r1{u}")
            allmax1()
            A(f"s_call_b64 {sr(LINK_S,2)}, L_scale1")
            A(f"s_branch L_n1{u}")
        lab("L_scale1")
        scale_state(True)
        lab("L_fix1")
        sub_delta(1)
        nm_delta()
        A(f"s_mov_b32 {sr(sFix)}, 0")
        A(f"s_setpc_b64 {sr(LINK_S,2)}")

        self.L += self.cold
        rf, sm, st = self.bsm

        def repack(regs, f, lo, hi):
            for r in regs:
                A(f"v_lshlrev_b32 {vr(lo)}, 16, {vr(r)}")
                A(f"v_and_b32 {vr(hi)}, 0xffff0000, {vr(r)}")
                A(f"v_mul_f32 {vr(lo)}, {vr(lo)}, {vr(f)}")
                A(f"v_mul_f32 {vr(hi)}, {vr(hi)}, {vr(f)}")
                A(f"v_cvt_pk_bf16_f32 {vr(r)}, {vr(lo)}, {vr(hi)}")

        for t in range(1, 4):
            lab(f"L_rb{t}")
            d, f = vT + 5, vT + 6
            for n in range(3):
                self.emit(self.maxn(d, [st(t, n) + r for r in range(4)]))
                for sw in ("v_permlane32_swap_b32", "v_permlane16_swap_b32"):
                    A(f"v_mov_b32 {vr(f)}, {vr(d)}")
                    A("s_nop 1")
                    A(f"{sw} {vr(d)}, {vr(f)}")
                    A("s_nop 1")
                    A(f"v_max_f32 {vr(d)}, {vr(d)}, {vr(f)}")
                A(f"v_max_f32 {vr(d)}, 0, {vr(d)}")
                A(f"v_exp_f32 {vr(f)}, -{vr(d)}")
                A(f"v_add_f32 {vr(rf[n])}, {vr(rf[n])}, {vr(d)}")
                for r in range(4):
                    A(f"v_sub_f32 {vr(st(t,n)+r)}, {vr(st(t,n)+r)}, {vr(d)}")
                for r in (sm[n], sm[n] + 1):
                    A(f"v_mul_f32 {vr(r)}, {vr(r)}, {vr(f)}")
                repack([st(u, n) + k for u in range(t) for k in range(2)], f, st(0, n) + 2, st(0, n) + 3)
            A(f"s_lshl_b32 {sr(sT0)}, {sr(sW)}, 2")
            A(f"v_add_u32 {vr(d)}, {sr(sT0)}, {vr(vSTr)}")
            for n in range(3):
                A(f"ds_write_b32 {vr(d)}, {vr(rf[n])} offset:{n*512}")
            A(f"v_mov_b32 {vr(d)}, {FLAG}")
            A(f"v_mov_b32 {vr(f)}, 1")
            A(f"ds_write_b32 {vr(d)}, {vr(f)}")
            A(f"s_branch L_nb{t}")
        lab("L_bfix")
        for n in range(3):
            A(f"ds_read_b128 {vr(vFr,4)}, {vr(vSTr)} offset:{n*512}")
            A(f"ds_read_b128 {vr(vFr+4,4)}, {vr(vSTr)} offset:{n*512+16}")
            A("s_waitcnt lgkmcnt(0)")
            self.emit(self.maxn(rf[n] + 1, [rf[n]] + [vFr + r for r in range(8)]))
            A(f"v_sub_f32 {vr(rf[n])}, {vr(rf[n])}, {vr(rf[n]+1)}")
            A(f"v_exp_f32 {vr(rf[n])}, {vr(rf[n])}")
            A("s_nop 0")
            A(f"v_mul_f32 {vr(vT+n)}, {vr(vT+n)}, {vr(rf[n])}")
            repack([st(u, n) + k for u in range(4) for k in range(2)], rf[n], st(0, n) + 2, st(0, n) + 3)
        A("s_branch L_bfixed")

        lab("L_qproj")
        A(f"s_mov_b32 {sr(sBlkEnd)}, 0")
        self.is_loader("L_load")
        self.narrow()
        A(f"v_mov_b32 {vr(vT)}, {sr(sScale)}")
        A("s_nop 6")
        for k in range(6):
            a = vAcc + 4 * k
            A(self.pkmul(a, vT))
            A(self.pkmul(a + 2, vT))
            A(f"v_cvt_pk_bf16_f32 {vr(vAcc+2*k)}, {vr(a)}, {vr(a+1)}")
            A(f"v_cvt_pk_bf16_f32 {vr(vAcc+2*k+1)}, {vr(a+2)}, {vr(a+3)}")
        A(f"s_setpc_b64 {sr(LINK_S,2)}")

        def af(j, p):
            return vFr + 4 * (j + 2 * p if j >= 6 else j)

        def wb(n, p):
            return vAcc + (p * 3 + n) * 4

        def wide_rd(j, p):
            a = vT + 1 + (j % 2)
            A(f"v_xor_b32 {vr(a)}, {j*32}, {vr(vT+3+3*p)}")
            self.tr_pair(af(j, p), a, 0)

        def wide_addr(t):
            return [[f"s_add_u32 {sr(sT0)}, {sr(sC)}, {sr(sT1)}"],
                    [f"v_add_u32 {vr(vT+3+3*(t%2))}, {sr(sT0)}, {vr(vTR0)}"],
                    [f"v_add_u32 {vr(vT+5)}, {sr(sBlk)}, {vr(vXB+t)}"]]

        def wide_step(t, pending, reads=True, zero=False):
            p = t % 2
            if reads:
                self.head(None)
            else:
                A("s_waitcnt lgkmcnt(0)")
            prim = []
            for j in range(8):
                if pending and not opt.get("nomfma"):
                    for n in range(3):
                        prim.append(self.M(vY + (j * 3 + n) * 4, af(j, 1 - p), wb(n, 1 - p), 0 if zero else None))
                if reads and not opt.get("nords"):
                    if j == 0:
                        prim.append(("r", [f"  ds_read_b128 {vr(wb(n,p),4)}, {vr(vT+5)} offset:{n*XN}" for n in range(3)]))
                    if j < 6:
                        prim.append(("r", self.cap(wide_rd, j, p)))
                    if j < 2:
                        prim.append(("r", self.cap(wide_rd, 6 + j, p)))
            fill = []
            if reads:
                fill = self.rot()
                if t == 3:
                    fill.append([f"s_add_u32 {sr(sBlk)}, {sr(sBlk)}, {BLK}"])
                fill += wide_addr((t + 1) % 4)
            self.weave(prim, fill, per=1, start=5)

        lab("L_wide")
        self.is_loader("L_load")
        A(f"s_lshl_b32 {sr(sT1)}, {sr(sW)}, 13")
        self.weave([], wide_addr(0))
        wide_step(0, False)
        A(f"s_cmp_eq_u32 {sr(sZero)}, 0")
        A("s_cbranch_scc1 L_wide_loop")
        A(f"s_mov_b32 {sr(sZero)}, 0")
        wide_step(1, True, zero=True)
        A("s_branch L_wide_s2")
        lab("L_wide_loop")
        wide_step(1, True)
        lab("L_wide_s2")
        wide_step(2, True)
        wide_step(3, True)
        A(f"s_cmp_gt_u32 {sr(sBlk)}, {sr(sBlkEnd)}")
        A("s_cbranch_scc1 L_wide_drain")
        wide_step(0, True)
        A("s_branch L_wide_loop")
        lab("L_wide_drain")
        A("s_waitcnt lgkmcnt(0)")
        A(f"s_setpc_b64 {sr(LINK_S,2)}")

        def ld_step(p, vm, prep=True, xblk=None):
            self.head(vm)
            l1, l2 = self.new("kv"), self.new("dd")
            variants = [self.wf] if self.kvf == self.wf else [self.wf, self.kvf]
            if len(variants) > 1:
                A(f"s_bitcmp1_b32 6, {sr(sTy[p])}")
                A(f"s_cbranch_scc1 {l1}")
            for vi, fl in enumerate(variants):
                if vi:
                    A(f"s_branch {l2}")
                    lab(l1)
                prim = []
                for k in range(8):
                    ins = [f"  s_add_u32 m0, {sr(sI[p])}, {k*4096}"]
                    if k % 2:
                        ins.append(f"  s_add_u32 {sr(sOff2)}, {sr(sOff[p])}, {sr(sHalf[p])}")
                    elif k:
                        ins.append(f"  s_add_u32 {sr(sOff[p])}, {sr(sOff[p])}, {sr(sStr[p])}")
                    else:
                        ins.append("  s_nop 0")
                    ins.append(f"  buffer_load_dwordx4 {vr(vCur[p])}, {sr(SRD_CUR[p],4)}, {sr(sOff2 if k % 2 else sOff[p])} offen{fl} lds")
                    if vi and k % 2 == 0:
                        ins = self.cap(self.throttle) + ins
                    prim.append(("m", ins))
                self.weave(prim, self.prep(1 - p) if prep else [], per=2)
            lab(l2)
            if xblk is not None:
                l3 = self.new("hk")
                A(f"s_cmp_eq_u32 {sr(sHook)}, 0")
                A(f"s_cbranch_scc1 {l3}")
                if xblk == 0:
                    self.x_setup(vY)
                self.x_block(vY, xblk)
                lab(l3)

        lab("L_load")
        A(f"s_mov_b32 {sr(sT4)}, 0")
        self.head(16)
        self.weave([], self.prep(1))
        lab("L_ldloop")
        ld_step(1, 8, xblk=0)
        ld_step(0, 8, xblk=1)
        ld_step(1, 8, xblk=2)
        A(f"s_add_u32 {sr(sT4)}, {sr(sT4)}, {BLK}")
        A(f"s_cmp_gt_u32 {sr(sT4)}, {sr(sBlkEnd)}")
        A("s_cbranch_scc1 L_lddrain")
        ld_step(0, 8)
        A("s_branch L_ldloop")
        lab("L_lddrain")
        ld_step(0, None, prep=False, xblk=3)
        A(f"s_setpc_b64 {sr(LINK_S,2)}")

    def reduce_kernel(self):
        A, lab = self.A, self.lab
        K2 = "reduce_partials_kernel"
        self.L += [f".globl {K2}", ".p2align 8", f".type {K2},@function"]
        lab(K2)
        A("s_cmp_ge_u32 s2, 384")
        A("s_cbranch_scc1 L_r_end")
        A("s_load_dwordx2 s[4:5], s[0:1], 80")
        A("s_load_dwordx2 s[6:7], s[0:1], 96")
        A("s_mul_i32 s3, s2, 43691")
        A("s_lshr_b32 s3, s3, 19")
        A("s_mul_i32 s16, s3, 12")
        A("s_sub_u32 s16, s2, s16")
        A("s_and_b32 s17, s3, 15")
        A("s_lshr_b32 s18, s3, 4")
        A("s_lshl_b32 s19, s16, 12")
        A("v_lshlrev_b32 v2, 4, v0")
        A("v_add_u32 v2, s19, v2")
        A("s_mul_i32 s23, s16, 86")
        A("s_lshr_b32 s23, s23, 8")
        A("s_mul_i32 s24, s23, 3")
        A("s_sub_u32 s24, s16, s24")
        A("s_lshl_b32 s24, s24, 15")
        A("s_lshl_b32 s23, s23, 8")
        A("s_add_u32 s24, s24, s23")
        A("v_and_b32 v6, 15, v0")
        A("v_lshlrev_b32 v6, 11, v6")
        A("v_lshrrev_b32 v7, 6, v0")
        A("v_lshl_add_u32 v6, v7, 6, v6")
        A("v_bfe_u32 v7, v0, 4, 1")
        A("v_lshl_add_u32 v6, v7, 5, v6")
        A("v_bfe_u32 v7, v0, 5, 1")
        A("v_lshl_add_u32 v6, v7, 4, v6")
        A("s_waitcnt lgkmcnt(0)")
        A("s_mov_b32 s8, s4"); A("s_mov_b32 s9, s5"); A("s_mov_b32 s10, 1572864"); A("s_mov_b32 s11, 0x20000")
        A("s_mov_b32 s12, s6"); A("s_mov_b32 s13, s7"); A("s_mov_b32 s14, 268435456"); A("s_mov_b32 s15, 0x20000")
        A("s_mul_i32 s20, s17, 98304")
        A("s_add_u32 s20, s20, s24")
        A("s_mov_b32 s22, 0xffff0000")
        A("s_cmp_eq_u32 s18, 1")
        A("s_cbranch_scc1 L_r_A")

        def body(np_):
            for p in range(np_):
                A(f"buffer_load_dwordx4 v[{16+4*p}:{19+4*p}], v2, s[12:15], s21 offen")
                if p + 1 < np_:
                    A(f"s_add_u32 s21, s21, {PART}")
            for p in range(np_):
                A(f"s_waitcnt vmcnt({np_-1-p})")
                for k in range(4):
                    r = 16 + 4 * p + k
                    if p == 0:
                        A(f"v_lshlrev_b32 v{8+2*k}, 16, v{r}")
                        A(f"v_and_b32 v{9+2*k}, s22, v{r}")
                    else:
                        A(f"v_lshlrev_b32 v4, 16, v{r}")
                        A(f"v_and_b32 v5, s22, v{r}")
                        A(f"v_pk_add_f32 v[{8+2*k}:{9+2*k}], v[{8+2*k}:{9+2*k}], v[4:5]")

        A(f"s_mul_i32 s21, s17, {16*PART}")
        A("s_add_u32 s20, s20, 1024")
        body(16)
        A("s_branch L_r_st")
        lab("L_r_A")
        A(f"s_mul_i32 s21, s17, {8*PART}")
        A(f"s_add_u32 s21, s21, {PART_A_BASE}")
        body(8)
        lab("L_r_st")
        for k in range(4):
            A(f"v_cvt_pk_bf16_f32 v{16+k}, v{8+2*k}, v{9+2*k}")
        A("buffer_store_dwordx4 v[16:19], v6, s[8:11], s20 offen")
        lab("L_r_end")
        A("s_endpgm")
        self.L += [".p2align 2", ".type L_table,@object"]
        lab("L_table")
        for k in range(0, 128, 8):
            A(".long " + ", ".join(hex(x) for x in self.table[k:k+8]))

    def desc(self, name, nv, ns):
        self.L += [".p2align 6", f".amdhsa_kernel {name}", f"  .amdhsa_next_free_vgpr {nv}",
                   f"  .amdhsa_next_free_sgpr {ns}", f"  .amdhsa_accum_offset {nv}",
                   "  .amdhsa_group_segment_fixed_size 0", "  .amdhsa_kernarg_size 104",
                   "  .amdhsa_user_sgpr_count 2", "  .amdhsa_user_sgpr_kernarg_segment_ptr 1",
                   "  .amdhsa_system_sgpr_workgroup_id_x 1", ".end_amdhsa_kernel"]

    def build(self):
        K1 = NAME + "_kernel"
        head = HEADER + f"; @launch kernel={K1} grid=(256,1,1) block=(512,1,1) lds={LDS_BYTES}\n"
        head += "; @launch kernel=reduce_partials_kernel grid=(384,1,1) block=(256,1,1) lds=0\n"
        self.L += ['.amdgcn_target "amdgcn-amd-amdhsa--gfx950"', ".text"]
        self.main_kernel()
        self.reduce_kernel()
        self.L += ['.section .rodata,"a"']
        self.desc(K1, 256, 102)
        self.desc("reduce_partials_kernel", 80, 32)
        return head + "\n".join(self.L) + "\n"


def gen(**opt):
    return G(opt).build()


if __name__ == "__main__":
    out = sys.argv[1] if len(sys.argv) > 1 else f"cdna_kernels/{NAME}.s"
    opt = {}
    for a in sys.argv[2:]:
        k, v = a.split("=", 1)
        opt[k] = int(v) if v.lstrip("-").isdigit() else v
    open(out, "w").write(gen(**opt))
    print("wrote", out)
```

```python
import sys, math, struct

NAME = "concat_heads__gqa_block_cached__mha_block_cached__near_ridge"

HEADER = """; Kernarg layout for this problem (104 bytes, ptrs only, base s[0:1]):
"""

TILE = 32768
NSLOT = 3
XB = NSLOT * TILE
XROW = 256
XN = 16 * XROW
BLK = 48 * XROW
ST = XB + 5 * BLK
FLAG = ST + 3072
LDS_BYTES = 163840
PART = 49152
PART_A_BASE = 16 * 16 * PART
NULL_OFF = 0x40000000

T_WQ, T_K, T_V, T_WO, T_WQW = 0, 1, 2, 3, 4
ROWSH = [13, 8, 8, 10, 13]
SLABSH = [18, 13, 13, 8, 8]

sW, sC, sIdx, sE = 3, 4, 6, 7
SRD_WQ, SRD_K, SRD_V, SRD_WO, SRD_WQW, SRD_AUX = 8, 12, 16, 20, 24, 28
sAx, sAk, sAv, sAwq, sAwo = 32, 34, 36, 38, 40
sP0, sP1 = 42, 43
sBx, sBk, sBv, sBwq, sBwo = 44, 46, 48, 50, 52
sWs = 54
sB, sG, sRole, sHead, sHook, sScale, sW1024, sBlk, sThr, sIter = 56, 57, 58, 59, 60, 61, 62, 63, 64, 65
sT0, sT1, sT2, sT3, sT4, sT5 = 66, 67, 68, 69, 70, 71
sBlkEnd = 75
sStamp = 76
sFix = 79
sThrot = 100
sPend, sPendOff = 98, 99
sLate = 65
sZero = 91
SRD_CUR = [80, 84]
sOff, sTy, sStr, sI, sHalf = [72, 94], [73, 95], [74, 96], [5, 97], [88, 89]
sOff2 = 90
LINK_S = 92

vTab, vRow, vChunk, vTRw, vTR0, vKb = 1, 2, 3, 5, 6, 7
vCur = [4, 0]
vXB = 8
vQW, vPW, vSTw, vSTr = 12, 13, 14, 15
vT = 16
vAcc = 24
vQs = 48
vFr = 72
vS = 112
vY = 160
QF = [24, 28, 32, 36, 40, 44, 72, 76, 80, 84, 88, 92]
vKf = 96
vKa, vTRa = 5, 7
vNm = [12, 56, 60]
vLs = 20
vO = 160
vAfA = 24
QA = [64 + 4 * k for k in range(12)]
sQ = [98, 99, 100, 101]


def vr(a, n=1):
    return f"v{a}" if n == 1 else f"v[{a}:{a+n-1}]"


def sr(a, n=1):
    return f"s{a}" if n == 1 else f"s[{a}:{a+n-1}]"


def f32(x):
    return hex(struct.unpack('<I', struct.pack('<f', x))[0])


class G:
    def __init__(self, opt):
        self.L = []
        self.opt = opt
        self.uid = 0
        self.cold = []
        self.kvf = opt.get("kvflag", " nt")
        self.wf = opt.get("wflag", "")

    def A(self, s):
        self.L.append("  " + s)

    def lab(self, s):
        self.L.append(s + ":")

    def c(self, s):
        self.L.append("  ; " + s)

    def new(self, p):
        self.uid += 1
        return f"L_{p}{self.uid}"

    def mfma(self, d, a, b, c=None):
        cs = "0" if c == 0 else vr(d if c is None else c, 4)
        self.A(f"v_mfma_f32_16x16x32_bf16 {vr(d,4)}, {vr(a,4)}, {vr(b,4)}, {cs}")

    def M(self, d, a, b, c=None):
        return ("m", self.cap(self.mfma, d, a, b, c))

    def lane(self, v):
        self.A(f"v_mbcnt_lo_u32_b32 {vr(v)}, -1, 0")
        self.A(f"v_mbcnt_hi_u32_b32 {vr(v)}, -1, {vr(v)}")

    def rot(self):
        return [[f"s_add_u32 {sr(sC)}, {sr(sC)}, {TILE}"],
                [f"s_cmp_eq_u32 {sr(sC)}, {NSLOT*TILE}", f"s_cselect_b32 {sr(sC)}, 0, {sr(sC)}"]]

    def prep(self, p, slots=True):
        k1 = sum(v << (5 * i) for i, v in enumerate(ROWSH))
        k2 = sum(v << (5 * i) for i, v in enumerate(SLABSH))
        pre = [[f"s_add_u32 {sr(sI[p])}, {sr(sC)}, {sr(sW1024)}"]] + self.rot() if slots else []
        return pre + [
            [f"s_and_b32 {sr(sOff[p])}, {sr(sE)}, 0xffffff00"],
            [f"s_and_b32 {sr(sTy[p])}, {sr(sE)}, 7"],
            [f"s_add_u32 {sr(sIdx)}, {sr(sIdx)}, 1"],
            [f"s_lshl_b32 m0, {sr(sTy[p])}, 2", f"s_mul_i32 {sr(sP0)}, {sr(sTy[p])}, 5",
             f"s_movrels_b64 {sr(SRD_CUR[p],2)}, {sr(SRD_WQ,2)}", f"s_movrels_b32 {sr(SRD_CUR[p]+2)}, {sr(SRD_WQ+2)}"],
            [f"v_readlane_b32 {sr(sE)}, {vr(vTab)}, {sr(sIdx)}"],
            [f"s_lshr_b32 {sr(sP1)}, {hex(k1)}, {sr(sP0)}"],
            [f"s_lshr_b32 {sr(sP0)}, {hex(k2)}, {sr(sP0)}"],
            [f"v_lshl_add_u32 {vr(vCur[p])}, {vr(vRow)}, {sr(sP1)}, {vr(vChunk)}"],
            [f"s_lshl_b32 {sr(sStr[p])}, 1, {sr(sP0)}"],
            [f"s_lshl_b32 {sr(sHalf[p])}, 16, {sr(sP1)}"],
        ]

    def weave(self, prim, fill, per=2, start=0):
        fill = list(fill)
        for idx, (kind, ins) in enumerate(prim):
            self.L += ins
            if kind == "m" and idx >= start:
                k = 0
                while fill and k < per:
                    f = fill[0]
                    if isinstance(f, tuple):
                        if f[0] > idx:
                            break
                        f = f[1]
                    self.emit(f)
                    fill.pop(0)
                    k += 1
        for f in fill:
            self.emit(f[1] if isinstance(f, tuple) else f)

    def emit(self, f):
        for x in f:
            if x.endswith(":"):
                self.L.append(x)
            else:
                self.A(x)

    def cap(self, fn, *a, **k):
        keep, self.L = self.L, []
        fn(*a, **k)
        out, self.L = self.L, keep
        return out

    def head(self, vm):
        self.A("s_waitcnt " + (f"vmcnt({vm}) " if vm is not None else "") + "lgkmcnt(0)")
        if self.opt.get("allsteps") == 2:
            self.stamp(15)
        self.A("s_barrier")
        if self.opt.get("allsteps") == 1:
            self.stamp(14)

    def throttle(self):
        if self.opt.get('thr'):
            l = self.new('th')
            self.A(f"s_cmp_eq_u32 {sr(sThrot)}, 0")
            self.A(f"s_cbranch_scc1 {l}")
            self.A(f"s_waitcnt vmcnt({self.opt['thr']})")
            self.lab(l)

    def dma(self, k, p, kv, guard=True, throttle=False):
        A = self.A
        skip = self.new("sk")
        if guard:
            A(f"s_bitcmp1_b32 {sr(sW)}, 2")
            A(f"s_cbranch_scc0 {skip}")
        if k:
            A(f"s_add_u32 {sr(sOff[p])}, {sr(sOff[p])}, {sr(sStr[p])}")
        A(f"s_add_u32 m0, {sr(sI[p])}, {k*8192}")
        A(f"s_add_u32 {sr(sOff2)}, {sr(sOff[p])}, {sr(sHalf[p])}")

        def pair(fl):
            if throttle and fl == self.kvf:
                self.throttle()
            A(f"buffer_load_dwordx4 {vr(vCur[p])}, {sr(SRD_CUR[p],4)}, {sr(sOff[p])} offen{fl} lds")
            A("s_add_u32 m0, m0, 4096")
            A("s_nop 0")
            A(f"buffer_load_dwordx4 {vr(vCur[p])}, {sr(SRD_CUR[p],4)}, {sr(sOff2)} offen{fl} lds")

        if self.kvf == self.wf:
            kv = False
        if kv is not None:
            pair(self.kvf if kv else self.wf)
        else:
            l1 = self.new("kv")
            A(f"s_bitcmp1_b32 6, {sr(sTy[p])}")
            A(f"s_cbranch_scc1 {l1}")
            pair(self.wf)
            A(f"s_branch {skip}")
            self.lab(l1)
            pair(self.kvf)
        self.lab(skip)

    def D1(self, k, p, guard=False):
        l1, l2 = self.new("w"), self.new("d")
        ld = f"  buffer_load_dwordx4 {vr(vCur[p])}, {sr(SRD_CUR[p],4)}, {sr(sOff[p])} offen"
        ins = [f"  s_bitcmp1_b32 {sr(sW)}, 2", f"  s_cbranch_scc0 {l2}"] if guard else []
        ins.append(f"  s_add_u32 m0, {sr(sI[p])}, {k*8192}")
        if k:
            ins.append(f"  s_add_u32 {sr(sOff[p])}, {sr(sOff[p])}, {sr(sStr[p])}")
        if self.kvf == self.wf:
            ins += ["  s_nop 0", f"{ld}{self.wf} lds"]
        else:
            ins += [f"  s_bitcmp1_b32 6, {sr(sTy[p])}", f"  s_cbranch_scc0 {l1}", f"{ld}{self.kvf} lds"]
            self.cold += [l1 + ":", f"{ld}{self.wf} lds", f"  s_branch {l2}"]
        return ("d", ins + [l2 + ":"])

    def D(self, k, p, kv, throttle=False):
        return ("d", self.cap(self.dma, k, p, kv, True, throttle))

    def tr_pair(self, dst, addr, off):
        self.A(f"ds_read_b64_tr_b16 {vr(dst,2)}, {vr(addr)} offset:{off}")
        self.A(f"ds_read_b64_tr_b16 {vr(dst+2,2)}, {vr(addr)} offset:{off+1024}")

    def narrow(self, pre=None, extra=None, early=None):
        A = self.A

        def fr(st, k):
            return vFr + (st * 5 + k) * 4

        def reads(T, s):
            p = T % 2
            for m in range(2):
                self.tr_pair(fr(s % 2, m), vT + 2 * p + m, s * 8192)
            for n in range(3):
                A(f"ds_read_b128 {vr(fr(s%2,2+n),4)}, {vr(vXB+s)} offset:{n*XN+T*BLK}")

        def addr(p):
            return [[f"v_add_u32 {vr(vT+2*p)}, {sr(sC)}, {vr(vTRw)}"], [f"v_xor_b32 {vr(vT+2*p+1)}, 32, {vr(vT+2*p)}"]]

        def mf(s, zero=False):
            return [self.M(vAcc + (m * 3 + n) * 4, fr(s % 2, m), fr(s % 2, 2 + n), 0 if zero else None)
                    for m in range(2) for n in range(3)]

        self.weave([], addr(0))
        for T in range(4):
            self.head(None)
            self.emit((pre or {}).get(T, []))
            prim = [("r", self.cap(reads, T, 0))]
            if T:
                prim += mf(3)
            prim.append(("r", self.cap(reads, T, 1)))
            for s in range(3):
                prim.append(("w", ["  s_waitcnt lgkmcnt(7)"]))
                prim += mf(s, T == 0 and s == 0)
                if s < 2:
                    prim.append(("r", self.cap(reads, T, s + 2)))
            late = [(10, g) for g in (extra or {}).get(T, [])]
            self.weave(prim, self.rot() + (addr(1 - T % 2) if T < 3 else []) + late, per=1 + bool(late))
        A("s_waitcnt lgkmcnt(0)")
        if early is True:
            A("s_barrier")
        elif early is None:
            l = self.new("e")
            A(f"s_cmp_eq_u32 {sr(sLate)}, 0")
            A(f"s_cbranch_scc0 {l}")
            A("s_barrier")
            self.lab(l)
        self.weave(mf(3), [])

    def load_bfrags_dyn(self, tmp, quads):
        for s in range(4):
            self.A(f"v_add_u32 {vr(tmp+s)}, {sr(sBlk)}, {vr(vXB+s)}")
        for s in range(4):
            for n in range(3):
                self.A(f"ds_read_b128 {vr(quads[n*4+s],4)}, {vr(tmp+s)} offset:{n*XN}")

    def is_loader(self, label):
        self.A(f"s_bitcmp1_b32 {sr(sW)}, 2")
        self.A(f"s_cbranch_scc1 {label}")

    def x_setup(self, va):
        A = self.A
        self.lane(va + 2)
        A(f"v_lshrrev_b32 {vr(va+1)}, 4, {vr(va+2)}")
        A(f"v_and_b32 {vr(va+2)}, 15, {vr(va+2)}")
        A(f"v_xor_b32 {vr(va+2)}, {vr(va+2)}, {vr(va+1)}")
        A(f"v_lshlrev_b32 {vr(va+2)}, 4, {vr(va+2)}")
        A(f"v_lshl_or_b32 {vr(va+2)}, {vr(va+1)}, 10, {vr(va+2)}")
        A(f"s_mul_i32 {sr(sT0)}, {sr(sW1024)}, 3")
        A(f"s_add_u32 {sr(sT2)}, {sr(sT0)}, {XB}")
        A(f"s_mul_i32 {sr(sT1)}, {sr(sB)}, 49152")
        A(f"s_lshl_b32 {sr(sT3)}, {sr(sT0)}, 2")
        A(f"s_add_u32 {sr(sT1)}, {sr(sT1)}, {sr(sT3)}")
        A(f"s_lshr_b32 {sr(sT0)}, {sr(sT0)}, 4")
        for j in range(3):
            A(f"s_add_u32 {sr(sT3)}, {sr(sT0)}, {j*64}")
            A(f"s_and_b32 {sr(sT3)}, {sr(sT3)}, 0xc0")
            A(f"v_xor_b32 {vr(va+j)}, {sr(sT3)}, {vr(va+2)}")

    def x_block(self, va, blk):
        for j in range(3):
            self.A(f"s_add_u32 m0, {sr(sT2)}, {blk*BLK+j*1024}")
            self.A(f"s_add_u32 {sr(sT3)}, {sr(sT1)}, {blk*256+j*4096}")
            self.A(f"buffer_load_dwordx4 {vr(va+j)}, {sr(SRD_AUX,4)}, {sr(sT3)} offen lds")

    def weight_prefetch(self, items, single=False):
        A = self.A
        off, cur = sT1, SRD_CUR[1]
        self.lane(vT + 1)
        A(f"v_lshrrev_b32 {vr(vT)}, 4, {vr(vT+1)}")
        A(f"v_lshlrev_b32 {vr(vT+1)}, 4, {vr(vT+1)}")
        A(f"v_and_b32 {vr(vT+2)}, 0xf0, {vr(vT+1)}")
        A(f"v_lshl_or_b32 {vr(vT)}, {vr(vT)}, 13, {vr(vT+2)}")
        A(f"s_lshl_b32 {sr(sT0)}, {sr(sG)}, 2")
        if not single:
            A(f"s_add_u32 {sr(sT0)}, {sr(sT0)}, {sr(sRole)}")
        A(f"s_lshl_b32 {sr(sT2)}, {sr(sB)}, 2")
        A(f"s_add_u32 {sr(sT2)}, {sr(sT2)}, {sr(sW)}")
        A(f"s_mov_b32 {sr(cur+2)}, 4194304")
        for ptr, is_wq, h0 in items:
            A(f"s_add_u32 {sr(sT3)}, {sr(sT0)}, {h0}")
            A(f"s_lshl_b32 {sr(sT3)}, {sr(sT3)}, {8 if is_wq else 17}")
            A(f"s_lshl_b32 {sr(off)}, {sr(sT2)}, {16 if is_wq else 11}")
            A(f"s_add_u32 {sr(off)}, {sr(off)}, {sr(sT3)}")
            A(f"s_mov_b64 {sr(cur,2)}, {sr(ptr,2)}")
            for hh in range(2 if single else 1):
                for k in range(2):
                    d = hh * (256 if is_wq else 131072) + k * (32768 if is_wq else 1024)
                    if d:
                        A(f"s_add_u32 {sr(sT3)}, {sr(off)}, {d}")
                    A(f"buffer_load_dwordx4 v[156:159], {vr(vT if is_wq else vT+1)}, {sr(cur,4)}, {sr(sT3 if d else off)} offen")

    def srd(self, d, p, size):
        self.A(f"s_mov_b32 {sr(d)}, {sr(p)}")
        self.A(f"s_mov_b32 {sr(d+1)}, {sr(p+1)}")
        self.A(f"s_mov_b32 {sr(d+2)}, {size}")
        self.A(f"s_mov_b32 {sr(d+3)}, 0x20000")

    def reduce4(self, x, op):
        self.A(f"v_mov_b32 {vr(x+3)}, {vr(x+2)}")
        self.A("s_nop 1")
        self.A(f"v_permlane32_swap_b32 {vr(x)}, {vr(x+1)}")
        self.A(f"v_permlane32_swap_b32 {vr(x+2)}, {vr(x+3)}")
        self.A("s_nop 1")
        self.A(f"{op} {vr(x)}, {vr(x)}, {vr(x+1)}")
        self.A(f"{op} {vr(x+2)}, {vr(x+2)}, {vr(x+3)}")
        self.A("s_nop 1")
        self.A(f"v_permlane16_swap_b32 {vr(x)}, {vr(x+2)}")
        self.A("s_nop 1")
        self.A(f"{op} {vr(x)}, {vr(x)}, {vr(x+2)}")

    def allreduce3(self, x, t, op):
        for sw in ("v_permlane32_swap_b32", "v_permlane16_swap_b32"):
            for n in range(3):
                self.A(f"v_mov_b32 {vr(t+n)}, {vr(x+n)}")
            self.A("s_nop 1")
            for n in range(3):
                self.A(f"{sw} {vr(x+n)}, {vr(t+n)}")
            self.A("s_nop 1")
            for n in range(3):
                self.A(f"{op} {vr(x+n)}, {vr(x+n)}, {vr(t+n)}")

    def maxn(self, dst, regs):
        out = [f"v_max3_f32 {vr(dst)}, {vr(regs[0])}, {vr(regs[1])}, {vr(regs[2])}"]
        k = 3
        while k + 1 < len(regs):
            out.append(f"v_max3_f32 {vr(dst)}, {vr(dst)}, {vr(regs[k])}, {vr(regs[k+1])}")
            k += 2
        if k < len(regs):
            out.append(f"v_max_f32 {vr(dst)}, {vr(dst)}, {vr(regs[k])}")
        return out

    def pkmul(self, a, f):
        sel = "op_sel_hi:[1,0]" if f % 2 == 0 else "op_sel:[0,1] op_sel_hi:[1,1]"
        return f"v_pk_mul_f32 {vr(a,2)}, {vr(a,2)}, {vr(f - f % 2,2)} {sel}"

    def stamp(self, idx):
        if not self.opt.get("stamps"):
            return
        self.A(("s_memtime" if self.opt.get("cyc") else "s_memrealtime") + f" {sr(sStamp,2)}")
        self.A("s_waitcnt lgkmcnt(0)")
        self.A(f"s_and_b32 {sr(sStamp)}, {sr(sStamp)}, 0xffffff")
        self.A(f"s_or_b32 {sr(sStamp)}, {sr(sStamp)}, {(idx+1) << 24}")
        self.A("s_mov_b32 m0, s78")
        if self.opt.get("skip"):
            l = self.new("st")
            self.A(f"s_cmp_lt_i32 s78, 0")
            self.A(f"s_cbranch_scc1 {l}")
            self.A(f"s_cmp_ge_i32 s78, 63")
            self.A(f"s_cbranch_scc1 {l}")
            self.A(f"v_writelane_b32 {vr(23)}, {sr(sStamp)}, m0")
            self.lab(l)
        else:
            self.A(f"v_writelane_b32 {vr(23)}, {sr(sStamp)}, m0")
        self.A("s_add_u32 s78, s78, 1")

    def pack_y(self):
        def pack(jp):
            g = []
            for n in range(3):
                q = vY + (2 * jp * 3 + n) * 4
                for h in range(2):
                    y = vY + ((2 * jp + h) * 3 + n) * 4
                    g.append([f"v_cvt_pk_bf16_f32 {vr(q+2*h)}, {vr(y)}, {vr(y+1)}"])
                    g.append([f"v_cvt_pk_bf16_f32 {vr(q+2*h+1)}, {vr(y+2)}, {vr(y+3)}"])
            return g

        self.srd(SRD_AUX, sWs, 268435456)
        self.A(f"s_mul_i32 {sr(sT1)}, {sr(sW)}, 12288")
        self.A(f"s_add_u32 {sr(sPendOff)}, {sr(sT0)}, {sr(sT1)}")
        self.wide_drain(pack)
        self.A("s_barrier")

    def store_y(self, n, va):
        A = self.A
        self.lane(va)
        A(f"v_lshlrev_b32 {vr(va)}, 4, {vr(va)}")
        for jp in range(4):
            q = vY + (2 * jp * 3 + n) * 4
            A(f"v_permlane16_swap_b32 {vr(q)}, {vr(q+2)}")
            A(f"v_permlane16_swap_b32 {vr(q+1)}, {vr(q+3)}")
            A(f"buffer_store_dwordx4 {vr(q,4)}, {vr(va)}, {sr(SRD_AUX,4)}, {sr(sPendOff)} offen offset:{jp*1024}")
        A(f"s_add_u32 {sr(sPendOff)}, {sr(sPendOff)}, 4096")

    def wide_drain(self, per_pair=None):
        prim = [self.M(vY + (j * 3 + n) * 4, vFr + 4 * (j + 2 if j >= 6 else j), vAcc + (3 + n) * 4) for j in range(8) for n in range(3)]
        fill = []
        if per_pair:
            for jp in range(4):
                g = per_pair(jp)
                fill += [(6 * jp + 13, x) for x in g]
        self.weave(prim, fill, per=4)

    def zero(self, base, n):
        for k in range(0, n, 2):
            self.A(f"v_mov_b64 {vr(base+k,2)}, 0")

    def act_write_addr(self, sblk, stile):
        A = self.A
        self.lane(vT + 1)
        A(f"v_lshrrev_b32 {vr(vT)}, 4, {vr(vT+1)}")
        A(f"v_and_b32 {vr(vT+1)}, 15, {vr(vT+1)}")
        A(f"v_lshrrev_b32 {vr(vT+2)}, 1, {vr(vT)}")
        if stile is not None:
            A(f"v_add_u32 {vr(vT+2)}, {sr(stile)}, {vr(vT+2)}")
        A(f"v_xor_b32 {vr(vT+2)}, {vr(vT+2)}, {vr(vT+1)}")
        A(f"v_lshlrev_b32 {vr(vT+2)}, 4, {vr(vT+2)}")
        A(f"v_and_b32 {vr(vT)}, 1, {vr(vT)}")
        A(f"v_lshl_or_b32 {vr(vT+2)}, {vr(vT)}, 3, {vr(vT+2)}")
        A(f"v_mul_u32_u24 {vr(vT+1)}, {XROW}, {vr(vT+1)}")
        A(f"s_add_u32 {sr(sT5)}, {sr(sblk)}, {XB}")
        A(f"v_add3_u32 {vr(vT+1)}, {vr(vT+1)}, {sr(sT5)}, {vr(vT+2)}")

    def frag_addrs(self):
        A = self.A
        t0, t1, t2, t3, t4, t5, vL = vT, vT + 1, vT + 2, vT + 3, vT + 4, vT + 5, vT + 6
        self.lane(vL)
        A(f"v_lshrrev_b32 {vr(t0)}, 4, {vr(vL)}")
        A(f"v_and_b32 {vr(t1)}, 15, {vr(vL)}")
        A(f"v_bfe_u32 {vr(t2)}, {vr(vL)}, 2, 2")
        A(f"v_and_b32 {vr(t3)}, 3, {vr(vL)}")
        A(f"v_lshl_add_u32 {vr(t4)}, {vr(t0)}, 3, {vr(t2)}")
        A(f"v_lshlrev_b32 {vr(t4)}, 8, {vr(t4)}")
        A(f"v_and_b32 {vr(t5)}, 1, {vr(t0)}")
        A(f"v_lshl_or_b32 {vr(t5)}, {vr(t5)}, 2, {vr(t2)}")
        A(f"v_lshl_or_b32 {vr(t4)}, {vr(t5)}, 5, {vr(t4)}")
        A(f"v_lshl_or_b32 {vr(vTR0)}, {vr(t3)}, 3, {vr(t4)}")
        A(f"s_lshr_b32 {sr(sT0)}, {sr(sW1024)}, 4")
        A(f"v_xor_b32 {vr(vTRw)}, {sr(sT0)}, {vr(vTR0)}")
        A(f"s_lshr_b32 {sr(sT1)}, {sr(sW)}, 1")
        A(f"s_lshl_b32 {sr(sT1)}, {sr(sT1)}, 13")
        A(f"v_lshrrev_b32 {vr(t4)}, 2, {vr(t1)}")
        A(f"v_lshl_or_b32 {vr(t4)}, {vr(t4)}, 3, {vr(t3)}")
        A(f"v_lshlrev_b32 {vr(t4)}, 8, {vr(t4)}")
        A(f"v_lshrrev_b32 {vr(t5)}, 1, {vr(t0)}")
        A(f"v_and_b32 {vr(vKb)}, 7, {vr(t1)}")
        A(f"v_xor_b32 {vr(t5)}, {vr(t5)}, {vr(vKb)}")
        A(f"v_lshl_or_b32 {vr(t4)}, {vr(t5)}, 5, {vr(t4)}")
        A(f"v_and_b32 {vr(t5)}, 1, {vr(t0)}")
        A(f"v_lshl_or_b32 {vr(t4)}, {vr(t5)}, 4, {vr(t4)}")
        A(f"s_and_b32 {sr(sT0)}, {sr(sW)}, 1")
        A(f"s_lshl_b32 {sr(sT0)}, {sr(sT0)}, 10")
        A(f"s_add_u32 {sr(sT0)}, {sr(sT0)}, {sr(sT1)}")
        A(f"v_add_u32 {vr(vKb)}, {sr(sT0)}, {vr(t4)}")
        A(f"v_mul_u32_u24 {vr(t4)}, {XROW}, {vr(t1)}")
        A(f"v_add_u32 {vr(t4)}, {XB}, {vr(t4)}")
        A(f"v_xor_b32 {vr(t5)}, {vr(t0)}, {vr(t1)}")
        A(f"v_lshlrev_b32 {vr(t5)}, 4, {vr(t5)}")
        for s in range(4):
            A(f"v_xor_b32 {vr(vXB+s)}, {s*64}, {vr(t5)}")
            A(f"v_add_u32 {vr(vXB+s)}, {vr(vXB+s)}, {vr(t4)}")
        A(f"v_lshrrev_b32 {vr(t5)}, 1, {vr(t0)}")
        A(f"s_lshr_b32 {sr(sT0)}, {sr(sW1024)}, 8")
        A(f"v_add_u32 {vr(t5)}, {sr(sT0)}, {vr(t5)}")
        A(f"v_xor_b32 {vr(t5)}, {vr(t5)}, {vr(t1)}")
        A(f"v_lshl_add_u32 {vr(vQW)}, {vr(t5)}, 4, {vr(t4)}")
        A(f"v_and_b32 {vr(t5)}, 1, {vr(t0)}")
        A(f"v_lshl_add_u32 {vr(vQW)}, {vr(t5)}, 3, {vr(vQW)}")
        A(f"s_lshr_b32 {sr(sT0)}, {sr(sW)}, 1")
        A(f"s_lshl_b32 {sr(sT0)}, {sr(sT0)}, 2")
        A(f"v_add_u32 {vr(t5)}, {sr(sT0)}, {vr(t0)}")
        A(f"v_xor_b32 {vr(t5)}, {vr(t5)}, {vr(t1)}")
        A(f"v_lshl_add_u32 {vr(vPW)}, {vr(t5)}, 4, {vr(t4)}")
        A(f"s_and_b32 {sr(sT0)}, {sr(sW)}, 1")
        A(f"s_lshl_b32 {sr(sT0)}, {sr(sT0)}, 3")
        A(f"v_add_u32 {vr(vPW)}, {sr(sT0)}, {vr(vPW)}")
        A(f"v_lshlrev_b32 {vr(vSTr)}, 5, {vr(t1)}")
        A(f"v_add_u32 {vr(vSTr)}, {ST}, {vr(vSTr)}")
        A(f"v_lshlrev_b32 {vr(t5)}, 1, {vr(t0)}")
        A(f"v_mov_b32 {vr(t4)}, 0x98")
        A(f"v_lshrrev_b32 {vr(t5)}, {vr(t5)}, {vr(t4)}")
        A(f"v_and_b32 {vr(t5)}, 3, {vr(t5)}")
        A(f"v_lshl_add_u32 {vr(vSTw)}, {vr(t5)}, 9, {vr(vSTr)}")
        A(f"s_lshl_b32 {sr(sT0)}, {sr(sW)}, 2")
        A(f"v_add_u32 {vr(vSTw)}, {sr(sT0)}, {vr(vSTw)}")

    def main_kernel(self):
        A, lab, c = self.A, self.lab, self.c
        opt = self.opt
        K1 = NAME + "_kernel"
        self.L += [f".globl {K1}", ".p2align 8", f".type {K1},@function"]
        lab(K1)
        A("s_cmp_ge_u32 s2, 256")
        A("s_cbranch_scc1 L_end")
        if opt.get("only"):
            A("s_bitcmp1_b32 s2, 7")
            A("s_cbranch_scc%d L_end" % (1 if opt["only"] == "B" else 0))
        if opt.get("dbg"):
            A("s_memrealtime s[76:77]")
            A("s_waitcnt lgkmcnt(0)")
            A("v_mov_b32 v23, s76")
            A("s_memtime s[76:77]")
            A("s_waitcnt lgkmcnt(0)")
            A("s_mov_b32 s78, s76")
        A(f"s_load_dwordx8 {sr(44,8)}, s[0:1], 40")
        A(f"s_load_dwordx2 {sr(52,2)}, s[0:1], 72")
        A(f"s_load_dwordx8 {sr(32,8)}, s[0:1], 0")
        A(f"s_load_dwordx2 {sr(40,2)}, s[0:1], 32")
        A(f"s_load_dwordx2 {sr(54,2)}, s[0:1], 96")
        if opt.get("stamps"):
            A(f"v_mov_b32 {vr(23)}, 0")
            A(f"s_mov_b32 s78, {-(opt.get('skip', 1) - 1)}")
        if opt.get("prost"):
            self.stamp(15)
        vL = vT + 6
        A(f"v_lshrrev_b32 {vr(vT)}, 6, v0")
        A(f"v_and_b32 {vr(vL)}, 63, v0")
        A(f"v_readfirstlane_b32 {sr(sW)}, {vr(vT)}")
        A(f"s_and_b32 {sr(sG)}, s2, 7")
        A(f"s_lshr_b32 {sr(sT0)}, s2, 3")
        A(f"s_and_b32 {sr(sB)}, {sr(sT0)}, 15")
        A(f"s_lshr_b32 {sr(sRole)}, {sr(sT0)}, 4")
        A(f"s_and_b32 {sr(sT1)}, {sr(sW)}, 3")
        A(f"s_lshl_b32 {sr(sW1024)}, {sr(sT1)}, 10")
        c("DMA lane offsets: row = 4(w&3) + (l>>4) (+16), 32-byte chunk XOR key(row)")
        t0, t1, t2, t3, t4, t5 = vT, vT + 1, vT + 2, vT + 3, vT + 4, vT + 5
        A(f"v_lshrrev_b32 {vr(t0)}, 4, {vr(vL)}")
        A(f"s_lshl_b32 {sr(sT0)}, {sr(sW)}, 1")
        A(f"s_and_b32 {sr(sT0)}, {sr(sT0)}, 4")
        A(f"v_or_b32 {vr(t1)}, {sr(sT0)}, {vr(t0)}")
        A(f"v_bfe_u32 {vr(t2)}, {vr(vL)}, 1, 3")
        A(f"v_xor_b32 {vr(t1)}, {vr(t1)}, {vr(t2)}")
        A(f"v_lshlrev_b32 {vr(t1)}, 5, {vr(t1)}")
        A(f"v_and_b32 {vr(t2)}, 1, {vr(vL)}")
        A(f"v_lshl_or_b32 {vr(vChunk)}, {vr(t2)}, 4, {vr(t1)}")
        A(f"s_lshl_b32 {sr(sT0)}, {sr(sT1)}, 2")
        A(f"v_add_u32 {vr(vRow)}, {sr(sT0)}, {vr(t0)}")
        A(f"v_lshl_add_u32 {vr(vCur[0])}, {vr(vRow)}, {ROWSH[T_WQ]}, {vr(vChunk)}")
        c("first B head: 4g for the A role, 4g+1 for the B role")
        A(f"s_lshl_b32 {sr(sT4)}, {sr(sG)}, 2")
        A(f"s_add_u32 {sr(sT4)}, {sr(sT4)}, 1")
        A(f"s_sub_u32 {sr(sT4)}, {sr(sT4)}, {sr(sRole)}")
        A(f"s_lshl_b32 {sr(sE)}, {sr(sT4)}, 8")
        A(f"s_getpc_b64 {sr(sT2,2)}")
        lab("L_pc0")
        A(f"s_lshl_b32 {sr(sT0)}, {sr(sRole)}, 8")
        A(f"s_add_u32 {sr(sT0)}, {sr(sT0)}, L_table-L_pc0")
        A(f"v_lshl_add_u32 {vr(vTab)}, {vr(vL)}, 2, {sr(sT0)}")
        A(f"global_load_dword {vr(vTab)}, {vr(vTab)}, {sr(sT2,2)}")
        self.x_setup(vY)
        if opt.get("prost"):
            self.stamp(15)
        A(f"s_bitcmp1_b32 {sr(sW)}, 2")
        A("s_waitcnt lgkmcnt(0)")
        self.srd(SRD_AUX, sBx, 786432)
        self.srd(SRD_WQ, sBwq, 4194304)
        self.srd(SRD_CUR[0], sBwq, 4194304)
        self.srd(SRD_CUR[1], sBwq, 4194304)
        A("s_cbranch_scc1 L_pro_ld")
        self.weight_prefetch([(sBwq, True, 0), (sAwq, True, 0), (sAwq, True, 2)][:opt.get("pfn", 3)])
        if opt.get("xapf", 1):
            A(f"s_cmp_eq_u32 {sr(sRole)}, 1")
            A("s_cbranch_scc1 L_pro_done")
            A(f"s_mov_b64 {sr(SRD_CUR[1],2)}, {sr(sAx,2)}")
            A(f"s_mov_b32 {sr(SRD_CUR[1]+2)}, 786432")
            A(f"s_lshl_b32 {sr(sT0)}, {sr(sB)}, 2")
            A(f"s_add_u32 {sr(sT0)}, {sr(sT0)}, {sr(sW)}")
            A(f"s_mul_i32 {sr(sT0)}, {sr(sT0)}, 12288")
            for k in range(12):
                if k and k % 4 == 0:
                    A(f"s_add_u32 {sr(sT0)}, {sr(sT0)}, 4096")
                A(f"buffer_load_dwordx4 v[156:159], {vr(vT+1)}, {sr(SRD_CUR[1],4)}, {sr(sT0)} offen offset:{(k%4)*1024}")
        A("s_branch L_pro_done")
        lab("L_pro_ld")
        for k in range(24):
            for blk in {0: {0: (0, 1, 2, 3)}, 1: {0: (0,), 8: (1, 2, 3)}}[opt.get("xorder", 0)].get(k, ()):
                self.x_block(vY, blk)
            if opt.get("prost") and k % 8 == 0:
                self.stamp(15)
            A(f"s_add_u32 m0, {sr(sW1024)}, {k*4096}")
            if k:
                A(f"s_add_u32 {sr(sE)}, {sr(sE)}, {16*8192}")
            else:
                A("s_nop 0")
            A(f"buffer_load_dwordx4 {vr(vCur[0])}, {sr(SRD_WQ,4)}, {sr(sE)} offen{self.wf} lds")
        if opt.get("prost"):
            self.stamp(15)
            for n in (33, 24, 16, 8, 0):
                A(f"s_waitcnt vmcnt({n})")
                self.stamp(14)
        lab("L_pro_done")
        self.frag_addrs()
        self.srd(SRD_WQW, sAwq, 4194304)
        A(f"s_cmp_eq_u32 {sr(sRole)}, 1")
        for d, pa, pb, za, zb in ((SRD_K, sAk, sBk, 16777216, 67108864), (SRD_V, sAv, sBv, 16777216, 67108864), (SRD_WO, sAwo, sBwo, 4194304, 4194304)):
            A(f"s_cselect_b64 {sr(d,2)}, {sr(pa,2)}, {sr(pb,2)}")
            A(f"s_mov_b32 {sr(d+2)}, {zb}")
            if za != zb:
                A(f"s_cselect_b32 {sr(d+2)}, {za}, {sr(d+2)}")
            A(f"s_mov_b32 {sr(d+3)}, 0x20000")
        A(f"s_mov_b64 {sr(SRD_AUX,2)}, {sr(sAx,2)}")
        c("tile table: entry = constant + base selected by bits 4:3 (Wq head, B K/V unit, Wo head, A K/V unit)")
        bq, bkv, bo, bka = sT0, sT1, sT2, sT3
        A(f"s_lshl_b32 {sr(bq)}, {sr(sT4)}, 8")
        A(f"s_lshl_b32 {sr(bkv)}, {sr(sB)}, 5")
        A(f"s_add_u32 {sr(bkv)}, {sr(bkv)}, {sr(sT4)}")
        A(f"s_lshl_b32 {sr(bkv)}, {sr(bkv)}, 17")
        A(f"s_lshl_b32 {sr(bo)}, {sr(sT4)}, 17")
        A(f"s_lshl_b32 {sr(bka)}, {sr(sB)}, 3")
        A(f"s_add_u32 {sr(bka)}, {sr(bka)}, {sr(sG)}")
        A(f"s_lshl_b32 {sr(bka)}, {sr(bka)}, 17")
        A(f"s_cmp_eq_u32 {sr(sRole)}, 1")
        A(f"s_cselect_b32 {sr(sHead)}, 1, 3")
        A(f"v_mov_b32 {vr(vT+1)}, {sr(bq)}")
        self.is_loader("L_tabw")
        A("s_waitcnt vmcnt(0)")
        lab("L_tabw")
        A("s_waitcnt vmcnt(36)")
        A(f"v_bfe_u32 {vr(vT)}, {vr(vTab)}, 3, 2")
        for k, base in ((1, bkv), (2, bo), (3, bka)):
            A(f"v_cmp_eq_u32 vcc, {k}, {vr(vT)}")
            A(f"v_mov_b32 {vr(vT+2)}, {sr(base)}")
            A("s_nop 0")
            A(f"v_cndmask_b32 {vr(vT+1)}, {vr(vT+1)}, {vr(vT+2)}, vcc")
        A(f"v_add_u32 {vr(vTab)}, {vr(vTab)}, {vr(vT+1)}")
        A(f"s_mov_b32 {sr(sIdx)}, 3")
        A(f"s_mov_b32 {sr(sC)}, 0")
        A(f"v_readlane_b32 {sr(sE)}, {vr(vTab)}, 3")

        def const(ty, hh, t, a_unit=False):
            if ty == T_WQ:
                return t * 128 * 8192 + hh * 256 + ty
            if ty == T_WQW:
                return t * 32 * 8192 + ty
            if ty in (T_K, T_V):
                return hh * 131072 + t * 32768 + ty + (24 if a_unit else 8)
            return (hh * 128 + 32 * t) * 1024 + ty + 16

        tb = [const(T_WQ, 0, t) for t in range(4)] + [const(T_K, 0, t) for t in range(4)]
        tb += [const(T_WQ, hh, t) for hh in (1, 2) for t in range(4)]
        tb += [const(ty, 0, t) for ty in (T_V, T_WO) for t in range(4)]
        tb += [const(ty, hh, t) for hh in (1, 2) for ty in (T_K, T_V, T_WO) for t in range(4)]
        ta = [const(T_WQ, 0, t) for t in range(4)] + [const(T_WQW, 0, t) for t in range(16)]
        ta += [const(ty, 0, t, True) for t in range(4) for ty in (T_K, T_V)]
        ta += [const(T_WO, hh, t) for hh in range(4) for t in range(4)]
        ta += [const(ty, 0, t) for ty in (T_K, T_V, T_WO) for t in range(4)]
        self.table = tb + [NULL_OFF] * (64 - len(tb)) + ta + [NULL_OFF] * (64 - len(ta))
        A(f"s_mov_b32 {sr(sScale)}, {f32(math.log2(math.e) / math.sqrt(128.0))}")
        A(f"s_mov_b32 {sr(sThr)}, 0x41000000")
        A(f"s_mov_b32 {sr(sZero)}, 1")
        self.stamp(0)

        c("Q projection of the first B head (scaled by log2(e)/sqrt(128)); the hook streams in the A-branch x behind it")
        A(f"s_mov_b32 {sr(sHook)}, {sr(sRole)}")
        A(f"s_mov_b32 {sr(sThrot)}, 0")
        A(f"s_xor_b32 {sr(sLate)}, {sr(sRole)}, 1")
        A(f"s_call_b64 {sr(LINK_S,2)}, L_qproj")
        def q_write(src, blk):
            A(f"v_xor_b32 {vr(vT+6)}, 32, {vr(vQW)}")
            for m in range(2):
                for n in range(3):
                    A(f"ds_write_b64 {vr(vT+6 if m else vQW)}, {vr(src+(m*3+n)*2,2)} offset:{n*XN+blk*BLK}")

        self.is_loader("L_q0done")
        q_write(vAcc, 4)
        A(f"s_cmp_eq_u32 {sr(sRole)}, 1")
        A("s_cbranch_scc1 L_q0done")
        A("s_barrier")
        self.weight_prefetch([(sBwq, True, 2), (sBwo, False, 0), (sBwo, False, 2), (sAwo, False, 0), (sAwo, False, 2)], single=True)
        lab("L_q0done")
        self.stamp(1)
        A(f"s_cmp_eq_u32 {sr(sRole)}, 1")
        A(f"s_mov_b32 {sr(sThrot)}, 0")
        A("s_cbranch_scc0 L_bpath")
        c("GQA group: four query heads sharing one K/V")
        A(f"s_mov_b32 {sr(sHook)}, 0")
        A(f"s_mov_b32 {sr(sBlk)}, 0")
        A(f"s_mov_b32 {sr(sBlkEnd)}, {3*BLK}")
        A(f"s_call_b64 {sr(LINK_S,2)}, L_wide")
        c("wave c < 4 holds Q of head c; x is dead after the drain barrier")
        A(f"s_bitcmp1_b32 {sr(sW)}, 2")
        A("s_cbranch_scc1 L_qa_done")
        A(f"s_mul_i32 {sr(sT0)}, {sr(sW)}, {BLK}")
        self.act_write_addr(sT0, None)
        A(f"v_mov_b32 {vr(vT+4)}, {sr(sScale)}")
        def qpack(jp):
            g = []
            for k in range(6 * jp, 6 * jp + 6):
                y = vY + k * 4
                g += [[self.pkmul(y, vT + 4)], [self.pkmul(y + 2, vT + 4)],
                      [f"v_cvt_pk_bf16_f32 {vr(y)}, {vr(y)}, {vr(y+1)}"], [f"v_cvt_pk_bf16_f32 {vr(y+1)}, {vr(y+2)}, {vr(y+3)}"]]
            return g

        self.wide_drain(qpack)
        A("s_barrier")
        for j in range(8):
            if j:
                A(f"v_xor_b32 {vr(vT+3)}, {j*32}, {vr(vT+1)}")
            for n in range(3):
                y = vY + (j * 3 + n) * 4
                A(f"ds_write_b64 {vr(vT+3 if j else vT+1)}, {vr(y,2)} offset:{n*XN}")
        lab("L_qa_done")
        self.stamp(7)
        c("wave = (head w>>1, key half w&1); O slot j holds d tile j ^ 4(w&1)")
        A(f"s_and_b32 {sr(sT0)}, {sr(sW)}, 1")
        A(f"s_lshl_b32 {sr(sT2)}, {sr(sT0)}, 14")
        A(f"s_lshl_b32 {sr(sT3)}, {sr(sT0)}, 7")
        A(f"s_lshl_b32 {sr(sT0)}, {sr(sT0)}, 10")
        A(f"s_lshr_b32 {sr(sT1)}, {sr(sW)}, 1")
        A(f"s_mul_i32 {sr(sBlk)}, {sr(sT1)}, {BLK}")
        A(f"s_lshl_b32 {sr(sT1)}, {sr(sT1)}, 13")
        A(f"s_add_u32 {sr(sT0)}, {sr(sT0)}, {sr(sT1)}")
        A(f"s_sub_u32 {sr(sT0)}, {sr(sT2)}, {sr(sT0)}")
        A(f"v_add_u32 {vr(vKa)}, {sr(sT0)}, {vr(vKb)}")
        A(f"v_xor_b32 {vr(vTRa)}, {sr(sT3)}, {vr(vTR0)}")
        A(f"v_add_u32 {vr(vTRa)}, {sr(sT2)}, {vr(vTRa)}")
        c("slot queue: the three ring slots in order, then the activation region as a fourth slot")
        for k in range(3):
            A(f"s_mov_b32 {sr(sQ[k])}, {sr(sC)}")
            self.weave([], self.rot())
        A(f"s_mov_b32 {sr(sQ[3])}, {XB}")
        A(f"v_add_u32 {vr(vT)}, {sr(sQ[0])}, {vr(vKa)}")
        for s in range(1, 4):
            A(f"v_xor_b32 {vr(vT+s)}, {s*64}, {vr(vT)}")
        for n in range(3):
            self.zero(vNm[n], 4)
            A(f"v_mov_b32 {vr(vLs+n)}, 0")
        A(f"s_mov_b32 {sr(sFix)}, 0")
        A(f"s_mov_b32 {sr(sIter)}, 4")

        def sa(sg, n, t):
            return vS + ((sg * 3 + n) * 2 + t) * 4

        tiles = [(0, 0), (0, 1), (1, 0), (1, 1)]

        def kreads(j):
            sg, t = tiles[j]
            for s in range(4):
                A(f"ds_read_b128 {vr(vAfA+((j%2)*4+s)*4,4)}, {vr(vT+s)} offset:{sg*8192+t*1024}")

        def sm_max(sg):
            f = []
            for n in range(3):
                f += [[x] for x in self.maxn(vT + n, [sa(sg, n, 0) + r for r in range(8)])]
            return f

        def sm_check(lr, ln):
            return [[f"v_max3_f32 {vr(vT+3)}, {vr(vT)}, {vr(vT+1)}, {vr(vT+2)}"],
                    [f"v_cmp_lt_f32 vcc, {sr(sThr)}, {vr(vT+3)}", f"s_cbranch_vccnz {lr}", ln + ":"]]

        def sm_exp(sg):
            f = []
            for n in range(3):
                b = sa(sg, n, 0)
                for r in range(8):
                    f.append([f"v_exp_f32 {vr(b+r)}, {vr(b+r)}"])
                    if r >= 2:
                        f.append([f"v_add_f32 {vr(vLs+n)}, {vr(vLs+n)}, {vr(b+r-2)}"])
                f.append([f"v_add_f32 {vr(vLs+n)}, {vr(vLs+n)}, {vr(b+6)}"])
                f.append([f"v_add_f32 {vr(vLs+n)}, {vr(vLs+n)}, {vr(b+7)}"])
                for r in range(4):
                    f.append([f"v_cvt_pk_bf16_f32 {vr(b+r)}, {vr(b+2*r)}, {vr(b+2*r+1)}"])
            return f

        def qrot(p):
            return [[f"s_bitcmp1_b32 {sr(sW)}, 2", f"s_cselect_b32 {sr(sI[p])}, {sr(sQ[0])}, {sr(sQ[3])}"],
                    [f"s_add_u32 {sr(sI[p])}, {sr(sI[p])}, {sr(sT1)}"],
                    [f"s_mov_b32 {sr(sT0)}, {sr(sQ[0])}"], [f"s_mov_b32 {sr(sQ[0])}, {sr(sQ[1])}"],
                    [f"s_mov_b32 {sr(sQ[1])}, {sr(sQ[2])}"], [f"s_mov_b32 {sr(sQ[2])}, {sr(sQ[3])}"],
                    [f"s_mov_b32 {sr(sQ[3])}, {sr(sT0)}"]]

        def aprep(p):
            return self.prep(p, False) + [[f"s_and_b32 {sr(sHalf[p])}, {sr(sHalf[p])}, {sr(sT2)}"],
                                          [f"s_add_u32 {sr(sOff[p])}, {sr(sOff[p])}, {sr(sHalf[p])}"]]

        def kstep(first):
            u = "f" if first else "l"
            self.head(8 if first else 4)
            if first:
                self.is_loader("L_att1")
                self.load_bfrags_dyn(vAfA + 28, QA)
                lab("L_att1")
            kreads(0)
            kreads(1)
            prim = []
            for j in range(4):
                sg, t = tiles[j]
                prim.append(self.D1(j, 1, first))
                for s in range(4):
                    prim.append(("w", [f"  s_waitcnt lgkmcnt({(7-s) if j < 3 else (3-s)})"]))
                    for n in range(3):
                        prim.append(self.M(sa(sg, n, t), vAfA + ((j % 2) * 4 + s) * 4, QA[n * 4 + s], vNm[n] if s == 0 else None))
                if j < 2:
                    prim.append(("r", self.cap(kreads, j + 2)))
                if j == 1:
                    half = len(prim)
            zf = [[f"v_mov_b64 {vr(vO+k,2)}, 0"] for k in range(0, 96, 2)] if first else []
            self.weave(prim[:half], qrot(0) + aprep(0) + zf, per=3 if first else 1)
            fill = sm_max(0)
            if first:
                fill.append([f"s_branch L_r0first", "L_n0f:"])
            else:
                fill += sm_check("L_r0", "L_n0l")
            fill += sm_exp(0)
            self.weave(prim[half:], fill, per=4, start=6)
            A(f"s_cmp_eq_u32 {sr(sFix)}, 0")
            A("s_nop 6")
            A(f"s_cbranch_scc0 L_r0b{u}")
            lab(f"L_n0b{u}")
            self.weave([], sm_max(1) + sm_check(f"L_r1{u}", f"L_n1{u}"))
            A(f"v_add_u32 {vr(vT)}, {sr(sQ[0])}, {vr(vTRa)}")

        def vreads(q):
            sg, mt = q // 8, q % 8
            a = vT if mt == 0 else vT + 1 + (mt % 2)
            if mt:
                A(f"v_xor_b32 {vr(a)}, {mt*32}, {vr(vT)}")
            self.tr_pair(vAfA + (q % 8) * 4, a, sg * 8192)

        c("waves 4-7 run one interval behind waves 0-3")
        A(f"s_lshl_b32 {sr(sT1)}, {sr(sW)}, 10")
        A(f"s_mov_b32 {sr(sIdx)}, 23")
        A(f"v_readlane_b32 {sr(sE)}, {vr(vTab)}, 23")
        A(f"s_bitcmp1_b32 {sr(sW)}, 2")
        A(f"s_cselect_b32 {sr(sT2)}, -1, 0")
        A("s_cbranch_scc0 L_att0")
        A(f"s_add_u32 {sr(sI[1])}, {sr(sQ[3])}, {sr(sT1)}")
        self.weave([], aprep(1))
        self.head(16)
        self.load_bfrags_dyn(vAfA, QA)
        lab("L_att0")
        kstep(True)
        lab("L_attA")
        self.head(4)
        for q in range(6):
            vreads(q)
        prim = []
        for q in range(16):
            sg, mt = q // 8, q % 8
            if q % 2 == 0 and q < 8:
                prim.append(self.D1(q // 2, 0))
            if q + 6 < 16:
                prim.append(("r", self.cap(vreads, q + 6)))
                lastr = len(prim)
            prim.append(("w", [f"  s_waitcnt lgkmcnt({2*min(6, 15-q)})"]))
            for n in range(3):
                prim.append(self.M(vO + (mt * 3 + n) * 4, vAfA + (q % 8) * 4, sa(sg, n, 0)))
            if q == 7:
                half = len(prim)
        self.weave(prim[:half], sm_exp(1), per=3)
        A(f"s_cmp_eq_u32 {sr(sIter)}, 1")
        A("s_cbranch_scc1 L_attlast")
        fill = qrot(1) + aprep(1)
        fill.append((lastr - half, [f"v_add_u32 {vr(vT)}, {sr(sQ[0])}, {vr(vKa)}"]))
        for s in range(1, 4):
            fill.append([f"v_xor_b32 {vr(vT+s)}, {s*64}, {vr(vT)}"])
        self.weave(prim[half:], fill, per=2)
        self.stamp(13)
        A(f"s_sub_u32 {sr(sIter)}, {sr(sIter)}, 1")
        kstep(False)
        A("s_branch L_attA")
        lab("L_attlast")
        self.is_loader("L_attlast_y")
        self.weave(prim[half:], qrot(1) + aprep(1), per=2)
        self.head(None)
        for k in range(4):
            self.L += self.D1(k, 1)[1]
        A("s_branch L_attdone")
        lab("L_attlast_y")
        self.weave(prim[half:], [])
        lab("L_attdone")
        self.stamp(8)
        c("merge the two key halves of each head")
        self.srd(SRD_K, sBk, 67108864)
        self.srd(SRD_V, sBv, 67108864)
        self.allreduce3(vLs, vT, "v_add_f32")
        self.lane(vT + 3)
        A(f"v_and_b32 {vr(vT)}, 15, {vr(vT+3)}")
        A(f"v_lshlrev_b32 {vr(vT)}, 3, {vr(vT)}")
        A(f"s_mul_i32 {sr(sT0)}, {sr(sW)}, 384")
        A(f"s_add_u32 {sr(sT0)}, {sr(sT0)}, {ST}")
        A(f"v_add_u32 {vr(vT+1)}, {sr(sT0)}, {vr(vT)}")
        A(f"s_xor_b32 {sr(sT1)}, {sr(sW)}, 1")
        A(f"s_mul_i32 {sr(sT0)}, {sr(sT1)}, 384")
        A(f"s_add_u32 {sr(sT0)}, {sr(sT0)}, {ST}")
        A(f"v_add_u32 {vr(vT+2)}, {sr(sT0)}, {vr(vT)}")
        for n in range(3):
            A(f"v_mov_b32 {vr(vAfA+2*n)}, {vr(vNm[n])}")
            A(f"v_mov_b32 {vr(vAfA+2*n+1)}, {vr(vLs+n)}")
            A(f"ds_write_b64 {vr(vT+1)}, {vr(vAfA+2*n,2)} offset:{n*128}")
        self.head(None)
        for n in range(3):
            A(f"ds_read_b64 {vr(vAfA+8+2*n,2)}, {vr(vT+2)} offset:{n*128}")
        A(f"s_mul_i32 {sr(sT0)}, {sr(sW)}, 6144")
        A(f"s_add_u32 {sr(sT0)}, {sr(sT0)}, {XB}")
        A(f"s_mul_i32 {sr(sT1)}, {sr(sT1)}, 6144")
        A(f"s_add_u32 {sr(sT1)}, {sr(sT1)}, {XB}")
        A(f"v_lshlrev_b32 {vr(vT)}, 4, {vr(vT+3)}")
        A(f"v_add_u32 {vr(vT+1)}, {sr(sT0)}, {vr(vT)}")
        A(f"v_add_u32 {vr(vT+2)}, {sr(sT1)}, {vr(vT)}")
        A("s_waitcnt lgkmcnt(0)")
        fr = [vAfA + 20 + 2 * n for n in range(3)]
        for n in range(3):
            mo, lo = vAfA + 8 + 2 * n, vAfA + 9 + 2 * n
            m, f, fo = vAfA + 16 + n, fr[n], fr[n] + 1
            A(f"v_min_f32 {vr(m)}, {vr(vNm[n])}, {vr(mo)}")
            A(f"v_sub_f32 {vr(f)}, {vr(m)}, {vr(vNm[n])}")
            A(f"v_sub_f32 {vr(fo)}, {vr(m)}, {vr(mo)}")
            A(f"v_exp_f32 {vr(f)}, {vr(f)}")
            A(f"v_exp_f32 {vr(fo)}, {vr(fo)}")
            A("s_nop 0")
            A(f"v_mul_f32 {vr(m)}, {vr(f)}, {vr(vLs+n)}")
            A(f"v_fma_f32 {vr(m)}, {vr(fo)}, {vr(lo)}, {vr(m)}")
            A(f"v_rcp_f32 {vr(m)}, {vr(m)}")
            A("s_nop 0")
            A(f"v_mul_f32 {vr(f)}, {vr(f)}, {vr(m)}")
        c("slots 4-7 go to the partner wave, scaled and packed to bf16")
        for k in range(24):
            o = vO + 48 + 2 * k
            A(self.pkmul(o, fr[(k // 2) % 3]))
        for k in range(24):
            o = vO + 48 + 2 * k
            A(f"v_cvt_pk_bf16_f32 {vr(vS+k)}, {vr(o)}, {vr(o+1)}")
            if k % 4 == 3:
                A(f"ds_write_b128 {vr(vT+1)}, {vr(vS+k-3,4)} offset:{(k//4)*1024}")
        A(f"s_and_b32 {sr(sT0)}, {sr(sW)}, 1")
        A(f"s_lshl_b32 {sr(sT0)}, {sr(sT0)}, 3")
        A(f"s_mov_b32 {sr(sT2)}, 0xffff0000")
        self.head(None)
        for k in range(6):
            A(f"ds_read_b128 {vr(vS+24+4*k,4)}, {vr(vT+2)} offset:{k*1024}")
        self.act_write_addr(sBlk, sT0)
        self.head(0)
        for jj in range(4):
            if jj:
                A(f"v_xor_b32 {vr(vT+3)}, {jj*32}, {vr(vT+1)}")
            for n in range(3):
                k = (jj * 3 + n) * 2
                for h in range(2):
                    x = vS + 2 * h
                    A(f"v_lshlrev_b32 {vr(x)}, 16, {vr(vS+24+k+h)}")
                    A(f"v_and_b32 {vr(x+1)}, {sr(sT2)}, {vr(vS+24+k+h)}")
                    A(f"v_pk_fma_f32 {vr(x,2)}, {vr(vO+2*(k+h),2)}, {vr(fr[n],2)}, {vr(x,2)} op_sel_hi:[1,0,1]")
                    A(f"v_cvt_pk_bf16_f32 {vr(vS+4+(k+h)%8)}, {vr(x)}, {vr(x+1)}")
                A(f"ds_write_b64 {vr(vT+3 if jj else vT+1)}, {vr(vS+4+k%8,2)} offset:{n*XN}")
        A(f"s_mov_b32 {sr(sZero)}, 1")
        self.stamp(9)
        A(f"s_mov_b32 {sr(sBlk)}, 0")
        A(f"s_call_b64 {sr(LINK_S,2)}, L_wide")
        A(f"s_lshl_b32 {sr(sT0)}, {sr(sB)}, 3")
        A(f"s_add_u32 {sr(sT0)}, {sr(sT0)}, {sr(sG)}")
        A(f"s_mul_i32 {sr(sT0)}, {sr(sT0)}, {PART}")
        A(f"s_add_u32 {sr(sT0)}, {sr(sT0)}, {PART_A_BASE}")
        self.is_loader("L_apk")
        self.pack_y()
        lab("L_apk")
        A(f"s_mov_b32 {sr(sPend)}, 1")
        self.srd(SRD_WO, sBwo, 4194304)
        A(f"s_mov_b32 {sr(sZero)}, 1")
        self.frag_addrs()
        self.stamp(10)
        A(f"s_mov_b32 {sr(sThrot)}, 0")
        A("s_branch L_bpath2")
        lab("L_bpath")
        A(f"s_mov_b32 {sr(sPend)}, 0")
        lab("L_bpath2")
        A(f"s_mov_b32 {sr(sBlk)}, {4*BLK}")

        lab("L_head")
        c("scores of one B head")
        if opt.get("thr"):
            A(f"s_lshl_b32 {sr(sT0)}, {sr(sHead)}, 2")
            A(f"s_add_u32 {sr(sT0)}, {sr(sT0)}, 0")
            A(f"s_lshr_b32 {sr(sThrot)}, {opt.get('thm', 0)}, {sr(sT0)}")
            A(f"s_andn2_b32 {sr(sThrot)}, {sr(sThrot)}, {sr(sRole)}")
            A(f"s_and_b32 {sr(sThrot)}, {sr(sThrot)}, 1")
        A(f"v_add_u32 {vr(vT)}, {sr(sC)}, {vr(vKb)}")
        for s in range(1, 4):
            A(f"v_xor_b32 {vr(vT+s)}, {s*64}, {vr(vT)}")
        rf = [vQs + 12, vQs + 14, vQs + 16]
        sm = [vQs + 18, vQs + 20, vQs + 22]

        def st(t, n):
            return vS + (t * 3 + n) * 4

        def b_sub(t):
            return [[f"v_pk_add_f32 {vr(st(t,n)+r,2)}, {vr(st(t,n)+r,2)}, {vr(rf[n],2)} op_sel_hi:[1,0] neg_lo:[0,1] neg_hi:[0,1]"]
                    for n in range(3) for r in (0, 2)]

        def b_check(t):
            f = [[x] for x in self.maxn(vT + 5, [st(t, 0) + r for r in range(12)])]
            return f + [[f"v_cmp_lt_f32 vcc, {sr(sThr)}, {vr(vT+5)}", f"s_cbranch_vccnz L_rb{t}", f"L_nb{t}:"]]

        def b_exp(t):
            f = [[f"v_exp_f32 {vr(st(t,0)+r)}, {vr(st(t,0)+r)}"] for r in range(12)]
            for n in range(3):
                b = st(t, n)
                if t == 0:
                    f.append([f"v_pk_add_f32 {vr(sm[n],2)}, {vr(b,2)}, {vr(b+2,2)}"])
                else:
                    f.append([f"v_pk_add_f32 {vr(sm[n],2)}, {vr(sm[n],2)}, {vr(b,2)}"])
                    f.append([f"v_pk_add_f32 {vr(sm[n],2)}, {vr(sm[n],2)}, {vr(b+2,2)}"])
                f.append([f"v_cvt_pk_bf16_f32 {vr(b)}, {vr(b)}, {vr(b+1)}"])
                f.append([f"v_cvt_pk_bf16_f32 {vr(b+1)}, {vr(b+2)}, {vr(b+3)}"])
            return f

        def b_max0():
            f = []
            for n in range(3):
                f += [[x] for x in self.maxn(sm[0] + n, [st(0, n) + r for r in range(4)])]
            f.append([x.strip() for x in self.cap(self.reduce4, sm[0], "v_max_f32")])
            f.append([f"ds_write_b32 {vr(vSTw)}, {vr(sm[0])}"])
            return f

        def b_ref0():
            f = [["s_waitcnt lgkmcnt(0)"] + [f"v_max_f32 {vr(rf[n])}, {vr(rf[n])}, {vr(rf[n]+1)}" for n in range(3)]]
            for sw in ("v_permlane32_swap_b32", "v_permlane16_swap_b32"):
                f.append([f"v_mov_b32 {vr(rf[n]+1)}, {vr(rf[n])}" for n in range(3)] + ["s_nop 1"] +
                         [f"{sw} {vr(rf[n])}, {vr(rf[n]+1)}" for n in range(3)] + ["s_nop 1"] +
                         [f"v_max_f32 {vr(rf[n])}, {vr(rf[n])}, {vr(rf[n]+1)}" for n in range(3)])
            return f

        for T in range(5):
            p = T % 2
            prim, last = [], {}
            self.head(16 if T == 0 else (8 if T < 4 else None))
            if T == 0:
                self.load_bfrags_dyn(vKf, QF)
                A(f"v_mov_b32 {vr(vT+5)}, {FLAG}")
                A(f"v_mov_b32 {vr(vT+6)}, 0")
                A(f"ds_write_b32 {vr(vT+5)}, {vr(vT+6)}")
            if T == 3:
                l = self.new("pw")
                self.is_loader(l)
                A("s_waitcnt vmcnt(0)")
                lab(l)
                for n in range(3):
                    A(f"ds_read_b64 {vr(rf[n],2)}, {vr(vT+5)} offset:{n*512}")
            for s in range(4):
                if T > 0:
                    for n in range(3):
                        prim.append(self.M(st(T - 1, n), vKf + 4 * s, QF[n * 4 + s], 0 if s == 0 else None))
                if T < 4:
                    prim.append(("r", [f"  ds_read_b128 {vr(vKf+4*s,4)}, {vr(vT+s)}"]))
                    last[s] = len(prim)
                if T > 0:
                    prim.append(self.D(s, p, True if T < 2 else None, True))
            fill = []
            if T == 3:
                fill += b_ref0()
            if T < 4:
                fill += self.prep(1 - p)
            if T == 2:
                fill += b_max0()
                fill.append([x.strip() for x in self.cap(self.lane, vT + 5)] +
                            [f"v_lshrrev_b32 {vr(vT+5)}, 4, {vr(vT+5)}", f"v_lshl_add_u32 {vr(vT+5)}, {vr(vT+5)}, 3, {vr(vSTr)}"])
            if T == 3:
                fill += b_sub(0) + b_exp(0) + b_sub(1) + b_check(1) + b_exp(1)
            if T == 4:
                fill += b_sub(2) + b_check(2) + b_exp(2)
            if T < 3:
                fill.append([f"v_add_u32 {vr(vT+4)}, {sr(sC)}, {vr(vKb)}"])
                for s in range(4):
                    fill.append((last[s], [f"v_xor_b32 {vr(vT+s)}, {s*64}, {vr(vT+4)}"]))
            self.weave(prim, fill, per=[2, 2, 3, 8, 4][T])
        self.stamp(2)
        c("last score tile; a wave that had to raise its reference left a flag")
        A(f"v_mov_b32 {vr(vT+4)}, {FLAG}")
        A("s_nop 6")
        self.weave([], b_sub(3) + b_check(3) + b_exp(3))
        self.head(None)
        A(f"ds_read_b32 {vr(vT+4)}, {vr(vT+4)}")
        for n in range(3):
            A(f"v_add_f32 {vr(vT+n)}, {vr(sm[n])}, {vr(sm[n]+1)}")
        A("s_waitcnt lgkmcnt(0)")
        A(f"v_cmp_ne_u32 vcc, 0, {vr(vT+4)}")
        A("s_cbranch_vccnz L_bfix")
        lab("L_bfixed")
        self.reduce4(vT, "v_add_f32")
        A(f"ds_write_b32 {vr(vSTw)}, {vr(vT)} offset:1536")
        self.bsm = (rf, sm, st)
        if opt.get("thr"):
            A(f"s_lshl_b32 {sr(sT0)}, {sr(sHead)}, 2")
            A(f"s_add_u32 {sr(sT0)}, {sr(sT0)}, 1")
            A(f"s_lshr_b32 {sr(sThrot)}, {opt.get('thm', 0)}, {sr(sT0)}")
            A(f"s_andn2_b32 {sr(sThrot)}, {sr(sThrot)}, {sr(sRole)}")
            A(f"s_and_b32 {sr(sThrot)}, {sr(sThrot)}, 1")
        c("B role, first head: remaining Q projections while x is still live")
        A(f"s_mov_b32 {sr(sHook)}, 0")
        A(f"s_cmp_eq_u32 {sr(sHead)}, 3")
        A("s_cbranch_scc0 L_noq")
        for k in range(2):
            A(f"s_mov_b32 {sr(sLate)}, {k}")
            A(f"s_call_b64 {sr(LINK_S,2)}, L_qproj")
            l = self.new("q")
            self.is_loader(l)
            for r in range(0, 12, 2):
                A(f"v_mov_b64 {vr(vQs+12*k+r,2)}, {vr(vAcc+r,2)}")
            if k:
                A("s_barrier")
            lab(l)
        self.stamp(12)
        lab("L_noq")
        for t in range(4):
            for n in range(3):
                A(f"ds_write_b64 {vr(vPW)}, {vr(st(t,n),2)} offset:{n*XN+t*BLK}")
        mreg = [vS, vS + 8, vS + 16]
        self.stamp(3)
        c("P x V")
        A(f"s_mov_b32 {sr(sHook)}, 0")
        A(f"s_mov_b32 {sr(sBlkEnd)}, 0")
        self.is_loader("L_pv_ld")
        pre1 = []
        for n in range(3):
            pre1.append(f"ds_read_b128 {vr(vS+8*n,4)}, {vr(vSTr)} offset:{n*512+1536}")
            pre1.append(f"ds_read_b128 {vr(vS+8*n+4,4)}, {vr(vSTr)} offset:{n*512+1536+16}")
        ex1 = []
        for n in range(3):
            b = vS + 8 * n
            ex1 += [[f"v_pk_add_f32 {vr(b,2)}, {vr(b,2)}, {vr(b+2,2)}"], [f"v_pk_add_f32 {vr(b+4,2)}, {vr(b+4,2)}, {vr(b+6,2)}"],
                    [f"v_pk_add_f32 {vr(b,2)}, {vr(b,2)}, {vr(b+4,2)}"], [f"v_add_f32 {vr(b)}, {vr(b)}, {vr(b+1)}"],
                    [f"v_rcp_f32 {vr(b)}, {vr(b)}"]]
        pre2 = [x.strip() for x in self.cap(q_write, vQs, 0)]
        ex2 = [[f"v_mov_b64 {vr(vQs+r,2)}, {vr(vQs+12+r,2)}"] for r in range(0, 12, 2)]
        def pend(n):
            l = self.new("pd")
            body = [x.strip() for x in self.cap(self.store_y, n, vT + 6)]
            return [f"s_cmp_eq_u32 {sr(sPend)}, 0", f"s_cbranch_scc1 {l}"] + body + [l + ":"]

        self.narrow(pre={1: pre1, 2: pre2}, extra={0: [pend(0)], 1: ex1 + [pend(1)], 2: ex2 + [pend(2)]}, early=True)
        A("s_nop 7")
        for k in range(6):
            a = vAcc + 4 * k
            A(self.pkmul(a, mreg[k % 3]))
            A(self.pkmul(a + 2, mreg[k % 3]))
            A(f"v_cvt_pk_bf16_f32 {vr(vAcc+2*k)}, {vr(a)}, {vr(a+1)}")
            A(f"v_cvt_pk_bf16_f32 {vr(vAcc+2*k+1)}, {vr(a+2)}, {vr(a+3)}")
        q_write(vAcc, 4)
        A("s_branch L_pv_done")
        lab("L_pv_ld")
        A(f"s_call_b64 {sr(LINK_S,2)}, L_load")
        lab("L_pv_done")
        self.stamp(4)
        if opt.get("thr"):
            A(f"s_lshl_b32 {sr(sT0)}, {sr(sHead)}, 2")
            A(f"s_add_u32 {sr(sT0)}, {sr(sT0)}, 2")
            A(f"s_lshr_b32 {sr(sThrot)}, {opt.get('thm', 0)}, {sr(sT0)}")
            A(f"s_andn2_b32 {sr(sThrot)}, {sr(sThrot)}, {sr(sRole)}")
            A(f"s_and_b32 {sr(sThrot)}, {sr(sThrot)}, 1")
        c("output projection")
        A(f"s_sub_u32 {sr(sHead)}, {sr(sHead)}, 1")
        A(f"s_mov_b32 {sr(sBlk)}, {4*BLK}")
        A(f"s_call_b64 {sr(LINK_S,2)}, L_wide")
        self.stamp(5)
        A(f"s_mov_b32 {sr(sBlk)}, 0")
        A(f"s_cmp_eq_u32 {sr(sHead)}, 0")
        A("s_cbranch_scc1 L_bdone")
        self.is_loader("L_head")
        self.wide_drain()
        A("s_barrier")
        A("s_branch L_head")
        lab("L_bdone")
        c("store the B-branch partial")
        A(f"s_lshl_b32 {sr(sT0)}, {sr(sB)}, 4")
        A(f"s_lshl_b32 {sr(sT1)}, {sr(sG)}, 1")
        A(f"s_add_u32 {sr(sT0)}, {sr(sT0)}, {sr(sT1)}")
        A(f"s_add_u32 {sr(sT0)}, {sr(sT0)}, {sr(sRole)}")
        A(f"s_mul_i32 {sr(sT0)}, {sr(sT0)}, {PART}")
        self.is_loader("L_bpk")
        self.pack_y()
        for n in range(3):
            self.store_y(n, vT)
        lab("L_bpk")
        self.stamp(6)
        lab("L_fin")
        if opt.get("dbg"):
            A("s_waitcnt vmcnt(0)")
            A("s_load_dwordx2 s[66:67], s[0:1], 88")
            A("s_memrealtime s[76:77]")
            A("s_memtime s[68:69]")
            A("s_waitcnt lgkmcnt(0)")
            A("s_sub_u32 s68, s68, s78")
            A("v_mov_b32 v16, 0")
            A("v_not_b32 v17, v23")
            A("v_mov_b32 v18, s76")
            A("v_sub_u32 v19, v18, v23")
            A("v_mov_b32 v20, s68")
            A("s_lshl_b32 s70, s58, 3")
            A("v_mov_b32 v21, s70")
            A("s_mov_b64 exec, 1")
            A("global_atomic_umax v16, v17, s[66:67]")
            A("global_atomic_umax v16, v18, s[66:67] offset:4")
            A("global_atomic_umax v21, v19, s[66:67] offset:8")
            A("global_atomic_umax v21, v20, s[66:67] offset:12")
            A("global_atomic_umax v16, v23, s[66:67] offset:24")
        if opt.get("stamps"):
            A("s_waitcnt vmcnt(0)")
            self.stamp(11)
            self.srd(SRD_AUX, sWs, 268435456)
            A(f"s_lshl_b32 {sr(sT0)}, s2, 3")
            A(f"s_add_u32 {sr(sT0)}, {sr(sT0)}, {sr(sW)}")
            A(f"s_lshl_b32 {sr(sT0)}, {sr(sT0)}, 8")
            A(f"s_add_u32 {sr(sT0)}, {sr(sT0)}, {64*1024*1024}")
            self.lane(vT)
            A(f"v_lshlrev_b32 {vr(vT)}, 2, {vr(vT)}")
            A(f"buffer_store_dword {vr(23)}, {vr(vT)}, {sr(SRD_AUX,4)}, {sr(sT0)} offen")
        lab("L_end")
        A("s_endpgm")

        def sub_delta(sg):
            for n in range(3):
                for r in range(8):
                    b = sa(sg, n, 0) + r
                    A(f"v_sub_f32 {vr(b)}, {vr(b)}, {vr(vT+n)}")

        def nm_delta():
            for n in range(3):
                for r in range(4):
                    A(f"v_sub_f32 {vr(vNm[n]+r)}, {vr(vNm[n]+r)}, {vr(vT+n)}")

        def allmax1():
            for n in range(3):
                for sw in ("v_permlane32_swap_b32", "v_permlane16_swap_b32"):
                    A(f"v_mov_b32 {vr(vT+3)}, {vr(vT+n)}")
                    A("s_nop 1")
                    A(f"{sw} {vr(vT+n)}, {vr(vT+3)}")
                    A("s_nop 1")
                    A(f"v_max_f32 {vr(vT+n)}, {vr(vT+n)}, {vr(vT+3)}")

        def scale_state(with_p0):
            for n in range(3):
                A(f"v_max_f32 {vr(vT+n)}, 0, {vr(vT+n)}")
                A(f"v_exp_f32 {vr(vT+3)}, -{vr(vT+n)}")
                A("s_nop 0")
                A(f"v_mul_f32 {vr(vLs+n)}, {vr(vLs+n)}, {vr(vT+3)}")
                for mt in range(8):
                    for r in range(4):
                        o = vO + (mt * 3 + n) * 4 + r
                        A(f"v_mul_f32 {vr(o)}, {vr(o)}, {vr(vT+3)}")
                if with_p0:
                    b = sa(0, n, 0)
                    for r in range(4):
                        A(f"v_lshlrev_b32 {vr(b+4)}, 16, {vr(b+r)}")
                        A(f"v_and_b32 {vr(b+5)}, 0xffff0000, {vr(b+r)}")
                        A(f"v_mul_f32 {vr(b+4)}, {vr(b+4)}, {vr(vT+3)}")
                        A(f"v_mul_f32 {vr(b+5)}, {vr(b+5)}, {vr(vT+3)}")
                        A(f"v_cvt_pk_bf16_f32 {vr(b+r)}, {vr(b+4)}, {vr(b+5)}")

        lab("L_r0first")
        allmax1()
        sub_delta(0)
        A(f"s_mov_b32 {sr(sFix)}, 1")
        A("s_branch L_n0f")
        lab("L_r0")
        allmax1()
        scale_state(False)
        sub_delta(0)
        A(f"s_mov_b32 {sr(sFix)}, 1")
        A("s_branch L_n0l")
        for u in "fl":
            lab(f"L_r0b{u}")
            A(f"s_call_b64 {sr(LINK_S,2)}, L_fix1")
            A(f"s_branch L_n0b{u}")
            lab(f"L_r1{u}")
            allmax1()
            A(f"s_call_b64 {sr(LINK_S,2)}, L_scale1")
            A(f"s_branch L_n1{u}")
        lab("L_scale1")
        scale_state(True)
        lab("L_fix1")
        sub_delta(1)
        nm_delta()
        A(f"s_mov_b32 {sr(sFix)}, 0")
        A(f"s_setpc_b64 {sr(LINK_S,2)}")

        self.L += self.cold
        rf, sm, st = self.bsm

        def repack(regs, f, lo, hi):
            for r in regs:
                A(f"v_lshlrev_b32 {vr(lo)}, 16, {vr(r)}")
                A(f"v_and_b32 {vr(hi)}, 0xffff0000, {vr(r)}")
                A(f"v_mul_f32 {vr(lo)}, {vr(lo)}, {vr(f)}")
                A(f"v_mul_f32 {vr(hi)}, {vr(hi)}, {vr(f)}")
                A(f"v_cvt_pk_bf16_f32 {vr(r)}, {vr(lo)}, {vr(hi)}")

        for t in range(1, 4):
            lab(f"L_rb{t}")
            d, f = vT + 5, vT + 6
            for n in range(3):
                self.emit(self.maxn(d, [st(t, n) + r for r in range(4)]))
                for sw in ("v_permlane32_swap_b32", "v_permlane16_swap_b32"):
                    A(f"v_mov_b32 {vr(f)}, {vr(d)}")
                    A("s_nop 1")
                    A(f"{sw} {vr(d)}, {vr(f)}")
                    A("s_nop 1")
                    A(f"v_max_f32 {vr(d)}, {vr(d)}, {vr(f)}")
                A(f"v_max_f32 {vr(d)}, 0, {vr(d)}")
                A(f"v_exp_f32 {vr(f)}, -{vr(d)}")
                A(f"v_add_f32 {vr(rf[n])}, {vr(rf[n])}, {vr(d)}")
                for r in range(4):
                    A(f"v_sub_f32 {vr(st(t,n)+r)}, {vr(st(t,n)+r)}, {vr(d)}")
                for r in (sm[n], sm[n] + 1):
                    A(f"v_mul_f32 {vr(r)}, {vr(r)}, {vr(f)}")
                repack([st(u, n) + k for u in range(t) for k in range(2)], f, st(0, n) + 2, st(0, n) + 3)
            A(f"s_lshl_b32 {sr(sT0)}, {sr(sW)}, 2")
            A(f"v_add_u32 {vr(d)}, {sr(sT0)}, {vr(vSTr)}")
            for n in range(3):
                A(f"ds_write_b32 {vr(d)}, {vr(rf[n])} offset:{n*512}")
            A(f"v_mov_b32 {vr(d)}, {FLAG}")
            A(f"v_mov_b32 {vr(f)}, 1")
            A(f"ds_write_b32 {vr(d)}, {vr(f)}")
            A(f"s_branch L_nb{t}")
        lab("L_bfix")
        for n in range(3):
            A(f"ds_read_b128 {vr(vFr,4)}, {vr(vSTr)} offset:{n*512}")
            A(f"ds_read_b128 {vr(vFr+4,4)}, {vr(vSTr)} offset:{n*512+16}")
            A("s_waitcnt lgkmcnt(0)")
            self.emit(self.maxn(rf[n] + 1, [rf[n]] + [vFr + r for r in range(8)]))
            A(f"v_sub_f32 {vr(rf[n])}, {vr(rf[n])}, {vr(rf[n]+1)}")
            A(f"v_exp_f32 {vr(rf[n])}, {vr(rf[n])}")
            A("s_nop 0")
            A(f"v_mul_f32 {vr(vT+n)}, {vr(vT+n)}, {vr(rf[n])}")
            repack([st(u, n) + k for u in range(4) for k in range(2)], rf[n], st(0, n) + 2, st(0, n) + 3)
        A("s_branch L_bfixed")

        lab("L_qproj")
        A(f"s_mov_b32 {sr(sBlkEnd)}, 0")
        self.is_loader("L_load")
        self.narrow()
        A(f"v_mov_b32 {vr(vT)}, {sr(sScale)}")
        A("s_nop 6")
        for k in range(6):
            a = vAcc + 4 * k
            A(self.pkmul(a, vT))
            A(self.pkmul(a + 2, vT))
            A(f"v_cvt_pk_bf16_f32 {vr(vAcc+2*k)}, {vr(a)}, {vr(a+1)}")
            A(f"v_cvt_pk_bf16_f32 {vr(vAcc+2*k+1)}, {vr(a+2)}, {vr(a+3)}")
        A(f"s_setpc_b64 {sr(LINK_S,2)}")

        def af(j, p):
            return vFr + 4 * (j + 2 * p if j >= 6 else j)

        def wb(n, p):
            return vAcc + (p * 3 + n) * 4

        def wide_rd(j, p):
            a = vT + 1 + (j % 2)
            A(f"v_xor_b32 {vr(a)}, {j*32}, {vr(vT+3+3*p)}")
            self.tr_pair(af(j, p), a, 0)

        def wide_addr(t):
            return [[f"s_add_u32 {sr(sT0)}, {sr(sC)}, {sr(sT1)}"],
                    [f"v_add_u32 {vr(vT+3+3*(t%2))}, {sr(sT0)}, {vr(vTR0)}"],
                    [f"v_add_u32 {vr(vT+5)}, {sr(sBlk)}, {vr(vXB+t)}"]]

        def wide_step(t, pending, reads=True, zero=False):
            p = t % 2
            if reads:
                self.head(None)
            else:
                A("s_waitcnt lgkmcnt(0)")
            prim = []
            for j in range(8):
                if pending and not opt.get("nomfma"):
                    for n in range(3):
                        prim.append(self.M(vY + (j * 3 + n) * 4, af(j, 1 - p), wb(n, 1 - p), 0 if zero else None))
                if reads and not opt.get("nords"):
                    if j == 0:
                        prim.append(("r", [f"  ds_read_b128 {vr(wb(n,p),4)}, {vr(vT+5)} offset:{n*XN}" for n in range(3)]))
                    if j < 6:
                        prim.append(("r", self.cap(wide_rd, j, p)))
                    if j < 2:
                        prim.append(("r", self.cap(wide_rd, 6 + j, p)))
            fill = []
            if reads:
                fill = self.rot()
                if t == 3:
                    fill.append([f"s_add_u32 {sr(sBlk)}, {sr(sBlk)}, {BLK}"])
                fill += wide_addr((t + 1) % 4)
            self.weave(prim, fill, per=1, start=5)

        lab("L_wide")
        self.is_loader("L_load")
        A(f"s_lshl_b32 {sr(sT1)}, {sr(sW)}, 13")
        self.weave([], wide_addr(0))
        wide_step(0, False)
        A(f"s_cmp_eq_u32 {sr(sZero)}, 0")
        A("s_cbranch_scc1 L_wide_loop")
        A(f"s_mov_b32 {sr(sZero)}, 0")
        wide_step(1, True, zero=True)
        A("s_branch L_wide_s2")
        lab("L_wide_loop")
        wide_step(1, True)
        lab("L_wide_s2")
        wide_step(2, True)
        wide_step(3, True)
        A(f"s_cmp_gt_u32 {sr(sBlk)}, {sr(sBlkEnd)}")
        A("s_cbranch_scc1 L_wide_drain")
        wide_step(0, True)
        A("s_branch L_wide_loop")
        lab("L_wide_drain")
        A("s_waitcnt lgkmcnt(0)")
        A(f"s_setpc_b64 {sr(LINK_S,2)}")

        def ld_step(p, vm, prep=True, xblk=None):
            self.head(vm)
            l1, l2 = self.new("kv"), self.new("dd")
            variants = [self.wf] if self.kvf == self.wf else [self.wf, self.kvf]
            if len(variants) > 1:
                A(f"s_bitcmp1_b32 6, {sr(sTy[p])}")
                A(f"s_cbranch_scc1 {l1}")
            for vi, fl in enumerate(variants):
                if vi:
                    A(f"s_branch {l2}")
                    lab(l1)
                prim = []
                for k in range(8):
                    ins = [f"  s_add_u32 m0, {sr(sI[p])}, {k*4096}"]
                    if k % 2:
                        ins.append(f"  s_add_u32 {sr(sOff2)}, {sr(sOff[p])}, {sr(sHalf[p])}")
                    elif k:
                        ins.append(f"  s_add_u32 {sr(sOff[p])}, {sr(sOff[p])}, {sr(sStr[p])}")
                    else:
                        ins.append("  s_nop 0")
                    ins.append(f"  buffer_load_dwordx4 {vr(vCur[p])}, {sr(SRD_CUR[p],4)}, {sr(sOff2 if k % 2 else sOff[p])} offen{fl} lds")
                    if vi and k % 2 == 0:
                        ins = self.cap(self.throttle) + ins
                    prim.append(("m", ins))
                self.weave(prim, self.prep(1 - p) if prep else [], per=2)
            lab(l2)
            if xblk is not None:
                l3 = self.new("hk")
                A(f"s_cmp_eq_u32 {sr(sHook)}, 0")
                A(f"s_cbranch_scc1 {l3}")
                if xblk == 0:
                    self.x_setup(vY)
                self.x_block(vY, xblk)
                lab(l3)

        lab("L_load")
        A(f"s_mov_b32 {sr(sT4)}, 0")
        self.head(16)
        self.weave([], self.prep(1))
        lab("L_ldloop")
        ld_step(1, 8, xblk=0)
        ld_step(0, 8, xblk=1)
        ld_step(1, 8, xblk=2)
        A(f"s_add_u32 {sr(sT4)}, {sr(sT4)}, {BLK}")
        A(f"s_cmp_gt_u32 {sr(sT4)}, {sr(sBlkEnd)}")
        A("s_cbranch_scc1 L_lddrain")
        ld_step(0, 8)
        A("s_branch L_ldloop")
        lab("L_lddrain")
        ld_step(0, None, prep=False, xblk=3)
        A(f"s_setpc_b64 {sr(LINK_S,2)}")

    def reduce_kernel(self):
        A, lab = self.A, self.lab
        K2 = "reduce_partials_kernel"
        self.L += [f".globl {K2}", ".p2align 8", f".type {K2},@function"]
        lab(K2)
        A("s_cmp_ge_u32 s2, 384")
        A("s_cbranch_scc1 L_r_end")
        A("s_load_dwordx2 s[4:5], s[0:1], 80")
        A("s_load_dwordx2 s[6:7], s[0:1], 96")
        A("s_mul_i32 s3, s2, 43691")
        A("s_lshr_b32 s3, s3, 19")
        A("s_mul_i32 s16, s3, 12")
        A("s_sub_u32 s16, s2, s16")
        A("s_and_b32 s17, s3, 15")
        A("s_lshr_b32 s18, s3, 4")
        A("s_lshl_b32 s19, s16, 12")
        A("v_lshlrev_b32 v2, 4, v0")
        A("v_add_u32 v2, s19, v2")
        A("s_mul_i32 s23, s16, 86")
        A("s_lshr_b32 s23, s23, 8")
        A("s_mul_i32 s24, s23, 3")
        A("s_sub_u32 s24, s16, s24")
        A("s_lshl_b32 s24, s24, 15")
        A("s_lshl_b32 s23, s23, 8")
        A("s_add_u32 s24, s24, s23")
        A("v_and_b32 v6, 15, v0")
        A("v_lshlrev_b32 v6, 11, v6")
        A("v_lshrrev_b32 v7, 6, v0")
        A("v_lshl_add_u32 v6, v7, 6, v6")
        A("v_bfe_u32 v7, v0, 4, 1")
        A("v_lshl_add_u32 v6, v7, 5, v6")
        A("v_bfe_u32 v7, v0, 5, 1")
        A("v_lshl_add_u32 v6, v7, 4, v6")
        A("s_waitcnt lgkmcnt(0)")
        A("s_mov_b32 s8, s4"); A("s_mov_b32 s9, s5"); A("s_mov_b32 s10, 1572864"); A("s_mov_b32 s11, 0x20000")
        A("s_mov_b32 s12, s6"); A("s_mov_b32 s13, s7"); A("s_mov_b32 s14, 268435456"); A("s_mov_b32 s15, 0x20000")
        A("s_mul_i32 s20, s17, 98304")
        A("s_add_u32 s20, s20, s24")
        A("s_mov_b32 s22, 0xffff0000")
        A("s_cmp_eq_u32 s18, 1")
        A("s_cbranch_scc1 L_r_A")

        def body(np_):
            for p in range(np_):
                A(f"buffer_load_dwordx4 v[{16+4*p}:{19+4*p}], v2, s[12:15], s21 offen")
                if p + 1 < np_:
                    A(f"s_add_u32 s21, s21, {PART}")
            for p in range(np_):
                A(f"s_waitcnt vmcnt({np_-1-p})")
                for k in range(4):
                    r = 16 + 4 * p + k
                    if p == 0:
                        A(f"v_lshlrev_b32 v{8+2*k}, 16, v{r}")
                        A(f"v_and_b32 v{9+2*k}, s22, v{r}")
                    else:
                        A(f"v_lshlrev_b32 v4, 16, v{r}")
                        A(f"v_and_b32 v5, s22, v{r}")
                        A(f"v_pk_add_f32 v[{8+2*k}:{9+2*k}], v[{8+2*k}:{9+2*k}], v[4:5]")

        A(f"s_mul_i32 s21, s17, {16*PART}")
        A("s_add_u32 s20, s20, 1024")
        body(16)
        A("s_branch L_r_st")
        lab("L_r_A")
        A(f"s_mul_i32 s21, s17, {8*PART}")
        A(f"s_add_u32 s21, s21, {PART_A_BASE}")
        body(8)
        lab("L_r_st")
        for k in range(4):
            A(f"v_cvt_pk_bf16_f32 v{16+k}, v{8+2*k}, v{9+2*k}")
        A("buffer_store_dwordx4 v[16:19], v6, s[8:11], s20 offen")
        lab("L_r_end")
        A("s_endpgm")
        self.L += [".p2align 2", ".type L_table,@object"]
        lab("L_table")
        for k in range(0, 128, 8):
            A(".long " + ", ".join(hex(x) for x in self.table[k:k+8]))

    def desc(self, name, nv, ns):
        self.L += [".p2align 6", f".amdhsa_kernel {name}", f"  .amdhsa_next_free_vgpr {nv}",
                   f"  .amdhsa_next_free_sgpr {ns}", f"  .amdhsa_accum_offset {nv}",
                   "  .amdhsa_group_segment_fixed_size 0", "  .amdhsa_kernarg_size 104",
                   "  .amdhsa_user_sgpr_count 2", "  .amdhsa_user_sgpr_kernarg_segment_ptr 1",
                   "  .amdhsa_system_sgpr_workgroup_id_x 1", ".end_amdhsa_kernel"]

    def build(self):
        K1 = NAME + "_kernel"
        head = HEADER + f"; @launch kernel={K1} grid=(256,1,1) block=(512,1,1) lds={LDS_BYTES}\n"
        head += "; @launch kernel=reduce_partials_kernel grid=(384,1,1) block=(256,1,1) lds=0\n"
        self.L += ['.amdgcn_target "amdgcn-amd-amdhsa--gfx950"', ".text"]
        self.main_kernel()
        self.reduce_kernel()
        self.L += ['.section .rodata,"a"']
        self.desc(K1, 256, 102)
        self.desc("reduce_partials_kernel", 80, 32)
        return head + "\n".join(self.L) + "\n"


def gen(**opt):
    return G(opt).build()


if __name__ == "__main__":
    out = sys.argv[1] if len(sys.argv) > 1 else f"cdna_kernels/{NAME}.s"
    opt = {}
    for a in sys.argv[2:]:
        k, v = a.split("=", 1)
        opt[k] = int(v) if v.lstrip("-").isdigit() else v
    open(out, "w").write(gen(**opt))
    print("wrote", out)
```

```python
import sys, math, struct

NAME = "concat_heads__gqa_block_cached__mha_block_cached__near_ridge"

HEADER = """; Kernarg layout for this problem (104 bytes, ptrs only, base s[0:1]):
"""

TILE = 32768
NSLOT = 3
XB = NSLOT * TILE
XROW = 256
XN = 16 * XROW
BLK = 48 * XROW
ST = XB + 5 * BLK
FLAG = ST + 3072
LDS_BYTES = 163840
PART = 49152
PART_A_BASE = 16 * 16 * PART
NULL_OFF = 0x40000000

T_WQ, T_K, T_V, T_WO, T_WQW = 0, 1, 2, 3, 4
ROWSH = [13, 8, 8, 10, 13]
SLABSH = [18, 13, 13, 8, 8]

sW, sC, sIdx, sE = 3, 4, 6, 7
SRD_WQ, SRD_K, SRD_V, SRD_WO, SRD_WQW, SRD_AUX = 8, 12, 16, 20, 24, 28
sAx, sAk, sAv, sAwq, sAwo = 32, 34, 36, 38, 40
sP0, sP1 = 42, 43
sBx, sBk, sBv, sBwq, sBwo = 44, 46, 48, 50, 52
sWs = 54
sB, sG, sRole, sHead, sHook, sScale, sW1024, sBlk, sThr, sIter = 56, 57, 58, 59, 60, 61, 62, 63, 64, 65
sT0, sT1, sT2, sT3, sT4, sT5 = 66, 67, 68, 69, 70, 71
sBlkEnd = 75
sStamp = 76
sFix = 79
sThrot = 100
sPend, sPendOff = 98, 99
sLate = 65
sZero = 91
SRD_CUR = [80, 84]
sOff, sTy, sStr, sI, sHalf = [72, 94], [73, 95], [74, 96], [5, 97], [88, 89]
sOff2 = 90
LINK_S = 92

vTab, vRow, vChunk, vTRw, vTR0, vKb = 1, 2, 3, 5, 6, 7
vCur = [4, 0]
vXB = 8
vQW, vPW, vSTw, vSTr = 12, 13, 14, 15
vT = 16
vAcc = 24
vQs = 48
vFr = 72
vS = 112
vY = 160
QF = [24, 28, 32, 36, 40, 44, 72, 76, 80, 84, 88, 92]
vKf = 96
vKa, vTRa = 5, 7
vNm = [12, 56, 60]
vLs = 20
vO = 160
vAfA = 24
QA = [64 + 4 * k for k in range(12)]
sQ = [98, 99, 100, 101]


def vr(a, n=1):
    return f"v{a}" if n == 1 else f"v[{a}:{a+n-1}]"


def sr(a, n=1):
    return f"s{a}" if n == 1 else f"s[{a}:{a+n-1}]"


def f32(x):
    return hex(struct.unpack('<I', struct.pack('<f', x))[0])


class G:
    def __init__(self, opt):
        self.L = []
        self.opt = opt
        self.uid = 0
        self.cold = []
        self.kvf = opt.get("kvflag", " nt")
        self.wf = opt.get("wflag", "")

    def A(self, s):
        self.L.append("  " + s)

    def lab(self, s):
        self.L.append(s + ":")

    def c(self, s):
        self.L.append("  ; " + s)

    def new(self, p):
        self.uid += 1
        return f"L_{p}{self.uid}"

    def mfma(self, d, a, b, c=None):
        cs = "0" if c == 0 else vr(d if c is None else c, 4)
        self.A(f"v_mfma_f32_16x16x32_bf16 {vr(d,4)}, {vr(a,4)}, {vr(b,4)}, {cs}")

    def M(self, d, a, b, c=None):
        return ("m", self.cap(self.mfma, d, a, b, c))

    def lane(self, v):
        self.A(f"v_mbcnt_lo_u32_b32 {vr(v)}, -1, 0")
        self.A(f"v_mbcnt_hi_u32_b32 {vr(v)}, -1, {vr(v)}")

    def rot(self):
        return [[f"s_add_u32 {sr(sC)}, {sr(sC)}, {TILE}"],
                [f"s_cmp_eq_u32 {sr(sC)}, {NSLOT*TILE}", f"s_cselect_b32 {sr(sC)}, 0, {sr(sC)}"]]

    def prep(self, p, slots=True):
        k1 = sum(v << (5 * i) for i, v in enumerate(ROWSH))
        k2 = sum(v << (5 * i) for i, v in enumerate(SLABSH))
        pre = [[f"s_add_u32 {sr(sI[p])}, {sr(sC)}, {sr(sW1024)}"]] + self.rot() if slots else []
        return pre + [
            [f"s_and_b32 {sr(sOff[p])}, {sr(sE)}, 0xffffff00"],
            [f"s_and_b32 {sr(sTy[p])}, {sr(sE)}, 7"],
            [f"s_add_u32 {sr(sIdx)}, {sr(sIdx)}, 1"],
            [f"s_lshl_b32 m0, {sr(sTy[p])}, 2", f"s_mul_i32 {sr(sP0)}, {sr(sTy[p])}, 5",
             f"s_movrels_b64 {sr(SRD_CUR[p],2)}, {sr(SRD_WQ,2)}", f"s_movrels_b32 {sr(SRD_CUR[p]+2)}, {sr(SRD_WQ+2)}"],
            [f"v_readlane_b32 {sr(sE)}, {vr(vTab)}, {sr(sIdx)}"],
            [f"s_lshr_b32 {sr(sP1)}, {hex(k1)}, {sr(sP0)}"],
            [f"s_lshr_b32 {sr(sP0)}, {hex(k2)}, {sr(sP0)}"],
            [f"v_lshl_add_u32 {vr(vCur[p])}, {vr(vRow)}, {sr(sP1)}, {vr(vChunk)}"],
            [f"s_lshl_b32 {sr(sStr[p])}, 1, {sr(sP0)}"],
            [f"s_lshl_b32 {sr(sHalf[p])}, 16, {sr(sP1)}"],
        ]

    def weave(self, prim, fill, per=2, start=0):
        fill = list(fill)
        for idx, (kind, ins) in enumerate(prim):
            self.L += ins
            if kind == "m" and idx >= start:
                k = 0
                while fill and k < per:
                    f = fill[0]
                    if isinstance(f, tuple):
                        if f[0] > idx:
                            break
                        f = f[1]
                    self.emit(f)
                    fill.pop(0)
                    k += 1
        for f in fill:
            self.emit(f[1] if isinstance(f, tuple) else f)

    def emit(self, f):
        for x in f:
            if x.endswith(":"):
                self.L.append(x)
            else:
                self.A(x)

    def cap(self, fn, *a, **k):
        keep, self.L = self.L, []
        fn(*a, **k)
        out, self.L = self.L, keep
        return out

    def head(self, vm):
        self.A("s_waitcnt " + (f"vmcnt({vm}) " if vm is not None else "") + "lgkmcnt(0)")
        if self.opt.get("allsteps") == 2:
            self.stamp(15)
        self.A("s_barrier")
        if self.opt.get("allsteps") == 1:
            self.stamp(14)

    def throttle(self):
        if self.opt.get('thr'):
            l = self.new('th')
            self.A(f"s_cmp_eq_u32 {sr(sThrot)}, 0")
            self.A(f"s_cbranch_scc1 {l}")
            self.A(f"s_waitcnt vmcnt({self.opt['thr']})")
            self.lab(l)

    def dma(self, k, p, kv, guard=True, throttle=False):
        A = self.A
        skip = self.new("sk")
        if guard:
            A(f"s_bitcmp1_b32 {sr(sW)}, 2")
            A(f"s_cbranch_scc0 {skip}")
        if k:
            A(f"s_add_u32 {sr(sOff[p])}, {sr(sOff[p])}, {sr(sStr[p])}")
        A(f"s_add_u32 m0, {sr(sI[p])}, {k*8192}")
        A(f"s_add_u32 {sr(sOff2)}, {sr(sOff[p])}, {sr(sHalf[p])}")

        def pair(fl):
            if throttle and fl == self.kvf:
                self.throttle()
            A(f"buffer_load_dwordx4 {vr(vCur[p])}, {sr(SRD_CUR[p],4)}, {sr(sOff[p])} offen{fl} lds")
            A("s_add_u32 m0, m0, 4096")
            A("s_nop 0")
            A(f"buffer_load_dwordx4 {vr(vCur[p])}, {sr(SRD_CUR[p],4)}, {sr(sOff2)} offen{fl} lds")

        if self.kvf == self.wf:
            kv = False
        if kv is not None:
            pair(self.kvf if kv else self.wf)
        else:
            l1 = self.new("kv")
            A(f"s_bitcmp1_b32 6, {sr(sTy[p])}")
            A(f"s_cbranch_scc1 {l1}")
            pair(self.wf)
            A(f"s_branch {skip}")
            self.lab(l1)
            pair(self.kvf)
        self.lab(skip)

    def D1(self, k, p, guard=False):
        l1, l2 = self.new("w"), self.new("d")
        ld = f"  buffer_load_dwordx4 {vr(vCur[p])}, {sr(SRD_CUR[p],4)}, {sr(sOff[p])} offen"
        ins = [f"  s_bitcmp1_b32 {sr(sW)}, 2", f"  s_cbranch_scc0 {l2}"] if guard else []
        ins.append(f"  s_add_u32 m0, {sr(sI[p])}, {k*8192}")
        if k:
            ins.append(f"  s_add_u32 {sr(sOff[p])}, {sr(sOff[p])}, {sr(sStr[p])}")
        if self.kvf == self.wf:
            ins += ["  s_nop 0", f"{ld}{self.wf} lds"]
        else:
            ins += [f"  s_bitcmp1_b32 6, {sr(sTy[p])}", f"  s_cbranch_scc0 {l1}", f"{ld}{self.kvf} lds"]
            self.cold += [l1 + ":", f"{ld}{self.wf} lds", f"  s_branch {l2}"]
        return ("d", ins + [l2 + ":"])

    def D(self, k, p, kv, throttle=False):
        return ("d", self.cap(self.dma, k, p, kv, True, throttle))

    def tr_pair(self, dst, addr, off):
        self.A(f"ds_read_b64_tr_b16 {vr(dst,2)}, {vr(addr)} offset:{off}")
        self.A(f"ds_read_b64_tr_b16 {vr(dst+2,2)}, {vr(addr)} offset:{off+1024}")

    def narrow(self, pre=None, extra=None, early=None):
        A = self.A

        def fr(st, k):
            return vFr + (st * 5 + k) * 4

        def reads(T, s):
            p = T % 2
            for m in range(2):
                self.tr_pair(fr(s % 2, m), vT + 2 * p + m, s * 8192)
            for n in range(3):
                A(f"ds_read_b128 {vr(fr(s%2,2+n),4)}, {vr(vXB+s)} offset:{n*XN+T*BLK}")

        def addr(p):
            return [[f"v_add_u32 {vr(vT+2*p)}, {sr(sC)}, {vr(vTRw)}"], [f"v_xor_b32 {vr(vT+2*p+1)}, 32, {vr(vT+2*p)}"]]

        def mf(s, zero=False):
            return [self.M(vAcc + (m * 3 + n) * 4, fr(s % 2, m), fr(s % 2, 2 + n), 0 if zero else None)
                    for m in range(2) for n in range(3)]

        self.weave([], addr(0))
        for T in range(4):
            self.head(None)
            self.emit((pre or {}).get(T, []))
            prim = [("r", self.cap(reads, T, 0))]
            if T:
                prim += mf(3)
            prim.append(("r", self.cap(reads, T, 1)))
            for s in range(3):
                prim.append(("w", ["  s_waitcnt lgkmcnt(7)"]))
                prim += mf(s, T == 0 and s == 0)
                if s < 2:
                    prim.append(("r", self.cap(reads, T, s + 2)))
            late = [(10, g) for g in (extra or {}).get(T, [])]
            self.weave(prim, self.rot() + (addr(1 - T % 2) if T < 3 else []) + late, per=1 + bool(late))
        A("s_waitcnt lgkmcnt(0)")
        if early is True:
            A("s_barrier")
        elif early is None:
            l = self.new("e")
            A(f"s_cmp_eq_u32 {sr(sLate)}, 0")
            A(f"s_cbranch_scc0 {l}")
            A("s_barrier")
            self.lab(l)
        self.weave(mf(3), [])

    def load_bfrags_dyn(self, tmp, quads):
        for s in range(4):
            self.A(f"v_add_u32 {vr(tmp+s)}, {sr(sBlk)}, {vr(vXB+s)}")
        for s in range(4):
            for n in range(3):
                self.A(f"ds_read_b128 {vr(quads[n*4+s],4)}, {vr(tmp+s)} offset:{n*XN}")

    def is_loader(self, label):
        self.A(f"s_bitcmp1_b32 {sr(sW)}, 2")
        self.A(f"s_cbranch_scc1 {label}")

    def x_setup(self, va):
        A = self.A
        self.lane(va + 2)
        A(f"v_lshrrev_b32 {vr(va+1)}, 4, {vr(va+2)}")
        A(f"v_and_b32 {vr(va+2)}, 15, {vr(va+2)}")
        A(f"v_xor_b32 {vr(va+2)}, {vr(va+2)}, {vr(va+1)}")
        A(f"v_lshlrev_b32 {vr(va+2)}, 4, {vr(va+2)}")
        A(f"v_lshl_or_b32 {vr(va+2)}, {vr(va+1)}, 10, {vr(va+2)}")
        A(f"s_mul_i32 {sr(sT0)}, {sr(sW1024)}, 3")
        A(f"s_add_u32 {sr(sT2)}, {sr(sT0)}, {XB}")
        A(f"s_mul_i32 {sr(sT1)}, {sr(sB)}, 49152")
        A(f"s_lshl_b32 {sr(sT3)}, {sr(sT0)}, 2")
        A(f"s_add_u32 {sr(sT1)}, {sr(sT1)}, {sr(sT3)}")
        A(f"s_lshr_b32 {sr(sT0)}, {sr(sT0)}, 4")
        for j in range(3):
            A(f"s_add_u32 {sr(sT3)}, {sr(sT0)}, {j*64}")
            A(f"s_and_b32 {sr(sT3)}, {sr(sT3)}, 0xc0")
            A(f"v_xor_b32 {vr(va+j)}, {sr(sT3)}, {vr(va+2)}")

    def x_block(self, va, blk):
        for j in range(3):
            self.A(f"s_add_u32 m0, {sr(sT2)}, {blk*BLK+j*1024}")
            self.A(f"s_add_u32 {sr(sT3)}, {sr(sT1)}, {blk*256+j*4096}")
            self.A(f"buffer_load_dwordx4 {vr(va+j)}, {sr(SRD_AUX,4)}, {sr(sT3)} offen lds")

    def weight_prefetch(self, items, single=False):
        A = self.A
        off, cur = sT1, SRD_CUR[1]
        self.lane(vT + 1)
        A(f"v_lshrrev_b32 {vr(vT)}, 4, {vr(vT+1)}")
        A(f"v_lshlrev_b32 {vr(vT+1)}, 4, {vr(vT+1)}")
        A(f"v_and_b32 {vr(vT+2)}, 0xf0, {vr(vT+1)}")
        A(f"v_lshl_or_b32 {vr(vT)}, {vr(vT)}, 13, {vr(vT+2)}")
        A(f"s_lshl_b32 {sr(sT0)}, {sr(sG)}, 2")
        if not single:
            A(f"s_add_u32 {sr(sT0)}, {sr(sT0)}, {sr(sRole)}")
        A(f"s_lshl_b32 {sr(sT2)}, {sr(sB)}, 2")
        A(f"s_add_u32 {sr(sT2)}, {sr(sT2)}, {sr(sW)}")
        A(f"s_mov_b32 {sr(cur+2)}, 4194304")
        for ptr, is_wq, h0 in items:
            A(f"s_add_u32 {sr(sT3)}, {sr(sT0)}, {h0}")
            A(f"s_lshl_b32 {sr(sT3)}, {sr(sT3)}, {8 if is_wq else 17}")
            A(f"s_lshl_b32 {sr(off)}, {sr(sT2)}, {16 if is_wq else 11}")
            A(f"s_add_u32 {sr(off)}, {sr(off)}, {sr(sT3)}")
            A(f"s_mov_b64 {sr(cur,2)}, {sr(ptr,2)}")
            for hh in range(2 if single else 1):
                for k in range(2):
                    d = hh * (256 if is_wq else 131072) + k * (32768 if is_wq else 1024)
                    if d:
                        A(f"s_add_u32 {sr(sT3)}, {sr(off)}, {d}")
                    A(f"buffer_load_dwordx4 v[156:159], {vr(vT if is_wq else vT+1)}, {sr(cur,4)}, {sr(sT3 if d else off)} offen")

    def srd(self, d, p, size):
        self.A(f"s_mov_b32 {sr(d)}, {sr(p)}")
        self.A(f"s_mov_b32 {sr(d+1)}, {sr(p+1)}")
        self.A(f"s_mov_b32 {sr(d+2)}, {size}")
        self.A(f"s_mov_b32 {sr(d+3)}, 0x20000")

    def reduce4(self, x, op):
        self.A(f"v_mov_b32 {vr(x+3)}, {vr(x+2)}")
        self.A("s_nop 1")
        self.A(f"v_permlane32_swap_b32 {vr(x)}, {vr(x+1)}")
        self.A(f"v_permlane32_swap_b32 {vr(x+2)}, {vr(x+3)}")
        self.A("s_nop 1")
        self.A(f"{op} {vr(x)}, {vr(x)}, {vr(x+1)}")
        self.A(f"{op} {vr(x+2)}, {vr(x+2)}, {vr(x+3)}")
        self.A("s_nop 1")
        self.A(f"v_permlane16_swap_b32 {vr(x)}, {vr(x+2)}")
        self.A("s_nop 1")
        self.A(f"{op} {vr(x)}, {vr(x)}, {vr(x+2)}")

    def allreduce3(self, x, t, op):
        for sw in ("v_permlane32_swap_b32", "v_permlane16_swap_b32"):
            for n in range(3):
                self.A(f"v_mov_b32 {vr(t+n)}, {vr(x+n)}")
            self.A("s_nop 1")
            for n in range(3):
                self.A(f"{sw} {vr(x+n)}, {vr(t+n)}")
            self.A("s_nop 1")
            for n in range(3):
                self.A(f"{op} {vr(x+n)}, {vr(x+n)}, {vr(t+n)}")

    def maxn(self, dst, regs):
        out = [f"v_max3_f32 {vr(dst)}, {vr(regs[0])}, {vr(regs[1])}, {vr(regs[2])}"]
        k = 3
        while k + 1 < len(regs):
            out.append(f"v_max3_f32 {vr(dst)}, {vr(dst)}, {vr(regs[k])}, {vr(regs[k+1])}")
            k += 2
        if k < len(regs):
            out.append(f"v_max_f32 {vr(dst)}, {vr(dst)}, {vr(regs[k])}")
        return out

    def pkmul(self, a, f):
        sel = "op_sel_hi:[1,0]" if f % 2 == 0 else "op_sel:[0,1] op_sel_hi:[1,1]"
        return f"v_pk_mul_f32 {vr(a,2)}, {vr(a,2)}, {vr(f - f % 2,2)} {sel}"

    def stamp(self, idx):
        if not self.opt.get("stamps"):
            return
        self.A(("s_memtime" if self.opt.get("cyc") else "s_memrealtime") + f" {sr(sStamp,2)}")
        self.A("s_waitcnt lgkmcnt(0)")
        self.A(f"s_and_b32 {sr(sStamp)}, {sr(sStamp)}, 0xffffff")
        self.A(f"s_or_b32 {sr(sStamp)}, {sr(sStamp)}, {(idx+1) << 24}")
        self.A("s_mov_b32 m0, s78")
        if self.opt.get("skip"):
            l = self.new("st")
            self.A(f"s_cmp_lt_i32 s78, 0")
            self.A(f"s_cbranch_scc1 {l}")
            self.A(f"s_cmp_ge_i32 s78, 63")
            self.A(f"s_cbranch_scc1 {l}")
            self.A(f"v_writelane_b32 {vr(23)}, {sr(sStamp)}, m0")
            self.lab(l)
        else:
            self.A(f"v_writelane_b32 {vr(23)}, {sr(sStamp)}, m0")
        self.A("s_add_u32 s78, s78, 1")

    def pack_y(self):
        def pack(jp):
            g = []
            for n in range(3):
                q = vY + (2 * jp * 3 + n) * 4
                for h in range(2):
                    y = vY + ((2 * jp + h) * 3 + n) * 4
                    g.append([f"v_cvt_pk_bf16_f32 {vr(q+2*h)}, {vr(y)}, {vr(y+1)}"])
                    g.append([f"v_cvt_pk_bf16_f32 {vr(q+2*h+1)}, {vr(y+2)}, {vr(y+3)}"])
            return g

        self.srd(SRD_AUX, sWs, 268435456)
        self.A(f"s_mul_i32 {sr(sT1)}, {sr(sW)}, 12288")
        self.A(f"s_add_u32 {sr(sPendOff)}, {sr(sT0)}, {sr(sT1)}")
        self.wide_drain(pack)
        self.A("s_barrier")

    def store_y(self, n, va):
        A = self.A
        self.lane(va)
        A(f"v_lshlrev_b32 {vr(va)}, 4, {vr(va)}")
        for jp in range(4):
            q = vY + (2 * jp * 3 + n) * 4
            A(f"v_permlane16_swap_b32 {vr(q)}, {vr(q+2)}")
            A(f"v_permlane16_swap_b32 {vr(q+1)}, {vr(q+3)}")
            A(f"buffer_store_dwordx4 {vr(q,4)}, {vr(va)}, {sr(SRD_AUX,4)}, {sr(sPendOff)} offen offset:{jp*1024}")
        A(f"s_add_u32 {sr(sPendOff)}, {sr(sPendOff)}, 4096")

    def wide_drain(self, per_pair=None):
        prim = [self.M(vY + (j * 3 + n) * 4, vFr + 4 * (j + 2 if j >= 6 else j), vAcc + (3 + n) * 4) for j in range(8) for n in range(3)]
        fill = []
        if per_pair:
            for jp in range(4):
                g = per_pair(jp)
                fill += [(6 * jp + 13, x) for x in g]
        self.weave(prim, fill, per=4)

    def zero(self, base, n):
        for k in range(0, n, 2):
            self.A(f"v_mov_b64 {vr(base+k,2)}, 0")

    def act_write_addr(self, sblk, stile):
        A = self.A
        self.lane(vT + 1)
        A(f"v_lshrrev_b32 {vr(vT)}, 4, {vr(vT+1)}")
        A(f"v_and_b32 {vr(vT+1)}, 15, {vr(vT+1)}")
        A(f"v_lshrrev_b32 {vr(vT+2)}, 1, {vr(vT)}")
        if stile is not None:
            A(f"v_add_u32 {vr(vT+2)}, {sr(stile)}, {vr(vT+2)}")
        A(f"v_xor_b32 {vr(vT+2)}, {vr(vT+2)}, {vr(vT+1)}")
        A(f"v_lshlrev_b32 {vr(vT+2)}, 4, {vr(vT+2)}")
        A(f"v_and_b32 {vr(vT)}, 1, {vr(vT)}")
        A(f"v_lshl_or_b32 {vr(vT+2)}, {vr(vT)}, 3, {vr(vT+2)}")
        A(f"v_mul_u32_u24 {vr(vT+1)}, {XROW}, {vr(vT+1)}")
        A(f"s_add_u32 {sr(sT5)}, {sr(sblk)}, {XB}")
        A(f"v_add3_u32 {vr(vT+1)}, {vr(vT+1)}, {sr(sT5)}, {vr(vT+2)}")

    def frag_addrs(self):
        A = self.A
        t0, t1, t2, t3, t4, t5, vL = vT, vT + 1, vT + 2, vT + 3, vT + 4, vT + 5, vT + 6
        self.lane(vL)
        A(f"v_lshrrev_b32 {vr(t0)}, 4, {vr(vL)}")
        A(f"v_and_b32 {vr(t1)}, 15, {vr(vL)}")
        A(f"v_bfe_u32 {vr(t2)}, {vr(vL)}, 2, 2")
        A(f"v_and_b32 {vr(t3)}, 3, {vr(vL)}")
        A(f"v_lshl_add_u32 {vr(t4)}, {vr(t0)}, 3, {vr(t2)}")
        A(f"v_lshlrev_b32 {vr(t4)}, 8, {vr(t4)}")
        A(f"v_and_b32 {vr(t5)}, 1, {vr(t0)}")
        A(f"v_lshl_or_b32 {vr(t5)}, {vr(t5)}, 2, {vr(t2)}")
        A(f"v_lshl_or_b32 {vr(t4)}, {vr(t5)}, 5, {vr(t4)}")
        A(f"v_lshl_or_b32 {vr(vTR0)}, {vr(t3)}, 3, {vr(t4)}")
        A(f"s_lshr_b32 {sr(sT0)}, {sr(sW1024)}, 4")
        A(f"v_xor_b32 {vr(vTRw)}, {sr(sT0)}, {vr(vTR0)}")
        A(f"s_lshr_b32 {sr(sT1)}, {sr(sW)}, 1")
        A(f"s_lshl_b32 {sr(sT1)}, {sr(sT1)}, 13")
        A(f"v_lshrrev_b32 {vr(t4)}, 2, {vr(t1)}")
        A(f"v_lshl_or_b32 {vr(t4)}, {vr(t4)}, 3, {vr(t3)}")
        A(f"v_lshlrev_b32 {vr(t4)}, 8, {vr(t4)}")
        A(f"v_lshrrev_b32 {vr(t5)}, 1, {vr(t0)}")
        A(f"v_and_b32 {vr(vKb)}, 7, {vr(t1)}")
        A(f"v_xor_b32 {vr(t5)}, {vr(t5)}, {vr(vKb)}")
        A(f"v_lshl_or_b32 {vr(t4)}, {vr(t5)}, 5, {vr(t4)}")
        A(f"v_and_b32 {vr(t5)}, 1, {vr(t0)}")
        A(f"v_lshl_or_b32 {vr(t4)}, {vr(t5)}, 4, {vr(t4)}")
        A(f"s_and_b32 {sr(sT0)}, {sr(sW)}, 1")
        A(f"s_lshl_b32 {sr(sT0)}, {sr(sT0)}, 10")
        A(f"s_add_u32 {sr(sT0)}, {sr(sT0)}, {sr(sT1)}")
        A(f"v_add_u32 {vr(vKb)}, {sr(sT0)}, {vr(t4)}")
        A(f"v_mul_u32_u24 {vr(t4)}, {XROW}, {vr(t1)}")
        A(f"v_add_u32 {vr(t4)}, {XB}, {vr(t4)}")
        A(f"v_xor_b32 {vr(t5)}, {vr(t0)}, {vr(t1)}")
        A(f"v_lshlrev_b32 {vr(t5)}, 4, {vr(t5)}")
        for s in range(4):
            A(f"v_xor_b32 {vr(vXB+s)}, {s*64}, {vr(t5)}")
            A(f"v_add_u32 {vr(vXB+s)}, {vr(vXB+s)}, {vr(t4)}")
        A(f"v_lshrrev_b32 {vr(t5)}, 1, {vr(t0)}")
        A(f"s_lshr_b32 {sr(sT0)}, {sr(sW1024)}, 8")
        A(f"v_add_u32 {vr(t5)}, {sr(sT0)}, {vr(t5)}")
        A(f"v_xor_b32 {vr(t5)}, {vr(t5)}, {vr(t1)}")
        A(f"v_lshl_add_u32 {vr(vQW)}, {vr(t5)}, 4, {vr(t4)}")
        A(f"v_and_b32 {vr(t5)}, 1, {vr(t0)}")
        A(f"v_lshl_add_u32 {vr(vQW)}, {vr(t5)}, 3, {vr(vQW)}")
        A(f"s_lshr_b32 {sr(sT0)}, {sr(sW)}, 1")
        A(f"s_lshl_b32 {sr(sT0)}, {sr(sT0)}, 2")
        A(f"v_add_u32 {vr(t5)}, {sr(sT0)}, {vr(t0)}")
        A(f"v_xor_b32 {vr(t5)}, {vr(t5)}, {vr(t1)}")
        A(f"v_lshl_add_u32 {vr(vPW)}, {vr(t5)}, 4, {vr(t4)}")
        A(f"s_and_b32 {sr(sT0)}, {sr(sW)}, 1")
        A(f"s_lshl_b32 {sr(sT0)}, {sr(sT0)}, 3")
        A(f"v_add_u32 {vr(vPW)}, {sr(sT0)}, {vr(vPW)}")
        A(f"v_lshlrev_b32 {vr(vSTr)}, 5, {vr(t1)}")
        A(f"v_add_u32 {vr(vSTr)}, {ST}, {vr(vSTr)}")
        A(f"v_lshlrev_b32 {vr(t5)}, 1, {vr(t0)}")
        A(f"v_mov_b32 {vr(t4)}, 0x98")
        A(f"v_lshrrev_b32 {vr(t5)}, {vr(t5)}, {vr(t4)}")
        A(f"v_and_b32 {vr(t5)}, 3, {vr(t5)}")
        A(f"v_lshl_add_u32 {vr(vSTw)}, {vr(t5)}, 9, {vr(vSTr)}")
        A(f"s_lshl_b32 {sr(sT0)}, {sr(sW)}, 2")
        A(f"v_add_u32 {vr(vSTw)}, {sr(sT0)}, {vr(vSTw)}")

    def main_kernel(self):
        A, lab, c = self.A, self.lab, self.c
        opt = self.opt
        K1 = NAME + "_kernel"
        self.L += [f".globl {K1}", ".p2align 8", f".type {K1},@function"]
        lab(K1)
        A("s_cmp_ge_u32 s2, 256")
        A("s_cbranch_scc1 L_end")
        if opt.get("only"):
            A("s_bitcmp1_b32 s2, 7")
            A("s_cbranch_scc%d L_end" % (1 if opt["only"] == "B" else 0))
        if opt.get("dbg"):
            A("s_memrealtime s[76:77]")
            A("s_waitcnt lgkmcnt(0)")
            A("v_mov_b32 v23, s76")
            A("s_memtime s[76:77]")
            A("s_waitcnt lgkmcnt(0)")
            A("s_mov_b32 s78, s76")
        A(f"s_load_dwordx8 {sr(44,8)}, s[0:1], 40")
        A(f"s_load_dwordx2 {sr(52,2)}, s[0:1], 72")
        A(f"s_load_dwordx8 {sr(32,8)}, s[0:1], 0")
        A(f"s_load_dwordx2 {sr(40,2)}, s[0:1], 32")
        A(f"s_load_dwordx2 {sr(54,2)}, s[0:1], 96")
        if opt.get("stamps"):
            A(f"v_mov_b32 {vr(23)}, 0")
            A(f"s_mov_b32 s78, {-(opt.get('skip', 1) - 1)}")
        if opt.get("prost"):
            self.stamp(15)
        vL = vT + 6
        A(f"v_lshrrev_b32 {vr(vT)}, 6, v0")
        A(f"v_and_b32 {vr(vL)}, 63, v0")
        A(f"v_readfirstlane_b32 {sr(sW)}, {vr(vT)}")
        A(f"s_and_b32 {sr(sG)}, s2, 7")
        A(f"s_lshr_b32 {sr(sT0)}, s2, 3")
        A(f"s_and_b32 {sr(sB)}, {sr(sT0)}, 15")
        A(f"s_lshr_b32 {sr(sRole)}, {sr(sT0)}, 4")
        A(f"s_and_b32 {sr(sT1)}, {sr(sW)}, 3")
        A(f"s_lshl_b32 {sr(sW1024)}, {sr(sT1)}, 10")
        c("DMA lane offsets: row = 4(w&3) + (l>>4) (+16), 32-byte chunk XOR key(row)")
        t0, t1, t2, t3, t4, t5 = vT, vT + 1, vT + 2, vT + 3, vT + 4, vT + 5
        A(f"v_lshrrev_b32 {vr(t0)}, 4, {vr(vL)}")
        A(f"s_lshl_b32 {sr(sT0)}, {sr(sW)}, 1")
        A(f"s_and_b32 {sr(sT0)}, {sr(sT0)}, 4")
        A(f"v_or_b32 {vr(t1)}, {sr(sT0)}, {vr(t0)}")
        A(f"v_bfe_u32 {vr(t2)}, {vr(vL)}, 1, 3")
        A(f"v_xor_b32 {vr(t1)}, {vr(t1)}, {vr(t2)}")
        A(f"v_lshlrev_b32 {vr(t1)}, 5, {vr(t1)}")
        A(f"v_and_b32 {vr(t2)}, 1, {vr(vL)}")
        A(f"v_lshl_or_b32 {vr(vChunk)}, {vr(t2)}, 4, {vr(t1)}")
        A(f"s_lshl_b32 {sr(sT0)}, {sr(sT1)}, 2")
        A(f"v_add_u32 {vr(vRow)}, {sr(sT0)}, {vr(t0)}")
        A(f"v_lshl_add_u32 {vr(vCur[0])}, {vr(vRow)}, {ROWSH[T_WQ]}, {vr(vChunk)}")
        c("first B head: 4g for the A role, 4g+1 for the B role")
        A(f"s_lshl_b32 {sr(sT4)}, {sr(sG)}, 2")
        A(f"s_add_u32 {sr(sT4)}, {sr(sT4)}, 1")
        A(f"s_sub_u32 {sr(sT4)}, {sr(sT4)}, {sr(sRole)}")
        A(f"s_lshl_b32 {sr(sE)}, {sr(sT4)}, 8")
        A(f"s_getpc_b64 {sr(sT2,2)}")
        lab("L_pc0")
        A(f"s_lshl_b32 {sr(sT0)}, {sr(sRole)}, 8")
        A(f"s_add_u32 {sr(sT0)}, {sr(sT0)}, L_table-L_pc0")
        A(f"v_lshl_add_u32 {vr(vTab)}, {vr(vL)}, 2, {sr(sT0)}")
        A(f"global_load_dword {vr(vTab)}, {vr(vTab)}, {sr(sT2,2)}")
        self.x_setup(vY)
        if opt.get("prost"):
            self.stamp(15)
        A(f"s_bitcmp1_b32 {sr(sW)}, 2")
        A("s_waitcnt lgkmcnt(0)")
        self.srd(SRD_AUX, sBx, 786432)
        self.srd(SRD_WQ, sBwq, 4194304)
        self.srd(SRD_CUR[0], sBwq, 4194304)
        self.srd(SRD_CUR[1], sBwq, 4194304)
        A("s_cbranch_scc1 L_pro_ld")
        self.weight_prefetch([(sBwq, True, 0), (sAwq, True, 0), (sAwq, True, 2)][:opt.get("pfn", 3)])
        if opt.get("xapf", 1):
            A(f"s_cmp_eq_u32 {sr(sRole)}, 1")
            A("s_cbranch_scc1 L_pro_done")
            A(f"s_mov_b64 {sr(SRD_CUR[1],2)}, {sr(sAx,2)}")
            A(f"s_mov_b32 {sr(SRD_CUR[1]+2)}, 786432")
            A(f"s_lshl_b32 {sr(sT0)}, {sr(sB)}, 2")
            A(f"s_add_u32 {sr(sT0)}, {sr(sT0)}, {sr(sW)}")
            A(f"s_mul_i32 {sr(sT0)}, {sr(sT0)}, 12288")
            for k in range(12):
                if k and k % 4 == 0:
                    A(f"s_add_u32 {sr(sT0)}, {sr(sT0)}, 4096")
                A(f"buffer_load_dwordx4 v[156:159], {vr(vT+1)}, {sr(SRD_CUR[1],4)}, {sr(sT0)} offen offset:{(k%4)*1024}")
        A("s_branch L_pro_done")
        lab("L_pro_ld")
        for k in range(24):
            for blk in {0: {0: (0, 1, 2, 3)}, 1: {0: (0,), 8: (1, 2, 3)}}[opt.get("xorder", 0)].get(k, ()):
                self.x_block(vY, blk)
            if opt.get("prost") and k % 8 == 0:
                self.stamp(15)
            A(f"s_add_u32 m0, {sr(sW1024)}, {k*4096}")
            if k:
                A(f"s_add_u32 {sr(sE)}, {sr(sE)}, {16*8192}")
            else:
                A("s_nop 0")
            A(f"buffer_load_dwordx4 {vr(vCur[0])}, {sr(SRD_WQ,4)}, {sr(sE)} offen{self.wf} lds")
        if opt.get("prost"):
            self.stamp(15)
            for n in (33, 24, 16, 8, 0):
                A(f"s_waitcnt vmcnt({n})")
                self.stamp(14)
        lab("L_pro_done")
        self.frag_addrs()
        self.srd(SRD_WQW, sAwq, 4194304)
        A(f"s_cmp_eq_u32 {sr(sRole)}, 1")
        for d, pa, pb, za, zb in ((SRD_K, sAk, sBk, 16777216, 67108864), (SRD_V, sAv, sBv, 16777216, 67108864), (SRD_WO, sAwo, sBwo, 4194304, 4194304)):
            A(f"s_cselect_b64 {sr(d,2)}, {sr(pa,2)}, {sr(pb,2)}")
            A(f"s_mov_b32 {sr(d+2)}, {zb}")
            if za != zb:
                A(f"s_cselect_b32 {sr(d+2)}, {za}, {sr(d+2)}")
            A(f"s_mov_b32 {sr(d+3)}, 0x20000")
        A(f"s_mov_b64 {sr(SRD_AUX,2)}, {sr(sAx,2)}")
        c("tile table: entry = constant + base selected by bits 4:3 (Wq head, B K/V unit, Wo head, A K/V unit)")
        bq, bkv, bo, bka = sT0, sT1, sT2, sT3
        A(f"s_lshl_b32 {sr(bq)}, {sr(sT4)}, 8")
        A(f"s_lshl_b32 {sr(bkv)}, {sr(sB)}, 5")
        A(f"s_add_u32 {sr(bkv)}, {sr(bkv)}, {sr(sT4)}")
        A(f"s_lshl_b32 {sr(bkv)}, {sr(bkv)}, 17")
        A(f"s_lshl_b32 {sr(bo)}, {sr(sT4)}, 17")
        A(f"s_lshl_b32 {sr(bka)}, {sr(sB)}, 3")
        A(f"s_add_u32 {sr(bka)}, {sr(bka)}, {sr(sG)}")
        A(f"s_lshl_b32 {sr(bka)}, {sr(bka)}, 17")
        A(f"s_cmp_eq_u32 {sr(sRole)}, 1")
        A(f"s_cselect_b32 {sr(sHead)}, 1, 3")
        A(f"v_mov_b32 {vr(vT+1)}, {sr(bq)}")
        self.is_loader("L_tabw")
        A("s_waitcnt vmcnt(0)")
        lab("L_tabw")
        A("s_waitcnt vmcnt(36)")
        A(f"v_bfe_u32 {vr(vT)}, {vr(vTab)}, 3, 2")
        for k, base in ((1, bkv), (2, bo), (3, bka)):
            A(f"v_cmp_eq_u32 vcc, {k}, {vr(vT)}")
            A(f"v_mov_b32 {vr(vT+2)}, {sr(base)}")
            A("s_nop 0")
            A(f"v_cndmask_b32 {vr(vT+1)}, {vr(vT+1)}, {vr(vT+2)}, vcc")
        A(f"v_add_u32 {vr(vTab)}, {vr(vTab)}, {vr(vT+1)}")
        A(f"s_mov_b32 {sr(sIdx)}, 3")
        A(f"s_mov_b32 {sr(sC)}, 0")
        A(f"v_readlane_b32 {sr(sE)}, {vr(vTab)}, 3")

        def const(ty, hh, t, a_unit=False):
            if ty == T_WQ:
                return t * 128 * 8192 + hh * 256 + ty
            if ty == T_WQW:
                return t * 32 * 8192 + ty
            if ty in (T_K, T_V):
                return hh * 131072 + t * 32768 + ty + (24 if a_unit else 8)
            return (hh * 128 + 32 * t) * 1024 + ty + 16

        tb = [const(T_WQ, 0, t) for t in range(4)] + [const(T_K, 0, t) for t in range(4)]
        tb += [const(T_WQ, hh, t) for hh in (1, 2) for t in range(4)]
        tb += [const(ty, 0, t) for ty in (T_V, T_WO) for t in range(4)]
        tb += [const(ty, hh, t) for hh in (1, 2) for ty in (T_K, T_V, T_WO) for t in range(4)]
        ta = [const(T_WQ, 0, t) for t in range(4)] + [const(T_WQW, 0, t) for t in range(16)]
        ta += [const(ty, 0, t, True) for t in range(4) for ty in (T_K, T_V)]
        ta += [const(T_WO, hh, t) for hh in range(4) for t in range(4)]
        ta += [const(ty, 0, t) for ty in (T_K, T_V, T_WO) for t in range(4)]
        self.table = tb + [NULL_OFF] * (64 - len(tb)) + ta + [NULL_OFF] * (64 - len(ta))
        A(f"s_mov_b32 {sr(sScale)}, {f32(math.log2(math.e) / math.sqrt(128.0))}")
        A(f"s_mov_b32 {sr(sThr)}, 0x41000000")
        A(f"s_mov_b32 {sr(sZero)}, 1")
        self.stamp(0)

        c("Q projection of the first B head (scaled by log2(e)/sqrt(128)); the hook streams in the A-branch x behind it")
        A(f"s_mov_b32 {sr(sHook)}, {sr(sRole)}")
        A(f"s_mov_b32 {sr(sThrot)}, 0")
        A(f"s_xor_b32 {sr(sLate)}, {sr(sRole)}, 1")
        A(f"s_call_b64 {sr(LINK_S,2)}, L_qproj")
        def q_write(src, blk):
            A(f"v_xor_b32 {vr(vT+6)}, 32, {vr(vQW)}")
            for m in range(2):
                for n in range(3):
                    A(f"ds_write_b64 {vr(vT+6 if m else vQW)}, {vr(src+(m*3+n)*2,2)} offset:{n*XN+blk*BLK}")

        self.is_loader("L_q0done")
        q_write(vAcc, 4)
        A(f"s_cmp_eq_u32 {sr(sRole)}, 1")
        A("s_cbranch_scc1 L_q0done")
        A("s_barrier")
        self.weight_prefetch([(sBwq, True, 2), (sBwo, False, 0), (sBwo, False, 2), (sAwo, False, 0), (sAwo, False, 2)], single=True)
        lab("L_q0done")
        self.stamp(1)
        A(f"s_cmp_eq_u32 {sr(sRole)}, 1")
        A(f"s_mov_b32 {sr(sThrot)}, 0")
        A("s_cbranch_scc0 L_bpath")
        c("GQA group: four query heads sharing one K/V")
        A(f"s_mov_b32 {sr(sHook)}, 0")
        A(f"s_mov_b32 {sr(sBlk)}, 0")
        A(f"s_mov_b32 {sr(sBlkEnd)}, {3*BLK}")
        A(f"s_call_b64 {sr(LINK_S,2)}, L_wide")
        c("wave c < 4 holds Q of head c; x is dead after the drain barrier")
        A(f"s_bitcmp1_b32 {sr(sW)}, 2")
        A("s_cbranch_scc1 L_qa_done")
        A(f"s_mul_i32 {sr(sT0)}, {sr(sW)}, {BLK}")
        self.act_write_addr(sT0, None)
        A(f"v_mov_b32 {vr(vT+4)}, {sr(sScale)}")
        def qpack(jp):
            g = []
            for k in range(6 * jp, 6 * jp + 6):
                y = vY + k * 4
                g += [[self.pkmul(y, vT + 4)], [self.pkmul(y + 2, vT + 4)],
                      [f"v_cvt_pk_bf16_f32 {vr(y)}, {vr(y)}, {vr(y+1)}"], [f"v_cvt_pk_bf16_f32 {vr(y+1)}, {vr(y+2)}, {vr(y+3)}"]]
            return g

        self.wide_drain(qpack)
        A("s_barrier")
        for j in range(8):
            if j:
                A(f"v_xor_b32 {vr(vT+3)}, {j*32}, {vr(vT+1)}")
            for n in range(3):
                y = vY + (j * 3 + n) * 4
                A(f"ds_write_b64 {vr(vT+3 if j else vT+1)}, {vr(y,2)} offset:{n*XN}")
        lab("L_qa_done")
        self.stamp(7)
        c("wave = (head w>>1, key half w&1); O slot j holds d tile j ^ 4(w&1)")
        A(f"s_and_b32 {sr(sT0)}, {sr(sW)}, 1")
        A(f"s_lshl_b32 {sr(sT2)}, {sr(sT0)}, 14")
        A(f"s_lshl_b32 {sr(sT3)}, {sr(sT0)}, 7")
        A(f"s_lshl_b32 {sr(sT0)}, {sr(sT0)}, 10")
        A(f"s_lshr_b32 {sr(sT1)}, {sr(sW)}, 1")
        A(f"s_mul_i32 {sr(sBlk)}, {sr(sT1)}, {BLK}")
        A(f"s_lshl_b32 {sr(sT1)}, {sr(sT1)}, 13")
        A(f"s_add_u32 {sr(sT0)}, {sr(sT0)}, {sr(sT1)}")
        A(f"s_sub_u32 {sr(sT0)}, {sr(sT2)}, {sr(sT0)}")
        A(f"v_add_u32 {vr(vKa)}, {sr(sT0)}, {vr(vKb)}")
        A(f"v_xor_b32 {vr(vTRa)}, {sr(sT3)}, {vr(vTR0)}")
        A(f"v_add_u32 {vr(vTRa)}, {sr(sT2)}, {vr(vTRa)}")
        c("slot queue: the three ring slots in order, then the activation region as a fourth slot")
        for k in range(3):
            A(f"s_mov_b32 {sr(sQ[k])}, {sr(sC)}")
            self.weave([], self.rot())
        A(f"s_mov_b32 {sr(sQ[3])}, {XB}")
        A(f"v_add_u32 {vr(vT)}, {sr(sQ[0])}, {vr(vKa)}")
        for s in range(1, 4):
            A(f"v_xor_b32 {vr(vT+s)}, {s*64}, {vr(vT)}")
        for n in range(3):
            self.zero(vNm[n], 4)
            A(f"v_mov_b32 {vr(vLs+n)}, 0")
        A(f"s_mov_b32 {sr(sFix)}, 0")
        A(f"s_mov_b32 {sr(sIter)}, 4")

        def sa(sg, n, t):
            return vS + ((sg * 3 + n) * 2 + t) * 4

        tiles = [(0, 0), (0, 1), (1, 0), (1, 1)]

        def kreads(j):
            sg, t = tiles[j]
            for s in range(4):
                A(f"ds_read_b128 {vr(vAfA+((j%2)*4+s)*4,4)}, {vr(vT+s)} offset:{sg*8192+t*1024}")

        def sm_max(sg):
            f = []
            for n in range(3):
                f += [[x] for x in self.maxn(vT + n, [sa(sg, n, 0) + r for r in range(8)])]
            return f

        def sm_check(lr, ln):
            return [[f"v_max3_f32 {vr(vT+3)}, {vr(vT)}, {vr(vT+1)}, {vr(vT+2)}"],
                    [f"v_cmp_lt_f32 vcc, {sr(sThr)}, {vr(vT+3)}", f"s_cbranch_vccnz {lr}", ln + ":"]]

        def sm_exp(sg):
            f = []
            for n in range(3):
                b = sa(sg, n, 0)
                for r in range(8):
                    f.append([f"v_exp_f32 {vr(b+r)}, {vr(b+r)}"])
                    if r >= 2:
                        f.append([f"v_add_f32 {vr(vLs+n)}, {vr(vLs+n)}, {vr(b+r-2)}"])
                f.append([f"v_add_f32 {vr(vLs+n)}, {vr(vLs+n)}, {vr(b+6)}"])
                f.append([f"v_add_f32 {vr(vLs+n)}, {vr(vLs+n)}, {vr(b+7)}"])
                for r in range(4):
                    f.append([f"v_cvt_pk_bf16_f32 {vr(b+r)}, {vr(b+2*r)}, {vr(b+2*r+1)}"])
            return f

        def qrot(p):
            return [[f"s_bitcmp1_b32 {sr(sW)}, 2", f"s_cselect_b32 {sr(sI[p])}, {sr(sQ[0])}, {sr(sQ[3])}"],
                    [f"s_add_u32 {sr(sI[p])}, {sr(sI[p])}, {sr(sT1)}"],
                    [f"s_mov_b32 {sr(sT0)}, {sr(sQ[0])}"], [f"s_mov_b32 {sr(sQ[0])}, {sr(sQ[1])}"],
                    [f"s_mov_b32 {sr(sQ[1])}, {sr(sQ[2])}"], [f"s_mov_b32 {sr(sQ[2])}, {sr(sQ[3])}"],
                    [f"s_mov_b32 {sr(sQ[3])}, {sr(sT0)}"]]

        def aprep(p):
            return self.prep(p, False) + [[f"s_and_b32 {sr(sHalf[p])}, {sr(sHalf[p])}, {sr(sT2)}"],
                                          [f"s_add_u32 {sr(sOff[p])}, {sr(sOff[p])}, {sr(sHalf[p])}"]]

        def kstep(first):
            u = "f" if first else "l"
            self.head(8 if first else 4)
            if first:
                self.is_loader("L_att1")
                self.load_bfrags_dyn(vAfA + 28, QA)
                lab("L_att1")
            kreads(0)
            kreads(1)
            prim = []
            for j in range(4):
                sg, t = tiles[j]
                prim.append(self.D1(j, 1, first))
                for s in range(4):
                    prim.append(("w", [f"  s_waitcnt lgkmcnt({(7-s) if j < 3 else (3-s)})"]))
                    for n in range(3):
                        prim.append(self.M(sa(sg, n, t), vAfA + ((j % 2) * 4 + s) * 4, QA[n * 4 + s], vNm[n] if s == 0 else None))
                if j < 2:
                    prim.append(("r", self.cap(kreads, j + 2)))
                if j == 1:
                    half = len(prim)
            zf = [[f"v_mov_b64 {vr(vO+k,2)}, 0"] for k in range(0, 96, 2)] if first else []
            self.weave(prim[:half], qrot(0) + aprep(0) + zf, per=3 if first else 1)
            fill = sm_max(0)
            if first:
                fill.append([f"s_branch L_r0first", "L_n0f:"])
            else:
                fill += sm_check("L_r0", "L_n0l")
            fill += sm_exp(0)
            self.weave(prim[half:], fill, per=4, start=6)
            A(f"s_cmp_eq_u32 {sr(sFix)}, 0")
            A("s_nop 6")
            A(f"s_cbranch_scc0 L_r0b{u}")
            lab(f"L_n0b{u}")
            self.weave([], sm_max(1) + sm_check(f"L_r1{u}", f"L_n1{u}"))
            A(f"v_add_u32 {vr(vT)}, {sr(sQ[0])}, {vr(vTRa)}")

        def vreads(q):
            sg, mt = q // 8, q % 8
            a = vT if mt == 0 else vT + 1 + (mt % 2)
            if mt:
                A(f"v_xor_b32 {vr(a)}, {mt*32}, {vr(vT)}")
            self.tr_pair(vAfA + (q % 8) * 4, a, sg * 8192)

        c("waves 4-7 run one interval behind waves 0-3")
        A(f"s_lshl_b32 {sr(sT1)}, {sr(sW)}, 10")
        A(f"s_mov_b32 {sr(sIdx)}, 23")
        A(f"v_readlane_b32 {sr(sE)}, {vr(vTab)}, 23")
        A(f"s_bitcmp1_b32 {sr(sW)}, 2")
        A(f"s_cselect_b32 {sr(sT2)}, -1, 0")
        A("s_cbranch_scc0 L_att0")
        A(f"s_add_u32 {sr(sI[1])}, {sr(sQ[3])}, {sr(sT1)}")
        self.weave([], aprep(1))
        self.head(16)
        self.load_bfrags_dyn(vAfA, QA)
        lab("L_att0")
        kstep(True)
        lab("L_attA")
        self.head(4)
        for q in range(6):
            vreads(q)
        prim = []
        for q in range(16):
            sg, mt = q // 8, q % 8
            if q % 2 == 0 and q < 8:
                prim.append(self.D1(q // 2, 0))
            if q + 6 < 16:
                prim.append(("r", self.cap(vreads, q + 6)))
                lastr = len(prim)
            prim.append(("w", [f"  s_waitcnt lgkmcnt({2*min(6, 15-q)})"]))
            for n in range(3):
                prim.append(self.M(vO + (mt * 3 + n) * 4, vAfA + (q % 8) * 4, sa(sg, n, 0)))
            if q == 7:
                half = len(prim)
        self.weave(prim[:half], sm_exp(1), per=3)
        A(f"s_cmp_eq_u32 {sr(sIter)}, 1")
        A("s_cbranch_scc1 L_attlast")
        fill = qrot(1) + aprep(1)
        fill.append((lastr - half, [f"v_add_u32 {vr(vT)}, {sr(sQ[0])}, {vr(vKa)}"]))
        for s in range(1, 4):
            fill.append([f"v_xor_b32 {vr(vT+s)}, {s*64}, {vr(vT)}"])
        self.weave(prim[half:], fill, per=2)
        self.stamp(13)
        A(f"s_sub_u32 {sr(sIter)}, {sr(sIter)}, 1")
        kstep(False)
        A("s_branch L_attA")
        lab("L_attlast")
        self.is_loader("L_attlast_y")
        self.weave(prim[half:], qrot(1) + aprep(1), per=2)
        self.head(None)
        for k in range(4):
            self.L += self.D1(k, 1)[1]
        A("s_branch L_attdone")
        lab("L_attlast_y")
        self.weave(prim[half:], [])
        lab("L_attdone")
        self.stamp(8)
        c("merge the two key halves of each head")
        self.srd(SRD_K, sBk, 67108864)
        self.srd(SRD_V, sBv, 67108864)
        self.allreduce3(vLs, vT, "v_add_f32")
        self.lane(vT + 3)
        A(f"v_and_b32 {vr(vT)}, 15, {vr(vT+3)}")
        A(f"v_lshlrev_b32 {vr(vT)}, 3, {vr(vT)}")
        A(f"s_mul_i32 {sr(sT0)}, {sr(sW)}, 384")
        A(f"s_add_u32 {sr(sT0)}, {sr(sT0)}, {ST}")
        A(f"v_add_u32 {vr(vT+1)}, {sr(sT0)}, {vr(vT)}")
        A(f"s_xor_b32 {sr(sT1)}, {sr(sW)}, 1")
        A(f"s_mul_i32 {sr(sT0)}, {sr(sT1)}, 384")
        A(f"s_add_u32 {sr(sT0)}, {sr(sT0)}, {ST}")
        A(f"v_add_u32 {vr(vT+2)}, {sr(sT0)}, {vr(vT)}")
        for n in range(3):
            A(f"v_mov_b32 {vr(vAfA+2*n)}, {vr(vNm[n])}")
            A(f"v_mov_b32 {vr(vAfA+2*n+1)}, {vr(vLs+n)}")
            A(f"ds_write_b64 {vr(vT+1)}, {vr(vAfA+2*n,2)} offset:{n*128}")
        self.head(None)
        for n in range(3):
            A(f"ds_read_b64 {vr(vAfA+8+2*n,2)}, {vr(vT+2)} offset:{n*128}")
        A(f"s_mul_i32 {sr(sT0)}, {sr(sW)}, 6144")
        A(f"s_add_u32 {sr(sT0)}, {sr(sT0)}, {XB}")
        A(f"s_mul_i32 {sr(sT1)}, {sr(sT1)}, 6144")
        A(f"s_add_u32 {sr(sT1)}, {sr(sT1)}, {XB}")
        A(f"v_lshlrev_b32 {vr(vT)}, 4, {vr(vT+3)}")
        A(f"v_add_u32 {vr(vT+1)}, {sr(sT0)}, {vr(vT)}")
        A(f"v_add_u32 {vr(vT+2)}, {sr(sT1)}, {vr(vT)}")
        A("s_waitcnt lgkmcnt(0)")
        fr = [vAfA + 20 + 2 * n for n in range(3)]
        for n in range(3):
            mo, lo = vAfA + 8 + 2 * n, vAfA + 9 + 2 * n
            m, f, fo = vAfA + 16 + n, fr[n], fr[n] + 1
            A(f"v_min_f32 {vr(m)}, {vr(vNm[n])}, {vr(mo)}")
            A(f"v_sub_f32 {vr(f)}, {vr(m)}, {vr(vNm[n])}")
            A(f"v_sub_f32 {vr(fo)}, {vr(m)}, {vr(mo)}")
            A(f"v_exp_f32 {vr(f)}, {vr(f)}")
            A(f"v_exp_f32 {vr(fo)}, {vr(fo)}")
            A("s_nop 0")
            A(f"v_mul_f32 {vr(m)}, {vr(f)}, {vr(vLs+n)}")
            A(f"v_fma_f32 {vr(m)}, {vr(fo)}, {vr(lo)}, {vr(m)}")
            A(f"v_rcp_f32 {vr(m)}, {vr(m)}")
            A("s_nop 0")
            A(f"v_mul_f32 {vr(f)}, {vr(f)}, {vr(m)}")
        c("slots 4-7 go to the partner wave, scaled and packed to bf16")
        for k in range(24):
            o = vO + 48 + 2 * k
            A(self.pkmul(o, fr[(k // 2) % 3]))
        for k in range(24):
            o = vO + 48 + 2 * k
            A(f"v_cvt_pk_bf16_f32 {vr(vS+k)}, {vr(o)}, {vr(o+1)}")
            if k % 4 == 3:
                A(f"ds_write_b128 {vr(vT+1)}, {vr(vS+k-3,4)} offset:{(k//4)*1024}")
        A(f"s_and_b32 {sr(sT0)}, {sr(sW)}, 1")
        A(f"s_lshl_b32 {sr(sT0)}, {sr(sT0)}, 3")
        A(f"s_mov_b32 {sr(sT2)}, 0xffff0000")
        self.head(None)
        for k in range(6):
            A(f"ds_read_b128 {vr(vS+24+4*k,4)}, {vr(vT+2)} offset:{k*1024}")
        self.act_write_addr(sBlk, sT0)
        self.head(0)
        for jj in range(4):
            if jj:
                A(f"v_xor_b32 {vr(vT+3)}, {jj*32}, {vr(vT+1)}")
            for n in range(3):
                k = (jj * 3 + n) * 2
                for h in range(2):
                    x = vS + 2 * h
                    A(f"v_lshlrev_b32 {vr(x)}, 16, {vr(vS+24+k+h)}")
                    A(f"v_and_b32 {vr(x+1)}, {sr(sT2)}, {vr(vS+24+k+h)}")
                    A(f"v_pk_fma_f32 {vr(x,2)}, {vr(vO+2*(k+h),2)}, {vr(fr[n],2)}, {vr(x,2)} op_sel_hi:[1,0,1]")
                    A(f"v_cvt_pk_bf16_f32 {vr(vS+4+(k+h)%8)}, {vr(x)}, {vr(x+1)}")
                A(f"ds_write_b64 {vr(vT+3 if jj else vT+1)}, {vr(vS+4+k%8,2)} offset:{n*XN}")
        A(f"s_mov_b32 {sr(sZero)}, 1")
        self.stamp(9)
        A(f"s_mov_b32 {sr(sBlk)}, 0")
        A(f"s_call_b64 {sr(LINK_S,2)}, L_wide")
        A(f"s_lshl_b32 {sr(sT0)}, {sr(sB)}, 3")
        A(f"s_add_u32 {sr(sT0)}, {sr(sT0)}, {sr(sG)}")
        A(f"s_mul_i32 {sr(sT0)}, {sr(sT0)}, {PART}")
        A(f"s_add_u32 {sr(sT0)}, {sr(sT0)}, {PART_A_BASE}")
        self.is_loader("L_apk")
        self.pack_y()
        lab("L_apk")
        A(f"s_mov_b32 {sr(sPend)}, 1")
        self.srd(SRD_WO, sBwo, 4194304)
        A(f"s_mov_b32 {sr(sZero)}, 1")
        self.frag_addrs()
        self.stamp(10)
        A(f"s_mov_b32 {sr(sThrot)}, 0")
        A("s_branch L_bpath2")
        lab("L_bpath")
        A(f"s_mov_b32 {sr(sPend)}, 0")
        lab("L_bpath2")
        A(f"s_mov_b32 {sr(sBlk)}, {4*BLK}")

        lab("L_head")
        c("scores of one B head")
        if opt.get("thr"):
            A(f"s_lshl_b32 {sr(sT0)}, {sr(sHead)}, 2")
            A(f"s_add_u32 {sr(sT0)}, {sr(sT0)}, 0")
            A(f"s_lshr_b32 {sr(sThrot)}, {opt.get('thm', 0)}, {sr(sT0)}")
            A(f"s_andn2_b32 {sr(sThrot)}, {sr(sThrot)}, {sr(sRole)}")
            A(f"s_and_b32 {sr(sThrot)}, {sr(sThrot)}, 1")
        A(f"v_add_u32 {vr(vT)}, {sr(sC)}, {vr(vKb)}")
        for s in range(1, 4):
            A(f"v_xor_b32 {vr(vT+s)}, {s*64}, {vr(vT)}")
        rf = [vQs + 12, vQs + 14, vQs + 16]
        sm = [vQs + 18, vQs + 20, vQs + 22]

        def st(t, n):
            return vS + (t * 3 + n) * 4

        def b_sub(t):
            return [[f"v_pk_add_f32 {vr(st(t,n)+r,2)}, {vr(st(t,n)+r,2)}, {vr(rf[n],2)} op_sel_hi:[1,0] neg_lo:[0,1] neg_hi:[0,1]"]
                    for n in range(3) for r in (0, 2)]

        def b_check(t):
            f = [[x] for x in self.maxn(vT + 5, [st(t, 0) + r for r in range(12)])]
            return f + [[f"v_cmp_lt_f32 vcc, {sr(sThr)}, {vr(vT+5)}", f"s_cbranch_vccnz L_rb{t}", f"L_nb{t}:"]]

        def b_exp(t):
            f = [[f"v_exp_f32 {vr(st(t,0)+r)}, {vr(st(t,0)+r)}"] for r in range(12)]
            for n in range(3):
                b = st(t, n)
                if t == 0:
                    f.append([f"v_pk_add_f32 {vr(sm[n],2)}, {vr(b,2)}, {vr(b+2,2)}"])
                else:
                    f.append([f"v_pk_add_f32 {vr(sm[n],2)}, {vr(sm[n],2)}, {vr(b,2)}"])
                    f.append([f"v_pk_add_f32 {vr(sm[n],2)}, {vr(sm[n],2)}, {vr(b+2,2)}"])
                f.append([f"v_cvt_pk_bf16_f32 {vr(b)}, {vr(b)}, {vr(b+1)}"])
                f.append([f"v_cvt_pk_bf16_f32 {vr(b+1)}, {vr(b+2)}, {vr(b+3)}"])
            return f

        def b_max0():
            f = []
            for n in range(3):
                f += [[x] for x in self.maxn(sm[0] + n, [st(0, n) + r for r in range(4)])]
            f.append([x.strip() for x in self.cap(self.reduce4, sm[0], "v_max_f32")])
            f.append([f"ds_write_b32 {vr(vSTw)}, {vr(sm[0])}"])
            return f

        def b_ref0():
            f = [["s_waitcnt lgkmcnt(0)"] + [f"v_max_f32 {vr(rf[n])}, {vr(rf[n])}, {vr(rf[n]+1)}" for n in range(3)]]
            for sw in ("v_permlane32_swap_b32", "v_permlane16_swap_b32"):
                f.append([f"v_mov_b32 {vr(rf[n]+1)}, {vr(rf[n])}" for n in range(3)] + ["s_nop 1"] +
                         [f"{sw} {vr(rf[n])}, {vr(rf[n]+1)}" for n in range(3)] + ["s_nop 1"] +
                         [f"v_max_f32 {vr(rf[n])}, {vr(rf[n])}, {vr(rf[n]+1)}" for n in range(3)])
            return f

        for T in range(5):
            p = T % 2
            prim, last = [], {}
            self.head(16 if T == 0 else (8 if T < 4 else None))
            if T == 0:
                self.load_bfrags_dyn(vKf, QF)
                A(f"v_mov_b32 {vr(vT+5)}, {FLAG}")
                A(f"v_mov_b32 {vr(vT+6)}, 0")
                A(f"ds_write_b32 {vr(vT+5)}, {vr(vT+6)}")
            if T == 3:
                l = self.new("pw")
                self.is_loader(l)
                A("s_waitcnt vmcnt(0)")
                lab(l)
                for n in range(3):
                    A(f"ds_read_b64 {vr(rf[n],2)}, {vr(vT+5)} offset:{n*512}")
            for s in range(4):
                if T > 0:
                    for n in range(3):
                        prim.append(self.M(st(T - 1, n), vKf + 4 * s, QF[n * 4 + s], 0 if s == 0 else None))
                if T < 4:
                    prim.append(("r", [f"  ds_read_b128 {vr(vKf+4*s,4)}, {vr(vT+s)}"]))
                    last[s] = len(prim)
                if T > 0:
                    prim.append(self.D(s, p, True if T < 2 else None, True))
            fill = []
            if T == 3:
                fill += b_ref0()
            if T < 4:
                fill += self.prep(1 - p)
            if T == 2:
                fill += b_max0()
                fill.append([x.strip() for x in self.cap(self.lane, vT + 5)] +
                            [f"v_lshrrev_b32 {vr(vT+5)}, 4, {vr(vT+5)}", f"v_lshl_add_u32 {vr(vT+5)}, {vr(vT+5)}, 3, {vr(vSTr)}"])
            if T == 3:
                fill += b_sub(0) + b_exp(0) + b_sub(1) + b_check(1) + b_exp(1)
            if T == 4:
                fill += b_sub(2) + b_check(2) + b_exp(2)
            if T < 3:
                fill.append([f"v_add_u32 {vr(vT+4)}, {sr(sC)}, {vr(vKb)}"])
                for s in range(4):
                    fill.append((last[s], [f"v_xor_b32 {vr(vT+s)}, {s*64}, {vr(vT+4)}"]))
            self.weave(prim, fill, per=[2, 2, 3, 8, 4][T])
        self.stamp(2)
        c("last score tile; a wave that had to raise its reference left a flag")
        A(f"v_mov_b32 {vr(vT+4)}, {FLAG}")
        A("s_nop 6")
        self.weave([], b_sub(3) + b_check(3) + b_exp(3))
        self.head(None)
        A(f"ds_read_b32 {vr(vT+4)}, {vr(vT+4)}")
        for n in range(3):
            A(f"v_add_f32 {vr(vT+n)}, {vr(sm[n])}, {vr(sm[n]+1)}")
        A("s_waitcnt lgkmcnt(0)")
        A(f"v_cmp_ne_u32 vcc, 0, {vr(vT+4)}")
        A("s_cbranch_vccnz L_bfix")
        lab("L_bfixed")
        self.reduce4(vT, "v_add_f32")
        A(f"ds_write_b32 {vr(vSTw)}, {vr(vT)} offset:1536")
        self.bsm = (rf, sm, st)
        if opt.get("thr"):
            A(f"s_lshl_b32 {sr(sT0)}, {sr(sHead)}, 2")
            A(f"s_add_u32 {sr(sT0)}, {sr(sT0)}, 1")
            A(f"s_lshr_b32 {sr(sThrot)}, {opt.get('thm', 0)}, {sr(sT0)}")
            A(f"s_andn2_b32 {sr(sThrot)}, {sr(sThrot)}, {sr(sRole)}")
            A(f"s_and_b32 {sr(sThrot)}, {sr(sThrot)}, 1")
        c("B role, first head: remaining Q projections while x is still live")
        A(f"s_mov_b32 {sr(sHook)}, 0")
        A(f"s_cmp_eq_u32 {sr(sHead)}, 3")
        A("s_cbranch_scc0 L_noq")
        for k in range(2):
            A(f"s_mov_b32 {sr(sLate)}, {k}")
            A(f"s_call_b64 {sr(LINK_S,2)}, L_qproj")
            l = self.new("q")
            self.is_loader(l)
            for r in range(0, 12, 2):
                A(f"v_mov_b64 {vr(vQs+12*k+r,2)}, {vr(vAcc+r,2)}")
            if k:
                A("s_barrier")
            lab(l)
        self.stamp(12)
        lab("L_noq")
        for t in range(4):
            for n in range(3):
                A(f"ds_write_b64 {vr(vPW)}, {vr(st(t,n),2)} offset:{n*XN+t*BLK}")
        mreg = [vS, vS + 8, vS + 16]
        self.stamp(3)
        c("P x V")
        A(f"s_mov_b32 {sr(sHook)}, 0")
        A(f"s_mov_b32 {sr(sBlkEnd)}, 0")
        self.is_loader("L_pv_ld")
        pre1 = []
        for n in range(3):
            pre1.append(f"ds_read_b128 {vr(vS+8*n,4)}, {vr(vSTr)} offset:{n*512+1536}")
            pre1.append(f"ds_read_b128 {vr(vS+8*n+4,4)}, {vr(vSTr)} offset:{n*512+1536+16}")
        ex1 = []
        for n in range(3):
            b = vS + 8 * n
            ex1 += [[f"v_pk_add_f32 {vr(b,2)}, {vr(b,2)}, {vr(b+2,2)}"], [f"v_pk_add_f32 {vr(b+4,2)}, {vr(b+4,2)}, {vr(b+6,2)}"],
                    [f"v_pk_add_f32 {vr(b,2)}, {vr(b,2)}, {vr(b+4,2)}"], [f"v_add_f32 {vr(b)}, {vr(b)}, {vr(b+1)}"],
                    [f"v_rcp_f32 {vr(b)}, {vr(b)}"]]
        pre2 = [x.strip() for x in self.cap(q_write, vQs, 0)]
        ex2 = [[f"v_mov_b64 {vr(vQs+r,2)}, {vr(vQs+12+r,2)}"] for r in range(0, 12, 2)]
        def pend(n):
            l = self.new("pd")
            body = [x.strip() for x in self.cap(self.store_y, n, vT + 6)]
            return [f"s_cmp_eq_u32 {sr(sPend)}, 0", f"s_cbranch_scc1 {l}"] + body + [l + ":"]

        self.narrow(pre={1: pre1, 2: pre2}, extra={0: [pend(0)], 1: ex1 + [pend(1)], 2: ex2 + [pend(2)]}, early=True)
        A("s_nop 7")
        for k in range(6):
            a = vAcc + 4 * k
            A(self.pkmul(a, mreg[k % 3]))
            A(self.pkmul(a + 2, mreg[k % 3]))
            A(f"v_cvt_pk_bf16_f32 {vr(vAcc+2*k)}, {vr(a)}, {vr(a+1)}")
            A(f"v_cvt_pk_bf16_f32 {vr(vAcc+2*k+1)}, {vr(a+2)}, {vr(a+3)}")
        q_write(vAcc, 4)
        A("s_branch L_pv_done")
        lab("L_pv_ld")
        A(f"s_call_b64 {sr(LINK_S,2)}, L_load")
        lab("L_pv_done")
        self.stamp(4)
        if opt.get("thr"):
            A(f"s_lshl_b32 {sr(sT0)}, {sr(sHead)}, 2")
            A(f"s_add_u32 {sr(sT0)}, {sr(sT0)}, 2")
            A(f"s_lshr_b32 {sr(sThrot)}, {opt.get('thm', 0)}, {sr(sT0)}")
            A(f"s_andn2_b32 {sr(sThrot)}, {sr(sThrot)}, {sr(sRole)}")
            A(f"s_and_b32 {sr(sThrot)}, {sr(sThrot)}, 1")
        c("output projection")
        A(f"s_sub_u32 {sr(sHead)}, {sr(sHead)}, 1")
        A(f"s_mov_b32 {sr(sBlk)}, {4*BLK}")
        A(f"s_call_b64 {sr(LINK_S,2)}, L_wide")
        self.stamp(5)
        A(f"s_mov_b32 {sr(sBlk)}, 0")
        A(f"s_cmp_eq_u32 {sr(sHead)}, 0")
        A("s_cbranch_scc1 L_bdone")
        self.is_loader("L_head")
        self.wide_drain()
        A("s_barrier")
        A("s_branch L_head")
        lab("L_bdone")
        c("store the B-branch partial")
        A(f"s_lshl_b32 {sr(sT0)}, {sr(sB)}, 4")
        A(f"s_lshl_b32 {sr(sT1)}, {sr(sG)}, 1")
        A(f"s_add_u32 {sr(sT0)}, {sr(sT0)}, {sr(sT1)}")
        A(f"s_add_u32 {sr(sT0)}, {sr(sT0)}, {sr(sRole)}")
        A(f"s_mul_i32 {sr(sT0)}, {sr(sT0)}, {PART}")
        self.is_loader("L_bpk")
        self.pack_y()
        for n in range(3):
            self.store_y(n, vT)
        lab("L_bpk")
        self.stamp(6)
        lab("L_fin")
        if opt.get("dbg"):
            A("s_waitcnt vmcnt(0)")
            A("s_memrealtime s[76:77]")
            A("s_memtime s[68:69]")
            A("s_waitcnt lgkmcnt(0)")
            A("s_sub_u32 s68, s68, s78")
            A("v_mov_b32 v16, v23")
            A("v_mov_b32 v17, s76")
            A("v_mov_b32 v18, s68")
            A("v_mov_b32 v19, 0")
            A("s_lshl_b32 s70, s2, 4")
            A("s_add_u32 s70, s70, 0x4000000")
            A("v_mov_b32 v21, s70")
            A("s_cmp_eq_u32 s3, 0")
            A("s_cbranch_scc0 L_end")
            A("s_mov_b64 exec, 1")
            A("global_store_dwordx4 v21, v[16:19], s[54:55]")
        if opt.get("stamps"):
            A("s_waitcnt vmcnt(0)")
            self.stamp(11)
            self.srd(SRD_AUX, sWs, 268435456)
            A(f"s_lshl_b32 {sr(sT0)}, s2, 3")
            A(f"s_add_u32 {sr(sT0)}, {sr(sT0)}, {sr(sW)}")
            A(f"s_lshl_b32 {sr(sT0)}, {sr(sT0)}, 8")
            A(f"s_add_u32 {sr(sT0)}, {sr(sT0)}, {64*1024*1024}")
            self.lane(vT)
            A(f"v_lshlrev_b32 {vr(vT)}, 2, {vr(vT)}")
            A(f"buffer_store_dword {vr(23)}, {vr(vT)}, {sr(SRD_AUX,4)}, {sr(sT0)} offen")
        lab("L_end")
        A("s_endpgm")

        def sub_delta(sg):
            for n in range(3):
                for r in range(8):
                    b = sa(sg, n, 0) + r
                    A(f"v_sub_f32 {vr(b)}, {vr(b)}, {vr(vT+n)}")

        def nm_delta():
            for n in range(3):
                for r in range(4):
                    A(f"v_sub_f32 {vr(vNm[n]+r)}, {vr(vNm[n]+r)}, {vr(vT+n)}")

        def allmax1():
            for n in range(3):
                for sw in ("v_permlane32_swap_b32", "v_permlane16_swap_b32"):
                    A(f"v_mov_b32 {vr(vT+3)}, {vr(vT+n)}")
                    A("s_nop 1")
                    A(f"{sw} {vr(vT+n)}, {vr(vT+3)}")
                    A("s_nop 1")
                    A(f"v_max_f32 {vr(vT+n)}, {vr(vT+n)}, {vr(vT+3)}")

        def scale_state(with_p0):
            for n in range(3):
                A(f"v_max_f32 {vr(vT+n)}, 0, {vr(vT+n)}")
                A(f"v_exp_f32 {vr(vT+3)}, -{vr(vT+n)}")
                A("s_nop 0")
                A(f"v_mul_f32 {vr(vLs+n)}, {vr(vLs+n)}, {vr(vT+3)}")
                for mt in range(8):
                    for r in range(4):
                        o = vO + (mt * 3 + n) * 4 + r
                        A(f"v_mul_f32 {vr(o)}, {vr(o)}, {vr(vT+3)}")
                if with_p0:
                    b = sa(0, n, 0)
                    for r in range(4):
                        A(f"v_lshlrev_b32 {vr(b+4)}, 16, {vr(b+r)}")
                        A(f"v_and_b32 {vr(b+5)}, 0xffff0000, {vr(b+r)}")
                        A(f"v_mul_f32 {vr(b+4)}, {vr(b+4)}, {vr(vT+3)}")
                        A(f"v_mul_f32 {vr(b+5)}, {vr(b+5)}, {vr(vT+3)}")
                        A(f"v_cvt_pk_bf16_f32 {vr(b+r)}, {vr(b+4)}, {vr(b+5)}")

        lab("L_r0first")
        allmax1()
        sub_delta(0)
        A(f"s_mov_b32 {sr(sFix)}, 1")
        A("s_branch L_n0f")
        lab("L_r0")
        allmax1()
        scale_state(False)
        sub_delta(0)
        A(f"s_mov_b32 {sr(sFix)}, 1")
        A("s_branch L_n0l")
        for u in "fl":
            lab(f"L_r0b{u}")
            A(f"s_call_b64 {sr(LINK_S,2)}, L_fix1")
            A(f"s_branch L_n0b{u}")
            lab(f"L_r1{u}")
            allmax1()
            A(f"s_call_b64 {sr(LINK_S,2)}, L_scale1")
            A(f"s_branch L_n1{u}")
        lab("L_scale1")
        scale_state(True)
        lab("L_fix1")
        sub_delta(1)
        nm_delta()
        A(f"s_mov_b32 {sr(sFix)}, 0")
        A(f"s_setpc_b64 {sr(LINK_S,2)}")

        self.L += self.cold
        rf, sm, st = self.bsm

        def repack(regs, f, lo, hi):
            for r in regs:
                A(f"v_lshlrev_b32 {vr(lo)}, 16, {vr(r)}")
                A(f"v_and_b32 {vr(hi)}, 0xffff0000, {vr(r)}")
                A(f"v_mul_f32 {vr(lo)}, {vr(lo)}, {vr(f)}")
                A(f"v_mul_f32 {vr(hi)}, {vr(hi)}, {vr(f)}")
                A(f"v_cvt_pk_bf16_f32 {vr(r)}, {vr(lo)}, {vr(hi)}")

        for t in range(1, 4):
            lab(f"L_rb{t}")
            d, f = vT + 5, vT + 6
            for n in range(3):
                self.emit(self.maxn(d, [st(t, n) + r for r in range(4)]))
                for sw in ("v_permlane32_swap_b32", "v_permlane16_swap_b32"):
                    A(f"v_mov_b32 {vr(f)}, {vr(d)}")
                    A("s_nop 1")
                    A(f"{sw} {vr(d)}, {vr(f)}")
                    A("s_nop 1")
                    A(f"v_max_f32 {vr(d)}, {vr(d)}, {vr(f)}")
                A(f"v_max_f32 {vr(d)}, 0, {vr(d)}")
                A(f"v_exp_f32 {vr(f)}, -{vr(d)}")
                A(f"v_add_f32 {vr(rf[n])}, {vr(rf[n])}, {vr(d)}")
                for r in range(4):
                    A(f"v_sub_f32 {vr(st(t,n)+r)}, {vr(st(t,n)+r)}, {vr(d)}")
                for r in (sm[n], sm[n] + 1):
                    A(f"v_mul_f32 {vr(r)}, {vr(r)}, {vr(f)}")
                repack([st(u, n) + k for u in range(t) for k in range(2)], f, st(0, n) + 2, st(0, n) + 3)
            A(f"s_lshl_b32 {sr(sT0)}, {sr(sW)}, 2")
            A(f"v_add_u32 {vr(d)}, {sr(sT0)}, {vr(vSTr)}")
            for n in range(3):
                A(f"ds_write_b32 {vr(d)}, {vr(rf[n])} offset:{n*512}")
            A(f"v_mov_b32 {vr(d)}, {FLAG}")
            A(f"v_mov_b32 {vr(f)}, 1")
            A(f"ds_write_b32 {vr(d)}, {vr(f)}")
            A(f"s_branch L_nb{t}")
        lab("L_bfix")
        for n in range(3):
            A(f"ds_read_b128 {vr(vFr,4)}, {vr(vSTr)} offset:{n*512}")
            A(f"ds_read_b128 {vr(vFr+4,4)}, {vr(vSTr)} offset:{n*512+16}")
            A("s_waitcnt lgkmcnt(0)")
            self.emit(self.maxn(rf[n] + 1, [rf[n]] + [vFr + r for r in range(8)]))
            A(f"v_sub_f32 {vr(rf[n])}, {vr(rf[n])}, {vr(rf[n]+1)}")
            A(f"v_exp_f32 {vr(rf[n])}, {vr(rf[n])}")
            A("s_nop 0")
            A(f"v_mul_f32 {vr(vT+n)}, {vr(vT+n)}, {vr(rf[n])}")
            repack([st(u, n) + k for u in range(4) for k in range(2)], rf[n], st(0, n) + 2, st(0, n) + 3)
        A("s_branch L_bfixed")

        lab("L_qproj")
        A(f"s_mov_b32 {sr(sBlkEnd)}, 0")
        self.is_loader("L_load")
        self.narrow()
        A(f"v_mov_b32 {vr(vT)}, {sr(sScale)}")
        A("s_nop 6")
        for k in range(6):
            a = vAcc + 4 * k
            A(self.pkmul(a, vT))
            A(self.pkmul(a + 2, vT))
            A(f"v_cvt_pk_bf16_f32 {vr(vAcc+2*k)}, {vr(a)}, {vr(a+1)}")
            A(f"v_cvt_pk_bf16_f32 {vr(vAcc+2*k+1)}, {vr(a+2)}, {vr(a+3)}")
        A(f"s_setpc_b64 {sr(LINK_S,2)}")

        def af(j, p):
            return vFr + 4 * (j + 2 * p if j >= 6 else j)

        def wb(n, p):
            return vAcc + (p * 3 + n) * 4

        def wide_rd(j, p):
            a = vT + 1 + (j % 2)
            A(f"v_xor_b32 {vr(a)}, {j*32}, {vr(vT+3+3*p)}")
            self.tr_pair(af(j, p), a, 0)

        def wide_addr(t):
            return [[f"s_add_u32 {sr(sT0)}, {sr(sC)}, {sr(sT1)}"],
                    [f"v_add_u32 {vr(vT+3+3*(t%2))}, {sr(sT0)}, {vr(vTR0)}"],
                    [f"v_add_u32 {vr(vT+5)}, {sr(sBlk)}, {vr(vXB+t)}"]]

        def wide_step(t, pending, reads=True, zero=False):
            p = t % 2
            if reads:
                self.head(None)
            else:
                A("s_waitcnt lgkmcnt(0)")
            prim = []
            for j in range(8):
                if pending and not opt.get("nomfma"):
                    for n in range(3):
                        prim.append(self.M(vY + (j * 3 + n) * 4, af(j, 1 - p), wb(n, 1 - p), 0 if zero else None))
                if reads and not opt.get("nords"):
                    if j == 0:
                        prim.append(("r", [f"  ds_read_b128 {vr(wb(n,p),4)}, {vr(vT+5)} offset:{n*XN}" for n in range(3)]))
                    if j < 6:
                        prim.append(("r", self.cap(wide_rd, j, p)))
                    if j < 2:
                        prim.append(("r", self.cap(wide_rd, 6 + j, p)))
            fill = []
            if reads:
                fill = self.rot()
                if t == 3:
                    fill.append([f"s_add_u32 {sr(sBlk)}, {sr(sBlk)}, {BLK}"])
                fill += wide_addr((t + 1) % 4)
            self.weave(prim, fill, per=1, start=5)

        lab("L_wide")
        self.is_loader("L_load")
        A(f"s_lshl_b32 {sr(sT1)}, {sr(sW)}, 13")
        self.weave([], wide_addr(0))
        wide_step(0, False)
        A(f"s_cmp_eq_u32 {sr(sZero)}, 0")
        A("s_cbranch_scc1 L_wide_loop")
        A(f"s_mov_b32 {sr(sZero)}, 0")
        wide_step(1, True, zero=True)
        A("s_branch L_wide_s2")
        lab("L_wide_loop")
        wide_step(1, True)
        lab("L_wide_s2")
        wide_step(2, True)
        wide_step(3, True)
        A(f"s_cmp_gt_u32 {sr(sBlk)}, {sr(sBlkEnd)}")
        A("s_cbranch_scc1 L_wide_drain")
        wide_step(0, True)
        A("s_branch L_wide_loop")
        lab("L_wide_drain")
        A("s_waitcnt lgkmcnt(0)")
        A(f"s_setpc_b64 {sr(LINK_S,2)}")

        def ld_step(p, vm, prep=True, xblk=None):
            self.head(vm)
            l1, l2 = self.new("kv"), self.new("dd")
            variants = [self.wf] if self.kvf == self.wf else [self.wf, self.kvf]
            if len(variants) > 1:
                A(f"s_bitcmp1_b32 6, {sr(sTy[p])}")
                A(f"s_cbranch_scc1 {l1}")
            for vi, fl in enumerate(variants):
                if vi:
                    A(f"s_branch {l2}")
                    lab(l1)
                prim = []
                for k in range(8):
                    ins = [f"  s_add_u32 m0, {sr(sI[p])}, {k*4096}"]
                    if k % 2:
                        ins.append(f"  s_add_u32 {sr(sOff2)}, {sr(sOff[p])}, {sr(sHalf[p])}")
                    elif k:
                        ins.append(f"  s_add_u32 {sr(sOff[p])}, {sr(sOff[p])}, {sr(sStr[p])}")
                    else:
                        ins.append("  s_nop 0")
                    ins.append(f"  buffer_load_dwordx4 {vr(vCur[p])}, {sr(SRD_CUR[p],4)}, {sr(sOff2 if k % 2 else sOff[p])} offen{fl} lds")
                    if vi and k % 2 == 0:
                        ins = self.cap(self.throttle) + ins
                    prim.append(("m", ins))
                self.weave(prim, self.prep(1 - p) if prep else [], per=2)
            lab(l2)
            if xblk is not None:
                l3 = self.new("hk")
                A(f"s_cmp_eq_u32 {sr(sHook)}, 0")
                A(f"s_cbranch_scc1 {l3}")
                if xblk == 0:
                    self.x_setup(vY)
                self.x_block(vY, xblk)
                lab(l3)

        lab("L_load")
        A(f"s_mov_b32 {sr(sT4)}, 0")
        self.head(16)
        self.weave([], self.prep(1))
        lab("L_ldloop")
        ld_step(1, 8, xblk=0)
        ld_step(0, 8, xblk=1)
        ld_step(1, 8, xblk=2)
        A(f"s_add_u32 {sr(sT4)}, {sr(sT4)}, {BLK}")
        A(f"s_cmp_gt_u32 {sr(sT4)}, {sr(sBlkEnd)}")
        A("s_cbranch_scc1 L_lddrain")
        ld_step(0, 8)
        A("s_branch L_ldloop")
        lab("L_lddrain")
        ld_step(0, None, prep=False, xblk=3)
        A(f"s_setpc_b64 {sr(LINK_S,2)}")

    def reduce_kernel(self):
        A, lab = self.A, self.lab
        K2 = "reduce_partials_kernel"
        self.L += [f".globl {K2}", ".p2align 8", f".type {K2},@function"]
        lab(K2)
        A("s_cmp_ge_u32 s2, 384")
        A("s_cbranch_scc1 L_r_end")
        A("s_load_dwordx2 s[4:5], s[0:1], 80")
        A("s_load_dwordx2 s[6:7], s[0:1], 96")
        if self.opt.get("dbg"):
            A("s_cmp_eq_u32 s2, 0")
            A("s_cbranch_scc0 L_r_nod")
            A("s_load_dwordx2 s[26:27], s[0:1], 88")
            A("s_memrealtime s[28:29]")
            A("s_waitcnt lgkmcnt(0)")
            A("v_lshlrev_b32 v1, 4, v0")
            A("v_add_u32 v1, 0x4000000, v1")
            A("global_load_dwordx4 v[8:11], v1, s[6:7]")
            A("s_waitcnt vmcnt(0)")
            A("v_not_b32 v12, v8")
            A("v_sub_u32 v13, v9, v8")
            A("v_mov_b32 v14, 0")
            A("v_lshrrev_b32 v15, 7, v0")
            A("v_lshlrev_b32 v15, 3, v15")
            A("v_mov_b32 v7, s28")
            A("global_atomic_umax v14, v12, s[26:27]")
            A("global_atomic_umax v14, v9, s[26:27] offset:4")
            A("global_atomic_umax v15, v13, s[26:27] offset:8")
            A("global_atomic_umax v15, v10, s[26:27] offset:12")
            A("global_atomic_umax v14, v8, s[26:27] offset:24")
            A("global_atomic_umax v14, v7, s[26:27] offset:28")
            lab("L_r_nod")
        A("s_mul_i32 s3, s2, 43691")
        A("s_lshr_b32 s3, s3, 19")
        A("s_mul_i32 s16, s3, 12")
        A("s_sub_u32 s16, s2, s16")
        A("s_and_b32 s17, s3, 15")
        A("s_lshr_b32 s18, s3, 4")
        A("s_lshl_b32 s19, s16, 12")
        A("v_lshlrev_b32 v2, 4, v0")
        A("v_add_u32 v2, s19, v2")
        A("s_mul_i32 s23, s16, 86")
        A("s_lshr_b32 s23, s23, 8")
        A("s_mul_i32 s24, s23, 3")
        A("s_sub_u32 s24, s16, s24")
        A("s_lshl_b32 s24, s24, 15")
        A("s_lshl_b32 s23, s23, 8")
        A("s_add_u32 s24, s24, s23")
        A("v_and_b32 v6, 15, v0")
        A("v_lshlrev_b32 v6, 11, v6")
        A("v_lshrrev_b32 v7, 6, v0")
        A("v_lshl_add_u32 v6, v7, 6, v6")
        A("v_bfe_u32 v7, v0, 4, 1")
        A("v_lshl_add_u32 v6, v7, 5, v6")
        A("v_bfe_u32 v7, v0, 5, 1")
        A("v_lshl_add_u32 v6, v7, 4, v6")
        A("s_waitcnt lgkmcnt(0)")
        A("s_mov_b32 s8, s4"); A("s_mov_b32 s9, s5"); A("s_mov_b32 s10, 1572864"); A("s_mov_b32 s11, 0x20000")
        A("s_mov_b32 s12, s6"); A("s_mov_b32 s13, s7"); A("s_mov_b32 s14, 268435456"); A("s_mov_b32 s15, 0x20000")
        A("s_mul_i32 s20, s17, 98304")
        A("s_add_u32 s20, s20, s24")
        A("s_mov_b32 s22, 0xffff0000")
        A("s_cmp_eq_u32 s18, 1")
        A("s_cbranch_scc1 L_r_A")

        def body(np_):
            for p in range(np_):
                A(f"buffer_load_dwordx4 v[{16+4*p}:{19+4*p}], v2, s[12:15], s21 offen")
                if p + 1 < np_:
                    A(f"s_add_u32 s21, s21, {PART}")
            for p in range(np_):
                A(f"s_waitcnt vmcnt({np_-1-p})")
                for k in range(4):
                    r = 16 + 4 * p + k
                    if p == 0:
                        A(f"v_lshlrev_b32 v{8+2*k}, 16, v{r}")
                        A(f"v_and_b32 v{9+2*k}, s22, v{r}")
                    else:
                        A(f"v_lshlrev_b32 v4, 16, v{r}")
                        A(f"v_and_b32 v5, s22, v{r}")
                        A(f"v_pk_add_f32 v[{8+2*k}:{9+2*k}], v[{8+2*k}:{9+2*k}], v[4:5]")

        A(f"s_mul_i32 s21, s17, {16*PART}")
        A("s_add_u32 s20, s20, 1024")
        body(16)
        A("s_branch L_r_st")
        lab("L_r_A")
        A(f"s_mul_i32 s21, s17, {8*PART}")
        A(f"s_add_u32 s21, s21, {PART_A_BASE}")
        body(8)
        lab("L_r_st")
        for k in range(4):
            A(f"v_cvt_pk_bf16_f32 v{16+k}, v{8+2*k}, v{9+2*k}")
        A("buffer_store_dwordx4 v[16:19], v6, s[8:11], s20 offen")
        lab("L_r_end")
        A("s_endpgm")
        self.L += [".p2align 2", ".type L_table,@object"]
        lab("L_table")
        for k in range(0, 128, 8):
            A(".long " + ", ".join(hex(x) for x in self.table[k:k+8]))

    def desc(self, name, nv, ns):
        self.L += [".p2align 6", f".amdhsa_kernel {name}", f"  .amdhsa_next_free_vgpr {nv}",
                   f"  .amdhsa_next_free_sgpr {ns}", f"  .amdhsa_accum_offset {nv}",
                   "  .amdhsa_group_segment_fixed_size 0", "  .amdhsa_kernarg_size 104",
                   "  .amdhsa_user_sgpr_count 2", "  .amdhsa_user_sgpr_kernarg_segment_ptr 1",
                   "  .amdhsa_system_sgpr_workgroup_id_x 1", ".end_amdhsa_kernel"]

    def build(self):
        K1 = NAME + "_kernel"
        head = HEADER + f"; @launch kernel={K1} grid=(256,1,1) block=(512,1,1) lds={LDS_BYTES}\n"
        head += "; @launch kernel=reduce_partials_kernel grid=(384,1,1) block=(256,1,1) lds=0\n"
        self.L += ['.amdgcn_target "amdgcn-amd-amdhsa--gfx950"', ".text"]
        self.main_kernel()
        self.reduce_kernel()
        self.L += ['.section .rodata,"a"']
        self.desc(K1, 256, 102)
        self.desc("reduce_partials_kernel", 80, 32)
        return head + "\n".join(self.L) + "\n"


def gen(**opt):
    return G(opt).build()


if __name__ == "__main__":
    out = sys.argv[1] if len(sys.argv) > 1 else f"cdna_kernels/{NAME}.s"
    opt = {}
    for a in sys.argv[2:]:
        k, v = a.split("=", 1)
        opt[k] = int(v) if v.lstrip("-").isdigit() else v
    open(out, "w").write(gen(**opt))
    print("wrote", out)
```

```python
import sys, math, struct

NAME = "concat_heads__gqa_block_cached__mha_block_cached__near_ridge"

HEADER = """; Kernarg layout for this problem (104 bytes, ptrs only, base s[0:1]):
"""

TILE = 32768
NSLOT = 3
XB = NSLOT * TILE
XROW = 256
XN = 16 * XROW
BLK = 48 * XROW
ST = XB + 5 * BLK
FLAG = ST + 3072
RELAY = FLAG + 8
STORED = FLAG + 12
ENTRY = FLAG + 256
WS_FLAGS = 32 * 1024 * 1024
FULL = 0xffffff
POLL_LIMIT = 20000
LDS_BYTES = 163840
PART = 49152
PART_A_BASE = 16 * 16 * PART
NULL_OFF = 0x40000000
IDX_AFTER_ATT = (27, 43)

T_WQ, T_K, T_V, T_WO, T_WQW = 0, 1, 2, 3, 4
ROWSH = [13, 8, 8, 10, 13]
SLABSH = [18, 13, 13, 8, 8]

sW, sC, sIdx, sE = 3, 4, 6, 7
SRD_WQ, SRD_K, SRD_V, SRD_WO, SRD_WQW, SRD_AUX = 8, 12, 16, 20, 24, 28
sAx, sAk, sAv, sAwq, sAwo = 32, 34, 36, 38, 40
sP0, sP1 = 42, 43
sBx, sBk, sBv, sBwq, sBwo = 44, 46, 48, 50, 52
sWs = 54
sB, sG, sRole, sHead, _unused, sScale, sW1024, sBlk, sThr, sIter = 56, 57, 58, 59, 60, 61, 62, 63, 64, 65
sT0, sT1, sT2, sT3, sT4, sT5 = 66, 67, 68, 69, 70, 71
sBlkEnd = 75
sStamp = 76
sFix = 79
sOrd = 60
sThrot = 100
sHook = 101
sPend, sPendOff = 98, 99
sLate = 65
sZero = 91
SRD_CUR = [80, 84]
sOff, sTy, sStr, sI, sHalf = [72, 94], [73, 95], [74, 96], [5, 97], [88, 89]
sOff2 = 90
LINK_S = 92

rOut, rWs, rDbg, rKb, rMode, rF, rDone, rNew, rCnt, rOffB, rOffA, rOffO, rAb, rK = 8, 12, 16, 18, 19, 20, 21, 22, 23, 24, 25, 26, 27, 28

vTab, vRow, vChunk, vTRw, vTR0, vKb = 1, 2, 3, 5, 6, 7
vCur = [4, 0]
vXB = 8
vQW, vPW, vSTw, vSTr = 12, 13, 14, 15
vT = 16
vAcc = 24
vQs = 48
vFr = 72
vS = 112
vY = 160
QF = [24, 28, 32, 36, 40, 44, 72, 76, 80, 84, 88, 92]
vKf = 96
vKa, vTRa = 5, 7
vNm = [12, 56, 60]
vDl = 20
vOne = 8
vLq = [44, 48, 52]
NFA = 5
vO = 160
vAfA = 24
QA = [64 + 4 * k for k in range(12)]
sQ = [98, 99, 100, 101]


def vr(a, n=1):
    return f"v{a}" if n == 1 else f"v[{a}:{a+n-1}]"


def sr(a, n=1):
    return f"s{a}" if n == 1 else f"s[{a}:{a+n-1}]"


def f32(x):
    return hex(struct.unpack('<I', struct.pack('<f', x))[0])


class G:
    def __init__(self, opt):
        self.L = []
        self.opt = opt
        self.uid = 0
        self.cold = []
        self.fuse = opt.get("fuse", 1)
        if self.fuse:
            opt.setdefault("stflag", " sc1")
        self.kvf = opt.get("kvflag", " nt")
        self.wf = opt.get("wflag", "")

    def A(self, s):
        self.L.append("  " + s)

    def lab(self, s):
        self.L.append(s + ":")

    def c(self, s):
        self.L.append("  ; " + s)

    def new(self, p):
        self.uid += 1
        return f"L_{p}{self.uid}"

    def mfma(self, d, a, b, c=None):
        cs = "0" if c == 0 else vr(d if c is None else c, 4)
        self.A(f"v_mfma_f32_16x16x32_bf16 {vr(d,4)}, {vr(a,4)}, {vr(b,4)}, {cs}")

    def M(self, d, a, b, c=None):
        return ("m", self.cap(self.mfma, d, a, b, c))

    def lane(self, v):
        self.A(f"v_mbcnt_lo_u32_b32 {vr(v)}, -1, 0")
        self.A(f"v_mbcnt_hi_u32_b32 {vr(v)}, -1, {vr(v)}")

    def rot(self):
        return [[f"s_add_u32 {sr(sC)}, {sr(sC)}, {TILE}"],
                [f"s_cmp_eq_u32 {sr(sC)}, {NSLOT*TILE}", f"s_cselect_b32 {sr(sC)}, 0, {sr(sC)}"]]

    def prep(self, p, slots=True):
        k1 = sum(v << (5 * i) for i, v in enumerate(ROWSH))
        k2 = sum(v << (5 * i) for i, v in enumerate(SLABSH))
        pre = [[f"s_add_u32 {sr(sI[p])}, {sr(sC)}, {sr(sW1024)}"]] + self.rot() if slots else []
        return pre + [
            [f"s_and_b32 {sr(sOff[p])}, {sr(sE)}, 0xffffff00"],
            [f"s_and_b32 {sr(sTy[p])}, {sr(sE)}, 7"],
            [f"s_add_u32 {sr(sIdx)}, {sr(sIdx)}, 1"],
            [f"s_lshl_b32 m0, {sr(sTy[p])}, 2", f"s_mul_i32 {sr(sP0)}, {sr(sTy[p])}, 5",
             f"s_movrels_b64 {sr(SRD_CUR[p],2)}, {sr(SRD_WQ,2)}", f"s_movrels_b32 {sr(SRD_CUR[p]+2)}, {sr(SRD_WQ+2)}"],
            [f"v_readlane_b32 {sr(sE)}, {vr(vTab)}, {sr(sIdx)}"],
            [f"s_lshr_b32 {sr(sP1)}, {hex(k1)}, {sr(sP0)}"],
            [f"s_lshr_b32 {sr(sP0)}, {hex(k2)}, {sr(sP0)}"],
            [f"v_lshl_add_u32 {vr(vCur[p])}, {vr(vRow)}, {sr(sP1)}, {vr(vChunk)}"],
            [f"s_lshl_b32 {sr(sStr[p])}, 1, {sr(sP0)}"],
            [f"s_lshl_b32 {sr(sHalf[p])}, 16, {sr(sP1)}"],
        ]

    def weave(self, prim, fill, per=2, start=0):
        fill = list(fill)
        for idx, (kind, ins) in enumerate(prim):
            self.L += ins
            if kind == "m" and idx >= start:
                k = 0
                while fill and k < per:
                    f = fill[0]
                    if isinstance(f, tuple):
                        if f[0] > idx:
                            break
                        f = f[1]
                    self.emit(f)
                    fill.pop(0)
                    k += 1
        for f in fill:
            self.emit(f[1] if isinstance(f, tuple) else f)

    def emit(self, f):
        for x in f:
            if x.endswith(":"):
                self.L.append(x)
            else:
                self.A(x)

    def cap(self, fn, *a, **k):
        keep, self.L = self.L, []
        fn(*a, **k)
        out, self.L = self.L, keep
        return out

    def head(self, vm):
        self.A("s_waitcnt " + (f"vmcnt({vm}) " if vm is not None else "") + "lgkmcnt(0)")
        if self.opt.get("allsteps") == 2:
            self.stamp(15)
        self.A("s_barrier")
        if self.opt.get("allsteps") == 1:
            self.stamp(14)

    def early_head(self, vm, reads, xonly=None):
        if not self.opt.get("early", 1):
            self.head(vm)
            if xonly:
                l = self.new("x")
                self.is_loader(l)
                xonly()
                self.lab(l)
            reads()
            return
        ly, ld = self.new("ey"), self.new("ed")
        self.is_loader(ly)
        self.head(vm)
        if xonly:
            xonly()
        reads()
        self.A(f"s_branch {ld}")
        self.lab(ly)
        self.A("s_waitcnt lgkmcnt(0)")
        reads()
        self.A(f"s_waitcnt vmcnt({vm})")
        self.A("s_barrier")
        self.lab(ld)

    def throttle(self):
        if self.opt.get('thr'):
            l = self.new('th')
            self.A(f"s_cmp_eq_u32 {sr(sThrot)}, 0")
            self.A(f"s_cbranch_scc1 {l}")
            self.A(f"s_waitcnt vmcnt({self.opt['thr']})")
            self.lab(l)

    def dma(self, k, p, kv, guard=True, throttle=False):
        A = self.A
        skip = self.new("sk")
        if guard:
            A(f"s_bitcmp1_b32 {sr(sW)}, 2")
            A(f"s_cbranch_scc0 {skip}")
        if k:
            A(f"s_add_u32 {sr(sOff[p])}, {sr(sOff[p])}, {sr(sStr[p])}")
        A(f"s_add_u32 m0, {sr(sI[p])}, {k*8192}")
        A(f"s_add_u32 {sr(sOff2)}, {sr(sOff[p])}, {sr(sHalf[p])}")

        def pair(fl):
            if throttle and fl == self.kvf:
                self.throttle()
            A(f"buffer_load_dwordx4 {vr(vCur[p])}, {sr(SRD_CUR[p],4)}, {sr(sOff[p])} offen{fl} lds")
            A("s_add_u32 m0, m0, 4096")
            A("s_nop 0")
            A(f"buffer_load_dwordx4 {vr(vCur[p])}, {sr(SRD_CUR[p],4)}, {sr(sOff2)} offen{fl} lds")

        if self.kvf == self.wf:
            kv = False
        if kv is not None:
            pair(self.kvf if kv else self.wf)
        else:
            l1 = self.new("kv")
            A(f"s_bitcmp1_b32 6, {sr(sTy[p])}")
            A(f"s_cbranch_scc1 {l1}")
            pair(self.wf)
            A(f"s_branch {skip}")
            self.lab(l1)
            pair(self.kvf)
        self.lab(skip)

    def D1(self, k, p, guard=False):
        l1, l2 = self.new("w"), self.new("d")
        ld = f"  buffer_load_dwordx4 {vr(vCur[p])}, {sr(SRD_CUR[p],4)}, {sr(sOff[p])} offen"
        ins = [f"  s_bitcmp1_b32 {sr(sW)}, 2", f"  s_cbranch_scc0 {l2}"] if guard else []
        ins.append(f"  s_add_u32 m0, {sr(sI[p])}, {k*8192}")
        adv = f"  s_add_u32 {sr(sOff[p])}, {sr(sOff[p])}, {sr(sStr[p])}"
        ins += [f"  s_bitcmp1_b32 6, {sr(sTy[p])}", f"  s_cbranch_scc0 {l1}", adv, f"{ld}{self.kvf} lds"]
        self.cold += [l1 + ":"] + ([adv] if k else []) + [f"{ld}{self.wf} lds", f"  s_branch {l2}"]
        return ("d", ins + [l2 + ":"])

    def D(self, k, p, kv, throttle=False):
        return ("d", self.cap(self.dma, k, p, kv, True, throttle))

    def tr_pair(self, dst, addr, off):
        self.A(f"ds_read_b64_tr_b16 {vr(dst,2)}, {vr(addr)} offset:{off}")
        self.A(f"ds_read_b64_tr_b16 {vr(dst+2,2)}, {vr(addr)} offset:{off+1024}")

    def narrow(self, pre=None, extra=None, early=None):
        A = self.A

        def fr(st, k):
            return vFr + (st * 5 + k) * 4

        def reads(T, s):
            p = T % 2
            for m in range(2):
                self.tr_pair(fr(s % 2, m), vT + 2 * p + m, s * 8192)
            for n in range(3):
                A(f"ds_read_b128 {vr(fr(s%2,2+n),4)}, {vr(vXB+s)} offset:{n*XN+T*BLK}")

        def addr(p):
            return [[f"v_add_u32 {vr(vT+2*p)}, {sr(sC)}, {vr(vTRw)}"], [f"v_xor_b32 {vr(vT+2*p+1)}, 32, {vr(vT+2*p)}"]]

        def mf(s, zero=False):
            return [self.M(vAcc + (m * 3 + n) * 4, fr(s % 2, m), fr(s % 2, 2 + n), 0 if zero else None)
                    for m in range(2) for n in range(3)]

        self.weave([], addr(0))
        for T in range(4):
            self.head(None)
            self.emit((pre or {}).get(T, []))
            prim = [("r", self.cap(reads, T, 0))]
            if T:
                prim += mf(3)
            prim.append(("r", self.cap(reads, T, 1)))
            for s in range(3):
                prim.append(("w", ["  s_waitcnt lgkmcnt(7)"]))
                prim += mf(s, T == 0 and s == 0)
                if s < 2:
                    prim.append(("r", self.cap(reads, T, s + 2)))
            late = [(10, g) for g in (extra or {}).get(T, [])]
            self.weave(prim, self.rot() + (addr(1 - T % 2) if T < 3 else []) + late, per=1 + bool(late))
        A("s_waitcnt lgkmcnt(0)")
        if early is True:
            A("s_barrier")
        elif early is None:
            l = self.new("e")
            A(f"s_cmp_eq_u32 {sr(sLate)}, 0")
            A(f"s_cbranch_scc0 {l}")
            A("s_barrier")
            self.lab(l)
        self.weave(mf(3), [])

    def load_bfrags_dyn(self, tmp, quads):
        for s in range(4):
            self.A(f"v_add_u32 {vr(tmp+s)}, {sr(sBlk)}, {vr(vXB+s)}")
        for s in range(4):
            for n in range(3):
                self.A(f"ds_read_b128 {vr(quads[n*4+s],4)}, {vr(tmp+s)} offset:{n*XN}")

    def is_loader(self, label):
        self.A(f"s_bitcmp1_b32 {sr(sW)}, 2")
        self.A(f"s_cbranch_scc1 {label}")

    def x_setup(self, va, sT1=sT1, sT2=sT2):
        A = self.A
        self.lane(va + 2)
        A(f"v_lshrrev_b32 {vr(va+1)}, 4, {vr(va+2)}")
        A(f"v_and_b32 {vr(va+2)}, 15, {vr(va+2)}")
        A(f"v_xor_b32 {vr(va+2)}, {vr(va+2)}, {vr(va+1)}")
        A(f"v_lshlrev_b32 {vr(va+2)}, 4, {vr(va+2)}")
        A(f"v_lshl_or_b32 {vr(va+2)}, {vr(va+1)}, 10, {vr(va+2)}")
        A(f"s_mul_i32 {sr(sT0)}, {sr(sW1024)}, 3")
        A(f"s_add_u32 {sr(sT2)}, {sr(sT0)}, {XB}")
        A(f"s_mul_i32 {sr(sT1)}, {sr(sB)}, 49152")
        A(f"s_lshl_b32 {sr(sT3)}, {sr(sT0)}, 2")
        A(f"s_add_u32 {sr(sT1)}, {sr(sT1)}, {sr(sT3)}")
        A(f"s_lshr_b32 {sr(sT0)}, {sr(sT0)}, 4")
        for j in range(3):
            A(f"s_add_u32 {sr(sT3)}, {sr(sT0)}, {j*64}")
            A(f"s_and_b32 {sr(sT3)}, {sr(sT3)}, 0xc0")
            A(f"v_xor_b32 {vr(va+j)}, {sr(sT3)}, {vr(va+2)}")

    def x_rot(self, va, j):
        A = self.A
        A(f"s_add_u32 {sr(sP0)}, {sr(sOff2)}, {j}")
        A(f"s_and_b32 {sr(sP0)}, {sr(sP0)}, 3")
        A(f"s_mul_i32 {sr(sP1)}, {sr(sP0)}, {BLK}")
        A(f"s_add_u32 {sr(sP1)}, {sr(sP1)}, {sr(sHalf[1])}")
        A(f"s_lshl_b32 {sr(sP0)}, {sr(sP0)}, 8")
        A(f"s_add_u32 {sr(sP0)}, {sr(sP0)}, {sr(sHalf[0])}")
        for k in range(3):
            A(f"s_add_u32 m0, {sr(sP1)}, {k*1024}")
            if k:
                A(f"s_add_u32 {sr(sP0)}, {sr(sP0)}, 4096")
            else:
                A("s_nop 0")
            A(f"buffer_load_dwordx4 {vr(va+k)}, {sr(SRD_AUX,4)}, {sr(sP0)} offen lds")

    def first_tile(self, t):
        A = self.A
        A(f"s_add_u32 {sr(sP0)}, {sr(sI[0])}, {t}")
        A(f"s_and_b32 {sr(sP0)}, {sr(sP0)}, 15")
        A(f"s_mul_i32 {sr(sP0)}, {sr(sP0)}, {sr(sStr[1])}")
        A(f"s_add_u32 {sr(sP0)}, {sr(sP0)}, {sr(sTy[0])}")
        for k in range(8):
            A(f"s_add_u32 m0, {sr(sW1024)}, {t*TILE+k*4096}")
            if k % 2:
                A(f"s_add_u32 {sr(sP1)}, {sr(sP0)}, {16*8192}")
            elif k:
                A(f"s_add_u32 {sr(sP0)}, {sr(sP0)}, {sr(sStr[0])}")
            else:
                A("s_nop 0")
            A(f"buffer_load_dwordx4 {vr(vCur[0])}, {sr(SRD_CUR[0],4)}, {sr(sP1 if k % 2 else sP0)} offen{self.wf} lds")

    def x_block(self, va, blk):
        for j in range(3):
            self.A(f"s_add_u32 m0, {sr(sT2)}, {blk*BLK+j*1024}")
            self.A(f"s_add_u32 {sr(sT3)}, {sr(sT1)}, {blk*256+j*4096}")
            self.A(f"buffer_load_dwordx4 {vr(va+j)}, {sr(SRD_AUX,4)}, {sr(sT3)} offen lds")

    def weight_prefetch(self, items, single=False):
        A = self.A
        off, cur = sT1, SRD_CUR[1]
        self.lane(vT + 1)
        A(f"v_lshrrev_b32 {vr(vT)}, 4, {vr(vT+1)}")
        A(f"v_lshlrev_b32 {vr(vT+1)}, 4, {vr(vT+1)}")
        A(f"v_and_b32 {vr(vT+2)}, 0xf0, {vr(vT+1)}")
        A(f"v_lshl_or_b32 {vr(vT)}, {vr(vT)}, 13, {vr(vT+2)}")
        A(f"s_lshl_b32 {sr(sT0)}, {sr(sG)}, 2")
        if not single:
            A(f"s_add_u32 {sr(sT0)}, {sr(sT0)}, {sr(sRole)}")
        A(f"s_lshl_b32 {sr(sT2)}, {sr(sB)}, 2")
        A(f"s_add_u32 {sr(sT2)}, {sr(sT2)}, {sr(sW)}")
        A(f"s_mov_b32 {sr(cur+2)}, 4194304")
        for ptr, is_wq, h0, *h1 in items:
            A(f"s_add_u32 {sr(sT3)}, {sr(sT0)}, {h0}")
            A(f"s_lshl_b32 {sr(sT3)}, {sr(sT3)}, {8 if is_wq else 17}")
            A(f"s_lshl_b32 {sr(off)}, {sr(sT2)}, {16 if is_wq else 11}")
            A(f"s_add_u32 {sr(off)}, {sr(off)}, {sr(sT3)}")
            A(f"s_mov_b64 {sr(cur,2)}, {sr(ptr,2)}")
            for hh in (sorted({0, h1[0] - h0 if h1 else 1}) if single else [0]):
                for k in range(2):
                    d = hh * (256 if is_wq else 131072) + k * (32768 if is_wq else 1024)
                    if d:
                        A(f"s_add_u32 {sr(sT3)}, {sr(off)}, {d}")
                    A(f"buffer_load_dwordx4 v[156:159], {vr(vT if is_wq else vT+1)}, {sr(cur,4)}, {sr(sT3 if d else off)} offen")

    def srd(self, d, p, size):
        self.A(f"s_mov_b32 {sr(d)}, {sr(p)}")
        self.A(f"s_mov_b32 {sr(d+1)}, {sr(p+1)}")
        self.A(f"s_mov_b32 {sr(d+2)}, {size}")
        self.A(f"s_mov_b32 {sr(d+3)}, 0x20000")

    def reduce4(self, x, op):
        self.A(f"v_mov_b32 {vr(x+3)}, {vr(x+2)}")
        self.A("s_nop 1")
        self.A(f"v_permlane32_swap_b32 {vr(x)}, {vr(x+1)}")
        self.A(f"v_permlane32_swap_b32 {vr(x+2)}, {vr(x+3)}")
        self.A("s_nop 1")
        self.A(f"{op} {vr(x)}, {vr(x)}, {vr(x+1)}")
        self.A(f"{op} {vr(x+2)}, {vr(x+2)}, {vr(x+3)}")
        self.A("s_nop 1")
        self.A(f"v_permlane16_swap_b32 {vr(x)}, {vr(x+2)}")
        self.A("s_nop 1")
        self.A(f"{op} {vr(x)}, {vr(x)}, {vr(x+2)}")

    def allreduce3(self, x, t, op):
        for sw in ("v_permlane32_swap_b32", "v_permlane16_swap_b32"):
            for n in range(3):
                self.A(f"v_mov_b32 {vr(t+n)}, {vr(x+n)}")
            self.A("s_nop 1")
            for n in range(3):
                self.A(f"{sw} {vr(x+n)}, {vr(t+n)}")
            self.A("s_nop 1")
            for n in range(3):
                self.A(f"{op} {vr(x+n)}, {vr(x+n)}, {vr(t+n)}")

    def maxn(self, dst, regs):
        out = [f"v_max3_f32 {vr(dst)}, {vr(regs[0])}, {vr(regs[1])}, {vr(regs[2])}"]
        k = 3
        while k + 1 < len(regs):
            out.append(f"v_max3_f32 {vr(dst)}, {vr(dst)}, {vr(regs[k])}, {vr(regs[k+1])}")
            k += 2
        if k < len(regs):
            out.append(f"v_max_f32 {vr(dst)}, {vr(dst)}, {vr(regs[k])}")
        return out

    def pkmul(self, a, f):
        sel = "op_sel_hi:[1,0]" if f % 2 == 0 else "op_sel:[0,1] op_sel_hi:[1,1]"
        return f"v_pk_mul_f32 {vr(a,2)}, {vr(a,2)}, {vr(f - f % 2,2)} {sel}"

    def stamp(self, idx):
        if not self.opt.get("stamps"):
            return
        self.A(("s_memtime" if self.opt.get("cyc") else "s_memrealtime") + f" {sr(sStamp,2)}")
        self.A("s_waitcnt lgkmcnt(0)")
        self.A(f"s_and_b32 {sr(sStamp)}, {sr(sStamp)}, 0xffffff")
        self.A(f"s_or_b32 {sr(sStamp)}, {sr(sStamp)}, {(idx+1) << 24}")
        self.A("s_mov_b32 m0, s78")
        if self.opt.get("skip"):
            l = self.new("st")
            self.A(f"s_cmp_lt_i32 s78, 0")
            self.A(f"s_cbranch_scc1 {l}")
            self.A(f"s_cmp_ge_i32 s78, 63")
            self.A(f"s_cbranch_scc1 {l}")
            self.A(f"v_writelane_b32 {vr(23)}, {sr(sStamp)}, m0")
            self.lab(l)
        else:
            self.A(f"v_writelane_b32 {vr(23)}, {sr(sStamp)}, m0")
        self.A("s_add_u32 s78, s78, 1")

    def ks(self, idx=15):
        if self.opt.get("kst"):
            self.A(f"s_memtime s[{76}:{77}]")
            self.A("s_waitcnt lgkmcnt(0)")
            self.A(f"s_and_b32 s76, s76, 0xffffff")
            self.A(f"s_or_b32 s76, s76, {(idx+1) << 24}")
            self.A("s_mov_b32 m0, s78")
            self.A(f"v_writelane_b32 v23, s76, m0")
            self.A("s_add_u32 s78, s78, 1")

    def pack_y(self, barrier):
        def pack(jp):
            g = []
            for n in range(3):
                q = vY + (2 * jp * 3 + n) * 4
                for h in range(2):
                    y = vY + ((2 * jp + h) * 3 + n) * 4
                    g.append([f"v_cvt_pk_bf16_f32 {vr(q+2*h)}, {vr(y)}, {vr(y+1)}"])
                    g.append([f"v_cvt_pk_bf16_f32 {vr(q+2*h+1)}, {vr(y+2)}, {vr(y+3)}"])
            return g

        self.srd(SRD_AUX, sWs, 268435456)
        self.A(f"s_mul_i32 {sr(sT1)}, {sr(sW)}, 12288")
        self.A(f"s_add_u32 {sr(sPendOff)}, {sr(sT0)}, {sr(sT1)}")
        self.wide_drain(pack)
        if barrier:
            self.A("s_barrier")
        else:
            self.A("s_nop 1")

    def store_y(self, n, va):
        A = self.A
        self.lane(va)
        A(f"v_lshlrev_b32 {vr(va)}, 4, {vr(va)}")
        for jp in range(4):
            q = vY + (2 * jp * 3 + n) * 4
            A(f"v_permlane16_swap_b32 {vr(q)}, {vr(q+2)}")
            A(f"v_permlane16_swap_b32 {vr(q+1)}, {vr(q+3)}")
            A(f"buffer_store_dwordx4 {vr(q,4)}, {vr(va)}, {sr(SRD_AUX,4)}, {sr(sPendOff)} offen offset:{jp*1024}" + self.opt.get("stflag", ""))
        A(f"s_add_u32 {sr(sPendOff)}, {sr(sPendOff)}, 4096")

    def wide_drain(self, per_pair=None):
        prim = [self.M(vY + (j * 3 + n) * 4, vFr + 4 * (j + 2 if j >= 6 else j), vAcc + (3 + n) * 4) for j in range(8) for n in range(3)]
        fill = []
        if per_pair:
            for jp in range(4):
                g = per_pair(jp)
                fill += [(6 * jp + 13, x) for x in g]
        self.weave(prim, fill, per=4)

    def reduce_setup(self):
        A = self.A
        A(f"s_load_dwordx4 {sr(rOut,4)}, s[0:1], 80")
        A("s_waitcnt lgkmcnt(0)")
        A(f"s_mov_b64 {sr(rDbg,2)}, {sr(rOut+2,2)}")
        A(f"s_mov_b32 {sr(rOut+2)}, 1572864")
        A(f"s_mov_b32 {sr(rOut+3)}, 0x20000")
        self.srd(rWs, sWs, 268435456)

    def publish(self):
        A, lab = self.A, self.lab
        A(f"v_mov_b32 {vr(vT)}, {STORED}")
        A(f"v_mov_b32 {vr(vT+1)}, 1")
        self.reduce_setup()
        A("s_waitcnt vmcnt(0)")
        self.stamp(7)
        A("s_mov_b64 exec, 1")
        A(f"ds_add_rtn_u32 {vr(vT+1)}, {vr(vT)}, {vr(vT+1)}")
        A(f"s_lshl_b32 {sr(sT0)}, {sr(sRole)}, 3")
        A(f"s_add_u32 {sr(sT0)}, {sr(sT0)}, {sr(sG)}")
        A(f"s_lshl_b32 {sr(sT2)}, {sr(sT0)}, 2")
        A(f"s_add_u32 {sr(sT3)}, {sr(sT2)}, {ENTRY}")
        A(f"v_mov_b32 {vr(vT+4)}, {sr(sT3)}")
        A(f"ds_read_b32 {vr(vT+4)}, {vr(vT+4)}")
        A(f"s_lshl_b32 {sr(sT3)}, {sr(sB)}, 8")
        A(f"s_add_u32 {sr(sT2)}, {sr(sT2)}, {sr(sT3)}")
        A(f"s_add_u32 {sr(sT2)}, {sr(sT2)}, {WS_FLAGS}")
        A(f"s_lshl_b32 {sr(sT0)}, 1, {sr(sT0)}")
        A(f"s_add_u32 {sr(sT1)}, {sr(sG)}, 16")
        A(f"s_lshl_b32 {sr(sT1)}, {sr(sRole)}, {sr(sT1)}")
        A(f"s_or_b32 {sr(sT0)}, {sr(sT0)}, {sr(sT1)}")
        A(f"s_lshl_b32 {sr(sT1)}, {sr(sB)}, 4")
        A(f"v_mov_b32 {vr(vT)}, {sr(sT1)}")
        A(f"v_mov_b32 {vr(vT+2)}, {sr(sT0)}")
        A(f"v_mov_b32 {vr(vT+3)}, 0")
        A("s_waitcnt lgkmcnt(0)")
        A(f"v_readfirstlane_b32 {sr(sT1)}, {vr(vT+1)}")
        A(f"v_add_u32 {vr(vT+4)}, 1, {vr(vT+4)}")
        A("s_mov_b64 exec, -1")
        A("s_nop 2")
        A(f"s_cmp_eq_u32 {sr(sT1)}, 3")
        A("s_cbranch_scc0 L_fin")
        A("s_mov_b64 exec, 1")
        A(f"buffer_store_dword {vr(vT+4)}, off, {sr(rWs,4)}, {sr(sT2)} sc1")
        A(f"global_atomic_or_x2 {vr(vT+4,2)}, {vr(vT)}, {vr(vT+2,2)}, {sr(rDbg,2)} sc0 sc1")
        A("s_waitcnt vmcnt(0)")
        A(f"v_readfirstlane_b32 {sr(sT1)}, {vr(vT+4)}")
        A(f"v_readfirstlane_b32 {sr(rAb)}, {vr(vT+5)}")
        A("s_mov_b64 exec, -1")
        A("s_nop 2")
        A(f"s_or_b32 {sr(sT1)}, {sr(sT1)}, {sr(sT0)}")
        A(f"s_cmp_eq_u32 {sr(sT1)}, {FULL}")
        A("s_cbranch_scc0 L_fin")
        self.c("last arrival of this batch: take over the slices of workgroups that gave up waiting")
        lab("L_ab_loop")
        A(f"s_cmp_eq_u32 {sr(rAb)}, 0")
        A("s_cbranch_scc1 L_fin")
        A(f"s_ff1_i32_b32 {sr(rK)}, {sr(rAb)}")
        A(f"s_bitset0_b32 {sr(rAb)}, {sr(rK)}")
        A(f"s_mul_i32 {sr(rKb)}, {sr(rK)}, 3")
        for k in range(3):
            A(f"s_mov_b32 {sr(rMode)}, 2")
            A(f"s_call_b64 {sr(LINK_S,2)}, L_reduce")
            A(f"s_add_u32 {sr(rKb)}, {sr(rKb)}, 1")
        A("s_branch L_ab_loop")

    def reduce_sub(self):
        A, lab = self.A, self.lab
        dat = lambda g, q: 64 + (g * 4 + q) * 4
        acc = lambda g: 160 + g * 8
        lab("L_reduce")
        A(f"s_lshl_b32 {sr(rOffA)}, {sr(rKb)}, 10")
        A(f"s_mul_i32 {sr(rOffB)}, {sr(sB)}, {16*PART}")
        A(f"s_add_u32 {sr(rOffB)}, {sr(rOffB)}, {sr(rOffA)}")
        A(f"s_mul_i32 {sr(rOffO)}, {sr(sB)}, {8*PART}")
        A(f"s_add_u32 {sr(rOffA)}, {sr(rOffA)}, {sr(rOffO)}")
        A(f"s_add_u32 {sr(rOffA)}, {sr(rOffA)}, {PART_A_BASE}")
        A(f"s_mul_i32 {sr(sT0)}, {sr(rKb)}, 171")
        A(f"s_lshr_b32 {sr(sT0)}, {sr(sT0)}, 11")
        A(f"s_mul_i32 {sr(sT1)}, {sr(sT0)}, 12")
        A(f"s_sub_u32 {sr(sT1)}, {sr(rKb)}, {sr(sT1)}")
        A(f"s_lshr_b32 {sr(sT2)}, {sr(sT1)}, 2")
        A(f"s_and_b32 {sr(sT1)}, {sr(sT1)}, 3")
        A(f"s_mul_i32 {sr(rOffO)}, {sr(sB)}, 98304")
        A(f"s_lshl_b32 {sr(sT2)}, {sr(sT2)}, 15")
        A(f"s_lshl_b32 {sr(sT0)}, {sr(sT0)}, 8")
        A(f"s_lshl_b32 {sr(sT1)}, {sr(sT1)}, 6")
        A(f"s_add_u32 {sr(rOffO)}, {sr(rOffO)}, {sr(sT2)}")
        A(f"s_add_u32 {sr(rOffO)}, {sr(rOffO)}, {sr(sT0)}")
        A(f"s_add_u32 {sr(rOffO)}, {sr(rOffO)}, {sr(sT1)}")
        self.lane(24)
        A("v_lshlrev_b32 v25, 4, v24")
        A("v_and_b32 v26, 15, v24")
        A("v_lshlrev_b32 v26, 11, v26")
        A("v_bfe_u32 v27, v24, 4, 1")
        A("v_lshl_add_u32 v26, v27, 5, v26")
        A("v_bfe_u32 v27, v24, 5, 1")
        A("v_lshl_add_u32 v26, v27, 4, v26")
        A(f"v_mov_b32 v27, {RELAY}")
        A(f"s_lshl_b32 {sr(sT0)}, {sr(sB)}, 4")
        A(f"v_mov_b32 v28, {sr(sT0)}")
        A("v_and_b32 v40, 15, v24")
        A("v_lshlrev_b32 v40, 2, v40")
        A(f"v_add_u32 v41, {ENTRY}, v40")
        A("ds_read_b32 v41, v41")
        A(f"s_lshl_b32 {sr(sT2)}, {sr(sB)}, 8")
        A(f"s_add_u32 {sr(sT2)}, {sr(sT2)}, {WS_FLAGS}")
        A(f"v_mov_b32 v42, {STORED}")
        A("s_waitcnt lgkmcnt(0)")
        A("v_add_u32 v41, 1, v41")
        A(f"s_mov_b32 {sr(sT3)}, 0xffff0000")
        A(f"s_mov_b32 {sr(rDone)}, 0")
        A(f"s_mov_b32 {sr(rCnt)}, 0")
        lab("L_rd_poll")
        A(f"s_mov_b32 {sr(rF)}, {FULL}")
        A(f"s_cmp_eq_u32 {sr(rMode)}, 2")
        A("s_cbranch_scc1 L_rd_have")
        A(f"s_cmp_eq_u32 {sr(rMode)}, 1")
        A("s_cbranch_scc1 L_rd_lds")
        A(f"s_cmp_eq_u32 {sr(rCnt)}, 1")
        A("s_cbranch_scc0 L_rd_go")
        self.c("after the first look, stay off the memory path until this workgroup's own stores are out")
        lab("L_rd_own")
        A("ds_read_b32 v29, v42")
        A("s_waitcnt lgkmcnt(0)")
        A("v_cmp_gt_u32 vcc, 4, v29")
        A("s_cbranch_vccz L_rd_go")
        A("s_sleep 2")
        A("s_branch L_rd_own")
        lab("L_rd_go")
        A(f"s_add_u32 {sr(rCnt)}, {sr(rCnt)}, 1")
        A(f"buffer_load_dword v29, v40, {sr(rWs,4)}, {sr(sT2)} offen sc1")
        A("s_waitcnt vmcnt(0)")
        A("v_cmp_eq_u32 vcc, v29, v41")
        A("s_nop 3")
        A(f"s_and_b32 {sr(rF)}, vcc_lo, 0xffff")
        A(f"s_and_b32 {sr(sT0)}, {sr(rF)}, 0xff00")
        A(f"s_lshl_b32 {sr(sT0)}, {sr(sT0)}, 8")
        A(f"s_or_b32 {sr(rF)}, {sr(rF)}, {sr(sT0)}")
        A(f"v_mov_b32 v29, {sr(rF)}")
        A("ds_write_b32 v27, v29")
        A("s_branch L_rd_have")
        lab("L_rd_lds")
        A("ds_read_b32 v29, v27")
        A("s_waitcnt lgkmcnt(0)")
        A(f"v_readfirstlane_b32 {sr(rF)}, v29")
        A("s_nop 3")
        A(f"s_cmp_lt_i32 {sr(rF)}, 0")
        A("s_cbranch_scc1 L_rd_ret")
        lab("L_rd_have")
        A(f"s_lshr_b32 {sr(rNew)}, {sr(rF)}, 1")
        A(f"s_and_b32 {sr(rNew)}, {sr(rNew)}, {sr(rF)}")
        A(f"s_lshr_b32 {sr(sT0)}, {sr(rNew)}, 2")
        A(f"s_and_b32 {sr(rNew)}, {sr(rNew)}, {sr(sT0)}")
        A(f"s_and_b32 {sr(rNew)}, {sr(rNew)}, 0x111111")
        A(f"s_andn2_b32 {sr(rNew)}, {sr(rNew)}, {sr(rDone)}")
        A("s_cbranch_scc1 L_rd_work")
        A(f"s_sleep {self.opt.get('sleep', 8)}")
        A(f"s_cmp_eq_u32 {sr(rMode)}, 0")
        A("s_cbranch_scc0 L_rd_poll")
        A(f"s_cmp_lt_u32 {sr(rCnt)}, {self.opt.get('polls', POLL_LIMIT)}")
        A("s_cbranch_scc1 L_rd_poll")
        self.c("gave up waiting: leave the slice to the last arrival unless that has happened meanwhile")
        A(f"s_lshl_b32 {sr(sT0)}, {sr(sRole)}, 3")
        A(f"s_add_u32 {sr(sT0)}, {sr(sT0)}, {sr(sG)}")
        A(f"s_lshl_b32 {sr(sT0)}, 1, {sr(sT0)}")
        A("v_mov_b32 v30, 0")
        A(f"v_mov_b32 v31, {sr(sT0)}")
        A("s_mov_b64 exec, 1")
        A(f"global_atomic_or_x2 v[32:33], v28, v[30:31], {sr(rDbg,2)} sc0 sc1")
        A("s_waitcnt vmcnt(0)")
        A(f"v_readfirstlane_b32 {sr(rF)}, v32")
        A("s_mov_b64 exec, -1")
        A("s_nop 3")
        A(f"s_cmp_eq_u32 {sr(rF)}, {FULL}")
        A(f"s_cselect_b32 {sr(rF)}, {sr(rF)}, -1")
        A(f"v_mov_b32 v29, {sr(rF)}")
        A("ds_write_b32 v27, v29")
        A("s_cbranch_scc0 L_rd_ret")
        A(f"s_mov_b32 {sr(rMode)}, 2")
        A("s_branch L_rd_poll")
        lab("L_rd_work")
        self.stamp(13)
        for g in range(6):
            l = self.new("rg")
            A(f"s_bitcmp1_b32 {sr(rNew)}, {4*g}")
            A(f"s_cbranch_scc0 {l}")
            base, first = (rOffB, 4 * g) if g < 4 else (rOffA, 4 * (g - 4))
            for q in range(4):
                A(f"s_add_u32 {sr(sT0)}, {sr(base)}, {(first+q)*PART}")
                A(f"buffer_load_dwordx4 {vr(dat(g,q),4)}, v25, {sr(rWs,4)}, {sr(sT0)} offen sc1")
            lab(l)
        A("s_waitcnt vmcnt(0)")
        self.stamp(14)
        for g in range(6):
            l = self.new("rs")
            A(f"s_bitcmp1_b32 {sr(rNew)}, {4*g}")
            A(f"s_cbranch_scc0 {l}")
            for q in range(4):
                for k in range(4):
                    r, t = dat(g, q) + k, (acc(g) + 2 * k if q == 0 else 30 + 2 * (k % 2))
                    A(f"v_lshlrev_b32 {vr(t)}, 16, {vr(r)}")
                    A(f"v_and_b32 {vr(t+1)}, {sr(sT3)}, {vr(r)}")
                    if q:
                        A(f"v_pk_add_f32 {vr(acc(g)+2*k,2)}, {vr(acc(g)+2*k,2)}, {vr(t,2)}")
            lab(l)
        A(f"s_or_b32 {sr(rDone)}, {sr(rDone)}, {sr(rNew)}")
        A(f"s_cmp_eq_u32 {sr(rDone)}, 0x111111")
        A("s_cbranch_scc0 L_rd_poll")
        for x, y in ((0, 1), (2, 3), (4, 5), (0, 2)):
            for k in range(4):
                A(f"v_pk_add_f32 {vr(acc(x)+2*k,2)}, {vr(acc(x)+2*k,2)}, {vr(acc(y)+2*k,2)}")
        for g, d in ((4, 32), (0, 36)):
            for k in range(4):
                A(f"v_cvt_pk_bf16_f32 {vr(d+k)}, {vr(acc(g)+2*k)}, {vr(acc(g)+2*k+1)}")
        A(f"buffer_store_dwordx4 v[32:35], v26, {sr(rOut,4)}, {sr(rOffO)} offen")
        A(f"buffer_store_dwordx4 v[36:39], v26, {sr(rOut,4)}, {sr(rOffO)} offen offset:1024")
        lab("L_rd_ret")
        A(f"s_setpc_b64 {sr(LINK_S,2)}")

    def zero(self, base, n):
        for k in range(0, n, 2):
            self.A(f"v_mov_b64 {vr(base+k,2)}, 0")

    def act_write_addr(self, sblk, stile):
        A = self.A
        self.lane(vT + 1)
        A(f"v_lshrrev_b32 {vr(vT)}, 4, {vr(vT+1)}")
        A(f"v_and_b32 {vr(vT+1)}, 15, {vr(vT+1)}")
        A(f"v_lshrrev_b32 {vr(vT+2)}, 1, {vr(vT)}")
        if stile is not None:
            A(f"v_add_u32 {vr(vT+2)}, {sr(stile)}, {vr(vT+2)}")
        A(f"v_xor_b32 {vr(vT+2)}, {vr(vT+2)}, {vr(vT+1)}")
        A(f"v_lshlrev_b32 {vr(vT+2)}, 4, {vr(vT+2)}")
        A(f"v_and_b32 {vr(vT)}, 1, {vr(vT)}")
        A(f"v_lshl_or_b32 {vr(vT+2)}, {vr(vT)}, 3, {vr(vT+2)}")
        A(f"v_mul_u32_u24 {vr(vT+1)}, {XROW}, {vr(vT+1)}")
        A(f"s_add_u32 {sr(sT5)}, {sr(sblk)}, {XB}")
        A(f"v_add3_u32 {vr(vT+1)}, {vr(vT+1)}, {sr(sT5)}, {vr(vT+2)}")

    def frag_addrs(self):
        A = self.A
        t0, t1, t2, t3, t4, t5, vL = vT, vT + 1, vT + 2, vT + 3, vT + 4, vT + 5, vT + 6
        self.lane(vL)
        A(f"v_lshrrev_b32 {vr(t0)}, 4, {vr(vL)}")
        A(f"v_and_b32 {vr(t1)}, 15, {vr(vL)}")
        A(f"v_bfe_u32 {vr(t2)}, {vr(vL)}, 2, 2")
        A(f"v_and_b32 {vr(t3)}, 3, {vr(vL)}")
        A(f"v_lshl_add_u32 {vr(t4)}, {vr(t0)}, 3, {vr(t2)}")
        A(f"v_lshlrev_b32 {vr(t4)}, 8, {vr(t4)}")
        A(f"v_and_b32 {vr(t5)}, 1, {vr(t0)}")
        A(f"v_lshl_or_b32 {vr(t5)}, {vr(t5)}, 2, {vr(t2)}")
        A(f"v_lshl_or_b32 {vr(t4)}, {vr(t5)}, 5, {vr(t4)}")
        A(f"v_lshl_or_b32 {vr(vTR0)}, {vr(t3)}, 3, {vr(t4)}")
        A(f"s_lshr_b32 {sr(sT0)}, {sr(sW1024)}, 4")
        A(f"v_xor_b32 {vr(vTRw)}, {sr(sT0)}, {vr(vTR0)}")
        A(f"s_lshr_b32 {sr(sT1)}, {sr(sW)}, 1")
        A(f"s_lshl_b32 {sr(sT1)}, {sr(sT1)}, 13")
        A(f"v_lshrrev_b32 {vr(t4)}, 2, {vr(t1)}")
        A(f"v_lshl_or_b32 {vr(t4)}, {vr(t4)}, 3, {vr(t3)}")
        A(f"v_lshlrev_b32 {vr(t4)}, 8, {vr(t4)}")
        A(f"v_lshrrev_b32 {vr(t5)}, 1, {vr(t0)}")
        A(f"v_and_b32 {vr(vKb)}, 7, {vr(t1)}")
        A(f"v_xor_b32 {vr(t5)}, {vr(t5)}, {vr(vKb)}")
        A(f"v_lshl_or_b32 {vr(t4)}, {vr(t5)}, 5, {vr(t4)}")
        A(f"v_and_b32 {vr(t5)}, 1, {vr(t0)}")
        A(f"v_lshl_or_b32 {vr(t4)}, {vr(t5)}, 4, {vr(t4)}")
        A(f"s_and_b32 {sr(sT0)}, {sr(sW)}, 1")
        A(f"s_lshl_b32 {sr(sT0)}, {sr(sT0)}, 10")
        A(f"s_add_u32 {sr(sT0)}, {sr(sT0)}, {sr(sT1)}")
        A(f"v_add_u32 {vr(vKb)}, {sr(sT0)}, {vr(t4)}")
        A(f"v_mul_u32_u24 {vr(t4)}, {XROW}, {vr(t1)}")
        A(f"v_add_u32 {vr(t4)}, {XB}, {vr(t4)}")
        A(f"v_xor_b32 {vr(t5)}, {vr(t0)}, {vr(t1)}")
        A(f"v_lshlrev_b32 {vr(t5)}, 4, {vr(t5)}")
        for s in range(4):
            A(f"v_xor_b32 {vr(vXB+s)}, {s*64}, {vr(t5)}")
            A(f"v_add_u32 {vr(vXB+s)}, {vr(vXB+s)}, {vr(t4)}")
        A(f"v_lshrrev_b32 {vr(t5)}, 1, {vr(t0)}")
        A(f"s_lshr_b32 {sr(sT0)}, {sr(sW1024)}, 8")
        A(f"v_add_u32 {vr(t5)}, {sr(sT0)}, {vr(t5)}")
        A(f"v_xor_b32 {vr(t5)}, {vr(t5)}, {vr(t1)}")
        A(f"v_lshl_add_u32 {vr(vQW)}, {vr(t5)}, 4, {vr(t4)}")
        A(f"v_and_b32 {vr(t5)}, 1, {vr(t0)}")
        A(f"v_lshl_add_u32 {vr(vQW)}, {vr(t5)}, 3, {vr(vQW)}")
        A(f"s_lshr_b32 {sr(sT0)}, {sr(sW)}, 1")
        A(f"s_lshl_b32 {sr(sT0)}, {sr(sT0)}, 2")
        A(f"v_add_u32 {vr(t5)}, {sr(sT0)}, {vr(t0)}")
        A(f"v_xor_b32 {vr(t5)}, {vr(t5)}, {vr(t1)}")
        A(f"v_lshl_add_u32 {vr(vPW)}, {vr(t5)}, 4, {vr(t4)}")
        A(f"s_and_b32 {sr(sT0)}, {sr(sW)}, 1")
        A(f"s_lshl_b32 {sr(sT0)}, {sr(sT0)}, 3")
        A(f"v_add_u32 {vr(vPW)}, {sr(sT0)}, {vr(vPW)}")
        A(f"v_lshlrev_b32 {vr(vSTr)}, 5, {vr(t1)}")
        A(f"v_add_u32 {vr(vSTr)}, {ST}, {vr(vSTr)}")
        A(f"v_lshlrev_b32 {vr(t5)}, 1, {vr(t0)}")
        A(f"v_mov_b32 {vr(t4)}, 0x98")
        A(f"v_lshrrev_b32 {vr(t5)}, {vr(t5)}, {vr(t4)}")
        A(f"v_and_b32 {vr(t5)}, 3, {vr(t5)}")
        A(f"v_lshl_add_u32 {vr(vSTw)}, {vr(t5)}, 9, {vr(vSTr)}")
        A(f"s_lshl_b32 {sr(sT0)}, {sr(sW)}, 2")
        A(f"v_add_u32 {vr(vSTw)}, {sr(sT0)}, {vr(vSTw)}")

    def main_kernel(self):
        A, lab, c = self.A, self.lab, self.c
        opt = self.opt
        K1 = NAME + "_kernel"
        self.L += [f".globl {K1}", ".p2align 8", f".type {K1},@function"]
        lab(K1)
        if opt.get("prost"):
            A("s_memtime s[88:89]")
        A("s_cmp_ge_u32 s2, 256")
        A("s_cbranch_scc1 L_end")
        if opt.get("only"):
            A("s_bitcmp1_b32 s2, 7")
            A("s_cbranch_scc%d L_end" % (1 if opt["only"] == "B" else 0))
        if opt.get("dbg"):
            A("s_memrealtime s[76:77]")
            A("s_waitcnt lgkmcnt(0)")
            A("v_mov_b32 v23, s76")
            A("s_memtime s[76:77]")
            A("s_waitcnt lgkmcnt(0)")
            A("s_mov_b32 s78, s76")
        A(f"s_load_dwordx8 {sr(44,8)}, s[0:1], 40")
        A(f"s_load_dwordx2 {sr(52,2)}, s[0:1], 72")
        A(f"s_load_dwordx8 {sr(32,8)}, s[0:1], 0")
        A(f"s_load_dwordx2 {sr(40,2)}, s[0:1], 32")
        A(f"s_load_dwordx2 {sr(54,2)}, s[0:1], 96")
        if opt.get("stamps"):
            A(f"v_mov_b32 {vr(23)}, 0")
            A(f"s_mov_b32 s78, {-(opt.get('skip', 1) - 1)}")
        if opt.get("prost"):
            A("s_waitcnt lgkmcnt(0)")
            A("s_and_b32 s88, s88, 0xffffff")
            A(f"s_or_b32 s88, s88, {1 << 24}")
            A("v_writelane_b32 v23, s88, 0")
            A("s_mov_b32 s78, 1")
            self.stamp(15)
        vL = vT + 6
        A(f"v_lshrrev_b32 {vr(vT)}, 6, v0")
        A(f"v_and_b32 {vr(vL)}, 63, v0")
        A(f"v_readfirstlane_b32 {sr(sW)}, {vr(vT)}")
        A(f"s_and_b32 {sr(sG)}, s2, 7")
        A(f"s_lshr_b32 {sr(sT0)}, s2, 3")
        A(f"s_and_b32 {sr(sB)}, {sr(sT0)}, 15")
        A(f"s_lshr_b32 {sr(sRole)}, {sr(sT0)}, 4")
        A(f"s_and_b32 {sr(sOrd)}, {sr(sT0)}, {opt.get('ordmask', 1)}")
        A(f"s_cmp_lg_u32 {sr(sOrd)}, 0")
        A(f"s_cselect_b32 {sr(sOrd)}, 2, 1")
        A(f"s_mul_i32 {sr(sOrd)}, {sr(sOrd)}, {sr(sRole)}")
        A(f"s_and_b32 {sr(sT1)}, {sr(sW)}, 3")
        A(f"s_lshl_b32 {sr(sW1024)}, {sr(sT1)}, 10")
        c("DMA lane offsets: row = 4(w&3) + (l>>4) (+16), 32-byte chunk XOR key(row)")
        t0, t1, t2, t3, t4, t5 = vT, vT + 1, vT + 2, vT + 3, vT + 4, vT + 5
        A(f"v_lshrrev_b32 {vr(t0)}, 4, {vr(vL)}")
        A(f"s_lshl_b32 {sr(sT0)}, {sr(sW)}, 1")
        A(f"s_and_b32 {sr(sT0)}, {sr(sT0)}, 4")
        A(f"v_or_b32 {vr(t1)}, {sr(sT0)}, {vr(t0)}")
        A(f"v_bfe_u32 {vr(t2)}, {vr(vL)}, 1, 3")
        A(f"v_xor_b32 {vr(t1)}, {vr(t1)}, {vr(t2)}")
        A(f"v_lshlrev_b32 {vr(t1)}, 5, {vr(t1)}")
        A(f"v_and_b32 {vr(t2)}, 1, {vr(vL)}")
        A(f"v_lshl_or_b32 {vr(vChunk)}, {vr(t2)}, 4, {vr(t1)}")
        A(f"s_lshl_b32 {sr(sT0)}, {sr(sT1)}, 2")
        A(f"v_add_u32 {vr(vRow)}, {sr(sT0)}, {vr(t0)}")
        A(f"v_lshl_add_u32 {vr(vCur[0])}, {vr(vRow)}, {ROWSH[T_WQ]}, {vr(vChunk)}")
        c("first B head: 4g for the A role, 4g+1 for the B role")
        A(f"s_lshl_b32 {sr(sT4)}, {sr(sG)}, 2")
        A(f"s_add_u32 {sr(sT4)}, {sr(sT4)}, 1")
        A(f"s_sub_u32 {sr(sT4)}, {sr(sT4)}, {sr(sRole)}")
        A(f"s_lshl_b32 {sr(sE)}, {sr(sT4)}, 8")
        A(f"s_getpc_b64 {sr(sT2,2)}")
        lab("L_pc0")
        A(f"s_lshl_b32 {sr(sT0)}, {sr(sOrd)}, 8")
        A(f"s_add_u32 {sr(sT0)}, {sr(sT0)}, L_table-L_pc0")
        A(f"v_lshl_add_u32 {vr(vTab)}, {vr(vL)}, 2, {sr(sT0)}")
        A(f"global_load_dword {vr(vTab)}, {vr(vTab)}, {sr(sT2,2)}")
        self.x_setup(vY, sHalf[0], sHalf[1])
        if opt.get("prost"):
            self.stamp(15)
        A(f"s_bitcmp1_b32 {sr(sW)}, 2")
        A("s_waitcnt lgkmcnt(0)")
        self.srd(SRD_AUX, sBx, 786432)
        self.srd(SRD_WQW, sAwq, 4194304)
        self.srd(SRD_WQ, sBwq, 4194304)
        self.srd(SRD_CUR[0], sBwq, 4194304)
        self.srd(SRD_CUR[1], sBwq, 4194304)
        A("s_cbranch_scc1 L_pro_ld")
        A(f"s_cmp_eq_u32 {sr(sRole)}, 1")
        A("s_cbranch_scc1 L_pro_done")
        self.weight_prefetch([(sBwq, True, 1, 1)], single=True)
        A("s_branch L_pro_done")
        lab("L_pro_ld")
        A(f"s_cmp_eq_u32 {sr(sOrd)}, 1")
        A(f"s_cselect_b64 {sr(SRD_AUX,2)}, {sr(sAx,2)}, {sr(sBx,2)}")
        A(f"s_cselect_b64 {sr(SRD_CUR[0],2)}, {sr(sAwq,2)}, {sr(sBwq,2)}")
        A(f"s_mov_b32 {sr(sStr[1])}, {32*8192}")
        A(f"s_cselect_b32 {sr(sStr[0])}, 256, {sr(sStr[1])}")
        A(f"s_cselect_b32 {sr(sStr[1])}, {sr(sStr[1])}, {128*8192}")
        A(f"s_cselect_b32 {sr(sI[0])}, {sr(sB)}, 0")
        A(f"s_lshr_b32 {sr(sOff2)}, {sr(sI[0])}, 2")
        A(f"s_mov_b32 {sr(sTy[0])}, {sr(sE)}")
        self.x_rot(vY, 0)
        self.first_tile(0)
        self.x_rot(vY, 1)
        if opt.get("prost"):
            self.stamp(15)
        lab("L_pro_done")
        self.frag_addrs()
        A(f"s_cmp_eq_u32 {sr(sOrd)}, 1")
        for d, pa, pb, za, zb in ((SRD_K, sAk, sBk, 16777216, 67108864), (SRD_V, sAv, sBv, 16777216, 67108864), (SRD_WO, sAwo, sBwo, 4194304, 4194304)):
            A(f"s_cselect_b64 {sr(d,2)}, {sr(pa,2)}, {sr(pb,2)}")
            A(f"s_mov_b32 {sr(d+2)}, {zb}")
            if za != zb:
                A(f"s_cselect_b32 {sr(d+2)}, {za}, {sr(d+2)}")
            A(f"s_mov_b32 {sr(d+3)}, 0x20000")
        c("tile table: entry = constant + base selected by bits 4:3 (Wq head, B K/V unit, Wo head, A K/V unit)")
        bq, bkv, bo, bka = sT0, sT1, sT2, sT3
        A(f"s_lshl_b32 {sr(bq)}, {sr(sT4)}, 8")
        A(f"s_lshl_b32 {sr(bkv)}, {sr(sB)}, 5")
        A(f"s_add_u32 {sr(bkv)}, {sr(bkv)}, {sr(sT4)}")
        A(f"s_lshl_b32 {sr(bkv)}, {sr(bkv)}, 17")
        A(f"s_lshl_b32 {sr(bo)}, {sr(sT4)}, 17")
        A(f"s_lshl_b32 {sr(bka)}, {sr(sB)}, 3")
        A(f"s_add_u32 {sr(bka)}, {sr(bka)}, {sr(sG)}")
        A(f"s_lshl_b32 {sr(bka)}, {sr(bka)}, 17")
        A(f"s_cmp_eq_u32 {sr(sRole)}, 1")
        A(f"s_cselect_b32 {sr(sHead)}, 1, 3")
        A(f"v_mov_b32 {vr(vT+1)}, {sr(bq)}")
        self.is_loader("L_tabw")
        if self.fuse:
            self.srd(SRD_CUR[1], sWs, 268435456)
            self.lane(vT + 3)
            A(f"v_lshlrev_b32 {vr(vT+3)}, 2, {vr(vT+3)}")
            A(f"s_lshl_b32 {sr(sT5)}, {sr(sB)}, 8")
            A(f"s_add_u32 {sr(sT5)}, {sr(sT5)}, {WS_FLAGS}")
            A(f"s_mov_b32 m0, {ENTRY}")
            A(f"s_cmp_eq_u32 {sr(sW)}, 3")
            A("s_cbranch_scc0 L_tabw0")
            A(f"buffer_load_dword {vr(vT+3)}, {sr(SRD_CUR[1],4)}, {sr(sT5)} offen sc1 lds")
            lab("L_tabw0")
        A("s_waitcnt vmcnt(0)")
        lab("L_tabw")
        A("s_waitcnt vmcnt(14)")
        A(f"v_bfe_u32 {vr(vT)}, {vr(vTab)}, 3, 2")
        for k, base in ((1, bkv), (2, bo), (3, bka)):
            A(f"v_cmp_eq_u32 vcc, {k}, {vr(vT)}")
            A(f"v_mov_b32 {vr(vT+2)}, {sr(base)}")
            A("s_nop 0")
            A(f"v_cndmask_b32 {vr(vT+1)}, {vr(vT+1)}, {vr(vT+2)}, vcc")
        A(f"s_lshl_b32 {sr(sT5)}, {sr(sB)}, 18")
        A(f"v_and_b32 {vr(vT)}, 7, {vr(vTab)}")
        A(f"v_cmp_eq_u32 vcc, {T_WQW}, {vr(vT)}")
        A(f"v_add_u32 {vr(vT+2)}, {sr(sT5)}, {vr(vTab)}")
        A(f"v_and_b32 {vr(vT+2)}, 0x3fffff, {vr(vT+2)}")
        A(f"v_cndmask_b32 {vr(vTab)}, {vr(vTab)}, {vr(vT+2)}, vcc")
        A(f"v_add_u32 {vr(vTab)}, {vr(vTab)}, {vr(vT+1)}")
        A(f"s_mov_b32 {sr(sIdx)}, 3")
        A(f"s_mov_b32 {sr(sC)}, 0")
        A(f"v_readlane_b32 {sr(sE)}, {vr(vTab)}, 3")

        def const(ty, hh, t, a_unit=False):
            if ty == T_WQ:
                return t * 128 * 8192 + hh * 256 + ty
            if ty == T_WQW:
                return t * 32 * 8192 + ty
            if ty in (T_K, T_V):
                return hh * 131072 + t * 32768 + ty + (24 if a_unit else 8)
            return (hh * 128 + 32 * t) * 1024 + ty + 16

        tb = [const(T_WQ, 0, t) for t in range(4)] + [const(T_K, 0, t) for t in range(4)]
        tb += [const(T_WQ, hh, t) for hh in (1, 2) for t in range(4)]
        tb += [const(ty, 0, t) for ty in (T_V, T_WO) for t in range(4)]
        tb += [const(ty, hh, t) for hh in (1, 2) for ty in (T_K, T_V, T_WO) for t in range(4)]
        ta = [const(T_WQW, 0, t) for t in range(16)]
        ta += [const(ty, 0, t, True) for t in range(4) for ty in (T_K, T_V)]
        ta += [const(T_WO, hh, t) for hh in range(4) for t in range(4)]
        ta += [const(ty, 0, t) for ty in (T_WQ, T_K, T_V, T_WO) for t in range(4)]
        tc = ta[40:] + ta[:40]
        self.table = sum((t + [NULL_OFF] * (64 - len(t)) for t in (tb, ta, tc)), [])
        A(f"s_mov_b32 {sr(sScale)}, {f32(math.log2(math.e) / math.sqrt(128.0))}")
        A(f"s_mov_b32 {sr(sThr)}, 0x41000000")
        A(f"s_mov_b32 {sr(sZero)}, 1")
        A(f"v_mov_b32 {vr(vT)}, {RELAY}")
        A(f"v_mov_b64 {vr(vT+2,2)}, 0")
        A(f"ds_write_b64 {vr(vT)}, {vr(vT+2,2)}")
        self.stamp(0)

        A(f"s_mov_b32 {sr(sHook)}, 0")
        A(f"s_mov_b32 {sr(sThrot)}, 0")
        A(f"s_mov_b32 {sr(sPend)}, 0")
        A(f"s_cmp_eq_u32 {sr(sOrd)}, 1")
        A("s_cbranch_scc1 L_apath")
        lab("L_q0")
        c("Q projection of the first B head (scaled by log2(e)/sqrt(128))")
        A(f"s_mov_b32 {sr(sLate)}, 2")
        A(f"s_call_b64 {sr(LINK_S,2)}, L_qproj")
        def q_write(src, blk):
            A(f"v_xor_b32 {vr(vT+6)}, 32, {vr(vQW)}")
            for m in range(2):
                for n in range(3):
                    A(f"ds_write_b64 {vr(vT+6 if m else vQW)}, {vr(src+(m*3+n)*2,2)} offset:{n*XN+blk*BLK}")

        self.is_loader("L_q0ld")
        q_write(vAcc, 4)
        A(f"s_cmp_eq_u32 {sr(sRole)}, 1")
        A("s_cbranch_scc1 L_q0done")
        self.weight_prefetch([(sBwq, True, 2), (sBwq, True, 0, 0), (sBwo, False, 0), (sBwo, False, 2), (sAwo, False, 0), (sAwo, False, 2)], single=True)
        A("s_branch L_q0done")
        lab("L_q0ld")
        self.frag_addrs()
        lab("L_q0done")
        self.stamp(1)
        A("s_branch L_bpath")
        lab("L_apath")
        c("GQA group: four query heads sharing one K/V")
        A(f"s_mov_b32 {sr(sHook)}, 0")
        A(f"s_mov_b32 {sr(sBlk)}, {sr(sB)}")
        A(f"s_mov_b32 {sr(sBlkEnd)}, {3*BLK}")
        A(f"s_mov_b32 {sr(sLate)}, 3")
        A(f"s_call_b64 {sr(LINK_S,2)}, L_wide")
        c("wave c < 4 holds Q of head c; x is dead after the drain barrier")
        self.is_loader("L_qa_ld")
        A("s_barrier")
        A(f"s_mul_i32 {sr(sT0)}, {sr(sW)}, {BLK}")
        self.act_write_addr(sT0, None)
        A(f"v_mov_b32 {vr(vT+4)}, {sr(sScale)}")

        def qpack(jp):
            g = []
            for j in (2 * jp, 2 * jp + 1):
                g.append([f"v_xor_b32 {vr(vT+2+j%2)}, {j*32}, {vr(vT+1)}"])
                for n in range(3):
                    y = vY + (j * 3 + n) * 4
                    g += [[self.pkmul(y, vT + 4)], [self.pkmul(y + 2, vT + 4)],
                          [f"v_cvt_pk_bf16_f32 {vr(y)}, {vr(y)}, {vr(y+1)}"], [f"v_cvt_pk_bf16_f32 {vr(y+1)}, {vr(y+2)}, {vr(y+3)}"],
                          [f"ds_write_b64 {vr(vT+2+j%2)}, {vr(y,2)} offset:{n*XN}"]]
            return g

        self.wide_drain(qpack)
        A("s_branch L_qa_done")
        lab("L_qa_ld")
        self.head(8)
        for k in range(4):
            self.dma(k, 0, True, guard=False)
        lab("L_qa_done")
        self.stamp(7)
        c("wave = (head w>>1, key half w&1); O slot j holds d tile j ^ 4(w&1)")
        A(f"s_and_b32 {sr(sT0)}, {sr(sW)}, 1")
        A(f"s_lshl_b32 {sr(sT2)}, {sr(sT0)}, 14")
        A(f"s_lshl_b32 {sr(sT3)}, {sr(sT0)}, 7")
        A(f"s_lshl_b32 {sr(sT0)}, {sr(sT0)}, 10")
        A(f"s_lshr_b32 {sr(sT1)}, {sr(sW)}, 1")
        A(f"s_mul_i32 {sr(sBlk)}, {sr(sT1)}, {BLK}")
        A(f"s_lshl_b32 {sr(sT1)}, {sr(sT1)}, 13")
        A(f"s_add_u32 {sr(sT0)}, {sr(sT0)}, {sr(sT1)}")
        A(f"s_sub_u32 {sr(sT0)}, {sr(sT2)}, {sr(sT0)}")
        A(f"v_add_u32 {vr(vKa)}, {sr(sT0)}, {vr(vKb)}")
        A(f"v_xor_b32 {vr(vTRa)}, {sr(sT3)}, {vr(vTR0)}")
        A(f"v_add_u32 {vr(vTRa)}, {sr(sT2)}, {vr(vTRa)}")
        c("tiles alternate over four slots: the three ring slots and the activation region")
        sKs, sVs, sXa, sXb, sX, sEv = sQ[0], sQ[1], sQ[2], sQ[3], [sT1, sT2], sT0
        A(f"s_mov_b32 {sr(sKs)}, {sr(sC)}")
        self.weave([], self.rot())
        A(f"s_mov_b32 {sr(sVs)}, {sr(sC)}")
        self.weave([], self.rot())
        A(f"s_xor_b32 {sr(sXa)}, {sr(sKs)}, {sr(sC)}")
        A(f"s_xor_b32 {sr(sXb)}, {sr(sVs)}, {XB}")
        A(f"v_add_u32 {vr(vT)}, {sr(sKs)}, {vr(vKa)}")
        for s in range(1, 4):
            A(f"v_xor_b32 {vr(vT+s)}, {s*64}, {vr(vT)}")
        c("load parameters: set pv carries V tiles, set pk carries K tiles (waves 0-3: pv = 0, waves 4-7: pv = 1)")
        A(f"s_lshl_b32 {sr(sT3)}, {sr(sB)}, 3")
        A(f"s_add_u32 {sr(sT3)}, {sr(sT3)}, {sr(sG)}")
        A(f"s_lshl_b32 {sr(sT3)}, {sr(sT3)}, 17")
        A(f"s_lshl_b32 {sr(sT4)}, {sr(sW)}, 10")
        A(f"s_and_b32 {sr(sT5)}, {sr(sT4)}, 4096")
        A(f"s_add_u32 {sr(sT3)}, {sr(sT3)}, {sr(sT5)}")
        A(f"s_add_u32 {sr(sT5)}, {sr(sVs)}, {sr(sT4)}")
        A(f"s_add_u32 {sr(sT4)}, {sr(sC)}, {sr(sT4)}")
        self.weave([], self.rot())
        A(f"s_add_u32 {sr(sP0)}, {sr(sT3)}, {32768-8192}")
        A(f"s_add_u32 {sr(sP1)}, {sr(sT3)}, {65536-8192}")
        A(f"s_bitcmp1_b32 {sr(sW)}, 2")
        for q in range(2):
            lo = ("%s, %s" if q else "%s, %s")
            def sel(y, x):
                return (y, x) if q else (x, y)
            A(f"s_cselect_b64 {sr(SRD_CUR[q],2)}, " + ", ".join(sel(sr(SRD_V, 2), sr(SRD_K, 2))))
            A(f"s_mov_b32 {sr(SRD_CUR[q]+2)}, 16777216")
            A(f"s_cselect_b32 {sr(sOff[q])}, " + ", ".join(sel(sr(sP0), sr(sP1))))
            A(f"s_cselect_b32 {sr(sI[q])}, " + ", ".join(sel(sr(sT5), sr(sT4))))
            A(f"s_cselect_b32 {sr(sX[q])}, " + ", ".join(sel(sr(sXb), sr(sXa))))
            A(f"s_mov_b32 {sr(sStr[q])}, 8192")
            A(f"s_mov_b32 {sr(sTy[q])}, {T_K}")
            A(f"v_lshl_add_u32 {vr(vCur[q])}, {vr(vRow)}, 8, {vr(vChunk)}")
        A(f"s_mov_b32 {sr(sEv)}, 0")
        for n in range(3):
            self.zero(vNm[n], 4)
        A(f"s_mov_b32 {sr(sFix)}, 0")
        A(f"s_mov_b32 {sr(sIter)}, 4")

        def sa(sg, n, t):
            return vS + ((sg * 3 + n) * 2 + t) * 4

        def fa(f):
            return vAfA + (f % NFA) * 4

        def kread(f):
            j, s = f // 4, f % 4
            A(f"ds_read_b128 {vr(fa(f),4)}, {vr(vT+s)} offset:{(j//2)*8192+(j%2)*1024}")

        def sm_check(sg, lr, ln):
            f = [[x] for x in self.maxn(vDl, [sa(sg, 0, 0) + r for r in range(24)])]
            return f + [[f"v_cmp_lt_f32 vcc, {sr(sThr)}, {vr(vDl)}", f"s_cbranch_vccnz {lr}", ln + ":"]]

        def sm_exp(sg):
            f = []
            for n in range(3):
                b = sa(sg, n, 0)
                for r in range(8):
                    f.append([f"v_exp_f32 {vr(b+r)}, {vr(b+r)}"])
                    if r in (3, 5, 7):
                        f.append([f"v_cvt_pk_bf16_f32 {vr(b+(r-3)//2)}, {vr(b+r-3)}, {vr(b+r-2)}"])
                f.append(["s_nop 0", f"v_cvt_pk_bf16_f32 {vr(b+3)}, {vr(b+6)}, {vr(b+7)}"] if n == 2 else
                         [f"v_exp_f32 {vr(b+8)}, {vr(b+8)}", f"v_cvt_pk_bf16_f32 {vr(b+3)}, {vr(b+6)}, {vr(b+7)}"])
            out, skip = [], set()
            for n in (1, 2):
                skip.add(f"v_exp_f32 {vr(sa(sg,n,0))}, {vr(sa(sg,n,0))}")
            for g in f:
                if len(g) == 1 and g[0] in skip:
                    continue
                out.append(g)
            return out

        def aprep(q):
            l1, l2 = self.new("wo"), self.new("wb")
            self.cold += [l1 + ":",
                          f"  s_mov_b64 {sr(SRD_CUR[q],2)}, {sr(SRD_WO,2)}", f"  s_mov_b32 {sr(SRD_CUR[q]+2)}, 4194304",
                          f"  s_mov_b32 {sr(sStr[q])}, 256", f"  s_mov_b32 {sr(sTy[q])}, {T_WO}",
                          f"  v_lshl_add_u32 {vr(vCur[q])}, {vr(vRow)}, 10, {vr(vChunk)}",
                          f"  s_lshl_b32 {sr(sOff[q])}, {sr(sG)}, 4", f"  s_add_u32 {sr(sOff[q])}, {sr(sOff[q])}, {sr(sEv)}",
                          f"  s_sub_u32 {sr(sOff[q])}, {sr(sOff[q])}, 6", f"  s_lshl_b32 {sr(sOff[q])}, {sr(sOff[q])}, 15",
                          f"  s_and_b32 {sr(sP0)}, {sr(sW)}, 4", f"  s_lshl_b32 {sr(sP0)}, {sr(sP0)}, 12",
                          f"  s_add_u32 {sr(sOff[q])}, {sr(sOff[q])}, {sr(sP0)}",
                          f"  s_branch {l2}"]
            return [[f"s_xor_b32 {sr(sI[q])}, {sr(sI[q])}, {sr(sX[q])}"],
                    [f"s_add_u32 {sr(sEv)}, {sr(sEv)}, 1", f"s_cmp_ge_u32 {sr(sEv)}, 6", f"s_cbranch_scc1 {l1}", l2 + ":"]]

        def kstep(first):
            u = "f" if first else "l"
            self.early_head(8 if first else 4, lambda: [kread(f) for f in range(NFA)],
                            (lambda: self.load_bfrags_dyn(vLq[0], QA)) if first else None)
            self.ks(2)
            prim = []
            for f in range(16):
                j, s = f // 4, f % 4
                if s == 0:
                    prim.append(self.D1(j, 1, first))
                if f % 2 == 0:
                    prim.append(("w", [f"  s_waitcnt lgkmcnt({max(0, min(f + NFA, 16) - (f + 2))})"]))
                for n in range(3):
                    prim.append(self.M(sa(j // 2, n, j % 2), fa(f), QA[n * 4 + s], vNm[n] if s == 0 else None))
                if f + NFA < 16:
                    prim.append(("r", self.cap(kread, f + NFA)))
                if f == 7:
                    half = len(prim)
            zf = []
            if first:
                zf = [[f"v_mov_b64 {vr(vO+k,2)}, 0"] for k in range(0, 96, 2)]
                zf += [[f"v_mov_b64 {vr(vLq[n]+k,2)}, 0"] for n in range(3) for k in (0, 2)]
                zf += [[f"v_mov_b32 {vr(vOne+k)}, 0x3f803f80"] for k in range(4)]
            self.weave(prim[:half], aprep(0) + [[f"s_xor_b32 {sr(sKs)}, {sr(sKs)}, {sr(sXa)}"]] + zf, per=3 if first else 1)
            self.ks()
            if opt.get("prio", 1) == 1:
                A("s_setprio 1")
            fill = [[f"s_branch L_r0first", "L_n0f:"]] if first else sm_check(0, "L_r0", "L_n0l")
            fill += sm_exp(0)
            self.weave(prim[half:], fill, per=3, start=10)
            self.ks()
            A(f"s_cmp_eq_u32 {sr(sFix)}, 0")
            A(f"v_add_u32 {vr(vT)}, {sr(sVs)}, {vr(vTRa)}")
            A("s_nop 5")
            A(f"s_cbranch_scc0 L_r0b{u}")
            lab(f"L_n0b{u}")
            self.weave([], sm_check(1, f"L_r1{u}", f"L_n1{u}"))
            self.ks(13)

        def va(mt):
            return vT if mt == 0 else sa(0, (mt - 1) // 4, 0) + 4 + (mt - 1) % 4

        def vread(q):
            sg, mt = q // 8, q % 8
            if mt and not sg:
                A(f"v_xor_b32 {vr(va(mt))}, {mt*32}, {vr(vT)}")
            self.tr_pair(fa(q), va(mt), sg * 8192)

        c("waves 4-7 run one interval behind waves 0-3")
        A(f"s_bitcmp1_b32 {sr(sW)}, 2")
        A("s_cbranch_scc0 L_att0")
        if opt.get("prio", 1) == 2:
            A("s_setprio 1")
        self.weave([], aprep(1))
        self.load_bfrags_dyn(vLq[0], QA)
        lab("L_att0")
        kstep(True)
        lab("L_attA")
        self.early_head(4, lambda: [vread(q) for q in range(NFA)])
        self.ks(4)
        prim = []
        for q in range(16):
            sg, mt = q // 8, q % 8
            if q % 2 == 0 and q < 8:
                prim.append(self.D1(q // 2, 0))
            if mt == 0:
                for n in range(3):
                    prim.append(self.M(vLq[n], vOne, sa(sg, n, 0)))
            if q % 2 == 0:
                prim.append(("w", [f"  s_waitcnt lgkmcnt({2 * max(0, min(q + NFA, 16) - (q + 2))})"]))
            for n in range(3):
                prim.append(self.M(vO + (mt * 3 + n) * 4, fa(q), sa(sg, n, 0)))
            if q + NFA < 16:
                prim.append(("r", self.cap(vread, q + NFA)))
                lastr = len(prim)
            if q == 7:
                half = len(prim)
        self.weave(prim[:half], sm_exp(1), per=2)
        if opt.get("prio", 1) == 1:
            A("s_setprio 0")
        self.ks()
        A(f"s_cmp_eq_u32 {sr(sIter)}, 1")
        A("s_cbranch_scc1 L_attlast")
        fill = aprep(1) + [[f"s_xor_b32 {sr(sVs)}, {sr(sVs)}, {sr(sXb)}"]]
        fill.append((lastr - half, [f"v_add_u32 {vr(vT)}, {sr(sKs)}, {vr(vKa)}"]))
        for s in range(1, 4):
            fill.append([f"v_xor_b32 {vr(vT+s)}, {s*64}, {vr(vT)}"])
        self.weave(prim[half:], fill, per=1)
        self.stamp(13)
        A(f"s_sub_u32 {sr(sIter)}, {sr(sIter)}, 1")
        kstep(False)
        A("s_branch L_attA")
        lab("L_attlast")
        self.weave(prim[half:], aprep(1), per=1)
        self.is_loader("L_attdone")
        self.head(None)
        for k in range(4):
            self.L += self.D1(k, 1)[1]
        A(f"v_mov_b32 {vr(vNm[1]+1)}, {vr(vNm[0])}")
        self.frag_addrs()
        A("s_branch L_attdone2")
        lab("L_attdone")
        A(f"v_mov_b32 {vr(vNm[1]+1)}, {vr(vNm[0])}")
        lab("L_attdone2")
        nmr = [vNm[1] + 1, vNm[1], vNm[2]]
        A("s_setprio 0")
        A(f"s_cmp_eq_u32 {sr(sOrd)}, 1")
        A(f"s_cselect_b32 {sr(sIdx)}, {IDX_AFTER_ATT[0]}, {IDX_AFTER_ATT[1]}")
        A(f"v_readlane_b32 {sr(sE)}, {vr(vTab)}, {sr(sIdx)}")
        self.stamp(8)
        c("merge the two key halves of each head")
        self.srd(SRD_K, sBk, 67108864)
        self.srd(SRD_V, sBv, 67108864)
        self.lane(vT + 3)
        A(f"v_and_b32 {vr(vT)}, 15, {vr(vT+3)}")
        A(f"v_lshlrev_b32 {vr(vT)}, 3, {vr(vT)}")
        A(f"s_mul_i32 {sr(sT0)}, {sr(sW)}, 384")
        A(f"s_add_u32 {sr(sT0)}, {sr(sT0)}, {ST}")
        A(f"v_add_u32 {vr(vT+1)}, {sr(sT0)}, {vr(vT)}")
        A(f"s_xor_b32 {sr(sT1)}, {sr(sW)}, 1")
        A(f"s_mul_i32 {sr(sT0)}, {sr(sT1)}, 384")
        A(f"s_add_u32 {sr(sT0)}, {sr(sT0)}, {ST}")
        A(f"v_add_u32 {vr(vT+2)}, {sr(sT0)}, {vr(vT)}")
        for n in range(3):
            A(f"v_mov_b32 {vr(vLq[n]+1)}, {vr(nmr[n])}")
            A(f"ds_write_b64 {vr(vT+1)}, {vr(vLq[n],2)} offset:{n*128}")
        self.head(None)
        for n in range(3):
            A(f"ds_read_b64 {vr(vAfA+8+2*n,2)}, {vr(vT+2)} offset:{n*128}")
        A(f"s_mul_i32 {sr(sT0)}, {sr(sW)}, 6144")
        A(f"s_add_u32 {sr(sT0)}, {sr(sT0)}, {XB}")
        A(f"s_mul_i32 {sr(sT1)}, {sr(sT1)}, 6144")
        A(f"s_add_u32 {sr(sT1)}, {sr(sT1)}, {XB}")
        A(f"v_lshlrev_b32 {vr(vT)}, 4, {vr(vT+3)}")
        A(f"v_add_u32 {vr(vT+1)}, {sr(sT0)}, {vr(vT)}")
        A(f"v_add_u32 {vr(vT+2)}, {sr(sT1)}, {vr(vT)}")
        A("s_waitcnt lgkmcnt(0)")
        fr = [vAfA + 2 * n for n in range(3)]
        for n in range(3):
            lo, mo = vAfA + 8 + 2 * n, vAfA + 9 + 2 * n
            m, f, fo = vAfA + 16 + n, fr[n], fr[n] + 1
            A(f"v_min_f32 {vr(m)}, {vr(nmr[n])}, {vr(mo)}")
            A(f"v_sub_f32 {vr(f)}, {vr(m)}, {vr(nmr[n])}")
            A(f"v_sub_f32 {vr(fo)}, {vr(m)}, {vr(mo)}")
            A(f"v_exp_f32 {vr(f)}, {vr(f)}")
            A(f"v_exp_f32 {vr(fo)}, {vr(fo)}")
            A("s_nop 0")
            A(f"v_mul_f32 {vr(m)}, {vr(f)}, {vr(vLq[n])}")
            A(f"v_fma_f32 {vr(m)}, {vr(fo)}, {vr(lo)}, {vr(m)}")
            A(f"v_rcp_f32 {vr(m)}, {vr(m)}")
            A("s_nop 0")
            A(f"v_mul_f32 {vr(f)}, {vr(f)}, {vr(m)}")
        c("slots 4-7 go to the partner wave, scaled and packed to bf16")
        for k in range(24):
            o = vO + 48 + 2 * k
            A(self.pkmul(o, fr[(k // 2) % 3]))
        for k in range(24):
            o = vO + 48 + 2 * k
            A(f"v_cvt_pk_bf16_f32 {vr(vS+k)}, {vr(o)}, {vr(o+1)}")
            if k % 4 == 3:
                A(f"ds_write_b128 {vr(vT+1)}, {vr(vS+k-3,4)} offset:{(k//4)*1024}")
        A(f"s_and_b32 {sr(sT0)}, {sr(sW)}, 1")
        A(f"s_lshl_b32 {sr(sT0)}, {sr(sT0)}, 3")
        A(f"s_mov_b32 {sr(sT2)}, 0xffff0000")
        self.head(None)
        for k in range(6):
            A(f"ds_read_b128 {vr(vS+24+4*k,4)}, {vr(vT+2)} offset:{k*1024}")
        self.act_write_addr(sBlk, sT0)
        self.head(0)
        for jj in range(4):
            if jj:
                A(f"v_xor_b32 {vr(vT+3)}, {jj*32}, {vr(vT+1)}")
            for n in range(3):
                k = (jj * 3 + n) * 2
                for h in range(2):
                    x = vS + 2 * h
                    A(f"v_lshlrev_b32 {vr(x)}, 16, {vr(vS+24+k+h)}")
                    A(f"v_and_b32 {vr(x+1)}, {sr(sT2)}, {vr(vS+24+k+h)}")
                    A(f"v_pk_fma_f32 {vr(x,2)}, {vr(vO+2*(k+h),2)}, {vr(fr[n],2)}, {vr(x,2)} op_sel_hi:[1,0,1]")
                    A(f"v_cvt_pk_bf16_f32 {vr(vS+4+(k+h)%8)}, {vr(x)}, {vr(x+1)}")
                A(f"ds_write_b64 {vr(vT+3 if jj else vT+1)}, {vr(vS+4+k%8,2)} offset:{n*XN}")
        A(f"s_mov_b32 {sr(sZero)}, 1")
        c("the loaders stream the B-branch x into the blocks the projection has finished with")
        self.srd(SRD_AUX, sBx, 786432)
        self.is_loader("L_xs")
        A("s_branch L_xs2")
        lab("L_xs")
        self.x_setup(vY)
        lab("L_xs2")
        A(f"s_and_b32 {sr(sHook)}, {sr(sOrd)}, 1")
        A(f"s_mov_b32 {sr(sLate)}, {sr(sOrd)}")
        self.stamp(9)
        A(f"s_mov_b32 {sr(sBlk)}, 0")
        A(f"s_call_b64 {sr(LINK_S,2)}, L_wide")
        A(f"s_lshl_b32 {sr(sT0)}, {sr(sB)}, 3")
        A(f"s_add_u32 {sr(sT0)}, {sr(sT0)}, {sr(sG)}")
        A(f"s_mul_i32 {sr(sT0)}, {sr(sT0)}, {PART}")
        A(f"s_add_u32 {sr(sT0)}, {sr(sT0)}, {PART_A_BASE}")
        A(f"s_cmp_eq_u32 {sr(sOrd)}, 2")
        A("s_cbranch_scc1 L_last")
        self.is_loader("L_apk")
        self.pack_y(True)
        lab("L_apk")
        A(f"s_mov_b32 {sr(sPend)}, 1")
        self.srd(SRD_WO, sBwo, 4194304)
        A(f"s_mov_b32 {sr(sZero)}, 1")
        self.stamp(10)
        A(f"s_mov_b32 {sr(sThrot)}, 0")
        A(f"s_mov_b32 {sr(sHook)}, 0")
        A("s_branch L_q0")
        lab("L_bpath")
        A(f"s_mov_b32 {sr(sBlk)}, {4*BLK}")

        lab("L_head")
        c("scores of one B head")
        if opt.get("thr"):
            A(f"s_lshl_b32 {sr(sT0)}, {sr(sHead)}, 2")
            A(f"s_add_u32 {sr(sT0)}, {sr(sT0)}, 0")
            A(f"s_lshr_b32 {sr(sThrot)}, {opt.get('thm', 0)}, {sr(sT0)}")
            A(f"s_andn2_b32 {sr(sThrot)}, {sr(sThrot)}, {sr(sRole)}")
            A(f"s_and_b32 {sr(sThrot)}, {sr(sThrot)}, 1")
        A(f"v_add_u32 {vr(vT)}, {sr(sC)}, {vr(vKb)}")
        for s in range(1, 4):
            A(f"v_xor_b32 {vr(vT+s)}, {s*64}, {vr(vT)}")
        rf = [vQs + 12, vQs + 14, vQs + 16]
        sm = [vQs + 18, vQs + 20, vQs + 22]

        def st(t, n):
            return vS + (t * 3 + n) * 4

        def b_sub(t):
            return [[f"v_pk_add_f32 {vr(st(t,n)+r,2)}, {vr(st(t,n)+r,2)}, {vr(rf[n],2)} op_sel_hi:[1,0] neg_lo:[0,1] neg_hi:[0,1]"]
                    for n in range(3) for r in (0, 2)]

        def b_check(t):
            f = [[x] for x in self.maxn(vT + 5, [st(t, 0) + r for r in range(12)])]
            return f + [[f"v_cmp_lt_f32 vcc, {sr(sThr)}, {vr(vT+5)}", f"s_cbranch_vccnz L_rb{t}", f"L_nb{t}:"]]

        def b_exp(t):
            f = [[f"v_exp_f32 {vr(st(t,0)+r)}, {vr(st(t,0)+r)}"] for r in range(12)]
            for n in range(3):
                b = st(t, n)
                if t == 0:
                    f.append([f"v_pk_add_f32 {vr(sm[n],2)}, {vr(b,2)}, {vr(b+2,2)}"])
                else:
                    f.append([f"v_pk_add_f32 {vr(sm[n],2)}, {vr(sm[n],2)}, {vr(b,2)}"])
                    f.append([f"v_pk_add_f32 {vr(sm[n],2)}, {vr(sm[n],2)}, {vr(b+2,2)}"])
                f.append([f"v_cvt_pk_bf16_f32 {vr(b)}, {vr(b)}, {vr(b+1)}"])
                f.append([f"v_cvt_pk_bf16_f32 {vr(b+1)}, {vr(b+2)}, {vr(b+3)}"])
            return f

        def b_max0():
            f = []
            for n in range(3):
                f += [[x] for x in self.maxn(sm[0] + n, [st(0, n) + r for r in range(4)])]
            f.append([x.strip() for x in self.cap(self.reduce4, sm[0], "v_max_f32")])
            f.append([f"ds_write_b32 {vr(vSTw)}, {vr(sm[0])}"])
            return f

        def b_ref0():
            f = [[f"v_max_f32 {vr(rf[n])}, {vr(rf[n])}, {vr(rf[n]+1)}" for n in range(3)]]
            for sw in ("v_permlane32_swap_b32", "v_permlane16_swap_b32"):
                f.append([f"v_mov_b32 {vr(rf[n]+1)}, {vr(rf[n])}" for n in range(3)] + ["s_nop 1"] +
                         [f"{sw} {vr(rf[n])}, {vr(rf[n]+1)}" for n in range(3)] + ["s_nop 1"] +
                         [f"v_max_f32 {vr(rf[n])}, {vr(rf[n])}, {vr(rf[n]+1)}" for n in range(3)])
            return f

        for T in range(4):
            p = T % 2
            self.head(8)
            if T == 1:
                for n in range(3):
                    A(f"ds_read_b64 {vr(rf[n],2)}, {vr(vT+5)} offset:{n*512}")
            if T == 3:
                l = self.new("pw")
                self.is_loader(l)
                A("s_waitcnt vmcnt(0)")
                lab(l)
            if T == 0:
                self.load_bfrags_dyn(vKf, QF)
            for s in range(4):
                A(f"ds_read_b128 {vr(vKf+4*s,4)}, {vr(vT+s)}")
            nxt = self.prep(1 - p)
            if T < 3:
                nxt.append([f"v_add_u32 {vr(vT+4)}, {sr(sC)}, {vr(vKb)}"])
                nxt += [[f"v_xor_b32 {vr(vT+s)}, {s*64}, {vr(vT+4)}"] for s in range(4)]
            self.weave([], nxt)
            if T == 0:
                A(f"v_mov_b32 {vr(vT+5)}, {FLAG}")
                A(f"v_mov_b32 {vr(vT+6)}, 0")
            prim = []
            for s in range(4):
                prim.append(("w", [f"  s_waitcnt lgkmcnt({3-s})"]))
                for n in range(3):
                    prim.append(self.M(st(T, n), vKf + 4 * s, QF[n * 4 + s], 0 if s == 0 else None))
                prim.append(self.D(s, p, True if T < 2 else None, True))
            fill = []
            if T == 1:
                fill = b_ref0() + b_sub(0) + b_exp(0)
            if T >= 2:
                fill = b_sub(T - 1) + b_check(T - 1) + b_exp(T - 1)
            self.weave(prim, fill, per=3)
            if T == 0:
                A(f"ds_write_b32 {vr(vT+5)}, {vr(vT+6)}")
                self.lane(vT + 5)
                A(f"v_lshrrev_b32 {vr(vT+5)}, 4, {vr(vT+5)}")
                A(f"v_lshl_add_u32 {vr(vT+5)}, {vr(vT+5)}, 3, {vr(vSTr)}")
                A("s_nop 2")
                self.weave([], b_max0())
        self.stamp(2)
        c("last score tile; a wave that had to raise its reference left a flag")
        A(f"v_mov_b32 {vr(vT+4)}, {FLAG}")
        A("s_nop 6")
        self.weave([], b_sub(3) + b_check(3) + b_exp(3))
        self.head(None)
        A(f"ds_read_b32 {vr(vT+4)}, {vr(vT+4)}")
        for n in range(3):
            A(f"v_add_f32 {vr(vT+n)}, {vr(sm[n])}, {vr(sm[n]+1)}")
        A("s_waitcnt lgkmcnt(0)")
        A(f"v_cmp_ne_u32 vcc, 0, {vr(vT+4)}")
        A("s_cbranch_vccnz L_bfix")
        lab("L_bfixed")
        self.reduce4(vT, "v_add_f32")
        A(f"ds_write_b32 {vr(vSTw)}, {vr(vT)} offset:1536")
        self.bsm = (rf, sm, st)
        if opt.get("thr"):
            A(f"s_lshl_b32 {sr(sT0)}, {sr(sHead)}, 2")
            A(f"s_add_u32 {sr(sT0)}, {sr(sT0)}, 1")
            A(f"s_lshr_b32 {sr(sThrot)}, {opt.get('thm', 0)}, {sr(sT0)}")
            A(f"s_andn2_b32 {sr(sThrot)}, {sr(sThrot)}, {sr(sRole)}")
            A(f"s_and_b32 {sr(sThrot)}, {sr(sThrot)}, 1")
        c("B role, first head: remaining Q projections while x is still live")
        A(f"s_mov_b32 {sr(sHook)}, 0")
        A(f"s_cmp_eq_u32 {sr(sHead)}, 3")
        A("s_cbranch_scc0 L_noq")
        for k in range(4):
            self.dma(k, 0, False)
        for k in range(2):
            A(f"s_mov_b32 {sr(sLate)}, {k}")
            A(f"s_call_b64 {sr(LINK_S,2)}, L_qproj")
            l = self.new("q")
            self.is_loader(l)
            for r in range(0, 12, 2):
                A(f"v_mov_b64 {vr(vQs+12*k+r,2)}, {vr(vAcc+r,2)}")
            if k:
                A("s_barrier")
            lab(l)
        self.stamp(12)

        def p_writes():
            for t in range(4):
                for n in range(3):
                    A(f"ds_write_b64 {vr(vPW)}, {vr(st(t,n),2)} offset:{n*XN+t*BLK}")

        p_writes()
        A("s_branch L_pdone")
        lab("L_noq")
        p_writes()
        for k in range(4):
            self.dma(k, 0, True, True, True)
        lab("L_pdone")
        mreg = [vS, vS + 8, vS + 16]
        self.stamp(3)
        c("P x V")
        A(f"s_mov_b32 {sr(sHook)}, 0")
        A(f"s_mov_b32 {sr(sBlkEnd)}, 0")
        A(f"s_mov_b32 {sr(sLate)}, 0")
        self.is_loader("L_pv_ld")
        pre1 = []
        for n in range(3):
            pre1.append(f"ds_read_b128 {vr(vS+8*n,4)}, {vr(vSTr)} offset:{n*512+1536}")
            pre1.append(f"ds_read_b128 {vr(vS+8*n+4,4)}, {vr(vSTr)} offset:{n*512+1536+16}")
        ex1 = []
        for n in range(3):
            b = vS + 8 * n
            ex1 += [[f"v_pk_add_f32 {vr(b,2)}, {vr(b,2)}, {vr(b+2,2)}"], [f"v_pk_add_f32 {vr(b+4,2)}, {vr(b+4,2)}, {vr(b+6,2)}"],
                    [f"v_pk_add_f32 {vr(b,2)}, {vr(b,2)}, {vr(b+4,2)}"], [f"v_add_f32 {vr(b)}, {vr(b)}, {vr(b+1)}"],
                    [f"v_rcp_f32 {vr(b)}, {vr(b)}"]]
        pre2 = [x.strip() for x in self.cap(q_write, vQs, 0)]
        ex2 = [[f"v_mov_b64 {vr(vQs+r,2)}, {vr(vQs+12+r,2)}"] for r in range(0, 12, 2)]
        def pend(n):
            l = self.new("pd")
            body = [x.strip() for x in self.cap(self.store_y, n, vT + 6)]
            return [f"s_cmp_eq_u32 {sr(sPend)}, 0", f"s_cbranch_scc1 {l}"] + body + [l + ":"]

        self.narrow(pre={1: pre1, 2: pre2}, extra={0: [pend(0)], 1: ex1 + [pend(1)], 2: ex2 + [pend(2)]}, early=True)
        A("s_nop 7")
        for k in range(6):
            a = vAcc + 4 * k
            A(self.pkmul(a, mreg[k % 3]))
            A(self.pkmul(a + 2, mreg[k % 3]))
            A(f"v_cvt_pk_bf16_f32 {vr(vAcc+2*k)}, {vr(a)}, {vr(a+1)}")
            A(f"v_cvt_pk_bf16_f32 {vr(vAcc+2*k+1)}, {vr(a+2)}, {vr(a+3)}")
        q_write(vAcc, 4)
        A("s_branch L_pv_done")
        lab("L_pv_ld")
        A(f"s_call_b64 {sr(LINK_S,2)}, L_load")
        lab("L_pv_done")
        self.stamp(4)
        if opt.get("thr"):
            A(f"s_lshl_b32 {sr(sT0)}, {sr(sHead)}, 2")
            A(f"s_add_u32 {sr(sT0)}, {sr(sT0)}, 2")
            A(f"s_lshr_b32 {sr(sThrot)}, {opt.get('thm', 0)}, {sr(sT0)}")
            A(f"s_andn2_b32 {sr(sThrot)}, {sr(sThrot)}, {sr(sRole)}")
            A(f"s_and_b32 {sr(sThrot)}, {sr(sThrot)}, 1")
        c("output projection")
        A(f"s_sub_u32 {sr(sHead)}, {sr(sHead)}, 1")
        A(f"s_mov_b32 {sr(sLate)}, 2")
        A(f"s_cmp_eq_u32 {sr(sOrd)}, 2")
        A("s_cbranch_scc0 L_ob")
        A(f"s_mov_b32 {sr(sLate)}, 1")
        A(f"s_mov_b32 {sr(sHook)}, 2")
        self.srd(SRD_K, sAk, 16777216)
        self.srd(SRD_V, sAv, 16777216)
        self.srd(SRD_AUX, sAx, 786432)
        lab("L_ob")
        A(f"s_mov_b32 {sr(sBlk)}, 16")
        A(f"s_call_b64 {sr(LINK_S,2)}, L_wide")
        self.stamp(5)
        A(f"s_mov_b32 {sr(sBlk)}, 0")
        A(f"s_cmp_eq_u32 {sr(sHead)}, 0")
        A("s_cbranch_scc1 L_bdone")
        self.is_loader("L_head")
        self.wide_drain()
        A("s_branch L_head")
        lab("L_bdone")
        c("store the B-branch partial")
        A(f"s_lshl_b32 {sr(sT0)}, {sr(sB)}, 4")
        A(f"s_lshl_b32 {sr(sT1)}, {sr(sRole)}, 3")
        A(f"s_add_u32 {sr(sT0)}, {sr(sT0)}, {sr(sT1)}")
        A(f"s_add_u32 {sr(sT0)}, {sr(sT0)}, {sr(sG)}")
        A(f"s_mul_i32 {sr(sT0)}, {sr(sT0)}, {PART}")
        A(f"s_cmp_eq_u32 {sr(sOrd)}, 2")
        A("s_cbranch_scc0 L_last")
        self.is_loader("L_bpk2")
        self.pack_y(True)
        for n in range(3):
            self.store_y(n, vT)
        lab("L_bpk2")
        self.srd(SRD_WO, sAwo, 4194304)
        A(f"s_mov_b32 {sr(sZero)}, 1")
        self.stamp(6)
        A("s_branch L_apath")
        lab("L_last")
        self.is_loader("L_bpk")
        self.pack_y(False)
        for n in range(3):
            self.store_y(n, vT)
        self.stamp(6)
        if self.fuse:
            self.publish()
        A("s_branch L_fin")
        lab("L_bpk")
        if self.fuse:
            c("waves 4-6 sum one 1 KiB block each of this workgroup's slice of the output")
            A(f"s_cmp_eq_u32 {sr(sW)}, 7")
            A("s_cbranch_scc1 L_fin")
            self.stamp(8)
            self.reduce_setup()
            A(f"s_lshl_b32 {sr(rKb)}, {sr(sRole)}, 3")
            A(f"s_add_u32 {sr(rKb)}, {sr(rKb)}, {sr(sG)}")
            A(f"s_mul_i32 {sr(rKb)}, {sr(rKb)}, 3")
            A(f"s_add_u32 {sr(rKb)}, {sr(rKb)}, {sr(sW)}")
            A(f"s_sub_u32 {sr(rKb)}, {sr(rKb)}, 4")
            A(f"s_cmp_eq_u32 {sr(sW)}, 4")
            A(f"s_cselect_b32 {sr(rMode)}, 0, 1")
            A(f"s_call_b64 {sr(LINK_S,2)}, L_reduce")
        lab("L_fin")
        if opt.get("dbg"):
            A("s_waitcnt vmcnt(0)")
            A("s_memrealtime s[76:77]")
            A("s_memtime s[68:69]")
            A("s_waitcnt lgkmcnt(0)")
            A("s_sub_u32 s68, s68, s78")
            A("v_mov_b32 v16, v23")
            A("v_mov_b32 v17, s76")
            A("v_mov_b32 v18, s68")
            A("v_mov_b32 v19, 0")
            A("s_lshl_b32 s70, s2, 4")
            A("s_add_u32 s70, s70, 0x4000000")
            A("v_mov_b32 v21, s70")
            A(f"s_cmp_eq_u32 s3, {4 if self.fuse else 0}")
            A("s_cbranch_scc0 L_end")
            A("s_mov_b64 exec, 1")
            A("global_store_dwordx4 v21, v[16:19], s[54:55]")
        if opt.get("stamps"):
            A("s_waitcnt vmcnt(0)")
            self.stamp(11)
            self.srd(SRD_AUX, sWs, 268435456)
            A(f"s_lshl_b32 {sr(sT0)}, s2, 3")
            A(f"s_add_u32 {sr(sT0)}, {sr(sT0)}, {sr(sW)}")
            A(f"s_lshl_b32 {sr(sT0)}, {sr(sT0)}, 8")
            A(f"s_add_u32 {sr(sT0)}, {sr(sT0)}, {64*1024*1024}")
            self.lane(vT)
            A(f"v_lshlrev_b32 {vr(vT)}, 2, {vr(vT)}")
            A(f"buffer_store_dword {vr(23)}, {vr(vT)}, {sr(SRD_AUX,4)}, {sr(sT0)} offen")
        lab("L_end")
        A("s_endpgm")

        sc = vLq[0] + 1

        def sub_delta(sg):
            for n in range(3):
                for r in range(8):
                    b = sa(sg, n, 0) + r
                    A(f"v_sub_f32 {vr(b)}, {vr(b)}, {vr(vDl+n)}")

        def allmax(sg):
            for n in range(3):
                self.emit(self.maxn(vDl + n, [sa(sg, n, 0) + r for r in range(8)]))
                for sw in ("v_permlane32_swap_b32", "v_permlane16_swap_b32"):
                    A(f"v_mov_b32 {vr(sc)}, {vr(vDl+n)}")
                    A("s_nop 1")
                    A(f"{sw} {vr(vDl+n)}, {vr(sc)}")
                    A("s_nop 1")
                    A(f"v_max_f32 {vr(vDl+n)}, {vr(vDl+n)}, {vr(sc)}")

        def scale_state(with_p0):
            for n in range(3):
                A(f"v_max_f32 {vr(vDl+n)}, 0, {vr(vDl+n)}")
                A(f"v_exp_f32 {vr(sc)}, -{vr(vDl+n)}")
                A("s_nop 0")
                A(f"v_mul_f32 {vr(vLq[n])}, {vr(vLq[n])}, {vr(sc)}")
                for mt in range(8):
                    for r in range(4):
                        o = vO + (mt * 3 + n) * 4 + r
                        A(f"v_mul_f32 {vr(o)}, {vr(o)}, {vr(sc)}")
                if with_p0:
                    b = sa(0, n, 0)
                    for r in range(4):
                        A(f"v_lshlrev_b32 {vr(b+4)}, 16, {vr(b+r)}")
                        A(f"v_and_b32 {vr(b+5)}, 0xffff0000, {vr(b+r)}")
                        A(f"v_mul_f32 {vr(b+4)}, {vr(b+4)}, {vr(sc)}")
                        A(f"v_mul_f32 {vr(b+5)}, {vr(b+5)}, {vr(sc)}")
                        A(f"v_cvt_pk_bf16_f32 {vr(b+r)}, {vr(b+4)}, {vr(b+5)}")

        lab("L_r0first")
        allmax(0)
        sub_delta(0)
        A(f"s_mov_b32 {sr(sFix)}, 1")
        A("s_branch L_n0f")
        lab("L_r0")
        allmax(0)
        scale_state(False)
        sub_delta(0)
        A(f"s_mov_b32 {sr(sFix)}, 1")
        A("s_branch L_n0l")
        for u in "fl":
            lab(f"L_r0b{u}")
            A(f"s_call_b64 {sr(LINK_S,2)}, L_fix1")
            A(f"s_branch L_n0b{u}")
            lab(f"L_r1{u}")
            A(f"s_call_b64 {sr(LINK_S,2)}, L_scale1")
            A(f"s_branch L_n1{u}")
        lab("L_scale1")
        allmax(1)
        scale_state(True)
        lab("L_fix1")
        sub_delta(1)
        for n in range(3):
            for r in range(4):
                A(f"v_sub_f32 {vr(vNm[n]+r)}, {vr(vNm[n]+r)}, {vr(vDl+n)}")
        A(f"s_mov_b32 {sr(sFix)}, 0")
        A(f"s_setpc_b64 {sr(LINK_S,2)}")

        self.L += self.cold
        rf, sm, st = self.bsm

        def repack(regs, f, lo, hi):
            for r in regs:
                A(f"v_lshlrev_b32 {vr(lo)}, 16, {vr(r)}")
                A(f"v_and_b32 {vr(hi)}, 0xffff0000, {vr(r)}")
                A(f"v_mul_f32 {vr(lo)}, {vr(lo)}, {vr(f)}")
                A(f"v_mul_f32 {vr(hi)}, {vr(hi)}, {vr(f)}")
                A(f"v_cvt_pk_bf16_f32 {vr(r)}, {vr(lo)}, {vr(hi)}")

        for t in range(1, 4):
            lab(f"L_rb{t}")
            d, f = vT + 5, vT + 6
            for n in range(3):
                self.emit(self.maxn(d, [st(t, n) + r for r in range(4)]))
                for sw in ("v_permlane32_swap_b32", "v_permlane16_swap_b32"):
                    A(f"v_mov_b32 {vr(f)}, {vr(d)}")
                    A("s_nop 1")
                    A(f"{sw} {vr(d)}, {vr(f)}")
                    A("s_nop 1")
                    A(f"v_max_f32 {vr(d)}, {vr(d)}, {vr(f)}")
                A(f"v_max_f32 {vr(d)}, 0, {vr(d)}")
                A(f"v_exp_f32 {vr(f)}, -{vr(d)}")
                A(f"v_add_f32 {vr(rf[n])}, {vr(rf[n])}, {vr(d)}")
                for r in range(4):
                    A(f"v_sub_f32 {vr(st(t,n)+r)}, {vr(st(t,n)+r)}, {vr(d)}")
                for r in (sm[n], sm[n] + 1):
                    A(f"v_mul_f32 {vr(r)}, {vr(r)}, {vr(f)}")
                repack([st(u, n) + k for u in range(t) for k in range(2)], f, st(0, n) + 2, st(0, n) + 3)
            A(f"s_lshl_b32 {sr(sT0)}, {sr(sW)}, 2")
            A(f"v_add_u32 {vr(d)}, {sr(sT0)}, {vr(vSTr)}")
            for n in range(3):
                A(f"ds_write_b32 {vr(d)}, {vr(rf[n])} offset:{n*512}")
            A(f"v_mov_b32 {vr(d)}, {FLAG}")
            A(f"v_mov_b32 {vr(f)}, 1")
            A(f"ds_write_b32 {vr(d)}, {vr(f)}")
            A(f"s_branch L_nb{t}")
        lab("L_bfix")
        for n in range(3):
            A(f"ds_read_b128 {vr(vFr,4)}, {vr(vSTr)} offset:{n*512}")
            A(f"ds_read_b128 {vr(vFr+4,4)}, {vr(vSTr)} offset:{n*512+16}")
            A("s_waitcnt lgkmcnt(0)")
            self.emit(self.maxn(rf[n] + 1, [rf[n]] + [vFr + r for r in range(8)]))
            A(f"v_sub_f32 {vr(rf[n])}, {vr(rf[n])}, {vr(rf[n]+1)}")
            A(f"v_exp_f32 {vr(rf[n])}, {vr(rf[n])}")
            A("s_nop 0")
            A(f"v_mul_f32 {vr(vT+n)}, {vr(vT+n)}, {vr(rf[n])}")
            repack([st(u, n) + k for u in range(4) for k in range(2)], rf[n], st(0, n) + 2, st(0, n) + 3)
        A("s_branch L_bfixed")

        if self.fuse:
            self.reduce_sub()
        lab("L_qproj")
        A(f"s_mov_b32 {sr(sBlkEnd)}, 0")
        self.is_loader("L_load")
        self.narrow()
        A(f"v_mov_b32 {vr(vT)}, {sr(sScale)}")
        A("s_nop 6")
        for k in range(6):
            a = vAcc + 4 * k
            A(self.pkmul(a, vT))
            A(self.pkmul(a + 2, vT))
            A(f"v_cvt_pk_bf16_f32 {vr(vAcc+2*k)}, {vr(a)}, {vr(a+1)}")
            A(f"v_cvt_pk_bf16_f32 {vr(vAcc+2*k+1)}, {vr(a+2)}, {vr(a+3)}")
        A(f"s_setpc_b64 {sr(LINK_S,2)}")

        def af(j, p):
            return vFr + 4 * (j + 2 * p if j >= 6 else j)

        def wb(n, p):
            return vAcc + (p * 3 + n) * 4

        def wide_rd(j, p):
            a = vT + 1 + (j % 2)
            A(f"v_xor_b32 {vr(a)}, {j*32}, {vr(vT+3+3*p)}")
            self.tr_pair(af(j, p), a, 0)

        def wide_addr(t):
            return [[f"s_add_u32 {sr(sT0)}, {sr(sC)}, {sr(sT1)}"],
                    [f"v_add_u32 {vr(vT+3+3*(t%2))}, {sr(sT0)}, {vr(vTR0)}"],
                    [f"s_and_b32 {sr(sT3)}, {sr(sBlk)}, 3"], [f"s_lshl_b32 {sr(sT3)}, {sr(sT3)}, 6"],
                    [f"s_lshr_b32 {sr(sT5)}, {sr(sBlk)}, 2"], [f"s_mul_i32 {sr(sT5)}, {sr(sT5)}, {BLK}"],
                    [f"v_xor_b32 {vr(vT+5)}, {sr(sT3)}, {vr(vXB)}"], [f"v_add_u32 {vr(vT+5)}, {sr(sT5)}, {vr(vT+5)}"]]

        def wide_step(t, pending, reads=True, zero=False):
            p = t % 2
            if reads:
                self.head(None)
            else:
                A("s_waitcnt lgkmcnt(0)")
            prim = []
            for j in range(8):
                if pending and not opt.get("nomfma"):
                    for n in range(3):
                        prim.append(self.M(vY + (j * 3 + n) * 4, af(j, 1 - p), wb(n, 1 - p), 0 if zero else None))
                if reads and not opt.get("nords"):
                    if j == 0:
                        prim.append(("r", [f"  ds_read_b128 {vr(wb(n,p),4)}, {vr(vT+5)} offset:{n*XN}" for n in range(3)]))
                    if j < 6:
                        prim.append(("r", self.cap(wide_rd, j, p)))
                    if j < 2:
                        prim.append(("r", self.cap(wide_rd, 6 + j, p)))
            fill = []
            if reads:
                fill = self.rot()
                if t == 3:
                    fill.append([f"s_add_u32 {sr(sT4)}, {sr(sT4)}, {BLK}"])
                fill += [[f"s_add_u32 {sr(sBlk)}, {sr(sBlk)}, 1"], [f"s_and_b32 {sr(sBlk)}, {sr(sBlk)}, {sr(sT2)}"]]
                fill += wide_addr((t + 1) % 4)
            self.weave(prim, fill, per=1, start=5)

        lab("L_wide")
        self.is_loader("L_load")
        A(f"s_lshl_b32 {sr(sT1)}, {sr(sW)}, 13")
        A(f"s_mov_b32 {sr(sT4)}, 0")
        A(f"s_cmp_eq_u32 {sr(sBlkEnd)}, 0")
        A(f"s_cselect_b32 {sr(sT2)}, 31, 15")
        self.weave([], wide_addr(0))
        wide_step(0, False)
        A(f"s_cmp_eq_u32 {sr(sZero)}, 0")
        A("s_cbranch_scc1 L_wide_loop")
        A(f"s_mov_b32 {sr(sZero)}, 0")
        wide_step(1, True, zero=True)
        A("s_branch L_wide_s2")
        lab("L_wide_loop")
        wide_step(1, True)
        lab("L_wide_s2")
        wide_step(2, True)
        wide_step(3, True)
        A(f"s_cmp_gt_u32 {sr(sT4)}, {sr(sBlkEnd)}")
        A("s_cbranch_scc1 L_wide_drain")
        wide_step(0, True)
        A("s_branch L_wide_loop")
        lab("L_wide_drain")
        A("s_waitcnt lgkmcnt(0)")
        A(f"s_setpc_b64 {sr(LINK_S,2)}")

        def ld_step(p, vm, prep=True, xblk=None):
            self.head(vm)
            l1, l2 = self.new("kv"), self.new("dd")
            variants = [self.wf] if self.kvf == self.wf else [self.wf, self.kvf]
            if len(variants) > 1:
                A(f"s_bitcmp1_b32 6, {sr(sTy[p])}")
                A(f"s_cbranch_scc1 {l1}")
            for vi, fl in enumerate(variants):
                if vi:
                    A(f"s_branch {l2}")
                    lab(l1)
                prim = []
                for k in range(8):
                    ins = [f"  s_add_u32 m0, {sr(sI[p])}, {k*4096}"]
                    if k % 2:
                        ins.append(f"  s_add_u32 {sr(sOff2)}, {sr(sOff[p])}, {sr(sHalf[p])}")
                    elif k:
                        ins.append(f"  s_add_u32 {sr(sOff[p])}, {sr(sOff[p])}, {sr(sStr[p])}")
                    else:
                        ins.append("  s_nop 0")
                    ins.append(f"  buffer_load_dwordx4 {vr(vCur[p])}, {sr(SRD_CUR[p],4)}, {sr(sOff2 if k % 2 else sOff[p])} offen{fl} lds")
                    if vi and k % 2 == 0:
                        ins = self.cap(self.throttle) + ins
                    prim.append(("m", ins))
                self.weave(prim, self.prep(1 - p) if prep else [], per=2)
            lab(l2)
            if xblk is not None:
                l3 = self.new("hk")
                A(f"s_cmp_eq_u32 {sr(sHook)}, 1")
                A(f"s_cbranch_scc0 {l3}")
                self.x_block(vY, 0)
                A(f"s_add_u32 {sr(sT1)}, {sr(sT1)}, 256")
                A(f"s_add_u32 {sr(sT2)}, {sr(sT2)}, {BLK}")
                lab(l3)

        lab("L_load")
        A(f"s_mov_b32 {sr(sT4)}, 0")
        A(f"s_cmp_eq_u32 {sr(sIdx)}, 3")
        A("s_cbranch_scc0 L_load1")
        self.head(3)
        self.first_tile(1)
        self.x_rot(vY, 2)
        self.first_tile(2)
        self.x_rot(vY, 3)
        A("s_branch L_load2")
        lab("L_load1")
        self.head(16)
        lab("L_load2")
        self.weave([], self.prep(1))
        lab("L_ldloop")
        ld_step(1, 8)
        A(f"s_cmp_eq_u32 {sr(sHook)}, 2")
        A("s_cbranch_scc0 L_ldh2")
        self.x_setup(vY)
        for blk in range(4):
            self.x_block(vY, blk)
        lab("L_ldh2")
        ld_step(0, 8)
        A(f"s_cmp_eq_u32 {sr(sLate)}, 3")
        A("s_cbranch_scc0 L_ld3")
        A(f"s_cmp_eq_u32 {sr(sT4)}, {sr(sBlkEnd)}")
        A("s_cbranch_scc0 L_ld3")
        self.head(8)
        self.weave([], self.prep(0))
        A("s_barrier")
        for k in range(4):
            self.dma(k, 1, True, guard=False)
        A(f"s_setpc_b64 {sr(LINK_S,2)}")
        lab("L_ld3")
        ld_step(1, 8)
        A(f"s_add_u32 {sr(sT4)}, {sr(sT4)}, {BLK}")
        A(f"s_cmp_gt_u32 {sr(sT4)}, {sr(sBlkEnd)}")
        A("s_cbranch_scc1 L_lddrain")
        ld_step(0, 8, xblk=0)
        A("s_branch L_ldloop")
        lab("L_lddrain")
        A(f"s_cmp_eq_u32 {sr(sLate)}, 2")
        A("s_cbranch_scc1 L_ldret")
        ld_step(0, None, prep=False, xblk=3)
        lab("L_ldret")
        A(f"s_setpc_b64 {sr(LINK_S,2)}")

    def reduce_kernel(self):
        A, lab = self.A, self.lab
        K2 = "reduce_partials_kernel"
        self.L += [f".globl {K2}", ".p2align 8", f".type {K2},@function"]
        lab(K2)
        A("s_cmp_ge_u32 s2, 384")
        A("s_cbranch_scc1 L_r_end")
        A("s_load_dwordx2 s[4:5], s[0:1], 80")
        A("s_load_dwordx2 s[6:7], s[0:1], 96")
        if self.opt.get("dbg") == 2:
            A("s_cmp_eq_u32 s2, 0")
            A("s_cbranch_scc0 L_r_nod")
            A("s_load_dwordx2 s[26:27], s[0:1], 88")
            A("s_memrealtime s[28:29]")
            A("s_waitcnt lgkmcnt(0)")
            A("v_lshlrev_b32 v1, 4, v0")
            A("v_add_u32 v1, 0x4000000, v1")
            A("global_load_dwordx4 v[8:11], v1, s[6:7]")
            A("s_waitcnt vmcnt(0)")
            A("v_not_b32 v12, v8")
            A("v_sub_u32 v13, v9, v8")
            A("v_mov_b32 v14, 0")
            A("v_lshrrev_b32 v15, 7, v0")
            A("v_lshlrev_b32 v15, 3, v15")
            A("v_mov_b32 v7, s28")
            A("global_atomic_umax v14, v12, s[26:27]")
            A("global_atomic_umax v14, v9, s[26:27] offset:4")
            A("global_atomic_umax v15, v13, s[26:27] offset:8")
            A("global_atomic_umax v15, v10, s[26:27] offset:12")
            A("global_atomic_umax v14, v8, s[26:27] offset:24")
            A("global_atomic_umax v14, v7, s[26:27] offset:28")
            lab("L_r_nod")
        A("s_mul_i32 s3, s2, 43691")
        A("s_lshr_b32 s3, s3, 19")
        A("s_mul_i32 s16, s3, 12")
        A("s_sub_u32 s16, s2, s16")
        A("s_and_b32 s17, s3, 15")
        A("s_lshr_b32 s18, s3, 4")
        A("s_lshl_b32 s19, s16, 12")
        A("v_lshlrev_b32 v2, 4, v0")
        A("v_add_u32 v2, s19, v2")
        A("s_mul_i32 s23, s16, 86")
        A("s_lshr_b32 s23, s23, 8")
        A("s_mul_i32 s24, s23, 3")
        A("s_sub_u32 s24, s16, s24")
        A("s_lshl_b32 s24, s24, 15")
        A("s_lshl_b32 s23, s23, 8")
        A("s_add_u32 s24, s24, s23")
        A("v_and_b32 v6, 15, v0")
        A("v_lshlrev_b32 v6, 11, v6")
        A("v_lshrrev_b32 v7, 6, v0")
        A("v_lshl_add_u32 v6, v7, 6, v6")
        A("v_bfe_u32 v7, v0, 4, 1")
        A("v_lshl_add_u32 v6, v7, 5, v6")
        A("v_bfe_u32 v7, v0, 5, 1")
        A("v_lshl_add_u32 v6, v7, 4, v6")
        A("s_waitcnt lgkmcnt(0)")
        A("s_mov_b32 s8, s4"); A("s_mov_b32 s9, s5"); A("s_mov_b32 s10, 1572864"); A("s_mov_b32 s11, 0x20000")
        A("s_mov_b32 s12, s6"); A("s_mov_b32 s13, s7"); A("s_mov_b32 s14, 268435456"); A("s_mov_b32 s15, 0x20000")
        A("s_mul_i32 s20, s17, 98304")
        A("s_add_u32 s20, s20, s24")
        A("s_mov_b32 s22, 0xffff0000")
        A("s_cmp_eq_u32 s18, 1")
        A("s_cbranch_scc1 L_r_A")

        def body(np_):
            for p in range(np_):
                A(f"buffer_load_dwordx4 v[{16+4*p}:{19+4*p}], v2, s[12:15], s21 offen" + self.opt.get("rdflag", ""))
                if p + 1 < np_:
                    A(f"s_add_u32 s21, s21, {PART}")
            for p in range(np_):
                A(f"s_waitcnt vmcnt({np_-1-p})")
                for k in range(4):
                    r = 16 + 4 * p + k
                    if p == 0:
                        A(f"v_lshlrev_b32 v{8+2*k}, 16, v{r}")
                        A(f"v_and_b32 v{9+2*k}, s22, v{r}")
                    else:
                        A(f"v_lshlrev_b32 v4, 16, v{r}")
                        A(f"v_and_b32 v5, s22, v{r}")
                        A(f"v_pk_add_f32 v[{8+2*k}:{9+2*k}], v[{8+2*k}:{9+2*k}], v[4:5]")

        A(f"s_mul_i32 s21, s17, {16*PART}")
        A("s_add_u32 s20, s20, 1024")
        body(16)
        A("s_branch L_r_st")
        lab("L_r_A")
        A(f"s_mul_i32 s21, s17, {8*PART}")
        A(f"s_add_u32 s21, s21, {PART_A_BASE}")
        body(8)
        lab("L_r_st")
        for k in range(4):
            A(f"v_cvt_pk_bf16_f32 v{16+k}, v{8+2*k}, v{9+2*k}")
        A("buffer_store_dwordx4 v[16:19], v6, s[8:11], s20 offen" + self.opt.get("outflag", ""))
        if self.opt.get("dbg"):
            A("s_waitcnt vmcnt(0)")
            A("s_memrealtime s[28:29]")
            A("s_waitcnt lgkmcnt(0)")
            A("v_mov_b32 v16, s28")
            A("s_lshl_b32 s30, s2, 2")
            A("s_add_u32 s30, s30, 0x4100000")
            A("v_mov_b32 v17, s30")
            A("v_cmp_eq_u32 vcc, 0, v0")
            A("s_and_saveexec_b64 s[26:27], vcc")
            A("s_cbranch_execz L_r_end")
            A("global_store_dword v17, v16, s[6:7]")
        lab("L_r_end")
        A("s_endpgm")

    def desc(self, name, nv, ns):
        self.L += [".p2align 6", f".amdhsa_kernel {name}", f"  .amdhsa_next_free_vgpr {nv}",
                   f"  .amdhsa_next_free_sgpr {ns}", f"  .amdhsa_accum_offset {nv}",
                   "  .amdhsa_group_segment_fixed_size 0", "  .amdhsa_kernarg_size 104",
                   "  .amdhsa_user_sgpr_count 2", "  .amdhsa_user_sgpr_kernarg_segment_ptr 1",
                   "  .amdhsa_system_sgpr_workgroup_id_x 1", ".end_amdhsa_kernel"]

    def table_data(self):
        self.L += [".p2align 2", ".type L_table,@object"]
        self.lab("L_table")
        for k in range(0, 192, 8):
            self.A(".long " + ", ".join(hex(x) for x in self.table[k:k+8]))

    def build(self):
        K1 = NAME + "_kernel"
        if self.fuse:
            head = HEADER + f"; @launch grid=(256,1,1) block=(512,1,1) lds={LDS_BYTES}\n"
        else:
            head = HEADER + f"; @launch kernel={K1} grid=(256,1,1) block=(512,1,1) lds={LDS_BYTES}\n"
            head += "; @launch kernel=reduce_partials_kernel grid=(384,1,1) block=(256,1,1) lds=0\n"
        self.L += ['.amdgcn_target "amdgcn-amd-amdhsa--gfx950"', ".text"]
        self.main_kernel()
        if not self.fuse:
            self.reduce_kernel()
        self.table_data()
        self.L += ['.section .rodata,"a"']
        self.desc(K1, 256, 102)
        if not self.fuse:
            self.desc("reduce_partials_kernel", 80, 32)
        return head + "\n".join(self.L) + "\n"


def gen(**opt):
    return G(opt).build()


if __name__ == "__main__":
    out = sys.argv[1] if len(sys.argv) > 1 else f"cdna_kernels/{NAME}.s"
    opt = {}
    for a in sys.argv[2:]:
        k, v = a.split("=", 1)
        opt[k] = int(v) if v.lstrip("-").isdigit() else v
    open(out, "w").write(gen(**opt))
    print("wrote", out)
```

```python
import sys, math, struct

NAME = "concat_heads__gqa_block_cached__mha_block_cached__near_ridge"

HEADER = """; Kernarg layout for this problem (104 bytes, ptrs only, base s[0:1]):
"""

TILE = 32768
NSLOT = 3
XB = NSLOT * TILE
XROW = 256
XN = 16 * XROW
BLK = 48 * XROW
ST = XB + 5 * BLK
FLAG = ST + 3072
RELAY = FLAG + 8
STORED = FLAG + 12
ENTRY = FLAG + 256
WS_FLAGS = 32 * 1024 * 1024
FULL = 0xffffff
POLL_LIMIT = 20000
LDS_BYTES = 163840
PART = 49152
PART_A_BASE = 16 * 16 * PART
NULL_OFF = 0x40000000
IDX_AFTER_ATT = (27, 43)

T_WQ, T_K, T_V, T_WO, T_WQW = 0, 1, 2, 3, 4
ROWSH = [13, 8, 8, 10, 13]
SLABSH = [18, 13, 13, 8, 8]

sW, sC, sIdx, sE = 3, 4, 6, 7
SRD_WQ, SRD_K, SRD_V, SRD_WO, SRD_WQW, SRD_AUX = 8, 12, 16, 20, 24, 28
sAx, sAk, sAv, sAwq, sAwo = 32, 34, 36, 38, 40
sP0, sP1 = 42, 43
sBx, sBk, sBv, sBwq, sBwo = 44, 46, 48, 50, 52
sWs = 54
sB, sG, sRole, sHead, _unused, sScale, sW1024, sBlk, sThr, sIter = 56, 57, 58, 59, 60, 61, 62, 63, 64, 65
sT0, sT1, sT2, sT3, sT4, sT5 = 66, 67, 68, 69, 70, 71
sBlkEnd = 75
sStamp = 76
sFix = 79
sXlive = 100
sOrd = 60
sThrot = 100
sHook = 101
sPend, sPendOff = 98, 99
sLate = 65
sZero = 91
SRD_CUR = [80, 84]
sOff, sTy, sStr, sI, sHalf = [72, 94], [73, 95], [74, 96], [5, 97], [88, 89]
sOff2 = 90
LINK_S = 92

rOut, rWs, rDbg, rKb, rMode, rF, rDone, rNew, rCnt, rOffB, rOffA, rOffO, rAb, rK = 8, 12, 16, 18, 19, 20, 21, 22, 23, 24, 25, 26, 27, 28

vTab, vRow, vChunk, vTRw, vTR0, vKb = 1, 2, 3, 5, 6, 7
vCur = [4, 0]
vXB = 8
vQW, vPW, vSTw, vSTr = 12, 13, 14, 15
vT = 16
vAcc = 24
vQs = 48
vFr = 72
vS = 112
vY = 160
QF = [24, 28, 32, 36, 40, 44, 72, 76, 80, 84, 88, 92]
vKf = 96
vKa, vTRa = 5, 7
vNm = [12, 56, 60]
vDl = 20
vOne = 8
vLq = [44, 48, 52]
NFA = 5
vO = 160
vAfA = 24
QA = [64 + 4 * k for k in range(12)]
sQ = [98, 99, 100, 101]


def vr(a, n=1):
    return f"v{a}" if n == 1 else f"v[{a}:{a+n-1}]"


def sr(a, n=1):
    return f"s{a}" if n == 1 else f"s[{a}:{a+n-1}]"


def f32(x):
    return hex(struct.unpack('<I', struct.pack('<f', x))[0])


class G:
    def __init__(self, opt):
        self.L = []
        self.opt = opt
        self.uid = 0
        self.cold = []
        self.fuse = opt.get("fuse", 1)
        if self.fuse:
            opt.setdefault("stflag", " sc1")
        self.kvf = opt.get("kvflag", " nt")
        self.wf = opt.get("wflag", "")

    def A(self, s):
        self.L.append("  " + s)

    def lab(self, s):
        self.L.append(s + ":")

    def c(self, s):
        self.L.append("  ; " + s)

    def new(self, p):
        self.uid += 1
        return f"L_{p}{self.uid}"

    def mfma(self, d, a, b, c=None):
        cs = "0" if c == 0 else vr(d if c is None else c, 4)
        self.A(f"v_mfma_f32_16x16x32_bf16 {vr(d,4)}, {vr(a,4)}, {vr(b,4)}, {cs}")

    def M(self, d, a, b, c=None):
        return ("m", self.cap(self.mfma, d, a, b, c))

    def lane(self, v):
        self.A(f"v_mbcnt_lo_u32_b32 {vr(v)}, -1, 0")
        self.A(f"v_mbcnt_hi_u32_b32 {vr(v)}, -1, {vr(v)}")

    def rot(self):
        return [[f"s_add_u32 {sr(sC)}, {sr(sC)}, {TILE}"],
                [f"s_cmp_eq_u32 {sr(sC)}, {NSLOT*TILE}", f"s_cselect_b32 {sr(sC)}, 0, {sr(sC)}"]]

    def prep(self, p, slots=True):
        k1 = sum(v << (5 * i) for i, v in enumerate(ROWSH))
        k2 = sum(v << (5 * i) for i, v in enumerate(SLABSH))
        pre = [[f"s_add_u32 {sr(sI[p])}, {sr(sC)}, {sr(sW1024)}"]] + self.rot() if slots else []
        return pre + [
            [f"s_and_b32 {sr(sOff[p])}, {sr(sE)}, 0xffffff00"],
            [f"s_and_b32 {sr(sTy[p])}, {sr(sE)}, 7"],
            [f"s_add_u32 {sr(sIdx)}, {sr(sIdx)}, 1"],
            [f"s_lshl_b32 m0, {sr(sTy[p])}, 2", f"s_mul_i32 {sr(sP0)}, {sr(sTy[p])}, 5",
             f"s_movrels_b64 {sr(SRD_CUR[p],2)}, {sr(SRD_WQ,2)}", f"s_movrels_b32 {sr(SRD_CUR[p]+2)}, {sr(SRD_WQ+2)}"],
            [f"v_readlane_b32 {sr(sE)}, {vr(vTab)}, {sr(sIdx)}"],
            [f"s_lshr_b32 {sr(sP1)}, {hex(k1)}, {sr(sP0)}"],
            [f"s_lshr_b32 {sr(sP0)}, {hex(k2)}, {sr(sP0)}"],
            [f"v_lshl_add_u32 {vr(vCur[p])}, {vr(vRow)}, {sr(sP1)}, {vr(vChunk)}"],
            [f"s_lshl_b32 {sr(sStr[p])}, 1, {sr(sP0)}"],
            [f"s_lshl_b32 {sr(sHalf[p])}, 16, {sr(sP1)}"],
        ]

    def weave(self, prim, fill, per=2, start=0):
        fill = list(fill)
        for idx, (kind, ins) in enumerate(prim):
            self.L += ins
            if kind == "m" and idx >= start:
                k = 0
                while fill and k < per:
                    f = fill[0]
                    if isinstance(f, tuple):
                        if f[0] > idx:
                            break
                        f = f[1]
                    self.emit(f)
                    fill.pop(0)
                    k += 1
        for f in fill:
            self.emit(f[1] if isinstance(f, tuple) else f)

    def emit(self, f):
        for x in f:
            if x.endswith(":"):
                self.L.append(x)
            else:
                self.A(x)

    def cap(self, fn, *a, **k):
        keep, self.L = self.L, []
        fn(*a, **k)
        out, self.L = self.L, keep
        return out

    def head(self, vm):
        self.A("s_waitcnt " + (f"vmcnt({vm}) " if vm is not None else "") + "lgkmcnt(0)")
        if self.opt.get("allsteps") == 2:
            self.stamp(15)
        self.A("s_barrier")
        if self.opt.get("allsteps") == 1:
            self.stamp(14)

    def early_head(self, vm, reads, xonly=None):
        if not self.opt.get("early", 1):
            self.head(vm)
            if xonly:
                l = self.new("x")
                self.is_loader(l)
                xonly()
                self.lab(l)
            reads()
            return
        ly, ld = self.new("ey"), self.new("ed")
        self.is_loader(ly)
        self.head(vm)
        if xonly:
            xonly()
        reads()
        self.A(f"s_branch {ld}")
        self.lab(ly)
        self.A("s_waitcnt lgkmcnt(0)")
        reads()
        self.A(f"s_waitcnt vmcnt({vm})")
        self.A("s_barrier")
        self.lab(ld)

    def throttle(self):
        if self.opt.get('thr'):
            l = self.new('th')
            self.A(f"s_cmp_eq_u32 {sr(sThrot)}, 0")
            self.A(f"s_cbranch_scc1 {l}")
            self.A(f"s_waitcnt vmcnt({self.opt['thr']})")
            self.lab(l)

    def dma(self, k, p, kv, guard=True, throttle=False):
        A = self.A
        skip = self.new("sk")
        if guard:
            A(f"s_bitcmp1_b32 {sr(sW)}, 2")
            A(f"s_cbranch_scc0 {skip}")
        if k:
            A(f"s_add_u32 {sr(sOff[p])}, {sr(sOff[p])}, {sr(sStr[p])}")
        A(f"s_add_u32 m0, {sr(sI[p])}, {k*8192}")
        A(f"s_add_u32 {sr(sOff2)}, {sr(sOff[p])}, {sr(sHalf[p])}")

        def pair(fl):
            if throttle and fl == self.kvf:
                self.throttle()
            if k == 3 and fl == self.kvf and self.opt.get("evst"):
                self.L += self.ev()
                A(f"s_add_u32 m0, {sr(sI[p])}, {k*8192}")
                A("s_nop 0")
            A(f"buffer_load_dwordx4 {vr(vCur[p])}, {sr(SRD_CUR[p],4)}, {sr(sOff[p])} offen{fl} lds")
            A("s_add_u32 m0, m0, 4096")
            A("s_nop 0")
            A(f"buffer_load_dwordx4 {vr(vCur[p])}, {sr(SRD_CUR[p],4)}, {sr(sOff2)} offen{fl} lds")

        if self.kvf == self.wf:
            kv = False
        if kv is not None:
            pair(self.kvf if kv else self.wf)
        else:
            l1 = self.new("kv")
            A(f"s_bitcmp1_b32 6, {sr(sTy[p])}")
            A(f"s_cbranch_scc1 {l1}")
            pair(self.wf)
            A(f"s_branch {skip}")
            self.lab(l1)
            pair(self.kvf)
        self.lab(skip)

    def D1(self, k, p, guard=False):
        l1, l2 = self.new("w"), self.new("d")
        ld = f"  buffer_load_dwordx4 {vr(vCur[p])}, {sr(SRD_CUR[p],4)}, {sr(sOff[p])} offen"
        ins = [f"  s_bitcmp1_b32 {sr(sW)}, 2", f"  s_cbranch_scc0 {l2}"] if guard else []
        ins.append(f"  s_add_u32 m0, {sr(sI[p])}, {k*8192}")
        adv = f"  s_add_u32 {sr(sOff[p])}, {sr(sOff[p])}, {sr(sStr[p])}"
        ins += [f"  s_bitcmp1_b32 6, {sr(sTy[p])}", f"  s_cbranch_scc0 {l1}", adv, f"{ld}{self.kvf} lds"]
        if k == 3:
            ins += self.ev()
        self.cold += [l1 + ":"] + ([adv] if k else []) + [f"{ld}{self.wf} lds", f"  s_branch {l2}"]
        return ("d", ins + [l2 + ":"])

    def D(self, k, p, kv, throttle=False):
        return ("d", self.cap(self.dma, k, p, kv, True, throttle))

    def tr_pair(self, dst, addr, off):
        self.A(f"ds_read_b64_tr_b16 {vr(dst,2)}, {vr(addr)} offset:{off}")
        self.A(f"ds_read_b64_tr_b16 {vr(dst+2,2)}, {vr(addr)} offset:{off+1024}")

    def narrow(self, pre=None, extra=None, early=None, body=None, check=None):
        A = self.A

        def fr(st, k):
            return vFr + (st * 5 + k) * 4

        def reads(T, s):
            p = T % 2
            for m in range(2):
                self.tr_pair(fr(s % 2, m), vT + 2 * p + m, s * 8192)
            for n in range(3):
                A(f"ds_read_b128 {vr(fr(s%2,2+n),4)}, {vr(vXB+s)} offset:{n*XN+T*BLK}")

        def addr(p):
            return [[f"v_add_u32 {vr(vT+2*p)}, {sr(sC)}, {vr(vTRw)}"], [f"v_xor_b32 {vr(vT+2*p+1)}, 32, {vr(vT+2*p)}"]]

        def mf(s, zero=False):
            return [self.M(vAcc + (m * 3 + n) * 4, fr(s % 2, m), fr(s % 2, 2 + n), 0 if zero else None)
                    for m in range(2) for n in range(3)]

        for T in range(4):
            self.head(None)
            if T == 0:
                if body:
                    self.lab(body)
                self.weave([], addr(0))
            self.emit((pre or {}).get(T, []))
            prim = [("r", self.cap(reads, T, 0))]
            if T:
                prim += mf(3)
            prim.append(("r", self.cap(reads, T, 1)))
            for s in range(3):
                prim.append(("w", ["  s_waitcnt lgkmcnt(7)"] + (check if (check and T == 0 and s == 0) else [])))
                prim += mf(s, T == 0 and s == 0)
                if s < 2:
                    prim.append(("r", self.cap(reads, T, s + 2)))
            late = [(10, g) for g in (extra or {}).get(T, [])]
            self.weave(prim, self.rot() + (addr(1 - T % 2) if T < 3 else []) + late, per=1 + bool(late))
        A("s_waitcnt lgkmcnt(0)")
        if early is True:
            A("s_barrier")
        elif early is None:
            l = self.new("e")
            A(f"s_cmp_eq_u32 {sr(sLate)}, 0")
            A(f"s_cbranch_scc0 {l}")
            A("s_barrier")
            self.lab(l)
        self.weave(mf(3), [])

    def load_bfrags_dyn(self, tmp, quads):
        for s in range(4):
            self.A(f"v_add_u32 {vr(tmp+s)}, {sr(sBlk)}, {vr(vXB+s)}")
        for s in range(4):
            for n in range(3):
                self.A(f"ds_read_b128 {vr(quads[n*4+s],4)}, {vr(tmp+s)} offset:{n*XN}")

    def is_loader(self, label):
        self.A(f"s_bitcmp1_b32 {sr(sW)}, 2")
        self.A(f"s_cbranch_scc1 {label}")

    def x_setup(self, va, sT1=sT1, sT2=sT2):
        A = self.A
        self.lane(va + 2)
        A(f"v_lshrrev_b32 {vr(va+1)}, 4, {vr(va+2)}")
        A(f"v_and_b32 {vr(va+2)}, 15, {vr(va+2)}")
        A(f"v_xor_b32 {vr(va+2)}, {vr(va+2)}, {vr(va+1)}")
        A(f"v_lshlrev_b32 {vr(va+2)}, 4, {vr(va+2)}")
        A(f"v_lshl_or_b32 {vr(va+2)}, {vr(va+1)}, 10, {vr(va+2)}")
        A(f"s_mul_i32 {sr(sT0)}, {sr(sW1024)}, 3")
        A(f"s_add_u32 {sr(sT2)}, {sr(sT0)}, {XB}")
        A(f"s_mul_i32 {sr(sT1)}, {sr(sB)}, 49152")
        A(f"s_lshl_b32 {sr(sT3)}, {sr(sT0)}, 2")
        A(f"s_add_u32 {sr(sT1)}, {sr(sT1)}, {sr(sT3)}")
        A(f"s_lshr_b32 {sr(sT0)}, {sr(sT0)}, 4")
        for j in range(3):
            A(f"s_add_u32 {sr(sT3)}, {sr(sT0)}, {j*64}")
            A(f"s_and_b32 {sr(sT3)}, {sr(sT3)}, 0xc0")
            A(f"v_xor_b32 {vr(va+j)}, {sr(sT3)}, {vr(va+2)}")

    def x_rot(self, va, j, late=False):
        A = self.A
        sHalf = [sT1, sT2] if late else globals()["sHalf"]
        if late:
            A(f"s_lshr_b32 {sr(sOff2)}, {sr(sB)}, 2")
        A(f"s_add_u32 {sr(sP0)}, {sr(sOff2)}, {j}")
        A(f"s_and_b32 {sr(sP0)}, {sr(sP0)}, 3")
        A(f"s_mul_i32 {sr(sP1)}, {sr(sP0)}, {BLK}")
        A(f"s_add_u32 {sr(sP1)}, {sr(sP1)}, {sr(sHalf[1])}")
        A(f"s_lshl_b32 {sr(sP0)}, {sr(sP0)}, 8")
        A(f"s_add_u32 {sr(sP0)}, {sr(sP0)}, {sr(sHalf[0])}")
        for k in range(3):
            A(f"s_add_u32 m0, {sr(sP1)}, {k*1024}")
            if k:
                A(f"s_add_u32 {sr(sP0)}, {sr(sP0)}, 4096")
            else:
                A("s_nop 0")
            A(f"buffer_load_dwordx4 {vr(va+k)}, {sr(SRD_AUX,4)}, {sr(sP0)} offen lds")

    def first_tile(self, t):
        A = self.A
        A(f"s_add_u32 {sr(sP0)}, {sr(sI[0])}, {t}")
        A(f"s_and_b32 {sr(sP0)}, {sr(sP0)}, 15")
        A(f"s_mul_i32 {sr(sP0)}, {sr(sP0)}, {sr(sStr[1])}")
        A(f"s_add_u32 {sr(sP0)}, {sr(sP0)}, {sr(sTy[0])}")
        for k in range(8):
            A(f"s_add_u32 m0, {sr(sW1024)}, {t*TILE+k*4096}")
            if k % 2:
                A(f"s_add_u32 {sr(sP1)}, {sr(sP0)}, {16*8192}")
            elif k:
                A(f"s_add_u32 {sr(sP0)}, {sr(sP0)}, {sr(sStr[0])}")
            else:
                A("s_nop 0")
            A(f"buffer_load_dwordx4 {vr(vCur[0])}, {sr(SRD_CUR[0],4)}, {sr(sP1 if k % 2 else sP0)} offen{self.wf} lds")

    def x_block(self, va, blk):
        for j in range(3):
            self.A(f"s_add_u32 m0, {sr(sT2)}, {blk*BLK+j*1024}")
            self.A(f"s_add_u32 {sr(sT3)}, {sr(sT1)}, {blk*256+j*4096}")
            self.A(f"buffer_load_dwordx4 {vr(va+j)}, {sr(SRD_AUX,4)}, {sr(sT3)} offen lds")

    def weight_prefetch(self, items, half=False, dst=156, cur=SRD_CUR[1]):
        A = self.A
        off = sT1
        n = 4 if half else 2
        self.lane(vT + 1)
        A(f"v_lshrrev_b32 {vr(vT)}, 4, {vr(vT+1)}")
        A(f"v_lshlrev_b32 {vr(vT+1)}, 4, {vr(vT+1)}")
        A(f"v_and_b32 {vr(vT+2)}, 0xf0, {vr(vT+1)}")
        A(f"v_lshl_or_b32 {vr(vT)}, {vr(vT)}, 13, {vr(vT+2)}")
        A(f"s_lshl_b32 {sr(sT0)}, {sr(sG)}, 2")
        A(f"s_lshr_b32 {sr(sT2)}, {sr(sB)}, {int(half)}")
        A(f"s_lshl_b32 {sr(sT2)}, {sr(sT2)}, 2")
        A(f"s_add_u32 {sr(sT2)}, {sr(sT2)}, {sr(sW)}")
        A(f"s_mov_b32 {sr(cur+2)}, 4194304")
        for ptr, is_wq, h in items:
            A(f"s_add_u32 {sr(sT3)}, {sr(sT0)}, {h}")
            A(f"s_lshl_b32 {sr(sT3)}, {sr(sT3)}, {8 if is_wq else 17}")
            A(f"s_lshl_b32 {sr(off)}, {sr(sT2)}, {(16 if is_wq else 11) + int(half)}")
            A(f"s_add_u32 {sr(off)}, {sr(off)}, {sr(sT3)}")
            A(f"s_mov_b64 {sr(cur,2)}, {sr(ptr,2)}")
            for k in range(n):
                if k:
                    A(f"s_add_u32 {sr(off)}, {sr(off)}, {32768 if is_wq else 1024}")
                A(f"buffer_load_dwordx4 {vr(dst,4)}, {vr(vT if is_wq else vT+1)}, {sr(cur,4)}, {sr(off)} offen")

    def srd(self, d, p, size):
        self.A(f"s_mov_b32 {sr(d)}, {sr(p)}")
        self.A(f"s_mov_b32 {sr(d+1)}, {sr(p+1)}")
        self.A(f"s_mov_b32 {sr(d+2)}, {size}")
        self.A(f"s_mov_b32 {sr(d+3)}, 0x20000")

    def reduce4(self, x, op):
        self.A(f"v_mov_b32 {vr(x+3)}, {vr(x+2)}")
        self.A("s_nop 1")
        self.A(f"v_permlane32_swap_b32 {vr(x)}, {vr(x+1)}")
        self.A(f"v_permlane32_swap_b32 {vr(x+2)}, {vr(x+3)}")
        self.A("s_nop 1")
        self.A(f"{op} {vr(x)}, {vr(x)}, {vr(x+1)}")
        self.A(f"{op} {vr(x+2)}, {vr(x+2)}, {vr(x+3)}")
        self.A("s_nop 1")
        self.A(f"v_permlane16_swap_b32 {vr(x)}, {vr(x+2)}")
        self.A("s_nop 1")
        self.A(f"{op} {vr(x)}, {vr(x)}, {vr(x+2)}")

    def allreduce3(self, x, t, op):
        for sw in ("v_permlane32_swap_b32", "v_permlane16_swap_b32"):
            for n in range(3):
                self.A(f"v_mov_b32 {vr(t+n)}, {vr(x+n)}")
            self.A("s_nop 1")
            for n in range(3):
                self.A(f"{sw} {vr(x+n)}, {vr(t+n)}")
            self.A("s_nop 1")
            for n in range(3):
                self.A(f"{op} {vr(x+n)}, {vr(x+n)}, {vr(t+n)}")

    def maxn(self, dst, regs):
        out = [f"v_max3_f32 {vr(dst)}, {vr(regs[0])}, {vr(regs[1])}, {vr(regs[2])}"]
        k = 3
        while k + 1 < len(regs):
            out.append(f"v_max3_f32 {vr(dst)}, {vr(dst)}, {vr(regs[k])}, {vr(regs[k+1])}")
            k += 2
        if k < len(regs):
            out.append(f"v_max_f32 {vr(dst)}, {vr(dst)}, {vr(regs[k])}")
        return out

    def pkmul(self, a, f):
        sel = "op_sel_hi:[1,0]" if f % 2 == 0 else "op_sel:[0,1] op_sel_hi:[1,1]"
        return f"v_pk_mul_f32 {vr(a,2)}, {vr(a,2)}, {vr(f - f % 2,2)} {sel}"

    def ev(self):
        if not self.opt.get("evst"):
            return []
        return self.cap(self.stamp, 0, True)

    def stamp(self, idx, force=False):
        if not self.opt.get("stamps") or (self.opt.get("evst") and not force and idx != 11):
            return
        self.A(("s_memtime" if self.opt.get("cyc") else "s_memrealtime") + f" {sr(sStamp,2)}")
        self.A("s_waitcnt lgkmcnt(0)")
        self.A(f"s_and_b32 {sr(sStamp)}, {sr(sStamp)}, 0xffffff")
        self.A(f"s_or_b32 {sr(sStamp)}, {sr(sStamp)}, {(idx+1) << 24}")
        self.A("s_mov_b32 m0, s78")
        if self.opt.get("skip"):
            l = self.new("st")
            self.A(f"s_cmp_lt_i32 s78, 0")
            self.A(f"s_cbranch_scc1 {l}")
            self.A(f"s_cmp_ge_i32 s78, 63")
            self.A(f"s_cbranch_scc1 {l}")
            self.A(f"v_writelane_b32 {vr(23)}, {sr(sStamp)}, m0")
            self.lab(l)
        else:
            self.A(f"v_writelane_b32 {vr(23)}, {sr(sStamp)}, m0")
        self.A("s_add_u32 s78, s78, 1")

    def ks(self, idx=15):
        if self.opt.get("kst"):
            self.A(f"s_memtime s[{76}:{77}]")
            self.A("s_waitcnt lgkmcnt(0)")
            self.A(f"s_and_b32 s76, s76, 0xffffff")
            self.A(f"s_or_b32 s76, s76, {(idx+1) << 24}")
            self.A("s_mov_b32 m0, s78")
            self.A(f"v_writelane_b32 v23, s76, m0")
            self.A("s_add_u32 s78, s78, 1")

    def pack_y(self, barrier, store=False):
        def pack(jp):
            g = []
            for n in range(3):
                q = vY + (2 * jp * 3 + n) * 4
                for h in range(2):
                    y = vY + ((2 * jp + h) * 3 + n) * 4
                    g.append([f"v_cvt_pk_bf16_f32 {vr(q+2*h)}, {vr(y)}, {vr(y+1)}"])
                    g.append([f"v_cvt_pk_bf16_f32 {vr(q+2*h+1)}, {vr(y+2)}, {vr(y+3)}"])
            if store:
                g.append(["s_nop 1"])
                for n in range(3):
                    q = vY + (2 * jp * 3 + n) * 4
                    g.append([f"v_permlane16_swap_b32 {vr(q)}, {vr(q+2)}", f"v_permlane16_swap_b32 {vr(q+1)}, {vr(q+3)}",
                              f"buffer_store_dwordx4 {vr(q,4)}, {vr(vT+n)}, {sr(SRD_AUX,4)}, {sr(sPendOff)} offen offset:{jp*1024}"
                              + self.opt.get("stflag", "")])
            return g

        if store:
            self.lane(vT)
            self.A(f"v_lshlrev_b32 {vr(vT)}, 4, {vr(vT)}")
            self.A(f"v_add_u32 {vr(vT+1)}, 4096, {vr(vT)}")
            self.A(f"v_add_u32 {vr(vT+2)}, 8192, {vr(vT)}")
        self.srd(SRD_AUX, sWs, 268435456)
        self.A(f"s_mul_i32 {sr(sT1)}, {sr(sW)}, 12288")
        self.A(f"s_add_u32 {sr(sPendOff)}, {sr(sT0)}, {sr(sT1)}")
        self.wide_drain(pack)
        if barrier:
            self.A("s_barrier")
        else:
            self.A("s_nop 1")

    def store_y(self, n, va):
        A = self.A
        self.lane(va)
        A(f"v_lshlrev_b32 {vr(va)}, 4, {vr(va)}")
        for jp in range(4):
            q = vY + (2 * jp * 3 + n) * 4
            A(f"v_permlane16_swap_b32 {vr(q)}, {vr(q+2)}")
            A(f"v_permlane16_swap_b32 {vr(q+1)}, {vr(q+3)}")
            A(f"buffer_store_dwordx4 {vr(q,4)}, {vr(va)}, {sr(SRD_AUX,4)}, {sr(sPendOff)} offen offset:{jp*1024}" + self.opt.get("stflag", ""))
        A(f"s_add_u32 {sr(sPendOff)}, {sr(sPendOff)}, 4096")

    def wide_drain(self, per_pair=None):
        prim = [self.M(vY + (j * 3 + n) * 4, vFr + 4 * (j + 2 if j >= 6 else j), vAcc + (3 + n) * 4) for j in range(8) for n in range(3)]
        fill = []
        if per_pair:
            for jp in range(4):
                g = per_pair(jp)
                fill += [(6 * jp + 13, x) for x in g]
        self.weave(prim, fill, per=4)

    def dma_only(self):
        A, lab = self.A, self.lab
        self.is_loader("L_do_ld")
        A(f"s_cmp_eq_u32 {sr(sOrd)}, 0")
        A("s_cbranch_scc0 L_fin")
        self.weight_prefetch([(sBwq, True, 2), (sBwq, True, 3), (sBwq, True, 0)] + [(sBwo, False, h) for h in range(4)] + [(sAwo, False, h) for h in range(4)])
        A("s_branch L_fin")
        lab("L_do_ld")
        self.first_tile(1)
        self.x_rot(vY, 2)
        self.first_tile(2)
        self.x_rot(vY, 3)
        self.weave([], self.prep(1))
        lab("L_do_loop")
        for p in (1, 0):
            for sw, (cond, k, v, wo) in {27: (1, sBk, sBv, None), 41: (1, None, None, sBwo), 14: (2, sAk, sAv, None), 18: (2, None, None, sAwo)}.items():
                l = self.new("sw")
                A(f"s_cmp_eq_u32 {sr(sIdx)}, {sw}")
                A(f"s_cbranch_scc0 {l}")
                A(f"s_cmp_eq_u32 {sr(sOrd)}, {cond}")
                A(f"s_cbranch_scc0 {l}")
                if k:
                    self.srd(SRD_K, k, 67108864 if k == sBk else 16777216)
                    self.srd(SRD_V, v, 67108864 if k == sBk else 16777216)
                if wo:
                    self.srd(SRD_WO, wo, 4194304)
                lab(l)
            A(f"s_waitcnt vmcnt({self.opt['dmaonly']})")
            for k in range(4):
                self.dma(k, p, None, guard=False)
            self.weave([], self.prep(1 - p))
        A(f"s_cmp_lt_u32 {sr(sIdx)}, 57")
        A("s_cbranch_scc1 L_do_loop")
        A("s_branch L_fin")

    def reduce_setup(self):
        A = self.A
        A(f"s_load_dwordx4 {sr(rOut,4)}, s[0:1], 80")
        A("s_waitcnt lgkmcnt(0)")
        A(f"s_mov_b64 {sr(rDbg,2)}, {sr(rOut+2,2)}")
        A(f"s_mov_b32 {sr(rOut+2)}, 1572864")
        A(f"s_mov_b32 {sr(rOut+3)}, 0x20000")
        self.srd(rWs, sWs, 268435456)

    def publish(self):
        A, lab = self.A, self.lab
        A(f"v_mov_b32 {vr(vT)}, {STORED}")
        A(f"v_mov_b32 {vr(vT+1)}, 1")
        self.reduce_setup()
        A("s_waitcnt vmcnt(0)")
        self.stamp(7)
        A("s_mov_b64 exec, 1")
        A(f"ds_add_rtn_u32 {vr(vT+1)}, {vr(vT)}, {vr(vT+1)}")
        A(f"s_lshl_b32 {sr(sT0)}, {sr(sRole)}, 3")
        A(f"s_add_u32 {sr(sT0)}, {sr(sT0)}, {sr(sG)}")
        A(f"s_lshl_b32 {sr(sT2)}, {sr(sT0)}, 2")
        A(f"s_add_u32 {sr(sT3)}, {sr(sT2)}, {ENTRY}")
        A(f"v_mov_b32 {vr(vT+4)}, {sr(sT3)}")
        A(f"ds_read_b32 {vr(vT+4)}, {vr(vT+4)}")
        A(f"s_lshl_b32 {sr(sT3)}, {sr(sB)}, 8")
        A(f"s_add_u32 {sr(sT2)}, {sr(sT2)}, {sr(sT3)}")
        A(f"s_add_u32 {sr(sT2)}, {sr(sT2)}, {WS_FLAGS}")
        A(f"s_lshl_b32 {sr(sT0)}, 1, {sr(sT0)}")
        A(f"s_add_u32 {sr(sT1)}, {sr(sG)}, 16")
        A(f"s_lshl_b32 {sr(sT1)}, {sr(sRole)}, {sr(sT1)}")
        A(f"s_or_b32 {sr(sT0)}, {sr(sT0)}, {sr(sT1)}")
        A(f"s_lshl_b32 {sr(sT1)}, {sr(sB)}, 4")
        A(f"v_mov_b32 {vr(vT)}, {sr(sT1)}")
        A(f"v_mov_b32 {vr(vT+2)}, {sr(sT0)}")
        A(f"v_mov_b32 {vr(vT+3)}, 0")
        A("s_waitcnt lgkmcnt(0)")
        A(f"v_readfirstlane_b32 {sr(sT1)}, {vr(vT+1)}")
        A(f"v_add_u32 {vr(vT+4)}, 1, {vr(vT+4)}")
        A("s_mov_b64 exec, -1")
        A("s_nop 2")
        A(f"s_cmp_eq_u32 {sr(sT1)}, 3")
        A("s_cbranch_scc0 L_fin")
        A("s_mov_b64 exec, 1")
        A(f"buffer_store_dword {vr(vT+4)}, off, {sr(rWs,4)}, {sr(sT2)} sc1")
        A(f"global_atomic_or_x2 {vr(vT+4,2)}, {vr(vT)}, {vr(vT+2,2)}, {sr(rDbg,2)} sc0 sc1")
        A("s_waitcnt vmcnt(0)")
        A(f"v_readfirstlane_b32 {sr(sT1)}, {vr(vT+4)}")
        A(f"v_readfirstlane_b32 {sr(rAb)}, {vr(vT+5)}")
        A("s_mov_b64 exec, -1")
        A("s_nop 2")
        A(f"s_or_b32 {sr(sT1)}, {sr(sT1)}, {sr(sT0)}")
        A(f"s_cmp_eq_u32 {sr(sT1)}, {FULL}")
        A("s_cbranch_scc0 L_fin")
        self.c("last arrival of this batch: take over the slices of workgroups that gave up waiting")
        lab("L_ab_loop")
        A(f"s_cmp_eq_u32 {sr(rAb)}, 0")
        A("s_cbranch_scc1 L_fin")
        A(f"s_ff1_i32_b32 {sr(rK)}, {sr(rAb)}")
        A(f"s_bitset0_b32 {sr(rAb)}, {sr(rK)}")
        A(f"s_mul_i32 {sr(rKb)}, {sr(rK)}, 3")
        for k in range(3):
            A(f"s_mov_b32 {sr(rMode)}, 2")
            A(f"s_call_b64 {sr(LINK_S,2)}, L_reduce")
            A(f"s_add_u32 {sr(rKb)}, {sr(rKb)}, 1")
        A("s_branch L_ab_loop")

    def reduce_sub(self):
        A, lab = self.A, self.lab
        dat = lambda g, q: 64 + (g * 4 + q) * 4
        acc = lambda g: 160 + g * 8
        lab("L_reduce")
        A(f"s_lshl_b32 {sr(rOffA)}, {sr(rKb)}, 10")
        A(f"s_mul_i32 {sr(rOffB)}, {sr(sB)}, {16*PART}")
        A(f"s_add_u32 {sr(rOffB)}, {sr(rOffB)}, {sr(rOffA)}")
        A(f"s_mul_i32 {sr(rOffO)}, {sr(sB)}, {8*PART}")
        A(f"s_add_u32 {sr(rOffA)}, {sr(rOffA)}, {sr(rOffO)}")
        A(f"s_add_u32 {sr(rOffA)}, {sr(rOffA)}, {PART_A_BASE}")
        A(f"s_mul_i32 {sr(sT0)}, {sr(rKb)}, 171")
        A(f"s_lshr_b32 {sr(sT0)}, {sr(sT0)}, 11")
        A(f"s_mul_i32 {sr(sT1)}, {sr(sT0)}, 12")
        A(f"s_sub_u32 {sr(sT1)}, {sr(rKb)}, {sr(sT1)}")
        A(f"s_lshr_b32 {sr(sT2)}, {sr(sT1)}, 2")
        A(f"s_and_b32 {sr(sT1)}, {sr(sT1)}, 3")
        A(f"s_mul_i32 {sr(rOffO)}, {sr(sB)}, 98304")
        A(f"s_lshl_b32 {sr(sT2)}, {sr(sT2)}, 15")
        A(f"s_lshl_b32 {sr(sT0)}, {sr(sT0)}, 8")
        A(f"s_lshl_b32 {sr(sT1)}, {sr(sT1)}, 6")
        A(f"s_add_u32 {sr(rOffO)}, {sr(rOffO)}, {sr(sT2)}")
        A(f"s_add_u32 {sr(rOffO)}, {sr(rOffO)}, {sr(sT0)}")
        A(f"s_add_u32 {sr(rOffO)}, {sr(rOffO)}, {sr(sT1)}")
        self.lane(24)
        A("v_lshlrev_b32 v25, 4, v24")
        A("v_and_b32 v26, 15, v24")
        A("v_lshlrev_b32 v26, 11, v26")
        A("v_bfe_u32 v27, v24, 4, 1")
        A("v_lshl_add_u32 v26, v27, 5, v26")
        A("v_bfe_u32 v27, v24, 5, 1")
        A("v_lshl_add_u32 v26, v27, 4, v26")
        A(f"v_mov_b32 v27, {RELAY}")
        A(f"s_lshl_b32 {sr(sT0)}, {sr(sB)}, 4")
        A(f"v_mov_b32 v28, {sr(sT0)}")
        A("v_and_b32 v40, 15, v24")
        A("v_lshlrev_b32 v40, 2, v40")
        A(f"v_add_u32 v41, {ENTRY}, v40")
        A("ds_read_b32 v41, v41")
        A(f"s_lshl_b32 {sr(sT2)}, {sr(sB)}, 8")
        A(f"s_add_u32 {sr(sT2)}, {sr(sT2)}, {WS_FLAGS}")
        A(f"v_mov_b32 v42, {STORED}")
        A("s_waitcnt lgkmcnt(0)")
        A("v_add_u32 v41, 1, v41")
        A(f"s_mov_b32 {sr(sT3)}, 0xffff0000")
        A(f"s_mov_b32 {sr(rDone)}, 0")
        A(f"s_mov_b32 {sr(rCnt)}, 0")
        lab("L_rd_poll")
        A(f"s_mov_b32 {sr(rF)}, {FULL}")
        A(f"s_cmp_eq_u32 {sr(rMode)}, 2")
        A("s_cbranch_scc1 L_rd_have")
        A(f"s_cmp_eq_u32 {sr(rMode)}, 1")
        A("s_cbranch_scc1 L_rd_lds")
        A(f"s_cmp_eq_u32 {sr(rCnt)}, 1")
        A("s_cbranch_scc0 L_rd_go")
        self.c("after the first look, stay off the memory path until this workgroup's own stores are out")
        lab("L_rd_own")
        A("ds_read_b32 v29, v42")
        A("s_waitcnt lgkmcnt(0)")
        A("v_cmp_gt_u32 vcc, 4, v29")
        A("s_cbranch_vccz L_rd_go")
        A("s_sleep 2")
        A("s_branch L_rd_own")
        lab("L_rd_go")
        A(f"s_add_u32 {sr(rCnt)}, {sr(rCnt)}, 1")
        A(f"buffer_load_dword v29, v40, {sr(rWs,4)}, {sr(sT2)} offen sc1")
        A("s_waitcnt vmcnt(0)")
        A("v_cmp_eq_u32 vcc, v29, v41")
        A("s_nop 3")
        A(f"s_and_b32 {sr(rF)}, vcc_lo, 0xffff")
        A(f"s_and_b32 {sr(sT0)}, {sr(rF)}, 0xff00")
        A(f"s_lshl_b32 {sr(sT0)}, {sr(sT0)}, 8")
        A(f"s_or_b32 {sr(rF)}, {sr(rF)}, {sr(sT0)}")
        A(f"v_mov_b32 v29, {sr(rF)}")
        A("ds_write_b32 v27, v29")
        A("s_branch L_rd_have")
        lab("L_rd_lds")
        A("ds_read_b32 v29, v27")
        A("s_waitcnt lgkmcnt(0)")
        A(f"v_readfirstlane_b32 {sr(rF)}, v29")
        A("s_nop 3")
        A(f"s_cmp_lt_i32 {sr(rF)}, 0")
        A("s_cbranch_scc1 L_rd_ret")
        lab("L_rd_have")
        A(f"s_lshr_b32 {sr(rNew)}, {sr(rF)}, 1")
        A(f"s_and_b32 {sr(rNew)}, {sr(rNew)}, {sr(rF)}")
        A(f"s_lshr_b32 {sr(sT0)}, {sr(rNew)}, 2")
        A(f"s_and_b32 {sr(rNew)}, {sr(rNew)}, {sr(sT0)}")
        A(f"s_and_b32 {sr(rNew)}, {sr(rNew)}, 0x111111")
        A(f"s_andn2_b32 {sr(rNew)}, {sr(rNew)}, {sr(rDone)}")
        A("s_cbranch_scc1 L_rd_work")
        A(f"s_sleep {self.opt.get('sleep', 8)}")
        A(f"s_cmp_eq_u32 {sr(rMode)}, 0")
        A("s_cbranch_scc0 L_rd_poll")
        A(f"s_cmp_lt_u32 {sr(rCnt)}, {self.opt.get('polls', POLL_LIMIT)}")
        A("s_cbranch_scc1 L_rd_poll")
        self.c("gave up waiting: leave the slice to the last arrival unless that has happened meanwhile")
        A(f"s_lshl_b32 {sr(sT0)}, {sr(sRole)}, 3")
        A(f"s_add_u32 {sr(sT0)}, {sr(sT0)}, {sr(sG)}")
        A(f"s_lshl_b32 {sr(sT0)}, 1, {sr(sT0)}")
        A("v_mov_b32 v30, 0")
        A(f"v_mov_b32 v31, {sr(sT0)}")
        A("s_mov_b64 exec, 1")
        A(f"global_atomic_or_x2 v[32:33], v28, v[30:31], {sr(rDbg,2)} sc0 sc1")
        A("s_waitcnt vmcnt(0)")
        A(f"v_readfirstlane_b32 {sr(rF)}, v32")
        A("s_mov_b64 exec, -1")
        A("s_nop 3")
        A(f"s_cmp_eq_u32 {sr(rF)}, {FULL}")
        A(f"s_cselect_b32 {sr(rF)}, {sr(rF)}, -1")
        A(f"v_mov_b32 v29, {sr(rF)}")
        A("ds_write_b32 v27, v29")
        A("s_cbranch_scc0 L_rd_ret")
        A(f"s_mov_b32 {sr(rMode)}, 2")
        A("s_branch L_rd_poll")
        lab("L_rd_work")
        self.stamp(13)
        for g in range(6):
            l = self.new("rg")
            A(f"s_bitcmp1_b32 {sr(rNew)}, {4*g}")
            A(f"s_cbranch_scc0 {l}")
            base, first = (rOffB, 4 * g) if g < 4 else (rOffA, 4 * (g - 4))
            for q in range(4):
                A(f"s_add_u32 {sr(sT0)}, {sr(base)}, {(first+q)*PART}")
                A(f"buffer_load_dwordx4 {vr(dat(g,q),4)}, v25, {sr(rWs,4)}, {sr(sT0)} offen sc1")
            lab(l)
        A("s_waitcnt vmcnt(0)")
        self.stamp(14)
        for g in range(6):
            l = self.new("rs")
            A(f"s_bitcmp1_b32 {sr(rNew)}, {4*g}")
            A(f"s_cbranch_scc0 {l}")
            for q in range(4):
                for k in range(4):
                    r, t = dat(g, q) + k, (acc(g) + 2 * k if q == 0 else 30 + 2 * (k % 2))
                    A(f"v_lshlrev_b32 {vr(t)}, 16, {vr(r)}")
                    A(f"v_and_b32 {vr(t+1)}, {sr(sT3)}, {vr(r)}")
                    if q:
                        A(f"v_pk_add_f32 {vr(acc(g)+2*k,2)}, {vr(acc(g)+2*k,2)}, {vr(t,2)}")
            lab(l)
        A(f"s_or_b32 {sr(rDone)}, {sr(rDone)}, {sr(rNew)}")
        A(f"s_cmp_eq_u32 {sr(rDone)}, 0x111111")
        A("s_cbranch_scc0 L_rd_poll")
        for x, y in ((0, 1), (2, 3), (4, 5), (0, 2)):
            for k in range(4):
                A(f"v_pk_add_f32 {vr(acc(x)+2*k,2)}, {vr(acc(x)+2*k,2)}, {vr(acc(y)+2*k,2)}")
        for g, d in ((4, 32), (0, 36)):
            for k in range(4):
                A(f"v_cvt_pk_bf16_f32 {vr(d+k)}, {vr(acc(g)+2*k)}, {vr(acc(g)+2*k+1)}")
        A(f"buffer_store_dwordx4 v[32:35], v26, {sr(rOut,4)}, {sr(rOffO)} offen")
        A(f"buffer_store_dwordx4 v[36:39], v26, {sr(rOut,4)}, {sr(rOffO)} offen offset:1024")
        lab("L_rd_ret")
        A(f"s_setpc_b64 {sr(LINK_S,2)}")

    def zero(self, base, n):
        for k in range(0, n, 2):
            self.A(f"v_mov_b64 {vr(base+k,2)}, 0")

    def act_write_addr(self, sblk, stile):
        A = self.A
        self.lane(vT + 1)
        A(f"v_lshrrev_b32 {vr(vT)}, 4, {vr(vT+1)}")
        A(f"v_and_b32 {vr(vT+1)}, 15, {vr(vT+1)}")
        A(f"v_lshrrev_b32 {vr(vT+2)}, 1, {vr(vT)}")
        if stile is not None:
            A(f"v_add_u32 {vr(vT+2)}, {sr(stile)}, {vr(vT+2)}")
        A(f"v_xor_b32 {vr(vT+2)}, {vr(vT+2)}, {vr(vT+1)}")
        A(f"v_lshlrev_b32 {vr(vT+2)}, 4, {vr(vT+2)}")
        A(f"v_and_b32 {vr(vT)}, 1, {vr(vT)}")
        A(f"v_lshl_or_b32 {vr(vT+2)}, {vr(vT)}, 3, {vr(vT+2)}")
        A(f"v_mul_u32_u24 {vr(vT+1)}, {XROW}, {vr(vT+1)}")
        A(f"s_add_u32 {sr(sT5)}, {sr(sblk)}, {XB}")
        A(f"v_add3_u32 {vr(vT+1)}, {vr(vT+1)}, {sr(sT5)}, {vr(vT+2)}")

    def frag_addrs(self):
        A = self.A
        t0, t1, t2, t3, t4, t5, vL = vT, vT + 1, vT + 2, vT + 3, vT + 4, vT + 5, vT + 6
        self.lane(vL)
        A(f"v_lshrrev_b32 {vr(t0)}, 4, {vr(vL)}")
        A(f"v_and_b32 {vr(t1)}, 15, {vr(vL)}")
        A(f"v_bfe_u32 {vr(t2)}, {vr(vL)}, 2, 2")
        A(f"v_and_b32 {vr(t3)}, 3, {vr(vL)}")
        A(f"v_lshl_add_u32 {vr(t4)}, {vr(t0)}, 3, {vr(t2)}")
        A(f"v_lshlrev_b32 {vr(t4)}, 8, {vr(t4)}")
        A(f"v_and_b32 {vr(t5)}, 1, {vr(t0)}")
        A(f"v_lshl_or_b32 {vr(t5)}, {vr(t5)}, 2, {vr(t2)}")
        A(f"v_lshl_or_b32 {vr(t4)}, {vr(t5)}, 5, {vr(t4)}")
        A(f"v_lshl_or_b32 {vr(vTR0)}, {vr(t3)}, 3, {vr(t4)}")
        A(f"s_lshr_b32 {sr(sT0)}, {sr(sW1024)}, 4")
        A(f"v_xor_b32 {vr(vTRw)}, {sr(sT0)}, {vr(vTR0)}")
        A(f"s_lshr_b32 {sr(sT1)}, {sr(sW)}, 1")
        A(f"s_lshl_b32 {sr(sT1)}, {sr(sT1)}, 13")
        A(f"v_lshrrev_b32 {vr(t4)}, 2, {vr(t1)}")
        A(f"v_lshl_or_b32 {vr(t4)}, {vr(t4)}, 3, {vr(t3)}")
        A(f"v_lshlrev_b32 {vr(t4)}, 8, {vr(t4)}")
        A(f"v_lshrrev_b32 {vr(t5)}, 1, {vr(t0)}")
        A(f"v_and_b32 {vr(vKb)}, 7, {vr(t1)}")
        A(f"v_xor_b32 {vr(t5)}, {vr(t5)}, {vr(vKb)}")
        A(f"v_lshl_or_b32 {vr(t4)}, {vr(t5)}, 5, {vr(t4)}")
        A(f"v_and_b32 {vr(t5)}, 1, {vr(t0)}")
        A(f"v_lshl_or_b32 {vr(t4)}, {vr(t5)}, 4, {vr(t4)}")
        A(f"s_and_b32 {sr(sT0)}, {sr(sW)}, 1")
        A(f"s_lshl_b32 {sr(sT0)}, {sr(sT0)}, 10")
        A(f"s_add_u32 {sr(sT0)}, {sr(sT0)}, {sr(sT1)}")
        A(f"v_add_u32 {vr(vKb)}, {sr(sT0)}, {vr(t4)}")
        A(f"v_mul_u32_u24 {vr(t4)}, {XROW}, {vr(t1)}")
        A(f"v_add_u32 {vr(t4)}, {XB}, {vr(t4)}")
        A(f"v_xor_b32 {vr(t5)}, {vr(t0)}, {vr(t1)}")
        A(f"v_lshlrev_b32 {vr(t5)}, 4, {vr(t5)}")
        for s in range(4):
            A(f"v_xor_b32 {vr(vXB+s)}, {s*64}, {vr(t5)}")
            A(f"v_add_u32 {vr(vXB+s)}, {vr(vXB+s)}, {vr(t4)}")
        A(f"v_lshrrev_b32 {vr(t5)}, 1, {vr(t0)}")
        A(f"s_lshr_b32 {sr(sT0)}, {sr(sW1024)}, 8")
        A(f"v_add_u32 {vr(t5)}, {sr(sT0)}, {vr(t5)}")
        A(f"v_xor_b32 {vr(t5)}, {vr(t5)}, {vr(t1)}")
        A(f"v_lshl_add_u32 {vr(vQW)}, {vr(t5)}, 4, {vr(t4)}")
        A(f"v_and_b32 {vr(t5)}, 1, {vr(t0)}")
        A(f"v_lshl_add_u32 {vr(vQW)}, {vr(t5)}, 3, {vr(vQW)}")
        A(f"s_lshr_b32 {sr(sT0)}, {sr(sW)}, 1")
        A(f"s_lshl_b32 {sr(sT0)}, {sr(sT0)}, 2")
        A(f"v_add_u32 {vr(t5)}, {sr(sT0)}, {vr(t0)}")
        A(f"v_xor_b32 {vr(t5)}, {vr(t5)}, {vr(t1)}")
        A(f"v_lshl_add_u32 {vr(vPW)}, {vr(t5)}, 4, {vr(t4)}")
        A(f"s_and_b32 {sr(sT0)}, {sr(sW)}, 1")
        A(f"s_lshl_b32 {sr(sT0)}, {sr(sT0)}, 3")
        A(f"v_add_u32 {vr(vPW)}, {sr(sT0)}, {vr(vPW)}")
        A(f"v_lshlrev_b32 {vr(vSTr)}, 5, {vr(t1)}")
        A(f"v_add_u32 {vr(vSTr)}, {ST}, {vr(vSTr)}")
        A(f"v_lshlrev_b32 {vr(t5)}, 1, {vr(t0)}")
        A(f"v_mov_b32 {vr(t4)}, 0x98")
        A(f"v_lshrrev_b32 {vr(t5)}, {vr(t5)}, {vr(t4)}")
        A(f"v_and_b32 {vr(t5)}, 3, {vr(t5)}")
        A(f"v_lshl_add_u32 {vr(vSTw)}, {vr(t5)}, 9, {vr(vSTr)}")
        A(f"s_lshl_b32 {sr(sT0)}, {sr(sW)}, 2")
        A(f"v_add_u32 {vr(vSTw)}, {sr(sT0)}, {vr(vSTw)}")

    def main_kernel(self):
        A, lab, c = self.A, self.lab, self.c
        opt = self.opt
        K1 = NAME + "_kernel"
        self.L += [f".globl {K1}", ".p2align 8", f".type {K1},@function"]
        lab(K1)
        if opt.get("prost"):
            A("s_memtime s[88:89]")
        A("s_cmp_ge_u32 s2, 256")
        A("s_cbranch_scc1 L_end")
        if opt.get("only"):
            A("s_bitcmp1_b32 s2, 7")
            A("s_cbranch_scc%d L_end" % (1 if opt["only"] == "B" else 0))
        if opt.get("dbg"):
            A("s_memrealtime s[76:77]")
            A("s_waitcnt lgkmcnt(0)")
            A("v_mov_b32 v23, s76")
            A("s_memtime s[76:77]")
            A("s_waitcnt lgkmcnt(0)")
            A("s_mov_b32 s78, s76")
        A(f"s_load_dwordx8 {sr(44,8)}, s[0:1], 40")
        A(f"s_load_dwordx2 {sr(52,2)}, s[0:1], 72")
        A(f"s_load_dwordx8 {sr(32,8)}, s[0:1], 0")
        A(f"s_load_dwordx2 {sr(40,2)}, s[0:1], 32")
        A(f"s_load_dwordx2 {sr(54,2)}, s[0:1], 96")
        if opt.get("stamps"):
            A(f"v_mov_b32 {vr(23)}, 0")
            A(f"s_mov_b32 s78, {-(opt.get('skip', 1) - 1)}")
        if opt.get("prost"):
            A("s_waitcnt lgkmcnt(0)")
            A("s_and_b32 s88, s88, 0xffffff")
            A(f"s_or_b32 s88, s88, {1 << 24}")
            A("v_writelane_b32 v23, s88, 0")
            A("s_mov_b32 s78, 1")
            self.stamp(15)
        vL = vT + 6
        A(f"v_lshrrev_b32 {vr(vT)}, 6, v0")
        A(f"v_and_b32 {vr(vL)}, 63, v0")
        A(f"v_readfirstlane_b32 {sr(sW)}, {vr(vT)}")
        A(f"s_and_b32 {sr(sG)}, s2, 7")
        A(f"s_lshr_b32 {sr(sT0)}, s2, 3")
        A(f"s_and_b32 {sr(sB)}, {sr(sT0)}, 15")
        A(f"s_lshr_b32 {sr(sRole)}, {sr(sT0)}, 4")
        A(f"s_and_b32 {sr(sOrd)}, {sr(sT0)}, {opt.get('ordmask', 1)}")
        A(f"s_cmp_lg_u32 {sr(sOrd)}, 0")
        A(f"s_cselect_b32 {sr(sOrd)}, 2, 1")
        A(f"s_mul_i32 {sr(sOrd)}, {sr(sOrd)}, {sr(sRole)}")
        A(f"s_and_b32 {sr(sHead)}, {sr(sT0)}, {16 | opt.get('upmask', 0)}")
        A(f"s_sub_u32 {sr(sHead)}, {sr(sHead)}, 1")
        A(f"s_cmp_lt_u32 {sr(sHead)}, 15")
        A(f"s_cselect_b32 {sr(sOrd)}, 3, {sr(sOrd)}")
        A(f"s_and_b32 {sr(sT1)}, {sr(sW)}, 3")
        A(f"s_lshl_b32 {sr(sW1024)}, {sr(sT1)}, 10")
        c("DMA lane offsets: row = 4(w&3) + (l>>4) (+16), 32-byte chunk XOR key(row)")
        t0, t1, t2, t3, t4, t5 = vT, vT + 1, vT + 2, vT + 3, vT + 4, vT + 5
        A(f"v_lshrrev_b32 {vr(t0)}, 4, {vr(vL)}")
        A(f"s_lshl_b32 {sr(sT0)}, {sr(sW)}, 1")
        A(f"s_and_b32 {sr(sT0)}, {sr(sT0)}, 4")
        A(f"v_or_b32 {vr(t1)}, {sr(sT0)}, {vr(t0)}")
        A(f"v_bfe_u32 {vr(t2)}, {vr(vL)}, 1, 3")
        A(f"v_xor_b32 {vr(t1)}, {vr(t1)}, {vr(t2)}")
        A(f"v_lshlrev_b32 {vr(t1)}, 5, {vr(t1)}")
        A(f"v_and_b32 {vr(t2)}, 1, {vr(vL)}")
        A(f"v_lshl_or_b32 {vr(vChunk)}, {vr(t2)}, 4, {vr(t1)}")
        A(f"s_lshl_b32 {sr(sT0)}, {sr(sT1)}, 2")
        A(f"v_add_u32 {vr(vRow)}, {sr(sT0)}, {vr(t0)}")
        A(f"v_lshl_add_u32 {vr(vCur[0])}, {vr(vRow)}, {ROWSH[T_WQ]}, {vr(vChunk)}")
        c("first B head: 4g for the A role, 4g+1 for the B role")
        A(f"s_lshl_b32 {sr(sT4)}, {sr(sG)}, 2")
        A(f"s_add_u32 {sr(sT4)}, {sr(sT4)}, 1")
        A(f"s_sub_u32 {sr(sT4)}, {sr(sT4)}, {sr(sRole)}")
        A(f"s_lshl_b32 {sr(sE)}, {sr(sT4)}, 8")
        A(f"s_getpc_b64 {sr(sT2,2)}")
        lab("L_pc0")
        A(f"s_lshl_b32 {sr(sT0)}, {sr(sOrd)}, 8")
        A(f"s_add_u32 {sr(sT0)}, {sr(sT0)}, L_table-L_pc0")
        A(f"v_lshl_add_u32 {vr(vTab)}, {vr(vL)}, 2, {sr(sT0)}")
        A(f"global_load_dword {vr(vTab)}, {vr(vTab)}, {sr(sT2,2)}")
        self.x_setup(vY, sHalf[0], sHalf[1])
        if opt.get("prost"):
            self.stamp(15)
        A(f"s_bitcmp1_b32 {sr(sW)}, 2")
        A("s_waitcnt lgkmcnt(0)")
        self.srd(SRD_AUX, sBx, 786432)
        self.srd(SRD_WQW, sAwq, 4194304)
        self.srd(SRD_WQ, sBwq, 4194304)
        self.srd(SRD_CUR[0], sBwq, 4194304)
        self.srd(SRD_CUR[1], sBwq, 4194304)
        A("s_cbranch_scc1 L_pro_ld")
        A(f"s_cmp_eq_u32 {sr(sRole)}, 1")
        A("s_cbranch_scc1 L_pro_done")
        self.weight_prefetch([(sBwq, True, 1)])
        A("s_branch L_pro_done")
        lab("L_pro_ld")
        A(f"s_cmp_eq_u32 {sr(sOrd)}, 1")
        A(f"s_cselect_b64 {sr(SRD_AUX,2)}, {sr(sAx,2)}, {sr(sBx,2)}")
        A(f"s_cselect_b64 {sr(SRD_CUR[0],2)}, {sr(sAwq,2)}, {sr(sBwq,2)}")
        A(f"s_mov_b32 {sr(sStr[1])}, {32*8192}")
        A(f"s_cselect_b32 {sr(sStr[0])}, 256, {sr(sStr[1])}")
        A(f"s_cselect_b32 {sr(sStr[1])}, {sr(sStr[1])}, {128*8192}")
        A(f"s_cselect_b32 {sr(sI[0])}, {sr(sB)}, 0")
        A(f"s_lshr_b32 {sr(sOff2)}, {sr(sI[0])}, 2")
        A(f"s_mov_b32 {sr(sTy[0])}, {sr(sE)}")
        self.x_rot(vY, 0)
        self.first_tile(0)
        self.x_rot(vY, 1)
        if opt.get("prost"):
            self.stamp(15)
        lab("L_pro_done")
        self.frag_addrs()
        A(f"s_cmp_eq_u32 {sr(sOrd)}, 1")
        for d, pa, pb, za, zb in ((SRD_K, sAk, sBk, 16777216, 67108864), (SRD_V, sAv, sBv, 16777216, 67108864), (SRD_WO, sAwo, sBwo, 4194304, 4194304)):
            A(f"s_cselect_b64 {sr(d,2)}, {sr(pa,2)}, {sr(pb,2)}")
            A(f"s_mov_b32 {sr(d+2)}, {zb}")
            if za != zb:
                A(f"s_cselect_b32 {sr(d+2)}, {za}, {sr(d+2)}")
            A(f"s_mov_b32 {sr(d+3)}, 0x20000")
        c("tile table: entry = constant + base selected by bits 4:3 (Wq head, B K/V unit, Wo head, A K/V unit)")
        bq, bkv, bo, bka = sT0, sT1, sT2, sT3
        A(f"s_lshl_b32 {sr(bq)}, {sr(sT4)}, 8")
        A(f"s_lshl_b32 {sr(bkv)}, {sr(sB)}, 5")
        A(f"s_add_u32 {sr(bkv)}, {sr(bkv)}, {sr(sT4)}")
        A(f"s_lshl_b32 {sr(bkv)}, {sr(bkv)}, 17")
        A(f"s_lshl_b32 {sr(bo)}, {sr(sT4)}, 17")
        A(f"s_lshl_b32 {sr(bka)}, {sr(sB)}, 3")
        A(f"s_add_u32 {sr(bka)}, {sr(bka)}, {sr(sG)}")
        A(f"s_lshl_b32 {sr(bka)}, {sr(bka)}, 17")
        A(f"s_cmp_eq_u32 {sr(sRole)}, 1")
        A(f"s_cselect_b32 {sr(sHead)}, 1, 3")
        A(f"v_mov_b32 {vr(vT+1)}, {sr(bq)}")
        self.is_loader("L_tabw")
        if self.fuse:
            self.srd(SRD_CUR[1], sWs, 268435456)
            self.lane(vT + 3)
            A(f"v_lshlrev_b32 {vr(vT+3)}, 2, {vr(vT+3)}")
            A(f"s_lshl_b32 {sr(sT5)}, {sr(sB)}, 8")
            A(f"s_add_u32 {sr(sT5)}, {sr(sT5)}, {WS_FLAGS}")
            A(f"s_mov_b32 m0, {ENTRY}")
            A(f"s_cmp_eq_u32 {sr(sW)}, 3")
            A("s_cbranch_scc0 L_tabw0")
            A(f"buffer_load_dword {vr(vT+3)}, {sr(SRD_CUR[1],4)}, {sr(sT5)} offen sc1 lds")
            lab("L_tabw0")
        A("s_waitcnt vmcnt(0)")
        lab("L_tabw")
        A("s_waitcnt vmcnt(14)")
        A(f"v_bfe_u32 {vr(vT)}, {vr(vTab)}, 3, 2")
        for k, base in ((1, bkv), (2, bo), (3, bka)):
            A(f"v_cmp_eq_u32 vcc, {k}, {vr(vT)}")
            A(f"v_mov_b32 {vr(vT+2)}, {sr(base)}")
            A("s_nop 0")
            A(f"v_cndmask_b32 {vr(vT+1)}, {vr(vT+1)}, {vr(vT+2)}, vcc")
        A(f"s_lshl_b32 {sr(sT5)}, {sr(sB)}, 18")
        A(f"v_and_b32 {vr(vT)}, 7, {vr(vTab)}")
        A(f"v_cmp_eq_u32 vcc, {T_WQW}, {vr(vT)}")
        A(f"v_add_u32 {vr(vT+2)}, {sr(sT5)}, {vr(vTab)}")
        A(f"v_and_b32 {vr(vT+2)}, 0x3fffff, {vr(vT+2)}")
        A(f"v_cndmask_b32 {vr(vTab)}, {vr(vTab)}, {vr(vT+2)}, vcc")
        A(f"v_add_u32 {vr(vTab)}, {vr(vTab)}, {vr(vT+1)}")
        A(f"s_mov_b32 {sr(sIdx)}, 3")
        A(f"s_mov_b32 {sr(sC)}, 0")
        A(f"v_readlane_b32 {sr(sE)}, {vr(vTab)}, 3")

        def const(ty, hh, t, a_unit=False):
            if ty == T_WQ:
                return t * 128 * 8192 + hh * 256 + ty
            if ty == T_WQW:
                return t * 32 * 8192 + ty
            if ty in (T_K, T_V):
                return hh * 131072 + t * 32768 + ty + (24 if a_unit else 8)
            return (hh * 128 + 32 * t) * 1024 + ty + 16

        tb = [const(T_WQ, 0, t) for t in range(4)] + [const(T_K, 0, t) for t in range(4)]
        tb += [const(T_WQ, hh, t) for hh in (1, 2) for t in range(4)]
        tb += [const(ty, 0, t) for ty in (T_V, T_WO) for t in range(4)]
        tb += [const(ty, hh, t) for hh in (1, 2) for ty in (T_K, T_V, T_WO) for t in range(4)]
        ta = [const(T_WQW, 0, t) for t in range(16)]
        ta += [const(ty, 0, t, True) for t in range(4) for ty in (T_K, T_V)]
        ta += [const(T_WO, hh, t) for hh in range(4) for t in range(4)]
        ta += [const(ty, 0, t) for ty in (T_WQ, T_K, T_V, T_WO) for t in range(4)]
        tc = ta[40:] + ta[:40]
        td = tb[:4] + tb[8:16] + tb[4:8] + tb[16:]
        self.table = sum((t + [NULL_OFF] * (64 - len(t)) for t in (tb, ta, tc, td)), [])
        A(f"s_mov_b32 {sr(sScale)}, {f32(math.log2(math.e) / math.sqrt(128.0))}")
        A(f"s_mov_b32 {sr(sThr)}, 0x41000000")
        A(f"s_mov_b32 {sr(sZero)}, 1")
        A(f"v_mov_b32 {vr(vT)}, {RELAY}")
        A(f"v_mov_b64 {vr(vT+2,2)}, 0")
        A(f"ds_write_b64 {vr(vT)}, {vr(vT+2,2)}")
        self.stamp(0)

        if opt.get("dmaonly"):
            self.dma_only()
        A(f"s_mov_b32 {sr(sHook)}, 0")
        A(f"s_cmp_eq_u32 {sr(sOrd)}, 1")
        A("s_cbranch_scc1 L_apath")
        lab("L_q0")
        c("Q projection of the first B head (scaled by log2(e)/sqrt(128))")
        A(f"s_cmp_eq_u32 {sr(sOrd)}, 0")
        A(f"s_cselect_b32 {sr(sXlive)}, 1, 0")
        A(f"s_cmp_eq_u32 {sr(sOrd)}, 3")
        A(f"s_cselect_b32 {sr(sLate)}, 0, 2")
        A(f"s_call_b64 {sr(LINK_S,2)}, L_qproj")
        def q_write(src, blk):
            A(f"v_xor_b32 {vr(vT+6)}, 32, {vr(vQW)}")
            for m in range(2):
                for n in range(3):
                    A(f"ds_write_b64 {vr(vT+6 if m else vQW)}, {vr(src+(m*3+n)*2,2)} offset:{n*XN+blk*BLK}")

        self.is_loader("L_q0ld")
        q_write(vAcc, 4)
        allpf = {"q0": (sBwq, True, 0), "q2": (sBwq, True, 2), "q3": (sBwq, True, 3)}
        allpf.update({f"b{h}": (sBwo, False, h) for h in range(4)})
        allpf.update({f"a{h}": (sAwo, False, h) for h in range(4)})
        pick = lambda key, dflt: [allpf[x] for x in opt.get(key, dflt).split("+") if x]
        self.pf_a = pick("pfa", "q0+b2+b3")
        A(f"s_cmp_eq_u32 {sr(sOrd)}, 1")
        A("s_cbranch_scc1 L_q0done")
        A(f"s_cmp_eq_u32 {sr(sOrd)}, 3")
        A("s_cbranch_scc1 L_q0done")
        A(f"s_cmp_eq_u32 {sr(sOrd)}, 2")
        A("s_cbranch_scc1 L_pfc")
        self.weight_prefetch(pick("pfb", "q2+q3+b0+b1"), half=opt.get('upmask', 0) == 1)
        A("s_branch L_q0done")
        lab("L_pfc")
        self.weight_prefetch(pick("pfc", "a0+a1+a2+a3"), half=True)
        A("s_branch L_q0done")
        lab("L_q0ld")
        self.frag_addrs()
        lab("L_q0done")
        A(f"s_cmp_eq_u32 {sr(sOrd)}, 3")
        A("s_cbranch_scc0 L_q0end")
        for k in range(2):
            A(f"s_mov_b32 {sr(sLate)}, {2*k}")
            A(f"s_call_b64 {sr(LINK_S,2)}, L_qproj")
            for r in range(0, 12, 2):
                A(f"v_mov_b64 {vr((vY + 4 if k else vQs)+r,2)}, {vr(vAcc+r,2)}")
        A(f"s_mov_b32 {sr(sXlive)}, 2")
        lab("L_q0end")
        self.stamp(1)
        A("s_branch L_bpath")
        lab("L_apath")
        c("GQA group: four query heads sharing one K/V")
        A(f"s_mov_b32 {sr(sHook)}, 0")
        A(f"s_mov_b32 {sr(sBlk)}, {sr(sB)}")
        A(f"s_mov_b32 {sr(sBlkEnd)}, {3*BLK}")
        A(f"s_mov_b32 {sr(sLate)}, 3")
        A(f"s_call_b64 {sr(LINK_S,2)}, L_wide")
        c("wave c < 4 holds Q of head c; x is dead after the drain barrier")
        self.is_loader("L_qa_ld")
        A("s_barrier")
        A(f"s_mul_i32 {sr(sT0)}, {sr(sW)}, {BLK}")
        self.act_write_addr(sT0, None)
        A(f"v_mov_b32 {vr(vT+4)}, {sr(sScale)}")

        def qpack(jp):
            g = []
            for j in (2 * jp, 2 * jp + 1):
                g.append([f"v_xor_b32 {vr(vT+2+j%2)}, {j*32}, {vr(vT+1)}"])
                for n in range(3):
                    y = vY + (j * 3 + n) * 4
                    g += [[self.pkmul(y, vT + 4)], [self.pkmul(y + 2, vT + 4)],
                          [f"v_cvt_pk_bf16_f32 {vr(y)}, {vr(y)}, {vr(y+1)}"], [f"v_cvt_pk_bf16_f32 {vr(y+1)}, {vr(y+2)}, {vr(y+3)}"],
                          [f"ds_write_b64 {vr(vT+2+j%2)}, {vr(y,2)} offset:{n*XN}"]]
            return g

        self.wide_drain(qpack)
        A("s_branch L_qa_done")
        lab("L_qa_ld")
        self.head(8)
        for k in range(4):
            self.dma(k, 0, True, guard=False)
        lab("L_qa_done")
        self.stamp(7)
        c("wave = (head w>>1, key half w&1); O slot j holds d tile j ^ 4(w&1)")
        A(f"s_and_b32 {sr(sT0)}, {sr(sW)}, 1")
        A(f"s_lshl_b32 {sr(sT2)}, {sr(sT0)}, 14")
        A(f"s_lshl_b32 {sr(sT3)}, {sr(sT0)}, 7")
        A(f"s_lshl_b32 {sr(sT0)}, {sr(sT0)}, 10")
        A(f"s_lshr_b32 {sr(sT1)}, {sr(sW)}, 1")
        A(f"s_mul_i32 {sr(sBlk)}, {sr(sT1)}, {BLK}")
        A(f"s_lshl_b32 {sr(sT1)}, {sr(sT1)}, 13")
        A(f"s_add_u32 {sr(sT0)}, {sr(sT0)}, {sr(sT1)}")
        A(f"s_sub_u32 {sr(sT0)}, {sr(sT2)}, {sr(sT0)}")
        A(f"v_add_u32 {vr(vKa)}, {sr(sT0)}, {vr(vKb)}")
        A(f"v_xor_b32 {vr(vTRa)}, {sr(sT3)}, {vr(vTR0)}")
        A(f"v_add_u32 {vr(vTRa)}, {sr(sT2)}, {vr(vTRa)}")
        c("tiles alternate over four slots: the three ring slots and the activation region")
        sKs, sVs, sXa, sXb, sX, sEv = sQ[0], sQ[1], sQ[2], sQ[3], [sT1, sT2], sT0
        A(f"s_mov_b32 {sr(sKs)}, {sr(sC)}")
        self.weave([], self.rot())
        A(f"s_mov_b32 {sr(sVs)}, {sr(sC)}")
        self.weave([], self.rot())
        A(f"s_xor_b32 {sr(sXa)}, {sr(sKs)}, {sr(sC)}")
        A(f"s_xor_b32 {sr(sXb)}, {sr(sVs)}, {XB}")
        A(f"v_add_u32 {vr(vT)}, {sr(sKs)}, {vr(vKa)}")
        for s in range(1, 4):
            A(f"v_xor_b32 {vr(vT+s)}, {s*64}, {vr(vT)}")
        c("load parameters: set pv carries V tiles, set pk carries K tiles (waves 0-3: pv = 0, waves 4-7: pv = 1)")
        A(f"s_lshl_b32 {sr(sT3)}, {sr(sB)}, 3")
        A(f"s_add_u32 {sr(sT3)}, {sr(sT3)}, {sr(sG)}")
        A(f"s_lshl_b32 {sr(sT3)}, {sr(sT3)}, 17")
        A(f"s_lshl_b32 {sr(sT4)}, {sr(sW)}, 10")
        A(f"s_and_b32 {sr(sT5)}, {sr(sT4)}, 4096")
        A(f"s_add_u32 {sr(sT3)}, {sr(sT3)}, {sr(sT5)}")
        A(f"s_add_u32 {sr(sT5)}, {sr(sVs)}, {sr(sT4)}")
        A(f"s_add_u32 {sr(sT4)}, {sr(sC)}, {sr(sT4)}")
        self.weave([], self.rot())
        A(f"s_add_u32 {sr(sP0)}, {sr(sT3)}, {32768-8192}")
        A(f"s_add_u32 {sr(sP1)}, {sr(sT3)}, {65536-8192}")
        A(f"s_bitcmp1_b32 {sr(sW)}, 2")
        for q in range(2):
            lo = ("%s, %s" if q else "%s, %s")
            def sel(y, x):
                return (y, x) if q else (x, y)
            A(f"s_cselect_b64 {sr(SRD_CUR[q],2)}, " + ", ".join(sel(sr(SRD_V, 2), sr(SRD_K, 2))))
            A(f"s_mov_b32 {sr(SRD_CUR[q]+2)}, 16777216")
            A(f"s_cselect_b32 {sr(sOff[q])}, " + ", ".join(sel(sr(sP0), sr(sP1))))
            A(f"s_cselect_b32 {sr(sI[q])}, " + ", ".join(sel(sr(sT5), sr(sT4))))
            A(f"s_cselect_b32 {sr(sX[q])}, " + ", ".join(sel(sr(sXb), sr(sXa))))
            A(f"s_mov_b32 {sr(sStr[q])}, 8192")
            A(f"s_mov_b32 {sr(sTy[q])}, {T_K}")
            A(f"v_lshl_add_u32 {vr(vCur[q])}, {vr(vRow)}, 8, {vr(vChunk)}")
        A(f"s_mov_b32 {sr(sEv)}, 0")
        for n in range(3):
            self.zero(vNm[n], 4)
        A(f"s_mov_b32 {sr(sFix)}, 0")
        A(f"s_mov_b32 {sr(sIter)}, 4")

        def sa(sg, n, t):
            return vS + ((sg * 3 + n) * 2 + t) * 4

        def fa(f):
            return vAfA + (f % NFA) * 4

        def kread(f):
            j, s = f // 4, f % 4
            A(f"ds_read_b128 {vr(fa(f),4)}, {vr(vT+s)} offset:{(j//2)*8192+(j%2)*1024}")

        def sm_check(sg, lr, ln):
            f = [[x] for x in self.maxn(vDl, [sa(sg, 0, 0) + r for r in range(24)])]
            return f + [[f"v_cmp_lt_f32 vcc, {sr(sThr)}, {vr(vDl)}", f"s_cbranch_vccnz {lr}", ln + ":"]]

        def sm_exp(sg):
            f = []
            for n in range(3):
                b = sa(sg, n, 0)
                for r in range(8):
                    f.append([f"v_exp_f32 {vr(b+r)}, {vr(b+r)}"])
                    if r in (3, 5, 7):
                        f.append([f"v_cvt_pk_bf16_f32 {vr(b+(r-3)//2)}, {vr(b+r-3)}, {vr(b+r-2)}"])
                f.append(["s_nop 0", f"v_cvt_pk_bf16_f32 {vr(b+3)}, {vr(b+6)}, {vr(b+7)}"] if n == 2 else
                         [f"v_exp_f32 {vr(b+8)}, {vr(b+8)}", f"v_cvt_pk_bf16_f32 {vr(b+3)}, {vr(b+6)}, {vr(b+7)}"])
            out, skip = [], set()
            for n in (1, 2):
                skip.add(f"v_exp_f32 {vr(sa(sg,n,0))}, {vr(sa(sg,n,0))}")
            for g in f:
                if len(g) == 1 and g[0] in skip:
                    continue
                out.append(g)
            return out

        def aprep(q):
            l1, l2 = self.new("wo"), self.new("wb")
            self.cold += [l1 + ":",
                          f"  s_mov_b64 {sr(SRD_CUR[q],2)}, {sr(SRD_WO,2)}", f"  s_mov_b32 {sr(SRD_CUR[q]+2)}, 4194304",
                          f"  s_mov_b32 {sr(sStr[q])}, 256", f"  s_mov_b32 {sr(sTy[q])}, {T_WO}",
                          f"  v_lshl_add_u32 {vr(vCur[q])}, {vr(vRow)}, 10, {vr(vChunk)}",
                          f"  s_lshl_b32 {sr(sOff[q])}, {sr(sG)}, 4", f"  s_add_u32 {sr(sOff[q])}, {sr(sOff[q])}, {sr(sEv)}",
                          f"  s_sub_u32 {sr(sOff[q])}, {sr(sOff[q])}, 6", f"  s_lshl_b32 {sr(sOff[q])}, {sr(sOff[q])}, 15",
                          f"  s_and_b32 {sr(sP0)}, {sr(sW)}, 4", f"  s_lshl_b32 {sr(sP0)}, {sr(sP0)}, 12",
                          f"  s_add_u32 {sr(sOff[q])}, {sr(sOff[q])}, {sr(sP0)}",
                          f"  s_branch {l2}"]
            return [[f"s_xor_b32 {sr(sI[q])}, {sr(sI[q])}, {sr(sX[q])}"],
                    [f"s_add_u32 {sr(sEv)}, {sr(sEv)}, 1", f"s_cmp_ge_u32 {sr(sEv)}, 6", f"s_cbranch_scc1 {l1}", l2 + ":"]]

        def kstep(first):
            u = "f" if first else "l"
            self.early_head(8 if first else 4, lambda: [kread(f) for f in range(NFA)],
                            (lambda: self.load_bfrags_dyn(vLq[0], QA)) if first else None)
            self.ks(2)
            prim = []
            for f in range(16):
                j, s = f // 4, f % 4
                if s == 0:
                    prim.append(self.D1(j, 1, first))
                if f % 2 == 0:
                    prim.append(("w", [f"  s_waitcnt lgkmcnt({max(0, min(f + NFA, 16) - (f + 2))})"]))
                for n in range(3):
                    prim.append(self.M(sa(j // 2, n, j % 2), fa(f), QA[n * 4 + s], vNm[n] if s == 0 else None))
                if f + NFA < 16:
                    prim.append(("r", self.cap(kread, f + NFA)))
                if f == 7:
                    half = len(prim)
            zf = []
            if first:
                zf = [[f"v_mov_b32 {vr(vOne+k)}, 0x3f803f80"] for k in range(4)]
            self.weave(prim[:half], aprep(0) + [[f"s_xor_b32 {sr(sKs)}, {sr(sKs)}, {sr(sXa)}"]] + zf, per=1)
            self.ks()
            if opt.get("prio", 1) == 1:
                A("s_setprio 1")
            fill = [[f"s_branch L_r0first", "L_n0f:"]] if first else sm_check(0, "L_r0", "L_n0l")
            fill += sm_exp(0)
            self.weave(prim[half:], fill, per=opt.get('kper', 3), start=10)
            self.ks()
            A(f"s_cmp_eq_u32 {sr(sFix)}, 0")
            A(f"v_add_u32 {vr(vT)}, {sr(sVs)}, {vr(vTRa)}")
            A("s_nop 5")
            A(f"s_cbranch_scc0 L_r0b{u}")
            lab(f"L_n0b{u}")
            self.weave([], sm_check(1, f"L_r1{u}", f"L_n1{u}"))
            self.ks(13)

        def va(mt):
            return vT if mt == 0 else sa(0, (mt - 1) // 4, 0) + 4 + (mt - 1) % 4

        def vread(q):
            sg, mt = q // 8, q % 8
            if mt and not sg:
                A(f"v_xor_b32 {vr(va(mt))}, {mt*32}, {vr(vT)}")
            self.tr_pair(fa(q), va(mt), sg * 8192)

        c("waves 4-7 run one interval behind waves 0-3")
        A(f"s_bitcmp1_b32 {sr(sW)}, 2")
        A("s_cbranch_scc0 L_att0")
        if opt.get("prio", 1) == 2:
            A("s_setprio 1")
        self.weave([], aprep(1))
        self.load_bfrags_dyn(vLq[0], QA)
        lab("L_att0")
        def vstep(first):
            self.early_head(4, lambda: [vread(q) for q in range(NFA)])
            self.ks(4)
            prim = []
            for q in range(16):
                sg, mt = q // 8, q % 8
                z = 0 if (first and sg == 0) else None
                if q % 2 == 0 and q < 8:
                    prim.append(self.D1(q // 2, 0))
                if mt == 0:
                    for n in range(3):
                        prim.append(self.M(vLq[n], vOne, sa(sg, n, 0), z))
                if q % 2 == 0:
                    prim.append(("w", [f"  s_waitcnt lgkmcnt({2 * max(0, min(q + NFA, 16) - (q + 2))})"]))
                for n in range(3):
                    prim.append(self.M(vO + (mt * 3 + n) * 4, fa(q), sa(sg, n, 0), z))
                if q + NFA < 16:
                    prim.append(("r", self.cap(vread, q + NFA)))
                    lastr = len(prim)
                if q == 7:
                    half = len(prim)
            self.weave(prim[:half], sm_exp(1), per=opt.get('vper', 2))
            if opt.get("prio", 1) == 1:
                A("s_setprio 0")
            self.ks()
            if first:
                A("s_nop 1")
            else:
                A(f"s_cmp_eq_u32 {sr(sIter)}, 1")
                A("s_cbranch_scc1 L_attlast")
            fill = aprep(1) + [[f"s_xor_b32 {sr(sVs)}, {sr(sVs)}, {sr(sXb)}"]]
            fill.append((lastr - half, [f"v_add_u32 {vr(vT)}, {sr(sKs)}, {vr(vKa)}"]))
            for s in range(1, 4):
                fill.append([f"v_xor_b32 {vr(vT+s)}, {s*64}, {vr(vT)}"])
            self.weave(prim[half:], fill, per=1)
            self.stamp(13)
            return prim[half:]

        kstep(True)
        vstep(True)
        lab("L_attA")
        A(f"s_sub_u32 {sr(sIter)}, {sr(sIter)}, 1")
        kstep(False)
        tail = vstep(False)
        A("s_branch L_attA")
        lab("L_attlast")
        self.weave(tail, aprep(1), per=1)
        self.is_loader("L_attdone")
        self.head(None)
        for k in range(4):
            self.L += self.D1(k, 1)[1]
        if self.pf_a:
            A(f"s_cmp_eq_u32 {sr(sOrd)}, 1")
            A("s_cbranch_scc0 L_nopfa")
            self.weight_prefetch(self.pf_a, half=True, dst=QA[0])
            lab("L_nopfa")
        A(f"v_mov_b32 {vr(vNm[1]+1)}, {vr(vNm[0])}")
        self.frag_addrs()
        A("s_branch L_attdone2")
        lab("L_attdone")
        A(f"v_mov_b32 {vr(vNm[1]+1)}, {vr(vNm[0])}")
        lab("L_attdone2")
        nmr = [vNm[1] + 1, vNm[1], vNm[2]]
        A("s_setprio 0")
        A(f"s_cmp_eq_u32 {sr(sOrd)}, 1")
        A(f"s_cselect_b32 {sr(sIdx)}, {IDX_AFTER_ATT[0]}, {IDX_AFTER_ATT[1]}")
        A(f"v_readlane_b32 {sr(sE)}, {vr(vTab)}, {sr(sIdx)}")
        self.stamp(8)
        c("merge the two key halves of each head")
        self.srd(SRD_K, sBk, 67108864)
        self.srd(SRD_V, sBv, 67108864)
        self.lane(vT + 3)
        A(f"v_and_b32 {vr(vT)}, 15, {vr(vT+3)}")
        A(f"v_lshlrev_b32 {vr(vT)}, 3, {vr(vT)}")
        A(f"s_mul_i32 {sr(sT0)}, {sr(sW)}, 384")
        A(f"s_add_u32 {sr(sT0)}, {sr(sT0)}, {ST}")
        A(f"v_add_u32 {vr(vT+1)}, {sr(sT0)}, {vr(vT)}")
        A(f"s_xor_b32 {sr(sT1)}, {sr(sW)}, 1")
        A(f"s_mul_i32 {sr(sT0)}, {sr(sT1)}, 384")
        A(f"s_add_u32 {sr(sT0)}, {sr(sT0)}, {ST}")
        A(f"v_add_u32 {vr(vT+2)}, {sr(sT0)}, {vr(vT)}")
        for n in range(3):
            A(f"v_mov_b32 {vr(vLq[n]+1)}, {vr(nmr[n])}")
            A(f"ds_write_b64 {vr(vT+1)}, {vr(vLq[n],2)} offset:{n*128}")
        self.head(None)
        for n in range(3):
            A(f"ds_read_b64 {vr(vAfA+8+2*n,2)}, {vr(vT+2)} offset:{n*128}")
        A(f"s_mul_i32 {sr(sT0)}, {sr(sW)}, 6144")
        A(f"s_add_u32 {sr(sT0)}, {sr(sT0)}, {XB}")
        A(f"s_mul_i32 {sr(sT1)}, {sr(sT1)}, 6144")
        A(f"s_add_u32 {sr(sT1)}, {sr(sT1)}, {XB}")
        A(f"v_lshlrev_b32 {vr(vT)}, 4, {vr(vT+3)}")
        A(f"v_add_u32 {vr(vT+1)}, {sr(sT0)}, {vr(vT)}")
        A(f"v_add_u32 {vr(vT+2)}, {sr(sT1)}, {vr(vT)}")
        A("s_waitcnt lgkmcnt(0)")
        fr = [vAfA + 2 * n for n in range(3)]
        for n in range(3):
            lo, mo = vAfA + 8 + 2 * n, vAfA + 9 + 2 * n
            m, f, fo = vAfA + 16 + n, fr[n], fr[n] + 1
            A(f"v_min_f32 {vr(m)}, {vr(nmr[n])}, {vr(mo)}")
            A(f"v_sub_f32 {vr(f)}, {vr(m)}, {vr(nmr[n])}")
            A(f"v_sub_f32 {vr(fo)}, {vr(m)}, {vr(mo)}")
            A(f"v_exp_f32 {vr(f)}, {vr(f)}")
            A(f"v_exp_f32 {vr(fo)}, {vr(fo)}")
            A("s_nop 0")
            A(f"v_mul_f32 {vr(m)}, {vr(f)}, {vr(vLq[n])}")
            A(f"v_fma_f32 {vr(m)}, {vr(fo)}, {vr(lo)}, {vr(m)}")
            A(f"v_rcp_f32 {vr(m)}, {vr(m)}")
            A("s_nop 0")
            A(f"v_mul_f32 {vr(f)}, {vr(f)}, {vr(m)}")
        c("slots 4-7 go to the partner wave, scaled and packed to bf16")
        for k in range(24):
            o = vO + 48 + 2 * k
            A(self.pkmul(o, fr[(k // 2) % 3]))
        for k in range(24):
            o = vO + 48 + 2 * k
            A(f"v_cvt_pk_bf16_f32 {vr(vS+k)}, {vr(o)}, {vr(o+1)}")
            if k % 4 == 3:
                A(f"ds_write_b128 {vr(vT+1)}, {vr(vS+k-3,4)} offset:{(k//4)*1024}")
        A(f"s_and_b32 {sr(sT0)}, {sr(sW)}, 1")
        A(f"s_lshl_b32 {sr(sT0)}, {sr(sT0)}, 3")
        A(f"s_mov_b32 {sr(sT2)}, 0xffff0000")
        self.head(None)
        for k in range(6):
            A(f"ds_read_b128 {vr(vS+24+4*k,4)}, {vr(vT+2)} offset:{k*1024}")
        self.act_write_addr(sBlk, sT0)
        self.head(0)
        for jj in range(4):
            if jj:
                A(f"v_xor_b32 {vr(vT+3)}, {jj*32}, {vr(vT+1)}")
            for n in range(3):
                k = (jj * 3 + n) * 2
                for h in range(2):
                    x = vS + 2 * h
                    A(f"v_lshlrev_b32 {vr(x)}, 16, {vr(vS+24+k+h)}")
                    A(f"v_and_b32 {vr(x+1)}, {sr(sT2)}, {vr(vS+24+k+h)}")
                    A(f"v_pk_fma_f32 {vr(x,2)}, {vr(vO+2*(k+h),2)}, {vr(fr[n],2)}, {vr(x,2)} op_sel_hi:[1,0,1]")
                    A(f"v_cvt_pk_bf16_f32 {vr(vS+4+(k+h)%8)}, {vr(x)}, {vr(x+1)}")
                A(f"ds_write_b64 {vr(vT+3 if jj else vT+1)}, {vr(vS+4+k%8,2)} offset:{n*XN}")
        A(f"s_mov_b32 {sr(sZero)}, 1")
        c("the loaders stream the B-branch x into the blocks the projection has finished with")
        self.srd(SRD_AUX, sBx, 786432)
        self.is_loader("L_xs")
        A("s_branch L_xs2")
        lab("L_xs")
        self.x_setup(vY)
        lab("L_xs2")
        A(f"s_and_b32 {sr(sHook)}, {sr(sOrd)}, 1")
        A(f"s_mov_b32 {sr(sLate)}, {sr(sOrd)}")
        self.stamp(9)
        A(f"s_mov_b32 {sr(sBlk)}, 0")
        A(f"s_call_b64 {sr(LINK_S,2)}, L_wide")
        A(f"s_lshl_b32 {sr(sT0)}, {sr(sB)}, 3")
        A(f"s_add_u32 {sr(sT0)}, {sr(sT0)}, {sr(sG)}")
        A(f"s_mul_i32 {sr(sT0)}, {sr(sT0)}, {PART}")
        A(f"s_add_u32 {sr(sT0)}, {sr(sT0)}, {PART_A_BASE}")
        A(f"s_cmp_eq_u32 {sr(sOrd)}, 2")
        A("s_cbranch_scc1 L_last")
        self.is_loader("L_apk")
        A("s_barrier")
        self.pack_y(False, True)
        lab("L_apk")
        self.srd(SRD_WO, sBwo, 4194304)
        A(f"s_mov_b32 {sr(sZero)}, 1")
        self.stamp(10)
        A(f"s_mov_b32 {sr(sHook)}, 0")
        A("s_branch L_q0")
        lab("L_bpath")
        A(f"s_mov_b32 {sr(sBlk)}, {4*BLK}")

        lab("L_head")
        c("scores of one B head")
        if opt.get("thr"):
            A(f"s_lshl_b32 {sr(sT0)}, {sr(sHead)}, 2")
            A(f"s_add_u32 {sr(sT0)}, {sr(sT0)}, 0")
            A(f"s_lshr_b32 {sr(sThrot)}, {opt.get('thm', 0)}, {sr(sT0)}")
            A(f"s_andn2_b32 {sr(sThrot)}, {sr(sThrot)}, {sr(sRole)}")
            A(f"s_and_b32 {sr(sThrot)}, {sr(sThrot)}, 1")
        A(f"v_add_u32 {vr(vT)}, {sr(sC)}, {vr(vKb)}")
        for s in range(1, 4):
            A(f"v_xor_b32 {vr(vT+s)}, {s*64}, {vr(vT)}")
        rf = [vQs + 12, vQs + 14, vQs + 16]
        sm = [vQs + 18, vQs + 20, vQs + 22]

        def st(t, n):
            return vS + (t * 3 + n) * 4

        def b_sub(t):
            return [[f"v_pk_add_f32 {vr(st(t,n)+r,2)}, {vr(st(t,n)+r,2)}, {vr(rf[n],2)} op_sel_hi:[1,0] neg_lo:[0,1] neg_hi:[0,1]"]
                    for n in range(3) for r in (0, 2)]

        def b_check(t):
            f = [[x] for x in self.maxn(vT + 5, [st(t, 0) + r for r in range(12)])]
            return f + [[f"v_cmp_lt_f32 vcc, {sr(sThr)}, {vr(vT+5)}", f"s_cbranch_vccnz L_rb{t}", f"L_nb{t}:"]]

        def b_exp(t):
            f = [[f"v_exp_f32 {vr(st(t,0)+r)}, {vr(st(t,0)+r)}"] for r in range(12)]
            for n in range(3):
                b = st(t, n)
                if t == 0:
                    f.append([f"v_pk_add_f32 {vr(sm[n],2)}, {vr(b,2)}, {vr(b+2,2)}"])
                else:
                    f.append([f"v_pk_add_f32 {vr(sm[n],2)}, {vr(sm[n],2)}, {vr(b,2)}"])
                    f.append([f"v_pk_add_f32 {vr(sm[n],2)}, {vr(sm[n],2)}, {vr(b+2,2)}"])
                f.append([f"v_cvt_pk_bf16_f32 {vr(b)}, {vr(b)}, {vr(b+1)}"])
                f.append([f"v_cvt_pk_bf16_f32 {vr(b+1)}, {vr(b+2)}, {vr(b+3)}"])
            return f

        def p_write(t):
            return [f"ds_write_b64 {vr(vPW)}, {vr(st(t,n),2)} offset:{n*XN+t*BLK}" for n in range(3)]

        def p_early(t):
            l = self.new("pe")
            return [(99, [f"s_cmp_eq_u32 {sr(sXlive)}, 1", f"s_cbranch_scc1 {l}"] + p_write(t) + [l + ":"])]

        def sums_write():
            for n in range(3):
                A(f"v_add_f32 {vr(vT+n)}, {vr(sm[n])}, {vr(sm[n]+1)}")
            self.reduce4(vT, "v_add_f32")
            A(f"ds_write_b32 {vr(vSTw)}, {vr(vT)} offset:1536")

        def b_max0():
            f = []
            for n in range(3):
                f += [[x] for x in self.maxn(sm[0] + n, [st(0, n) + r for r in range(4)])]
            f.append([x.strip() for x in self.cap(self.reduce4, sm[0], "v_max_f32")])
            f.append([f"ds_write_b32 {vr(vSTw)}, {vr(sm[0])}"])
            return f

        def b_ref0():
            f = [[f"v_max_f32 {vr(rf[n])}, {vr(rf[n])}, {vr(rf[n]+1)}" for n in range(3)]]
            for sw in ("v_permlane32_swap_b32", "v_permlane16_swap_b32"):
                f.append([f"v_mov_b32 {vr(rf[n]+1)}, {vr(rf[n])}" for n in range(3)] + ["s_nop 1"] +
                         [f"{sw} {vr(rf[n])}, {vr(rf[n]+1)}" for n in range(3)] + ["s_nop 1"] +
                         [f"v_max_f32 {vr(rf[n])}, {vr(rf[n])}, {vr(rf[n]+1)}" for n in range(3)])
            return f

        for T in range(4):
            p = T % 2
            self.head(8)
            if T == 1:
                for n in range(3):
                    A(f"ds_read_b64 {vr(rf[n],2)}, {vr(vT+5)} offset:{n*512}")
            if T == 3:
                l = self.new("pw")
                self.is_loader(l)
                A("s_waitcnt vmcnt(0)")
                lab(l)
            if T == 0:
                self.load_bfrags_dyn(vKf, QF)
            for s in range(4):
                A(f"ds_read_b128 {vr(vKf+4*s,4)}, {vr(vT+s)}")
            nxt = self.prep(1 - p)
            if T < 3:
                nxt.append([f"v_add_u32 {vr(vT+4)}, {sr(sC)}, {vr(vKb)}"])
                nxt += [[f"v_xor_b32 {vr(vT+s)}, {s*64}, {vr(vT+4)}"] for s in range(4)]
            self.weave([], nxt)
            if T == 0:
                A(f"v_mov_b32 {vr(vT+5)}, {FLAG}")
                A(f"v_mov_b32 {vr(vT+6)}, 0")
            prim = []
            for s in range(4):
                prim.append(("w", [f"  s_waitcnt lgkmcnt({3-s})"]))
                for n in range(3):
                    prim.append(self.M(st(T, n), vKf + 4 * s, QF[n * 4 + s], 0 if s == 0 else None))
                prim.append(self.D(s, p, True if T < 2 else None, True))
            fill = []
            if T == 1:
                fill = b_ref0() + b_sub(0) + b_exp(0) + p_early(0)
            if T >= 2:
                fill = b_sub(T - 1) + b_check(T - 1) + b_exp(T - 1) + p_early(T - 1)
            self.weave(prim, fill, per=3)
            if T == 0:
                A(f"ds_write_b32 {vr(vT+5)}, {vr(vT+6)}")
                self.lane(vT + 5)
                A(f"v_lshrrev_b32 {vr(vT+5)}, 4, {vr(vT+5)}")
                A(f"v_lshl_add_u32 {vr(vT+5)}, {vr(vT+5)}, 3, {vr(vSTr)}")
                A("s_nop 2")
                self.weave([], b_max0())
        self.stamp(2)
        c("last score tile; a wave that had to raise its reference left a flag")
        A(f"v_mov_b32 {vr(vT+4)}, {FLAG}")
        A("s_nop 6")
        self.weave([], b_sub(3) + b_check(3) + b_exp(3))
        self.bsm = (rf, sm, st, p_write, sums_write)
        A(f"s_mov_b32 {sr(sHook)}, 0")
        A(f"s_mov_b32 {sr(sBlkEnd)}, 0")
        A(f"s_mov_b32 {sr(sFix)}, 0")
        A(f"s_cmp_eq_u32 {sr(sXlive)}, 1")
        A("s_cbranch_scc1 L_first")
        self.emit(p_write(3))
        sums_write()
        A(f"s_mov_b32 {sr(sLate)}, 0")
        self.head(8)
        self.stamp(3)
        A(f"s_bitcmp1_b32 {sr(sW)}, 2")
        A("s_cbranch_scc0 L_pv_body")
        A(f"ds_read_b32 {vr(vT+5)}, {vr(vT+4)}")
        A("s_waitcnt lgkmcnt(0)")
        A(f"v_cmp_ne_u32 vcc, 0, {vr(vT+5)}")
        A("s_cbranch_vccz L_ld_ok")
        A(f"s_call_b64 {sr(LINK_S,2)}, L_bfix")
        lab("L_ld_ok")
        for k in range(4):
            self.dma(k, 0, True, False)
        A(f"s_mov_b32 {sr(sT4)}, 0")
        A(f"s_call_b64 {sr(LINK_S,2)}, L_load2")
        A("s_branch L_pv_done")
        lab("L_first")
        c("B role, first head: remaining Q projections while x is still live")
        self.head(None)
        A(f"ds_read_b32 {vr(vT+5)}, {vr(vT+4)}")
        A("s_waitcnt lgkmcnt(0)")
        A(f"v_cmp_ne_u32 vcc, 0, {vr(vT+5)}")
        A("s_cbranch_vccz L_f_ok")
        A(f"s_call_b64 {sr(LINK_S,2)}, L_bfix")
        lab("L_f_ok")
        sums_write()
        for k in range(4):
            self.dma(k, 0, False)
        for k in range(2):
            A(f"s_mov_b32 {sr(sLate)}, {k}")
            A(f"s_call_b64 {sr(LINK_S,2)}, L_qproj")
            l = self.new("q")
            self.is_loader(l)
            for r in range(0, 12, 2):
                A(f"v_mov_b64 {vr(vQs+12*k+r,2)}, {vr(vAcc+r,2)}")
            if k:
                A("s_barrier")
            lab(l)
        self.stamp(12)
        for t in range(4):
            self.emit(p_write(t))
        A(f"s_mov_b32 {sr(sFix)}, 1")
        A(f"s_mov_b32 {sr(sXlive)}, 0")
        A(f"v_mov_b32 {vr(vT+4)}, {FLAG}")
        mreg = [vS, vS + 8, vS + 16]
        c("P x V")
        A(f"s_mov_b32 {sr(sLate)}, 0")
        self.is_loader("L_pv_ld")
        pre1 = []
        for n in range(3):
            pre1.append(f"ds_read_b128 {vr(vS+8*n,4)}, {vr(vSTr)} offset:{n*512+1536}")
            pre1.append(f"ds_read_b128 {vr(vS+8*n+4,4)}, {vr(vSTr)} offset:{n*512+1536+16}")
        ex1 = []
        for n in range(3):
            b = vS + 8 * n
            ex1 += [[f"v_pk_add_f32 {vr(b,2)}, {vr(b,2)}, {vr(b+2,2)}"], [f"v_pk_add_f32 {vr(b+4,2)}, {vr(b+4,2)}, {vr(b+6,2)}"],
                    [f"v_pk_add_f32 {vr(b,2)}, {vr(b,2)}, {vr(b+4,2)}"], [f"v_add_f32 {vr(b)}, {vr(b)}, {vr(b+1)}"],
                    [f"v_rcp_f32 {vr(b)}, {vr(b)}"]]
        pre1 += [f"s_cmp_eq_u32 {sr(sXlive)}, 2", "s_cbranch_scc0 L_noqm", f"s_mov_b32 {sr(sXlive)}, 0"]
        pre1 += [f"v_mov_b64 {vr(vQs+12+r,2)}, {vr(vY+4+r,2)}" for r in range(0, 12, 2)] + ["L_noqm:"]
        pre2 = [x.strip() for x in self.cap(q_write, vQs, 0)]
        ex2 = [[f"v_mov_b64 {vr(vQs+r,2)}, {vr(vQs+12+r,2)}"] for r in range(0, 12, 2)]
        chk = [f"  v_cmp_ne_u32 vcc, 0, {vr(vT+5)}", f"  s_cbranch_vccnz L_pv_fix", "L_pv_go:"]
        self.cold += ["L_pv_fix:", f"  s_cmp_eq_u32 {sr(sFix)}, 0", "  s_cbranch_scc0 L_pv_go",
                      f"  s_call_b64 {sr(LINK_S,2)}, L_bfix", "  s_branch L_pv_body"]
        self.narrow(pre={0: [f"ds_read_b32 {vr(vT+5)}, {vr(vT+4)}"], 1: pre1, 2: pre2},
                    extra={1: ex1, 2: ex2}, early=True, body="L_pv_body", check=chk)
        A("s_nop 7")
        for k in range(6):
            a = vAcc + 4 * k
            A(self.pkmul(a, mreg[k % 3]))
            A(self.pkmul(a + 2, mreg[k % 3]))
            A(f"v_cvt_pk_bf16_f32 {vr(vAcc+2*k)}, {vr(a)}, {vr(a+1)}")
            A(f"v_cvt_pk_bf16_f32 {vr(vAcc+2*k+1)}, {vr(a+2)}, {vr(a+3)}")
        q_write(vAcc, 4)
        A("s_branch L_pv_done")
        lab("L_pv_ld")
        A(f"s_call_b64 {sr(LINK_S,2)}, L_load")
        lab("L_pv_done")
        self.stamp(4)
        if opt.get("thr"):
            A(f"s_lshl_b32 {sr(sT0)}, {sr(sHead)}, 2")
            A(f"s_add_u32 {sr(sT0)}, {sr(sT0)}, 2")
            A(f"s_lshr_b32 {sr(sThrot)}, {opt.get('thm', 0)}, {sr(sT0)}")
            A(f"s_andn2_b32 {sr(sThrot)}, {sr(sThrot)}, {sr(sRole)}")
            A(f"s_and_b32 {sr(sThrot)}, {sr(sThrot)}, 1")
        c("output projection")
        A(f"s_sub_u32 {sr(sHead)}, {sr(sHead)}, 1")
        A(f"s_mov_b32 {sr(sLate)}, 2")
        A(f"s_cmp_eq_u32 {sr(sOrd)}, 2")
        A("s_cbranch_scc0 L_ob")
        A(f"s_mov_b32 {sr(sLate)}, 1")
        A(f"s_mov_b32 {sr(sHook)}, 2")
        self.srd(SRD_K, sAk, 16777216)
        self.srd(SRD_V, sAv, 16777216)
        self.srd(SRD_AUX, sAx, 786432)
        lab("L_ob")
        A(f"s_mov_b32 {sr(sBlk)}, 16")
        A(f"s_call_b64 {sr(LINK_S,2)}, L_wide")
        self.stamp(5)
        A(f"s_mov_b32 {sr(sBlk)}, 0")
        A(f"s_cmp_eq_u32 {sr(sHead)}, 0")
        A("s_cbranch_scc1 L_bdone")
        self.is_loader("L_head")
        self.wide_drain()
        A("s_branch L_head")
        lab("L_bdone")
        c("store the B-branch partial")
        A(f"s_lshl_b32 {sr(sT0)}, {sr(sB)}, 4")
        A(f"s_lshl_b32 {sr(sT1)}, {sr(sRole)}, 3")
        A(f"s_add_u32 {sr(sT0)}, {sr(sT0)}, {sr(sT1)}")
        A(f"s_add_u32 {sr(sT0)}, {sr(sT0)}, {sr(sG)}")
        A(f"s_mul_i32 {sr(sT0)}, {sr(sT0)}, {PART}")
        A(f"s_cmp_eq_u32 {sr(sOrd)}, 2")
        A("s_cbranch_scc0 L_last")
        self.is_loader("L_bpk2")
        A("s_barrier")
        self.pack_y(False, True)
        lab("L_bpk2")
        self.srd(SRD_WO, sAwo, 4194304)
        A(f"s_mov_b32 {sr(sZero)}, 1")
        self.stamp(6)
        A("s_branch L_apath")
        lab("L_last")
        self.is_loader("L_bpk")
        self.pack_y(False, True)
        self.stamp(6)
        if self.fuse:
            self.publish()
        A("s_branch L_fin")
        lab("L_bpk")
        if self.fuse:
            c("waves 4-6 sum one 1 KiB block each of this workgroup's slice of the output")
            A(f"s_cmp_eq_u32 {sr(sW)}, 7")
            A("s_cbranch_scc1 L_fin")
            self.stamp(8)
            self.reduce_setup()
            A(f"s_lshl_b32 {sr(rKb)}, {sr(sRole)}, 3")
            A(f"s_add_u32 {sr(rKb)}, {sr(rKb)}, {sr(sG)}")
            A(f"s_mul_i32 {sr(rKb)}, {sr(rKb)}, 3")
            A(f"s_add_u32 {sr(rKb)}, {sr(rKb)}, {sr(sW)}")
            A(f"s_sub_u32 {sr(rKb)}, {sr(rKb)}, 4")
            A(f"s_cmp_eq_u32 {sr(sW)}, 4")
            A(f"s_cselect_b32 {sr(rMode)}, 0, 1")
            A(f"s_call_b64 {sr(LINK_S,2)}, L_reduce")
        lab("L_fin")
        if opt.get("dbg"):
            A("s_waitcnt vmcnt(0)")
            A("s_memrealtime s[76:77]")
            A("s_memtime s[68:69]")
            A("s_waitcnt lgkmcnt(0)")
            A("s_sub_u32 s68, s68, s78")
            A("v_mov_b32 v16, v23")
            A("v_mov_b32 v17, s76")
            A("v_mov_b32 v18, s68")
            A("s_getreg_b32 s69, hwreg(HW_REG_XCC_ID)")
            A("v_mov_b32 v19, s69")
            A("s_lshl_b32 s70, s2, 4")
            A("s_add_u32 s70, s70, 0x4000000")
            A("v_mov_b32 v21, s70")
            A(f"s_cmp_eq_u32 s3, {4 if self.fuse else 0}")
            A("s_cbranch_scc0 L_end")
            A("s_mov_b64 exec, 1")
            A("global_store_dwordx4 v21, v[16:19], s[54:55]")
        if opt.get("stamps"):
            A("s_waitcnt vmcnt(0)")
            self.stamp(11)
            self.srd(SRD_AUX, sWs, 268435456)
            A(f"s_lshl_b32 {sr(sT0)}, s2, 3")
            A(f"s_add_u32 {sr(sT0)}, {sr(sT0)}, {sr(sW)}")
            A(f"s_lshl_b32 {sr(sT0)}, {sr(sT0)}, 8")
            A(f"s_add_u32 {sr(sT0)}, {sr(sT0)}, {64*1024*1024}")
            self.lane(vT)
            A(f"v_lshlrev_b32 {vr(vT)}, 2, {vr(vT)}")
            A(f"buffer_store_dword {vr(23)}, {vr(vT)}, {sr(SRD_AUX,4)}, {sr(sT0)} offen")
        lab("L_end")
        A("s_endpgm")

        sc = vLq[0] + 1

        def sub_delta(sg):
            for n in range(3):
                for r in range(8):
                    b = sa(sg, n, 0) + r
                    A(f"v_sub_f32 {vr(b)}, {vr(b)}, {vr(vDl+n)}")

        def allmax(sg):
            for n in range(3):
                self.emit(self.maxn(vDl + n, [sa(sg, n, 0) + r for r in range(8)]))
                for sw in ("v_permlane32_swap_b32", "v_permlane16_swap_b32"):
                    A(f"v_mov_b32 {vr(sc)}, {vr(vDl+n)}")
                    A("s_nop 1")
                    A(f"{sw} {vr(vDl+n)}, {vr(sc)}")
                    A("s_nop 1")
                    A(f"v_max_f32 {vr(vDl+n)}, {vr(vDl+n)}, {vr(sc)}")

        def scale_state(with_p0):
            for n in range(3):
                A(f"v_max_f32 {vr(vDl+n)}, 0, {vr(vDl+n)}")
                A(f"v_exp_f32 {vr(sc)}, -{vr(vDl+n)}")
                A("s_nop 0")
                A(f"v_mul_f32 {vr(vLq[n])}, {vr(vLq[n])}, {vr(sc)}")
                for mt in range(8):
                    for r in range(4):
                        o = vO + (mt * 3 + n) * 4 + r
                        A(f"v_mul_f32 {vr(o)}, {vr(o)}, {vr(sc)}")
                if with_p0:
                    b = sa(0, n, 0)
                    for r in range(4):
                        A(f"v_lshlrev_b32 {vr(b+4)}, 16, {vr(b+r)}")
                        A(f"v_and_b32 {vr(b+5)}, 0xffff0000, {vr(b+r)}")
                        A(f"v_mul_f32 {vr(b+4)}, {vr(b+4)}, {vr(sc)}")
                        A(f"v_mul_f32 {vr(b+5)}, {vr(b+5)}, {vr(sc)}")
                        A(f"v_cvt_pk_bf16_f32 {vr(b+r)}, {vr(b+4)}, {vr(b+5)}")

        lab("L_r0first")
        allmax(0)
        sub_delta(0)
        A(f"s_mov_b32 {sr(sFix)}, 1")
        A("s_branch L_n0f")
        lab("L_r0")
        allmax(0)
        scale_state(False)
        sub_delta(0)
        A(f"s_mov_b32 {sr(sFix)}, 1")
        A("s_branch L_n0l")
        for u in "fl":
            lab(f"L_r0b{u}")
            A(f"s_call_b64 {sr(LINK_S,2)}, L_fix1")
            A(f"s_branch L_n0b{u}")
            lab(f"L_r1{u}")
            A(f"s_call_b64 {sr(LINK_S,2)}, L_scale1")
            A(f"s_branch L_n1{u}")
        lab("L_scale1")
        allmax(1)
        scale_state(True)
        lab("L_fix1")
        sub_delta(1)
        for n in range(3):
            for r in range(4):
                A(f"v_sub_f32 {vr(vNm[n]+r)}, {vr(vNm[n]+r)}, {vr(vDl+n)}")
        A(f"s_mov_b32 {sr(sFix)}, 0")
        A(f"s_setpc_b64 {sr(LINK_S,2)}")

        self.L += self.cold
        rf, sm, st, p_write, sums_write = self.bsm

        def repack(regs, f, lo, hi):
            for r in regs:
                A(f"v_lshlrev_b32 {vr(lo)}, 16, {vr(r)}")
                A(f"v_and_b32 {vr(hi)}, 0xffff0000, {vr(r)}")
                A(f"v_mul_f32 {vr(lo)}, {vr(lo)}, {vr(f)}")
                A(f"v_mul_f32 {vr(hi)}, {vr(hi)}, {vr(f)}")
                A(f"v_cvt_pk_bf16_f32 {vr(r)}, {vr(lo)}, {vr(hi)}")

        for t in range(1, 4):
            lab(f"L_rb{t}")
            d, f = vT + 5, vT + 6
            for n in range(3):
                self.emit(self.maxn(d, [st(t, n) + r for r in range(4)]))
                for sw in ("v_permlane32_swap_b32", "v_permlane16_swap_b32"):
                    A(f"v_mov_b32 {vr(f)}, {vr(d)}")
                    A("s_nop 1")
                    A(f"{sw} {vr(d)}, {vr(f)}")
                    A("s_nop 1")
                    A(f"v_max_f32 {vr(d)}, {vr(d)}, {vr(f)}")
                A(f"v_max_f32 {vr(d)}, 0, {vr(d)}")
                A(f"v_exp_f32 {vr(f)}, -{vr(d)}")
                A(f"v_add_f32 {vr(rf[n])}, {vr(rf[n])}, {vr(d)}")
                for r in range(4):
                    A(f"v_sub_f32 {vr(st(t,n)+r)}, {vr(st(t,n)+r)}, {vr(d)}")
                for r in (sm[n], sm[n] + 1):
                    A(f"v_mul_f32 {vr(r)}, {vr(r)}, {vr(f)}")
                repack([st(u, n) + k for u in range(t) for k in range(2)], f, st(0, n) + 2, st(0, n) + 3)
            A(f"s_lshl_b32 {sr(sT0)}, {sr(sW)}, 2")
            A(f"v_add_u32 {vr(d)}, {sr(sT0)}, {vr(vSTr)}")
            for n in range(3):
                A(f"ds_write_b32 {vr(d)}, {vr(rf[n])} offset:{n*512}")
            A(f"v_mov_b32 {vr(d)}, {FLAG}")
            A(f"v_mov_b32 {vr(f)}, 1")
            A(f"ds_write_b32 {vr(d)}, {vr(f)}")
            A(f"s_branch L_nb{t}")
        lab("L_bfix")
        A("s_waitcnt lgkmcnt(0)")
        for n in range(3):
            A(f"ds_read_b128 {vr(vFr,4)}, {vr(vSTr)} offset:{n*512}")
            A(f"ds_read_b128 {vr(vFr+4,4)}, {vr(vSTr)} offset:{n*512+16}")
            A("s_waitcnt lgkmcnt(0)")
            self.emit(self.maxn(rf[n] + 1, [rf[n]] + [vFr + r for r in range(8)]))
            A(f"v_sub_f32 {vr(rf[n])}, {vr(rf[n])}, {vr(rf[n]+1)}")
            A(f"v_exp_f32 {vr(rf[n])}, {vr(rf[n])}")
            A("s_nop 0")
            A(self.pkmul(sm[n], rf[n]))
            repack([st(u, n) + k for u in range(4) for k in range(2)], rf[n], st(0, n) + 2, st(0, n) + 3)
        A(f"s_mov_b32 {sr(sFix)}, 1")
        A(f"s_cmp_eq_u32 {sr(sXlive)}, 1")
        A("s_cbranch_scc1 L_bfix_ret")
        A("s_barrier")
        for t in range(4):
            self.emit(p_write(t))
        sums_write()
        self.head(None)
        lab("L_bfix_ret")
        A(f"s_setpc_b64 {sr(LINK_S,2)}")

        if self.fuse:
            self.reduce_sub()
        lab("L_qproj")
        A(f"s_mov_b32 {sr(sBlkEnd)}, 0")
        self.is_loader("L_load")
        self.narrow()
        A(f"v_mov_b32 {vr(vT)}, {sr(sScale)}")
        A("s_nop 6")
        for k in range(6):
            a = vAcc + 4 * k
            A(self.pkmul(a, vT))
            A(self.pkmul(a + 2, vT))
            A(f"v_cvt_pk_bf16_f32 {vr(vAcc+2*k)}, {vr(a)}, {vr(a+1)}")
            A(f"v_cvt_pk_bf16_f32 {vr(vAcc+2*k+1)}, {vr(a+2)}, {vr(a+3)}")
        A(f"s_setpc_b64 {sr(LINK_S,2)}")

        def af(j, p):
            return vFr + 4 * (j + 2 * p if j >= 6 else j)

        def wb(n, p):
            return vAcc + (p * 3 + n) * 4

        def wide_rd(j, p):
            a = vT + 1 + (j % 2)
            A(f"v_xor_b32 {vr(a)}, {j*32}, {vr(vT+3+3*p)}")
            self.tr_pair(af(j, p), a, 0)

        def wide_addr(t):
            return [[f"s_add_u32 {sr(sT0)}, {sr(sC)}, {sr(sT1)}"],
                    [f"v_add_u32 {vr(vT+3+3*(t%2))}, {sr(sT0)}, {vr(vTR0)}"],
                    [f"s_and_b32 {sr(sT3)}, {sr(sBlk)}, 3"], [f"s_lshl_b32 {sr(sT3)}, {sr(sT3)}, 6"],
                    [f"s_lshr_b32 {sr(sT5)}, {sr(sBlk)}, 2"], [f"s_mul_i32 {sr(sT5)}, {sr(sT5)}, {BLK}"],
                    [f"v_xor_b32 {vr(vT+5)}, {sr(sT3)}, {vr(vXB)}"], [f"v_add_u32 {vr(vT+5)}, {sr(sT5)}, {vr(vT+5)}"]]

        def wide_step(t, pending, reads=True, zero=False):
            p = t % 2
            if reads:
                self.head(None)
            else:
                A("s_waitcnt lgkmcnt(0)")
            prim = []
            for j in range(8):
                if pending and not opt.get("nomfma"):
                    for n in range(3):
                        prim.append(self.M(vY + (j * 3 + n) * 4, af(j, 1 - p), wb(n, 1 - p), 0 if zero else None))
                if reads and not opt.get("nords"):
                    if j == 0:
                        prim.append(("r", [f"  ds_read_b128 {vr(wb(n,p),4)}, {vr(vT+5)} offset:{n*XN}" for n in range(3)]))
                    if j < 6:
                        prim.append(("r", self.cap(wide_rd, j, p)))
                    if j < 2:
                        prim.append(("r", self.cap(wide_rd, 6 + j, p)))
            fill = []
            if reads:
                fill = self.rot()
                if t == 3:
                    fill.append([f"s_add_u32 {sr(sT4)}, {sr(sT4)}, {BLK}"])
                fill += [[f"s_add_u32 {sr(sBlk)}, {sr(sBlk)}, 1"], [f"s_and_b32 {sr(sBlk)}, {sr(sBlk)}, {sr(sT2)}"]]
                fill += wide_addr((t + 1) % 4)
            self.weave(prim, fill, per=1, start=5)

        lab("L_wide")
        self.is_loader("L_load")
        A(f"s_lshl_b32 {sr(sT1)}, {sr(sW)}, 13")
        A(f"s_mov_b32 {sr(sT4)}, 0")
        A(f"s_cmp_eq_u32 {sr(sBlkEnd)}, 0")
        A(f"s_cselect_b32 {sr(sT2)}, 31, 15")
        self.weave([], wide_addr(0))
        wide_step(0, False)
        A(f"s_cmp_eq_u32 {sr(sZero)}, 0")
        A("s_cbranch_scc1 L_wide_loop")
        A(f"s_mov_b32 {sr(sZero)}, 0")
        wide_step(1, True, zero=True)
        A("s_branch L_wide_s2")
        lab("L_wide_loop")
        wide_step(1, True)
        lab("L_wide_s2")
        wide_step(2, True)
        wide_step(3, True)
        A(f"s_cmp_gt_u32 {sr(sT4)}, {sr(sBlkEnd)}")
        A("s_cbranch_scc1 L_wide_drain")
        wide_step(0, True)
        A("s_branch L_wide_loop")
        lab("L_wide_drain")
        A("s_waitcnt lgkmcnt(0)")
        A(f"s_setpc_b64 {sr(LINK_S,2)}")

        def ld_step(p, vm, prep=True, xblk=None):
            self.head(vm)
            l1, l2 = self.new("kv"), self.new("dd")
            variants = [self.wf] if self.kvf == self.wf else [self.wf, self.kvf]
            if len(variants) > 1:
                A(f"s_bitcmp1_b32 6, {sr(sTy[p])}")
                A(f"s_cbranch_scc1 {l1}")
            for vi, fl in enumerate(variants):
                if vi:
                    A(f"s_branch {l2}")
                    lab(l1)
                prim = []
                for k in range(8):
                    ins = [f"  s_add_u32 m0, {sr(sI[p])}, {k*4096}"]
                    if k % 2:
                        ins.append(f"  s_add_u32 {sr(sOff2)}, {sr(sOff[p])}, {sr(sHalf[p])}")
                    elif k:
                        ins.append(f"  s_add_u32 {sr(sOff[p])}, {sr(sOff[p])}, {sr(sStr[p])}")
                    else:
                        ins.append("  s_nop 0")
                    ins.append(f"  buffer_load_dwordx4 {vr(vCur[p])}, {sr(SRD_CUR[p],4)}, {sr(sOff2 if k % 2 else sOff[p])} offen{fl} lds")
                    if vi and k % 2 == 0:
                        ins = self.cap(self.throttle) + ins
                    if vi and k == 6:
                        ins = self.ev() + ins
                    prim.append(("m", ins))
                self.weave(prim, self.prep(1 - p) if prep else [], per=2)
            lab(l2)
            if xblk is not None:
                l3 = self.new("hk")
                A(f"s_cmp_eq_u32 {sr(sHook)}, 1")
                A(f"s_cbranch_scc0 {l3}")
                self.x_block(vY, 0)
                A(f"s_add_u32 {sr(sT1)}, {sr(sT1)}, 256")
                A(f"s_add_u32 {sr(sT2)}, {sr(sT2)}, {BLK}")
                lab(l3)

        lab("L_load")
        A(f"s_mov_b32 {sr(sT4)}, 0")
        A(f"s_cmp_eq_u32 {sr(sIdx)}, 3")
        A("s_cbranch_scc0 L_load1")
        self.head(3)
        self.first_tile(1)
        self.x_rot(vY, 2)
        self.first_tile(2)
        self.x_rot(vY, 3)
        A("s_branch L_load2")
        lab("L_load1")
        self.head(16)
        lab("L_load2")
        self.weave([], self.prep(1))
        lab("L_ldloop")
        ld_step(1, 8)
        A(f"s_cmp_eq_u32 {sr(sHook)}, 2")
        A("s_cbranch_scc0 L_ldh2")
        self.x_setup(vY)
        self.x_rot(vY, 0, True)
        self.x_rot(vY, 1, True)
        lab("L_ldh2")
        ld_step(0, 8)
        A(f"s_cmp_eq_u32 {sr(sLate)}, 3")
        A("s_cbranch_scc0 L_ld3")
        A(f"s_cmp_eq_u32 {sr(sT4)}, {sr(sBlkEnd)}")
        A("s_cbranch_scc0 L_ld3")
        self.head(8)
        self.weave([], self.prep(0))
        A("s_barrier")
        for k in range(4):
            self.dma(k, 1, True, guard=False)
        A(f"s_setpc_b64 {sr(LINK_S,2)}")
        lab("L_ld3")
        ld_step(1, 8)
        A(f"s_add_u32 {sr(sT4)}, {sr(sT4)}, {BLK}")
        A(f"s_cmp_gt_u32 {sr(sT4)}, {sr(sBlkEnd)}")
        A("s_cbranch_scc1 L_lddrain")
        ld_step(0, 8, xblk=0)
        A("s_branch L_ldloop")
        lab("L_lddrain")
        A(f"s_cmp_eq_u32 {sr(sLate)}, 2")
        A("s_cbranch_scc1 L_ldret")
        ld_step(0, None, prep=False, xblk=3)
        A(f"s_cmp_eq_u32 {sr(sHook)}, 2")
        A("s_cbranch_scc0 L_ldret")
        self.x_rot(vY, 2, True)
        self.x_rot(vY, 3, True)
        lab("L_ldret")
        A(f"s_setpc_b64 {sr(LINK_S,2)}")

    def reduce_kernel(self):
        A, lab = self.A, self.lab
        K2 = "reduce_partials_kernel"
        self.L += [f".globl {K2}", ".p2align 8", f".type {K2},@function"]
        lab(K2)
        A("s_cmp_ge_u32 s2, 384")
        A("s_cbranch_scc1 L_r_end")
        A("s_load_dwordx2 s[4:5], s[0:1], 80")
        A("s_load_dwordx2 s[6:7], s[0:1], 96")
        if self.opt.get("dbg") == 2:
            A("s_cmp_eq_u32 s2, 0")
            A("s_cbranch_scc0 L_r_nod")
            A("s_load_dwordx2 s[26:27], s[0:1], 88")
            A("s_memrealtime s[28:29]")
            A("s_waitcnt lgkmcnt(0)")
            A("v_lshlrev_b32 v1, 4, v0")
            A("v_add_u32 v1, 0x4000000, v1")
            A("global_load_dwordx4 v[8:11], v1, s[6:7]")
            A("s_waitcnt vmcnt(0)")
            A("v_not_b32 v12, v8")
            A("v_sub_u32 v13, v9, v8")
            A("v_mov_b32 v14, 0")
            A("v_lshrrev_b32 v15, 7, v0")
            A("v_lshlrev_b32 v15, 3, v15")
            A("v_mov_b32 v7, s28")
            A("global_atomic_umax v14, v12, s[26:27]")
            A("global_atomic_umax v14, v9, s[26:27] offset:4")
            A("global_atomic_umax v15, v13, s[26:27] offset:8")
            A("global_atomic_umax v15, v10, s[26:27] offset:12")
            A("global_atomic_umax v14, v8, s[26:27] offset:24")
            A("global_atomic_umax v14, v7, s[26:27] offset:28")
            lab("L_r_nod")
        A("s_mul_i32 s3, s2, 43691")
        A("s_lshr_b32 s3, s3, 19")
        A("s_mul_i32 s16, s3, 12")
        A("s_sub_u32 s16, s2, s16")
        A("s_and_b32 s17, s3, 15")
        A("s_lshr_b32 s18, s3, 4")
        A("s_lshl_b32 s19, s16, 12")
        A("v_lshlrev_b32 v2, 4, v0")
        A("v_add_u32 v2, s19, v2")
        A("s_mul_i32 s23, s16, 86")
        A("s_lshr_b32 s23, s23, 8")
        A("s_mul_i32 s24, s23, 3")
        A("s_sub_u32 s24, s16, s24")
        A("s_lshl_b32 s24, s24, 15")
        A("s_lshl_b32 s23, s23, 8")
        A("s_add_u32 s24, s24, s23")
        A("v_and_b32 v6, 15, v0")
        A("v_lshlrev_b32 v6, 11, v6")
        A("v_lshrrev_b32 v7, 6, v0")
        A("v_lshl_add_u32 v6, v7, 6, v6")
        A("v_bfe_u32 v7, v0, 4, 1")
        A("v_lshl_add_u32 v6, v7, 5, v6")
        A("v_bfe_u32 v7, v0, 5, 1")
        A("v_lshl_add_u32 v6, v7, 4, v6")
        A("s_waitcnt lgkmcnt(0)")
        A("s_mov_b32 s8, s4"); A("s_mov_b32 s9, s5"); A("s_mov_b32 s10, 1572864"); A("s_mov_b32 s11, 0x20000")
        A("s_mov_b32 s12, s6"); A("s_mov_b32 s13, s7"); A("s_mov_b32 s14, 268435456"); A("s_mov_b32 s15, 0x20000")
        A("s_mul_i32 s20, s17, 98304")
        A("s_add_u32 s20, s20, s24")
        A("s_mov_b32 s22, 0xffff0000")
        A("s_cmp_eq_u32 s18, 1")
        A("s_cbranch_scc1 L_r_A")

        def body(np_):
            for p in range(np_):
                A(f"buffer_load_dwordx4 v[{16+4*p}:{19+4*p}], v2, s[12:15], s21 offen" + self.opt.get("rdflag", ""))
                if p + 1 < np_:
                    A(f"s_add_u32 s21, s21, {PART}")
            for p in range(np_):
                A(f"s_waitcnt vmcnt({np_-1-p})")
                for k in range(4):
                    r = 16 + 4 * p + k
                    if p == 0:
                        A(f"v_lshlrev_b32 v{8+2*k}, 16, v{r}")
                        A(f"v_and_b32 v{9+2*k}, s22, v{r}")
                    else:
                        A(f"v_lshlrev_b32 v4, 16, v{r}")
                        A(f"v_and_b32 v5, s22, v{r}")
                        A(f"v_pk_add_f32 v[{8+2*k}:{9+2*k}], v[{8+2*k}:{9+2*k}], v[4:5]")

        A(f"s_mul_i32 s21, s17, {16*PART}")
        A("s_add_u32 s20, s20, 1024")
        body(16)
        A("s_branch L_r_st")
        lab("L_r_A")
        A(f"s_mul_i32 s21, s17, {8*PART}")
        A(f"s_add_u32 s21, s21, {PART_A_BASE}")
        body(8)
        lab("L_r_st")
        for k in range(4):
            A(f"v_cvt_pk_bf16_f32 v{16+k}, v{8+2*k}, v{9+2*k}")
        A("buffer_store_dwordx4 v[16:19], v6, s[8:11], s20 offen" + self.opt.get("outflag", ""))
        if self.opt.get("dbg"):
            A("s_waitcnt vmcnt(0)")
            A("s_memrealtime s[28:29]")
            A("s_waitcnt lgkmcnt(0)")
            A("v_mov_b32 v16, s28")
            A("s_lshl_b32 s30, s2, 2")
            A("s_add_u32 s30, s30, 0x4100000")
            A("v_mov_b32 v17, s30")
            A("v_cmp_eq_u32 vcc, 0, v0")
            A("s_and_saveexec_b64 s[26:27], vcc")
            A("s_cbranch_execz L_r_end")
            A("global_store_dword v17, v16, s[6:7]")
        lab("L_r_end")
        A("s_endpgm")

    def desc(self, name, nv, ns):
        self.L += [".p2align 6", f".amdhsa_kernel {name}", f"  .amdhsa_next_free_vgpr {nv}",
                   f"  .amdhsa_next_free_sgpr {ns}", f"  .amdhsa_accum_offset {nv}",
                   "  .amdhsa_group_segment_fixed_size 0", "  .amdhsa_kernarg_size 104",
                   "  .amdhsa_user_sgpr_count 2", "  .amdhsa_user_sgpr_kernarg_segment_ptr 1",
                   "  .amdhsa_system_sgpr_workgroup_id_x 1", ".end_amdhsa_kernel"]

    def table_data(self):
        self.L += [".p2align 2", ".type L_table,@object"]
        self.lab("L_table")
        for k in range(0, 256, 8):
            self.A(".long " + ", ".join(hex(x) for x in self.table[k:k+8]))

    def build(self):
        K1 = NAME + "_kernel"
        if self.fuse:
            head = HEADER + f"; @launch grid=(256,1,1) block=(512,1,1) lds={LDS_BYTES}\n"
        else:
            head = HEADER + f"; @launch kernel={K1} grid=(256,1,1) block=(512,1,1) lds={LDS_BYTES}\n"
            head += "; @launch kernel=reduce_partials_kernel grid=(384,1,1) block=(256,1,1) lds=0\n"
        self.L += ['.amdgcn_target "amdgcn-amd-amdhsa--gfx950"', ".text"]
        self.main_kernel()
        if not self.fuse:
            self.reduce_kernel()
        self.table_data()
        self.L += ['.section .rodata,"a"']
        self.desc(K1, 256, 102)
        if not self.fuse:
            self.desc("reduce_partials_kernel", 80, 32)
        return head + "\n".join(self.L) + "\n"


def gen(**opt):
    return G(opt).build()


if __name__ == "__main__":
    out = sys.argv[1] if len(sys.argv) > 1 else f"cdna_kernels/{NAME}.s"
    opt = {}
    for a in sys.argv[2:]:
        k, v = a.split("=", 1)
        opt[k] = int(v) if v.lstrip("-").isdigit() else v
    open(out, "w").write(gen(**opt))
    print("wrote", out)
```

```python
import sys, math, struct

NAME = "concat_heads__gqa_block_cached__mha_block_cached__near_ridge"

HEADER = """; Kernarg layout for this problem (104 bytes, ptrs only, base s[0:1]):
"""

TILE = 32768
NSLOT = 3
XB = NSLOT * TILE
XROW = 256
XN = 16 * XROW
BLK = 48 * XROW
XK = XB + BLK
ST = XB + 5 * BLK
FLAG = ST + 3072
RELAY = FLAG + 8
STORED = FLAG + 12
ENTRY = FLAG + 256
WS_FLAGS = 32 * 1024 * 1024
FULL = 0xffffff
POLL_LIMIT = 20000
LDS_BYTES = 163840
PART = 49152
PART_A_BASE = 16 * 16 * PART
NULL_OFF = 0x40000000
IDX_AFTER_ATT = (27, 43)

T_WQ, T_K, T_V, T_WO, T_WQW, T_AUX = 0, 1, 2, 3, 4, 5
ROWSH = [13, 8, 8, 10, 13, 8]
SLABSH = [18, 13, 13, 8, 8, 13]

sW, sC, sIdx, sE = 3, 4, 6, 7
SRD_WQ, SRD_K, SRD_V, SRD_WO, SRD_WQW, SRD_AUX = 8, 12, 16, 20, 24, 28
sAx, sAk, sAv, sAwq, sAwo = 32, 34, 36, 38, 40
sP0, sP1 = 42, 43
sBx, sBk, sBv, sBwq, sBwo = 44, 46, 48, 50, 52
sWs = 54
sB, sG, sRole, sHead, _unused, sScale, sW1024, sBlk, sThr, sIter = 56, 57, 58, 59, 60, 61, 62, 63, 64, 65
sT0, sT1, sT2, sT3, sT4, sT5 = 66, 67, 68, 69, 70, 71
sBlkEnd = 75
sStamp = 76
sFix = 79
sQKi = 99
sXlive = 100
sOrd = 60
sThrot = 100
sHook = 101
sK0x, sPendOff = 98, 70
sLate = 65
sZero = 91
SRD_CUR = [80, 84]
sOff, sTy, sStr, sI, sHalf = [72, 94], [73, 95], [74, 96], [5, 97], [88, 89]
sOff2 = 90
LINK_S = 92

rOut, rWs, rDbg, rKb, rMode, rF, rDone, rNew, rCnt, rOffB, rOffA, rOffO, rAb, rK = 8, 12, 16, 18, 19, 20, 21, 22, 23, 24, 25, 26, 27, 28

vTab, vRow, vChunk, vTRw, vTR0, vKb = 1, 2, 3, 5, 6, 7
vCur = [4, 0]
vXB = 8
vQW, vPW, vSTw, vSTr = 12, 13, 14, 15
vT = 16
vAcc = 24
vQs = 48
vFr = 72
vS = 112
vY = 160
QF = [24, 28, 32, 36, 40, 44, 72, 76, 80, 84, 88, 92]
vKf = 96
vKa, vTRa = 5, 7
vNm = [12, 56, 60]
vDl = 20
vOne = 8
vLq = [44, 48, 52]
NFA = 5
vO = 160
vAfA = 24
QA = [64 + 4 * k for k in range(12)]
sQ = [98, 99, 100, 101]


def vr(a, n=1):
    return f"v{a}" if n == 1 else f"v[{a}:{a+n-1}]"


def sr(a, n=1):
    return f"s{a}" if n == 1 else f"s[{a}:{a+n-1}]"


def f32(x):
    return hex(struct.unpack('<I', struct.pack('<f', x))[0])


class G:
    def __init__(self, opt):
        self.L = []
        self.opt = opt
        self.uid = 0
        self.cold = []
        self.fuse = opt.get("fuse", 1)
        if self.fuse:
            opt.setdefault("stflag", " sc1")
        self.kvf = opt.get("kvflag", " nt")
        self.wf = opt.get("wflag", "")

    def A(self, s):
        self.L.append("  " + s)

    def lab(self, s):
        self.L.append(s + ":")

    def c(self, s):
        self.L.append("  ; " + s)

    def new(self, p):
        self.uid += 1
        return f"L_{p}{self.uid}"

    def mfma(self, d, a, b, c=None):
        cs = "0" if c == 0 else vr(d if c is None else c, 4)
        self.A(f"v_mfma_f32_16x16x32_bf16 {vr(d,4)}, {vr(a,4)}, {vr(b,4)}, {cs}")

    def M(self, d, a, b, c=None):
        return ("m", self.cap(self.mfma, d, a, b, c))

    def lane(self, v):
        self.A(f"v_mbcnt_lo_u32_b32 {vr(v)}, -1, 0")
        self.A(f"v_mbcnt_hi_u32_b32 {vr(v)}, -1, {vr(v)}")

    def rot(self):
        return [[f"s_add_u32 {sr(sC)}, {sr(sC)}, {TILE}"],
                [f"s_cmp_eq_u32 {sr(sC)}, {NSLOT*TILE}", f"s_cselect_b32 {sr(sC)}, 0, {sr(sC)}"]]

    def prep(self, p, slots=True):
        k1 = sum(v << (5 * i) for i, v in enumerate(ROWSH))
        k2 = sum(v << (5 * i) for i, v in enumerate(SLABSH))
        pre = [[f"s_add_u32 {sr(sI[p])}, {sr(sC)}, {sr(sW1024)}"]] + self.rot() if slots else []
        return pre + [
            [f"s_and_b32 {sr(sOff[p])}, {sr(sE)}, 0xffffff00"],
            [f"s_and_b32 {sr(sTy[p])}, {sr(sE)}, 7"],
            [f"s_add_u32 {sr(sIdx)}, {sr(sIdx)}, 1"],
            [f"s_lshl_b32 m0, {sr(sTy[p])}, 2", f"s_mul_i32 {sr(sP0)}, {sr(sTy[p])}, 5",
             f"s_movrels_b64 {sr(SRD_CUR[p],2)}, {sr(SRD_WQ,2)}", f"s_movrels_b32 {sr(SRD_CUR[p]+2)}, {sr(SRD_WQ+2)}"],
            [f"v_readlane_b32 {sr(sE)}, {vr(vTab)}, {sr(sIdx)}"],
            [f"s_lshr_b32 {sr(sP1)}, {hex(k1)}, {sr(sP0)}"],
            [f"s_lshr_b32 {sr(sP0)}, {hex(k2)}, {sr(sP0)}"],
            [f"v_lshl_add_u32 {vr(vCur[p])}, {vr(vRow)}, {sr(sP1)}, {vr(vChunk)}"],
            [f"s_lshl_b32 {sr(sStr[p])}, 1, {sr(sP0)}"],
            [f"s_lshl_b32 {sr(sHalf[p])}, 16, {sr(sP1)}"],
        ]

    def weave(self, prim, fill, per=2, start=0):
        fill = list(fill)
        for idx, (kind, ins) in enumerate(prim):
            self.L += ins
            if kind == "m" and idx >= start:
                k = 0
                while fill and k < per:
                    f = fill[0]
                    if isinstance(f, tuple):
                        if f[0] > idx:
                            break
                        f = f[1]
                    self.emit(f)
                    fill.pop(0)
                    k += 1
        for f in fill:
            self.emit(f[1] if isinstance(f, tuple) else f)

    def emit(self, f):
        for x in f:
            if x.endswith(":"):
                self.L.append(x)
            else:
                self.A(x)

    def cap(self, fn, *a, **k):
        keep, self.L = self.L, []
        fn(*a, **k)
        out, self.L = self.L, keep
        return out

    def head(self, vm):
        self.A("s_waitcnt " + (f"vmcnt({vm}) " if vm is not None else "") + "lgkmcnt(0)")
        if self.opt.get("allsteps") == 2:
            self.stamp(15)
        self.A("s_barrier")
        if self.opt.get("allsteps") == 1:
            self.stamp(14)

    def early_head(self, vm, reads, xonly=None):
        if not self.opt.get("early", 1):
            self.head(vm)
            if xonly:
                l = self.new("x")
                self.is_loader(l)
                xonly()
                self.lab(l)
            reads()
            return
        ly, ld = self.new("ey"), self.new("ed")
        self.is_loader(ly)
        self.head(vm)
        if xonly:
            xonly()
        reads()
        self.A(f"s_branch {ld}")
        self.lab(ly)
        self.A("s_waitcnt lgkmcnt(0)")
        reads()
        self.A(f"s_waitcnt vmcnt({vm})")
        self.A("s_barrier")
        self.lab(ld)

    def dma(self, k, p, kv, guard=True, who=sW):
        A = self.A
        skip = self.new("sk")
        if guard:
            A(f"s_bitcmp1_b32 {sr(who)}, 2")
            A(f"s_cbranch_scc0 {skip}")
        if k:
            A(f"s_add_u32 {sr(sOff[p])}, {sr(sOff[p])}, {sr(sStr[p])}")
        A(f"s_add_u32 m0, {sr(sI[p])}, {k*8192}")
        A(f"s_add_u32 {sr(sOff2)}, {sr(sOff[p])}, {sr(sHalf[p])}")

        def pair(fl):
            if k == 3 and fl == self.kvf and self.opt.get("evst"):
                self.L += self.ev()
                A(f"s_add_u32 m0, {sr(sI[p])}, {k*8192}")
                A("s_nop 0")
            A(f"buffer_load_dwordx4 {vr(vCur[p])}, {sr(SRD_CUR[p],4)}, {sr(sOff[p])} offen{fl} lds")
            A("s_add_u32 m0, m0, 4096")
            A("s_nop 0")
            A(f"buffer_load_dwordx4 {vr(vCur[p])}, {sr(SRD_CUR[p],4)}, {sr(sOff2)} offen{fl} lds")

        if self.kvf == self.wf:
            kv = False
        if kv is not None:
            pair(self.kvf if kv else self.wf)
        else:
            l1 = self.new("kv")
            A(f"s_bitcmp1_b32 6, {sr(sTy[p])}")
            A(f"s_cbranch_scc1 {l1}")
            pair(self.wf)
            A(f"s_branch {skip}")
            self.lab(l1)
            pair(self.kvf)
        self.lab(skip)

    def tile_dma(self, p, kv, who):
        A = self.A
        skip, l1 = self.new("sk"), self.new("kv")
        A(f"s_bitcmp1_b32 {sr(who)}, 2")
        A(f"s_cbranch_scc0 {skip}")
        if kv is None and self.kvf != self.wf:
            A(f"s_bitcmp1_b32 6, {sr(sTy[p])}")
            A(f"s_cbranch_scc1 {l1}")
            for k in range(4):
                self.dma(k, p, False, guard=False)
            A(f"s_branch {skip}")
            self.lab(l1)
        for k in range(4):
            self.dma(k, p, True if kv is None else kv, guard=False)
        self.lab(skip)

    def split_dma(self, p, kv, skip_reg=None):
        A = self.A
        skip, l1 = self.new("sk"), self.new("kv")
        if skip_reg is not None:
            A(f"s_cmp_eq_u32 {sr(skip_reg)}, 0")
            A(f"s_cbranch_scc0 {skip}")
        A(f"s_bitcmp1_b32 {sr(sW)}, 2")
        A(f"s_cselect_b32 {sr(sOff2)}, {sr(sHalf[p])}, 0")
        A(f"s_cselect_b32 {sr(sP0)}, 4096, 0")
        A(f"s_add_u32 {sr(sOff2)}, {sr(sOff2)}, {sr(sOff[p])}")
        A(f"s_add_u32 {sr(sP0)}, {sr(sP0)}, {sr(sI[p])}")

        def four(fl):
            for k in range(4):
                A(f"s_add_u32 m0, {sr(sP0)}, {k*8192}")
                A(f"s_add_u32 {sr(sOff2)}, {sr(sOff2)}, {sr(sStr[p])}" if k else "s_nop 0")
                A(f"buffer_load_dwordx4 {vr(vCur[p])}, {sr(SRD_CUR[p],4)}, {sr(sOff2)} offen{fl} lds")
                if k == 3 and fl == self.kvf:
                    self.L += self.ev()

        if kv is None and self.kvf != self.wf:
            A(f"s_bitcmp1_b32 6, {sr(sTy[p])}")
            A(f"s_cbranch_scc1 {l1}")
            four(self.wf)
            A(f"s_branch {skip}")
            self.lab(l1)
        four(self.kvf)
        self.lab(skip)

    def D1(self, k, p, guard=False):
        l1, l2 = self.new("w"), self.new("d")
        ld = f"  buffer_load_dwordx4 {vr(vCur[p])}, {sr(SRD_CUR[p],4)}, {sr(sOff[p])} offen"
        ins = [f"  s_bitcmp1_b32 {sr(sW)}, 2", f"  s_cbranch_scc0 {l2}"] if guard else []
        ins.append(f"  s_add_u32 m0, {sr(sI[p])}, {k*8192}")
        adv = f"  s_add_u32 {sr(sOff[p])}, {sr(sOff[p])}, {sr(sStr[p])}"
        ins += [f"  s_bitcmp1_b32 6, {sr(sTy[p])}", f"  s_cbranch_scc0 {l1}", adv, f"{ld}{self.kvf} lds"]
        if k == 3:
            ins += self.ev()
        self.cold += [l1 + ":"] + ([adv] if k else []) + [f"{ld}{self.wf} lds", f"  s_branch {l2}"]
        return ("d", ins + [l2 + ":"])

    def D(self, k, p, kv, who=sW):
        return ("d", self.cap(self.dma, k, p, kv, True, who))

    def tr_pair(self, dst, addr, off):
        self.A(f"ds_read_b64_tr_b16 {vr(dst,2)}, {vr(addr)} offset:{off}")
        self.A(f"ds_read_b64_tr_b16 {vr(dst+2,2)}, {vr(addr)} offset:{off+1024}")

    def narrow(self, pre=None, extra=None, early=None, body=None, check=None, ones=None, vm1=None):
        A = self.A

        def fr(st, k):
            return vFr + (st * 5 + k) * 4

        def reads(T, s):
            p = T % 2
            for m in range(2):
                self.tr_pair(fr(s % 2, m), vT + 2 * p + m, s * 8192)
            for n in range(3):
                A(f"ds_read_b128 {vr(fr(s%2,2+n),4)}, {vr(vXB+s)} offset:{n*XN+T*BLK}")

        def addr(p):
            return [[f"v_add_u32 {vr(vT+2*p)}, {sr(sC)}, {vr(vTRw)}"], [f"v_xor_b32 {vr(vT+2*p+1)}, 32, {vr(vT+2*p)}"]]

        def mf(s, zero=False):
            out = [self.M(vAcc + (m * 3 + n) * 4, fr(s % 2, m), fr(s % 2, 2 + n), 0 if zero else None)
                   for m in range(2) for n in range(3)]
            if ones:
                out += [self.M(ones + 4 + 4 * n, ones, fr(s % 2, 2 + n), 0 if zero else None) for n in range(3)]
            return out

        for T in range(4):
            self.head(vm1 if T == 1 else None)
            if T == 0:
                if body:
                    self.lab(body)
                self.weave([], addr(0))
            self.emit((pre or {}).get(T, []))
            prim = [("r", self.cap(reads, T, 0))]
            if T:
                prim += mf(3)
            prim.append(("r", self.cap(reads, T, 1)))
            for s in range(3):
                prim.append(("w", ["  s_waitcnt lgkmcnt(7)"] + (check if (check and T == 0 and s == 0) else [])))
                prim += mf(s, T == 0 and s == 0)
                if s < 2:
                    prim.append(("r", self.cap(reads, T, s + 2)))
            late = [(13, g) for g in (extra or {}).get(T, [])]
            self.weave(prim, self.rot() + (addr(1 - T % 2) if T < 3 else []) + late, per=1 + bool(late))
        A("s_waitcnt lgkmcnt(0)")
        if early is True:
            A("s_barrier")
        elif early is None:
            l = self.new("e")
            A(f"s_cmp_eq_u32 {sr(sLate)}, 0")
            A(f"s_cbranch_scc0 {l}")
            A("s_barrier")
            self.lab(l)
        self.weave(mf(3), [])

    def load_bfrags_dyn(self, tmp, quads):
        for s in range(4):
            self.A(f"v_add_u32 {vr(tmp+s)}, {sr(sBlk)}, {vr(vXB+s)}")
        for s in range(4):
            for n in range(3):
                self.A(f"ds_read_b128 {vr(quads[n*4+s],4)}, {vr(tmp+s)} offset:{n*XN}")

    def is_loader(self, label):
        self.A(f"s_bitcmp1_b32 {sr(sW)}, 2")
        self.A(f"s_cbranch_scc1 {label}")

    def x_setup(self, va, sT1=sT1, sT2=sT2):
        A = self.A
        self.lane(va + 2)
        A(f"v_lshrrev_b32 {vr(va+1)}, 4, {vr(va+2)}")
        A(f"v_and_b32 {vr(va+2)}, 15, {vr(va+2)}")
        A(f"v_xor_b32 {vr(va+2)}, {vr(va+2)}, {vr(va+1)}")
        A(f"v_lshlrev_b32 {vr(va+2)}, 4, {vr(va+2)}")
        A(f"v_lshl_or_b32 {vr(va+2)}, {vr(va+1)}, 10, {vr(va+2)}")
        A(f"s_mul_i32 {sr(sT0)}, {sr(sW1024)}, 3")
        A(f"s_add_u32 {sr(sT2)}, {sr(sT0)}, {XB}")
        A(f"s_mul_i32 {sr(sT1)}, {sr(sB)}, 49152")
        A(f"s_lshl_b32 {sr(sT3)}, {sr(sT0)}, 2")
        A(f"s_add_u32 {sr(sT1)}, {sr(sT1)}, {sr(sT3)}")
        A(f"s_lshr_b32 {sr(sT0)}, {sr(sT0)}, 4")
        for j in range(3):
            A(f"s_add_u32 {sr(sT3)}, {sr(sT0)}, {j*64}")
            A(f"s_and_b32 {sr(sT3)}, {sr(sT3)}, 0xc0")
            A(f"v_xor_b32 {vr(va+j)}, {sr(sT3)}, {vr(va+2)}")

    def x_rot(self, va, j, late=False):
        A = self.A
        sHalf = [sT1, sT2] if late else globals()["sHalf"]
        if late:
            A(f"s_lshr_b32 {sr(sOff2)}, {sr(sB)}, 2")
        A(f"s_add_u32 {sr(sP0)}, {sr(sOff2)}, {j}")
        A(f"s_and_b32 {sr(sP0)}, {sr(sP0)}, 3")
        A(f"s_mul_i32 {sr(sP1)}, {sr(sP0)}, {BLK}")
        A(f"s_add_u32 {sr(sP1)}, {sr(sP1)}, {sr(sHalf[1])}")
        A(f"s_lshl_b32 {sr(sP0)}, {sr(sP0)}, 8")
        A(f"s_add_u32 {sr(sP0)}, {sr(sP0)}, {sr(sHalf[0])}")
        for k in range(3):
            A(f"s_add_u32 m0, {sr(sP1)}, {k*1024}")
            if k:
                A(f"s_add_u32 {sr(sP0)}, {sr(sP0)}, 4096")
            else:
                A("s_nop 0")
            A(f"buffer_load_dwordx4 {vr(va+k)}, {sr(SRD_AUX,4)}, {sr(sP0)} offen lds")

    def first_tile(self, t):
        A = self.A
        A(f"s_add_u32 {sr(sP0)}, {sr(sI[0])}, {t}")
        A(f"s_and_b32 {sr(sP0)}, {sr(sP0)}, 15")
        A(f"s_mul_i32 {sr(sP0)}, {sr(sP0)}, {sr(sStr[1])}")
        A(f"s_add_u32 {sr(sP0)}, {sr(sP0)}, {sr(sTy[0])}")
        for k in range(8):
            A(f"s_add_u32 m0, {sr(sW1024)}, {t*TILE+k*4096}")
            if k % 2:
                A(f"s_add_u32 {sr(sP1)}, {sr(sP0)}, {16*8192}")
            elif k:
                A(f"s_add_u32 {sr(sP0)}, {sr(sP0)}, {sr(sStr[0])}")
            else:
                A("s_nop 0")
            A(f"buffer_load_dwordx4 {vr(vCur[0])}, {sr(SRD_CUR[0],4)}, {sr(sP1 if k % 2 else sP0)} offen{self.wf} lds")

    def x_block(self, va, blk):
        for j in range(3):
            self.A(f"s_add_u32 m0, {sr(sT2)}, {blk*BLK+j*1024}")
            self.A(f"s_add_u32 {sr(sT3)}, {sr(sT1)}, {blk*256+j*4096}")
            self.A(f"buffer_load_dwordx4 {vr(va+j)}, {sr(SRD_AUX,4)}, {sr(sT3)} offen lds")

    def weight_prefetch(self, items, half=False, dst=156, cur=SRD_CUR[1]):
        A = self.A
        off = sT1
        n = 4 if half else 2
        self.lane(vT + 1)
        A(f"v_lshrrev_b32 {vr(vT)}, 4, {vr(vT+1)}")
        A(f"v_lshlrev_b32 {vr(vT+1)}, 4, {vr(vT+1)}")
        A(f"v_and_b32 {vr(vT+2)}, 0xf0, {vr(vT+1)}")
        A(f"v_lshl_or_b32 {vr(vT)}, {vr(vT)}, 13, {vr(vT+2)}")
        A(f"s_lshl_b32 {sr(sT0)}, {sr(sG)}, 2")
        A(f"s_lshr_b32 {sr(sT2)}, {sr(sB)}, {int(half)}")
        A(f"s_lshl_b32 {sr(sT2)}, {sr(sT2)}, 2")
        A(f"s_add_u32 {sr(sT2)}, {sr(sT2)}, {sr(sW)}")
        A(f"s_mov_b32 {sr(cur+2)}, 4194304")
        for ptr, is_wq, h in items:
            A(f"s_add_u32 {sr(sT3)}, {sr(sT0)}, {h}")
            A(f"s_lshl_b32 {sr(sT3)}, {sr(sT3)}, {8 if is_wq else 17}")
            A(f"s_lshl_b32 {sr(off)}, {sr(sT2)}, {(16 if is_wq else 11) + int(half)}")
            A(f"s_add_u32 {sr(off)}, {sr(off)}, {sr(sT3)}")
            A(f"s_mov_b64 {sr(cur,2)}, {sr(ptr,2)}")
            for k in range(n):
                if k:
                    A(f"s_add_u32 {sr(off)}, {sr(off)}, {32768 if is_wq else 1024}")
                A(f"buffer_load_dwordx4 {vr(dst,4)}, {vr(vT if is_wq else vT+1)}, {sr(cur,4)}, {sr(off)} offen")

    def k_prefetch(self, tiles, dst):
        A = self.A
        cur = SRD_CUR[1]
        self.lane(vT + 1)
        A(f"v_lshlrev_b32 {vr(vT+1)}, 4, {vr(vT+1)}")
        A(f"s_and_b32 {sr(sT0)}, {sr(sB)}, 14")
        A(f"s_lshl_b32 {sr(sT0)}, {sr(sT0)}, 3")
        A(f"s_add_u32 {sr(sT0)}, {sr(sT0)}, {sr(sG)}")
        A(f"s_lshl_b32 {sr(sT0)}, {sr(sT0)}, 19")
        A(f"s_lshl_b32 {sr(sT1)}, {sr(sW)}, 13")
        A(f"s_add_u32 {sr(sT0)}, {sr(sT0)}, {sr(sT1)}")
        A(f"s_mov_b64 {sr(cur,2)}, {sr(sBk,2)}")
        A(f"s_mov_b32 {sr(cur+2)}, 67108864")
        for t in tiles:
            for h in range(2):
                A(f"s_add_u32 {sr(sT1)}, {sr(sT0)}, {t*32768+h*4096}")
                for k in range(4):
                    A(f"buffer_load_dwordx4 {vr(dst,4)}, {vr(vT+1)}, {sr(cur,4)}, {sr(sT1)} offen offset:{k*1024}")

    def srd(self, d, p, size):
        self.A(f"s_mov_b32 {sr(d)}, {sr(p)}")
        self.A(f"s_mov_b32 {sr(d+1)}, {sr(p+1)}")
        self.A(f"s_mov_b32 {sr(d+2)}, {size}")
        self.A(f"s_mov_b32 {sr(d+3)}, 0x20000")

    def reduce4(self, x, op):
        self.A(f"v_mov_b32 {vr(x+3)}, {vr(x+2)}")
        self.A("s_nop 1")
        self.A(f"v_permlane32_swap_b32 {vr(x)}, {vr(x+1)}")
        self.A(f"v_permlane32_swap_b32 {vr(x+2)}, {vr(x+3)}")
        self.A("s_nop 1")
        self.A(f"{op} {vr(x)}, {vr(x)}, {vr(x+1)}")
        self.A(f"{op} {vr(x+2)}, {vr(x+2)}, {vr(x+3)}")
        self.A("s_nop 1")
        self.A(f"v_permlane16_swap_b32 {vr(x)}, {vr(x+2)}")
        self.A("s_nop 1")
        self.A(f"{op} {vr(x)}, {vr(x)}, {vr(x+2)}")

    def allreduce3(self, x, t, op):
        for sw in ("v_permlane32_swap_b32", "v_permlane16_swap_b32"):
            for n in range(3):
                self.A(f"v_mov_b32 {vr(t+n)}, {vr(x+n)}")
            self.A("s_nop 1")
            for n in range(3):
                self.A(f"{sw} {vr(x+n)}, {vr(t+n)}")
            self.A("s_nop 1")
            for n in range(3):
                self.A(f"{op} {vr(x+n)}, {vr(x+n)}, {vr(t+n)}")

    def maxn(self, dst, regs):
        out = [f"v_max3_f32 {vr(dst)}, {vr(regs[0])}, {vr(regs[1])}, {vr(regs[2])}"]
        k = 3
        while k + 1 < len(regs):
            out.append(f"v_max3_f32 {vr(dst)}, {vr(dst)}, {vr(regs[k])}, {vr(regs[k+1])}")
            k += 2
        if k < len(regs):
            out.append(f"v_max_f32 {vr(dst)}, {vr(dst)}, {vr(regs[k])}")
        return out

    def pkmul(self, a, f):
        sel = "op_sel_hi:[1,0]" if f % 2 == 0 else "op_sel:[0,1] op_sel_hi:[1,1]"
        return f"v_pk_mul_f32 {vr(a,2)}, {vr(a,2)}, {vr(f - f % 2,2)} {sel}"

    def ev(self):
        if not self.opt.get("evst"):
            return []
        return self.cap(self.stamp, 0, True)

    def stamp(self, idx, force=False):
        if not self.opt.get("stamps") or (self.opt.get("evst") and not force and idx != 11):
            return
        if self.opt.get("tailst") and idx not in (0, 6, 7, 8, 11, 16, 17, 18):
            return
        self.A(("s_memtime" if self.opt.get("cyc") else "s_memrealtime") + f" {sr(sStamp,2)}")
        self.A("s_waitcnt lgkmcnt(0)")
        self.A(f"s_and_b32 {sr(sStamp)}, {sr(sStamp)}, 0xffffff")
        self.A(f"s_or_b32 {sr(sStamp)}, {sr(sStamp)}, {(idx+1) << 24}")
        self.A("s_mov_b32 m0, s78")
        if self.opt.get("skip"):
            l = self.new("st")
            self.A(f"s_cmp_lt_i32 s78, 0")
            self.A(f"s_cbranch_scc1 {l}")
            self.A(f"s_cmp_ge_i32 s78, 63")
            self.A(f"s_cbranch_scc1 {l}")
            self.A(f"v_writelane_b32 {vr(23)}, {sr(sStamp)}, m0")
            self.lab(l)
        else:
            self.A(f"v_writelane_b32 {vr(23)}, {sr(sStamp)}, m0")
        self.A("s_add_u32 s78, s78, 1")

    def ks(self, idx=15):
        if self.opt.get("kst"):
            self.A(f"s_memtime s[{76}:{77}]")
            self.A("s_waitcnt lgkmcnt(0)")
            self.A(f"s_and_b32 s76, s76, 0xffffff")
            self.A(f"s_or_b32 s76, s76, {(idx+1) << 24}")
            self.A("s_mov_b32 m0, s78")
            self.A(f"v_writelane_b32 v23, s76, m0")
            self.A("s_add_u32 s78, s78, 1")

    def pack_y(self, barrier, store=False):
        def pack(jp):
            g = []
            for n in range(3):
                q = vY + (2 * jp * 3 + n) * 4
                for h in range(2):
                    y = vY + ((2 * jp + h) * 3 + n) * 4
                    g.append([f"v_cvt_pk_bf16_f32 {vr(q+2*h)}, {vr(y)}, {vr(y+1)}"])
                    g.append([f"v_cvt_pk_bf16_f32 {vr(q+2*h+1)}, {vr(y+2)}, {vr(y+3)}"])
            if store:
                g.append(["s_nop 1"])
                for n in range(3):
                    q = vY + (2 * jp * 3 + n) * 4
                    g.append([f"v_permlane16_swap_b32 {vr(q)}, {vr(q+2)}", f"v_permlane16_swap_b32 {vr(q+1)}, {vr(q+3)}",
                              f"buffer_store_dwordx4 {vr(q,4)}, {vr(vT+n)}, {sr(SRD_AUX,4)}, {sr(sPendOff)} offen offset:{jp*1024}"
                              + self.opt.get("stflag", "")])
            return g

        if store:
            self.lane(vT)
            self.A(f"v_lshlrev_b32 {vr(vT)}, 4, {vr(vT)}")
            self.A(f"v_add_u32 {vr(vT+1)}, 4096, {vr(vT)}")
            self.A(f"v_add_u32 {vr(vT+2)}, 8192, {vr(vT)}")
        self.srd(SRD_AUX, sWs, 268435456)
        self.A(f"s_mul_i32 {sr(sT1)}, {sr(sW)}, 12288")
        self.A(f"s_add_u32 {sr(sPendOff)}, {sr(sT0)}, {sr(sT1)}")
        self.wide_drain(pack)
        if barrier:
            self.A("s_barrier")
        else:
            self.A("s_nop 1")

    def store_y(self, n, va):
        A = self.A
        self.lane(va)
        A(f"v_lshlrev_b32 {vr(va)}, 4, {vr(va)}")
        for jp in range(4):
            q = vY + (2 * jp * 3 + n) * 4
            A(f"v_permlane16_swap_b32 {vr(q)}, {vr(q+2)}")
            A(f"v_permlane16_swap_b32 {vr(q+1)}, {vr(q+3)}")
            A(f"buffer_store_dwordx4 {vr(q,4)}, {vr(va)}, {sr(SRD_AUX,4)}, {sr(sPendOff)} offen offset:{jp*1024}" + self.opt.get("stflag", ""))
        A(f"s_add_u32 {sr(sPendOff)}, {sr(sPendOff)}, 4096")

    def wide_drain(self, per_pair=None):
        prim = [self.M(vY + (j * 3 + n) * 4, vFr + 4 * (j + 2 if j >= 6 else j), vAcc + (3 + n) * 4) for j in range(8) for n in range(3)]
        fill = []
        if per_pair:
            for jp in range(4):
                g = per_pair(jp)
                fill += [(6 * jp + 13, x) for x in g]
        self.weave(prim, fill, per=4)

    def dma_only(self):
        A, lab = self.A, self.lab
        self.is_loader("L_do_ld")
        A(f"s_cmp_eq_u32 {sr(sOrd)}, 0")
        A("s_cbranch_scc0 L_fin")
        self.weight_prefetch([(sBwq, True, 2), (sBwq, True, 3), (sBwq, True, 0)] + [(sBwo, False, h) for h in range(4)] + [(sAwo, False, h) for h in range(4)])
        A("s_branch L_fin")
        lab("L_do_ld")
        self.first_tile(1)
        self.x_rot(vY, 2)
        self.first_tile(2)
        self.x_rot(vY, 3)
        self.weave([], self.prep(1))
        lab("L_do_loop")
        for p in (1, 0):
            for sw, (cond, k, v, wo) in {27: (1, sBk, sBv, None), 41: (1, None, None, sBwo), 14: (2, sAk, sAv, None), 18: (2, None, None, sAwo)}.items():
                l = self.new("sw")
                A(f"s_cmp_eq_u32 {sr(sIdx)}, {sw}")
                A(f"s_cbranch_scc0 {l}")
                A(f"s_cmp_eq_u32 {sr(sOrd)}, {cond}")
                A(f"s_cbranch_scc0 {l}")
                if k:
                    self.srd(SRD_K, k, 67108864 if k == sBk else 16777216)
                    self.srd(SRD_V, v, 67108864 if k == sBk else 16777216)
                if wo:
                    self.srd(SRD_WO, wo, 4194304)
                lab(l)
            A(f"s_waitcnt vmcnt({self.opt['dmaonly']})")
            for k in range(4):
                self.dma(k, p, None, guard=False)
            self.weave([], self.prep(1 - p))
        A(f"s_cmp_lt_u32 {sr(sIdx)}, 57")
        A("s_cbranch_scc1 L_do_loop")
        A("s_branch L_fin")

    def reduce_setup(self):
        A = self.A
        A(f"s_load_dwordx4 {sr(rOut,4)}, s[0:1], 80")
        A("s_waitcnt lgkmcnt(0)")
        A(f"s_mov_b64 {sr(rDbg,2)}, {sr(rOut+2,2)}")
        A(f"s_mov_b32 {sr(rOut+2)}, 1572864")
        A(f"s_mov_b32 {sr(rOut+3)}, 0x20000")
        self.srd(rWs, sWs, 268435456)

    def publish(self):
        A, lab = self.A, self.lab
        A(f"v_mov_b32 {vr(vT)}, {STORED}")
        A(f"v_mov_b32 {vr(vT+1)}, 1")
        self.reduce_setup()
        A("s_waitcnt vmcnt(0)")
        self.stamp(7)
        A("s_mov_b64 exec, 1")
        A(f"ds_add_rtn_u32 {vr(vT+1)}, {vr(vT)}, {vr(vT+1)}")
        A(f"s_lshl_b32 {sr(sT0)}, {sr(sRole)}, 3")
        A(f"s_add_u32 {sr(sT0)}, {sr(sT0)}, {sr(sG)}")
        A(f"s_lshl_b32 {sr(sT2)}, {sr(sT0)}, 2")
        A(f"s_add_u32 {sr(sT3)}, {sr(sT2)}, {ENTRY}")
        A(f"v_mov_b32 {vr(vT+4)}, {sr(sT3)}")
        A(f"ds_read_b32 {vr(vT+4)}, {vr(vT+4)}")
        A(f"s_lshl_b32 {sr(sT3)}, {sr(sB)}, 8")
        A(f"s_add_u32 {sr(sT2)}, {sr(sT2)}, {sr(sT3)}")
        A(f"s_add_u32 {sr(sT2)}, {sr(sT2)}, {WS_FLAGS}")
        A(f"s_lshl_b32 {sr(sT0)}, 1, {sr(sT0)}")
        A(f"s_add_u32 {sr(sT1)}, {sr(sG)}, 16")
        A(f"s_lshl_b32 {sr(sT1)}, {sr(sRole)}, {sr(sT1)}")
        A(f"s_or_b32 {sr(sT0)}, {sr(sT0)}, {sr(sT1)}")
        A(f"s_lshl_b32 {sr(sT1)}, {sr(sB)}, 4")
        A(f"v_mov_b32 {vr(vT)}, {sr(sT1)}")
        A(f"v_mov_b32 {vr(vT+2)}, {sr(sT0)}")
        A(f"v_mov_b32 {vr(vT+3)}, 0")
        A("s_waitcnt lgkmcnt(0)")
        A(f"v_readfirstlane_b32 {sr(sT1)}, {vr(vT+1)}")
        A(f"v_add_u32 {vr(vT+4)}, 1, {vr(vT+4)}")
        A("s_mov_b64 exec, -1")
        A("s_nop 2")
        A(f"s_cmp_eq_u32 {sr(sT1)}, 3")
        A("s_cbranch_scc0 L_fin")
        A("s_mov_b64 exec, 1")
        A(f"buffer_store_dword {vr(vT+4)}, off, {sr(rWs,4)}, {sr(sT2)} sc1")
        A(f"global_atomic_or_x2 {vr(vT+4,2)}, {vr(vT)}, {vr(vT+2,2)}, {sr(rDbg,2)} sc0 sc1")
        A("s_waitcnt vmcnt(0)")
        A(f"v_readfirstlane_b32 {sr(sT1)}, {vr(vT+4)}")
        A(f"v_readfirstlane_b32 {sr(rAb)}, {vr(vT+5)}")
        A("s_mov_b64 exec, -1")
        A("s_nop 2")
        A(f"s_or_b32 {sr(sT1)}, {sr(sT1)}, {sr(sT0)}")
        A(f"s_cmp_eq_u32 {sr(sT1)}, {FULL}")
        A("s_cbranch_scc0 L_fin")
        self.c("last arrival of this batch: take over the slices of workgroups that gave up waiting")
        lab("L_ab_loop")
        A(f"s_cmp_eq_u32 {sr(rAb)}, 0")
        A("s_cbranch_scc1 L_fin")
        A(f"s_ff1_i32_b32 {sr(rK)}, {sr(rAb)}")
        A(f"s_bitset0_b32 {sr(rAb)}, {sr(rK)}")
        A(f"s_mul_i32 {sr(rKb)}, {sr(rK)}, 3")
        for k in range(3):
            A(f"s_mov_b32 {sr(rMode)}, 2")
            A(f"s_call_b64 {sr(LINK_S,2)}, L_reduce")
            A(f"s_add_u32 {sr(rKb)}, {sr(rKb)}, 1")
        A("s_branch L_ab_loop")

    def reduce_sub(self):
        A, lab = self.A, self.lab
        dat = lambda g, q: 64 + (g * 4 + q) * 4
        acc = lambda g: 160 + g * 8
        lab("L_reduce")
        A(f"s_lshl_b32 {sr(rOffA)}, {sr(rKb)}, 10")
        A(f"s_mul_i32 {sr(rOffB)}, {sr(sB)}, {16*PART}")
        A(f"s_add_u32 {sr(rOffB)}, {sr(rOffB)}, {sr(rOffA)}")
        A(f"s_mul_i32 {sr(rOffO)}, {sr(sB)}, {8*PART}")
        A(f"s_add_u32 {sr(rOffA)}, {sr(rOffA)}, {sr(rOffO)}")
        A(f"s_add_u32 {sr(rOffA)}, {sr(rOffA)}, {PART_A_BASE}")
        A(f"s_mul_i32 {sr(sT0)}, {sr(rKb)}, 171")
        A(f"s_lshr_b32 {sr(sT0)}, {sr(sT0)}, 11")
        A(f"s_mul_i32 {sr(sT1)}, {sr(sT0)}, 12")
        A(f"s_sub_u32 {sr(sT1)}, {sr(rKb)}, {sr(sT1)}")
        A(f"s_lshr_b32 {sr(sT2)}, {sr(sT1)}, 2")
        A(f"s_and_b32 {sr(sT1)}, {sr(sT1)}, 3")
        A(f"s_mul_i32 {sr(rOffO)}, {sr(sB)}, 98304")
        A(f"s_lshl_b32 {sr(sT2)}, {sr(sT2)}, 15")
        A(f"s_lshl_b32 {sr(sT0)}, {sr(sT0)}, 8")
        A(f"s_lshl_b32 {sr(sT1)}, {sr(sT1)}, 6")
        A(f"s_add_u32 {sr(rOffO)}, {sr(rOffO)}, {sr(sT2)}")
        A(f"s_add_u32 {sr(rOffO)}, {sr(rOffO)}, {sr(sT0)}")
        A(f"s_add_u32 {sr(rOffO)}, {sr(rOffO)}, {sr(sT1)}")
        self.lane(24)
        A("v_lshlrev_b32 v25, 4, v24")
        A("v_and_b32 v26, 15, v24")
        A("v_lshlrev_b32 v26, 11, v26")
        A("v_bfe_u32 v27, v24, 4, 1")
        A("v_lshl_add_u32 v26, v27, 5, v26")
        A("v_bfe_u32 v27, v24, 5, 1")
        A("v_lshl_add_u32 v26, v27, 4, v26")
        A(f"v_mov_b32 v27, {RELAY}")
        A(f"s_lshl_b32 {sr(sT0)}, {sr(sB)}, 4")
        A(f"v_mov_b32 v28, {sr(sT0)}")
        A("v_and_b32 v40, 15, v24")
        A("v_lshlrev_b32 v40, 2, v40")
        A(f"v_add_u32 v41, {ENTRY}, v40")
        A("ds_read_b32 v41, v41")
        A(f"s_lshl_b32 {sr(sT2)}, {sr(sB)}, 8")
        A(f"s_add_u32 {sr(sT2)}, {sr(sT2)}, {WS_FLAGS}")
        A(f"v_mov_b32 v42, {STORED}")
        A("s_waitcnt lgkmcnt(0)")
        A("v_add_u32 v41, 1, v41")
        A(f"s_mov_b32 {sr(sT3)}, 0xffff0000")
        A(f"s_mov_b32 {sr(rDone)}, 0")
        A(f"s_mov_b32 {sr(rCnt)}, 0")
        lab("L_rd_poll")
        A(f"s_mov_b32 {sr(rF)}, {FULL}")
        A(f"s_cmp_eq_u32 {sr(rMode)}, 2")
        A("s_cbranch_scc1 L_rd_have")
        A(f"s_cmp_eq_u32 {sr(rMode)}, 1")
        A("s_cbranch_scc1 L_rd_lds")
        A(f"s_cmp_eq_u32 {sr(rCnt)}, 1")
        A("s_cbranch_scc0 L_rd_go")
        self.c("after the first look, stay off the memory path until this workgroup's own stores are out")
        lab("L_rd_own")
        A("ds_read_b32 v29, v42")
        A("s_waitcnt lgkmcnt(0)")
        A("v_cmp_gt_u32 vcc, 4, v29")
        A("s_cbranch_vccz L_rd_go")
        A("s_sleep 2")
        A("s_branch L_rd_own")
        lab("L_rd_go")
        A(f"s_add_u32 {sr(rCnt)}, {sr(rCnt)}, 1")
        A(f"buffer_load_dword v29, v40, {sr(rWs,4)}, {sr(sT2)} offen sc1")
        A("s_waitcnt vmcnt(0)")
        A("v_cmp_eq_u32 vcc, v29, v41")
        A("s_nop 3")
        A(f"s_and_b32 {sr(rF)}, vcc_lo, 0xffff")
        A(f"s_and_b32 {sr(sT0)}, {sr(rF)}, 0xff00")
        A(f"s_lshl_b32 {sr(sT0)}, {sr(sT0)}, 8")
        A(f"s_or_b32 {sr(rF)}, {sr(rF)}, {sr(sT0)}")
        A(f"v_mov_b32 v29, {sr(rF)}")
        A("ds_write_b32 v27, v29")
        A("s_branch L_rd_have")
        lab("L_rd_lds")
        A("ds_read_b32 v29, v27")
        A("s_waitcnt lgkmcnt(0)")
        A(f"v_readfirstlane_b32 {sr(rF)}, v29")
        A("s_nop 3")
        A(f"s_cmp_lt_i32 {sr(rF)}, 0")
        A("s_cbranch_scc1 L_rd_ret")
        lab("L_rd_have")
        A(f"s_lshr_b32 {sr(rNew)}, {sr(rF)}, 1")
        A(f"s_and_b32 {sr(rNew)}, {sr(rNew)}, {sr(rF)}")
        A(f"s_lshr_b32 {sr(sT0)}, {sr(rNew)}, 2")
        A(f"s_and_b32 {sr(rNew)}, {sr(rNew)}, {sr(sT0)}")
        A(f"s_and_b32 {sr(rNew)}, {sr(rNew)}, 0x111111")
        A(f"s_andn2_b32 {sr(rNew)}, {sr(rNew)}, {sr(rDone)}")
        A("s_cbranch_scc1 L_rd_work")
        A(f"s_sleep {self.opt.get('sleep', 8)}")
        A(f"s_cmp_eq_u32 {sr(rMode)}, 0")
        A("s_cbranch_scc0 L_rd_poll")
        A(f"s_cmp_lt_u32 {sr(rCnt)}, {self.opt.get('polls', POLL_LIMIT)}")
        A("s_cbranch_scc1 L_rd_poll")
        self.c("gave up waiting: leave the slice to the last arrival unless that has happened meanwhile")
        A(f"s_lshl_b32 {sr(sT0)}, {sr(sRole)}, 3")
        A(f"s_add_u32 {sr(sT0)}, {sr(sT0)}, {sr(sG)}")
        A(f"s_lshl_b32 {sr(sT0)}, 1, {sr(sT0)}")
        A("v_mov_b32 v30, 0")
        A(f"v_mov_b32 v31, {sr(sT0)}")
        A("s_mov_b64 exec, 1")
        A(f"global_atomic_or_x2 v[32:33], v28, v[30:31], {sr(rDbg,2)} sc0 sc1")
        A("s_waitcnt vmcnt(0)")
        A(f"v_readfirstlane_b32 {sr(rF)}, v32")
        A("s_mov_b64 exec, -1")
        A("s_nop 3")
        A(f"s_cmp_eq_u32 {sr(rF)}, {FULL}")
        A(f"s_cselect_b32 {sr(rF)}, {sr(rF)}, -1")
        A(f"v_mov_b32 v29, {sr(rF)}")
        A("ds_write_b32 v27, v29")
        A("s_cbranch_scc0 L_rd_ret")
        A(f"s_mov_b32 {sr(rMode)}, 2")
        A("s_branch L_rd_poll")
        lab("L_rd_work")
        self.stamp(17)
        for g in range(6):
            l = self.new("rg")
            A(f"s_bitcmp1_b32 {sr(rNew)}, {4*g}")
            A(f"s_cbranch_scc0 {l}")
            base, first = (rOffB, 4 * g) if g < 4 else (rOffA, 4 * (g - 4))
            for q in range(4):
                A(f"s_add_u32 {sr(sT0)}, {sr(base)}, {(first+q)*PART}")
                A(f"buffer_load_dwordx4 {vr(dat(g,q),4)}, v25, {sr(rWs,4)}, {sr(sT0)} offen sc1")
            lab(l)
        A("s_waitcnt vmcnt(0)")
        self.stamp(18)
        for g in range(6):
            l = self.new("rs")
            A(f"s_bitcmp1_b32 {sr(rNew)}, {4*g}")
            A(f"s_cbranch_scc0 {l}")
            for q in range(4):
                for k in range(4):
                    r, t = dat(g, q) + k, (acc(g) + 2 * k if q == 0 else 30 + 2 * (k % 2))
                    A(f"v_lshlrev_b32 {vr(t)}, 16, {vr(r)}")
                    A(f"v_and_b32 {vr(t+1)}, {sr(sT3)}, {vr(r)}")
                    if q:
                        A(f"v_pk_add_f32 {vr(acc(g)+2*k,2)}, {vr(acc(g)+2*k,2)}, {vr(t,2)}")
            lab(l)
        A(f"s_or_b32 {sr(rDone)}, {sr(rDone)}, {sr(rNew)}")
        A(f"s_cmp_eq_u32 {sr(rDone)}, 0x111111")
        A("s_cbranch_scc0 L_rd_poll")
        for x, y in ((0, 1), (2, 3), (4, 5), (0, 2)):
            for k in range(4):
                A(f"v_pk_add_f32 {vr(acc(x)+2*k,2)}, {vr(acc(x)+2*k,2)}, {vr(acc(y)+2*k,2)}")
        for g, d in ((4, 32), (0, 36)):
            for k in range(4):
                A(f"v_cvt_pk_bf16_f32 {vr(d+k)}, {vr(acc(g)+2*k)}, {vr(acc(g)+2*k+1)}")
        A(f"buffer_store_dwordx4 v[32:35], v26, {sr(rOut,4)}, {sr(rOffO)} offen")
        A(f"buffer_store_dwordx4 v[36:39], v26, {sr(rOut,4)}, {sr(rOffO)} offen offset:1024")
        lab("L_rd_ret")
        A(f"s_setpc_b64 {sr(LINK_S,2)}")

    def zero(self, base, n):
        for k in range(0, n, 2):
            self.A(f"v_mov_b64 {vr(base+k,2)}, 0")

    def act_write_addr(self, sblk, stile):
        A = self.A
        self.lane(vT + 1)
        A(f"v_lshrrev_b32 {vr(vT)}, 4, {vr(vT+1)}")
        A(f"v_and_b32 {vr(vT+1)}, 15, {vr(vT+1)}")
        A(f"v_lshrrev_b32 {vr(vT+2)}, 1, {vr(vT)}")
        if stile is not None:
            A(f"v_add_u32 {vr(vT+2)}, {sr(stile)}, {vr(vT+2)}")
        A(f"v_xor_b32 {vr(vT+2)}, {vr(vT+2)}, {vr(vT+1)}")
        A(f"v_lshlrev_b32 {vr(vT+2)}, 4, {vr(vT+2)}")
        A(f"v_and_b32 {vr(vT)}, 1, {vr(vT)}")
        A(f"v_lshl_or_b32 {vr(vT+2)}, {vr(vT)}, 3, {vr(vT+2)}")
        A(f"v_mul_u32_u24 {vr(vT+1)}, {XROW}, {vr(vT+1)}")
        A(f"s_add_u32 {sr(sT5)}, {sr(sblk)}, {XB}")
        A(f"v_add3_u32 {vr(vT+1)}, {vr(vT+1)}, {sr(sT5)}, {vr(vT+2)}")

    def frag_addrs(self):
        A = self.A
        t0, t1, t2, t3, t4, t5, vL = vT, vT + 1, vT + 2, vT + 3, vT + 4, vT + 5, vT + 6
        self.lane(vL)
        A(f"v_lshrrev_b32 {vr(t0)}, 4, {vr(vL)}")
        A(f"v_and_b32 {vr(t1)}, 15, {vr(vL)}")
        A(f"v_bfe_u32 {vr(t2)}, {vr(vL)}, 2, 2")
        A(f"v_and_b32 {vr(t3)}, 3, {vr(vL)}")
        A(f"v_lshl_add_u32 {vr(t4)}, {vr(t0)}, 3, {vr(t2)}")
        A(f"v_lshlrev_b32 {vr(t4)}, 8, {vr(t4)}")
        A(f"v_and_b32 {vr(t5)}, 1, {vr(t0)}")
        A(f"v_lshl_or_b32 {vr(t5)}, {vr(t5)}, 2, {vr(t2)}")
        A(f"v_lshl_or_b32 {vr(t4)}, {vr(t5)}, 5, {vr(t4)}")
        A(f"v_lshl_or_b32 {vr(vTR0)}, {vr(t3)}, 3, {vr(t4)}")
        A(f"s_lshr_b32 {sr(sT0)}, {sr(sW1024)}, 4")
        A(f"v_xor_b32 {vr(vTRw)}, {sr(sT0)}, {vr(vTR0)}")
        A(f"s_lshr_b32 {sr(sT1)}, {sr(sW)}, 1")
        A(f"s_lshl_b32 {sr(sT1)}, {sr(sT1)}, 13")
        A(f"v_lshrrev_b32 {vr(t4)}, 2, {vr(t1)}")
        A(f"v_lshl_or_b32 {vr(t4)}, {vr(t4)}, 3, {vr(t3)}")
        A(f"v_lshlrev_b32 {vr(t4)}, 8, {vr(t4)}")
        A(f"v_lshrrev_b32 {vr(t5)}, 1, {vr(t0)}")
        A(f"v_and_b32 {vr(vKb)}, 7, {vr(t1)}")
        A(f"v_xor_b32 {vr(t5)}, {vr(t5)}, {vr(vKb)}")
        A(f"v_lshl_or_b32 {vr(t4)}, {vr(t5)}, 5, {vr(t4)}")
        A(f"v_and_b32 {vr(t5)}, 1, {vr(t0)}")
        A(f"v_lshl_or_b32 {vr(t4)}, {vr(t5)}, 4, {vr(t4)}")
        A(f"s_and_b32 {sr(sT0)}, {sr(sW)}, 1")
        A(f"s_lshl_b32 {sr(sT0)}, {sr(sT0)}, 10")
        A(f"s_add_u32 {sr(sT0)}, {sr(sT0)}, {sr(sT1)}")
        A(f"v_add_u32 {vr(vKb)}, {sr(sT0)}, {vr(t4)}")
        A(f"v_mul_u32_u24 {vr(t4)}, {XROW}, {vr(t1)}")
        A(f"v_add_u32 {vr(t4)}, {XB}, {vr(t4)}")
        A(f"v_xor_b32 {vr(t5)}, {vr(t0)}, {vr(t1)}")
        A(f"v_lshlrev_b32 {vr(t5)}, 4, {vr(t5)}")
        for s in range(4):
            A(f"v_xor_b32 {vr(vXB+s)}, {s*64}, {vr(t5)}")
            A(f"v_add_u32 {vr(vXB+s)}, {vr(vXB+s)}, {vr(t4)}")
        A(f"v_lshrrev_b32 {vr(t5)}, 1, {vr(t0)}")
        A(f"s_lshr_b32 {sr(sT0)}, {sr(sW1024)}, 8")
        A(f"v_add_u32 {vr(t5)}, {sr(sT0)}, {vr(t5)}")
        A(f"v_xor_b32 {vr(t5)}, {vr(t5)}, {vr(t1)}")
        A(f"v_lshl_add_u32 {vr(vQW)}, {vr(t5)}, 4, {vr(t4)}")
        A(f"v_and_b32 {vr(t5)}, 1, {vr(t0)}")
        A(f"v_lshl_add_u32 {vr(vQW)}, {vr(t5)}, 3, {vr(vQW)}")
        A(f"s_lshr_b32 {sr(sT0)}, {sr(sW)}, 1")
        A(f"s_lshl_b32 {sr(sT0)}, {sr(sT0)}, 2")
        A(f"v_add_u32 {vr(t5)}, {sr(sT0)}, {vr(t0)}")
        A(f"v_xor_b32 {vr(t5)}, {vr(t5)}, {vr(t1)}")
        A(f"v_lshl_add_u32 {vr(vPW)}, {vr(t5)}, 4, {vr(t4)}")
        A(f"s_and_b32 {sr(sT0)}, {sr(sW)}, 1")
        A(f"s_lshl_b32 {sr(sT0)}, {sr(sT0)}, 3")
        A(f"v_add_u32 {vr(vPW)}, {sr(sT0)}, {vr(vPW)}")
        A(f"v_lshlrev_b32 {vr(vSTr)}, 5, {vr(t1)}")
        A(f"v_add_u32 {vr(vSTr)}, {ST}, {vr(vSTr)}")
        A(f"v_lshlrev_b32 {vr(t5)}, 1, {vr(t0)}")
        A(f"v_mov_b32 {vr(t4)}, 0x98")
        A(f"v_lshrrev_b32 {vr(t5)}, {vr(t5)}, {vr(t4)}")
        A(f"v_and_b32 {vr(t5)}, 3, {vr(t5)}")
        A(f"v_lshl_add_u32 {vr(vSTw)}, {vr(t5)}, 9, {vr(vSTr)}")
        A(f"s_lshl_b32 {sr(sT0)}, {sr(sW)}, 2")
        A(f"v_add_u32 {vr(vSTw)}, {sr(sT0)}, {vr(vSTw)}")

    def main_kernel(self):
        A, lab, c = self.A, self.lab, self.c
        opt = self.opt
        K1 = NAME + "_kernel"
        self.L += [f".globl {K1}", ".p2align 8", f".type {K1},@function"]
        lab(K1)
        if opt.get("prost"):
            A("s_memtime s[88:89]")
        A("s_cmp_ge_u32 s2, 256")
        A("s_cbranch_scc1 L_end")
        if opt.get("only"):
            A("s_bitcmp1_b32 s2, 7")
            A("s_cbranch_scc%d L_end" % (1 if opt["only"] == "B" else 0))
        if opt.get("dbg"):
            A("s_memrealtime s[76:77]")
            A("s_waitcnt lgkmcnt(0)")
            A("v_mov_b32 v23, s76")
            A("s_memtime s[76:77]")
            A("s_waitcnt lgkmcnt(0)")
            A("s_mov_b32 s78, s76")
        A(f"s_load_dwordx8 {sr(44,8)}, s[0:1], 40")
        A(f"s_load_dwordx2 {sr(52,2)}, s[0:1], 72")
        A(f"s_load_dwordx8 {sr(32,8)}, s[0:1], 0")
        A(f"s_load_dwordx2 {sr(40,2)}, s[0:1], 32")
        A(f"s_load_dwordx2 {sr(54,2)}, s[0:1], 96")
        if opt.get("stamps"):
            A(f"v_mov_b32 {vr(23)}, 0")
            A(f"s_mov_b32 s78, {-(opt.get('skip', 1) - 1)}")
        if opt.get("prost"):
            A("s_waitcnt lgkmcnt(0)")
            A("s_and_b32 s88, s88, 0xffffff")
            A(f"s_or_b32 s88, s88, {1 << 24}")
            A("v_writelane_b32 v23, s88, 0")
            A("s_mov_b32 s78, 1")
            self.stamp(15)
        vL = vT + 6
        A(f"v_lshrrev_b32 {vr(vT)}, 6, v0")
        A(f"v_and_b32 {vr(vL)}, 63, v0")
        A(f"v_readfirstlane_b32 {sr(sW)}, {vr(vT)}")
        A(f"s_and_b32 {sr(sG)}, s2, 7")
        A(f"s_lshr_b32 {sr(sT0)}, s2, 3")
        A(f"s_and_b32 {sr(sB)}, {sr(sT0)}, 15")
        A(f"s_lshr_b32 {sr(sRole)}, {sr(sT0)}, 4")
        A(f"s_and_b32 {sr(sOrd)}, {sr(sT0)}, {opt.get('ordmask', 1)}")
        A(f"s_cmp_lg_u32 {sr(sOrd)}, 0")
        A(f"s_cselect_b32 {sr(sOrd)}, 2, 1")
        A(f"s_mul_i32 {sr(sOrd)}, {sr(sOrd)}, {sr(sRole)}")
        A(f"s_and_b32 {sr(sHead)}, {sr(sT0)}, {16 | opt.get('upmask', 0)}")
        A(f"s_sub_u32 {sr(sHead)}, {sr(sHead)}, 1")
        A(f"s_cmp_lt_u32 {sr(sHead)}, 15")
        A(f"s_cselect_b32 {sr(sOrd)}, 3, {sr(sOrd)}")
        A(f"s_and_b32 {sr(sT1)}, {sr(sW)}, 3")
        A(f"s_lshl_b32 {sr(sW1024)}, {sr(sT1)}, 10")
        c("DMA lane offsets: row = 4(w&3) + (l>>4) (+16), 32-byte chunk XOR key(row)")
        t0, t1, t2, t3, t4, t5 = vT, vT + 1, vT + 2, vT + 3, vT + 4, vT + 5
        A(f"v_lshrrev_b32 {vr(t0)}, 4, {vr(vL)}")
        A(f"s_lshl_b32 {sr(sT0)}, {sr(sW)}, 1")
        A(f"s_and_b32 {sr(sT0)}, {sr(sT0)}, 4")
        A(f"v_or_b32 {vr(t1)}, {sr(sT0)}, {vr(t0)}")
        A(f"v_bfe_u32 {vr(t2)}, {vr(vL)}, 1, 3")
        A(f"v_xor_b32 {vr(t1)}, {vr(t1)}, {vr(t2)}")
        A(f"v_lshlrev_b32 {vr(t1)}, 5, {vr(t1)}")
        A(f"v_and_b32 {vr(t2)}, 1, {vr(vL)}")
        A(f"v_lshl_or_b32 {vr(vChunk)}, {vr(t2)}, 4, {vr(t1)}")
        A(f"s_lshl_b32 {sr(sT0)}, {sr(sT1)}, 2")
        A(f"v_add_u32 {vr(vRow)}, {sr(sT0)}, {vr(t0)}")
        A(f"v_lshl_add_u32 {vr(vCur[0])}, {vr(vRow)}, {ROWSH[T_WQ]}, {vr(vChunk)}")
        c("first B head: 4g for the A role, 4g+1 for the B role")
        A(f"s_lshl_b32 {sr(sT4)}, {sr(sG)}, 2")
        A(f"s_add_u32 {sr(sT4)}, {sr(sT4)}, 1")
        A(f"s_sub_u32 {sr(sT4)}, {sr(sT4)}, {sr(sRole)}")
        A(f"s_lshl_b32 {sr(sE)}, {sr(sT4)}, 8")
        A(f"s_getpc_b64 {sr(sT2,2)}")
        lab("L_pc0")
        A(f"s_lshl_b32 {sr(sT0)}, {sr(sOrd)}, 8")
        A(f"s_add_u32 {sr(sT0)}, {sr(sT0)}, L_table-L_pc0")
        A(f"v_lshl_add_u32 {vr(vTab)}, {vr(vL)}, 2, {sr(sT0)}")
        A(f"global_load_dword {vr(vTab)}, {vr(vTab)}, {sr(sT2,2)}")
        if opt.get("codepf", 1):
            c("waves 0-3 pull the code into L2: 64 KiB window, 512 bytes per wave and workgroup of the head group")
            self.is_loader("L_nocp")
            A(f"s_lshr_b32 {sr(sT0)}, s2, 3")
            A(f"s_lshl_b32 {sr(sT0)}, {sr(sT0)}, 2")
            A(f"s_add_u32 {sr(sT0)}, {sr(sT0)}, {sr(sW)}")
            A(f"s_lshl_b32 {sr(sT0)}, {sr(sT0)}, 9")
            A(f"v_lshl_add_u32 {vr(vT)}, {vr(vL)}, 3, {sr(sT0)}")
            A(f"v_min_u32 {vr(vT)}, L_table-L_pc0, {vr(vT)}")
            A(f"global_load_dwordx2 v[156:157], {vr(vT)}, {sr(sT2,2)}")
            lab("L_nocp")
        self.x_setup(vY, sHalf[0], sHalf[1])
        if opt.get("prost"):
            self.stamp(15)
        A(f"s_bitcmp1_b32 {sr(sW)}, 2")
        A("s_waitcnt lgkmcnt(0)")
        self.srd(SRD_AUX, sBx, 786432)
        self.srd(SRD_WQW, sAwq, 4194304)
        self.srd(SRD_WQ, sBwq, 4194304)
        self.srd(SRD_CUR[0], sBwq, 4194304)
        self.srd(SRD_CUR[1], sBwq, 4194304)
        A("s_cbranch_scc1 L_pro_ld")
        A(f"s_cmp_eq_u32 {sr(sRole)}, 1")
        A("s_cbranch_scc1 L_pro_done")
        self.weight_prefetch([(sBwq, True, 1)])
        A("s_branch L_pro_done")
        lab("L_pro_ld")
        A(f"s_cmp_eq_u32 {sr(sOrd)}, 1")
        A(f"s_cselect_b64 {sr(SRD_AUX,2)}, {sr(sAx,2)}, {sr(sBx,2)}")
        A(f"s_cselect_b64 {sr(SRD_CUR[0],2)}, {sr(sAwq,2)}, {sr(sBwq,2)}")
        A(f"s_mov_b32 {sr(sStr[1])}, {32*8192}")
        A(f"s_cselect_b32 {sr(sStr[0])}, 256, {sr(sStr[1])}")
        A(f"s_cselect_b32 {sr(sStr[1])}, {sr(sStr[1])}, {128*8192}")
        A(f"s_cselect_b32 {sr(sI[0])}, {sr(sB)}, 0")
        A(f"s_lshr_b32 {sr(sOff2)}, {sr(sI[0])}, 2")
        A(f"s_mov_b32 {sr(sTy[0])}, {sr(sE)}")
        self.x_rot(vY, 0)
        self.first_tile(0)
        self.x_rot(vY, 1)
        if opt.get("prost"):
            self.stamp(15)
        lab("L_pro_done")
        self.frag_addrs()
        A(f"s_cmp_eq_u32 {sr(sOrd)}, 1")
        for d, pa, pb, za, zb in ((SRD_K, sAk, sBk, 16777216, 67108864), (SRD_V, sAv, sBv, 16777216, 67108864), (SRD_WO, sAwo, sBwo, 4194304, 4194304)):
            A(f"s_cselect_b64 {sr(d,2)}, {sr(pa,2)}, {sr(pb,2)}")
            A(f"s_mov_b32 {sr(d+2)}, {zb}")
            if za != zb:
                A(f"s_cselect_b32 {sr(d+2)}, {za}, {sr(d+2)}")
            A(f"s_mov_b32 {sr(d+3)}, 0x20000")
        c("tile table: entry = constant + base selected by bits 4:3 (Wq head, B K/V unit, Wo head, A K/V unit)")
        bq, bkv, bo, bka = sT0, sT1, sT2, sT3
        A(f"s_lshl_b32 {sr(bq)}, {sr(sT4)}, 8")
        A(f"s_lshl_b32 {sr(bkv)}, {sr(sB)}, 5")
        A(f"s_add_u32 {sr(bkv)}, {sr(bkv)}, {sr(sT4)}")
        A(f"s_lshl_b32 {sr(bkv)}, {sr(bkv)}, 17")
        A(f"s_lshl_b32 {sr(bo)}, {sr(sT4)}, 17")
        A(f"s_lshl_b32 {sr(bka)}, {sr(sB)}, 3")
        A(f"s_add_u32 {sr(bka)}, {sr(bka)}, {sr(sG)}")
        A(f"s_lshl_b32 {sr(bka)}, {sr(bka)}, 17")
        A(f"s_and_b32 {sr(sT5)}, {sr(sB)}, 14")
        A(f"s_lshl_b32 {sr(sT5)}, {sr(sT5)}, 3")
        A(f"s_add_u32 {sr(sT5)}, {sr(sT5)}, {sr(sG)}")
        A(f"s_lshl_b32 {sr(sT5)}, {sr(sT5)}, 3")
        A(f"s_and_b32 {sr(sHead)}, {sr(sB)}, 1")
        A(f"s_sub_u32 {sr(sT5)}, {sr(sT5)}, {sr(sHead)}")
        A(f"s_add_u32 {sr(sT5)}, {sr(sT5)}, 1")
        A(f"s_lshl_b32 {sr(sT5)}, {sr(sT5)}, 16")
        A(f"s_cmp_eq_u32 {sr(sRole)}, 1")
        A(f"s_cselect_b32 {sr(bka)}, {sr(bka)}, {sr(sT5)}")
        A(f"s_cselect_b32 {sr(sHead)}, 1, 3")
        A(f"v_mov_b32 {vr(vT+1)}, {sr(bq)}")
        self.is_loader("L_tabw")
        if self.fuse:
            self.srd(SRD_CUR[1], sWs, 268435456)
            self.lane(vT + 3)
            A(f"v_lshlrev_b32 {vr(vT+3)}, 2, {vr(vT+3)}")
            A(f"s_lshl_b32 {sr(sT5)}, {sr(sB)}, 8")
            A(f"s_add_u32 {sr(sT5)}, {sr(sT5)}, {WS_FLAGS}")
            A(f"s_mov_b32 m0, {ENTRY}")
            A(f"s_cmp_eq_u32 {sr(sW)}, 3")
            A("s_cbranch_scc0 L_tabw0")
            A(f"buffer_load_dword {vr(vT+3)}, {sr(SRD_CUR[1],4)}, {sr(sT5)} offen sc1 lds")
            lab("L_tabw0")
        A("s_waitcnt vmcnt(0)")
        lab("L_tabw")
        A("s_waitcnt vmcnt(14)")
        A(f"v_bfe_u32 {vr(vT)}, {vr(vTab)}, 3, 2")
        for k, base in ((1, bkv), (2, bo), (3, bka)):
            A(f"v_cmp_eq_u32 vcc, {k}, {vr(vT)}")
            A(f"v_mov_b32 {vr(vT+2)}, {sr(base)}")
            A("s_nop 0")
            A(f"v_cndmask_b32 {vr(vT+1)}, {vr(vT+1)}, {vr(vT+2)}, vcc")
        A(f"s_lshl_b32 {sr(sT5)}, {sr(sB)}, 18")
        A(f"v_and_b32 {vr(vT)}, 7, {vr(vTab)}")
        A(f"v_cmp_eq_u32 vcc, {T_WQW}, {vr(vT)}")
        A(f"v_add_u32 {vr(vT+2)}, {sr(sT5)}, {vr(vTab)}")
        A(f"v_and_b32 {vr(vT+2)}, 0x3fffff, {vr(vT+2)}")
        A(f"v_cndmask_b32 {vr(vTab)}, {vr(vTab)}, {vr(vT+2)}, vcc")
        A(f"v_add_u32 {vr(vTab)}, {vr(vTab)}, {vr(vT+1)}")
        A(f"s_mov_b32 {sr(sIdx)}, 3")
        A(f"s_mov_b32 {sr(sC)}, 0")
        A(f"v_readlane_b32 {sr(sE)}, {vr(vTab)}, 3")

        def const(ty, hh, t, a_unit=False):
            if ty == T_WQ:
                return t * 128 * 8192 + hh * 256 + ty
            if ty == T_WQW:
                return t * 32 * 8192 + ty
            if ty in (T_K, T_V):
                return hh * 131072 + t * 32768 + ty + (24 if a_unit else 8)
            return (hh * 128 + 32 * t) * 1024 + ty + 16

        tb = [const(T_WQ, 0, t) for t in range(4)] + [const(T_K, 0, t) for t in range(4)]
        tb += [const(T_WQ, hh, t) for hh in (1, 2) for t in range(4)]
        tb += [const(ty, 0, t) for ty in (T_V, T_WO) for t in range(4)]
        tb += [const(ty, hh, t) for hh in (1, 2) for ty in (T_K, T_V, T_WO) for t in range(4)]
        if opt.get("k0x", 0):
            for pos in (23, 35):
                tb[pos], tb[pos + 1] = tb[pos + 1], tb[pos]
        if opt.get("helpv", 0):
            tb += [32768 + T_AUX + 24, T_AUX + 24]
        ta = [const(T_WQW, 0, t) for t in range(16)]
        ta += [const(ty, 0, t, True) for t in range(4) for ty in (T_K, T_V)]
        ta += [const(T_WO, hh, t) for hh in range(4) for t in range(4)]
        ta += [const(ty, 0, t) for ty in (T_WQ, T_K, T_V, T_WO) for t in range(4)]
        tc = ta[40:] + ta[:40]
        td = tb[:4] + tb[8:16] + tb[4:8] + tb[16:]
        self.table = sum((t + [NULL_OFF] * (64 - len(t)) for t in (tb, ta, tc, td)), [])
        A(f"s_mov_b32 {sr(sScale)}, {f32(math.log2(math.e) / math.sqrt(128.0))}")
        A(f"s_mov_b32 {sr(sThr)}, 0x41000000")
        A(f"s_mov_b32 {sr(sZero)}, 1")
        A(f"v_mov_b32 {vr(vT)}, {RELAY}")
        A(f"v_mov_b64 {vr(vT+2,2)}, 0")
        A(f"ds_write_b64 {vr(vT)}, {vr(vT+2,2)}")
        self.stamp(0)

        if opt.get("dmaonly"):
            self.dma_only()
        A(f"s_mov_b32 {sr(sHook)}, 0")
        A(f"s_cmp_eq_u32 {sr(sOrd)}, 1")
        A("s_cbranch_scc1 L_apath")
        lab("L_q0")
        c("Q projection of the first B head (scaled by log2(e)/sqrt(128))")
        A(f"s_cmp_eq_u32 {sr(sOrd)}, 0")
        A(f"s_cselect_b32 {sr(sXlive)}, 1, 0")
        A(f"s_cmp_eq_u32 {sr(sOrd)}, 3")
        A(f"s_cselect_b32 {sr(sLate)}, 0, 2")
        A(f"s_call_b64 {sr(LINK_S,2)}, L_qproj")
        def q_write(src, blk):
            A(f"v_xor_b32 {vr(vT+6)}, 32, {vr(vQW)}")
            for m in range(2):
                for n in range(3):
                    A(f"ds_write_b64 {vr(vT+6 if m else vQW)}, {vr(src+(m*3+n)*2,2)} offset:{n*XN+blk*BLK}")

        self.is_loader("L_q0ld")
        q_write(vAcc, 4)
        allpf = {"q0": (sBwq, True, 0), "q2": (sBwq, True, 2), "q3": (sBwq, True, 3)}
        allpf.update({f"b{h}": (sBwo, False, h) for h in range(4)})
        allpf.update({f"a{h}": (sAwo, False, h) for h in range(4)})
        pick = lambda key, dflt: [allpf[x] for x in opt.get(key, dflt).split("+") if x]
        self.pf_a = pick("pfa", "q0+b2+b3")
        A(f"s_cmp_eq_u32 {sr(sOrd)}, 1")
        A("s_cbranch_scc1 L_q0done")
        A(f"s_cmp_eq_u32 {sr(sOrd)}, 3")
        A("s_cbranch_scc1 L_q0done")
        A(f"s_cmp_eq_u32 {sr(sOrd)}, 2")
        A("s_cbranch_scc1 L_pfc")
        self.weight_prefetch(pick("pfb", "q2+q3+b0+b1"), half=opt.get('upmask', 0) == 1)
        A("s_branch L_q0done")
        lab("L_pfc")
        self.weight_prefetch(pick("pfc", "a0+a1+a2+a3"), half=True)
        A("s_branch L_q0done")
        lab("L_q0ld")
        self.frag_addrs()
        lab("L_q0done")
        A(f"s_cmp_eq_u32 {sr(sOrd)}, 3")
        A("s_cbranch_scc0 L_q0end")
        for k in range(2):
            A(f"s_mov_b32 {sr(sLate)}, {2*k}")
            A(f"s_call_b64 {sr(LINK_S,2)}, L_qproj")
            for r in range(0, 12, 2):
                A(f"v_mov_b64 {vr((vY + 4 if k else vQs)+r,2)}, {vr(vAcc+r,2)}")
        A(f"s_mov_b32 {sr(sXlive)}, 2")
        lab("L_q0end")
        self.stamp(1)
        A("s_branch L_bpath")
        lab("L_apath")
        c("GQA group: four query heads sharing one K/V")
        A(f"s_mov_b32 {sr(sHook)}, 0")
        A(f"s_mov_b32 {sr(sBlk)}, {sr(sB)}")
        A(f"s_mov_b32 {sr(sBlkEnd)}, {3*BLK}")
        A(f"s_mov_b32 {sr(sLate)}, 3")
        A(f"s_call_b64 {sr(LINK_S,2)}, L_wide")
        c("wave c < 4 holds Q of head c; x is dead after the drain barrier")
        self.is_loader("L_qa_ld")
        A("s_barrier")
        A(f"s_mul_i32 {sr(sT0)}, {sr(sW)}, {BLK}")
        self.act_write_addr(sT0, None)
        A(f"v_mov_b32 {vr(vT+4)}, {sr(sScale)}")

        def qpack(jp):
            g = []
            for j in (2 * jp, 2 * jp + 1):
                g.append([f"v_xor_b32 {vr(vT+2+j%2)}, {j*32}, {vr(vT+1)}"])
                for n in range(3):
                    y = vY + (j * 3 + n) * 4
                    g += [[self.pkmul(y, vT + 4)], [self.pkmul(y + 2, vT + 4)],
                          [f"v_cvt_pk_bf16_f32 {vr(y)}, {vr(y)}, {vr(y+1)}"], [f"v_cvt_pk_bf16_f32 {vr(y+1)}, {vr(y+2)}, {vr(y+3)}"],
                          [f"ds_write_b64 {vr(vT+2+j%2)}, {vr(y,2)} offset:{n*XN}"]]
            return g

        self.wide_drain(qpack)
        A("s_branch L_qa_done")
        lab("L_qa_ld")
        self.head(8)
        for k in range(4):
            self.dma(k, 0, True, guard=False)
        lab("L_qa_done")
        self.stamp(7)
        c("wave = (head w>>1, key half w&1); O slot j holds d tile j ^ 4(w&1)")
        A(f"s_and_b32 {sr(sT0)}, {sr(sW)}, 1")
        A(f"s_lshl_b32 {sr(sT2)}, {sr(sT0)}, 14")
        A(f"s_lshl_b32 {sr(sT3)}, {sr(sT0)}, 7")
        A(f"s_lshl_b32 {sr(sT0)}, {sr(sT0)}, 10")
        A(f"s_lshr_b32 {sr(sT1)}, {sr(sW)}, 1")
        A(f"s_mul_i32 {sr(sBlk)}, {sr(sT1)}, {BLK}")
        A(f"s_lshl_b32 {sr(sT1)}, {sr(sT1)}, 13")
        A(f"s_add_u32 {sr(sT0)}, {sr(sT0)}, {sr(sT1)}")
        A(f"s_sub_u32 {sr(sT0)}, {sr(sT2)}, {sr(sT0)}")
        A(f"v_add_u32 {vr(vKa)}, {sr(sT0)}, {vr(vKb)}")
        A(f"v_xor_b32 {vr(vTRa)}, {sr(sT3)}, {vr(vTR0)}")
        A(f"v_add_u32 {vr(vTRa)}, {sr(sT2)}, {vr(vTRa)}")
        c("tiles alternate over four slots: the three ring slots and the activation region")
        sKs, sVs, sXa, sXb, sX, sEv = sQ[0], sQ[1], sQ[2], sQ[3], [sT1, sT2], sT0
        A(f"s_mov_b32 {sr(sKs)}, {sr(sC)}")
        self.weave([], self.rot())
        A(f"s_mov_b32 {sr(sVs)}, {sr(sC)}")
        self.weave([], self.rot())
        A(f"s_xor_b32 {sr(sXa)}, {sr(sKs)}, {sr(sC)}")
        A(f"s_xor_b32 {sr(sXb)}, {sr(sVs)}, {XB}")
        A(f"v_add_u32 {vr(vT)}, {sr(sKs)}, {vr(vKa)}")
        for s in range(1, 4):
            A(f"v_xor_b32 {vr(vT+s)}, {s*64}, {vr(vT)}")
        c("load parameters: set pv carries V tiles, set pk carries K tiles (waves 0-3: pv = 0, waves 4-7: pv = 1)")
        A(f"s_lshl_b32 {sr(sT3)}, {sr(sB)}, 3")
        A(f"s_add_u32 {sr(sT3)}, {sr(sT3)}, {sr(sG)}")
        A(f"s_lshl_b32 {sr(sT3)}, {sr(sT3)}, 17")
        A(f"s_lshl_b32 {sr(sT4)}, {sr(sW)}, 10")
        A(f"s_and_b32 {sr(sT5)}, {sr(sT4)}, 4096")
        A(f"s_add_u32 {sr(sT3)}, {sr(sT3)}, {sr(sT5)}")
        A(f"s_add_u32 {sr(sT5)}, {sr(sVs)}, {sr(sT4)}")
        A(f"s_add_u32 {sr(sT4)}, {sr(sC)}, {sr(sT4)}")
        self.weave([], self.rot())
        A(f"s_add_u32 {sr(sP0)}, {sr(sT3)}, {32768-8192}")
        A(f"s_add_u32 {sr(sP1)}, {sr(sT3)}, {65536-8192}")
        A(f"s_bitcmp1_b32 {sr(sW)}, 2")
        for q in range(2):
            lo = ("%s, %s" if q else "%s, %s")
            def sel(y, x):
                return (y, x) if q else (x, y)
            A(f"s_cselect_b64 {sr(SRD_CUR[q],2)}, " + ", ".join(sel(sr(SRD_V, 2), sr(SRD_K, 2))))
            A(f"s_mov_b32 {sr(SRD_CUR[q]+2)}, 16777216")
            A(f"s_cselect_b32 {sr(sOff[q])}, " + ", ".join(sel(sr(sP0), sr(sP1))))
            A(f"s_cselect_b32 {sr(sI[q])}, " + ", ".join(sel(sr(sT5), sr(sT4))))
            A(f"s_cselect_b32 {sr(sX[q])}, " + ", ".join(sel(sr(sXb), sr(sXa))))
            A(f"s_mov_b32 {sr(sStr[q])}, 8192")
            A(f"s_mov_b32 {sr(sTy[q])}, {T_K}")
            A(f"v_lshl_add_u32 {vr(vCur[q])}, {vr(vRow)}, 8, {vr(vChunk)}")
        A(f"s_mov_b32 {sr(sEv)}, 0")
        for n in range(3):
            self.zero(vNm[n], 4)
        A(f"s_mov_b32 {sr(sFix)}, 0")
        A(f"s_mov_b32 {sr(sIter)}, 4")

        def sa(sg, n, t):
            return vS + ((sg * 3 + n) * 2 + t) * 4

        def fa(f):
            return vAfA + (f % NFA) * 4

        def kread(f):
            j, s = f // 4, f % 4
            A(f"ds_read_b128 {vr(fa(f),4)}, {vr(vT+s)} offset:{(j//2)*8192+(j%2)*1024}")

        def sm_check(sg, lr, ln):
            f = [[x] for x in self.maxn(vDl, [sa(sg, 0, 0) + r for r in range(24)])]
            return f + [[f"v_cmp_lt_f32 vcc, {sr(sThr)}, {vr(vDl)}", f"s_cbranch_vccnz {lr}", ln + ":"]]

        def sm_exp(sg):
            f = []
            for n in range(3):
                b = sa(sg, n, 0)
                for r in range(8):
                    f.append([f"v_exp_f32 {vr(b+r)}, {vr(b+r)}"])
                    if r in (3, 5, 7):
                        f.append([f"v_cvt_pk_bf16_f32 {vr(b+(r-3)//2)}, {vr(b+r-3)}, {vr(b+r-2)}"])
                f.append(["s_nop 0", f"v_cvt_pk_bf16_f32 {vr(b+3)}, {vr(b+6)}, {vr(b+7)}"] if n == 2 else
                         [f"v_exp_f32 {vr(b+8)}, {vr(b+8)}", f"v_cvt_pk_bf16_f32 {vr(b+3)}, {vr(b+6)}, {vr(b+7)}"])
            out, skip = [], set()
            for n in (1, 2):
                skip.add(f"v_exp_f32 {vr(sa(sg,n,0))}, {vr(sa(sg,n,0))}")
            for g in f:
                if len(g) == 1 and g[0] in skip:
                    continue
                out.append(g)
            return out

        def aprep(q):
            l1, l2 = self.new("wo"), self.new("wb")
            self.cold += [l1 + ":",
                          f"  s_mov_b64 {sr(SRD_CUR[q],2)}, {sr(SRD_WO,2)}", f"  s_mov_b32 {sr(SRD_CUR[q]+2)}, 4194304",
                          f"  s_mov_b32 {sr(sStr[q])}, 256", f"  s_mov_b32 {sr(sTy[q])}, {T_WO}",
                          f"  v_lshl_add_u32 {vr(vCur[q])}, {vr(vRow)}, 10, {vr(vChunk)}",
                          f"  s_lshl_b32 {sr(sOff[q])}, {sr(sG)}, 4", f"  s_add_u32 {sr(sOff[q])}, {sr(sOff[q])}, {sr(sEv)}",
                          f"  s_sub_u32 {sr(sOff[q])}, {sr(sOff[q])}, 6", f"  s_lshl_b32 {sr(sOff[q])}, {sr(sOff[q])}, 15",
                          f"  s_and_b32 {sr(sP0)}, {sr(sW)}, 4", f"  s_lshl_b32 {sr(sP0)}, {sr(sP0)}, 12",
                          f"  s_add_u32 {sr(sOff[q])}, {sr(sOff[q])}, {sr(sP0)}",
                          f"  s_branch {l2}"]
            return [[f"s_xor_b32 {sr(sI[q])}, {sr(sI[q])}, {sr(sX[q])}"],
                    [f"s_add_u32 {sr(sEv)}, {sr(sEv)}, 1", f"s_cmp_ge_u32 {sr(sEv)}, 6", f"s_cbranch_scc1 {l1}", l2 + ":"]]

        def kstep(first):
            u = "f" if first else "l"
            self.early_head(8 if first else 4, lambda: [kread(f) for f in range(NFA)],
                            (lambda: self.load_bfrags_dyn(vLq[0], QA)) if first else None)
            self.ks(2)
            prim = []
            for f in range(16):
                j, s = f // 4, f % 4
                if s == 0:
                    prim.append(self.D1(j, 1, first))
                if f % 2 == 0:
                    prim.append(("w", [f"  s_waitcnt lgkmcnt({max(0, min(f + NFA, 16) - (f + 2))})"]))
                for n in range(3):
                    prim.append(self.M(sa(j // 2, n, j % 2), fa(f), QA[n * 4 + s], vNm[n] if s == 0 else None))
                if f + NFA < 16:
                    prim.append(("r", self.cap(kread, f + NFA)))
                if f == 7:
                    half = len(prim)
            zf = []
            if first:
                zf = [[f"v_mov_b32 {vr(vOne+k)}, 0x3f803f80"] for k in range(4)]
            self.weave(prim[:half], aprep(0) + [[f"s_xor_b32 {sr(sKs)}, {sr(sKs)}, {sr(sXa)}"]] + zf, per=1)
            self.ks()
            if opt.get("prio", 1) == 1:
                A("s_setprio 1")
            fill = [[f"s_branch L_r0first", "L_n0f:"]] if first else sm_check(0, "L_r0", "L_n0l")
            fill += sm_exp(0)
            self.weave(prim[half:], fill, per=opt.get('kper', 3), start=10)
            self.ks()
            A(f"s_cmp_eq_u32 {sr(sFix)}, 0")
            A(f"v_add_u32 {vr(vT)}, {sr(sVs)}, {vr(vTRa)}")
            A("s_nop 5")
            A(f"s_cbranch_scc0 L_r0b{u}")
            lab(f"L_n0b{u}")
            self.weave([], sm_check(1, f"L_r1{u}", f"L_n1{u}"))
            self.ks(13)

        def va(mt):
            return vT if mt == 0 else sa(0, (mt - 1) // 4, 0) + 4 + (mt - 1) % 4

        def vread(q):
            sg, mt = q // 8, q % 8
            if mt and not sg:
                A(f"v_xor_b32 {vr(va(mt))}, {mt*32}, {vr(vT)}")
            self.tr_pair(fa(q), va(mt), sg * 8192)

        c("waves 4-7 run one interval behind waves 0-3")
        A(f"s_bitcmp1_b32 {sr(sW)}, 2")
        A("s_cbranch_scc0 L_att0")
        if opt.get("prio", 1) == 2:
            A("s_setprio 1")
        self.weave([], aprep(1))
        self.load_bfrags_dyn(vLq[0], QA)
        lab("L_att0")
        def vstep(first):
            self.early_head(4, lambda: [vread(q) for q in range(NFA)])
            self.ks(4)
            prim = []
            for q in range(16):
                sg, mt = q // 8, q % 8
                z = 0 if (first and sg == 0) else None
                if q % 2 == 0 and q < 8:
                    prim.append(self.D1(q // 2, 0))
                if mt == 0:
                    for n in range(3):
                        prim.append(self.M(vLq[n], vOne, sa(sg, n, 0), z))
                if q % 2 == 0:
                    prim.append(("w", [f"  s_waitcnt lgkmcnt({2 * max(0, min(q + NFA, 16) - (q + 2))})"]))
                for n in range(3):
                    prim.append(self.M(vO + (mt * 3 + n) * 4, fa(q), sa(sg, n, 0), z))
                if q + NFA < 16:
                    prim.append(("r", self.cap(vread, q + NFA)))
                    lastr = len(prim)
                if q == 7:
                    half = len(prim)
            self.weave(prim[:half], sm_exp(1), per=opt.get('vper', 2))
            if opt.get("prio", 1) == 1:
                A("s_setprio 0")
            self.ks()
            if first:
                A("s_nop 1")
            else:
                A(f"s_cmp_eq_u32 {sr(sIter)}, 1")
                A("s_cbranch_scc1 L_attlast")
            fill = aprep(1) + [[f"s_xor_b32 {sr(sVs)}, {sr(sVs)}, {sr(sXb)}"]]
            fill.append((lastr - half, [f"v_add_u32 {vr(vT)}, {sr(sKs)}, {vr(vKa)}"]))
            for s in range(1, 4):
                fill.append([f"v_xor_b32 {vr(vT+s)}, {s*64}, {vr(vT)}"])
            self.weave(prim[half:], fill, per=1)
            self.stamp(13)
            return prim[half:]

        kstep(True)
        vstep(True)
        lab("L_attA")
        A(f"s_sub_u32 {sr(sIter)}, {sr(sIter)}, 1")
        kstep(False)
        tail = vstep(False)
        A("s_branch L_attA")
        lab("L_attlast")
        self.weave(tail, aprep(1), per=1)
        self.is_loader("L_attdone")
        self.head(None)
        for k in range(4):
            self.L += self.D1(k, 1)[1]
        ka = [int(x) for x in str(opt.get("ka", "x")).replace("x", "")]
        kc = [int(x) for x in str(opt.get("kc", "x")).replace("x", "")]
        A(f"s_cmp_eq_u32 {sr(sOrd)}, 1")
        A("s_cbranch_scc0 L_nopfa")
        if self.pf_a:
            self.weight_prefetch(self.pf_a, half=True, dst=QA[0])
        if ka:
            self.k_prefetch(ka, QA[0])
        A("s_branch L_pfdone")
        lab("L_nopfa")
        if kc:
            self.k_prefetch(kc, QA[0])
        lab("L_pfdone")
        A(f"v_mov_b32 {vr(vNm[1]+1)}, {vr(vNm[0])}")
        self.frag_addrs()
        A("s_branch L_attdone2")
        lab("L_attdone")
        A(f"v_mov_b32 {vr(vNm[1]+1)}, {vr(vNm[0])}")
        lab("L_attdone2")
        nmr = [vNm[1] + 1, vNm[1], vNm[2]]
        A("s_setprio 0")
        A(f"s_cmp_eq_u32 {sr(sOrd)}, 1")
        A(f"s_cselect_b32 {sr(sIdx)}, {IDX_AFTER_ATT[0]}, {IDX_AFTER_ATT[1]}")
        A(f"v_readlane_b32 {sr(sE)}, {vr(vTab)}, {sr(sIdx)}")
        self.stamp(8)
        c("merge the two key halves of each head")
        self.srd(SRD_K, sBk, 67108864)
        self.srd(SRD_V, sBv, 67108864)
        self.lane(vT + 3)
        A(f"v_and_b32 {vr(vT)}, 15, {vr(vT+3)}")
        A(f"v_lshlrev_b32 {vr(vT)}, 3, {vr(vT)}")
        A(f"s_mul_i32 {sr(sT0)}, {sr(sW)}, 384")
        A(f"s_add_u32 {sr(sT0)}, {sr(sT0)}, {ST}")
        A(f"v_add_u32 {vr(vT+1)}, {sr(sT0)}, {vr(vT)}")
        A(f"s_xor_b32 {sr(sT1)}, {sr(sW)}, 1")
        A(f"s_mul_i32 {sr(sT0)}, {sr(sT1)}, 384")
        A(f"s_add_u32 {sr(sT0)}, {sr(sT0)}, {ST}")
        A(f"v_add_u32 {vr(vT+2)}, {sr(sT0)}, {vr(vT)}")
        for n in range(3):
            A(f"v_mov_b32 {vr(vLq[n]+1)}, {vr(nmr[n])}")
            A(f"ds_write_b64 {vr(vT+1)}, {vr(vLq[n],2)} offset:{n*128}")
        self.head(None)
        for n in range(3):
            A(f"ds_read_b64 {vr(vAfA+8+2*n,2)}, {vr(vT+2)} offset:{n*128}")
        A(f"s_mul_i32 {sr(sT0)}, {sr(sW)}, 6144")
        A(f"s_add_u32 {sr(sT0)}, {sr(sT0)}, {XB}")
        A(f"s_mul_i32 {sr(sT1)}, {sr(sT1)}, 6144")
        A(f"s_add_u32 {sr(sT1)}, {sr(sT1)}, {XB}")
        A(f"v_lshlrev_b32 {vr(vT)}, 4, {vr(vT+3)}")
        A(f"v_add_u32 {vr(vT+1)}, {sr(sT0)}, {vr(vT)}")
        A(f"v_add_u32 {vr(vT+2)}, {sr(sT1)}, {vr(vT)}")
        A("s_waitcnt lgkmcnt(0)")
        fr = [vAfA + 2 * n for n in range(3)]
        for n in range(3):
            lo, mo = vAfA + 8 + 2 * n, vAfA + 9 + 2 * n
            m, f, fo = vAfA + 16 + n, fr[n], fr[n] + 1
            A(f"v_min_f32 {vr(m)}, {vr(nmr[n])}, {vr(mo)}")
            A(f"v_sub_f32 {vr(f)}, {vr(m)}, {vr(nmr[n])}")
            A(f"v_sub_f32 {vr(fo)}, {vr(m)}, {vr(mo)}")
            A(f"v_exp_f32 {vr(f)}, {vr(f)}")
            A(f"v_exp_f32 {vr(fo)}, {vr(fo)}")
            A("s_nop 0")
            A(f"v_mul_f32 {vr(m)}, {vr(f)}, {vr(vLq[n])}")
            A(f"v_fma_f32 {vr(m)}, {vr(fo)}, {vr(lo)}, {vr(m)}")
            A(f"v_rcp_f32 {vr(m)}, {vr(m)}")
            A("s_nop 0")
            A(f"v_mul_f32 {vr(f)}, {vr(f)}, {vr(m)}")
        c("slots 4-7 go to the partner wave, scaled and packed to bf16")
        for k in range(24):
            o = vO + 48 + 2 * k
            A(self.pkmul(o, fr[(k // 2) % 3]))
        for k in range(24):
            o = vO + 48 + 2 * k
            A(f"v_cvt_pk_bf16_f32 {vr(vS+k)}, {vr(o)}, {vr(o+1)}")
            if k % 4 == 3:
                A(f"ds_write_b128 {vr(vT+1)}, {vr(vS+k-3,4)} offset:{(k//4)*1024}")
        A(f"s_and_b32 {sr(sT0)}, {sr(sW)}, 1")
        A(f"s_lshl_b32 {sr(sT0)}, {sr(sT0)}, 3")
        A(f"s_mov_b32 {sr(sT2)}, 0xffff0000")
        self.head(None)
        for k in range(6):
            A(f"ds_read_b128 {vr(vS+24+4*k,4)}, {vr(vT+2)} offset:{k*1024}")
        self.act_write_addr(sBlk, sT0)
        c("own share of the first Wo tiles must be in; the warm-up loads behind them need not")
        self.is_loader("L_mw0")
        A(f"s_cmp_eq_u32 {sr(sOrd)}, 1")
        A("s_cbranch_scc1 L_mw1")
        A(f"s_waitcnt vmcnt({8*len(kc)})")
        A("s_branch L_mw2")
        lab("L_mw1")
        A(f"s_waitcnt vmcnt({4*len(self.pf_a) + 8*len(ka)})")
        A("s_branch L_mw2")
        lab("L_mw0")
        A("s_waitcnt vmcnt(0)")
        lab("L_mw2")
        self.head(None)
        for jj in range(4):
            if jj:
                A(f"v_xor_b32 {vr(vT+3)}, {jj*32}, {vr(vT+1)}")
            for n in range(3):
                k = (jj * 3 + n) * 2
                for h in range(2):
                    x = vS + 2 * h
                    A(f"v_lshlrev_b32 {vr(x)}, 16, {vr(vS+24+k+h)}")
                    A(f"v_and_b32 {vr(x+1)}, {sr(sT2)}, {vr(vS+24+k+h)}")
                    A(f"v_pk_fma_f32 {vr(x,2)}, {vr(vO+2*(k+h),2)}, {vr(fr[n],2)}, {vr(x,2)} op_sel_hi:[1,0,1]")
                    A(f"v_cvt_pk_bf16_f32 {vr(vS+4+(k+h)%8)}, {vr(x)}, {vr(x+1)}")
                A(f"ds_write_b64 {vr(vT+3 if jj else vT+1)}, {vr(vS+4+k%8,2)} offset:{n*XN}")
        A(f"s_mov_b32 {sr(sZero)}, 1")
        c("the loaders stream the B-branch x into the blocks the projection has finished with")
        self.srd(SRD_AUX, sBx, 786432)
        self.is_loader("L_xs")
        A("s_branch L_xs2")
        lab("L_xs")
        self.x_setup(vY)
        lab("L_xs2")
        A(f"s_and_b32 {sr(sHook)}, {sr(sOrd)}, 1")
        A(f"s_mov_b32 {sr(sLate)}, {sr(sOrd)}")
        self.stamp(9)
        A(f"s_mov_b32 {sr(sBlk)}, 0")
        A(f"s_call_b64 {sr(LINK_S,2)}, L_wide")
        A(f"s_lshl_b32 {sr(sT0)}, {sr(sB)}, 3")
        A(f"s_add_u32 {sr(sT0)}, {sr(sT0)}, {sr(sG)}")
        A(f"s_mul_i32 {sr(sT0)}, {sr(sT0)}, {PART}")
        A(f"s_add_u32 {sr(sT0)}, {sr(sT0)}, {PART_A_BASE}")
        A(f"s_cmp_eq_u32 {sr(sOrd)}, 2")
        A("s_cbranch_scc1 L_last")
        self.is_loader("L_apk")
        A("s_barrier")
        A("s_waitcnt vmcnt(0)")
        self.pack_y(False, True)
        lab("L_apk")
        self.srd(SRD_WO, sBwo, 4194304)
        A(f"s_mov_b32 {sr(sZero)}, 1")
        self.stamp(10)
        A(f"s_mov_b32 {sr(sHook)}, 0")
        A("s_branch L_q0")
        lab("L_bpath")
        A(f"s_lshl_b32 {sr(sQKi)}, {sr(sOrd)}, 3")
        A(f"s_lshr_b32 {sr(sQKi)}, {hex(6 | 46 << 8 | 6 << 16 | 14 << 24)}, {sr(sQKi)}")
        A(f"s_and_b32 {sr(sQKi)}, {sr(sQKi)}, 0xff")
        A(f"s_mov_b32 {sr(sK0x)}, 0")
        A(f"s_mov_b32 {sr(sBlk)}, {4*BLK}")

        lab("L_head")
        c("scores of one B head; waves 0-3 join the loading here and first decode the pending tile")
        self.is_loader("L_qk_sync")
        A(f"s_mov_b32 {sr(sIdx)}, {sr(sQKi)}")
        A(f"v_readlane_b32 {sr(sE)}, {vr(vTab)}, {sr(sQKi)}")
        A(f"s_sub_u32 {sr(sI[0])}, {sr(sC)}, {TILE}")
        A(f"s_cselect_b32 {sr(sI[0])}, {(NSLOT-1)*TILE}, {sr(sI[0])}")
        A(f"s_add_u32 {sr(sI[0])}, {sr(sI[0])}, {sr(sW1024)}")
        self.weave([], self.prep(0, False))
        lab("L_qk_sync")
        A(f"s_add_u32 {sr(sQKi)}, {sr(sQKi)}, 12")
        A(f"s_max_u32 {sr(sQKi)}, {sr(sQKi)}, {27 if opt.get('k0x', 0) else 26}")
        A(f"s_cmp_eq_u32 {sr(sK0x)}, 0")
        A(f"s_cselect_b32 {sr(sT0)}, {sr(sC)}, {XK}")
        A(f"v_add_u32 {vr(vT)}, {sr(sT0)}, {vr(vKb)}")
        for s in range(1, 4):
            A(f"v_xor_b32 {vr(vT+s)}, {s*64}, {vr(vT)}")
        rf = [vQs + 12, vQs + 14, vQs + 16]
        sm = [vQs + 18, vQs + 20, vQs + 22]

        def st(t, n):
            return vS + (t * 3 + n) * 4

        def b_sub(t):
            return [[f"v_pk_add_f32 {vr(st(t,n)+r,2)}, {vr(st(t,n)+r,2)}, {vr(rf[n],2)} op_sel_hi:[1,0] neg_lo:[0,1] neg_hi:[0,1]"]
                    for n in range(3) for r in (0, 2)]

        def b_check(t):
            f = [[x] for x in self.maxn(vT + 5, [st(t, 0) + r for r in range(12)])]
            return f + [[f"v_cmp_lt_f32 vcc, {sr(sThr)}, {vr(vT+5)}", f"s_cbranch_vccnz L_rb{t}", f"L_nb{t}:"]]

        def b_exp(t):
            f = [[f"v_exp_f32 {vr(st(t,0)+r)}, {vr(st(t,0)+r)}"] for r in range(12)]
            for n in range(3):
                b = st(t, n)
                f.append([f"v_cvt_pk_bf16_f32 {vr(b)}, {vr(b)}, {vr(b+1)}"])
                f.append([f"v_cvt_pk_bf16_f32 {vr(b+1)}, {vr(b+2)}, {vr(b+3)}"])
            return f

        def p_write(t):
            return [f"ds_write_b64 {vr(vPW)}, {vr(st(t,n),2)} offset:{n*XN+t*BLK}" for n in range(3)]

        def p_early(t):
            l = self.new("pe")
            return [(99, [f"s_cmp_eq_u32 {sr(sXlive)}, 1", f"s_cbranch_scc1 {l}"] + p_write(t) + [l + ":"])]

        def b_max0():
            f = []
            for n in range(3):
                f += [[x] for x in self.maxn(sm[0] + n, [st(0, n) + r for r in range(4)])]
            f.append([x.strip() for x in self.cap(self.reduce4, sm[0], "v_max_f32")])
            f.append([f"ds_write_b32 {vr(vSTw)}, {vr(sm[0])}"])
            return f

        def b_ref0():
            f = [[f"v_max_f32 {vr(rf[n])}, {vr(rf[n])}, {vr(rf[n]+1)}" for n in range(3)]]
            for sw in ("v_permlane32_swap_b32", "v_permlane16_swap_b32"):
                f.append([f"v_mov_b32 {vr(rf[n]+1)}, {vr(rf[n])}" for n in range(3)] + ["s_nop 1"] +
                         [f"{sw} {vr(rf[n])}, {vr(rf[n]+1)}" for n in range(3)] + ["s_nop 1"] +
                         [f"v_max_f32 {vr(rf[n])}, {vr(rf[n])}, {vr(rf[n]+1)}" for n in range(3)])
            return f

        for T in range(4):
            p = T % 2
            if opt.get("qst"):
                self.stamp(18)
            if T < 2:
                l1, l2 = self.new("h"), self.new("h")
                A(f"s_cmp_eq_u32 {sr(sK0x)}, 0")
                A(f"s_cbranch_scc1 {l1}")
                A(f"s_waitcnt vmcnt({(16, 12)[T]}) lgkmcnt(0)")
                A(f"s_branch {l2}")
                lab(l1)
                A(f"s_waitcnt vmcnt({(8, 4)[T]}) lgkmcnt(0)")
                lab(l2)
                A("s_barrier")
                if opt.get("allsteps") == 1:
                    self.stamp(14)
            else:
                self.head(4)
            if T == 1:
                for n in range(3):
                    A(f"ds_read_b64 {vr(rf[n],2)}, {vr(vT+5)} offset:{n*512}")
            if T == 0:
                self.load_bfrags_dyn(vKf, QF)
            for s in range(4):
                A(f"ds_read_b128 {vr(vKf+4*s,4)}, {vr(vT+s)}")
            nxt = self.prep(1 - p)
            if T == 0:
                l = self.new("np")
                nxt = [[f"s_cmp_eq_u32 {sr(sK0x)}, 0", f"s_cbranch_scc0 {l}"]] + nxt + [[l + ":"]]
            if T < 3:
                nxt.append([f"v_add_u32 {vr(vT+4)}, {sr(sC)}, {vr(vKb)}"])
                nxt += [[f"v_xor_b32 {vr(vT+s)}, {s*64}, {vr(vT+4)}"] for s in range(4)]
            self.weave([], nxt)
            if opt.get("qst"):
                self.stamp(16)
            if T == 0:
                A(f"v_mov_b32 {vr(vT+5)}, {FLAG}")
                A(f"v_mov_b32 {vr(vT+6)}, 0")
            prim = []
            for s in range(4):
                prim.append(("w", [f"  s_waitcnt lgkmcnt({3-s})"]))
                for n in range(3):
                    prim.append(self.M(st(T, n), vKf + 4 * s, QF[n * 4 + s], 0 if s == 0 else None))
            fill = []
            if T == 1:
                fill = b_ref0() + b_sub(0) + b_exp(0) + p_early(0)
            if T >= 2:
                fill = b_sub(T - 1) + b_check(T - 1) + b_exp(T - 1) + p_early(T - 1)
            self.weave(prim, fill, per=3)
            if T == 0:
                A(f"ds_write_b32 {vr(vT+5)}, {vr(vT+6)}")
                self.lane(vT + 5)
                A(f"v_lshrrev_b32 {vr(vT+5)}, 4, {vr(vT+5)}")
                A(f"v_lshl_add_u32 {vr(vT+5)}, {vr(vT+5)}, 3, {vr(vSTr)}")
                A("s_nop 4")
                self.weave([], b_max0())
            if opt.get("qst"):
                self.stamp(17)
            if T < 3:
                self.split_dma(p, True if T < 2 else None, sK0x if T == 1 else None)
        self.stamp(2)
        c("last score tile; a wave that had to raise its reference left a flag")
        A(f"v_mov_b32 {vr(vT+4)}, {FLAG}")
        A("s_nop 6")
        self.split_dma(1, None)
        self.weave([], b_sub(3) + b_check(3) + b_exp(3))
        self.bsm = (rf, sm, st, p_write)
        A(f"s_cmp_gt_u32 {sr(sHead)}, 1")
        A(f"s_cselect_b32 {sr(sK0x)}, {3 if opt.get('k0x', 0) else 0}, 0")
        A(f"s_mov_b32 {sr(sHook)}, {sr(sK0x)}")
        A(f"s_mov_b32 {sr(sBlkEnd)}, 0")
        A(f"s_mov_b32 {sr(sFix)}, 0")
        A(f"s_cmp_eq_u32 {sr(sXlive)}, 1")
        A("s_cbranch_scc1 L_first")
        self.emit(p_write(3))
        A(f"s_mov_b32 {sr(sLate)}, 0")
        self.head(4)
        self.stamp(3)
        A(f"s_bitcmp1_b32 {sr(sW)}, 2")
        A("s_cbranch_scc0 L_pv_body")
        A(f"ds_read_b32 {vr(vT+5)}, {vr(vT+4)}")
        A("s_waitcnt lgkmcnt(0)")
        A(f"v_cmp_ne_u32 vcc, 0, {vr(vT+5)}")
        A("s_cbranch_vccz L_ld_ok")
        A(f"s_call_b64 {sr(LINK_S,2)}, L_bfix")
        lab("L_ld_ok")
        for k in range(4):
            self.dma(k, 0, True, False)
        A(f"s_mov_b32 {sr(sT4)}, 0")
        A(f"s_call_b64 {sr(LINK_S,2)}, L_load2")
        A("s_branch L_pv_done")
        lab("L_first")
        c("B role, first head: remaining Q projections while x is still live")
        self.head(None)
        A(f"ds_read_b32 {vr(vT+5)}, {vr(vT+4)}")
        A("s_waitcnt lgkmcnt(0)")
        A(f"v_cmp_ne_u32 vcc, 0, {vr(vT+5)}")
        A("s_cbranch_vccz L_f_ok")
        A(f"s_call_b64 {sr(LINK_S,2)}, L_bfix")
        lab("L_f_ok")
        A(f"s_mov_b32 {sr(sHook)}, 0")
        self.is_loader("L_f_ld")
        A("s_waitcnt vmcnt(0)")
        A("s_branch L_f_go")
        lab("L_f_ld")
        for k in range(4):
            self.dma(k, 0, False, guard=False)
        A("s_waitcnt vmcnt(12)")
        lab("L_f_go")
        for k in range(2):
            A(f"s_mov_b32 {sr(sLate)}, {k}")
            A(f"s_call_b64 {sr(LINK_S,2)}, L_qproj")
            l = self.new("q")
            self.is_loader(l)
            for r in range(0, 12, 2):
                A(f"v_mov_b64 {vr(vQs+12*k+r,2)}, {vr(vAcc+r,2)}")
            if k:
                A("s_barrier")
            lab(l)
        self.stamp(12)
        for t in range(4):
            self.emit(p_write(t))
        A(f"s_mov_b32 {sr(sFix)}, 1")
        A(f"s_mov_b32 {sr(sXlive)}, 0")
        A(f"s_mov_b32 {sr(sHook)}, {sr(sK0x)}")
        A(f"v_mov_b32 {vr(vT+4)}, {FLAG}")
        c("P x V")
        A(f"s_mov_b32 {sr(sLate)}, 0")
        self.is_loader("L_pv_ld")
        vOn = vY - 16
        pre1 = []
        pre1 += [f"s_cmp_eq_u32 {sr(sXlive)}, 2", "s_cbranch_scc0 L_noqm", f"s_mov_b32 {sr(sXlive)}, 0"]
        pre1 += [f"v_mov_b64 {vr(vQs+12+r,2)}, {vr(vY+4+r,2)}" for r in range(0, 12, 2)] + ["L_noqm:"]
        pre2 = [x.strip() for x in self.cap(q_write, vQs, 0)]
        ex2 = [[f"v_mov_b64 {vr(vQs+r,2)}, {vr(vQs+12+r,2)}"] for r in range(0, 12, 2)]
        chk = [f"  v_cmp_ne_u32 vcc, 0, {vr(vT+5)}", f"  s_cbranch_vccnz L_pv_fix", "L_pv_go:"]
        chk += [f"  v_mov_b32 {vr(vOn+k)}, 0x3f803f80" for k in range(4)] + ["  s_nop 1"]
        self.cold += ["L_pv_fix:", f"  s_cmp_eq_u32 {sr(sFix)}, 0", "  s_cbranch_scc0 L_pv_go",
                      f"  s_call_b64 {sr(LINK_S,2)}, L_bfix", "  s_branch L_pv_body"]
        self.narrow(pre={0: [f"ds_read_b32 {vr(vT+5)}, {vr(vT+4)}"], 1: pre1, 2: pre2},
                    extra={2: ex2}, early=True, body="L_pv_body", check=chk, ones=vOn, vm1=0)
        mreg = [vOn + 4 + 4 * n for n in range(3)]
        A("s_nop 7")
        for n in range(3):
            A(f"v_rcp_f32 {vr(mreg[n])}, {vr(mreg[n])}")
        for k in range(6):
            a = vAcc + 4 * k
            A(self.pkmul(a, mreg[k % 3]))
            A(self.pkmul(a + 2, mreg[k % 3]))
            A(f"v_cvt_pk_bf16_f32 {vr(vAcc+2*k)}, {vr(a)}, {vr(a+1)}")
            A(f"v_cvt_pk_bf16_f32 {vr(vAcc+2*k+1)}, {vr(a+2)}, {vr(a+3)}")
        q_write(vAcc, 4)
        A("s_branch L_pv_done")
        lab("L_pv_ld")
        A(f"s_call_b64 {sr(LINK_S,2)}, L_load")
        lab("L_pv_done")
        self.stamp(4)
        c("output projection")
        self.srd(SRD_AUX, sBv, 67108864)
        A(f"s_mov_b32 {sr(sHook)}, 0")
        A(f"s_sub_u32 {sr(sHead)}, {sr(sHead)}, 1")
        A(f"s_mov_b32 {sr(sLate)}, 2")
        A(f"s_cmp_eq_u32 {sr(sOrd)}, 2")
        A("s_cbranch_scc0 L_ob")
        A(f"s_mov_b32 {sr(sLate)}, 1")
        A(f"s_mov_b32 {sr(sHook)}, 2")
        self.srd(SRD_K, sAk, 16777216)
        self.srd(SRD_V, sAv, 16777216)
        self.srd(SRD_AUX, sAx, 786432)
        lab("L_ob")
        A(f"s_mov_b32 {sr(sBlk)}, 16")
        A(f"s_call_b64 {sr(LINK_S,2)}, L_wide")
        self.stamp(5)
        A(f"s_mov_b32 {sr(sBlk)}, 0")
        A(f"s_cmp_eq_u32 {sr(sHead)}, 0")
        A("s_cbranch_scc1 L_bdone")
        self.is_loader("L_head")
        self.wide_drain()
        A("s_branch L_head")
        lab("L_bdone")
        c("store the B-branch partial")
        A(f"s_lshl_b32 {sr(sT0)}, {sr(sB)}, 4")
        A(f"s_lshl_b32 {sr(sT1)}, {sr(sRole)}, 3")
        A(f"s_add_u32 {sr(sT0)}, {sr(sT0)}, {sr(sT1)}")
        A(f"s_add_u32 {sr(sT0)}, {sr(sT0)}, {sr(sG)}")
        A(f"s_mul_i32 {sr(sT0)}, {sr(sT0)}, {PART}")
        A(f"s_cmp_eq_u32 {sr(sOrd)}, 2")
        A("s_cbranch_scc0 L_last")
        self.is_loader("L_bpk2")
        A("s_barrier")
        self.pack_y(False, True)
        lab("L_bpk2")
        self.srd(SRD_WO, sAwo, 4194304)
        A(f"s_mov_b32 {sr(sZero)}, 1")
        self.stamp(6)
        A("s_branch L_apath")
        lab("L_last")
        self.stamp(16)
        self.is_loader("L_bpk")
        self.pack_y(False, True)
        self.stamp(6)
        if self.fuse:
            self.publish()
        A("s_branch L_fin")
        lab("L_bpk")
        if self.fuse:
            c("waves 4-6 sum one 1 KiB block each of this workgroup's slice of the output")
            A(f"s_cmp_eq_u32 {sr(sW)}, 7")
            A("s_cbranch_scc1 L_fin")
            self.stamp(8)
            self.reduce_setup()
            A(f"s_lshl_b32 {sr(rKb)}, {sr(sRole)}, 3")
            A(f"s_add_u32 {sr(rKb)}, {sr(rKb)}, {sr(sG)}")
            A(f"s_mul_i32 {sr(rKb)}, {sr(rKb)}, 3")
            A(f"s_add_u32 {sr(rKb)}, {sr(rKb)}, {sr(sW)}")
            A(f"s_sub_u32 {sr(rKb)}, {sr(rKb)}, 4")
            A(f"s_cmp_eq_u32 {sr(sW)}, 4")
            A(f"s_cselect_b32 {sr(rMode)}, 0, 1")
            A(f"s_call_b64 {sr(LINK_S,2)}, L_reduce")
        lab("L_fin")
        if opt.get("dbg"):
            A("s_waitcnt vmcnt(0)")
            A("s_memrealtime s[76:77]")
            A("s_memtime s[68:69]")
            A("s_waitcnt lgkmcnt(0)")
            A("s_sub_u32 s68, s68, s78")
            A("v_mov_b32 v16, v23")
            A("v_mov_b32 v17, s76")
            A("v_mov_b32 v18, s68")
            A("s_getreg_b32 s69, hwreg(HW_REG_XCC_ID)")
            A("v_mov_b32 v19, s69")
            A("s_lshl_b32 s70, s2, 4")
            A("s_add_u32 s70, s70, 0x4000000")
            A("v_mov_b32 v21, s70")
            A(f"s_cmp_eq_u32 s3, {4 if self.fuse else 0}")
            A("s_cbranch_scc0 L_end")
            A("s_mov_b64 exec, 1")
            A("global_store_dwordx4 v21, v[16:19], s[54:55]")
        if opt.get("stamps"):
            A("s_waitcnt vmcnt(0)")
            self.stamp(11)
            self.srd(SRD_AUX, sWs, 268435456)
            A(f"s_lshl_b32 {sr(sT0)}, s2, 3")
            A(f"s_add_u32 {sr(sT0)}, {sr(sT0)}, {sr(sW)}")
            A(f"s_lshl_b32 {sr(sT0)}, {sr(sT0)}, 8")
            A(f"s_add_u32 {sr(sT0)}, {sr(sT0)}, {64*1024*1024}")
            self.lane(vT)
            A(f"v_lshlrev_b32 {vr(vT)}, 2, {vr(vT)}")
            A(f"buffer_store_dword {vr(23)}, {vr(vT)}, {sr(SRD_AUX,4)}, {sr(sT0)} offen")
        lab("L_end")
        A("s_endpgm")

        sc = vLq[0] + 1

        def sub_delta(sg):
            for n in range(3):
                for r in range(8):
                    b = sa(sg, n, 0) + r
                    A(f"v_sub_f32 {vr(b)}, {vr(b)}, {vr(vDl+n)}")

        def allmax(sg):
            for n in range(3):
                self.emit(self.maxn(vDl + n, [sa(sg, n, 0) + r for r in range(8)]))
                for sw in ("v_permlane32_swap_b32", "v_permlane16_swap_b32"):
                    A(f"v_mov_b32 {vr(sc)}, {vr(vDl+n)}")
                    A("s_nop 1")
                    A(f"{sw} {vr(vDl+n)}, {vr(sc)}")
                    A("s_nop 1")
                    A(f"v_max_f32 {vr(vDl+n)}, {vr(vDl+n)}, {vr(sc)}")

        def scale_state(with_p0):
            for n in range(3):
                A(f"v_max_f32 {vr(vDl+n)}, 0, {vr(vDl+n)}")
                A(f"v_exp_f32 {vr(sc)}, -{vr(vDl+n)}")
                A("s_nop 0")
                A(f"v_mul_f32 {vr(vLq[n])}, {vr(vLq[n])}, {vr(sc)}")
                for mt in range(8):
                    for r in range(4):
                        o = vO + (mt * 3 + n) * 4 + r
                        A(f"v_mul_f32 {vr(o)}, {vr(o)}, {vr(sc)}")
                if with_p0:
                    b = sa(0, n, 0)
                    for r in range(4):
                        A(f"v_lshlrev_b32 {vr(b+4)}, 16, {vr(b+r)}")
                        A(f"v_and_b32 {vr(b+5)}, 0xffff0000, {vr(b+r)}")
                        A(f"v_mul_f32 {vr(b+4)}, {vr(b+4)}, {vr(sc)}")
                        A(f"v_mul_f32 {vr(b+5)}, {vr(b+5)}, {vr(sc)}")
                        A(f"v_cvt_pk_bf16_f32 {vr(b+r)}, {vr(b+4)}, {vr(b+5)}")

        lab("L_r0first")
        allmax(0)
        sub_delta(0)
        A(f"s_mov_b32 {sr(sFix)}, 1")
        A("s_branch L_n0f")
        lab("L_r0")
        allmax(0)
        scale_state(False)
        sub_delta(0)
        A(f"s_mov_b32 {sr(sFix)}, 1")
        A("s_branch L_n0l")
        for u in "fl":
            lab(f"L_r0b{u}")
            A(f"s_call_b64 {sr(LINK_S,2)}, L_fix1")
            A(f"s_branch L_n0b{u}")
            lab(f"L_r1{u}")
            A(f"s_call_b64 {sr(LINK_S,2)}, L_scale1")
            A(f"s_branch L_n1{u}")
        lab("L_scale1")
        allmax(1)
        scale_state(True)
        lab("L_fix1")
        sub_delta(1)
        for n in range(3):
            for r in range(4):
                A(f"v_sub_f32 {vr(vNm[n]+r)}, {vr(vNm[n]+r)}, {vr(vDl+n)}")
        A(f"s_mov_b32 {sr(sFix)}, 0")
        A(f"s_setpc_b64 {sr(LINK_S,2)}")

        self.L += self.cold
        rf, sm, st, p_write = self.bsm

        def repack(regs, f, lo, hi):
            for r in regs:
                A(f"v_lshlrev_b32 {vr(lo)}, 16, {vr(r)}")
                A(f"v_and_b32 {vr(hi)}, 0xffff0000, {vr(r)}")
                A(f"v_mul_f32 {vr(lo)}, {vr(lo)}, {vr(f)}")
                A(f"v_mul_f32 {vr(hi)}, {vr(hi)}, {vr(f)}")
                A(f"v_cvt_pk_bf16_f32 {vr(r)}, {vr(lo)}, {vr(hi)}")

        for t in range(1, 4):
            lab(f"L_rb{t}")
            d, f = vT + 5, vT + 6
            for n in range(3):
                self.emit(self.maxn(d, [st(t, n) + r for r in range(4)]))
                for sw in ("v_permlane32_swap_b32", "v_permlane16_swap_b32"):
                    A(f"v_mov_b32 {vr(f)}, {vr(d)}")
                    A("s_nop 1")
                    A(f"{sw} {vr(d)}, {vr(f)}")
                    A("s_nop 1")
                    A(f"v_max_f32 {vr(d)}, {vr(d)}, {vr(f)}")
                A(f"v_max_f32 {vr(d)}, 0, {vr(d)}")
                A(f"v_exp_f32 {vr(f)}, -{vr(d)}")
                A(f"v_add_f32 {vr(rf[n])}, {vr(rf[n])}, {vr(d)}")
                for r in range(4):
                    A(f"v_sub_f32 {vr(st(t,n)+r)}, {vr(st(t,n)+r)}, {vr(d)}")
                repack([st(u, n) + k for u in range(t) for k in range(2)], f, st(0, n) + 2, st(0, n) + 3)
            A(f"s_lshl_b32 {sr(sT0)}, {sr(sW)}, 2")
            A(f"v_add_u32 {vr(d)}, {sr(sT0)}, {vr(vSTr)}")
            for n in range(3):
                A(f"ds_write_b32 {vr(d)}, {vr(rf[n])} offset:{n*512}")
            A(f"v_mov_b32 {vr(d)}, {FLAG}")
            A(f"v_mov_b32 {vr(f)}, 1")
            A(f"ds_write_b32 {vr(d)}, {vr(f)}")
            A(f"s_branch L_nb{t}")
        lab("L_bfix")
        A("s_waitcnt lgkmcnt(0)")
        for n in range(3):
            A(f"ds_read_b128 {vr(vFr,4)}, {vr(vSTr)} offset:{n*512}")
            A(f"ds_read_b128 {vr(vFr+4,4)}, {vr(vSTr)} offset:{n*512+16}")
            A("s_waitcnt lgkmcnt(0)")
            self.emit(self.maxn(rf[n] + 1, [rf[n]] + [vFr + r for r in range(8)]))
            A(f"v_sub_f32 {vr(rf[n])}, {vr(rf[n])}, {vr(rf[n]+1)}")
            A(f"v_exp_f32 {vr(rf[n])}, {vr(rf[n])}")
            A("s_nop 0")
            repack([st(u, n) + k for u in range(4) for k in range(2)], rf[n], st(0, n) + 2, st(0, n) + 3)
        A(f"s_mov_b32 {sr(sFix)}, 1")
        A(f"s_cmp_eq_u32 {sr(sXlive)}, 1")
        A("s_cbranch_scc1 L_bfix_ret")
        A("s_barrier")
        for t in range(4):
            self.emit(p_write(t))
        self.head(None)
        lab("L_bfix_ret")
        A(f"s_setpc_b64 {sr(LINK_S,2)}")

        if self.fuse:
            self.reduce_sub()
        lab("L_qproj")
        A(f"s_mov_b32 {sr(sBlkEnd)}, 0")
        self.is_loader("L_load")
        self.narrow()
        A(f"v_mov_b32 {vr(vT)}, {sr(sScale)}")
        A("s_nop 6")
        for k in range(6):
            a = vAcc + 4 * k
            A(self.pkmul(a, vT))
            A(self.pkmul(a + 2, vT))
            A(f"v_cvt_pk_bf16_f32 {vr(vAcc+2*k)}, {vr(a)}, {vr(a+1)}")
            A(f"v_cvt_pk_bf16_f32 {vr(vAcc+2*k+1)}, {vr(a+2)}, {vr(a+3)}")
        A(f"s_setpc_b64 {sr(LINK_S,2)}")

        def af(j, p):
            return vFr + 4 * (j + 2 * p if j >= 6 else j)

        def wb(n, p):
            return vAcc + (p * 3 + n) * 4

        def wide_rd(j, p):
            a = vT + 1 + (j % 2)
            A(f"v_xor_b32 {vr(a)}, {j*32}, {vr(vT+3+3*p)}")
            self.tr_pair(af(j, p), a, 0)

        def wide_addr(t):
            return [[f"s_add_u32 {sr(sT0)}, {sr(sC)}, {sr(sT1)}"],
                    [f"v_add_u32 {vr(vT+3+3*(t%2))}, {sr(sT0)}, {vr(vTR0)}"],
                    [f"s_and_b32 {sr(sT3)}, {sr(sBlk)}, 3"], [f"s_lshl_b32 {sr(sT3)}, {sr(sT3)}, 6"],
                    [f"s_lshr_b32 {sr(sT5)}, {sr(sBlk)}, 2"], [f"s_mul_i32 {sr(sT5)}, {sr(sT5)}, {BLK}"],
                    [f"v_xor_b32 {vr(vT+5)}, {sr(sT3)}, {vr(vXB)}"], [f"v_add_u32 {vr(vT+5)}, {sr(sT5)}, {vr(vT+5)}"]]

        def wide_step(t, pending, reads=True, zero=False):
            p = t % 2
            if reads:
                self.head(None)
            else:
                A("s_waitcnt lgkmcnt(0)")
            prim = []
            for j in range(8):
                if pending and not opt.get("nomfma"):
                    for n in range(3):
                        prim.append(self.M(vY + (j * 3 + n) * 4, af(j, 1 - p), wb(n, 1 - p), 0 if zero else None))
                if reads and not opt.get("nords"):
                    if j == 0:
                        prim.append(("r", [f"  ds_read_b128 {vr(wb(n,p),4)}, {vr(vT+5)} offset:{n*XN}" for n in range(3)]))
                    if j < 6:
                        prim.append(("r", self.cap(wide_rd, j, p)))
                    if j < 2:
                        prim.append(("r", self.cap(wide_rd, 6 + j, p)))
            fill = []
            if reads:
                fill = self.rot()
                if t == 3:
                    fill.append([f"s_add_u32 {sr(sT4)}, {sr(sT4)}, {BLK}"])
                fill += [[f"s_add_u32 {sr(sBlk)}, {sr(sBlk)}, 1"], [f"s_and_b32 {sr(sBlk)}, {sr(sBlk)}, {sr(sT2)}"]]
                fill += wide_addr((t + 1) % 4)
            self.weave(prim, fill, per=1, start=5)

        lab("L_wide")
        self.is_loader("L_load")
        A(f"s_lshl_b32 {sr(sT1)}, {sr(sW)}, 13")
        A(f"s_mov_b32 {sr(sT4)}, 0")
        A(f"s_cmp_eq_u32 {sr(sBlkEnd)}, 0")
        A(f"s_cselect_b32 {sr(sT2)}, 31, 15")
        self.weave([], wide_addr(0))
        wide_step(0, False)
        A(f"s_cmp_eq_u32 {sr(sZero)}, 0")
        A("s_cbranch_scc1 L_wide_loop")
        A(f"s_mov_b32 {sr(sZero)}, 0")
        wide_step(1, True, zero=True)
        A("s_branch L_wide_s2")
        lab("L_wide_loop")
        wide_step(1, True)
        lab("L_wide_s2")
        wide_step(2, True)
        wide_step(3, True)
        A(f"s_cmp_gt_u32 {sr(sT4)}, {sr(sBlkEnd)}")
        A("s_cbranch_scc1 L_wide_drain")
        wide_step(0, True)
        A("s_branch L_wide_loop")
        lab("L_wide_drain")
        A("s_waitcnt lgkmcnt(0)")
        A(f"s_setpc_b64 {sr(LINK_S,2)}")

        def ld_step(p, vm, prep=True, xblk=None):
            self.head(vm)
            l1, l2 = self.new("kv"), self.new("dd")
            variants = [self.wf] if self.kvf == self.wf else [self.wf, self.kvf]
            if len(variants) > 1:
                A(f"s_bitcmp1_b32 6, {sr(sTy[p])}")
                A(f"s_cbranch_scc1 {l1}")
            for vi, fl in enumerate(variants):
                if vi:
                    A(f"s_branch {l2}")
                    lab(l1)
                prim = []
                for k in range(8):
                    ins = [f"  s_add_u32 m0, {sr(sI[p])}, {k*4096}"]
                    if k % 2:
                        ins.append(f"  s_add_u32 {sr(sOff2)}, {sr(sOff[p])}, {sr(sHalf[p])}")
                    elif k:
                        ins.append(f"  s_add_u32 {sr(sOff[p])}, {sr(sOff[p])}, {sr(sStr[p])}")
                    else:
                        ins.append("  s_nop 0")
                    ins.append(f"  buffer_load_dwordx4 {vr(vCur[p])}, {sr(SRD_CUR[p],4)}, {sr(sOff2 if k % 2 else sOff[p])} offen{fl} lds")
                    if vi and k == 6:
                        ins = self.ev() + ins
                    prim.append(("m", ins))
                self.weave(prim, self.prep(1 - p) if prep else [], per=2)
            lab(l2)
            if xblk is not None:
                l3 = self.new("hk")
                A(f"s_cmp_eq_u32 {sr(sHook)}, 1")
                A(f"s_cbranch_scc0 {l3}")
                self.x_block(vY, 0)
                A(f"s_add_u32 {sr(sT1)}, {sr(sT1)}, 256")
                A(f"s_add_u32 {sr(sT2)}, {sr(sT2)}, {BLK}")
                lab(l3)

        lab("L_load")
        A(f"s_mov_b32 {sr(sT4)}, 0")
        A(f"s_cmp_eq_u32 {sr(sIdx)}, 3")
        A("s_cbranch_scc0 L_load1")
        self.head(3)
        self.first_tile(1)
        self.x_rot(vY, 2)
        self.first_tile(2)
        self.x_rot(vY, 3)
        A("s_branch L_load2")
        lab("L_load1")
        self.head(16)
        lab("L_load2")
        self.weave([], self.prep(1))
        lab("L_ldloop")
        ld_step(1, 8)
        A(f"s_cmp_eq_u32 {sr(sHook)}, 2")
        A("s_cbranch_scc0 L_ldh2")
        self.x_setup(vY)
        self.x_rot(vY, 0, True)
        self.x_rot(vY, 1, True)
        lab("L_ldh2")
        ld_step(0, 8)
        A(f"s_cmp_eq_u32 {sr(sLate)}, 3")
        A("s_cbranch_scc0 L_ld3")
        A(f"s_cmp_eq_u32 {sr(sT4)}, {sr(sBlkEnd)}")
        A("s_cbranch_scc0 L_ld3")
        self.head(8)
        self.weave([], self.prep(0))
        A("s_barrier")
        for k in range(4):
            self.dma(k, 1, True, guard=False)
        A(f"s_setpc_b64 {sr(LINK_S,2)}")
        lab("L_ld3")
        ld_step(1, 8)
        A(f"s_add_u32 {sr(sT4)}, {sr(sT4)}, {BLK}")
        A(f"s_cmp_gt_u32 {sr(sT4)}, {sr(sBlkEnd)}")
        A("s_cbranch_scc1 L_lddrain")
        ld_step(0, 8, xblk=0)
        A("s_branch L_ldloop")
        lab("L_lddrain")
        A(f"s_cmp_eq_u32 {sr(sLate)}, 2")
        A("s_cbranch_scc1 L_ldret")
        ld_step(0, None, prep=False, xblk=3)
        A(f"s_cmp_eq_u32 {sr(sHook)}, 3")
        A("s_cbranch_scc0 L_ldh3")
        self.weave([], self.prep(1, False))
        A(f"s_add_u32 {sr(sI[1])}, {sr(sW1024)}, {XK}")
        for k in range(4):
            self.dma(k, 1, True, guard=False)
        lab("L_ldh3")
        A(f"s_cmp_eq_u32 {sr(sHook)}, 2")
        A("s_cbranch_scc0 L_ldret")
        self.x_rot(vY, 2, True)
        self.x_rot(vY, 3, True)
        lab("L_ldret")
        A(f"s_setpc_b64 {sr(LINK_S,2)}")

    def reduce_kernel(self):
        A, lab = self.A, self.lab
        K2 = "reduce_partials_kernel"
        self.L += [f".globl {K2}", ".p2align 8", f".type {K2},@function"]
        lab(K2)
        A("s_cmp_ge_u32 s2, 384")
        A("s_cbranch_scc1 L_r_end")
        A("s_load_dwordx2 s[4:5], s[0:1], 80")
        A("s_load_dwordx2 s[6:7], s[0:1], 96")
        if self.opt.get("dbg") == 2:
            A("s_cmp_eq_u32 s2, 0")
            A("s_cbranch_scc0 L_r_nod")
            A("s_load_dwordx2 s[26:27], s[0:1], 88")
            A("s_memrealtime s[28:29]")
            A("s_waitcnt lgkmcnt(0)")
            A("v_lshlrev_b32 v1, 4, v0")
            A("v_add_u32 v1, 0x4000000, v1")
            A("global_load_dwordx4 v[8:11], v1, s[6:7]")
            A("s_waitcnt vmcnt(0)")
            A("v_not_b32 v12, v8")
            A("v_sub_u32 v13, v9, v8")
            A("v_mov_b32 v14, 0")
            A("v_lshrrev_b32 v15, 7, v0")
            A("v_lshlrev_b32 v15, 3, v15")
            A("v_mov_b32 v7, s28")
            A("global_atomic_umax v14, v12, s[26:27]")
            A("global_atomic_umax v14, v9, s[26:27] offset:4")
            A("global_atomic_umax v15, v13, s[26:27] offset:8")
            A("global_atomic_umax v15, v10, s[26:27] offset:12")
            A("global_atomic_umax v14, v8, s[26:27] offset:24")
            A("global_atomic_umax v14, v7, s[26:27] offset:28")
            lab("L_r_nod")
        A("s_mul_i32 s3, s2, 43691")
        A("s_lshr_b32 s3, s3, 19")
        A("s_mul_i32 s16, s3, 12")
        A("s_sub_u32 s16, s2, s16")
        A("s_and_b32 s17, s3, 15")
        A("s_lshr_b32 s18, s3, 4")
        A("s_lshl_b32 s19, s16, 12")
        A("v_lshlrev_b32 v2, 4, v0")
        A("v_add_u32 v2, s19, v2")
        A("s_mul_i32 s23, s16, 86")
        A("s_lshr_b32 s23, s23, 8")
        A("s_mul_i32 s24, s23, 3")
        A("s_sub_u32 s24, s16, s24")
        A("s_lshl_b32 s24, s24, 15")
        A("s_lshl_b32 s23, s23, 8")
        A("s_add_u32 s24, s24, s23")
        A("v_and_b32 v6, 15, v0")
        A("v_lshlrev_b32 v6, 11, v6")
        A("v_lshrrev_b32 v7, 6, v0")
        A("v_lshl_add_u32 v6, v7, 6, v6")
        A("v_bfe_u32 v7, v0, 4, 1")
        A("v_lshl_add_u32 v6, v7, 5, v6")
        A("v_bfe_u32 v7, v0, 5, 1")
        A("v_lshl_add_u32 v6, v7, 4, v6")
        A("s_waitcnt lgkmcnt(0)")
        A("s_mov_b32 s8, s4"); A("s_mov_b32 s9, s5"); A("s_mov_b32 s10, 1572864"); A("s_mov_b32 s11, 0x20000")
        A("s_mov_b32 s12, s6"); A("s_mov_b32 s13, s7"); A("s_mov_b32 s14, 268435456"); A("s_mov_b32 s15, 0x20000")
        A("s_mul_i32 s20, s17, 98304")
        A("s_add_u32 s20, s20, s24")
        A("s_mov_b32 s22, 0xffff0000")
        A("s_cmp_eq_u32 s18, 1")
        A("s_cbranch_scc1 L_r_A")

        def body(np_):
            for p in range(np_):
                A(f"buffer_load_dwordx4 v[{16+4*p}:{19+4*p}], v2, s[12:15], s21 offen" + self.opt.get("rdflag", ""))
                if p + 1 < np_:
                    A(f"s_add_u32 s21, s21, {PART}")
            for p in range(np_):
                A(f"s_waitcnt vmcnt({np_-1-p})")
                for k in range(4):
                    r = 16 + 4 * p + k
                    if p == 0:
                        A(f"v_lshlrev_b32 v{8+2*k}, 16, v{r}")
                        A(f"v_and_b32 v{9+2*k}, s22, v{r}")
                    else:
                        A(f"v_lshlrev_b32 v4, 16, v{r}")
                        A(f"v_and_b32 v5, s22, v{r}")
                        A(f"v_pk_add_f32 v[{8+2*k}:{9+2*k}], v[{8+2*k}:{9+2*k}], v[4:5]")

        A(f"s_mul_i32 s21, s17, {16*PART}")
        A("s_add_u32 s20, s20, 1024")
        body(16)
        A("s_branch L_r_st")
        lab("L_r_A")
        A(f"s_mul_i32 s21, s17, {8*PART}")
        A(f"s_add_u32 s21, s21, {PART_A_BASE}")
        body(8)
        lab("L_r_st")
        for k in range(4):
            A(f"v_cvt_pk_bf16_f32 v{16+k}, v{8+2*k}, v{9+2*k}")
        A("buffer_store_dwordx4 v[16:19], v6, s[8:11], s20 offen" + self.opt.get("outflag", ""))
        if self.opt.get("dbg"):
            A("s_waitcnt vmcnt(0)")
            A("s_memrealtime s[28:29]")
            A("s_waitcnt lgkmcnt(0)")
            A("v_mov_b32 v16, s28")
            A("s_lshl_b32 s30, s2, 2")
            A("s_add_u32 s30, s30, 0x4100000")
            A("v_mov_b32 v17, s30")
            A("v_cmp_eq_u32 vcc, 0, v0")
            A("s_and_saveexec_b64 s[26:27], vcc")
            A("s_cbranch_execz L_r_end")
            A("global_store_dword v17, v16, s[6:7]")
        lab("L_r_end")
        A("s_endpgm")

    def desc(self, name, nv, ns):
        self.L += [".p2align 6", f".amdhsa_kernel {name}", f"  .amdhsa_next_free_vgpr {nv}",
                   f"  .amdhsa_next_free_sgpr {ns}", f"  .amdhsa_accum_offset {nv}",
                   "  .amdhsa_group_segment_fixed_size 0", "  .amdhsa_kernarg_size 104",
                   "  .amdhsa_user_sgpr_count 2", "  .amdhsa_user_sgpr_kernarg_segment_ptr 1",
                   "  .amdhsa_system_sgpr_workgroup_id_x 1", ".end_amdhsa_kernel"]

    def table_data(self):
        self.L += [".p2align 2", ".type L_table,@object"]
        self.lab("L_table")
        for k in range(0, 256, 8):
            self.A(".long " + ", ".join(hex(x) for x in self.table[k:k+8]))

    def build(self):
        K1 = NAME + "_kernel"
        if self.fuse:
            head = HEADER + f"; @launch grid=(256,1,1) block=(512,1,1) lds={LDS_BYTES}\n"
        else:
            head = HEADER + f"; @launch kernel={K1} grid=(256,1,1) block=(512,1,1) lds={LDS_BYTES}\n"
            head += "; @launch kernel=reduce_partials_kernel grid=(384,1,1) block=(256,1,1) lds=0\n"
        self.L += ['.amdgcn_target "amdgcn-amd-amdhsa--gfx950"', ".text"]
        self.main_kernel()
        if not self.fuse:
            self.reduce_kernel()
        self.table_data()
        self.L += ['.section .rodata,"a"']
        self.desc(K1, 256, 102)
        if not self.fuse:
            self.desc("reduce_partials_kernel", 80, 32)
        return head + "\n".join(self.L) + "\n"


def gen(**opt):
    return G(opt).build()


if __name__ == "__main__":
    out = sys.argv[1] if len(sys.argv) > 1 else f"cdna_kernels/{NAME}.s"
    opt = {}
    for a in sys.argv[2:]:
        k, v = a.split("=", 1)
        opt[k] = int(v) if v.lstrip("-").isdigit() else v
    open(out, "w").write(gen(**opt))
    print("wrote", out)
```

```python
import sys, math, struct

NAME = "concat_heads__gqa_block_cached__mha_block_cached__near_ridge"

HEADER = """; Kernarg layout for this problem (104 bytes, ptrs only, base s[0:1]):
"""

TILE = 32768
NSLOT = 3
XB = NSLOT * TILE
XROW = 256
XN = 16 * XROW
BLK = 48 * XROW
ST = XB + 5 * BLK
FLAG = ST + 3072
RELAY = FLAG + 8
STORED = FLAG + 12
ENTRY = FLAG + 256
WS_FLAGS = 32 * 1024 * 1024
FULL = 0xffffff
POLL_LIMIT = 20000
LDS_BYTES = 163840
PART = 49152
PART_A_BASE = 16 * 16 * PART
NULL_OFF = 0x40000000
IDX_AFTER_ATT = (27, 43)

T_WQ, T_K, T_V, T_WO, T_WQW = 0, 1, 2, 3, 4
ROWSH = [13, 8, 8, 10, 13]
SLABSH = [18, 13, 13, 8, 8]

sW, sC, sIdx, sE = 3, 4, 6, 7
SRD_WQ, SRD_K, SRD_V, SRD_WO, SRD_WQW, SRD_AUX = 8, 12, 16, 20, 24, 28
sAx, sAk, sAv, sAwq, sAwo = 32, 34, 36, 38, 40
sP0, sP1 = 42, 43
sBx, sBk, sBv, sBwq, sBwo = 44, 46, 48, 50, 52
sWs = 54
sB, sG, sRole, sHead, _unused, sScale, sW1024, sBlk, sThr, sIter = 56, 57, 58, 59, 60, 61, 62, 63, 64, 65
sT0, sT1, sT2, sT3, sT4, sT5 = 66, 67, 68, 69, 70, 71
sBlkEnd = 75
sStamp = 76
sFix = 79
sQKi = 99
sOrd = 60
sThrot = 100
sHook = 101
sPendOff = 70
sLate = 65
sZero = 91
SRD_CUR = [80, 84]
sOff, sTy, sStr, sI, sHalf = [72, 94], [73, 95], [74, 96], [5, 97], [88, 89]
sOff2 = 90
LINK_S = 92

rOut, rWs, rDbg, rKb, rMode, rF, rDone, rNew, rCnt, rOffB, rOffA, rOffO, rAb, rK = 8, 12, 16, 18, 19, 20, 21, 22, 23, 24, 25, 26, 27, 28

vTab, vRow, vChunk, vTRw, vTR0, vKb = 1, 2, 3, 5, 6, 7
vCur = [4, 0]
vXB = 8
vQW, vPW, vSTw, vSTr = 12, 13, 14, 15
vT = 16
vAcc = 24
vQs = 48
vFr = 72
vS = 112
vY = 160
QF = [24, 28, 32, 36, 40, 44, 72, 76, 80, 84, 88, 92]
vKf = 96
vKa, vTRa = 5, 7
vNm = [12, 56, 60]
vDl = 20
vOne = 8
vLq = [44, 48, 52]
NFA = 5
vO = 160
vAfA = 24
QA = [64 + 4 * k for k in range(12)]
sQ = [98, 99, 100, 101]


def vr(a, n=1):
    return f"v{a}" if n == 1 else f"v[{a}:{a+n-1}]"


def sr(a, n=1):
    return f"s{a}" if n == 1 else f"s[{a}:{a+n-1}]"


def f32(x):
    return hex(struct.unpack('<I', struct.pack('<f', x))[0])


class G:
    def __init__(self, opt):
        self.L = []
        self.opt = opt
        self.uid = 0
        self.cold = []
        self.fuse = opt.get("fuse", 1)
        if self.fuse:
            opt.setdefault("stflag", " sc1")
        self.kvf = opt.get("kvflag", " nt")
        self.wf = opt.get("wflag", "")

    def A(self, s):
        self.L.append("  " + s)

    def lab(self, s):
        self.L.append(s + ":")

    def c(self, s):
        self.L.append("  ; " + s)

    def new(self, p):
        self.uid += 1
        return f"L_{p}{self.uid}"

    def mfma(self, d, a, b, c=None):
        cs = "0" if c == 0 else vr(d if c is None else c, 4)
        self.A(f"v_mfma_f32_16x16x32_bf16 {vr(d,4)}, {vr(a,4)}, {vr(b,4)}, {cs}")

    def M(self, d, a, b, c=None):
        return ("m", self.cap(self.mfma, d, a, b, c))

    def lane(self, v):
        self.A(f"v_mbcnt_lo_u32_b32 {vr(v)}, -1, 0")
        self.A(f"v_mbcnt_hi_u32_b32 {vr(v)}, -1, {vr(v)}")

    def rot(self):
        return [[f"s_add_u32 {sr(sC)}, {sr(sC)}, {TILE}"],
                [f"s_cmp_eq_u32 {sr(sC)}, {NSLOT*TILE}", f"s_cselect_b32 {sr(sC)}, 0, {sr(sC)}"]]

    def prep(self, p, slots=True):
        k1 = sum(v << (5 * i) for i, v in enumerate(ROWSH))
        k2 = sum(v << (5 * i) for i, v in enumerate(SLABSH))
        pre = [[f"s_add_u32 {sr(sI[p])}, {sr(sC)}, {sr(sW1024)}"]] + self.rot() if slots else []
        return pre + [
            [f"s_and_b32 {sr(sOff[p])}, {sr(sE)}, 0xffffff00"],
            [f"s_and_b32 {sr(sTy[p])}, {sr(sE)}, 7"],
            [f"s_add_u32 {sr(sIdx)}, {sr(sIdx)}, 1"],
            [f"s_lshl_b32 m0, {sr(sTy[p])}, 2", f"s_mul_i32 {sr(sP0)}, {sr(sTy[p])}, 5",
             f"s_movrels_b64 {sr(SRD_CUR[p],2)}, {sr(SRD_WQ,2)}", f"s_movrels_b32 {sr(SRD_CUR[p]+2)}, {sr(SRD_WQ+2)}"],
            [f"v_readlane_b32 {sr(sE)}, {vr(vTab)}, {sr(sIdx)}"],
            [f"s_lshr_b32 {sr(sP1)}, {hex(k1)}, {sr(sP0)}"],
            [f"s_lshr_b32 {sr(sP0)}, {hex(k2)}, {sr(sP0)}"],
            [f"v_lshl_add_u32 {vr(vCur[p])}, {vr(vRow)}, {sr(sP1)}, {vr(vChunk)}"],
            [f"s_lshl_b32 {sr(sStr[p])}, 1, {sr(sP0)}"],
            [f"s_lshl_b32 {sr(sHalf[p])}, 16, {sr(sP1)}"],
        ]

    def weave(self, prim, fill, per=2, start=0):
        fill = list(fill)
        for idx, (kind, ins) in enumerate(prim):
            self.L += ins
            if kind == "m" and idx >= start:
                k = 0
                while fill and k < per:
                    f = fill[0]
                    if isinstance(f, tuple):
                        if f[0] > idx:
                            break
                        f = f[1]
                    self.emit(f)
                    fill.pop(0)
                    k += 1
        for f in fill:
            self.emit(f[1] if isinstance(f, tuple) else f)

    def emit(self, f):
        for x in f:
            if x.endswith(":"):
                self.L.append(x)
            else:
                self.A(x)

    def cap(self, fn, *a, **k):
        keep, self.L = self.L, []
        fn(*a, **k)
        out, self.L = self.L, keep
        return out

    def head(self, vm):
        self.A("s_waitcnt " + (f"vmcnt({vm}) " if vm is not None else "") + "lgkmcnt(0)")
        if self.opt.get("allsteps") == 2:
            self.stamp(15)
        self.A("s_barrier")
        if self.opt.get("allsteps") == 1:
            self.stamp(14)

    def early_head(self, vm, reads, xonly=None):
        if not self.opt.get("early", 1):
            self.head(vm)
            if xonly:
                l = self.new("x")
                self.is_loader(l)
                xonly()
                self.lab(l)
            reads()
            return
        ly, ld = self.new("ey"), self.new("ed")
        self.is_loader(ly)
        self.head(vm)
        if xonly:
            xonly()
        reads()
        self.A(f"s_branch {ld}")
        self.lab(ly)
        self.A("s_waitcnt lgkmcnt(0)")
        reads()
        self.A(f"s_waitcnt vmcnt({vm})")
        self.A("s_barrier")
        self.lab(ld)

    def dma(self, k, p, kv, guard=True, who=sW):
        A = self.A
        skip = self.new("sk")
        if guard:
            A(f"s_bitcmp1_b32 {sr(who)}, 2")
            A(f"s_cbranch_scc0 {skip}")
        if k:
            A(f"s_add_u32 {sr(sOff[p])}, {sr(sOff[p])}, {sr(sStr[p])}")
        A(f"s_add_u32 m0, {sr(sI[p])}, {k*8192}")
        A(f"s_add_u32 {sr(sOff2)}, {sr(sOff[p])}, {sr(sHalf[p])}")

        def pair(fl):
            if k == 3 and fl == self.kvf and self.opt.get("evst"):
                self.L += self.ev()
                A(f"s_add_u32 m0, {sr(sI[p])}, {k*8192}")
                A("s_nop 0")
            A(f"buffer_load_dwordx4 {vr(vCur[p])}, {sr(SRD_CUR[p],4)}, {sr(sOff[p])} offen{fl} lds")
            A("s_add_u32 m0, m0, 4096")
            A("s_nop 0")
            A(f"buffer_load_dwordx4 {vr(vCur[p])}, {sr(SRD_CUR[p],4)}, {sr(sOff2)} offen{fl} lds")

        if self.kvf == self.wf:
            kv = False
        if kv is not None:
            pair(self.kvf if kv else self.wf)
        else:
            l1 = self.new("kv")
            A(f"s_bitcmp1_b32 6, {sr(sTy[p])}")
            A(f"s_cbranch_scc1 {l1}")
            pair(self.wf)
            A(f"s_branch {skip}")
            self.lab(l1)
            pair(self.kvf)
        self.lab(skip)

    def tile_dma(self, p, kv, who):
        A = self.A
        skip, l1 = self.new("sk"), self.new("kv")
        A(f"s_bitcmp1_b32 {sr(who)}, 2")
        A(f"s_cbranch_scc0 {skip}")
        if kv is None and self.kvf != self.wf:
            A(f"s_bitcmp1_b32 6, {sr(sTy[p])}")
            A(f"s_cbranch_scc1 {l1}")
            for k in range(4):
                self.dma(k, p, False, guard=False)
            A(f"s_branch {skip}")
            self.lab(l1)
        for k in range(4):
            self.dma(k, p, True if kv is None else kv, guard=False)
        self.lab(skip)

    def split_dma(self, p, kv, skip_reg=None):
        A = self.A
        skip, l1 = self.new("sk"), self.new("kv")
        if skip_reg is not None:
            A(f"s_cmp_eq_u32 {sr(skip_reg)}, 0")
            A(f"s_cbranch_scc0 {skip}")
        A(f"s_bitcmp1_b32 {sr(sW)}, 2")
        A(f"s_cselect_b32 {sr(sOff2)}, {sr(sHalf[p])}, 0")
        A(f"s_cselect_b32 {sr(sP0)}, 4096, 0")
        A(f"s_add_u32 {sr(sOff2)}, {sr(sOff2)}, {sr(sOff[p])}")
        A(f"s_add_u32 {sr(sP0)}, {sr(sP0)}, {sr(sI[p])}")

        def four(fl):
            for k in range(4):
                A(f"s_add_u32 m0, {sr(sP0)}, {k*8192}")
                A(f"s_add_u32 {sr(sOff2)}, {sr(sOff2)}, {sr(sStr[p])}" if k else "s_nop 0")
                A(f"buffer_load_dwordx4 {vr(vCur[p])}, {sr(SRD_CUR[p],4)}, {sr(sOff2)} offen{fl} lds")
                if k == 3 and fl == self.kvf:
                    self.L += self.ev()

        if kv is None and self.kvf != self.wf:
            A(f"s_bitcmp1_b32 6, {sr(sTy[p])}")
            A(f"s_cbranch_scc1 {l1}")
            four(self.wf)
            A(f"s_branch {skip}")
            self.lab(l1)
        four(self.kvf)
        self.lab(skip)

    def D1(self, k, p, guard=False):
        l1, l2 = self.new("w"), self.new("d")
        ld = f"  buffer_load_dwordx4 {vr(vCur[p])}, {sr(SRD_CUR[p],4)}, {sr(sOff[p])} offen"
        ins = [f"  s_bitcmp1_b32 {sr(sW)}, 2", f"  s_cbranch_scc0 {l2}"] if guard else []
        ins.append(f"  s_add_u32 m0, {sr(sI[p])}, {k*8192}")
        adv = f"  s_add_u32 {sr(sOff[p])}, {sr(sOff[p])}, {sr(sStr[p])}"
        ins += [f"  s_bitcmp1_b32 6, {sr(sTy[p])}", f"  s_cbranch_scc0 {l1}", adv, f"{ld}{self.kvf} lds"]
        if k == 3:
            ins += self.ev()
        self.cold += [l1 + ":"] + ([adv] if k else []) + [f"{ld}{self.wf} lds", f"  s_branch {l2}"]
        return ("d", ins + [l2 + ":"])

    def D(self, k, p, kv, who=sW):
        return ("d", self.cap(self.dma, k, p, kv, True, who))

    def tr_pair(self, dst, addr, off):
        self.A(f"ds_read_b64_tr_b16 {vr(dst,2)}, {vr(addr)} offset:{off}")
        self.A(f"ds_read_b64_tr_b16 {vr(dst+2,2)}, {vr(addr)} offset:{off+1024}")

    def narrow(self, pre=None, extra=None, early=None, body=None, check=None, ones=None, vm1=None):
        A = self.A

        def fr(st, k):
            return vFr + (st * 5 + k) * 4

        def reads(T, s):
            p = T % 2
            for m in range(2):
                self.tr_pair(fr(s % 2, m), vT + 2 * p + m, s * 8192)
            for n in range(3):
                A(f"ds_read_b128 {vr(fr(s%2,2+n),4)}, {vr(vXB+s)} offset:{n*XN+T*BLK}")

        def addr(p):
            return [[f"v_add_u32 {vr(vT+2*p)}, {sr(sC)}, {vr(vTRw)}"], [f"v_xor_b32 {vr(vT+2*p+1)}, 32, {vr(vT+2*p)}"]]

        def mf(s, zero=False):
            out = [self.M(vAcc + (m * 3 + n) * 4, fr(s % 2, m), fr(s % 2, 2 + n), 0 if zero else None)
                   for m in range(2) for n in range(3)]
            if ones:
                out += [self.M(ones + 4 + 4 * n, ones, fr(s % 2, 2 + n), 0 if zero else None) for n in range(3)]
            return out

        for T in range(4):
            self.head(vm1 if T == 1 else None)
            if T == 0:
                if body:
                    self.lab(body)
                self.weave([], addr(0))
            self.emit((pre or {}).get(T, []))
            prim = [("r", self.cap(reads, T, 0))]
            if T:
                prim += mf(3)
            prim.append(("r", self.cap(reads, T, 1)))
            for s in range(3):
                prim.append(("w", ["  s_waitcnt lgkmcnt(7)"] + (check if (check and T == 0 and s == 0) else [])))
                prim += mf(s, T == 0 and s == 0)
                if s < 2:
                    prim.append(("r", self.cap(reads, T, s + 2)))
            late = [(13, g) for g in (extra or {}).get(T, [])]
            self.weave(prim, self.rot() + (addr(1 - T % 2) if T < 3 else []) + late, per=1 + bool(late))
        A("s_waitcnt lgkmcnt(0)")
        if early is True:
            A("s_barrier")
        elif early is None:
            l = self.new("e")
            A(f"s_cmp_eq_u32 {sr(sLate)}, 0")
            A(f"s_cbranch_scc0 {l}")
            A("s_barrier")
            self.lab(l)
        self.weave(mf(3), [])

    def load_bfrags_dyn(self, tmp, quads):
        for s in range(4):
            self.A(f"v_add_u32 {vr(tmp+s)}, {sr(sBlk)}, {vr(vXB+s)}")
        for s in range(4):
            for n in range(3):
                self.A(f"ds_read_b128 {vr(quads[n*4+s],4)}, {vr(tmp+s)} offset:{n*XN}")

    def is_loader(self, label):
        self.A(f"s_bitcmp1_b32 {sr(sW)}, 2")
        self.A(f"s_cbranch_scc1 {label}")

    def x_setup(self, va, sT1=sT1, sT2=sT2):
        A = self.A
        self.lane(va + 2)
        A(f"v_lshrrev_b32 {vr(va+1)}, 4, {vr(va+2)}")
        A(f"v_and_b32 {vr(va+2)}, 15, {vr(va+2)}")
        A(f"v_xor_b32 {vr(va+2)}, {vr(va+2)}, {vr(va+1)}")
        A(f"v_lshlrev_b32 {vr(va+2)}, 4, {vr(va+2)}")
        A(f"v_lshl_or_b32 {vr(va+2)}, {vr(va+1)}, 10, {vr(va+2)}")
        A(f"s_mul_i32 {sr(sT0)}, {sr(sW1024)}, 3")
        A(f"s_add_u32 {sr(sT2)}, {sr(sT0)}, {XB}")
        A(f"s_mul_i32 {sr(sT1)}, {sr(sB)}, 49152")
        A(f"s_lshl_b32 {sr(sT3)}, {sr(sT0)}, 2")
        A(f"s_add_u32 {sr(sT1)}, {sr(sT1)}, {sr(sT3)}")
        A(f"s_lshr_b32 {sr(sT0)}, {sr(sT0)}, 4")
        for j in range(3):
            A(f"s_add_u32 {sr(sT3)}, {sr(sT0)}, {j*64}")
            A(f"s_and_b32 {sr(sT3)}, {sr(sT3)}, 0xc0")
            A(f"v_xor_b32 {vr(va+j)}, {sr(sT3)}, {vr(va+2)}")

    def x_rot(self, va, j, late=False):
        A = self.A
        sHalf = [sT1, sT2] if late else globals()["sHalf"]
        if late:
            A(f"s_lshr_b32 {sr(sOff2)}, {sr(sB)}, 2")
        A(f"s_add_u32 {sr(sP0)}, {sr(sOff2)}, {j}")
        A(f"s_and_b32 {sr(sP0)}, {sr(sP0)}, 3")
        A(f"s_mul_i32 {sr(sP1)}, {sr(sP0)}, {BLK}")
        A(f"s_add_u32 {sr(sP1)}, {sr(sP1)}, {sr(sHalf[1])}")
        A(f"s_lshl_b32 {sr(sP0)}, {sr(sP0)}, 8")
        A(f"s_add_u32 {sr(sP0)}, {sr(sP0)}, {sr(sHalf[0])}")
        for k in range(3):
            A(f"s_add_u32 m0, {sr(sP1)}, {k*1024}")
            if k:
                A(f"s_add_u32 {sr(sP0)}, {sr(sP0)}, 4096")
            else:
                A("s_nop 0")
            A(f"buffer_load_dwordx4 {vr(va+k)}, {sr(SRD_AUX,4)}, {sr(sP0)} offen lds")

    def first_tile(self, t):
        A = self.A
        A(f"s_add_u32 {sr(sP0)}, {sr(sI[0])}, {t}")
        A(f"s_and_b32 {sr(sP0)}, {sr(sP0)}, 15")
        A(f"s_mul_i32 {sr(sP0)}, {sr(sP0)}, {sr(sStr[1])}")
        A(f"s_add_u32 {sr(sP0)}, {sr(sP0)}, {sr(sTy[0])}")
        for k in range(8):
            A(f"s_add_u32 m0, {sr(sW1024)}, {t*TILE+k*4096}")
            if k % 2:
                A(f"s_add_u32 {sr(sP1)}, {sr(sP0)}, {16*8192}")
            elif k:
                A(f"s_add_u32 {sr(sP0)}, {sr(sP0)}, {sr(sStr[0])}")
            else:
                A("s_nop 0")
            A(f"buffer_load_dwordx4 {vr(vCur[0])}, {sr(SRD_CUR[0],4)}, {sr(sP1 if k % 2 else sP0)} offen{self.wf} lds")

    def x_block(self, va, blk):
        for j in range(3):
            self.A(f"s_add_u32 m0, {sr(sT2)}, {blk*BLK+j*1024}")
            self.A(f"s_add_u32 {sr(sT3)}, {sr(sT1)}, {blk*256+j*4096}")
            self.A(f"buffer_load_dwordx4 {vr(va+j)}, {sr(SRD_AUX,4)}, {sr(sT3)} offen lds")

    def weight_prefetch(self, items, half=False, dst=156, cur=SRD_CUR[1]):
        A = self.A
        off = sT1
        n = 4 if half else 2
        self.lane(vT + 1)
        A(f"v_lshrrev_b32 {vr(vT)}, 4, {vr(vT+1)}")
        A(f"v_lshlrev_b32 {vr(vT+1)}, 4, {vr(vT+1)}")
        A(f"v_and_b32 {vr(vT+2)}, 0xf0, {vr(vT+1)}")
        A(f"v_lshl_or_b32 {vr(vT)}, {vr(vT)}, 13, {vr(vT+2)}")
        A(f"s_lshl_b32 {sr(sT0)}, {sr(sG)}, 2")
        A(f"s_lshr_b32 {sr(sT2)}, {sr(sB)}, {int(half)}")
        A(f"s_lshl_b32 {sr(sT2)}, {sr(sT2)}, 2")
        A(f"s_add_u32 {sr(sT2)}, {sr(sT2)}, {sr(sW)}")
        A(f"s_mov_b32 {sr(cur+2)}, 4194304")
        for ptr, is_wq, h in items:
            A(f"s_add_u32 {sr(sT3)}, {sr(sT0)}, {h}")
            A(f"s_lshl_b32 {sr(sT3)}, {sr(sT3)}, {8 if is_wq else 17}")
            A(f"s_lshl_b32 {sr(off)}, {sr(sT2)}, {(16 if is_wq else 11) + int(half)}")
            A(f"s_add_u32 {sr(off)}, {sr(off)}, {sr(sT3)}")
            A(f"s_mov_b64 {sr(cur,2)}, {sr(ptr,2)}")
            for k in range(n):
                if k:
                    A(f"s_add_u32 {sr(off)}, {sr(off)}, {32768 if is_wq else 1024}")
                A(f"buffer_load_dwordx4 {vr(dst,4)}, {vr(vT if is_wq else vT+1)}, {sr(cur,4)}, {sr(off)} offen")

    def srd(self, d, p, size):
        self.A(f"s_mov_b32 {sr(d)}, {sr(p)}")
        self.A(f"s_mov_b32 {sr(d+1)}, {sr(p+1)}")
        self.A(f"s_mov_b32 {sr(d+2)}, {size}")
        self.A(f"s_mov_b32 {sr(d+3)}, 0x20000")

    def reduce4(self, x, op):
        self.A(f"v_mov_b32 {vr(x+3)}, {vr(x+2)}")
        self.A("s_nop 1")
        self.A(f"v_permlane32_swap_b32 {vr(x)}, {vr(x+1)}")
        self.A(f"v_permlane32_swap_b32 {vr(x+2)}, {vr(x+3)}")
        self.A("s_nop 1")
        self.A(f"{op} {vr(x)}, {vr(x)}, {vr(x+1)}")
        self.A(f"{op} {vr(x+2)}, {vr(x+2)}, {vr(x+3)}")
        self.A("s_nop 1")
        self.A(f"v_permlane16_swap_b32 {vr(x)}, {vr(x+2)}")
        self.A("s_nop 1")
        self.A(f"{op} {vr(x)}, {vr(x)}, {vr(x+2)}")

    def allreduce3(self, x, t, op):
        for sw in ("v_permlane32_swap_b32", "v_permlane16_swap_b32"):
            for n in range(3):
                self.A(f"v_mov_b32 {vr(t+n)}, {vr(x+n)}")
            self.A("s_nop 1")
            for n in range(3):
                self.A(f"{sw} {vr(x+n)}, {vr(t+n)}")
            self.A("s_nop 1")
            for n in range(3):
                self.A(f"{op} {vr(x+n)}, {vr(x+n)}, {vr(t+n)}")

    def maxn(self, dst, regs):
        out = [f"v_max3_f32 {vr(dst)}, {vr(regs[0])}, {vr(regs[1])}, {vr(regs[2])}"]
        k = 3
        while k + 1 < len(regs):
            out.append(f"v_max3_f32 {vr(dst)}, {vr(dst)}, {vr(regs[k])}, {vr(regs[k+1])}")
            k += 2
        if k < len(regs):
            out.append(f"v_max_f32 {vr(dst)}, {vr(dst)}, {vr(regs[k])}")
        return out

    def pkmul(self, a, f):
        sel = "op_sel_hi:[1,0]" if f % 2 == 0 else "op_sel:[0,1] op_sel_hi:[1,1]"
        return f"v_pk_mul_f32 {vr(a,2)}, {vr(a,2)}, {vr(f - f % 2,2)} {sel}"

    def ev(self):
        if not self.opt.get("evst"):
            return []
        return self.cap(self.stamp, 0, True)

    def stamp(self, idx, force=False):
        if not self.opt.get("stamps") or (self.opt.get("evst") and not force and idx != 11):
            return
        if self.opt.get("tailst") and idx not in (0, 6, 7, 8, 11, 16, 17, 18):
            return
        self.A(("s_memtime" if self.opt.get("cyc") else "s_memrealtime") + f" {sr(sStamp,2)}")
        self.A("s_waitcnt lgkmcnt(0)")
        self.A(f"s_and_b32 {sr(sStamp)}, {sr(sStamp)}, 0xffffff")
        self.A(f"s_or_b32 {sr(sStamp)}, {sr(sStamp)}, {(idx+1) << 24}")
        self.A("s_mov_b32 m0, s78")
        if self.opt.get("skip"):
            l = self.new("st")
            self.A(f"s_cmp_lt_i32 s78, 0")
            self.A(f"s_cbranch_scc1 {l}")
            self.A(f"s_cmp_ge_i32 s78, 63")
            self.A(f"s_cbranch_scc1 {l}")
            self.A(f"v_writelane_b32 {vr(23)}, {sr(sStamp)}, m0")
            self.lab(l)
        else:
            self.A(f"v_writelane_b32 {vr(23)}, {sr(sStamp)}, m0")
        self.A("s_add_u32 s78, s78, 1")

    def ks(self, idx=15):
        if self.opt.get("kst"):
            self.A(f"s_memtime s[{76}:{77}]")
            self.A("s_waitcnt lgkmcnt(0)")
            self.A(f"s_and_b32 s76, s76, 0xffffff")
            self.A(f"s_or_b32 s76, s76, {(idx+1) << 24}")
            self.A("s_mov_b32 m0, s78")
            self.A(f"v_writelane_b32 v23, s76, m0")
            self.A("s_add_u32 s78, s78, 1")

    def pack_y(self, barrier, store=False):
        def pack(jp):
            g = []
            for n in range(3):
                q = vY + (2 * jp * 3 + n) * 4
                for h in range(2):
                    y = vY + ((2 * jp + h) * 3 + n) * 4
                    g.append([f"v_cvt_pk_bf16_f32 {vr(q+2*h)}, {vr(y)}, {vr(y+1)}"])
                    g.append([f"v_cvt_pk_bf16_f32 {vr(q+2*h+1)}, {vr(y+2)}, {vr(y+3)}"])
            if store:
                g.append(["s_nop 1"])
                for n in range(3):
                    q = vY + (2 * jp * 3 + n) * 4
                    g.append([f"v_permlane16_swap_b32 {vr(q)}, {vr(q+2)}", f"v_permlane16_swap_b32 {vr(q+1)}, {vr(q+3)}",
                              f"buffer_store_dwordx4 {vr(q,4)}, {vr(vT+n)}, {sr(SRD_AUX,4)}, {sr(sPendOff)} offen offset:{jp*1024}"
                              + self.opt.get("stflag", "")])
            return g

        if store:
            self.lane(vT)
            self.A(f"v_lshlrev_b32 {vr(vT)}, 4, {vr(vT)}")
            self.A(f"v_add_u32 {vr(vT+1)}, 4096, {vr(vT)}")
            self.A(f"v_add_u32 {vr(vT+2)}, 8192, {vr(vT)}")
        self.srd(SRD_AUX, sWs, 268435456)
        self.A(f"s_mul_i32 {sr(sT1)}, {sr(sW)}, 12288")
        self.A(f"s_add_u32 {sr(sPendOff)}, {sr(sT0)}, {sr(sT1)}")
        self.wide_drain(pack)
        if barrier:
            self.A("s_barrier")
        else:
            self.A("s_nop 1")

    def store_y(self, n, va):
        A = self.A
        self.lane(va)
        A(f"v_lshlrev_b32 {vr(va)}, 4, {vr(va)}")
        for jp in range(4):
            q = vY + (2 * jp * 3 + n) * 4
            A(f"v_permlane16_swap_b32 {vr(q)}, {vr(q+2)}")
            A(f"v_permlane16_swap_b32 {vr(q+1)}, {vr(q+3)}")
            A(f"buffer_store_dwordx4 {vr(q,4)}, {vr(va)}, {sr(SRD_AUX,4)}, {sr(sPendOff)} offen offset:{jp*1024}" + self.opt.get("stflag", ""))
        A(f"s_add_u32 {sr(sPendOff)}, {sr(sPendOff)}, 4096")

    def wide_drain(self, per_pair=None):
        prim = [self.M(vY + (j * 3 + n) * 4, vFr + 4 * (j + 2 if j >= 6 else j), vAcc + (3 + n) * 4) for j in range(8) for n in range(3)]
        fill = []
        if per_pair:
            for jp in range(4):
                g = per_pair(jp)
                fill += [(6 * jp + 13, x) for x in g]
        self.weave(prim, fill, per=4)

    def dma_only(self):
        A, lab = self.A, self.lab
        self.is_loader("L_do_ld")
        A(f"s_cmp_eq_u32 {sr(sOrd)}, 0")
        A("s_cbranch_scc0 L_fin")
        self.weight_prefetch([(sBwq, True, 2), (sBwq, True, 3), (sBwq, True, 0)] + [(sBwo, False, h) for h in range(4)] + [(sAwo, False, h) for h in range(4)])
        A("s_branch L_fin")
        lab("L_do_ld")
        self.first_tile(1)
        self.x_rot(vY, 2)
        self.first_tile(2)
        self.x_rot(vY, 3)
        self.weave([], self.prep(1))
        lab("L_do_loop")
        for p in (1, 0):
            for sw, (cond, k, v, wo) in {27: (1, sBk, sBv, None), 41: (1, None, None, sBwo), 14: (2, sAk, sAv, None), 18: (2, None, None, sAwo)}.items():
                l = self.new("sw")
                A(f"s_cmp_eq_u32 {sr(sIdx)}, {sw}")
                A(f"s_cbranch_scc0 {l}")
                A(f"s_cmp_eq_u32 {sr(sOrd)}, {cond}")
                A(f"s_cbranch_scc0 {l}")
                if k:
                    self.srd(SRD_K, k, 67108864 if k == sBk else 16777216)
                    self.srd(SRD_V, v, 67108864 if k == sBk else 16777216)
                if wo:
                    self.srd(SRD_WO, wo, 4194304)
                lab(l)
            A(f"s_waitcnt vmcnt({self.opt['dmaonly']})")
            for k in range(4):
                self.dma(k, p, None, guard=False)
            self.weave([], self.prep(1 - p))
        A(f"s_cmp_lt_u32 {sr(sIdx)}, 57")
        A("s_cbranch_scc1 L_do_loop")
        A("s_branch L_fin")

    def reduce_setup(self):
        A = self.A
        A(f"s_load_dwordx4 {sr(rOut,4)}, s[0:1], 80")
        A("s_waitcnt lgkmcnt(0)")
        A(f"s_mov_b64 {sr(rDbg,2)}, {sr(rOut+2,2)}")
        A(f"s_mov_b32 {sr(rOut+2)}, 1572864")
        A(f"s_mov_b32 {sr(rOut+3)}, 0x20000")
        self.srd(rWs, sWs, 268435456)

    def publish(self):
        A, lab = self.A, self.lab
        A(f"v_mov_b32 {vr(vT)}, {STORED}")
        A(f"v_mov_b32 {vr(vT+1)}, 1")
        self.reduce_setup()
        A("s_waitcnt vmcnt(0)")
        self.stamp(7)
        A("s_mov_b64 exec, 1")
        A(f"ds_add_rtn_u32 {vr(vT+1)}, {vr(vT)}, {vr(vT+1)}")
        A(f"s_lshl_b32 {sr(sT0)}, {sr(sRole)}, 3")
        A(f"s_add_u32 {sr(sT0)}, {sr(sT0)}, {sr(sG)}")
        A(f"s_lshl_b32 {sr(sT2)}, {sr(sT0)}, 2")
        A(f"s_add_u32 {sr(sT3)}, {sr(sT2)}, {ENTRY}")
        A(f"v_mov_b32 {vr(vT+4)}, {sr(sT3)}")
        A(f"ds_read_b32 {vr(vT+4)}, {vr(vT+4)}")
        A(f"s_lshl_b32 {sr(sT3)}, {sr(sB)}, 8")
        A(f"s_add_u32 {sr(sT2)}, {sr(sT2)}, {sr(sT3)}")
        A(f"s_add_u32 {sr(sT2)}, {sr(sT2)}, {WS_FLAGS}")
        A(f"s_lshl_b32 {sr(sT0)}, 1, {sr(sT0)}")
        A(f"s_add_u32 {sr(sT1)}, {sr(sG)}, 16")
        A(f"s_lshl_b32 {sr(sT1)}, {sr(sRole)}, {sr(sT1)}")
        A(f"s_or_b32 {sr(sT0)}, {sr(sT0)}, {sr(sT1)}")
        A(f"s_lshl_b32 {sr(sT1)}, {sr(sB)}, 4")
        A(f"v_mov_b32 {vr(vT)}, {sr(sT1)}")
        A(f"v_mov_b32 {vr(vT+2)}, {sr(sT0)}")
        A(f"v_mov_b32 {vr(vT+3)}, 0")
        A("s_waitcnt lgkmcnt(0)")
        A(f"v_readfirstlane_b32 {sr(sT1)}, {vr(vT+1)}")
        A(f"v_add_u32 {vr(vT+4)}, 1, {vr(vT+4)}")
        A("s_mov_b64 exec, -1")
        A("s_nop 2")
        A(f"s_cmp_eq_u32 {sr(sT1)}, 3")
        A("s_cbranch_scc0 L_fin")
        A("s_mov_b64 exec, 1")
        A(f"buffer_store_dword {vr(vT+4)}, off, {sr(rWs,4)}, {sr(sT2)} sc1")
        A(f"global_atomic_or_x2 {vr(vT+4,2)}, {vr(vT)}, {vr(vT+2,2)}, {sr(rDbg,2)} sc0 sc1")
        A("s_waitcnt vmcnt(0)")
        A(f"v_readfirstlane_b32 {sr(sT1)}, {vr(vT+4)}")
        A(f"v_readfirstlane_b32 {sr(rAb)}, {vr(vT+5)}")
        A("s_mov_b64 exec, -1")
        A("s_nop 2")
        A(f"s_or_b32 {sr(sT1)}, {sr(sT1)}, {sr(sT0)}")
        A(f"s_cmp_eq_u32 {sr(sT1)}, {FULL}")
        A("s_cbranch_scc0 L_fin")
        self.c("last arrival of this batch: take over the slices of workgroups that gave up waiting")
        lab("L_ab_loop")
        A(f"s_cmp_eq_u32 {sr(rAb)}, 0")
        A("s_cbranch_scc1 L_fin")
        A(f"s_ff1_i32_b32 {sr(rK)}, {sr(rAb)}")
        A(f"s_bitset0_b32 {sr(rAb)}, {sr(rK)}")
        A(f"s_mul_i32 {sr(rKb)}, {sr(rK)}, 3")
        for k in range(3):
            A(f"s_mov_b32 {sr(rMode)}, 2")
            A(f"s_call_b64 {sr(LINK_S,2)}, L_reduce")
            A(f"s_add_u32 {sr(rKb)}, {sr(rKb)}, 1")
        A("s_branch L_ab_loop")

    def reduce_sub(self):
        A, lab = self.A, self.lab
        dat = lambda g, q: 64 + (g * 4 + q) * 4
        acc = lambda g: 160 + g * 8
        lab("L_reduce")
        A(f"s_lshl_b32 {sr(rOffA)}, {sr(rKb)}, 10")
        A(f"s_mul_i32 {sr(rOffB)}, {sr(sB)}, {16*PART}")
        A(f"s_add_u32 {sr(rOffB)}, {sr(rOffB)}, {sr(rOffA)}")
        A(f"s_mul_i32 {sr(rOffO)}, {sr(sB)}, {8*PART}")
        A(f"s_add_u32 {sr(rOffA)}, {sr(rOffA)}, {sr(rOffO)}")
        A(f"s_add_u32 {sr(rOffA)}, {sr(rOffA)}, {PART_A_BASE}")
        A(f"s_mul_i32 {sr(sT0)}, {sr(rKb)}, 171")
        A(f"s_lshr_b32 {sr(sT0)}, {sr(sT0)}, 11")
        A(f"s_mul_i32 {sr(sT1)}, {sr(sT0)}, 12")
        A(f"s_sub_u32 {sr(sT1)}, {sr(rKb)}, {sr(sT1)}")
        A(f"s_lshr_b32 {sr(sT2)}, {sr(sT1)}, 2")
        A(f"s_and_b32 {sr(sT1)}, {sr(sT1)}, 3")
        A(f"s_mul_i32 {sr(rOffO)}, {sr(sB)}, 98304")
        A(f"s_lshl_b32 {sr(sT2)}, {sr(sT2)}, 15")
        A(f"s_lshl_b32 {sr(sT0)}, {sr(sT0)}, 8")
        A(f"s_lshl_b32 {sr(sT1)}, {sr(sT1)}, 6")
        A(f"s_add_u32 {sr(rOffO)}, {sr(rOffO)}, {sr(sT2)}")
        A(f"s_add_u32 {sr(rOffO)}, {sr(rOffO)}, {sr(sT0)}")
        A(f"s_add_u32 {sr(rOffO)}, {sr(rOffO)}, {sr(sT1)}")
        self.lane(24)
        A("v_lshlrev_b32 v25, 4, v24")
        A("v_and_b32 v26, 15, v24")
        A("v_lshlrev_b32 v26, 11, v26")
        A("v_bfe_u32 v27, v24, 4, 1")
        A("v_lshl_add_u32 v26, v27, 5, v26")
        A("v_bfe_u32 v27, v24, 5, 1")
        A("v_lshl_add_u32 v26, v27, 4, v26")
        A(f"v_mov_b32 v27, {RELAY}")
        A(f"s_lshl_b32 {sr(sT0)}, {sr(sB)}, 4")
        A(f"v_mov_b32 v28, {sr(sT0)}")
        A("v_and_b32 v40, 15, v24")
        A("v_lshlrev_b32 v40, 2, v40")
        A(f"v_add_u32 v41, {ENTRY}, v40")
        A("ds_read_b32 v41, v41")
        A(f"s_lshl_b32 {sr(sT2)}, {sr(sB)}, 8")
        A(f"s_add_u32 {sr(sT2)}, {sr(sT2)}, {WS_FLAGS}")
        A(f"v_mov_b32 v42, {STORED}")
        A("s_waitcnt lgkmcnt(0)")
        A("v_add_u32 v41, 1, v41")
        A(f"s_mov_b32 {sr(sT3)}, 0xffff0000")
        A(f"s_mov_b32 {sr(rDone)}, 0")
        A(f"s_mov_b32 {sr(rCnt)}, 0")
        lab("L_rd_poll")
        A(f"s_mov_b32 {sr(rF)}, {FULL}")
        A(f"s_cmp_eq_u32 {sr(rMode)}, 2")
        A("s_cbranch_scc1 L_rd_have")
        A(f"s_cmp_eq_u32 {sr(rMode)}, 1")
        A("s_cbranch_scc1 L_rd_lds")
        A(f"s_cmp_eq_u32 {sr(rCnt)}, 1")
        A("s_cbranch_scc0 L_rd_go")
        self.c("after the first look, stay off the memory path until this workgroup's own stores are out")
        lab("L_rd_own")
        A("ds_read_b32 v29, v42")
        A("s_waitcnt lgkmcnt(0)")
        A("v_cmp_gt_u32 vcc, 4, v29")
        A("s_cbranch_vccz L_rd_go")
        A("s_sleep 2")
        A("s_branch L_rd_own")
        lab("L_rd_go")
        A(f"s_add_u32 {sr(rCnt)}, {sr(rCnt)}, 1")
        A(f"buffer_load_dword v29, v40, {sr(rWs,4)}, {sr(sT2)} offen sc1")
        A("s_waitcnt vmcnt(0)")
        A("v_cmp_eq_u32 vcc, v29, v41")
        A("s_nop 3")
        A(f"s_and_b32 {sr(rF)}, vcc_lo, 0xffff")
        A(f"s_and_b32 {sr(sT0)}, {sr(rF)}, 0xff00")
        A(f"s_lshl_b32 {sr(sT0)}, {sr(sT0)}, 8")
        A(f"s_or_b32 {sr(rF)}, {sr(rF)}, {sr(sT0)}")
        A(f"v_mov_b32 v29, {sr(rF)}")
        A("ds_write_b32 v27, v29")
        A("s_branch L_rd_have")
        lab("L_rd_lds")
        A("ds_read_b32 v29, v27")
        A("s_waitcnt lgkmcnt(0)")
        A(f"v_readfirstlane_b32 {sr(rF)}, v29")
        A("s_nop 3")
        A(f"s_cmp_lt_i32 {sr(rF)}, 0")
        A("s_cbranch_scc1 L_rd_ret")
        lab("L_rd_have")
        A(f"s_lshr_b32 {sr(rNew)}, {sr(rF)}, 1")
        A(f"s_and_b32 {sr(rNew)}, {sr(rNew)}, {sr(rF)}")
        A(f"s_lshr_b32 {sr(sT0)}, {sr(rNew)}, 2")
        A(f"s_and_b32 {sr(rNew)}, {sr(rNew)}, {sr(sT0)}")
        A(f"s_and_b32 {sr(rNew)}, {sr(rNew)}, 0x111111")
        A(f"s_andn2_b32 {sr(rNew)}, {sr(rNew)}, {sr(rDone)}")
        A("s_cbranch_scc1 L_rd_work")
        A(f"s_sleep {self.opt.get('sleep', 8)}")
        A(f"s_cmp_eq_u32 {sr(rMode)}, 0")
        A("s_cbranch_scc0 L_rd_poll")
        A(f"s_cmp_lt_u32 {sr(rCnt)}, {self.opt.get('polls', POLL_LIMIT)}")
        A("s_cbranch_scc1 L_rd_poll")
        self.c("gave up waiting: leave the slice to the last arrival unless that has happened meanwhile")
        A(f"s_lshl_b32 {sr(sT0)}, {sr(sRole)}, 3")
        A(f"s_add_u32 {sr(sT0)}, {sr(sT0)}, {sr(sG)}")
        A(f"s_lshl_b32 {sr(sT0)}, 1, {sr(sT0)}")
        A("v_mov_b32 v30, 0")
        A(f"v_mov_b32 v31, {sr(sT0)}")
        A("s_mov_b64 exec, 1")
        A(f"global_atomic_or_x2 v[32:33], v28, v[30:31], {sr(rDbg,2)} sc0 sc1")
        A("s_waitcnt vmcnt(0)")
        A(f"v_readfirstlane_b32 {sr(rF)}, v32")
        A("s_mov_b64 exec, -1")
        A("s_nop 3")
        A(f"s_cmp_eq_u32 {sr(rF)}, {FULL}")
        A(f"s_cselect_b32 {sr(rF)}, {sr(rF)}, -1")
        A(f"v_mov_b32 v29, {sr(rF)}")
        A("ds_write_b32 v27, v29")
        A("s_cbranch_scc0 L_rd_ret")
        A(f"s_mov_b32 {sr(rMode)}, 2")
        A("s_branch L_rd_poll")
        lab("L_rd_work")
        self.stamp(17)
        for g in range(6):
            l = self.new("rg")
            A(f"s_bitcmp1_b32 {sr(rNew)}, {4*g}")
            A(f"s_cbranch_scc0 {l}")
            base, first = (rOffB, 4 * g) if g < 4 else (rOffA, 4 * (g - 4))
            for q in range(4):
                A(f"s_add_u32 {sr(sT0)}, {sr(base)}, {(first+q)*PART}")
                A(f"buffer_load_dwordx4 {vr(dat(g,q),4)}, v25, {sr(rWs,4)}, {sr(sT0)} offen sc1")
            lab(l)
        A("s_waitcnt vmcnt(0)")
        self.stamp(18)
        for g in range(6):
            l = self.new("rs")
            A(f"s_bitcmp1_b32 {sr(rNew)}, {4*g}")
            A(f"s_cbranch_scc0 {l}")
            for q in range(4):
                for k in range(4):
                    r, t = dat(g, q) + k, (acc(g) + 2 * k if q == 0 else 30 + 2 * (k % 2))
                    A(f"v_lshlrev_b32 {vr(t)}, 16, {vr(r)}")
                    A(f"v_and_b32 {vr(t+1)}, {sr(sT3)}, {vr(r)}")
                    if q:
                        A(f"v_pk_add_f32 {vr(acc(g)+2*k,2)}, {vr(acc(g)+2*k,2)}, {vr(t,2)}")
            lab(l)
        A(f"s_or_b32 {sr(rDone)}, {sr(rDone)}, {sr(rNew)}")
        A(f"s_cmp_eq_u32 {sr(rDone)}, 0x111111")
        A("s_cbranch_scc0 L_rd_poll")
        for x, y in ((0, 1), (2, 3), (4, 5), (0, 2)):
            for k in range(4):
                A(f"v_pk_add_f32 {vr(acc(x)+2*k,2)}, {vr(acc(x)+2*k,2)}, {vr(acc(y)+2*k,2)}")
        for g, d in ((4, 32), (0, 36)):
            for k in range(4):
                A(f"v_cvt_pk_bf16_f32 {vr(d+k)}, {vr(acc(g)+2*k)}, {vr(acc(g)+2*k+1)}")
        A(f"buffer_store_dwordx4 v[32:35], v26, {sr(rOut,4)}, {sr(rOffO)} offen")
        A(f"buffer_store_dwordx4 v[36:39], v26, {sr(rOut,4)}, {sr(rOffO)} offen offset:1024")
        lab("L_rd_ret")
        A(f"s_setpc_b64 {sr(LINK_S,2)}")

    def zero(self, base, n):
        for k in range(0, n, 2):
            self.A(f"v_mov_b64 {vr(base+k,2)}, 0")

    def act_write_addr(self, sblk, stile):
        A = self.A
        self.lane(vT + 1)
        A(f"v_lshrrev_b32 {vr(vT)}, 4, {vr(vT+1)}")
        A(f"v_and_b32 {vr(vT+1)}, 15, {vr(vT+1)}")
        A(f"v_lshrrev_b32 {vr(vT+2)}, 1, {vr(vT)}")
        if stile is not None:
            A(f"v_add_u32 {vr(vT+2)}, {sr(stile)}, {vr(vT+2)}")
        A(f"v_xor_b32 {vr(vT+2)}, {vr(vT+2)}, {vr(vT+1)}")
        A(f"v_lshlrev_b32 {vr(vT+2)}, 4, {vr(vT+2)}")
        A(f"v_and_b32 {vr(vT)}, 1, {vr(vT)}")
        A(f"v_lshl_or_b32 {vr(vT+2)}, {vr(vT)}, 3, {vr(vT+2)}")
        A(f"v_mul_u32_u24 {vr(vT+1)}, {XROW}, {vr(vT+1)}")
        A(f"s_add_u32 {sr(sT5)}, {sr(sblk)}, {XB}")
        A(f"v_add3_u32 {vr(vT+1)}, {vr(vT+1)}, {sr(sT5)}, {vr(vT+2)}")

    def frag_addrs(self):
        A = self.A
        t0, t1, t2, t3, t4, t5, vL = vT, vT + 1, vT + 2, vT + 3, vT + 4, vT + 5, vT + 6
        self.lane(vL)
        A(f"v_lshrrev_b32 {vr(t0)}, 4, {vr(vL)}")
        A(f"v_and_b32 {vr(t1)}, 15, {vr(vL)}")
        A(f"v_bfe_u32 {vr(t2)}, {vr(vL)}, 2, 2")
        A(f"v_and_b32 {vr(t3)}, 3, {vr(vL)}")
        A(f"v_lshl_add_u32 {vr(t4)}, {vr(t0)}, 3, {vr(t2)}")
        A(f"v_lshlrev_b32 {vr(t4)}, 8, {vr(t4)}")
        A(f"v_and_b32 {vr(t5)}, 1, {vr(t0)}")
        A(f"v_lshl_or_b32 {vr(t5)}, {vr(t5)}, 2, {vr(t2)}")
        A(f"v_lshl_or_b32 {vr(t4)}, {vr(t5)}, 5, {vr(t4)}")
        A(f"v_lshl_or_b32 {vr(vTR0)}, {vr(t3)}, 3, {vr(t4)}")
        A(f"s_lshr_b32 {sr(sT0)}, {sr(sW1024)}, 4")
        A(f"v_xor_b32 {vr(vTRw)}, {sr(sT0)}, {vr(vTR0)}")
        A(f"s_lshr_b32 {sr(sT1)}, {sr(sW)}, 1")
        A(f"s_lshl_b32 {sr(sT1)}, {sr(sT1)}, 13")
        A(f"v_lshrrev_b32 {vr(t4)}, 2, {vr(t1)}")
        A(f"v_lshl_or_b32 {vr(t4)}, {vr(t4)}, 3, {vr(t3)}")
        A(f"v_lshlrev_b32 {vr(t4)}, 8, {vr(t4)}")
        A(f"v_lshrrev_b32 {vr(t5)}, 1, {vr(t0)}")
        A(f"v_and_b32 {vr(vKb)}, 7, {vr(t1)}")
        A(f"v_xor_b32 {vr(t5)}, {vr(t5)}, {vr(vKb)}")
        A(f"v_lshl_or_b32 {vr(t4)}, {vr(t5)}, 5, {vr(t4)}")
        A(f"v_and_b32 {vr(t5)}, 1, {vr(t0)}")
        A(f"v_lshl_or_b32 {vr(t4)}, {vr(t5)}, 4, {vr(t4)}")
        A(f"s_and_b32 {sr(sT0)}, {sr(sW)}, 1")
        A(f"s_lshl_b32 {sr(sT0)}, {sr(sT0)}, 10")
        A(f"s_add_u32 {sr(sT0)}, {sr(sT0)}, {sr(sT1)}")
        A(f"v_add_u32 {vr(vKb)}, {sr(sT0)}, {vr(t4)}")
        A(f"v_mul_u32_u24 {vr(t4)}, {XROW}, {vr(t1)}")
        A(f"v_add_u32 {vr(t4)}, {XB}, {vr(t4)}")
        A(f"v_xor_b32 {vr(t5)}, {vr(t0)}, {vr(t1)}")
        A(f"v_lshlrev_b32 {vr(t5)}, 4, {vr(t5)}")
        for s in range(4):
            A(f"v_xor_b32 {vr(vXB+s)}, {s*64}, {vr(t5)}")
            A(f"v_add_u32 {vr(vXB+s)}, {vr(vXB+s)}, {vr(t4)}")
        A(f"v_lshrrev_b32 {vr(t5)}, 1, {vr(t0)}")
        A(f"s_lshr_b32 {sr(sT0)}, {sr(sW1024)}, 8")
        A(f"v_add_u32 {vr(t5)}, {sr(sT0)}, {vr(t5)}")
        A(f"v_xor_b32 {vr(t5)}, {vr(t5)}, {vr(t1)}")
        A(f"v_lshl_add_u32 {vr(vQW)}, {vr(t5)}, 4, {vr(t4)}")
        A(f"v_and_b32 {vr(t5)}, 1, {vr(t0)}")
        A(f"v_lshl_add_u32 {vr(vQW)}, {vr(t5)}, 3, {vr(vQW)}")
        A(f"s_lshr_b32 {sr(sT0)}, {sr(sW)}, 1")
        A(f"s_lshl_b32 {sr(sT0)}, {sr(sT0)}, 2")
        A(f"v_add_u32 {vr(t5)}, {sr(sT0)}, {vr(t0)}")
        A(f"v_xor_b32 {vr(t5)}, {vr(t5)}, {vr(t1)}")
        A(f"v_lshl_add_u32 {vr(vPW)}, {vr(t5)}, 4, {vr(t4)}")
        A(f"s_and_b32 {sr(sT0)}, {sr(sW)}, 1")
        A(f"s_lshl_b32 {sr(sT0)}, {sr(sT0)}, 3")
        A(f"v_add_u32 {vr(vPW)}, {sr(sT0)}, {vr(vPW)}")
        A(f"v_lshlrev_b32 {vr(vSTr)}, 5, {vr(t1)}")
        A(f"v_add_u32 {vr(vSTr)}, {ST}, {vr(vSTr)}")
        A(f"v_lshlrev_b32 {vr(t5)}, 1, {vr(t0)}")
        A(f"v_mov_b32 {vr(t4)}, 0x98")
        A(f"v_lshrrev_b32 {vr(t5)}, {vr(t5)}, {vr(t4)}")
        A(f"v_and_b32 {vr(t5)}, 3, {vr(t5)}")
        A(f"v_lshl_add_u32 {vr(vSTw)}, {vr(t5)}, 9, {vr(vSTr)}")
        A(f"s_lshl_b32 {sr(sT0)}, {sr(sW)}, 2")
        A(f"v_add_u32 {vr(vSTw)}, {sr(sT0)}, {vr(vSTw)}")

    def main_kernel(self):
        A, lab, c = self.A, self.lab, self.c
        opt = self.opt
        K1 = NAME + "_kernel"
        self.L += [f".globl {K1}", ".p2align 8", f".type {K1},@function"]
        lab(K1)
        if opt.get("prost"):
            A("s_memtime s[88:89]")
        A("s_cmp_ge_u32 s2, 256")
        A("s_cbranch_scc1 L_end")
        if opt.get("only"):
            A("s_bitcmp1_b32 s2, 7")
            A("s_cbranch_scc%d L_end" % (1 if opt["only"] == "B" else 0))
        if opt.get("dbg"):
            A("s_memrealtime s[76:77]")
            A("s_waitcnt lgkmcnt(0)")
            A("v_mov_b32 v23, s76")
            A("s_memtime s[76:77]")
            A("s_waitcnt lgkmcnt(0)")
            A("s_mov_b32 s78, s76")
        A(f"s_load_dwordx8 {sr(44,8)}, s[0:1], 40")
        A(f"s_load_dwordx2 {sr(52,2)}, s[0:1], 72")
        A(f"s_load_dwordx8 {sr(32,8)}, s[0:1], 0")
        A(f"s_load_dwordx2 {sr(40,2)}, s[0:1], 32")
        A(f"s_load_dwordx2 {sr(54,2)}, s[0:1], 96")
        if opt.get("stamps"):
            A(f"v_mov_b32 {vr(23)}, 0")
            A(f"s_mov_b32 s78, {-(opt.get('skip', 1) - 1)}")
        if opt.get("prost"):
            A("s_waitcnt lgkmcnt(0)")
            A("s_and_b32 s88, s88, 0xffffff")
            A(f"s_or_b32 s88, s88, {1 << 24}")
            A("v_writelane_b32 v23, s88, 0")
            A("s_mov_b32 s78, 1")
            self.stamp(15)
        vL = vT + 6
        A(f"v_lshrrev_b32 {vr(vT)}, 6, v0")
        A(f"v_and_b32 {vr(vL)}, 63, v0")
        A(f"v_readfirstlane_b32 {sr(sW)}, {vr(vT)}")
        A(f"s_and_b32 {sr(sG)}, s2, 7")
        A(f"s_lshr_b32 {sr(sT0)}, s2, 3")
        A(f"s_and_b32 {sr(sB)}, {sr(sT0)}, 15")
        A(f"s_lshr_b32 {sr(sRole)}, {sr(sT0)}, 4")
        A(f"s_and_b32 {sr(sOrd)}, {sr(sT0)}, {opt.get('ordmask', 1)}")
        A(f"s_cmp_lg_u32 {sr(sOrd)}, 0")
        A(f"s_cselect_b32 {sr(sOrd)}, 2, 1")
        A(f"s_mul_i32 {sr(sOrd)}, {sr(sOrd)}, {sr(sRole)}")
        A(f"s_and_b32 {sr(sT1)}, {sr(sW)}, 3")
        A(f"s_lshl_b32 {sr(sW1024)}, {sr(sT1)}, 10")
        c("DMA lane offsets: row = 4(w&3) + (l>>4) (+16), 32-byte chunk XOR key(row)")
        t0, t1, t2, t3, t4, t5 = vT, vT + 1, vT + 2, vT + 3, vT + 4, vT + 5
        A(f"v_lshrrev_b32 {vr(t0)}, 4, {vr(vL)}")
        A(f"s_lshl_b32 {sr(sT0)}, {sr(sW)}, 1")
        A(f"s_and_b32 {sr(sT0)}, {sr(sT0)}, 4")
        A(f"v_or_b32 {vr(t1)}, {sr(sT0)}, {vr(t0)}")
        A(f"v_bfe_u32 {vr(t2)}, {vr(vL)}, 1, 3")
        A(f"v_xor_b32 {vr(t1)}, {vr(t1)}, {vr(t2)}")
        A(f"v_lshlrev_b32 {vr(t1)}, 5, {vr(t1)}")
        A(f"v_and_b32 {vr(t2)}, 1, {vr(vL)}")
        A(f"v_lshl_or_b32 {vr(vChunk)}, {vr(t2)}, 4, {vr(t1)}")
        A(f"s_lshl_b32 {sr(sT0)}, {sr(sT1)}, 2")
        A(f"v_add_u32 {vr(vRow)}, {sr(sT0)}, {vr(t0)}")
        A(f"v_lshl_add_u32 {vr(vCur[0])}, {vr(vRow)}, {ROWSH[T_WQ]}, {vr(vChunk)}")
        c("first B head: 4g for the A role, 4g+1 for the B role")
        A(f"s_lshl_b32 {sr(sT4)}, {sr(sG)}, 2")
        A(f"s_add_u32 {sr(sT4)}, {sr(sT4)}, 1")
        A(f"s_sub_u32 {sr(sT4)}, {sr(sT4)}, {sr(sRole)}")
        A(f"s_lshl_b32 {sr(sE)}, {sr(sT4)}, 8")
        A(f"s_getpc_b64 {sr(sT2,2)}")
        lab("L_pc0")
        A(f"s_lshl_b32 {sr(sT0)}, {sr(sOrd)}, 8")
        A(f"s_add_u32 {sr(sT0)}, {sr(sT0)}, L_table-L_pc0")
        A(f"v_lshl_add_u32 {vr(vTab)}, {vr(vL)}, 2, {sr(sT0)}")
        A(f"global_load_dword {vr(vTab)}, {vr(vTab)}, {sr(sT2,2)}")
        if opt.get("codepf", 1):
            c("waves 0-3 pull the code into L2: 64 KiB window, 512 bytes per wave and workgroup of the head group")
            self.is_loader("L_nocp")
            A(f"s_lshr_b32 {sr(sT0)}, s2, 3")
            A(f"s_lshl_b32 {sr(sT0)}, {sr(sT0)}, 2")
            A(f"s_add_u32 {sr(sT0)}, {sr(sT0)}, {sr(sW)}")
            A(f"s_lshl_b32 {sr(sT0)}, {sr(sT0)}, 9")
            A(f"v_lshl_add_u32 {vr(vT)}, {vr(vL)}, 3, {sr(sT0)}")
            A(f"v_min_u32 {vr(vT)}, L_table-L_pc0, {vr(vT)}")
            A(f"global_load_dwordx2 v[156:157], {vr(vT)}, {sr(sT2,2)}")
            lab("L_nocp")
        self.x_setup(vY, sHalf[0], sHalf[1])
        if opt.get("prost"):
            self.stamp(15)
        A(f"s_bitcmp1_b32 {sr(sW)}, 2")
        A("s_waitcnt lgkmcnt(0)")
        self.srd(SRD_AUX, sBx, 786432)
        self.srd(SRD_WQW, sAwq, 4194304)
        self.srd(SRD_WQ, sBwq, 4194304)
        self.srd(SRD_CUR[0], sBwq, 4194304)
        self.srd(SRD_CUR[1], sBwq, 4194304)
        A("s_cbranch_scc1 L_pro_ld")
        A(f"s_cmp_eq_u32 {sr(sRole)}, 1")
        A("s_cbranch_scc1 L_pro_done")
        self.weight_prefetch([(sBwq, True, 1)])
        A("s_branch L_pro_done")
        lab("L_pro_ld")
        A(f"s_cmp_eq_u32 {sr(sOrd)}, 1")
        A(f"s_cselect_b64 {sr(SRD_AUX,2)}, {sr(sAx,2)}, {sr(sBx,2)}")
        A(f"s_cselect_b64 {sr(SRD_CUR[0],2)}, {sr(sAwq,2)}, {sr(sBwq,2)}")
        A(f"s_mov_b32 {sr(sStr[1])}, {32*8192}")
        A(f"s_cselect_b32 {sr(sStr[0])}, 256, {sr(sStr[1])}")
        A(f"s_cselect_b32 {sr(sStr[1])}, {sr(sStr[1])}, {128*8192}")
        A(f"s_cselect_b32 {sr(sI[0])}, {sr(sB)}, 0")
        A(f"s_lshr_b32 {sr(sOff2)}, {sr(sI[0])}, 2")
        A(f"s_mov_b32 {sr(sTy[0])}, {sr(sE)}")
        self.x_rot(vY, 0)
        self.first_tile(0)
        self.x_rot(vY, 1)
        if opt.get("prost"):
            self.stamp(15)
        lab("L_pro_done")
        self.frag_addrs()
        A(f"s_cmp_eq_u32 {sr(sOrd)}, 1")
        for d, pa, pb, za, zb in ((SRD_K, sAk, sBk, 16777216, 67108864), (SRD_V, sAv, sBv, 16777216, 67108864), (SRD_WO, sAwo, sBwo, 4194304, 4194304)):
            A(f"s_cselect_b64 {sr(d,2)}, {sr(pa,2)}, {sr(pb,2)}")
            A(f"s_mov_b32 {sr(d+2)}, {zb}")
            if za != zb:
                A(f"s_cselect_b32 {sr(d+2)}, {za}, {sr(d+2)}")
            A(f"s_mov_b32 {sr(d+3)}, 0x20000")
        c("tile table: entry = constant + base selected by bits 4:3 (Wq head, B K/V unit, Wo head, A K/V unit)")
        bq, bkv, bo, bka = sT0, sT1, sT2, sT3
        A(f"s_lshl_b32 {sr(bq)}, {sr(sT4)}, 8")
        A(f"s_lshl_b32 {sr(bkv)}, {sr(sB)}, 5")
        A(f"s_add_u32 {sr(bkv)}, {sr(bkv)}, {sr(sT4)}")
        A(f"s_lshl_b32 {sr(bkv)}, {sr(bkv)}, 17")
        A(f"s_lshl_b32 {sr(bo)}, {sr(sT4)}, 17")
        A(f"s_lshl_b32 {sr(bka)}, {sr(sB)}, 3")
        A(f"s_add_u32 {sr(bka)}, {sr(bka)}, {sr(sG)}")
        A(f"s_lshl_b32 {sr(bka)}, {sr(bka)}, 17")
        A(f"s_cmp_eq_u32 {sr(sRole)}, 1")
        A(f"s_cselect_b32 {sr(sHead)}, 1, 3")
        A(f"v_mov_b32 {vr(vT+1)}, {sr(bq)}")
        self.is_loader("L_tabw")
        if self.fuse:
            self.srd(SRD_CUR[1], sWs, 268435456)
            self.lane(vT + 3)
            A(f"v_lshlrev_b32 {vr(vT+3)}, 2, {vr(vT+3)}")
            A(f"s_lshl_b32 {sr(sT5)}, {sr(sB)}, 8")
            A(f"s_add_u32 {sr(sT5)}, {sr(sT5)}, {WS_FLAGS}")
            A(f"s_mov_b32 m0, {ENTRY}")
            A(f"s_cmp_eq_u32 {sr(sW)}, 3")
            A("s_cbranch_scc0 L_tabw0")
            A(f"buffer_load_dword {vr(vT+3)}, {sr(SRD_CUR[1],4)}, {sr(sT5)} offen sc1 lds")
            lab("L_tabw0")
        A("s_waitcnt vmcnt(0)")
        lab("L_tabw")
        A("s_waitcnt vmcnt(14)")
        A(f"v_bfe_u32 {vr(vT)}, {vr(vTab)}, 3, 2")
        for k, base in ((1, bkv), (2, bo), (3, bka)):
            A(f"v_cmp_eq_u32 vcc, {k}, {vr(vT)}")
            A(f"v_mov_b32 {vr(vT+2)}, {sr(base)}")
            A("s_nop 0")
            A(f"v_cndmask_b32 {vr(vT+1)}, {vr(vT+1)}, {vr(vT+2)}, vcc")
        A(f"s_lshl_b32 {sr(sT5)}, {sr(sB)}, 18")
        A(f"v_and_b32 {vr(vT)}, 7, {vr(vTab)}")
        A(f"v_cmp_eq_u32 vcc, {T_WQW}, {vr(vT)}")
        A(f"v_add_u32 {vr(vT+2)}, {sr(sT5)}, {vr(vTab)}")
        A(f"v_and_b32 {vr(vT+2)}, 0x3fffff, {vr(vT+2)}")
        A(f"v_cndmask_b32 {vr(vTab)}, {vr(vTab)}, {vr(vT+2)}, vcc")
        A(f"v_add_u32 {vr(vTab)}, {vr(vTab)}, {vr(vT+1)}")
        A(f"s_mov_b32 {sr(sIdx)}, 3")
        A(f"s_mov_b32 {sr(sC)}, 0")
        A(f"v_readlane_b32 {sr(sE)}, {vr(vTab)}, 3")

        def const(ty, hh, t, a_unit=False):
            if ty == T_WQ:
                return t * 128 * 8192 + hh * 256 + ty
            if ty == T_WQW:
                return t * 32 * 8192 + ty
            if ty in (T_K, T_V):
                return hh * 131072 + t * 32768 + ty + (24 if a_unit else 8)
            return (hh * 128 + 32 * t) * 1024 + ty + 16

        tb = [const(T_WQ, 0, t) for t in range(4)] + [const(T_K, 0, t) for t in range(4)]
        tb += [const(T_WQ, hh, t) for hh in (1, 2) for t in range(4)]
        tb += [const(ty, 0, t) for ty in (T_V, T_WO) for t in range(4)]
        tb += [const(ty, hh, t) for hh in (1, 2) for ty in (T_K, T_V, T_WO) for t in range(4)]
        ta = [const(T_WQW, 0, t) for t in range(16)]
        ta += [const(ty, 0, t, True) for t in range(4) for ty in (T_K, T_V)]
        ta += [const(T_WO, hh, t) for hh in range(4) for t in range(4)]
        ta += [const(ty, 0, t) for ty in (T_WQ, T_K, T_V, T_WO) for t in range(4)]
        tc = ta[40:] + ta[:40]
        self.table = sum((t + [NULL_OFF] * (64 - len(t)) for t in (tb, ta, tc)), [])
        A(f"s_mov_b32 {sr(sScale)}, {f32(math.log2(math.e) / math.sqrt(128.0))}")
        A(f"s_mov_b32 {sr(sThr)}, 0x41000000")
        A(f"s_or_b32 {sr(sZero)}, {sr(sRole)}, 1")
        A(f"s_and_b32 {sr(sBlkEnd)}, {sr(sRole)}, 2")
        A(f"s_and_b32 {sr(sFix)}, {sr(sRole)}, 2")
        A(f"v_mov_b32 {vr(vT)}, {RELAY}")
        A(f"v_mov_b64 {vr(vT+2,2)}, 0")
        A(f"ds_write_b64 {vr(vT)}, {vr(vT+2,2)}")
        self.stamp(0)

        if opt.get("dmaonly"):
            self.dma_only()
        A(f"s_mov_b32 {sr(sHook)}, 0")
        A(f"s_cmp_eq_u32 {sr(sOrd)}, 1")
        A("s_cbranch_scc1 L_apath")
        lab("L_q0")
        c("Q projection of the first B head (scaled by log2(e)/sqrt(128))")
        A(f"s_mov_b32 {sr(sLate)}, 2")
        A(f"s_call_b64 {sr(LINK_S,2)}, L_qproj")
        def q_write(src, blk):
            A(f"v_xor_b32 {vr(vT+6)}, 32, {vr(vQW)}")
            for m in range(2):
                for n in range(3):
                    A(f"ds_write_b64 {vr(vT+6 if m else vQW)}, {vr(src+(m*3+n)*2,2)} offset:{n*XN+blk*BLK}")

        self.is_loader("L_q0ld")
        q_write(vAcc, 4)
        allpf = {"q0": (sBwq, True, 0), "q2": (sBwq, True, 2), "q3": (sBwq, True, 3)}
        allpf.update({f"b{h}": (sBwo, False, h) for h in range(4)})
        allpf.update({f"a{h}": (sAwo, False, h) for h in range(4)})
        pick = lambda key, dflt: [allpf[x] for x in opt.get(key, dflt).split("+") if x]
        self.pf_a = pick("pfa", "q0+b2+b3")
        A(f"s_cmp_eq_u32 {sr(sOrd)}, 1")
        A("s_cbranch_scc1 L_q0done")
        A(f"s_cmp_eq_u32 {sr(sOrd)}, 2")
        A("s_cbranch_scc1 L_pfc")
        self.weight_prefetch(pick("pfb", "q2+q3+b0+b1"))
        A("s_branch L_q0done")
        lab("L_pfc")
        self.weight_prefetch(pick("pfc", "a0+a1+a2+a3"), half=True)
        A("s_branch L_q0done")
        lab("L_q0ld")
        self.frag_addrs()
        lab("L_q0done")
        self.stamp(1)
        A("s_branch L_bpath")
        lab("L_apath")
        c("GQA group: four query heads sharing one K/V")
        A(f"s_mov_b32 {sr(sHook)}, 0")
        A(f"s_mov_b32 {sr(sBlk)}, {sr(sB)}")
        A(f"s_mov_b32 {sr(sBlkEnd)}, {3*BLK}")
        A(f"s_mov_b32 {sr(sLate)}, 3")
        A(f"s_call_b64 {sr(LINK_S,2)}, L_wide")
        c("wave c < 4 holds Q of head c; x is dead after the drain barrier")
        self.is_loader("L_qa_ld")
        A("s_barrier")
        A(f"s_mul_i32 {sr(sT0)}, {sr(sW)}, {BLK}")
        self.act_write_addr(sT0, None)
        A(f"v_mov_b32 {vr(vT+4)}, {sr(sScale)}")

        def qpack(jp):
            g = []
            for j in (2 * jp, 2 * jp + 1):
                g.append([f"v_xor_b32 {vr(vT+2+j%2)}, {j*32}, {vr(vT+1)}"])
                for n in range(3):
                    y = vY + (j * 3 + n) * 4
                    g += [[self.pkmul(y, vT + 4)], [self.pkmul(y + 2, vT + 4)],
                          [f"v_cvt_pk_bf16_f32 {vr(y)}, {vr(y)}, {vr(y+1)}"], [f"v_cvt_pk_bf16_f32 {vr(y+1)}, {vr(y+2)}, {vr(y+3)}"],
                          [f"ds_write_b64 {vr(vT+2+j%2)}, {vr(y,2)} offset:{n*XN}"]]
            return g

        self.wide_drain(qpack)
        A("s_branch L_qa_done")
        lab("L_qa_ld")
        self.head(8)
        for k in range(4):
            self.dma(k, 0, True, guard=False)
        lab("L_qa_done")
        self.stamp(7)
        c("wave = (head w>>1, key half w&1); O slot j holds d tile j ^ 4(w&1)")
        A(f"s_and_b32 {sr(sT0)}, {sr(sW)}, 1")
        A(f"s_lshl_b32 {sr(sT2)}, {sr(sT0)}, 14")
        A(f"s_lshl_b32 {sr(sT3)}, {sr(sT0)}, 7")
        A(f"s_lshl_b32 {sr(sT0)}, {sr(sT0)}, 10")
        A(f"s_lshr_b32 {sr(sT1)}, {sr(sW)}, 1")
        A(f"s_mul_i32 {sr(sBlk)}, {sr(sT1)}, {BLK}")
        A(f"s_lshl_b32 {sr(sT1)}, {sr(sT1)}, 13")
        A(f"s_add_u32 {sr(sT0)}, {sr(sT0)}, {sr(sT1)}")
        A(f"s_sub_u32 {sr(sT0)}, {sr(sT2)}, {sr(sT0)}")
        A(f"v_add_u32 {vr(vKa)}, {sr(sT0)}, {vr(vKb)}")
        A(f"v_xor_b32 {vr(vTRa)}, {sr(sT3)}, {vr(vTR0)}")
        A(f"v_add_u32 {vr(vTRa)}, {sr(sT2)}, {vr(vTRa)}")
        c("tiles alternate over four slots: the three ring slots and the activation region")
        sKs, sVs, sXa, sXb, sX, sEv = sQ[0], sQ[1], sQ[2], sQ[3], [sT1, sT2], sT0
        A(f"s_mov_b32 {sr(sKs)}, {sr(sC)}")
        self.weave([], self.rot())
        A(f"s_mov_b32 {sr(sVs)}, {sr(sC)}")
        self.weave([], self.rot())
        A(f"s_xor_b32 {sr(sXa)}, {sr(sKs)}, {sr(sC)}")
        A(f"s_xor_b32 {sr(sXb)}, {sr(sVs)}, {XB}")
        A(f"v_add_u32 {vr(vT)}, {sr(sKs)}, {vr(vKa)}")
        for s in range(1, 4):
            A(f"v_xor_b32 {vr(vT+s)}, {s*64}, {vr(vT)}")
        c("load parameters: set pv carries V tiles, set pk carries K tiles (waves 0-3: pv = 0, waves 4-7: pv = 1)")
        A(f"s_lshl_b32 {sr(sT3)}, {sr(sB)}, 3")
        A(f"s_add_u32 {sr(sT3)}, {sr(sT3)}, {sr(sG)}")
        A(f"s_lshl_b32 {sr(sT3)}, {sr(sT3)}, 17")
        A(f"s_lshl_b32 {sr(sT4)}, {sr(sW)}, 10")
        A(f"s_and_b32 {sr(sT5)}, {sr(sT4)}, 4096")
        A(f"s_add_u32 {sr(sT3)}, {sr(sT3)}, {sr(sT5)}")
        A(f"s_add_u32 {sr(sT5)}, {sr(sVs)}, {sr(sT4)}")
        A(f"s_add_u32 {sr(sT4)}, {sr(sC)}, {sr(sT4)}")
        self.weave([], self.rot())
        A(f"s_add_u32 {sr(sP0)}, {sr(sT3)}, {32768-8192}")
        A(f"s_add_u32 {sr(sP1)}, {sr(sT3)}, {65536-8192}")
        A(f"s_bitcmp1_b32 {sr(sW)}, 2")
        for q in range(2):
            lo = ("%s, %s" if q else "%s, %s")
            def sel(y, x):
                return (y, x) if q else (x, y)
            A(f"s_cselect_b64 {sr(SRD_CUR[q],2)}, " + ", ".join(sel(sr(SRD_V, 2), sr(SRD_K, 2))))
            A(f"s_mov_b32 {sr(SRD_CUR[q]+2)}, 16777216")
            A(f"s_cselect_b32 {sr(sOff[q])}, " + ", ".join(sel(sr(sP0), sr(sP1))))
            A(f"s_cselect_b32 {sr(sI[q])}, " + ", ".join(sel(sr(sT5), sr(sT4))))
            A(f"s_cselect_b32 {sr(sX[q])}, " + ", ".join(sel(sr(sXb), sr(sXa))))
            A(f"s_mov_b32 {sr(sStr[q])}, 8192")
            A(f"s_mov_b32 {sr(sTy[q])}, {T_K}")
            A(f"v_lshl_add_u32 {vr(vCur[q])}, {vr(vRow)}, 8, {vr(vChunk)}")
        A(f"s_mov_b32 {sr(sEv)}, 0")
        for n in range(3):
            self.zero(vNm[n], 4)
        A(f"s_mov_b32 {sr(sFix)}, 0")
        A(f"s_mov_b32 {sr(sIter)}, 4")

        def sa(sg, n, t):
            return vS + ((sg * 3 + n) * 2 + t) * 4

        def fa(f):
            return vAfA + (f % NFA) * 4

        def kread(f):
            j, s = f // 4, f % 4
            A(f"ds_read_b128 {vr(fa(f),4)}, {vr(vT+s)} offset:{(j//2)*8192+(j%2)*1024}")

        def sm_check(sg, lr, ln):
            f = [[x] for x in self.maxn(vDl, [sa(sg, 0, 0) + r for r in range(24)])]
            return f + [[f"v_cmp_lt_f32 vcc, {sr(sThr)}, {vr(vDl)}", f"s_cbranch_vccnz {lr}", ln + ":"]]

        def sm_exp(sg):
            f = []
            for n in range(3):
                b = sa(sg, n, 0)
                for r in range(8):
                    f.append([f"v_exp_f32 {vr(b+r)}, {vr(b+r)}"])
                    if r in (3, 5, 7):
                        f.append([f"v_cvt_pk_bf16_f32 {vr(b+(r-3)//2)}, {vr(b+r-3)}, {vr(b+r-2)}"])
                f.append(["s_nop 0", f"v_cvt_pk_bf16_f32 {vr(b+3)}, {vr(b+6)}, {vr(b+7)}"] if n == 2 else
                         [f"v_exp_f32 {vr(b+8)}, {vr(b+8)}", f"v_cvt_pk_bf16_f32 {vr(b+3)}, {vr(b+6)}, {vr(b+7)}"])
            out, skip = [], set()
            for n in (1, 2):
                skip.add(f"v_exp_f32 {vr(sa(sg,n,0))}, {vr(sa(sg,n,0))}")
            for g in f:
                if len(g) == 1 and g[0] in skip:
                    continue
                out.append(g)
            return out

        def aprep(q):
            l1, l2 = self.new("wo"), self.new("wb")
            self.cold += [l1 + ":",
                          f"  s_mov_b64 {sr(SRD_CUR[q],2)}, {sr(SRD_WO,2)}", f"  s_mov_b32 {sr(SRD_CUR[q]+2)}, 4194304",
                          f"  s_mov_b32 {sr(sStr[q])}, 256", f"  s_mov_b32 {sr(sTy[q])}, {T_WO}",
                          f"  v_lshl_add_u32 {vr(vCur[q])}, {vr(vRow)}, 10, {vr(vChunk)}",
                          f"  s_lshl_b32 {sr(sOff[q])}, {sr(sG)}, 4", f"  s_add_u32 {sr(sOff[q])}, {sr(sOff[q])}, {sr(sEv)}",
                          f"  s_sub_u32 {sr(sOff[q])}, {sr(sOff[q])}, 6", f"  s_lshl_b32 {sr(sOff[q])}, {sr(sOff[q])}, 15",
                          f"  s_and_b32 {sr(sP0)}, {sr(sW)}, 4", f"  s_lshl_b32 {sr(sP0)}, {sr(sP0)}, 12",
                          f"  s_add_u32 {sr(sOff[q])}, {sr(sOff[q])}, {sr(sP0)}",
                          f"  s_branch {l2}"]
            return [[f"s_xor_b32 {sr(sI[q])}, {sr(sI[q])}, {sr(sX[q])}"],
                    [f"s_add_u32 {sr(sEv)}, {sr(sEv)}, 1", f"s_cmp_ge_u32 {sr(sEv)}, 6", f"s_cbranch_scc1 {l1}", l2 + ":"]]

        def kstep(first):
            u = "f" if first else "l"
            self.early_head(8 if first else 4, lambda: [kread(f) for f in range(NFA)],
                            (lambda: self.load_bfrags_dyn(vLq[0], QA)) if first else None)
            self.ks(2)
            prim = []
            for f in range(16):
                j, s = f // 4, f % 4
                if s == 0:
                    prim.append(self.D1(j, 1, first))
                if f % 2 == 0:
                    prim.append(("w", [f"  s_waitcnt lgkmcnt({max(0, min(f + NFA, 16) - (f + 2))})"]))
                for n in range(3):
                    prim.append(self.M(sa(j // 2, n, j % 2), fa(f), QA[n * 4 + s], vNm[n] if s == 0 else None))
                if f + NFA < 16:
                    prim.append(("r", self.cap(kread, f + NFA)))
                if f == 7:
                    half = len(prim)
            zf = []
            if first:
                zf = [[f"v_mov_b32 {vr(vOne+k)}, 0x3f803f80"] for k in range(4)]
            self.weave(prim[:half], aprep(0) + [[f"s_xor_b32 {sr(sKs)}, {sr(sKs)}, {sr(sXa)}"]] + zf, per=1)
            self.ks()
            if opt.get("prio", 1) == 1:
                A("s_setprio 1")
            fill = [[f"s_branch L_r0first", "L_n0f:"]] if first else sm_check(0, "L_r0", "L_n0l")
            fill += sm_exp(0)
            self.weave(prim[half:], fill, per=opt.get('kper', 3), start=10)
            self.ks()
            A(f"s_cmp_eq_u32 {sr(sFix)}, 0")
            A(f"v_add_u32 {vr(vT)}, {sr(sVs)}, {vr(vTRa)}")
            A("s_nop 5")
            A(f"s_cbranch_scc0 L_r0b{u}")
            lab(f"L_n0b{u}")
            self.weave([], sm_check(1, f"L_r1{u}", f"L_n1{u}"))
            self.ks(13)

        def va(mt):
            return vT if mt == 0 else sa(0, (mt - 1) // 4, 0) + 4 + (mt - 1) % 4

        def vread(q):
            sg, mt = q // 8, q % 8
            if mt and not sg:
                A(f"v_xor_b32 {vr(va(mt))}, {mt*32}, {vr(vT)}")
            self.tr_pair(fa(q), va(mt), sg * 8192)

        c("waves 4-7 run one interval behind waves 0-3")
        A(f"s_bitcmp1_b32 {sr(sW)}, 2")
        A("s_cbranch_scc0 L_att0")
        if opt.get("prio", 1) == 2:
            A("s_setprio 1")
        self.weave([], aprep(1))
        self.load_bfrags_dyn(vLq[0], QA)
        lab("L_att0")
        def vstep(first):
            self.early_head(4, lambda: [vread(q) for q in range(NFA)])
            self.ks(4)
            prim = []
            for q in range(16):
                sg, mt = q // 8, q % 8
                z = 0 if (first and sg == 0) else None
                if q % 2 == 0 and q < 8:
                    prim.append(self.D1(q // 2, 0))
                if mt == 0:
                    for n in range(3):
                        prim.append(self.M(vLq[n], vOne, sa(sg, n, 0), z))
                if q % 2 == 0:
                    prim.append(("w", [f"  s_waitcnt lgkmcnt({2 * max(0, min(q + NFA, 16) - (q + 2))})"]))
                for n in range(3):
                    prim.append(self.M(vO + (mt * 3 + n) * 4, fa(q), sa(sg, n, 0), z))
                if q + NFA < 16:
                    prim.append(("r", self.cap(vread, q + NFA)))
                    lastr = len(prim)
                if q == 7:
                    half = len(prim)
            self.weave(prim[:half], sm_exp(1), per=opt.get('vper', 2))
            if opt.get("prio", 1) == 1:
                A("s_setprio 0")
            self.ks()
            if first:
                A("s_nop 1")
            else:
                A(f"s_cmp_eq_u32 {sr(sIter)}, 1")
                A("s_cbranch_scc1 L_attlast")
            fill = aprep(1) + [[f"s_xor_b32 {sr(sVs)}, {sr(sVs)}, {sr(sXb)}"]]
            fill.append((lastr - half, [f"v_add_u32 {vr(vT)}, {sr(sKs)}, {vr(vKa)}"]))
            for s in range(1, 4):
                fill.append([f"v_xor_b32 {vr(vT+s)}, {s*64}, {vr(vT)}"])
            self.weave(prim[half:], fill, per=1)
            self.stamp(13)
            return prim[half:]

        kstep(True)
        vstep(True)
        lab("L_attA")
        A(f"s_sub_u32 {sr(sIter)}, {sr(sIter)}, 1")
        kstep(False)
        tail = vstep(False)
        A("s_branch L_attA")
        lab("L_attlast")
        self.weave(tail, aprep(1), per=1)
        self.is_loader("L_attdone")
        self.head(None)
        for k in range(4):
            self.L += self.D1(k, 1)[1]
        A(f"s_cmp_eq_u32 {sr(sOrd)}, 1")
        A("s_cbranch_scc0 L_nopfa")
        self.weight_prefetch(self.pf_a, half=True, dst=QA[0])
        lab("L_nopfa")
        A(f"v_mov_b32 {vr(vNm[1]+1)}, {vr(vNm[0])}")
        self.frag_addrs()
        A("s_branch L_attdone2")
        lab("L_attdone")
        A(f"v_mov_b32 {vr(vNm[1]+1)}, {vr(vNm[0])}")
        lab("L_attdone2")
        nmr = [vNm[1] + 1, vNm[1], vNm[2]]
        A("s_setprio 0")
        A(f"s_cmp_eq_u32 {sr(sOrd)}, 1")
        A(f"s_cselect_b32 {sr(sIdx)}, {IDX_AFTER_ATT[0]}, {IDX_AFTER_ATT[1]}")
        A(f"v_readlane_b32 {sr(sE)}, {vr(vTab)}, {sr(sIdx)}")
        self.stamp(8)
        c("merge the two key halves of each head")
        self.srd(SRD_K, sBk, 67108864)
        self.srd(SRD_V, sBv, 67108864)
        self.lane(vT + 3)
        A(f"v_and_b32 {vr(vT)}, 15, {vr(vT+3)}")
        A(f"v_lshlrev_b32 {vr(vT)}, 3, {vr(vT)}")
        A(f"s_mul_i32 {sr(sT0)}, {sr(sW)}, 384")
        A(f"s_add_u32 {sr(sT0)}, {sr(sT0)}, {ST}")
        A(f"v_add_u32 {vr(vT+1)}, {sr(sT0)}, {vr(vT)}")
        A(f"s_xor_b32 {sr(sT1)}, {sr(sW)}, 1")
        A(f"s_mul_i32 {sr(sT0)}, {sr(sT1)}, 384")
        A(f"s_add_u32 {sr(sT0)}, {sr(sT0)}, {ST}")
        A(f"v_add_u32 {vr(vT+2)}, {sr(sT0)}, {vr(vT)}")
        for n in range(3):
            A(f"v_mov_b32 {vr(vLq[n]+1)}, {vr(nmr[n])}")
            A(f"ds_write_b64 {vr(vT+1)}, {vr(vLq[n],2)} offset:{n*128}")
        self.head(None)
        for n in range(3):
            A(f"ds_read_b64 {vr(vAfA+8+2*n,2)}, {vr(vT+2)} offset:{n*128}")
        A(f"s_mul_i32 {sr(sT0)}, {sr(sW)}, 6144")
        A(f"s_add_u32 {sr(sT0)}, {sr(sT0)}, {XB}")
        A(f"s_mul_i32 {sr(sT1)}, {sr(sT1)}, 6144")
        A(f"s_add_u32 {sr(sT1)}, {sr(sT1)}, {XB}")
        A(f"v_lshlrev_b32 {vr(vT)}, 4, {vr(vT+3)}")
        A(f"v_add_u32 {vr(vT+1)}, {sr(sT0)}, {vr(vT)}")
        A(f"v_add_u32 {vr(vT+2)}, {sr(sT1)}, {vr(vT)}")
        A("s_waitcnt lgkmcnt(0)")
        fr = [vAfA + 2 * n for n in range(3)]
        for n in range(3):
            lo, mo = vAfA + 8 + 2 * n, vAfA + 9 + 2 * n
            m, f, fo = vAfA + 16 + n, fr[n], fr[n] + 1
            A(f"v_min_f32 {vr(m)}, {vr(nmr[n])}, {vr(mo)}")
            A(f"v_sub_f32 {vr(f)}, {vr(m)}, {vr(nmr[n])}")
            A(f"v_sub_f32 {vr(fo)}, {vr(m)}, {vr(mo)}")
            A(f"v_exp_f32 {vr(f)}, {vr(f)}")
            A(f"v_exp_f32 {vr(fo)}, {vr(fo)}")
            A("s_nop 0")
            A(f"v_mul_f32 {vr(m)}, {vr(f)}, {vr(vLq[n])}")
            A(f"v_fma_f32 {vr(m)}, {vr(fo)}, {vr(lo)}, {vr(m)}")
            A(f"v_rcp_f32 {vr(m)}, {vr(m)}")
            A("s_nop 0")
            A(f"v_mul_f32 {vr(f)}, {vr(f)}, {vr(m)}")
        c("slots 4-7 go to the partner wave, scaled and packed to bf16")
        for k in range(24):
            o = vO + 48 + 2 * k
            A(self.pkmul(o, fr[(k // 2) % 3]))
        for k in range(24):
            o = vO + 48 + 2 * k
            A(f"v_cvt_pk_bf16_f32 {vr(vS+k)}, {vr(o)}, {vr(o+1)}")
            if k % 4 == 3:
                A(f"ds_write_b128 {vr(vT+1)}, {vr(vS+k-3,4)} offset:{(k//4)*1024}")
        A(f"s_and_b32 {sr(sT0)}, {sr(sW)}, 1")
        A(f"s_lshl_b32 {sr(sT0)}, {sr(sT0)}, 3")
        A(f"s_mov_b32 {sr(sT2)}, 0xffff0000")
        self.head(None)
        for k in range(6):
            A(f"ds_read_b128 {vr(vS+24+4*k,4)}, {vr(vT+2)} offset:{k*1024}")
        self.act_write_addr(sBlk, sT0)
        c("own share of the first Wo tiles must be in; the warm-up loads behind them need not")
        self.is_loader("L_mw0")
        A(f"s_cmp_eq_u32 {sr(sOrd)}, 1")
        A("s_cbranch_scc0 L_mw0")
        A(f"s_waitcnt vmcnt({4*len(self.pf_a)})")
        A("s_branch L_mw2")
        lab("L_mw0")
        A("s_waitcnt vmcnt(0)")
        lab("L_mw2")
        self.head(None)
        for jj in range(4):
            if jj:
                A(f"v_xor_b32 {vr(vT+3)}, {jj*32}, {vr(vT+1)}")
            for n in range(3):
                k = (jj * 3 + n) * 2
                for h in range(2):
                    x = vS + 2 * h
                    A(f"v_lshlrev_b32 {vr(x)}, 16, {vr(vS+24+k+h)}")
                    A(f"v_and_b32 {vr(x+1)}, {sr(sT2)}, {vr(vS+24+k+h)}")
                    A(f"v_pk_fma_f32 {vr(x,2)}, {vr(vO+2*(k+h),2)}, {vr(fr[n],2)}, {vr(x,2)} op_sel_hi:[1,0,1]")
                    A(f"v_cvt_pk_bf16_f32 {vr(vS+4+(k+h)%8)}, {vr(x)}, {vr(x+1)}")
                A(f"ds_write_b64 {vr(vT+3 if jj else vT+1)}, {vr(vS+4+k%8,2)} offset:{n*XN}")
        A(f"s_mov_b32 {sr(sZero)}, 1")
        c("the loaders stream the B-branch x into the blocks the projection has finished with")
        self.srd(SRD_AUX, sBx, 786432)
        self.is_loader("L_xs")
        A("s_branch L_xs2")
        lab("L_xs")
        self.x_setup(vY)
        lab("L_xs2")
        A(f"s_and_b32 {sr(sHook)}, {sr(sOrd)}, 1")
        A(f"s_mov_b32 {sr(sLate)}, {sr(sOrd)}")
        self.stamp(9)
        A(f"s_mov_b32 {sr(sBlk)}, 0")
        A(f"s_call_b64 {sr(LINK_S,2)}, L_wide")
        A(f"s_lshl_b32 {sr(sT0)}, {sr(sB)}, 3")
        A(f"s_add_u32 {sr(sT0)}, {sr(sT0)}, {sr(sG)}")
        A(f"s_mul_i32 {sr(sT0)}, {sr(sT0)}, {PART}")
        A(f"s_add_u32 {sr(sT0)}, {sr(sT0)}, {PART_A_BASE}")
        A(f"s_cmp_eq_u32 {sr(sOrd)}, 2")
        A("s_cbranch_scc1 L_last")
        self.is_loader("L_apk")
        A("s_barrier")
        A("s_waitcnt vmcnt(0)")
        self.pack_y(False, True)
        lab("L_apk")
        self.srd(SRD_WO, sBwo, 4194304)
        A(f"s_mov_b32 {sr(sZero)}, 1")
        self.stamp(10)
        A(f"s_mov_b32 {sr(sHook)}, 0")
        A("s_branch L_q0")
        lab("L_bpath")
        A(f"s_lshl_b32 {sr(sQKi)}, {sr(sOrd)}, 3")
        A(f"s_lshr_b32 {sr(sQKi)}, {hex(6 | 46 << 8 | 6 << 16)}, {sr(sQKi)}")
        A(f"s_and_b32 {sr(sQKi)}, {sr(sQKi)}, 0xff")
        A(f"s_mov_b32 {sr(sBlk)}, {4*BLK}")

        lab("L_head")
        c("scores of one B head; waves 0-3 join the loading here and first decode the pending tile")
        self.is_loader("L_qk_sync")
        A(f"s_mov_b32 {sr(sIdx)}, {sr(sQKi)}")
        A(f"v_readlane_b32 {sr(sE)}, {vr(vTab)}, {sr(sQKi)}")
        A(f"s_sub_u32 {sr(sI[0])}, {sr(sC)}, {TILE}")
        A(f"s_cselect_b32 {sr(sI[0])}, {(NSLOT-1)*TILE}, {sr(sI[0])}")
        A(f"s_add_u32 {sr(sI[0])}, {sr(sI[0])}, {sr(sW1024)}")
        self.weave([], self.prep(0, False))
        lab("L_qk_sync")
        A(f"s_add_u32 {sr(sQKi)}, {sr(sQKi)}, 12")
        A(f"s_max_u32 {sr(sQKi)}, {sr(sQKi)}, 26")
        A(f"v_add_u32 {vr(vT)}, {sr(sC)}, {vr(vKb)}")
        for s in range(1, 4):
            A(f"v_xor_b32 {vr(vT+s)}, {s*64}, {vr(vT)}")
        rf = [vQs + 12, vQs + 14, vQs + 16]
        sm = [vQs + 18, vQs + 20, vQs + 22]

        def st(t, n):
            return vS + (t * 3 + n) * 4

        def b_sub(t):
            return [[f"v_pk_add_f32 {vr(st(t,n)+r,2)}, {vr(st(t,n)+r,2)}, {vr(rf[n],2)} op_sel_hi:[1,0] neg_lo:[0,1] neg_hi:[0,1]"]
                    for n in range(3) for r in (0, 2)]

        def b_check(t):
            f = [[x] for x in self.maxn(vT + 5, [st(t, 0) + r for r in range(12)])]
            return f + [[f"v_cmp_lt_f32 vcc, {sr(sThr)}, {vr(vT+5)}", f"s_cbranch_vccnz L_rb{t}", f"L_nb{t}:"]]

        def b_exp(t):
            f = [[f"v_exp_f32 {vr(st(t,0)+r)}, {vr(st(t,0)+r)}"] for r in range(12)]
            for n in range(3):
                b = st(t, n)
                f.append([f"v_cvt_pk_bf16_f32 {vr(b)}, {vr(b)}, {vr(b+1)}"])
                f.append([f"v_cvt_pk_bf16_f32 {vr(b+1)}, {vr(b+2)}, {vr(b+3)}"])
            return f

        def p_write(t):
            return [f"ds_write_b64 {vr(vPW)}, {vr(st(t,n),2)} offset:{n*XN+t*BLK}" for n in range(3)]

        def p_early(t):
            l = self.new("pe")
            return [(99, [f"s_cmp_eq_u32 {sr(sHead)}, 3", f"s_cbranch_scc1 {l}"] + p_write(t) + [l + ":"])]

        def b_max0():
            f = []
            for n in range(3):
                f += [[x] for x in self.maxn(sm[0] + n, [st(0, n) + r for r in range(4)])]
            f.append([x.strip() for x in self.cap(self.reduce4, sm[0], "v_max_f32")])
            f.append([f"ds_write_b32 {vr(vSTw)}, {vr(sm[0])}"])
            return f

        def b_ref0():
            f = [[f"v_max_f32 {vr(rf[n])}, {vr(rf[n])}, {vr(rf[n]+1)}" for n in range(3)]]
            for sw in ("v_permlane32_swap_b32", "v_permlane16_swap_b32"):
                f.append([f"v_mov_b32 {vr(rf[n]+1)}, {vr(rf[n])}" for n in range(3)] + ["s_nop 1"] +
                         [f"{sw} {vr(rf[n])}, {vr(rf[n]+1)}" for n in range(3)] + ["s_nop 1"] +
                         [f"v_max_f32 {vr(rf[n])}, {vr(rf[n])}, {vr(rf[n]+1)}" for n in range(3)])
            return f

        for T in range(4):
            p = T % 2
            if opt.get("qst"):
                self.stamp(18)
            self.head(4 if T else 8)
            if T == 1:
                for n in range(3):
                    A(f"ds_read_b64 {vr(rf[n],2)}, {vr(vT+5)} offset:{n*512}")
            if T == 0:
                self.load_bfrags_dyn(vKf, QF)
            for s in range(4):
                A(f"ds_read_b128 {vr(vKf+4*s,4)}, {vr(vT+s)}")
            nxt = self.prep(1 - p)
            if T < 3:
                nxt.append([f"v_add_u32 {vr(vT+4)}, {sr(sC)}, {vr(vKb)}"])
                nxt += [[f"v_xor_b32 {vr(vT+s)}, {s*64}, {vr(vT+4)}"] for s in range(4)]
            self.weave([], nxt)
            if opt.get("qst"):
                self.stamp(16)
            if T == 0:
                A(f"v_mov_b32 {vr(vT+5)}, {FLAG}")
                A(f"v_mov_b32 {vr(vT+6)}, 0")
            prim = []
            for s in range(4):
                prim.append(("w", [f"  s_waitcnt lgkmcnt({3-s})"]))
                for n in range(3):
                    prim.append(self.M(st(T, n), vKf + 4 * s, QF[n * 4 + s], 0 if s == 0 else None))
            fill = []
            if T == 1:
                fill = b_ref0() + b_sub(0) + b_exp(0) + p_early(0)
            if T >= 2:
                fill = b_sub(T - 1) + b_check(T - 1) + b_exp(T - 1) + p_early(T - 1)
            self.weave(prim, fill, per=3)
            if T == 0:
                A(f"ds_write_b32 {vr(vT+5)}, {vr(vT+6)}")
                self.lane(vT + 5)
                A(f"v_lshrrev_b32 {vr(vT+5)}, 4, {vr(vT+5)}")
                A(f"v_lshl_add_u32 {vr(vT+5)}, {vr(vT+5)}, 3, {vr(vSTr)}")
                A("s_nop 4")
                self.weave([], b_max0())
            if opt.get("qst"):
                self.stamp(17)
            if T < 3:
                self.split_dma(p, True if T < 2 else None)
        self.stamp(2)
        c("last score tile; a wave that had to raise its reference left a flag")
        A(f"v_mov_b32 {vr(vT+4)}, {FLAG}")
        A("s_nop 6")
        self.split_dma(1, None)
        self.weave([], b_sub(3) + b_check(3) + b_exp(3))
        self.bsm = (rf, sm, st, p_write)
        A(f"s_mov_b32 {sr(sHook)}, 0")
        A(f"s_mov_b32 {sr(sBlkEnd)}, 0")
        A(f"s_mov_b32 {sr(sFix)}, 0")
        A(f"s_cmp_eq_u32 {sr(sHead)}, 3")
        A("s_cbranch_scc1 L_first")
        self.emit(p_write(3))
        A(f"s_mov_b32 {sr(sLate)}, 0")
        self.head(4)
        self.stamp(3)
        A(f"s_bitcmp1_b32 {sr(sW)}, 2")
        A("s_cbranch_scc0 L_pv_body")
        A(f"ds_read_b32 {vr(vT+5)}, {vr(vT+4)}")
        A("s_waitcnt lgkmcnt(0)")
        A(f"v_cmp_ne_u32 vcc, 0, {vr(vT+5)}")
        A("s_cbranch_vccz L_ld_ok")
        A(f"s_call_b64 {sr(LINK_S,2)}, L_bfix")
        lab("L_ld_ok")
        for k in range(4):
            self.dma(k, 0, True, False)
        A(f"s_mov_b32 {sr(sT4)}, 0")
        A(f"s_call_b64 {sr(LINK_S,2)}, L_load2")
        A("s_branch L_pv_done")
        lab("L_first")
        c("B role, first head: remaining Q projections while x is still live")
        self.head(None)
        A(f"ds_read_b32 {vr(vT+5)}, {vr(vT+4)}")
        A("s_waitcnt lgkmcnt(0)")
        A(f"v_cmp_ne_u32 vcc, 0, {vr(vT+5)}")
        A("s_cbranch_vccz L_f_ok")
        A(f"s_call_b64 {sr(LINK_S,2)}, L_bfix")
        lab("L_f_ok")
        A(f"s_mov_b32 {sr(sHook)}, 0")
        self.is_loader("L_f_ld")
        A("s_waitcnt vmcnt(0)")
        A("s_branch L_f_go")
        lab("L_f_ld")
        for k in range(4):
            self.dma(k, 0, False, guard=False)
        A("s_waitcnt vmcnt(12)")
        lab("L_f_go")
        for k in range(2):
            A(f"s_mov_b32 {sr(sLate)}, {k}")
            A(f"s_call_b64 {sr(LINK_S,2)}, L_qproj")
            l = self.new("q")
            self.is_loader(l)
            for r in range(0, 12, 2):
                A(f"v_mov_b64 {vr(vQs+12*k+r,2)}, {vr(vAcc+r,2)}")
            if k:
                A("s_barrier")
            lab(l)
        self.stamp(12)
        for t in range(4):
            self.emit(p_write(t))
        A(f"s_mov_b32 {sr(sFix)}, 1")
        A(f"v_mov_b32 {vr(vT+4)}, {FLAG}")
        c("P x V")
        A(f"s_mov_b32 {sr(sLate)}, 0")
        self.is_loader("L_pv_ld")
        vOn = vY - 16
        pre2 = [x.strip() for x in self.cap(q_write, vQs, 0)]
        ex2 = [[f"v_mov_b64 {vr(vQs+r,2)}, {vr(vQs+12+r,2)}"] for r in range(0, 12, 2)]
        chk = [f"  v_cmp_ne_u32 vcc, 0, {vr(vT+5)}", f"  s_cbranch_vccnz L_pv_fix", "L_pv_go:"]
        chk += [f"  v_mov_b32 {vr(vOn+k)}, 0x3f803f80" for k in range(4)] + ["  s_nop 1"]
        self.cold += ["L_pv_fix:", f"  s_cmp_eq_u32 {sr(sFix)}, 0", "  s_cbranch_scc0 L_pv_go",
                      f"  s_call_b64 {sr(LINK_S,2)}, L_bfix", "  s_branch L_pv_body"]
        self.narrow(pre={0: [f"ds_read_b32 {vr(vT+5)}, {vr(vT+4)}"], 2: pre2},
                    extra={2: ex2}, early=True, body="L_pv_body", check=chk, ones=vOn, vm1=0)
        mreg = [vOn + 4 + 4 * n for n in range(3)]
        A("s_nop 7")
        for n in range(3):
            A(f"v_rcp_f32 {vr(mreg[n])}, {vr(mreg[n])}")
        for k in range(6):
            a = vAcc + 4 * k
            A(self.pkmul(a, mreg[k % 3]))
            A(self.pkmul(a + 2, mreg[k % 3]))
            A(f"v_cvt_pk_bf16_f32 {vr(vAcc+2*k)}, {vr(a)}, {vr(a+1)}")
            A(f"v_cvt_pk_bf16_f32 {vr(vAcc+2*k+1)}, {vr(a+2)}, {vr(a+3)}")
        q_write(vAcc, 4)
        A("s_branch L_pv_done")
        lab("L_pv_ld")
        A(f"s_call_b64 {sr(LINK_S,2)}, L_load")
        lab("L_pv_done")
        self.stamp(4)
        c("output projection")
        A(f"s_mov_b32 {sr(sHook)}, 0")
        A(f"s_sub_u32 {sr(sHead)}, {sr(sHead)}, 1")
        A(f"s_mov_b32 {sr(sLate)}, 2")
        A(f"s_cmp_eq_u32 {sr(sOrd)}, 2")
        A("s_cbranch_scc0 L_ob")
        A(f"s_mov_b32 {sr(sLate)}, 1")
        A(f"s_mov_b32 {sr(sHook)}, 2")
        self.srd(SRD_K, sAk, 16777216)
        self.srd(SRD_V, sAv, 16777216)
        self.srd(SRD_AUX, sAx, 786432)
        lab("L_ob")
        A(f"s_mov_b32 {sr(sBlk)}, 16")
        A(f"s_call_b64 {sr(LINK_S,2)}, L_wide")
        self.stamp(5)
        A(f"s_mov_b32 {sr(sBlk)}, 0")
        A(f"s_cmp_eq_u32 {sr(sHead)}, 0")
        A("s_cbranch_scc1 L_bdone")
        self.is_loader("L_head")
        self.wide_drain()
        A("s_branch L_head")
        lab("L_bdone")
        c("store the B-branch partial")
        A(f"s_lshl_b32 {sr(sT0)}, {sr(sB)}, 4")
        A(f"s_lshl_b32 {sr(sT1)}, {sr(sRole)}, 3")
        A(f"s_add_u32 {sr(sT0)}, {sr(sT0)}, {sr(sT1)}")
        A(f"s_add_u32 {sr(sT0)}, {sr(sT0)}, {sr(sG)}")
        A(f"s_mul_i32 {sr(sT0)}, {sr(sT0)}, {PART}")
        A(f"s_cmp_eq_u32 {sr(sOrd)}, 2")
        A("s_cbranch_scc0 L_last")
        self.is_loader("L_bpk2")
        A("s_barrier")
        self.pack_y(False, True)
        lab("L_bpk2")
        self.srd(SRD_WO, sAwo, 4194304)
        A(f"s_mov_b32 {sr(sZero)}, 1")
        self.stamp(6)
        A("s_branch L_apath")
        lab("L_last")
        self.stamp(16)
        self.is_loader("L_bpk")
        self.pack_y(False, True)
        self.stamp(6)
        if self.fuse:
            self.publish()
        A("s_branch L_fin")
        lab("L_bpk")
        if self.fuse:
            c("waves 4-6 sum one 1 KiB block each of this workgroup's slice of the output")
            A(f"s_cmp_eq_u32 {sr(sW)}, 7")
            A("s_cbranch_scc1 L_fin")
            self.stamp(8)
            self.reduce_setup()
            A(f"s_lshl_b32 {sr(rKb)}, {sr(sRole)}, 3")
            A(f"s_add_u32 {sr(rKb)}, {sr(rKb)}, {sr(sG)}")
            A(f"s_mul_i32 {sr(rKb)}, {sr(rKb)}, 3")
            A(f"s_add_u32 {sr(rKb)}, {sr(rKb)}, {sr(sW)}")
            A(f"s_sub_u32 {sr(rKb)}, {sr(rKb)}, 4")
            A(f"s_sub_u32 {sr(rMode)}, {sr(sW)}, 4")
            A(f"s_min_u32 {sr(rMode)}, {sr(rMode)}, 1")
            A(f"s_call_b64 {sr(LINK_S,2)}, L_reduce")
        lab("L_fin")
        if opt.get("dbg"):
            A("s_waitcnt vmcnt(0)")
            A("s_memrealtime s[76:77]")
            A("s_memtime s[68:69]")
            A("s_waitcnt lgkmcnt(0)")
            A("s_sub_u32 s68, s68, s78")
            A("v_mov_b32 v16, v23")
            A("v_mov_b32 v17, s76")
            A("v_mov_b32 v18, s68")
            A("s_getreg_b32 s69, hwreg(HW_REG_XCC_ID)")
            A("v_mov_b32 v19, s69")
            A("s_lshl_b32 s70, s2, 4")
            A("s_add_u32 s70, s70, 0x4000000")
            A("v_mov_b32 v21, s70")
            A(f"s_cmp_eq_u32 s3, {4 if self.fuse else 0}")
            A("s_cbranch_scc0 L_end")
            A("s_mov_b64 exec, 1")
            A("global_store_dwordx4 v21, v[16:19], s[54:55]")
        if opt.get("stamps"):
            A("s_waitcnt vmcnt(0)")
            self.stamp(11)
            self.srd(SRD_AUX, sWs, 268435456)
            A(f"s_lshl_b32 {sr(sT0)}, s2, 3")
            A(f"s_add_u32 {sr(sT0)}, {sr(sT0)}, {sr(sW)}")
            A(f"s_lshl_b32 {sr(sT0)}, {sr(sT0)}, 8")
            A(f"s_add_u32 {sr(sT0)}, {sr(sT0)}, {64*1024*1024}")
            self.lane(vT)
            A(f"v_lshlrev_b32 {vr(vT)}, 2, {vr(vT)}")
            A(f"buffer_store_dword {vr(23)}, {vr(vT)}, {sr(SRD_AUX,4)}, {sr(sT0)} offen")
        lab("L_end")
        A("s_endpgm")

        sc = vLq[0] + 1

        def sub_delta(sg):
            for n in range(3):
                for r in range(8):
                    b = sa(sg, n, 0) + r
                    A(f"v_sub_f32 {vr(b)}, {vr(b)}, {vr(vDl+n)}")

        def allmax(sg):
            for n in range(3):
                self.emit(self.maxn(vDl + n, [sa(sg, n, 0) + r for r in range(8)]))
                for sw in ("v_permlane32_swap_b32", "v_permlane16_swap_b32"):
                    A(f"v_mov_b32 {vr(sc)}, {vr(vDl+n)}")
                    A("s_nop 1")
                    A(f"{sw} {vr(vDl+n)}, {vr(sc)}")
                    A("s_nop 1")
                    A(f"v_max_f32 {vr(vDl+n)}, {vr(vDl+n)}, {vr(sc)}")

        def scale_state(with_p0):
            for n in range(3):
                A(f"v_max_f32 {vr(vDl+n)}, 0, {vr(vDl+n)}")
                A(f"v_exp_f32 {vr(sc)}, -{vr(vDl+n)}")
                A("s_nop 0")
                A(f"v_mul_f32 {vr(vLq[n])}, {vr(vLq[n])}, {vr(sc)}")
                for mt in range(8):
                    for r in range(4):
                        o = vO + (mt * 3 + n) * 4 + r
                        A(f"v_mul_f32 {vr(o)}, {vr(o)}, {vr(sc)}")
                if with_p0:
                    b = sa(0, n, 0)
                    for r in range(4):
                        A(f"v_lshlrev_b32 {vr(b+4)}, 16, {vr(b+r)}")
                        A(f"v_and_b32 {vr(b+5)}, 0xffff0000, {vr(b+r)}")
                        A(f"v_mul_f32 {vr(b+4)}, {vr(b+4)}, {vr(sc)}")
                        A(f"v_mul_f32 {vr(b+5)}, {vr(b+5)}, {vr(sc)}")
                        A(f"v_cvt_pk_bf16_f32 {vr(b+r)}, {vr(b+4)}, {vr(b+5)}")

        lab("L_r0first")
        allmax(0)
        sub_delta(0)
        A(f"s_mov_b32 {sr(sFix)}, 1")
        A("s_branch L_n0f")
        lab("L_r0")
        allmax(0)
        scale_state(False)
        sub_delta(0)
        A(f"s_mov_b32 {sr(sFix)}, 1")
        A("s_branch L_n0l")
        for u in "fl":
            lab(f"L_r0b{u}")
            A(f"s_call_b64 {sr(LINK_S,2)}, L_fix1")
            A(f"s_branch L_n0b{u}")
            lab(f"L_r1{u}")
            A(f"s_call_b64 {sr(LINK_S,2)}, L_scale1")
            A(f"s_branch L_n1{u}")
        lab("L_scale1")
        allmax(1)
        scale_state(True)
        lab("L_fix1")
        sub_delta(1)
        for n in range(3):
            for r in range(4):
                A(f"v_sub_f32 {vr(vNm[n]+r)}, {vr(vNm[n]+r)}, {vr(vDl+n)}")
        A(f"s_mov_b32 {sr(sFix)}, 0")
        A(f"s_setpc_b64 {sr(LINK_S,2)}")

        self.L += self.cold
        rf, sm, st, p_write = self.bsm

        def repack(regs, f, lo, hi):
            for r in regs:
                A(f"v_lshlrev_b32 {vr(lo)}, 16, {vr(r)}")
                A(f"v_and_b32 {vr(hi)}, 0xffff0000, {vr(r)}")
                A(f"v_mul_f32 {vr(lo)}, {vr(lo)}, {vr(f)}")
                A(f"v_mul_f32 {vr(hi)}, {vr(hi)}, {vr(f)}")
                A(f"v_cvt_pk_bf16_f32 {vr(r)}, {vr(lo)}, {vr(hi)}")

        for t in range(1, 4):
            lab(f"L_rb{t}")
            d, f = vT + 5, vT + 6
            for n in range(3):
                self.emit(self.maxn(d, [st(t, n) + r for r in range(4)]))
                for sw in ("v_permlane32_swap_b32", "v_permlane16_swap_b32"):
                    A(f"v_mov_b32 {vr(f)}, {vr(d)}")
                    A("s_nop 1")
                    A(f"{sw} {vr(d)}, {vr(f)}")
                    A("s_nop 1")
                    A(f"v_max_f32 {vr(d)}, {vr(d)}, {vr(f)}")
                A(f"v_max_f32 {vr(d)}, 0, {vr(d)}")
                A(f"v_exp_f32 {vr(f)}, -{vr(d)}")
                A(f"v_add_f32 {vr(rf[n])}, {vr(rf[n])}, {vr(d)}")
                for r in range(4):
                    A(f"v_sub_f32 {vr(st(t,n)+r)}, {vr(st(t,n)+r)}, {vr(d)}")
                repack([st(u, n) + k for u in range(t) for k in range(2)], f, st(0, n) + 2, st(0, n) + 3)
            A(f"s_lshl_b32 {sr(sT0)}, {sr(sW)}, 2")
            A(f"v_add_u32 {vr(d)}, {sr(sT0)}, {vr(vSTr)}")
            for n in range(3):
                A(f"ds_write_b32 {vr(d)}, {vr(rf[n])} offset:{n*512}")
            A(f"v_mov_b32 {vr(d)}, {FLAG}")
            A(f"v_mov_b32 {vr(f)}, 1")
            A(f"ds_write_b32 {vr(d)}, {vr(f)}")
            A(f"s_branch L_nb{t}")
        lab("L_bfix")
        A("s_waitcnt lgkmcnt(0)")
        for n in range(3):
            A(f"ds_read_b128 {vr(vFr,4)}, {vr(vSTr)} offset:{n*512}")
            A(f"ds_read_b128 {vr(vFr+4,4)}, {vr(vSTr)} offset:{n*512+16}")
            A("s_waitcnt lgkmcnt(0)")
            self.emit(self.maxn(rf[n] + 1, [rf[n]] + [vFr + r for r in range(8)]))
            A(f"v_sub_f32 {vr(rf[n])}, {vr(rf[n])}, {vr(rf[n]+1)}")
            A(f"v_exp_f32 {vr(rf[n])}, {vr(rf[n])}")
            A("s_nop 0")
            repack([st(u, n) + k for u in range(4) for k in range(2)], rf[n], st(0, n) + 2, st(0, n) + 3)
        A(f"s_mov_b32 {sr(sFix)}, 1")
        A(f"s_cmp_eq_u32 {sr(sHead)}, 3")
        A("s_cbranch_scc1 L_bfix_ret")
        A("s_barrier")
        for t in range(4):
            self.emit(p_write(t))
        self.head(None)
        lab("L_bfix_ret")
        A(f"s_setpc_b64 {sr(LINK_S,2)}")

        if self.fuse:
            self.reduce_sub()
        lab("L_qproj")
        A(f"s_mov_b32 {sr(sBlkEnd)}, 0")
        self.is_loader("L_load")
        self.narrow()
        A(f"v_mov_b32 {vr(vT)}, {sr(sScale)}")
        A("s_nop 6")
        for k in range(6):
            a = vAcc + 4 * k
            A(self.pkmul(a, vT))
            A(self.pkmul(a + 2, vT))
            A(f"v_cvt_pk_bf16_f32 {vr(vAcc+2*k)}, {vr(a)}, {vr(a+1)}")
            A(f"v_cvt_pk_bf16_f32 {vr(vAcc+2*k+1)}, {vr(a+2)}, {vr(a+3)}")
        A(f"s_setpc_b64 {sr(LINK_S,2)}")

        def af(j, p):
            return vFr + 4 * (j + 2 * p if j >= 6 else j)

        def wb(n, p):
            return vAcc + (p * 3 + n) * 4

        def wide_rd(j, p):
            a = vT + 1 + (j % 2)
            A(f"v_xor_b32 {vr(a)}, {j*32}, {vr(vT+3+3*p)}")
            self.tr_pair(af(j, p), a, 0)

        def wide_addr(t):
            return [[f"s_add_u32 {sr(sT0)}, {sr(sC)}, {sr(sT1)}"],
                    [f"v_add_u32 {vr(vT+3+3*(t%2))}, {sr(sT0)}, {vr(vTR0)}"],
                    [f"s_and_b32 {sr(sT3)}, {sr(sBlk)}, 3"], [f"s_lshl_b32 {sr(sT3)}, {sr(sT3)}, 6"],
                    [f"s_lshr_b32 {sr(sT5)}, {sr(sBlk)}, 2"], [f"s_mul_i32 {sr(sT5)}, {sr(sT5)}, {BLK}"],
                    [f"v_xor_b32 {vr(vT+5)}, {sr(sT3)}, {vr(vXB)}"], [f"v_add_u32 {vr(vT+5)}, {sr(sT5)}, {vr(vT+5)}"]]

        def wide_step(t, pending, reads=True, zero=False):
            p = t % 2
            if reads:
                self.head(None)
            else:
                A("s_waitcnt lgkmcnt(0)")
            prim = []
            for j in range(8):
                if pending and not opt.get("nomfma"):
                    for n in range(3):
                        prim.append(self.M(vY + (j * 3 + n) * 4, af(j, 1 - p), wb(n, 1 - p), 0 if zero else None))
                if reads and not opt.get("nords"):
                    if j == 0:
                        prim.append(("r", [f"  ds_read_b128 {vr(wb(n,p),4)}, {vr(vT+5)} offset:{n*XN}" for n in range(3)]))
                    if j < 6:
                        prim.append(("r", self.cap(wide_rd, j, p)))
                    if j < 2:
                        prim.append(("r", self.cap(wide_rd, 6 + j, p)))
            fill = []
            if reads:
                fill = self.rot()
                if t == 3:
                    fill.append([f"s_add_u32 {sr(sT4)}, {sr(sT4)}, {BLK}"])
                fill += [[f"s_add_u32 {sr(sBlk)}, {sr(sBlk)}, 1"], [f"s_and_b32 {sr(sBlk)}, {sr(sBlk)}, {sr(sT2)}"]]
                fill += wide_addr((t + 1) % 4)
            self.weave(prim, fill, per=1, start=5)

        lab("L_wide")
        self.is_loader("L_load")
        A(f"s_lshl_b32 {sr(sT1)}, {sr(sW)}, 13")
        A(f"s_mov_b32 {sr(sT4)}, 0")
        A(f"s_cmp_eq_u32 {sr(sBlkEnd)}, 0")
        A(f"s_cselect_b32 {sr(sT2)}, 31, 15")
        self.weave([], wide_addr(0))
        wide_step(0, False)
        A(f"s_cmp_eq_u32 {sr(sZero)}, 0")
        A("s_cbranch_scc1 L_wide_loop")
        A(f"s_mov_b32 {sr(sZero)}, 0")
        wide_step(1, True, zero=True)
        A("s_branch L_wide_s2")
        lab("L_wide_loop")
        wide_step(1, True)
        lab("L_wide_s2")
        wide_step(2, True)
        wide_step(3, True)
        A(f"s_cmp_gt_u32 {sr(sT4)}, {sr(sBlkEnd)}")
        A("s_cbranch_scc1 L_wide_drain")
        wide_step(0, True)
        A("s_branch L_wide_loop")
        lab("L_wide_drain")
        A("s_waitcnt lgkmcnt(0)")
        A(f"s_setpc_b64 {sr(LINK_S,2)}")

        def ld_step(p, vm, prep=True, xblk=None):
            self.head(vm)
            l1, l2 = self.new("kv"), self.new("dd")
            variants = [self.wf] if self.kvf == self.wf else [self.wf, self.kvf]
            if len(variants) > 1:
                A(f"s_bitcmp1_b32 6, {sr(sTy[p])}")
                A(f"s_cbranch_scc1 {l1}")
            for vi, fl in enumerate(variants):
                if vi:
                    A(f"s_branch {l2}")
                    lab(l1)
                prim = []
                for k in range(8):
                    ins = [f"  s_add_u32 m0, {sr(sI[p])}, {k*4096}"]
                    if k % 2:
                        ins.append(f"  s_add_u32 {sr(sOff2)}, {sr(sOff[p])}, {sr(sHalf[p])}")
                    elif k:
                        ins.append(f"  s_add_u32 {sr(sOff[p])}, {sr(sOff[p])}, {sr(sStr[p])}")
                    else:
                        ins.append("  s_nop 0")
                    ins.append(f"  buffer_load_dwordx4 {vr(vCur[p])}, {sr(SRD_CUR[p],4)}, {sr(sOff2 if k % 2 else sOff[p])} offen{fl} lds")
                    if vi and k == 6:
                        ins = self.ev() + ins
                    prim.append(("m", ins))
                self.weave(prim, self.prep(1 - p) if prep else [], per=2)
            lab(l2)
            if xblk is not None:
                l3 = self.new("hk")
                A(f"s_cmp_eq_u32 {sr(sHook)}, 1")
                A(f"s_cbranch_scc0 {l3}")
                self.x_block(vY, 0)
                A(f"s_add_u32 {sr(sT1)}, {sr(sT1)}, 256")
                A(f"s_add_u32 {sr(sT2)}, {sr(sT2)}, {BLK}")
                lab(l3)

        lab("L_load")
        A(f"s_mov_b32 {sr(sT4)}, 0")
        A(f"s_cmp_eq_u32 {sr(sIdx)}, 3")
        A("s_cbranch_scc0 L_load1")
        self.head(3)
        self.first_tile(1)
        self.x_rot(vY, 2)
        self.first_tile(2)
        self.x_rot(vY, 3)
        A("s_branch L_load2")
        lab("L_load1")
        self.head(16)
        lab("L_load2")
        self.weave([], self.prep(1))
        lab("L_ldloop")
        ld_step(1, 8)
        A(f"s_cmp_eq_u32 {sr(sHook)}, 2")
        A("s_cbranch_scc0 L_ldh2")
        self.x_setup(vY)
        self.x_rot(vY, 0, True)
        self.x_rot(vY, 1, True)
        lab("L_ldh2")
        ld_step(0, 8)
        A(f"s_cmp_eq_u32 {sr(sLate)}, 3")
        A("s_cbranch_scc0 L_ld3")
        A(f"s_cmp_eq_u32 {sr(sT4)}, {sr(sBlkEnd)}")
        A("s_cbranch_scc0 L_ld3")
        self.head(8)
        self.weave([], self.prep(0))
        A("s_barrier")
        for k in range(4):
            self.dma(k, 1, True, guard=False)
        A(f"s_setpc_b64 {sr(LINK_S,2)}")
        lab("L_ld3")
        ld_step(1, 8)
        A(f"s_add_u32 {sr(sT4)}, {sr(sT4)}, {BLK}")
        A(f"s_cmp_gt_u32 {sr(sT4)}, {sr(sBlkEnd)}")
        A("s_cbranch_scc1 L_lddrain")
        ld_step(0, 8, xblk=0)
        A("s_branch L_ldloop")
        lab("L_lddrain")
        A(f"s_cmp_eq_u32 {sr(sLate)}, 2")
        A("s_cbranch_scc1 L_ldret")
        ld_step(0, None, prep=False, xblk=3)
        A(f"s_cmp_eq_u32 {sr(sHook)}, 2")
        A("s_cbranch_scc0 L_ldret")
        self.x_rot(vY, 2, True)
        self.x_rot(vY, 3, True)
        lab("L_ldret")
        A(f"s_setpc_b64 {sr(LINK_S,2)}")

    def reduce_kernel(self):
        A, lab = self.A, self.lab
        K2 = "reduce_partials_kernel"
        self.L += [f".globl {K2}", ".p2align 8", f".type {K2},@function"]
        lab(K2)
        A("s_cmp_ge_u32 s2, 384")
        A("s_cbranch_scc1 L_r_end")
        A("s_load_dwordx2 s[4:5], s[0:1], 80")
        A("s_load_dwordx2 s[6:7], s[0:1], 96")
        if self.opt.get("dbg") == 2:
            A("s_cmp_eq_u32 s2, 0")
            A("s_cbranch_scc0 L_r_nod")
            A("s_load_dwordx2 s[26:27], s[0:1], 88")
            A("s_memrealtime s[28:29]")
            A("s_waitcnt lgkmcnt(0)")
            A("v_lshlrev_b32 v1, 4, v0")
            A("v_add_u32 v1, 0x4000000, v1")
            A("global_load_dwordx4 v[8:11], v1, s[6:7]")
            A("s_waitcnt vmcnt(0)")
            A("v_not_b32 v12, v8")
            A("v_sub_u32 v13, v9, v8")
            A("v_mov_b32 v14, 0")
            A("v_lshrrev_b32 v15, 7, v0")
            A("v_lshlrev_b32 v15, 3, v15")
            A("v_mov_b32 v7, s28")
            A("global_atomic_umax v14, v12, s[26:27]")
            A("global_atomic_umax v14, v9, s[26:27] offset:4")
            A("global_atomic_umax v15, v13, s[26:27] offset:8")
            A("global_atomic_umax v15, v10, s[26:27] offset:12")
            A("global_atomic_umax v14, v8, s[26:27] offset:24")
            A("global_atomic_umax v14, v7, s[26:27] offset:28")
            lab("L_r_nod")
        A("s_mul_i32 s3, s2, 43691")
        A("s_lshr_b32 s3, s3, 19")
        A("s_mul_i32 s16, s3, 12")
        A("s_sub_u32 s16, s2, s16")
        A("s_and_b32 s17, s3, 15")
        A("s_lshr_b32 s18, s3, 4")
        A("s_lshl_b32 s19, s16, 12")
        A("v_lshlrev_b32 v2, 4, v0")
        A("v_add_u32 v2, s19, v2")
        A("s_mul_i32 s23, s16, 86")
        A("s_lshr_b32 s23, s23, 8")
        A("s_mul_i32 s24, s23, 3")
        A("s_sub_u32 s24, s16, s24")
        A("s_lshl_b32 s24, s24, 15")
        A("s_lshl_b32 s23, s23, 8")
        A("s_add_u32 s24, s24, s23")
        A("v_and_b32 v6, 15, v0")
        A("v_lshlrev_b32 v6, 11, v6")
        A("v_lshrrev_b32 v7, 6, v0")
        A("v_lshl_add_u32 v6, v7, 6, v6")
        A("v_bfe_u32 v7, v0, 4, 1")
        A("v_lshl_add_u32 v6, v7, 5, v6")
        A("v_bfe_u32 v7, v0, 5, 1")
        A("v_lshl_add_u32 v6, v7, 4, v6")
        A("s_waitcnt lgkmcnt(0)")
        A("s_mov_b32 s8, s4"); A("s_mov_b32 s9, s5"); A("s_mov_b32 s10, 1572864"); A("s_mov_b32 s11, 0x20000")
        A("s_mov_b32 s12, s6"); A("s_mov_b32 s13, s7"); A("s_mov_b32 s14, 268435456"); A("s_mov_b32 s15, 0x20000")
        A("s_mul_i32 s20, s17, 98304")
        A("s_add_u32 s20, s20, s24")
        A("s_mov_b32 s22, 0xffff0000")
        A("s_cmp_eq_u32 s18, 1")
        A("s_cbranch_scc1 L_r_A")

        def body(np_):
            for p in range(np_):
                A(f"buffer_load_dwordx4 v[{16+4*p}:{19+4*p}], v2, s[12:15], s21 offen" + self.opt.get("rdflag", ""))
                if p + 1 < np_:
                    A(f"s_add_u32 s21, s21, {PART}")
            for p in range(np_):
                A(f"s_waitcnt vmcnt({np_-1-p})")
                for k in range(4):
                    r = 16 + 4 * p + k
                    if p == 0:
                        A(f"v_lshlrev_b32 v{8+2*k}, 16, v{r}")
                        A(f"v_and_b32 v{9+2*k}, s22, v{r}")
                    else:
                        A(f"v_lshlrev_b32 v4, 16, v{r}")
                        A(f"v_and_b32 v5, s22, v{r}")
                        A(f"v_pk_add_f32 v[{8+2*k}:{9+2*k}], v[{8+2*k}:{9+2*k}], v[4:5]")

        A(f"s_mul_i32 s21, s17, {16*PART}")
        A("s_add_u32 s20, s20, 1024")
        body(16)
        A("s_branch L_r_st")
        lab("L_r_A")
        A(f"s_mul_i32 s21, s17, {8*PART}")
        A(f"s_add_u32 s21, s21, {PART_A_BASE}")
        body(8)
        lab("L_r_st")
        for k in range(4):
            A(f"v_cvt_pk_bf16_f32 v{16+k}, v{8+2*k}, v{9+2*k}")
        A("buffer_store_dwordx4 v[16:19], v6, s[8:11], s20 offen" + self.opt.get("outflag", ""))
        if self.opt.get("dbg"):
            A("s_waitcnt vmcnt(0)")
            A("s_memrealtime s[28:29]")
            A("s_waitcnt lgkmcnt(0)")
            A("v_mov_b32 v16, s28")
            A("s_lshl_b32 s30, s2, 2")
            A("s_add_u32 s30, s30, 0x4100000")
            A("v_mov_b32 v17, s30")
            A("v_cmp_eq_u32 vcc, 0, v0")
            A("s_and_saveexec_b64 s[26:27], vcc")
            A("s_cbranch_execz L_r_end")
            A("global_store_dword v17, v16, s[6:7]")
        lab("L_r_end")
        A("s_endpgm")

    def desc(self, name, nv, ns):
        self.L += [".p2align 6", f".amdhsa_kernel {name}", f"  .amdhsa_next_free_vgpr {nv}",
                   f"  .amdhsa_next_free_sgpr {ns}", f"  .amdhsa_accum_offset {nv}",
                   "  .amdhsa_group_segment_fixed_size 0", "  .amdhsa_kernarg_size 104",
                   "  .amdhsa_user_sgpr_count 2", "  .amdhsa_user_sgpr_kernarg_segment_ptr 1",
                   "  .amdhsa_system_sgpr_workgroup_id_x 1", ".end_amdhsa_kernel"]

    def table_data(self):
        self.L += [".p2align 2", ".type L_table,@object"]
        self.lab("L_table")
        for k in range(0, 192, 8):
            self.A(".long " + ", ".join(hex(x) for x in self.table[k:k+8]))

    def build(self):
        K1 = NAME + "_kernel"
        if self.fuse:
            head = HEADER + f"; @launch grid=(256,1,1) block=(512,1,1) lds={LDS_BYTES}\n"
        else:
            head = HEADER + f"; @launch kernel={K1} grid=(256,1,1) block=(512,1,1) lds={LDS_BYTES}\n"
            head += "; @launch kernel=reduce_partials_kernel grid=(384,1,1) block=(256,1,1) lds=0\n"
        self.L += ['.amdgcn_target "amdgcn-amd-amdhsa--gfx950"', ".text"]
        self.main_kernel()
        if not self.fuse:
            self.reduce_kernel()
        self.table_data()
        self.L += ['.section .rodata,"a"']
        self.desc(K1, 256, 102)
        if not self.fuse:
            self.desc("reduce_partials_kernel", 80, 32)
        return head + "\n".join(self.L) + "\n"


def gen(**opt):
    return G(opt).build()


if __name__ == "__main__":
    out = sys.argv[1] if len(sys.argv) > 1 else f"cdna_kernels/{NAME}.s"
    opt = {}
    for a in sys.argv[2:]:
        k, v = a.split("=", 1)
        opt[k] = int(v) if v.lstrip("-").isdigit() else v
    open(out, "w").write(gen(**opt))
    print("wrote", out)
```

```python
import sys, math, struct

NAME = "concat_heads__gqa_block_cached__mha_block_cached__near_ridge"

HEADER = """; Kernarg layout for this problem (104 bytes, ptrs only, base s[0:1]):
"""

TILE = 32768
NSLOT = 3
XB = NSLOT * TILE
XROW = 256
XN = 16 * XROW
BLK = 48 * XROW
ST = XB + 5 * BLK
FLAG = ST + 3072
RELAY = FLAG + 8
STORED = FLAG + 12
ENTRY = FLAG + 256
WS_FLAGS = 32 * 1024 * 1024
FULL = 0xffffff
POLL_LIMIT = 2000
LDS_BYTES = 163840
PART = 49152
PART_A_BASE = 16 * 16 * PART
NULL_OFF = 0x40000000
IDX_AFTER_ATT = (27, 43)

T_WQ, T_K, T_V, T_WO, T_WQW = 0, 1, 2, 3, 4
ROWSH = [13, 8, 8, 10, 13]
SLABSH = [18, 13, 13, 8, 8]

sW, sC, sIdx, sE = 3, 4, 6, 7
SRD_WQ, SRD_K, SRD_V, SRD_WO, SRD_WQW, SRD_AUX = 8, 12, 16, 20, 24, 28
sAx, sAk, sAv, sAwq, sAwo = 32, 34, 36, 38, 40
sP0, sP1 = 42, 43
sBx, sBk, sBv, sBwq, sBwo = 44, 46, 48, 50, 52
sWs = 54
sB, sG, sRole, sHead, _unused, sScale, sW1024, sBlk, sThr, sIter = 56, 57, 58, 59, 60, 61, 62, 63, 64, 65
sT0, sT1, sT2, sT3, sT4, sT5 = 66, 67, 68, 69, 70, 71
sBlkEnd = 75
sStamp = 76
sFix = 79
sQKi = 99
sOrd = 60
sThrot = 100
sHook = 101
sPendOff = 70
sLate = 65
sZero = 91
SRD_CUR = [80, 84]
sOff, sTy, sStr, sI, sHalf = [72, 94], [73, 95], [74, 96], [5, 97], [88, 89]
sOff2 = 90
LINK_S = 92

rOut, rWs, rDbg, rKb, rMode, rF, rDone, rNew, rCnt, rOffB, rOffA, rOffO, rAb, rK = 8, 12, 16, 18, 19, 20, 21, 22, 23, 24, 25, 26, 27, 28

vTab, vRow, vChunk, vTRw, vTR0, vKb = 1, 2, 3, 5, 6, 7
vCur = [4, 0]
vXB = 8
vQW, vPW, vSTw, vSTr = 12, 13, 14, 15
vT = 16
vAcc = 24
vQs = 48
vFr = 72
vS = 112
vY = 160
QF = [24, 28, 32, 36, 40, 44, 72, 76, 80, 84, 88, 92]
vKf = 96
vKa, vTRa = 5, 7
vNm = [12, 56, 60]
vDl = 20
vOne = 8
vLq = [44, 48, 52]
NFA = 5
vO = 160
vAfA = 24
QA = [64 + 4 * k for k in range(12)]
sQ = [98, 99, 100, 101]


def vr(a, n=1):
    return f"v{a}" if n == 1 else f"v[{a}:{a+n-1}]"


def sr(a, n=1):
    return f"s{a}" if n == 1 else f"s[{a}:{a+n-1}]"


def f32(x):
    return hex(struct.unpack('<I', struct.pack('<f', x))[0])


PAD_TARGETS = {"L_apath", "L_qa_ld", "L_attlast", "L_bpath", "L_first", "L_pv_ld", "L_last", "L_bpk", "L_r0first", "L_r0bf",
               "L_scale1", "L_reduce", "L_qproj", "L_wide", "L_load", "L_load1", "L_ld3", "L_q0ld", "L_pfc", "L_wide_loop",
               "L_wide_drain", "L_lddrain", "L_attdone", "L_bdone", "L_f_ld", "L_mw0", "L_xs", "L_rd_lds"}


class G:
    def __init__(self, opt):
        self.L = []
        self.opt = opt
        self.uid = 0
        self.cold = []
        self.fuse = opt.get("fuse", 1)
        if self.fuse:
            opt.setdefault("stflag", " sc1")
        self.kvf = opt.get("kvflag", " nt")
        self.wf = opt.get("wflag", "")

    def A(self, s):
        self.L.append("  " + s)

    def lab(self, s):
        self.L.append(s + ":")

    def c(self, s):
        self.L.append("  ; " + s)

    def new(self, p):
        self.uid += 1
        return f"L_{p}{self.uid}"

    def mfma(self, d, a, b, c=None):
        cs = "0" if c == 0 else vr(d if c is None else c, 4)
        self.A(f"v_mfma_f32_16x16x32_bf16 {vr(d,4)}, {vr(a,4)}, {vr(b,4)}, {cs}")

    def M(self, d, a, b, c=None):
        return ("m", self.cap(self.mfma, d, a, b, c))

    def lane(self, v):
        self.A(f"v_mbcnt_lo_u32_b32 {vr(v)}, -1, 0")
        self.A(f"v_mbcnt_hi_u32_b32 {vr(v)}, -1, {vr(v)}")

    def rot(self):
        return [[f"s_add_u32 {sr(sC)}, {sr(sC)}, {TILE}"],
                [f"s_cmp_eq_u32 {sr(sC)}, {NSLOT*TILE}", f"s_cselect_b32 {sr(sC)}, 0, {sr(sC)}"]]

    def prep(self, p, slots=True):
        k1 = sum(v << (5 * i) for i, v in enumerate(ROWSH))
        k2 = sum(v << (5 * i) for i, v in enumerate(SLABSH))
        pre = [[f"s_add_u32 {sr(sI[p])}, {sr(sC)}, {sr(sW1024)}"]] + self.rot() if slots else []
        return pre + [
            [f"s_and_b32 {sr(sOff[p])}, {sr(sE)}, 0xffffff00"],
            [f"s_and_b32 {sr(sTy[p])}, {sr(sE)}, 7"],
            [f"s_add_u32 {sr(sIdx)}, {sr(sIdx)}, 1"],
            [f"s_lshl_b32 m0, {sr(sTy[p])}, 2", f"s_mul_i32 {sr(sP0)}, {sr(sTy[p])}, 5",
             f"s_movrels_b64 {sr(SRD_CUR[p],2)}, {sr(SRD_WQ,2)}", f"s_movrels_b32 {sr(SRD_CUR[p]+2)}, {sr(SRD_WQ+2)}"],
            [f"v_readlane_b32 {sr(sE)}, {vr(vTab)}, {sr(sIdx)}"],
            [f"s_lshr_b32 {sr(sP1)}, {hex(k1)}, {sr(sP0)}"],
            [f"s_lshr_b32 {sr(sP0)}, {hex(k2)}, {sr(sP0)}"],
            [f"v_lshl_add_u32 {vr(vCur[p])}, {vr(vRow)}, {sr(sP1)}, {vr(vChunk)}"],
            [f"s_lshl_b32 {sr(sStr[p])}, 1, {sr(sP0)}"],
            [f"s_lshl_b32 {sr(sHalf[p])}, 16, {sr(sP1)}"],
        ]

    def weave(self, prim, fill, per=2, start=0):
        fill = list(fill)
        for idx, (kind, ins) in enumerate(prim):
            self.L += ins
            if kind == "m" and idx >= start:
                k = 0
                while fill and k < per:
                    f = fill[0]
                    if isinstance(f, tuple):
                        if f[0] > idx:
                            break
                        f = f[1]
                    self.emit(f)
                    fill.pop(0)
                    k += 1
        for f in fill:
            self.emit(f[1] if isinstance(f, tuple) else f)

    def emit(self, f):
        for x in f:
            if x.endswith(":"):
                self.L.append(x)
            else:
                self.A(x)

    def cap(self, fn, *a, **k):
        keep, self.L = self.L, []
        fn(*a, **k)
        out, self.L = self.L, keep
        return out

    def head(self, vm):
        self.A("s_waitcnt " + (f"vmcnt({vm}) " if vm is not None else "") + "lgkmcnt(0)")
        if self.opt.get("allsteps") == 2:
            self.stamp(15)
        self.A("s_barrier")
        if self.opt.get("allsteps") == 1:
            self.stamp(14)

    def early_head(self, vm, reads, xonly=None):
        if not self.opt.get("early", 1):
            self.head(vm)
            if xonly:
                l = self.new("x")
                self.is_loader(l)
                xonly()
                self.lab(l)
            reads()
            return
        ly, ld = self.new("ey"), self.new("ed")
        self.is_loader(ly)
        self.head(vm)
        if xonly:
            xonly()
        reads()
        self.A(f"s_branch {ld}")
        self.lab(ly)
        self.A("s_waitcnt lgkmcnt(0)")
        reads()
        self.A(f"s_waitcnt vmcnt({vm})")
        self.A("s_barrier")
        self.lab(ld)

    def dma(self, k, p, kv, guard=True, who=sW):
        A = self.A
        skip = self.new("sk")
        if guard:
            A(f"s_bitcmp1_b32 {sr(who)}, 2")
            A(f"s_cbranch_scc0 {skip}")
        if k:
            A(f"s_add_u32 {sr(sOff[p])}, {sr(sOff[p])}, {sr(sStr[p])}")
        A(f"s_add_u32 m0, {sr(sI[p])}, {k*8192}")
        A(f"s_add_u32 {sr(sOff2)}, {sr(sOff[p])}, {sr(sHalf[p])}")

        def pair(fl):
            if k == 3 and fl == self.kvf and self.opt.get("evst"):
                self.L += self.ev()
                A(f"s_add_u32 m0, {sr(sI[p])}, {k*8192}")
                A("s_nop 0")
            A(f"buffer_load_dwordx4 {vr(vCur[p])}, {sr(SRD_CUR[p],4)}, {sr(sOff[p])} offen{fl} lds")
            A("s_add_u32 m0, m0, 4096")
            A("s_nop 0")
            A(f"buffer_load_dwordx4 {vr(vCur[p])}, {sr(SRD_CUR[p],4)}, {sr(sOff2)} offen{fl} lds")

        if self.kvf == self.wf:
            kv = False
        if kv is not None:
            pair(self.kvf if kv else self.wf)
        else:
            l1 = self.new("kv")
            A(f"s_bitcmp1_b32 6, {sr(sTy[p])}")
            A(f"s_cbranch_scc1 {l1}")
            pair(self.wf)
            A(f"s_branch {skip}")
            self.lab(l1)
            pair(self.kvf)
        self.lab(skip)

    def tile_dma(self, p, kv, who):
        A = self.A
        skip, l1 = self.new("sk"), self.new("kv")
        A(f"s_bitcmp1_b32 {sr(who)}, 2")
        A(f"s_cbranch_scc0 {skip}")
        if kv is None and self.kvf != self.wf:
            A(f"s_bitcmp1_b32 6, {sr(sTy[p])}")
            A(f"s_cbranch_scc1 {l1}")
            for k in range(4):
                self.dma(k, p, False, guard=False)
            A(f"s_branch {skip}")
            self.lab(l1)
        for k in range(4):
            self.dma(k, p, True if kv is None else kv, guard=False)
        self.lab(skip)

    def split_dma(self, p, kv, skip_reg=None):
        A = self.A
        skip, l1 = self.new("sk"), self.new("kv")
        if skip_reg is not None:
            A(f"s_cmp_eq_u32 {sr(skip_reg)}, 0")
            A(f"s_cbranch_scc0 {skip}")
        A(f"s_bitcmp1_b32 {sr(sW)}, 2")
        A(f"s_cselect_b32 {sr(sOff2)}, {sr(sHalf[p])}, 0")
        A(f"s_cselect_b32 {sr(sP0)}, 4096, 0")
        A(f"s_add_u32 {sr(sOff2)}, {sr(sOff2)}, {sr(sOff[p])}")
        A(f"s_add_u32 {sr(sP0)}, {sr(sP0)}, {sr(sI[p])}")

        def four(fl):
            for k in range(4):
                A(f"s_add_u32 m0, {sr(sP0)}, {k*8192}")
                A(f"s_add_u32 {sr(sOff2)}, {sr(sOff2)}, {sr(sStr[p])}" if k else "s_nop 0")
                A(f"buffer_load_dwordx4 {vr(vCur[p])}, {sr(SRD_CUR[p],4)}, {sr(sOff2)} offen{fl} lds")
                if k == 3 and fl == self.kvf:
                    self.L += self.ev()

        if kv is None and self.kvf != self.wf:
            A(f"s_bitcmp1_b32 6, {sr(sTy[p])}")
            A(f"s_cbranch_scc1 {l1}")
            four(self.wf)
            A(f"s_branch {skip}")
            self.lab(l1)
        four(self.kvf)
        self.lab(skip)

    def D1(self, k, p, guard=False):
        l1, l2 = self.new("w"), self.new("d")
        ld = f"  buffer_load_dwordx4 {vr(vCur[p])}, {sr(SRD_CUR[p],4)}, {sr(sOff[p])} offen"
        ins = [f"  s_bitcmp1_b32 {sr(sW)}, 2", f"  s_cbranch_scc0 {l2}"] if guard else []
        ins.append(f"  s_add_u32 m0, {sr(sI[p])}, {k*8192}")
        adv = f"  s_add_u32 {sr(sOff[p])}, {sr(sOff[p])}, {sr(sStr[p])}"
        ins += [f"  s_bitcmp1_b32 6, {sr(sTy[p])}", f"  s_cbranch_scc0 {l1}", adv, f"{ld}{self.kvf} lds"]
        if k == 3:
            ins += self.ev()
        self.cold += [l1 + ":"] + ([adv] if k else []) + [f"{ld}{self.wf} lds", f"  s_branch {l2}"]
        return ("d", ins + [l2 + ":"])

    def D(self, k, p, kv, who=sW):
        return ("d", self.cap(self.dma, k, p, kv, True, who))

    def tr_pair(self, dst, addr, off):
        self.A(f"ds_read_b64_tr_b16 {vr(dst,2)}, {vr(addr)} offset:{off}")
        self.A(f"ds_read_b64_tr_b16 {vr(dst+2,2)}, {vr(addr)} offset:{off+1024}")

    def narrow(self, pre=None, extra=None, early=None, body=None, check=None, ones=None, vm1=None):
        A = self.A

        def fr(st, k):
            return vFr + (st * 5 + k) * 4

        def reads(T, s):
            p = T % 2
            for m in range(2):
                self.tr_pair(fr(s % 2, m), vT + 2 * p + m, s * 8192)
            for n in range(3):
                A(f"ds_read_b128 {vr(fr(s%2,2+n),4)}, {vr(vXB+s)} offset:{n*XN+T*BLK}")

        def addr(p):
            return [[f"v_add_u32 {vr(vT+2*p)}, {sr(sC)}, {vr(vTRw)}"], [f"v_xor_b32 {vr(vT+2*p+1)}, 32, {vr(vT+2*p)}"]]

        def mf(s, zero=False):
            out = [self.M(vAcc + (m * 3 + n) * 4, fr(s % 2, m), fr(s % 2, 2 + n), 0 if zero else None)
                   for m in range(2) for n in range(3)]
            if ones:
                out += [self.M(ones + 4 + 4 * n, ones, fr(s % 2, 2 + n), 0 if zero else None) for n in range(3)]
            return out

        for T in range(4):
            if T or not body:
                self.head(vm1 if T == 1 else None)
            if T == 0:
                if body:
                    self.lab(body)
                self.weave([], addr(0))
            self.emit((pre or {}).get(T, []))
            prim = [("r", self.cap(reads, T, 0))]
            if T:
                prim += mf(3)
            prim.append(("r", self.cap(reads, T, 1)))
            for s in range(3):
                prim.append(("w", ["  s_waitcnt lgkmcnt(7)"] + (check if (check and T == 0 and s == 0) else [])))
                prim += mf(s, T == 0 and s == 0)
                if s < 2:
                    prim.append(("r", self.cap(reads, T, s + 2)))
            late = [(13, g) for g in (extra or {}).get(T, [])]
            self.weave(prim, self.rot() + (addr(1 - T % 2) if T < 3 else []) + late, per=1 + bool(late))
        A("s_waitcnt lgkmcnt(0)")
        if early is True:
            A("s_barrier")
        elif early is None:
            l = self.new("e")
            A(f"s_cmp_eq_u32 {sr(sLate)}, 0")
            A(f"s_cbranch_scc0 {l}")
            A("s_barrier")
            self.lab(l)
        self.weave(mf(3), [])

    def load_bfrags_dyn(self, tmp, quads):
        for s in range(4):
            self.A(f"v_add_u32 {vr(tmp+s)}, {sr(sBlk)}, {vr(vXB+s)}")
        for s in range(4):
            for n in range(3):
                self.A(f"ds_read_b128 {vr(quads[n*4+s],4)}, {vr(tmp+s)} offset:{n*XN}")

    def is_loader(self, label):
        self.A(f"s_bitcmp1_b32 {sr(sW)}, 2")
        self.A(f"s_cbranch_scc1 {label}")

    def x_setup(self, va, sT1=sT1, sT2=sT2):
        A = self.A
        self.lane(va + 2)
        A(f"v_lshrrev_b32 {vr(va+1)}, 4, {vr(va+2)}")
        A(f"v_and_b32 {vr(va+2)}, 15, {vr(va+2)}")
        A(f"v_xor_b32 {vr(va+2)}, {vr(va+2)}, {vr(va+1)}")
        A(f"v_lshlrev_b32 {vr(va+2)}, 4, {vr(va+2)}")
        A(f"v_lshl_or_b32 {vr(va+2)}, {vr(va+1)}, 10, {vr(va+2)}")
        A(f"s_mul_i32 {sr(sT0)}, {sr(sW1024)}, 3")
        A(f"s_add_u32 {sr(sT2)}, {sr(sT0)}, {XB}")
        A(f"s_mul_i32 {sr(sT1)}, {sr(sB)}, 49152")
        A(f"s_lshl_b32 {sr(sT3)}, {sr(sT0)}, 2")
        A(f"s_add_u32 {sr(sT1)}, {sr(sT1)}, {sr(sT3)}")
        A(f"s_lshr_b32 {sr(sT0)}, {sr(sT0)}, 4")
        for j in range(3):
            A(f"s_add_u32 {sr(sT3)}, {sr(sT0)}, {j*64}")
            A(f"s_and_b32 {sr(sT3)}, {sr(sT3)}, 0xc0")
            A(f"v_xor_b32 {vr(va+j)}, {sr(sT3)}, {vr(va+2)}")

    def x_rot(self, va, j, late=False):
        A = self.A
        sHalf = [sT1, sT2] if late else globals()["sHalf"]
        if late:
            A(f"s_lshr_b32 {sr(sOff2)}, {sr(sB)}, 2")
        A(f"s_add_u32 {sr(sP0)}, {sr(sOff2)}, {j}")
        A(f"s_and_b32 {sr(sP0)}, {sr(sP0)}, 3")
        if late:
            A(f"s_mul_i32 {sr(sP1)}, {sr(sP0)}, {BLK}")
        else:
            A(f"s_cmp_eq_u32 {sr(sOrd)}, 1")
            A(f"s_cselect_b32 {sr(sP1)}, {sr(sP0)}, {j}")
            A(f"s_mul_i32 {sr(sP1)}, {sr(sP1)}, {BLK}")
        A(f"s_add_u32 {sr(sP1)}, {sr(sP1)}, {sr(sHalf[1])}")
        A(f"s_lshl_b32 {sr(sP0)}, {sr(sP0)}, 8")
        A(f"s_add_u32 {sr(sP0)}, {sr(sP0)}, {sr(sHalf[0])}")
        for k in range(3):
            A(f"s_add_u32 m0, {sr(sP1)}, {k*1024}")
            if k:
                A(f"s_add_u32 {sr(sP0)}, {sr(sP0)}, 4096")
            else:
                A("s_nop 0")
            A(f"buffer_load_dwordx4 {vr(va+k)}, {sr(SRD_AUX,4)}, {sr(sP0)} offen lds")

    def first_tile(self, t):
        A = self.A
        A(f"s_add_u32 {sr(sP0)}, {sr(sB)}, {t}")
        A(f"s_and_b32 {sr(sP0)}, {sr(sP0)}, {sr(sI[0])}")
        A(f"s_mul_i32 {sr(sP0)}, {sr(sP0)}, {sr(sStr[1])}")
        A(f"s_add_u32 {sr(sP0)}, {sr(sP0)}, {sr(sTy[0])}")
        for k in range(8):
            A(f"s_add_u32 m0, {sr(sW1024)}, {t*TILE+k*4096}")
            if k % 2:
                A(f"s_add_u32 {sr(sP1)}, {sr(sP0)}, {16*8192}")
            elif k:
                A(f"s_add_u32 {sr(sP0)}, {sr(sP0)}, {sr(sStr[0])}")
            else:
                A("s_nop 0")
            A(f"buffer_load_dwordx4 {vr(vCur[0])}, {sr(SRD_CUR[0],4)}, {sr(sP1 if k % 2 else sP0)} offen{self.wf} lds")

    def x_block(self, va, blk):
        for j in range(3):
            self.A(f"s_add_u32 m0, {sr(sT2)}, {blk*BLK+j*1024}")
            self.A(f"s_add_u32 {sr(sT3)}, {sr(sT1)}, {blk*256+j*4096}")
            self.A(f"buffer_load_dwordx4 {vr(va+j)}, {sr(SRD_AUX,4)}, {sr(sT3)} offen lds")

    def weight_prefetch(self, items, half=False, dst=156, cur=SRD_CUR[1]):
        A = self.A
        off = sT1
        n = 4 if half else 2
        self.lane(vT + 1)
        A(f"v_lshrrev_b32 {vr(vT)}, 4, {vr(vT+1)}")
        A(f"v_lshlrev_b32 {vr(vT+1)}, 4, {vr(vT+1)}")
        A(f"v_and_b32 {vr(vT+2)}, 0xf0, {vr(vT+1)}")
        A(f"v_lshl_or_b32 {vr(vT)}, {vr(vT)}, 13, {vr(vT+2)}")
        A(f"s_lshl_b32 {sr(sT0)}, {sr(sG)}, 2")
        A(f"s_lshr_b32 {sr(sT2)}, {sr(sB)}, {int(half)}")
        A(f"s_lshl_b32 {sr(sT2)}, {sr(sT2)}, 2")
        A(f"s_add_u32 {sr(sT2)}, {sr(sT2)}, {sr(sW)}")
        A(f"s_mov_b32 {sr(cur+2)}, 4194304")
        for ptr, is_wq, h in items:
            A(f"s_add_u32 {sr(sT3)}, {sr(sT0)}, {h}")
            A(f"s_lshl_b32 {sr(sT3)}, {sr(sT3)}, {8 if is_wq else 17}")
            A(f"s_lshl_b32 {sr(off)}, {sr(sT2)}, {(16 if is_wq else 11) + int(half)}")
            A(f"s_add_u32 {sr(off)}, {sr(off)}, {sr(sT3)}")
            A(f"s_mov_b64 {sr(cur,2)}, {sr(ptr,2)}")
            for k in range(n):
                if k:
                    A(f"s_add_u32 {sr(off)}, {sr(off)}, {32768 if is_wq else 1024}")
                A(f"buffer_load_dwordx4 {vr(dst,4)}, {vr(vT if is_wq else vT+1)}, {sr(cur,4)}, {sr(off)} offen")

    def srd(self, d, p, size):
        self.A(f"s_mov_b32 {sr(d)}, {sr(p)}")
        self.A(f"s_mov_b32 {sr(d+1)}, {sr(p+1)}")
        self.A(f"s_mov_b32 {sr(d+2)}, {size}")
        self.A(f"s_mov_b32 {sr(d+3)}, 0x20000")

    def reduce4(self, x, op):
        self.A(f"v_mov_b32 {vr(x+3)}, {vr(x+2)}")
        self.A("s_nop 1")
        self.A(f"v_permlane32_swap_b32 {vr(x)}, {vr(x+1)}")
        self.A(f"v_permlane32_swap_b32 {vr(x+2)}, {vr(x+3)}")
        self.A("s_nop 1")
        self.A(f"{op} {vr(x)}, {vr(x)}, {vr(x+1)}")
        self.A(f"{op} {vr(x+2)}, {vr(x+2)}, {vr(x+3)}")
        self.A("s_nop 1")
        self.A(f"v_permlane16_swap_b32 {vr(x)}, {vr(x+2)}")
        self.A("s_nop 1")
        self.A(f"{op} {vr(x)}, {vr(x)}, {vr(x+2)}")

    def allreduce3(self, x, t, op):
        for sw in ("v_permlane32_swap_b32", "v_permlane16_swap_b32"):
            for n in range(3):
                self.A(f"v_mov_b32 {vr(t+n)}, {vr(x+n)}")
            self.A("s_nop 1")
            for n in range(3):
                self.A(f"{sw} {vr(x+n)}, {vr(t+n)}")
            self.A("s_nop 1")
            for n in range(3):
                self.A(f"{op} {vr(x+n)}, {vr(x+n)}, {vr(t+n)}")

    def maxn(self, dst, regs):
        out = [f"v_max3_f32 {vr(dst)}, {vr(regs[0])}, {vr(regs[1])}, {vr(regs[2])}"]
        k = 3
        while k + 1 < len(regs):
            out.append(f"v_max3_f32 {vr(dst)}, {vr(dst)}, {vr(regs[k])}, {vr(regs[k+1])}")
            k += 2
        if k < len(regs):
            out.append(f"v_max_f32 {vr(dst)}, {vr(dst)}, {vr(regs[k])}")
        return out

    def pkmul(self, a, f):
        sel = "op_sel_hi:[1,0]" if f % 2 == 0 else "op_sel:[0,1] op_sel_hi:[1,1]"
        return f"v_pk_mul_f32 {vr(a,2)}, {vr(a,2)}, {vr(f - f % 2,2)} {sel}"

    def ev(self):
        if not self.opt.get("evst"):
            return []
        return self.cap(self.stamp, 0, True)

    def stamp(self, idx, force=False):
        if not self.opt.get("stamps") or (self.opt.get("evst") and not force and idx != 11):
            return
        if self.opt.get("tailst") and idx not in (0, 6, 7, 8, 11, 16, 17, 18):
            return
        self.A(("s_memtime" if self.opt.get("cyc") else "s_memrealtime") + f" {sr(sStamp,2)}")
        self.A("s_waitcnt lgkmcnt(0)")
        self.A(f"s_and_b32 {sr(sStamp)}, {sr(sStamp)}, 0xffffff")
        self.A(f"s_or_b32 {sr(sStamp)}, {sr(sStamp)}, {(idx+1) << 24}")
        self.A("s_mov_b32 m0, s78")
        if self.opt.get("skip"):
            l = self.new("st")
            self.A(f"s_cmp_lt_i32 s78, 0")
            self.A(f"s_cbranch_scc1 {l}")
            self.A(f"s_cmp_ge_i32 s78, 63")
            self.A(f"s_cbranch_scc1 {l}")
            self.A(f"v_writelane_b32 {vr(23)}, {sr(sStamp)}, m0")
            self.lab(l)
        else:
            self.A(f"v_writelane_b32 {vr(23)}, {sr(sStamp)}, m0")
        self.A("s_add_u32 s78, s78, 1")

    def ks(self, idx=15):
        if self.opt.get("kst"):
            self.A(f"s_memtime s[{76}:{77}]")
            self.A("s_waitcnt lgkmcnt(0)")
            self.A(f"s_and_b32 s76, s76, 0xffffff")
            self.A(f"s_or_b32 s76, s76, {(idx+1) << 24}")
            self.A("s_mov_b32 m0, s78")
            self.A(f"v_writelane_b32 v23, s76, m0")
            self.A("s_add_u32 s78, s78, 1")

    def pack_y(self, barrier, store=False):
        def pack(jp):
            g = []
            for n in range(3):
                q = vY + (2 * jp * 3 + n) * 4
                for h in range(2):
                    y = vY + ((2 * jp + h) * 3 + n) * 4
                    g.append([f"v_cvt_pk_bf16_f32 {vr(q+2*h)}, {vr(y)}, {vr(y+1)}"])
                    g.append([f"v_cvt_pk_bf16_f32 {vr(q+2*h+1)}, {vr(y+2)}, {vr(y+3)}"])
            if store:
                g.append(["s_nop 1"])
                for n in range(3):
                    q = vY + (2 * jp * 3 + n) * 4
                    g.append([f"v_permlane16_swap_b32 {vr(q)}, {vr(q+2)}", f"v_permlane16_swap_b32 {vr(q+1)}, {vr(q+3)}",
                              f"buffer_store_dwordx4 {vr(q,4)}, {vr(vT+n)}, {sr(SRD_AUX,4)}, {sr(sPendOff)} offen offset:{jp*1024}"
                              + self.opt.get("stflag", "")])
            return g

        if store:
            self.lane(vT)
            self.A(f"v_lshlrev_b32 {vr(vT)}, 4, {vr(vT)}")
            self.A(f"v_add_u32 {vr(vT+1)}, 4096, {vr(vT)}")
            self.A(f"v_add_u32 {vr(vT+2)}, 8192, {vr(vT)}")
        self.srd(SRD_AUX, sWs, 268435456)
        self.A(f"s_mul_i32 {sr(sT1)}, {sr(sW)}, 12288")
        self.A(f"s_add_u32 {sr(sPendOff)}, {sr(sT0)}, {sr(sT1)}")
        self.wide_drain(pack)
        if barrier:
            self.A("s_barrier")
        else:
            self.A("s_nop 1")

    def store_y(self, n, va):
        A = self.A
        self.lane(va)
        A(f"v_lshlrev_b32 {vr(va)}, 4, {vr(va)}")
        for jp in range(4):
            q = vY + (2 * jp * 3 + n) * 4
            A(f"v_permlane16_swap_b32 {vr(q)}, {vr(q+2)}")
            A(f"v_permlane16_swap_b32 {vr(q+1)}, {vr(q+3)}")
            A(f"buffer_store_dwordx4 {vr(q,4)}, {vr(va)}, {sr(SRD_AUX,4)}, {sr(sPendOff)} offen offset:{jp*1024}" + self.opt.get("stflag", ""))
        A(f"s_add_u32 {sr(sPendOff)}, {sr(sPendOff)}, 4096")

    def wide_drain(self, per_pair=None):
        prim = [self.M(vY + (j * 3 + n) * 4, vFr + 4 * (j + 2 if j >= 6 else j), vAcc + (3 + n) * 4) for j in range(8) for n in range(3)]
        fill = []
        if per_pair:
            for jp in range(4):
                g = per_pair(jp)
                fill += [(6 * jp + 13, x) for x in g]
        self.weave(prim, fill, per=4)

    def dma_only(self):
        A, lab = self.A, self.lab
        self.is_loader("L_do_ld")
        A(f"s_cmp_eq_u32 {sr(sOrd)}, 0")
        A("s_cbranch_scc0 L_fin")
        self.weight_prefetch([(sBwq, True, 2), (sBwq, True, 3), (sBwq, True, 0)] + [(sBwo, False, h) for h in range(4)] + [(sAwo, False, h) for h in range(4)])
        A("s_branch L_fin")
        lab("L_do_ld")
        self.first_tile(1)
        self.x_rot(vY, 2)
        self.first_tile(2)
        self.x_rot(vY, 3)
        self.weave([], self.prep(1))
        lab("L_do_loop")
        for p in (1, 0):
            for sw, (cond, k, v, wo) in {27: (1, sBk, sBv, None), 41: (1, None, None, sBwo), 14: (2, sAk, sAv, None), 18: (2, None, None, sAwo)}.items():
                l = self.new("sw")
                A(f"s_cmp_eq_u32 {sr(sIdx)}, {sw}")
                A(f"s_cbranch_scc0 {l}")
                A(f"s_cmp_eq_u32 {sr(sOrd)}, {cond}")
                A(f"s_cbranch_scc0 {l}")
                if k:
                    self.srd(SRD_K, k, 67108864 if k == sBk else 16777216)
                    self.srd(SRD_V, v, 67108864 if k == sBk else 16777216)
                if wo:
                    self.srd(SRD_WO, wo, 4194304)
                lab(l)
            A(f"s_waitcnt vmcnt({self.opt['dmaonly']})")
            for k in range(4):
                self.dma(k, p, None, guard=False)
            self.weave([], self.prep(1 - p))
        A(f"s_cmp_lt_u32 {sr(sIdx)}, 57")
        A("s_cbranch_scc1 L_do_loop")
        A("s_branch L_fin")

    def reduce_setup(self):
        A = self.A
        A(f"s_load_dwordx4 {sr(rOut,4)}, s[0:1], 80")
        A("s_waitcnt lgkmcnt(0)")
        A(f"s_mov_b64 {sr(rDbg,2)}, {sr(rOut+2,2)}")
        A(f"s_mov_b32 {sr(rOut+2)}, 1572864")
        A(f"s_mov_b32 {sr(rOut+3)}, 0x20000")
        self.srd(rWs, sWs, 268435456)

    def publish(self):
        A, lab = self.A, self.lab
        A(f"v_mov_b32 {vr(vT)}, {STORED}")
        A(f"v_mov_b32 {vr(vT+1)}, 1")
        self.reduce_setup()
        A("s_waitcnt vmcnt(0)")
        self.stamp(7)
        A("s_mov_b64 exec, 1")
        A(f"ds_add_rtn_u32 {vr(vT+1)}, {vr(vT)}, {vr(vT+1)}")
        A(f"s_lshl_b32 {sr(sT0)}, {sr(sRole)}, 3")
        A(f"s_add_u32 {sr(sT0)}, {sr(sT0)}, {sr(sG)}")
        A(f"s_lshl_b32 {sr(sT2)}, {sr(sT0)}, 2")
        A(f"s_add_u32 {sr(sT3)}, {sr(sT2)}, {ENTRY}")
        A(f"v_mov_b32 {vr(vT+4)}, {sr(sT3)}")
        A(f"ds_read_b32 {vr(vT+4)}, {vr(vT+4)}")
        A(f"s_lshl_b32 {sr(sT3)}, {sr(sB)}, 8")
        A(f"s_add_u32 {sr(sT2)}, {sr(sT2)}, {sr(sT3)}")
        A(f"s_add_u32 {sr(sT2)}, {sr(sT2)}, {WS_FLAGS}")
        A(f"s_lshl_b32 {sr(sT0)}, 1, {sr(sT0)}")
        A(f"s_add_u32 {sr(sT1)}, {sr(sG)}, 16")
        A(f"s_lshl_b32 {sr(sT1)}, {sr(sRole)}, {sr(sT1)}")
        A(f"s_or_b32 {sr(sT0)}, {sr(sT0)}, {sr(sT1)}")
        A(f"s_lshl_b32 {sr(sT1)}, {sr(sB)}, 4")
        A(f"v_mov_b32 {vr(vT)}, {sr(sT1)}")
        A(f"v_mov_b32 {vr(vT+2)}, {sr(sT0)}")
        A(f"v_mov_b32 {vr(vT+3)}, 0")
        A("s_waitcnt lgkmcnt(0)")
        A(f"v_readfirstlane_b32 {sr(sT1)}, {vr(vT+1)}")
        A(f"v_add_u32 {vr(vT+4)}, 1, {vr(vT+4)}")
        A("s_mov_b64 exec, -1")
        A("s_nop 2")
        A(f"s_cmp_eq_u32 {sr(sT1)}, 3")
        A("s_cbranch_scc0 L_fin")
        A("s_mov_b64 exec, 1")
        A(f"buffer_store_dword {vr(vT+4)}, off, {sr(rWs,4)}, {sr(sT2)} sc1")
        A(f"global_atomic_or_x2 {vr(vT+4,2)}, {vr(vT)}, {vr(vT+2,2)}, {sr(rDbg,2)} sc0 sc1")
        A("s_waitcnt vmcnt(0)")
        A(f"v_readfirstlane_b32 {sr(sT1)}, {vr(vT+4)}")
        A(f"v_readfirstlane_b32 {sr(rAb)}, {vr(vT+5)}")
        A("s_mov_b64 exec, -1")
        A("s_nop 2")
        A(f"s_or_b32 {sr(sT1)}, {sr(sT1)}, {sr(sT0)}")
        A(f"s_cmp_eq_u32 {sr(sT1)}, {FULL}")
        A("s_cbranch_scc0 L_fin")
        self.c("last arrival of this batch: take over the slices of workgroups that gave up waiting")
        lab("L_ab_loop")
        A(f"s_cmp_eq_u32 {sr(rAb)}, 0")
        A("s_cbranch_scc1 L_fin")
        A(f"s_ff1_i32_b32 {sr(rK)}, {sr(rAb)}")
        A(f"s_bitset0_b32 {sr(rAb)}, {sr(rK)}")
        A(f"s_mul_i32 {sr(rKb)}, {sr(rK)}, 3")
        for k in range(3):
            A(f"s_mov_b32 {sr(rMode)}, 2")
            A(f"s_call_b64 {sr(LINK_S,2)}, L_reduce")
            A(f"s_add_u32 {sr(rKb)}, {sr(rKb)}, 1")
        A("s_branch L_ab_loop")

    def reduce_sub(self):
        A, lab = self.A, self.lab
        dat = lambda g, q: 64 + (g * 4 + q) * 4
        acc = lambda g: 160 + g * 8
        lab("L_reduce")
        A(f"s_lshl_b32 {sr(rOffA)}, {sr(rKb)}, 10")
        A(f"s_mul_i32 {sr(rOffB)}, {sr(sB)}, {16*PART}")
        A(f"s_add_u32 {sr(rOffB)}, {sr(rOffB)}, {sr(rOffA)}")
        A(f"s_mul_i32 {sr(rOffO)}, {sr(sB)}, {8*PART}")
        A(f"s_add_u32 {sr(rOffA)}, {sr(rOffA)}, {sr(rOffO)}")
        A(f"s_add_u32 {sr(rOffA)}, {sr(rOffA)}, {PART_A_BASE}")
        A(f"s_mul_i32 {sr(sT0)}, {sr(rKb)}, 171")
        A(f"s_lshr_b32 {sr(sT0)}, {sr(sT0)}, 11")
        A(f"s_mul_i32 {sr(sT1)}, {sr(sT0)}, 12")
        A(f"s_sub_u32 {sr(sT1)}, {sr(rKb)}, {sr(sT1)}")
        A(f"s_lshr_b32 {sr(sT2)}, {sr(sT1)}, 2")
        A(f"s_and_b32 {sr(sT1)}, {sr(sT1)}, 3")
        A(f"s_mul_i32 {sr(rOffO)}, {sr(sB)}, 98304")
        A(f"s_lshl_b32 {sr(sT2)}, {sr(sT2)}, 15")
        A(f"s_lshl_b32 {sr(sT0)}, {sr(sT0)}, 8")
        A(f"s_lshl_b32 {sr(sT1)}, {sr(sT1)}, 6")
        A(f"s_add_u32 {sr(rOffO)}, {sr(rOffO)}, {sr(sT2)}")
        A(f"s_add_u32 {sr(rOffO)}, {sr(rOffO)}, {sr(sT0)}")
        A(f"s_add_u32 {sr(rOffO)}, {sr(rOffO)}, {sr(sT1)}")
        self.lane(24)
        A("v_lshlrev_b32 v25, 4, v24")
        A("v_and_b32 v26, 15, v24")
        A("v_lshlrev_b32 v26, 11, v26")
        A("v_bfe_u32 v27, v24, 4, 1")
        A("v_lshl_add_u32 v26, v27, 5, v26")
        A("v_bfe_u32 v27, v24, 5, 1")
        A("v_lshl_add_u32 v26, v27, 4, v26")
        A(f"v_mov_b32 v27, {RELAY}")
        A(f"s_lshl_b32 {sr(sT0)}, {sr(sB)}, 4")
        A(f"v_mov_b32 v28, {sr(sT0)}")
        A("v_and_b32 v40, 15, v24")
        A("v_lshlrev_b32 v40, 2, v40")
        A(f"v_add_u32 v41, {ENTRY}, v40")
        A("ds_read_b32 v41, v41")
        A(f"s_lshl_b32 {sr(sT2)}, {sr(sB)}, 8")
        A(f"s_add_u32 {sr(sT2)}, {sr(sT2)}, {WS_FLAGS}")
        A(f"v_mov_b32 v42, {STORED}")
        A("s_waitcnt lgkmcnt(0)")
        A("v_add_u32 v41, 1, v41")
        A(f"s_mov_b32 {sr(sT3)}, 0xffff0000")
        A(f"s_mov_b32 {sr(rDone)}, 0")
        A(f"s_mov_b32 {sr(rCnt)}, 0")
        lab("L_rd_poll")
        A(f"s_mov_b32 {sr(rF)}, {FULL}")
        A(f"s_cmp_eq_u32 {sr(rMode)}, 2")
        A("s_cbranch_scc1 L_rd_have")
        A(f"s_cmp_eq_u32 {sr(rMode)}, 1")
        A("s_cbranch_scc1 L_rd_lds")
        A(f"s_cmp_eq_u32 {sr(rCnt)}, 1")
        A("s_cbranch_scc0 L_rd_go")
        self.c("after the first look, stay off the memory path until this workgroup's own stores are out")
        lab("L_rd_own")
        A("ds_read_b32 v29, v42")
        A("s_waitcnt lgkmcnt(0)")
        A("v_cmp_gt_u32 vcc, 4, v29")
        A("s_cbranch_vccz L_rd_go")
        A("s_sleep 2")
        A("s_branch L_rd_own")
        lab("L_rd_go")
        A(f"s_add_u32 {sr(rCnt)}, {sr(rCnt)}, 1")
        A(f"buffer_load_dword v29, v40, {sr(rWs,4)}, {sr(sT2)} offen sc1")
        A("s_waitcnt vmcnt(0)")
        A("v_cmp_eq_u32 vcc, v29, v41")
        A("s_nop 3")
        A(f"s_and_b32 {sr(rF)}, vcc_lo, 0xffff")
        A(f"s_and_b32 {sr(sT0)}, {sr(rF)}, 0xff00")
        A(f"s_lshl_b32 {sr(sT0)}, {sr(sT0)}, 8")
        A(f"s_or_b32 {sr(rF)}, {sr(rF)}, {sr(sT0)}")
        A(f"v_mov_b32 v29, {sr(rF)}")
        A("ds_write_b32 v27, v29")
        A("s_branch L_rd_have")
        lab("L_rd_lds")
        A("ds_read_b32 v29, v27")
        A("s_waitcnt lgkmcnt(0)")
        A(f"v_readfirstlane_b32 {sr(rF)}, v29")
        A("s_nop 3")
        A(f"s_cmp_lt_i32 {sr(rF)}, 0")
        A("s_cbranch_scc1 L_rd_ret")
        lab("L_rd_have")
        A(f"s_lshr_b32 {sr(rNew)}, {sr(rF)}, 1")
        A(f"s_and_b32 {sr(rNew)}, {sr(rNew)}, {sr(rF)}")
        A(f"s_lshr_b32 {sr(sT0)}, {sr(rNew)}, 2")
        A(f"s_and_b32 {sr(rNew)}, {sr(rNew)}, {sr(sT0)}")
        A(f"s_and_b32 {sr(rNew)}, {sr(rNew)}, 0x111111")
        A(f"s_andn2_b32 {sr(rNew)}, {sr(rNew)}, {sr(rDone)}")
        A("s_cbranch_scc1 L_rd_work")
        A(f"s_sleep {self.opt.get('sleep', 8)}")
        A(f"s_cmp_eq_u32 {sr(rMode)}, 0")
        A("s_cbranch_scc0 L_rd_poll")
        A(f"s_cmp_lt_u32 {sr(rCnt)}, {self.opt.get('polls', POLL_LIMIT)}")
        A("s_cbranch_scc1 L_rd_poll")
        self.c("gave up waiting: leave the slice to the last arrival unless that has happened meanwhile")
        A(f"s_lshl_b32 {sr(sT0)}, {sr(sRole)}, 3")
        A(f"s_add_u32 {sr(sT0)}, {sr(sT0)}, {sr(sG)}")
        A(f"s_lshl_b32 {sr(sT0)}, 1, {sr(sT0)}")
        A("v_mov_b32 v30, 0")
        A(f"v_mov_b32 v31, {sr(sT0)}")
        A("s_mov_b64 exec, 1")
        A(f"global_atomic_or_x2 v[32:33], v28, v[30:31], {sr(rDbg,2)} sc0 sc1")
        A("s_waitcnt vmcnt(0)")
        A(f"v_readfirstlane_b32 {sr(rF)}, v32")
        A("s_mov_b64 exec, -1")
        A("s_nop 3")
        A(f"s_cmp_eq_u32 {sr(rF)}, {FULL}")
        A(f"s_cselect_b32 {sr(rF)}, {sr(rF)}, -1")
        A(f"v_mov_b32 v29, {sr(rF)}")
        A("ds_write_b32 v27, v29")
        A("s_cbranch_scc0 L_rd_ret")
        A(f"s_mov_b32 {sr(rMode)}, 2")
        A("s_branch L_rd_poll")
        lab("L_rd_work")
        self.stamp(17)
        for g in range(6):
            l = self.new("rg")
            A(f"s_bitcmp1_b32 {sr(rNew)}, {4*g}")
            A(f"s_cbranch_scc0 {l}")
            base, first = (rOffB, 4 * g) if g < 4 else (rOffA, 4 * (g - 4))
            for q in range(4):
                A(f"s_add_u32 {sr(sT0)}, {sr(base)}, {(first+q)*PART}")
                A(f"buffer_load_dwordx4 {vr(dat(g,q),4)}, v25, {sr(rWs,4)}, {sr(sT0)} offen sc1")
            lab(l)
        A("s_waitcnt vmcnt(0)")
        self.stamp(18)
        for g in range(6):
            l = self.new("rs")
            A(f"s_bitcmp1_b32 {sr(rNew)}, {4*g}")
            A(f"s_cbranch_scc0 {l}")
            for q in range(4):
                for k in range(4):
                    r, t = dat(g, q) + k, (acc(g) + 2 * k if q == 0 else 30 + 2 * (k % 2))
                    A(f"v_lshlrev_b32 {vr(t)}, 16, {vr(r)}")
                    A(f"v_and_b32 {vr(t+1)}, {sr(sT3)}, {vr(r)}")
                    if q:
                        A(f"v_pk_add_f32 {vr(acc(g)+2*k,2)}, {vr(acc(g)+2*k,2)}, {vr(t,2)}")
            lab(l)
        A(f"s_or_b32 {sr(rDone)}, {sr(rDone)}, {sr(rNew)}")
        A(f"s_cmp_eq_u32 {sr(rDone)}, 0x111111")
        A("s_cbranch_scc0 L_rd_poll")
        for x, y in ((0, 1), (2, 3), (4, 5), (0, 2)):
            for k in range(4):
                A(f"v_pk_add_f32 {vr(acc(x)+2*k,2)}, {vr(acc(x)+2*k,2)}, {vr(acc(y)+2*k,2)}")
        for g, d in ((4, 32), (0, 36)):
            for k in range(4):
                A(f"v_cvt_pk_bf16_f32 {vr(d+k)}, {vr(acc(g)+2*k)}, {vr(acc(g)+2*k+1)}")
        A(f"buffer_store_dwordx4 v[32:35], v26, {sr(rOut,4)}, {sr(rOffO)} offen")
        A(f"buffer_store_dwordx4 v[36:39], v26, {sr(rOut,4)}, {sr(rOffO)} offen offset:1024")
        lab("L_rd_ret")
        A(f"s_setpc_b64 {sr(LINK_S,2)}")

    def zero(self, base, n):
        for k in range(0, n, 2):
            self.A(f"v_mov_b64 {vr(base+k,2)}, 0")

    def act_write_addr(self, sblk, stile):
        A = self.A
        self.lane(vT + 1)
        A(f"v_lshrrev_b32 {vr(vT)}, 4, {vr(vT+1)}")
        A(f"v_and_b32 {vr(vT+1)}, 15, {vr(vT+1)}")
        A(f"v_lshrrev_b32 {vr(vT+2)}, 1, {vr(vT)}")
        if stile is not None:
            A(f"v_add_u32 {vr(vT+2)}, {sr(stile)}, {vr(vT+2)}")
        A(f"v_xor_b32 {vr(vT+2)}, {vr(vT+2)}, {vr(vT+1)}")
        A(f"v_lshlrev_b32 {vr(vT+2)}, 4, {vr(vT+2)}")
        A(f"v_and_b32 {vr(vT)}, 1, {vr(vT)}")
        A(f"v_lshl_or_b32 {vr(vT+2)}, {vr(vT)}, 3, {vr(vT+2)}")
        A(f"v_mul_u32_u24 {vr(vT+1)}, {XROW}, {vr(vT+1)}")
        A(f"s_add_u32 {sr(sT5)}, {sr(sblk)}, {XB}")
        A(f"v_add3_u32 {vr(vT+1)}, {vr(vT+1)}, {sr(sT5)}, {vr(vT+2)}")

    def frag_addrs(self):
        A = self.A
        t0, t1, t2, t3, t4, t5, vL = vT, vT + 1, vT + 2, vT + 3, vT + 4, vT + 5, vT + 6
        self.lane(vL)
        A(f"v_lshrrev_b32 {vr(t0)}, 4, {vr(vL)}")
        A(f"v_and_b32 {vr(t1)}, 15, {vr(vL)}")
        A(f"v_bfe_u32 {vr(t2)}, {vr(vL)}, 2, 2")
        A(f"v_and_b32 {vr(t3)}, 3, {vr(vL)}")
        A(f"v_lshl_add_u32 {vr(t4)}, {vr(t0)}, 3, {vr(t2)}")
        A(f"v_lshlrev_b32 {vr(t4)}, 8, {vr(t4)}")
        A(f"v_and_b32 {vr(t5)}, 1, {vr(t0)}")
        A(f"v_lshl_or_b32 {vr(t5)}, {vr(t5)}, 2, {vr(t2)}")
        A(f"v_lshl_or_b32 {vr(t4)}, {vr(t5)}, 5, {vr(t4)}")
        A(f"v_lshl_or_b32 {vr(vTR0)}, {vr(t3)}, 3, {vr(t4)}")
        A(f"s_lshr_b32 {sr(sT0)}, {sr(sW1024)}, 4")
        A(f"v_xor_b32 {vr(vTRw)}, {sr(sT0)}, {vr(vTR0)}")
        A(f"s_lshr_b32 {sr(sT1)}, {sr(sW)}, 1")
        A(f"s_lshl_b32 {sr(sT1)}, {sr(sT1)}, 13")
        A(f"v_lshrrev_b32 {vr(t4)}, 2, {vr(t1)}")
        A(f"v_lshl_or_b32 {vr(t4)}, {vr(t4)}, 3, {vr(t3)}")
        A(f"v_lshlrev_b32 {vr(t4)}, 8, {vr(t4)}")
        A(f"v_lshrrev_b32 {vr(t5)}, 1, {vr(t0)}")
        A(f"v_and_b32 {vr(vKb)}, 7, {vr(t1)}")
        A(f"v_xor_b32 {vr(t5)}, {vr(t5)}, {vr(vKb)}")
        A(f"v_lshl_or_b32 {vr(t4)}, {vr(t5)}, 5, {vr(t4)}")
        A(f"v_and_b32 {vr(t5)}, 1, {vr(t0)}")
        A(f"v_lshl_or_b32 {vr(t4)}, {vr(t5)}, 4, {vr(t4)}")
        A(f"s_and_b32 {sr(sT0)}, {sr(sW)}, 1")
        A(f"s_lshl_b32 {sr(sT0)}, {sr(sT0)}, 10")
        A(f"s_add_u32 {sr(sT0)}, {sr(sT0)}, {sr(sT1)}")
        A(f"v_add_u32 {vr(vKb)}, {sr(sT0)}, {vr(t4)}")
        A(f"v_mul_u32_u24 {vr(t4)}, {XROW}, {vr(t1)}")
        A(f"v_add_u32 {vr(t4)}, {XB}, {vr(t4)}")
        A(f"v_xor_b32 {vr(t5)}, {vr(t0)}, {vr(t1)}")
        A(f"v_lshlrev_b32 {vr(t5)}, 4, {vr(t5)}")
        for s in range(4):
            A(f"v_xor_b32 {vr(vXB+s)}, {s*64}, {vr(t5)}")
            A(f"v_add_u32 {vr(vXB+s)}, {vr(vXB+s)}, {vr(t4)}")
        A(f"v_lshrrev_b32 {vr(t5)}, 1, {vr(t0)}")
        A(f"s_lshr_b32 {sr(sT0)}, {sr(sW1024)}, 8")
        A(f"v_add_u32 {vr(t5)}, {sr(sT0)}, {vr(t5)}")
        A(f"v_xor_b32 {vr(t5)}, {vr(t5)}, {vr(t1)}")
        A(f"v_lshl_add_u32 {vr(vQW)}, {vr(t5)}, 4, {vr(t4)}")
        A(f"v_and_b32 {vr(t5)}, 1, {vr(t0)}")
        A(f"v_lshl_add_u32 {vr(vQW)}, {vr(t5)}, 3, {vr(vQW)}")
        A(f"s_lshr_b32 {sr(sT0)}, {sr(sW)}, 1")
        A(f"s_lshl_b32 {sr(sT0)}, {sr(sT0)}, 2")
        A(f"v_add_u32 {vr(t5)}, {sr(sT0)}, {vr(t0)}")
        A(f"v_xor_b32 {vr(t5)}, {vr(t5)}, {vr(t1)}")
        A(f"v_lshl_add_u32 {vr(vPW)}, {vr(t5)}, 4, {vr(t4)}")
        A(f"s_and_b32 {sr(sT0)}, {sr(sW)}, 1")
        A(f"s_lshl_b32 {sr(sT0)}, {sr(sT0)}, 3")
        A(f"v_add_u32 {vr(vPW)}, {sr(sT0)}, {vr(vPW)}")
        A(f"v_lshlrev_b32 {vr(vSTr)}, 5, {vr(t1)}")
        A(f"v_add_u32 {vr(vSTr)}, {ST}, {vr(vSTr)}")
        A(f"v_lshlrev_b32 {vr(t5)}, 1, {vr(t0)}")
        A(f"v_mov_b32 {vr(t4)}, 0x98")
        A(f"v_lshrrev_b32 {vr(t5)}, {vr(t5)}, {vr(t4)}")
        A(f"v_and_b32 {vr(t5)}, 3, {vr(t5)}")
        A(f"v_lshl_add_u32 {vr(vSTw)}, {vr(t5)}, 9, {vr(vSTr)}")
        A(f"s_lshl_b32 {sr(sT0)}, {sr(sW)}, 2")
        A(f"v_add_u32 {vr(vSTw)}, {sr(sT0)}, {vr(vSTw)}")

    def main_kernel(self):
        A, lab, c = self.A, self.lab, self.c
        opt = self.opt
        K1 = NAME + "_kernel"
        self.L += [f".globl {K1}", ".p2align 8", f".type {K1},@function"]
        lab(K1)
        if opt.get("prost"):
            A("s_memtime s[88:89]")
        A("s_cmp_ge_u32 s2, 256")
        A("s_cbranch_scc1 L_end")
        if opt.get("only"):
            A("s_bitcmp1_b32 s2, 7")
            A("s_cbranch_scc%d L_end" % (1 if opt["only"] == "B" else 0))
        if opt.get("dbg"):
            A("s_memrealtime s[76:77]")
            A("s_waitcnt lgkmcnt(0)")
            A("v_mov_b32 v23, s76")
            A("s_memtime s[76:77]")
            A("s_waitcnt lgkmcnt(0)")
            A("s_mov_b32 s78, s76")
        A(f"s_load_dwordx8 {sr(44,8)}, s[0:1], 40")
        A(f"s_load_dwordx2 {sr(52,2)}, s[0:1], 72")
        A(f"s_load_dwordx8 {sr(32,8)}, s[0:1], 0")
        A(f"s_load_dwordx2 {sr(40,2)}, s[0:1], 32")
        A(f"s_load_dwordx2 {sr(54,2)}, s[0:1], 96")
        if opt.get("stamps"):
            A(f"v_mov_b32 {vr(23)}, 0")
            A(f"s_mov_b32 s78, {-(opt.get('skip', 1) - 1)}")
        if opt.get("prost"):
            A("s_waitcnt lgkmcnt(0)")
            A("s_and_b32 s88, s88, 0xffffff")
            A(f"s_or_b32 s88, s88, {1 << 24}")
            A("v_writelane_b32 v23, s88, 0")
            A("s_mov_b32 s78, 1")
            self.stamp(15)
        vL = vT + 6
        A(f"v_lshrrev_b32 {vr(vT)}, 6, v0")
        A(f"v_and_b32 {vr(vL)}, 63, v0")
        A(f"v_readfirstlane_b32 {sr(sW)}, {vr(vT)}")
        A(f"s_and_b32 {sr(sG)}, s2, 7")
        A(f"s_lshr_b32 {sr(sT0)}, s2, 3")
        A(f"s_and_b32 {sr(sB)}, {sr(sT0)}, 15")
        A(f"s_lshr_b32 {sr(sRole)}, {sr(sT0)}, 4")
        A(f"s_and_b32 {sr(sOrd)}, {sr(sT0)}, {opt.get('ordmask', 1)}")
        A(f"s_cmp_lg_u32 {sr(sOrd)}, 0")
        A(f"s_cselect_b32 {sr(sOrd)}, 2, 1")
        A(f"s_mul_i32 {sr(sOrd)}, {sr(sOrd)}, {sr(sRole)}")
        A(f"s_and_b32 {sr(sT1)}, {sr(sW)}, 3")
        A(f"s_lshl_b32 {sr(sW1024)}, {sr(sT1)}, 10")
        c("DMA lane offsets: row = 4(w&3) + (l>>4) (+16), 32-byte chunk XOR key(row)")
        t0, t1, t2, t3, t4, t5 = vT, vT + 1, vT + 2, vT + 3, vT + 4, vT + 5
        A(f"v_lshrrev_b32 {vr(t0)}, 4, {vr(vL)}")
        A(f"s_lshl_b32 {sr(sT0)}, {sr(sW)}, 1")
        A(f"s_and_b32 {sr(sT0)}, {sr(sT0)}, 4")
        A(f"v_or_b32 {vr(t1)}, {sr(sT0)}, {vr(t0)}")
        A(f"v_bfe_u32 {vr(t2)}, {vr(vL)}, 1, 3")
        A(f"v_xor_b32 {vr(t1)}, {vr(t1)}, {vr(t2)}")
        A(f"v_lshlrev_b32 {vr(t1)}, 5, {vr(t1)}")
        A(f"v_and_b32 {vr(t2)}, 1, {vr(vL)}")
        A(f"v_lshl_or_b32 {vr(vChunk)}, {vr(t2)}, 4, {vr(t1)}")
        A(f"s_lshl_b32 {sr(sT0)}, {sr(sT1)}, 2")
        A(f"v_add_u32 {vr(vRow)}, {sr(sT0)}, {vr(t0)}")
        A(f"v_lshl_add_u32 {vr(vCur[0])}, {vr(vRow)}, {ROWSH[T_WQ]}, {vr(vChunk)}")
        c("first B head: 4g for the A role, 4g+1 for the B role")
        A(f"s_lshl_b32 {sr(sT4)}, {sr(sG)}, 2")
        A(f"s_add_u32 {sr(sT4)}, {sr(sT4)}, 1")
        A(f"s_sub_u32 {sr(sT4)}, {sr(sT4)}, {sr(sRole)}")
        A(f"s_lshl_b32 {sr(sE)}, {sr(sT4)}, 8")
        A(f"s_getpc_b64 {sr(sT2,2)}")
        lab("L_pc0")
        A(f"s_lshl_b32 {sr(sT0)}, {sr(sOrd)}, 8")
        A(f"s_add_u32 {sr(sT0)}, {sr(sT0)}, L_table-L_pc0")
        A(f"v_lshl_add_u32 {vr(vTab)}, {vr(vL)}, 2, {sr(sT0)}")
        A(f"global_load_dword {vr(vTab)}, {vr(vTab)}, {sr(sT2,2)}")
        if opt.get("codepf", 1):
            c("waves 0-3 pull the code into L2: 64 KiB window, 512 bytes per wave and workgroup of the head group")
            self.is_loader("L_nocp")
            A(f"s_lshr_b32 {sr(sT0)}, s2, 3")
            A(f"s_lshl_b32 {sr(sT0)}, {sr(sT0)}, 2")
            A(f"s_add_u32 {sr(sT0)}, {sr(sT0)}, {sr(sW)}")
            A(f"s_lshl_b32 {sr(sT0)}, {sr(sT0)}, 9")
            A(f"v_lshl_add_u32 {vr(vT)}, {vr(vL)}, 3, {sr(sT0)}")
            A(f"v_min_u32 {vr(vT)}, L_table-L_pc0, {vr(vT)}")
            A(f"global_load_dwordx2 v[156:157], {vr(vT)}, {sr(sT2,2)}")
            lab("L_nocp")
        self.x_setup(vY, sHalf[0], sHalf[1])
        if opt.get("prost"):
            self.stamp(15)
        A(f"s_bitcmp1_b32 {sr(sW)}, 2")
        A("s_waitcnt lgkmcnt(0)")
        self.srd(SRD_AUX, sBx, 786432)
        self.srd(SRD_WQW, sAwq, 4194304)
        self.srd(SRD_WQ, sBwq, 4194304)
        self.srd(SRD_CUR[0], sBwq, 4194304)
        self.srd(SRD_CUR[1], sBwq, 4194304)
        A("s_cbranch_scc1 L_pro_ld")
        if opt.get("pf1", 0):
            A(f"s_cmp_eq_u32 {sr(sRole)}, 1")
            A("s_cbranch_scc1 L_pro_done")
            self.weight_prefetch([(sBwq, True, 1)])
        A("s_branch L_pro_done")
        lab("L_pro_ld")
        A(f"s_cmp_eq_u32 {sr(sOrd)}, 1")
        A(f"s_cselect_b64 {sr(SRD_AUX,2)}, {sr(sAx,2)}, {sr(sBx,2)}")
        A(f"s_cselect_b64 {sr(SRD_CUR[0],2)}, {sr(sAwq,2)}, {sr(sBwq,2)}")
        A(f"s_mov_b32 {sr(sStr[1])}, {32*8192}")
        A(f"s_cselect_b32 {sr(sStr[0])}, 256, {sr(sStr[1])}")
        A(f"s_cselect_b32 {sr(sStr[1])}, {sr(sStr[1])}, {128*8192}")
        A(f"s_cselect_b32 {sr(sI[0])}, 15, 3")
        A(f"s_cselect_b32 {sr(sOff2)}, 2, 0")
        A(f"s_lshr_b32 {sr(sOff2)}, {sr(sB)}, {sr(sOff2)}")
        A(f"s_mov_b32 {sr(sTy[0])}, {sr(sE)}")
        self.x_rot(vY, 0)
        self.first_tile(0)
        self.x_rot(vY, 1)
        if opt.get("prost"):
            self.stamp(15)
        lab("L_pro_done")
        self.frag_addrs()
        A(f"s_cmp_eq_u32 {sr(sOrd)}, 1")
        for d, pa, pb, za, zb in ((SRD_K, sAk, sBk, 16777216, 67108864), (SRD_V, sAv, sBv, 16777216, 67108864), (SRD_WO, sAwo, sBwo, 4194304, 4194304)):
            A(f"s_cselect_b64 {sr(d,2)}, {sr(pa,2)}, {sr(pb,2)}")
            A(f"s_mov_b32 {sr(d+2)}, {zb}")
            if za != zb:
                A(f"s_cselect_b32 {sr(d+2)}, {za}, {sr(d+2)}")
            A(f"s_mov_b32 {sr(d+3)}, 0x20000")
        c("tile table: entry = constant + base selected by bits 4:3 (Wq head, B K/V unit, Wo head, A K/V unit)")
        bq, bkv, bo, bka = sT0, sT1, sT2, sT3
        A(f"s_lshl_b32 {sr(bq)}, {sr(sT4)}, 8")
        A(f"s_lshl_b32 {sr(bkv)}, {sr(sB)}, 5")
        A(f"s_add_u32 {sr(bkv)}, {sr(bkv)}, {sr(sT4)}")
        A(f"s_lshl_b32 {sr(bkv)}, {sr(bkv)}, 17")
        A(f"s_lshl_b32 {sr(bo)}, {sr(sT4)}, 17")
        A(f"s_lshl_b32 {sr(bka)}, {sr(sB)}, 3")
        A(f"s_add_u32 {sr(bka)}, {sr(bka)}, {sr(sG)}")
        A(f"s_lshl_b32 {sr(bka)}, {sr(bka)}, 17")
        A(f"s_cmp_eq_u32 {sr(sRole)}, 1")
        A(f"s_cselect_b32 {sr(sHead)}, 1, 3")
        A(f"v_mov_b32 {vr(vT+1)}, {sr(bq)}")
        self.is_loader("L_tabw")
        if self.fuse:
            self.srd(SRD_CUR[1], sWs, 268435456)
            self.lane(vT + 3)
            A(f"v_lshlrev_b32 {vr(vT+3)}, 2, {vr(vT+3)}")
            A(f"s_lshl_b32 {sr(sT5)}, {sr(sB)}, 8")
            A(f"s_add_u32 {sr(sT5)}, {sr(sT5)}, {WS_FLAGS}")
            A(f"s_mov_b32 m0, {ENTRY}")
            A(f"s_cmp_eq_u32 {sr(sW)}, 3")
            A("s_cbranch_scc0 L_tabw0")
            A(f"buffer_load_dword {vr(vT+3)}, {sr(SRD_CUR[1],4)}, {sr(sT5)} offen sc1 lds")
            lab("L_tabw0")
        A("s_waitcnt vmcnt(0)")
        lab("L_tabw")
        A("s_waitcnt vmcnt(14)")
        A(f"v_bfe_u32 {vr(vT)}, {vr(vTab)}, 3, 2")
        for k, base in ((1, bkv), (2, bo), (3, bka)):
            A(f"v_cmp_eq_u32 vcc, {k}, {vr(vT)}")
            A(f"v_mov_b32 {vr(vT+2)}, {sr(base)}")
            A("s_nop 0")
            A(f"v_cndmask_b32 {vr(vT+1)}, {vr(vT+1)}, {vr(vT+2)}, vcc")
        c("projections that use the initial x take their k blocks in an order rotated by the batch")
        A(f"s_lshl_b32 {sr(sT5)}, {sr(sB)}, 20")
        A(f"s_cmp_eq_u32 {sr(sOrd)}, 1")
        A(f"s_cselect_b32 {sr(sT5)}, 0, {sr(sT5)}")
        A(f"v_and_b32 {vr(vT)}, 31, {vr(vTab)}")
        A(f"v_cmp_eq_u32 vcc, {T_WQ}, {vr(vT)}")
        A(f"v_add_u32 {vr(vT+2)}, {sr(sT5)}, {vr(vTab)}")
        A(f"s_mov_b32 {sr(sT5)}, 0x300000")
        A(f"v_bfi_b32 {vr(vT+2)}, {sr(sT5)}, {vr(vT+2)}, {vr(vTab)}")
        A(f"v_cndmask_b32 {vr(vTab)}, {vr(vTab)}, {vr(vT+2)}, vcc")
        A(f"s_lshl_b32 {sr(sT5)}, {sr(sB)}, 18")
        A(f"v_and_b32 {vr(vT)}, 7, {vr(vTab)}")
        A(f"v_cmp_eq_u32 vcc, {T_WQW}, {vr(vT)}")
        A(f"v_add_u32 {vr(vT+2)}, {sr(sT5)}, {vr(vTab)}")
        A(f"v_and_b32 {vr(vT+2)}, 0x3fffff, {vr(vT+2)}")
        A(f"v_cndmask_b32 {vr(vTab)}, {vr(vTab)}, {vr(vT+2)}, vcc")
        A(f"v_add_u32 {vr(vTab)}, {vr(vTab)}, {vr(vT+1)}")
        A(f"s_mov_b32 {sr(sIdx)}, 3")
        A(f"s_mov_b32 {sr(sC)}, 0")
        A(f"v_readlane_b32 {sr(sE)}, {vr(vTab)}, 3")

        def const(ty, hh, t, a_unit=False):
            if ty == T_WQ:
                return t * 128 * 8192 + hh * 256 + ty
            if ty == T_WQW:
                return t * 32 * 8192 + ty
            if ty in (T_K, T_V):
                return hh * 131072 + t * 32768 + ty + (24 if a_unit else 8)
            return (hh * 128 + 32 * t) * 1024 + ty + 16

        tb = [const(T_WQ, 0, t) for t in range(4)] + [const(T_K, 0, t) for t in range(4)]
        tb += [const(T_WQ, hh, t) for hh in (1, 2) for t in range(4)]
        tb += [const(ty, 0, t) for ty in (T_V, T_WO) for t in range(4)]
        tb += [const(ty, hh, t) for hh in (1, 2) for ty in (T_K, T_V, T_WO) for t in range(4)]
        ta = [const(T_WQW, 0, t) for t in range(16)]
        ta += [const(ty, 0, t, True) for t in range(4) for ty in (T_K, T_V)]
        ta += [const(T_WO, hh, t) for hh in range(4) for t in range(4)]
        ta += [const(ty, 0, t) for ty in (T_WQ, T_K, T_V, T_WO) for t in range(4)]
        tc = ta[40:] + ta[:40]
        self.table = sum((t + [NULL_OFF] * (64 - len(t)) for t in (tb, ta, tc)), [])
        A(f"s_mov_b32 {sr(sScale)}, {f32(math.log2(math.e) / math.sqrt(128.0))}")
        A(f"s_mov_b32 {sr(sThr)}, 0x41000000")
        A(f"s_or_b32 {sr(sZero)}, {sr(sRole)}, 1")
        A(f"s_and_b32 {sr(sBlkEnd)}, {sr(sRole)}, 2")
        A(f"s_and_b32 {sr(sFix)}, {sr(sRole)}, 2")
        A(f"v_mov_b32 {vr(vT)}, {RELAY}")
        A(f"v_mov_b64 {vr(vT+2,2)}, 0")
        A(f"ds_write_b64 {vr(vT)}, {vr(vT+2,2)}")
        self.stamp(0)

        if opt.get("pads"):
            self.is_loader("L_padend")
            for w in range(3):
                A(f"s_cmp_eq_u32 {sr(sW)}, {w}")
                A(f"s_cbranch_scc1 L_pad{w}_0")
            A("s_branch L_pad3_0")
            lab("L_padend")
        if opt.get("dmaonly"):
            self.dma_only()
        A(f"s_mov_b32 {sr(sHook)}, 0")
        A(f"s_cmp_eq_u32 {sr(sOrd)}, 1")
        A("s_cbranch_scc1 L_apath")
        lab("L_q0")
        c("Q projection of the first B head (scaled by log2(e)/sqrt(128))")
        A(f"s_mov_b32 {sr(sLate)}, 2")
        A(f"s_call_b64 {sr(LINK_S,2)}, L_qproj")
        def q_write(src, blk):
            A(f"v_xor_b32 {vr(vT+6)}, 32, {vr(vQW)}")
            for m in range(2):
                for n in range(3):
                    A(f"ds_write_b64 {vr(vT+6 if m else vQW)}, {vr(src+(m*3+n)*2,2)} offset:{n*XN+blk*BLK}")

        self.is_loader("L_q0ld")
        q_write(vAcc, 4)
        allpf = {"q0": (sBwq, True, 0), "q2": (sBwq, True, 2), "q3": (sBwq, True, 3)}
        allpf.update({f"b{h}": (sBwo, False, h) for h in range(4)})
        allpf.update({f"a{h}": (sAwo, False, h) for h in range(4)})
        pick = lambda key, dflt: [allpf[x] for x in opt.get(key, dflt).split("+") if x]
        self.pf_a = pick("pfa", "q0+b2+b3")
        A(f"s_cmp_eq_u32 {sr(sOrd)}, 1")
        A("s_cbranch_scc1 L_q0done")
        A(f"s_cmp_eq_u32 {sr(sOrd)}, 2")
        A("s_cbranch_scc1 L_pfc")
        self.weight_prefetch(pick("pfb", "q2+q3+b0+b1"))
        A("s_branch L_q0done")
        lab("L_pfc")
        self.weight_prefetch(pick("pfc", "a0+a1+a2+a3"), half=True)
        A("s_branch L_q0done")
        lab("L_q0ld")
        self.frag_addrs()
        lab("L_q0done")
        self.stamp(1)
        A("s_branch L_bpath")
        lab("L_apath")
        c("GQA group: four query heads sharing one K/V")
        A(f"s_mov_b32 {sr(sHook)}, 0")
        A(f"s_mov_b32 {sr(sBlk)}, {sr(sB)}")
        A(f"s_mov_b32 {sr(sBlkEnd)}, {3*BLK}")
        A(f"s_mov_b32 {sr(sLate)}, 3")
        A(f"s_call_b64 {sr(LINK_S,2)}, L_wide")
        c("wave c < 4 holds Q of head c; x is dead after the drain barrier")
        self.is_loader("L_qa_ld")
        A("s_barrier")
        A(f"s_mul_i32 {sr(sT0)}, {sr(sW)}, {BLK}")
        self.act_write_addr(sT0, None)
        A(f"v_mov_b32 {vr(vT+4)}, {sr(sScale)}")

        def qpack(jp):
            g = []
            for j in (2 * jp, 2 * jp + 1):
                g.append([f"v_xor_b32 {vr(vT+2+j%2)}, {j*32}, {vr(vT+1)}"])
                for n in range(3):
                    y = vY + (j * 3 + n) * 4
                    g += [[self.pkmul(y, vT + 4)], [self.pkmul(y + 2, vT + 4)],
                          [f"v_cvt_pk_bf16_f32 {vr(y)}, {vr(y)}, {vr(y+1)}"], [f"v_cvt_pk_bf16_f32 {vr(y+1)}, {vr(y+2)}, {vr(y+3)}"],
                          [f"ds_write_b64 {vr(vT+2+j%2)}, {vr(y,2)} offset:{n*XN}"]]
            return g

        self.wide_drain(qpack)
        A("s_branch L_qa_done")
        lab("L_qa_ld")
        self.head(8)
        for k in range(4):
            self.dma(k, 0, True, guard=False)
        lab("L_qa_done")
        self.stamp(7)
        c("wave = (head w>>1, key half w&1); O slot j holds d tile j ^ 4(w&1)")
        A(f"s_and_b32 {sr(sT0)}, {sr(sW)}, 1")
        A(f"s_lshl_b32 {sr(sT2)}, {sr(sT0)}, 14")
        A(f"s_lshl_b32 {sr(sT3)}, {sr(sT0)}, 7")
        A(f"s_lshl_b32 {sr(sT0)}, {sr(sT0)}, 10")
        A(f"s_lshr_b32 {sr(sT1)}, {sr(sW)}, 1")
        A(f"s_mul_i32 {sr(sBlk)}, {sr(sT1)}, {BLK}")
        A(f"s_lshl_b32 {sr(sT1)}, {sr(sT1)}, 13")
        A(f"s_add_u32 {sr(sT0)}, {sr(sT0)}, {sr(sT1)}")
        A(f"s_sub_u32 {sr(sT0)}, {sr(sT2)}, {sr(sT0)}")
        A(f"v_add_u32 {vr(vKa)}, {sr(sT0)}, {vr(vKb)}")
        A(f"v_xor_b32 {vr(vTRa)}, {sr(sT3)}, {vr(vTR0)}")
        A(f"v_add_u32 {vr(vTRa)}, {sr(sT2)}, {vr(vTRa)}")
        c("tiles alternate over four slots: the three ring slots and the activation region")
        sKs, sVs, sXa, sXb, sX, sEv = sQ[0], sQ[1], sQ[2], sQ[3], [sT1, sT2], sT0
        A(f"s_mov_b32 {sr(sKs)}, {sr(sC)}")
        self.weave([], self.rot())
        A(f"s_mov_b32 {sr(sVs)}, {sr(sC)}")
        self.weave([], self.rot())
        A(f"s_xor_b32 {sr(sXa)}, {sr(sKs)}, {sr(sC)}")
        A(f"s_xor_b32 {sr(sXb)}, {sr(sVs)}, {XB}")
        A(f"v_add_u32 {vr(vT)}, {sr(sKs)}, {vr(vKa)}")
        for s in range(1, 4):
            A(f"v_xor_b32 {vr(vT+s)}, {s*64}, {vr(vT)}")
        c("load parameters: set pv carries V tiles, set pk carries K tiles (waves 0-3: pv = 0, waves 4-7: pv = 1)")
        A(f"s_lshl_b32 {sr(sT3)}, {sr(sB)}, 3")
        A(f"s_add_u32 {sr(sT3)}, {sr(sT3)}, {sr(sG)}")
        A(f"s_lshl_b32 {sr(sT3)}, {sr(sT3)}, 17")
        A(f"s_lshl_b32 {sr(sT4)}, {sr(sW)}, 10")
        A(f"s_and_b32 {sr(sT5)}, {sr(sT4)}, 4096")
        A(f"s_add_u32 {sr(sT3)}, {sr(sT3)}, {sr(sT5)}")
        A(f"s_add_u32 {sr(sT5)}, {sr(sVs)}, {sr(sT4)}")
        A(f"s_add_u32 {sr(sT4)}, {sr(sC)}, {sr(sT4)}")
        self.weave([], self.rot())
        A(f"s_add_u32 {sr(sP0)}, {sr(sT3)}, {32768-8192}")
        A(f"s_add_u32 {sr(sP1)}, {sr(sT3)}, {65536-8192}")
        A(f"s_bitcmp1_b32 {sr(sW)}, 2")
        for q in range(2):
            lo = ("%s, %s" if q else "%s, %s")
            def sel(y, x):
                return (y, x) if q else (x, y)
            A(f"s_cselect_b64 {sr(SRD_CUR[q],2)}, " + ", ".join(sel(sr(SRD_V, 2), sr(SRD_K, 2))))
            A(f"s_mov_b32 {sr(SRD_CUR[q]+2)}, 16777216")
            A(f"s_cselect_b32 {sr(sOff[q])}, " + ", ".join(sel(sr(sP0), sr(sP1))))
            A(f"s_cselect_b32 {sr(sI[q])}, " + ", ".join(sel(sr(sT5), sr(sT4))))
            A(f"s_cselect_b32 {sr(sX[q])}, " + ", ".join(sel(sr(sXb), sr(sXa))))
            A(f"s_mov_b32 {sr(sStr[q])}, 8192")
            A(f"s_mov_b32 {sr(sTy[q])}, {T_K}")
            A(f"v_lshl_add_u32 {vr(vCur[q])}, {vr(vRow)}, 8, {vr(vChunk)}")
        A(f"s_mov_b32 {sr(sEv)}, 0")
        for n in range(3):
            self.zero(vNm[n], 4)
        A(f"s_mov_b32 {sr(sFix)}, 0")
        A(f"s_mov_b32 {sr(sIter)}, 4")

        def sa(sg, n, t):
            return vS + ((sg * 3 + n) * 2 + t) * 4

        def fa(f):
            return vAfA + (f % NFA) * 4

        def kread(f):
            j, s = f // 4, f % 4
            A(f"ds_read_b128 {vr(fa(f),4)}, {vr(vT+s)} offset:{(j//2)*8192+(j%2)*1024}")

        def sm_check(sg, lr, ln):
            f = [[x] for x in self.maxn(vDl, [sa(sg, 0, 0) + r for r in range(24)])]
            return f + [[f"v_cmp_lt_f32 vcc, {sr(sThr)}, {vr(vDl)}", f"s_cbranch_vccnz {lr}", ln + ":"]]

        def sm_exp(sg):
            f = []
            for n in range(3):
                b = sa(sg, n, 0)
                for r in range(8):
                    f.append([f"v_exp_f32 {vr(b+r)}, {vr(b+r)}"])
                    if r in (3, 5, 7):
                        f.append([f"v_cvt_pk_bf16_f32 {vr(b+(r-3)//2)}, {vr(b+r-3)}, {vr(b+r-2)}"])
                f.append(["s_nop 0", f"v_cvt_pk_bf16_f32 {vr(b+3)}, {vr(b+6)}, {vr(b+7)}"] if n == 2 else
                         [f"v_exp_f32 {vr(b+8)}, {vr(b+8)}", f"v_cvt_pk_bf16_f32 {vr(b+3)}, {vr(b+6)}, {vr(b+7)}"])
            out, skip = [], set()
            for n in (1, 2):
                skip.add(f"v_exp_f32 {vr(sa(sg,n,0))}, {vr(sa(sg,n,0))}")
            for g in f:
                if len(g) == 1 and g[0] in skip:
                    continue
                out.append(g)
            return out

        def aprep(q):
            l1, l2 = self.new("wo"), self.new("wb")
            self.cold += [l1 + ":",
                          f"  s_mov_b64 {sr(SRD_CUR[q],2)}, {sr(SRD_WO,2)}", f"  s_mov_b32 {sr(SRD_CUR[q]+2)}, 4194304",
                          f"  s_mov_b32 {sr(sStr[q])}, 256", f"  s_mov_b32 {sr(sTy[q])}, {T_WO}",
                          f"  v_lshl_add_u32 {vr(vCur[q])}, {vr(vRow)}, 10, {vr(vChunk)}",
                          f"  s_lshl_b32 {sr(sOff[q])}, {sr(sG)}, 4", f"  s_add_u32 {sr(sOff[q])}, {sr(sOff[q])}, {sr(sEv)}",
                          f"  s_sub_u32 {sr(sOff[q])}, {sr(sOff[q])}, 6", f"  s_lshl_b32 {sr(sOff[q])}, {sr(sOff[q])}, 15",
                          f"  s_and_b32 {sr(sP0)}, {sr(sW)}, 4", f"  s_lshl_b32 {sr(sP0)}, {sr(sP0)}, 12",
                          f"  s_add_u32 {sr(sOff[q])}, {sr(sOff[q])}, {sr(sP0)}",
                          f"  s_branch {l2}"]
            return [[f"s_xor_b32 {sr(sI[q])}, {sr(sI[q])}, {sr(sX[q])}"],
                    [f"s_add_u32 {sr(sEv)}, {sr(sEv)}, 1", f"s_cmp_ge_u32 {sr(sEv)}, 6", f"s_cbranch_scc1 {l1}", l2 + ":"]]

        def kstep(first):
            u = "f" if first else "l"
            self.early_head(8 if first else 4, lambda: [kread(f) for f in range(NFA)],
                            (lambda: self.load_bfrags_dyn(vLq[0], QA)) if first else None)
            self.ks(2)
            prim = []
            for f in range(16):
                j, s = f // 4, f % 4
                if s == 0:
                    prim.append(self.D1(j, 1, first))
                if f % 2 == 0:
                    prim.append(("w", [f"  s_waitcnt lgkmcnt({max(0, min(f + NFA, 16) - (f + 2))})"]))
                for n in range(3):
                    prim.append(self.M(sa(j // 2, n, j % 2), fa(f), QA[n * 4 + s], vNm[n] if s == 0 else None))
                if f + NFA < 16:
                    prim.append(("r", self.cap(kread, f + NFA)))
                if f == 7:
                    half = len(prim)
            zf = []
            if first:
                zf = [[f"v_mov_b32 {vr(vOne+k)}, 0x3f803f80"] for k in range(4)]
            self.weave(prim[:half], aprep(0) + [[f"s_xor_b32 {sr(sKs)}, {sr(sKs)}, {sr(sXa)}"]] + zf, per=1)
            self.ks()
            if opt.get("prio", 1) == 1:
                A("s_setprio 1")
            fill = [[f"s_branch L_r0first", "L_n0f:"]] if first else sm_check(0, "L_r0", "L_n0l")
            fill += sm_exp(0)
            self.weave(prim[half:], fill, per=opt.get('kper', 3), start=10)
            self.ks()
            A(f"s_cmp_eq_u32 {sr(sFix)}, 0")
            A(f"v_add_u32 {vr(vT)}, {sr(sVs)}, {vr(vTRa)}")
            A("s_nop 5")
            A(f"s_cbranch_scc0 L_r0b{u}")
            lab(f"L_n0b{u}")
            self.weave([], sm_check(1, f"L_r1{u}", f"L_n1{u}"))
            self.ks(13)

        def va(mt):
            return vT if mt == 0 else sa(0, (mt - 1) // 4, 0) + 4 + (mt - 1) % 4

        def vread(q):
            sg, mt = q // 8, q % 8
            if mt and not sg:
                A(f"v_xor_b32 {vr(va(mt))}, {mt*32}, {vr(vT)}")
            self.tr_pair(fa(q), va(mt), sg * 8192)

        c("waves 4-7 run one interval behind waves 0-3")
        A(f"s_bitcmp1_b32 {sr(sW)}, 2")
        A("s_cbranch_scc0 L_att0")
        if opt.get("prio", 1) == 2:
            A("s_setprio 1")
        self.weave([], aprep(1))
        self.load_bfrags_dyn(vLq[0], QA)
        lab("L_att0")
        def vstep(first):
            self.early_head(4, lambda: [vread(q) for q in range(NFA)])
            self.ks(4)
            prim = []
            for q in range(16):
                sg, mt = q // 8, q % 8
                z = 0 if (first and sg == 0) else None
                if q % 2 == 0 and q < 8:
                    prim.append(self.D1(q // 2, 0))
                if mt == 0:
                    for n in range(3):
                        prim.append(self.M(vLq[n], vOne, sa(sg, n, 0), z))
                if q % 2 == 0:
                    prim.append(("w", [f"  s_waitcnt lgkmcnt({2 * max(0, min(q + NFA, 16) - (q + 2))})"]))
                for n in range(3):
                    prim.append(self.M(vO + (mt * 3 + n) * 4, fa(q), sa(sg, n, 0), z))
                if q + NFA < 16:
                    prim.append(("r", self.cap(vread, q + NFA)))
                    lastr = len(prim)
                if q == 7:
                    half = len(prim)
            self.weave(prim[:half], sm_exp(1), per=opt.get('vper', 2))
            if opt.get("prio", 1) == 1:
                A("s_setprio 0")
            self.ks()
            if first:
                A("s_nop 1")
            else:
                A(f"s_cmp_eq_u32 {sr(sIter)}, 1")
                A("s_cbranch_scc1 L_attlast")
            fill = aprep(1) + [[f"s_xor_b32 {sr(sVs)}, {sr(sVs)}, {sr(sXb)}"]]
            fill.append((lastr - half, [f"v_add_u32 {vr(vT)}, {sr(sKs)}, {vr(vKa)}"]))
            for s in range(1, 4):
                fill.append([f"v_xor_b32 {vr(vT+s)}, {s*64}, {vr(vT)}"])
            self.weave(prim[half:], fill, per=1)
            self.stamp(13)
            return prim[half:]

        kstep(True)
        vstep(True)
        lab("L_attA")
        A(f"s_sub_u32 {sr(sIter)}, {sr(sIter)}, 1")
        kstep(False)
        tail = vstep(False)
        A("s_branch L_attA")
        lab("L_attlast")
        self.weave(tail, aprep(1), per=1)
        self.is_loader("L_attdone")
        self.head(None)
        for k in range(4):
            self.L += self.D1(k, 1)[1]
        A(f"s_cmp_eq_u32 {sr(sOrd)}, 1")
        A("s_cbranch_scc0 L_nopfa")
        self.weight_prefetch(self.pf_a, half=True, dst=QA[0])
        lab("L_nopfa")
        A(f"v_mov_b32 {vr(vNm[1]+1)}, {vr(vNm[0])}")
        self.frag_addrs()
        A("s_branch L_attdone2")
        lab("L_attdone")
        A(f"v_mov_b32 {vr(vNm[1]+1)}, {vr(vNm[0])}")
        lab("L_attdone2")
        nmr = [vNm[1] + 1, vNm[1], vNm[2]]
        A("s_setprio 0")
        A(f"s_cmp_eq_u32 {sr(sOrd)}, 1")
        A(f"s_cselect_b32 {sr(sIdx)}, {IDX_AFTER_ATT[0]}, {IDX_AFTER_ATT[1]}")
        A(f"v_readlane_b32 {sr(sE)}, {vr(vTab)}, {sr(sIdx)}")
        self.stamp(8)
        c("merge the two key halves of each head")
        self.srd(SRD_K, sBk, 67108864)
        self.srd(SRD_V, sBv, 67108864)
        self.lane(vT + 3)
        A(f"v_and_b32 {vr(vT)}, 15, {vr(vT+3)}")
        A(f"v_lshlrev_b32 {vr(vT)}, 3, {vr(vT)}")
        A(f"s_mul_i32 {sr(sT0)}, {sr(sW)}, 384")
        A(f"s_add_u32 {sr(sT0)}, {sr(sT0)}, {ST}")
        A(f"v_add_u32 {vr(vT+1)}, {sr(sT0)}, {vr(vT)}")
        A(f"s_xor_b32 {sr(sT1)}, {sr(sW)}, 1")
        A(f"s_mul_i32 {sr(sT0)}, {sr(sT1)}, 384")
        A(f"s_add_u32 {sr(sT0)}, {sr(sT0)}, {ST}")
        A(f"v_add_u32 {vr(vT+2)}, {sr(sT0)}, {vr(vT)}")
        for n in range(3):
            A(f"v_mov_b32 {vr(vLq[n]+1)}, {vr(nmr[n])}")
            A(f"ds_write_b64 {vr(vT+1)}, {vr(vLq[n],2)} offset:{n*128}")
        self.head(None)
        for n in range(3):
            A(f"ds_read_b64 {vr(vAfA+8+2*n,2)}, {vr(vT+2)} offset:{n*128}")
        A(f"s_mul_i32 {sr(sT0)}, {sr(sW)}, 6144")
        A(f"s_add_u32 {sr(sT0)}, {sr(sT0)}, {XB}")
        A(f"s_mul_i32 {sr(sT1)}, {sr(sT1)}, 6144")
        A(f"s_add_u32 {sr(sT1)}, {sr(sT1)}, {XB}")
        A(f"v_lshlrev_b32 {vr(vT)}, 4, {vr(vT+3)}")
        A(f"v_add_u32 {vr(vT+1)}, {sr(sT0)}, {vr(vT)}")
        A(f"v_add_u32 {vr(vT+2)}, {sr(sT1)}, {vr(vT)}")
        A("s_waitcnt lgkmcnt(0)")
        fr = [vAfA + 2 * n for n in range(3)]
        for n in range(3):
            lo, mo = vAfA + 8 + 2 * n, vAfA + 9 + 2 * n
            m, f, fo = vAfA + 16 + n, fr[n], fr[n] + 1
            A(f"v_min_f32 {vr(m)}, {vr(nmr[n])}, {vr(mo)}")
            A(f"v_sub_f32 {vr(f)}, {vr(m)}, {vr(nmr[n])}")
            A(f"v_sub_f32 {vr(fo)}, {vr(m)}, {vr(mo)}")
            A(f"v_exp_f32 {vr(f)}, {vr(f)}")
            A(f"v_exp_f32 {vr(fo)}, {vr(fo)}")
            A("s_nop 0")
            A(f"v_mul_f32 {vr(m)}, {vr(f)}, {vr(vLq[n])}")
            A(f"v_fma_f32 {vr(m)}, {vr(fo)}, {vr(lo)}, {vr(m)}")
            A(f"v_rcp_f32 {vr(m)}, {vr(m)}")
            A("s_nop 0")
            A(f"v_mul_f32 {vr(f)}, {vr(f)}, {vr(m)}")
        c("slots 4-7 go to the partner wave, scaled and packed to bf16")
        for k in range(24):
            o = vO + 48 + 2 * k
            A(self.pkmul(o, fr[(k // 2) % 3]))
        for k in range(24):
            o = vO + 48 + 2 * k
            A(f"v_cvt_pk_bf16_f32 {vr(vS+k)}, {vr(o)}, {vr(o+1)}")
            if k % 4 == 3:
                A(f"ds_write_b128 {vr(vT+1)}, {vr(vS+k-3,4)} offset:{(k//4)*1024}")
        A(f"s_and_b32 {sr(sT0)}, {sr(sW)}, 1")
        A(f"s_lshl_b32 {sr(sT0)}, {sr(sT0)}, 3")
        A(f"s_mov_b32 {sr(sT2)}, 0xffff0000")
        self.head(None)
        for k in range(6):
            A(f"ds_read_b128 {vr(vS+24+4*k,4)}, {vr(vT+2)} offset:{k*1024}")
        self.act_write_addr(sBlk, sT0)
        c("own share of the first Wo tiles must be in; the warm-up loads behind them need not")
        self.is_loader("L_mw0")
        A(f"s_cmp_eq_u32 {sr(sOrd)}, 1")
        A("s_cbranch_scc0 L_mw0")
        A(f"s_waitcnt vmcnt({4*len(self.pf_a)})")
        A("s_branch L_mw2")
        lab("L_mw0")
        A("s_waitcnt vmcnt(0)")
        lab("L_mw2")
        self.head(None)
        for jj in range(4):
            if jj:
                A(f"v_xor_b32 {vr(vT+3)}, {jj*32}, {vr(vT+1)}")
            for n in range(3):
                k = (jj * 3 + n) * 2
                for h in range(2):
                    x = vS + 2 * h
                    A(f"v_lshlrev_b32 {vr(x)}, 16, {vr(vS+24+k+h)}")
                    A(f"v_and_b32 {vr(x+1)}, {sr(sT2)}, {vr(vS+24+k+h)}")
                    A(f"v_pk_fma_f32 {vr(x,2)}, {vr(vO+2*(k+h),2)}, {vr(fr[n],2)}, {vr(x,2)} op_sel_hi:[1,0,1]")
                    A(f"v_cvt_pk_bf16_f32 {vr(vS+4+(k+h)%8)}, {vr(x)}, {vr(x+1)}")
                A(f"ds_write_b64 {vr(vT+3 if jj else vT+1)}, {vr(vS+4+k%8,2)} offset:{n*XN}")
        A(f"s_mov_b32 {sr(sZero)}, 1")
        c("the loaders stream the B-branch x into the blocks the projection has finished with")
        self.srd(SRD_AUX, sBx, 786432)
        self.is_loader("L_xs")
        A("s_branch L_xs2")
        lab("L_xs")
        self.x_setup(vY)
        lab("L_xs2")
        A(f"s_and_b32 {sr(sHook)}, {sr(sOrd)}, 1")
        A(f"s_mov_b32 {sr(sLate)}, {sr(sOrd)}")
        self.stamp(9)
        A(f"s_mov_b32 {sr(sBlk)}, 0")
        A(f"s_call_b64 {sr(LINK_S,2)}, L_wide")
        A(f"s_lshl_b32 {sr(sT0)}, {sr(sB)}, 3")
        A(f"s_add_u32 {sr(sT0)}, {sr(sT0)}, {sr(sG)}")
        A(f"s_mul_i32 {sr(sT0)}, {sr(sT0)}, {PART}")
        A(f"s_add_u32 {sr(sT0)}, {sr(sT0)}, {PART_A_BASE}")
        A(f"s_cmp_eq_u32 {sr(sOrd)}, 2")
        A("s_cbranch_scc1 L_last")
        self.is_loader("L_apk")
        A("s_barrier")
        A("s_waitcnt vmcnt(0)")
        self.pack_y(False, True)
        lab("L_apk")
        self.srd(SRD_WO, sBwo, 4194304)
        A(f"s_mov_b32 {sr(sZero)}, 1")
        self.stamp(10)
        A(f"s_mov_b32 {sr(sHook)}, 0")
        A("s_branch L_q0")
        lab("L_bpath")
        A(f"s_lshl_b32 {sr(sQKi)}, {sr(sOrd)}, 3")
        A(f"s_lshr_b32 {sr(sQKi)}, {hex(6 | 46 << 8 | 6 << 16)}, {sr(sQKi)}")
        A(f"s_and_b32 {sr(sQKi)}, {sr(sQKi)}, 0xff")
        A(f"s_mov_b32 {sr(sBlk)}, {4*BLK}")

        lab("L_head")
        c("scores of one B head; waves 0-3 join the loading here and first decode the pending tile")
        self.is_loader("L_qk_sync")
        A(f"s_mov_b32 {sr(sIdx)}, {sr(sQKi)}")
        A(f"v_readlane_b32 {sr(sE)}, {vr(vTab)}, {sr(sQKi)}")
        A(f"s_sub_u32 {sr(sI[0])}, {sr(sC)}, {TILE}")
        A(f"s_cselect_b32 {sr(sI[0])}, {(NSLOT-1)*TILE}, {sr(sI[0])}")
        A(f"s_add_u32 {sr(sI[0])}, {sr(sI[0])}, {sr(sW1024)}")
        self.weave([], self.prep(0, False))
        lab("L_qk_sync")
        A(f"s_add_u32 {sr(sQKi)}, {sr(sQKi)}, 12")
        A(f"s_max_u32 {sr(sQKi)}, {sr(sQKi)}, 26")
        A(f"v_add_u32 {vr(vT)}, {sr(sC)}, {vr(vKb)}")
        for s in range(1, 4):
            A(f"v_xor_b32 {vr(vT+s)}, {s*64}, {vr(vT)}")
        rf = [vQs + 12, vQs + 14, vQs + 16]
        sm = [vQs + 18, vQs + 20, vQs + 22]

        def st(t, n):
            return vS + (t * 3 + n) * 4

        def b_sub(t):
            return [[f"v_pk_add_f32 {vr(st(t,n)+r,2)}, {vr(st(t,n)+r,2)}, {vr(rf[n],2)} op_sel_hi:[1,0] neg_lo:[0,1] neg_hi:[0,1]"]
                    for n in range(3) for r in (0, 2)]

        def b_check(t):
            f = [[x] for x in self.maxn(vT + 5, [st(t, 0) + r for r in range(12)])]
            return f + [[f"v_cmp_lt_f32 vcc, {sr(sThr)}, {vr(vT+5)}", f"s_cbranch_vccnz L_rb{t}", f"L_nb{t}:"]]

        def b_exp(t):
            f = [[f"v_exp_f32 {vr(st(t,0)+r)}, {vr(st(t,0)+r)}"] for r in range(12)]
            for n in range(3):
                b = st(t, n)
                f.append([f"v_cvt_pk_bf16_f32 {vr(b)}, {vr(b)}, {vr(b+1)}"])
                f.append([f"v_cvt_pk_bf16_f32 {vr(b+1)}, {vr(b+2)}, {vr(b+3)}"])
            return f

        def p_write(t):
            return [f"ds_write_b64 {vr(vPW)}, {vr(st(t,n),2)} offset:{n*XN+t*BLK}" for n in range(3)]

        def p_early(t):
            l = self.new("pe")
            return [(99, [f"s_cmp_eq_u32 {sr(sHead)}, 3", f"s_cbranch_scc1 {l}"] + p_write(t) + [l + ":"])]

        def b_max0():
            f = []
            for n in range(3):
                f += [[x] for x in self.maxn(sm[0] + n, [st(0, n) + r for r in range(4)])]
            f.append([x.strip() for x in self.cap(self.reduce4, sm[0], "v_max_f32")])
            f.append([f"ds_write_b32 {vr(vSTw)}, {vr(sm[0])}"])
            return f

        def b_ref0():
            f = [[f"v_max_f32 {vr(rf[n])}, {vr(rf[n])}, {vr(rf[n]+1)}" for n in range(3)]]
            for sw in ("v_permlane32_swap_b32", "v_permlane16_swap_b32"):
                f.append([f"v_mov_b32 {vr(rf[n]+1)}, {vr(rf[n])}" for n in range(3)] + ["s_nop 1"] +
                         [f"{sw} {vr(rf[n])}, {vr(rf[n]+1)}" for n in range(3)] + ["s_nop 1"] +
                         [f"v_max_f32 {vr(rf[n])}, {vr(rf[n])}, {vr(rf[n]+1)}" for n in range(3)])
            return f

        for T in range(4):
            p = T % 2
            if opt.get("qst"):
                self.stamp(18)
            self.head(4 if T else 8)
            if T == 1:
                for n in range(3):
                    A(f"ds_read_b64 {vr(rf[n],2)}, {vr(vT+5)} offset:{n*512}")
            if T == 0:
                self.load_bfrags_dyn(vKf, QF)
            for s in range(4):
                A(f"ds_read_b128 {vr(vKf+4*s,4)}, {vr(vT+s)}")
            nxt = self.prep(1 - p)
            if T < 3:
                nxt.append([f"v_add_u32 {vr(vT+4)}, {sr(sC)}, {vr(vKb)}"])
                nxt += [[f"v_xor_b32 {vr(vT+s)}, {s*64}, {vr(vT+4)}"] for s in range(4)]
            self.weave([], nxt)
            if opt.get("qst"):
                self.stamp(16)
            if T == 0:
                A(f"v_mov_b32 {vr(vT+5)}, {FLAG}")
                A(f"v_mov_b32 {vr(vT+6)}, 0")
            prim = []
            for s in range(4):
                prim.append(("w", [f"  s_waitcnt lgkmcnt({3-s})"]))
                for n in range(3):
                    prim.append(self.M(st(T, n), vKf + 4 * s, QF[n * 4 + s], 0 if s == 0 else None))
            fill = []
            if T == 1:
                fill = b_ref0() + b_sub(0) + b_exp(0) + p_early(0)
            if T >= 2:
                fill = b_sub(T - 1) + b_check(T - 1) + b_exp(T - 1) + p_early(T - 1)
            self.weave(prim, fill, per=3)
            if T == 0:
                A(f"ds_write_b32 {vr(vT+5)}, {vr(vT+6)}")
                self.lane(vT + 5)
                A(f"v_lshrrev_b32 {vr(vT+5)}, 4, {vr(vT+5)}")
                A(f"v_lshl_add_u32 {vr(vT+5)}, {vr(vT+5)}, 3, {vr(vSTr)}")
                A("s_nop 4")
                self.weave([], b_max0())
            if opt.get("qst"):
                self.stamp(17)
            if T < 3:
                self.split_dma(p, True if T < 2 else None)
        self.stamp(2)
        c("last score tile; a wave that had to raise its reference left a flag")
        A(f"v_mov_b32 {vr(vT+4)}, {FLAG}")
        A("s_nop 6")
        self.split_dma(1, None)
        self.weave([], b_sub(3) + b_check(3) + b_exp(3))
        self.bsm = (rf, sm, st, p_write)
        A(f"s_mov_b32 {sr(sHook)}, 0")
        A(f"s_mov_b32 {sr(sBlkEnd)}, 0")
        A(f"s_mov_b32 {sr(sFix)}, 0")
        A(f"s_cmp_eq_u32 {sr(sHead)}, 3")
        A("s_cbranch_scc1 L_first")
        self.emit(p_write(3))
        A(f"s_mov_b32 {sr(sLate)}, 0")
        self.head(4)
        self.stamp(3)
        A(f"s_bitcmp1_b32 {sr(sW)}, 2")
        A("s_cbranch_scc0 L_pv_body")
        A(f"ds_read_b32 {vr(vT+5)}, {vr(vT+4)}")
        A("s_waitcnt lgkmcnt(0)")
        A(f"v_cmp_ne_u32 vcc, 0, {vr(vT+5)}")
        A("s_cbranch_vccz L_ld_ok")
        A(f"s_call_b64 {sr(LINK_S,2)}, L_bfix")
        lab("L_ld_ok")
        for k in range(4):
            self.dma(k, 0, True, False)
        A(f"s_mov_b32 {sr(sT4)}, 0")
        A(f"s_call_b64 {sr(LINK_S,2)}, L_load2")
        A("s_branch L_pv_done")
        lab("L_first")
        c("B role, first head: remaining Q projections while x is still live")
        self.head(None)
        A(f"ds_read_b32 {vr(vT+5)}, {vr(vT+4)}")
        A("s_waitcnt lgkmcnt(0)")
        A(f"v_cmp_ne_u32 vcc, 0, {vr(vT+5)}")
        A("s_cbranch_vccz L_f_ok")
        A(f"s_call_b64 {sr(LINK_S,2)}, L_bfix")
        lab("L_f_ok")
        A(f"s_mov_b32 {sr(sHook)}, 0")
        self.is_loader("L_f_ld")
        A("s_waitcnt vmcnt(0)")
        A("s_branch L_f_go")
        lab("L_f_ld")
        for k in range(4):
            self.dma(k, 0, False, guard=False)
        A("s_waitcnt vmcnt(12)")
        lab("L_f_go")
        for k in range(2):
            A(f"s_mov_b32 {sr(sLate)}, {2*k}")
            A(f"s_call_b64 {sr(LINK_S,2)}, L_qproj")
            for r in range(0, 12, 2):
                A(f"v_mov_b64 {vr(vQs+12*k+r,2)}, {vr(vAcc+r,2)}")
        A("s_barrier")
        self.stamp(12)
        for t in range(4):
            self.emit(p_write(t))
        A(f"s_mov_b32 {sr(sFix)}, 1")
        A(f"s_mov_b32 {sr(sLate)}, 0")
        A(f"v_mov_b32 {vr(vT+4)}, {FLAG}")
        self.head(8)
        self.is_loader("L_ld_ok")
        c("P x V")
        vOn = vY - 16
        pre2 = [x.strip() for x in self.cap(q_write, vQs, 0)]
        ex2 = [[f"v_mov_b64 {vr(vQs+r,2)}, {vr(vQs+12+r,2)}"] for r in range(0, 12, 2)]
        chk = [f"  v_cmp_ne_u32 vcc, 0, {vr(vT+5)}", f"  s_cbranch_vccnz L_pv_fix", "L_pv_go:"]
        chk += [f"  v_mov_b32 {vr(vOn+k)}, 0x3f803f80" for k in range(4)] + ["  s_nop 1"]
        self.cold += ["L_pv_fix:", f"  s_cmp_eq_u32 {sr(sFix)}, 0", "  s_cbranch_scc0 L_pv_go",
                      f"  s_call_b64 {sr(LINK_S,2)}, L_bfix", "  s_branch L_pv_body"]
        self.narrow(pre={0: [f"ds_read_b32 {vr(vT+5)}, {vr(vT+4)}"], 2: pre2},
                    extra={2: ex2}, early=True, body="L_pv_body", check=chk, ones=vOn, vm1=0)
        mreg = [vOn + 4 + 4 * n for n in range(3)]
        A("s_nop 7")
        for n in range(3):
            A(f"v_rcp_f32 {vr(mreg[n])}, {vr(mreg[n])}")
        for k in range(6):
            a = vAcc + 4 * k
            A(self.pkmul(a, mreg[k % 3]))
            A(self.pkmul(a + 2, mreg[k % 3]))
            A(f"v_cvt_pk_bf16_f32 {vr(vAcc+2*k)}, {vr(a)}, {vr(a+1)}")
            A(f"v_cvt_pk_bf16_f32 {vr(vAcc+2*k+1)}, {vr(a+2)}, {vr(a+3)}")
        q_write(vAcc, 4)
        lab("L_pv_done")
        self.stamp(4)
        c("output projection")
        A(f"s_mov_b32 {sr(sHook)}, 0")
        A(f"s_sub_u32 {sr(sHead)}, {sr(sHead)}, 1")
        A(f"s_mov_b32 {sr(sLate)}, 2")
        A(f"s_cmp_eq_u32 {sr(sOrd)}, 2")
        A("s_cbranch_scc0 L_ob")
        A(f"s_mov_b32 {sr(sLate)}, 1")
        A(f"s_mov_b32 {sr(sHook)}, 2")
        self.srd(SRD_K, sAk, 16777216)
        self.srd(SRD_V, sAv, 16777216)
        self.srd(SRD_AUX, sAx, 786432)
        lab("L_ob")
        A(f"s_mov_b32 {sr(sBlk)}, 16")
        A(f"s_call_b64 {sr(LINK_S,2)}, L_wide")
        self.stamp(5)
        A(f"s_mov_b32 {sr(sBlk)}, 0")
        A(f"s_cmp_eq_u32 {sr(sHead)}, 0")
        A("s_cbranch_scc1 L_bdone")
        self.is_loader("L_head")
        self.wide_drain()
        A("s_branch L_head")
        lab("L_bdone")
        c("store the B-branch partial")
        A(f"s_lshl_b32 {sr(sT0)}, {sr(sB)}, 4")
        A(f"s_lshl_b32 {sr(sT1)}, {sr(sRole)}, 3")
        A(f"s_add_u32 {sr(sT0)}, {sr(sT0)}, {sr(sT1)}")
        A(f"s_add_u32 {sr(sT0)}, {sr(sT0)}, {sr(sG)}")
        A(f"s_mul_i32 {sr(sT0)}, {sr(sT0)}, {PART}")
        A(f"s_cmp_eq_u32 {sr(sOrd)}, 2")
        A("s_cbranch_scc0 L_last")
        self.is_loader("L_bpk2")
        A("s_barrier")
        self.pack_y(False, True)
        lab("L_bpk2")
        self.srd(SRD_WO, sAwo, 4194304)
        A(f"s_mov_b32 {sr(sZero)}, 1")
        self.stamp(6)
        A("s_branch L_apath")
        lab("L_last")
        self.stamp(16)
        self.is_loader("L_bpk")
        self.pack_y(False, True)
        self.stamp(6)
        if self.fuse:
            self.publish()
        A("s_branch L_fin")
        lab("L_bpk")
        if self.fuse:
            c("waves 4-6 sum one 1 KiB block each of this workgroup's slice of the output")
            A(f"s_cmp_eq_u32 {sr(sW)}, 7")
            A("s_cbranch_scc1 L_fin")
            self.stamp(8)
            self.reduce_setup()
            A(f"s_lshl_b32 {sr(rKb)}, {sr(sRole)}, 3")
            A(f"s_add_u32 {sr(rKb)}, {sr(rKb)}, {sr(sG)}")
            A(f"s_mul_i32 {sr(rKb)}, {sr(rKb)}, 3")
            A(f"s_add_u32 {sr(rKb)}, {sr(rKb)}, {sr(sW)}")
            A(f"s_sub_u32 {sr(rKb)}, {sr(rKb)}, 4")
            A(f"s_sub_u32 {sr(rMode)}, {sr(sW)}, 4")
            A(f"s_min_u32 {sr(rMode)}, {sr(rMode)}, 1")
            A(f"s_call_b64 {sr(LINK_S,2)}, L_reduce")
        lab("L_fin")
        if opt.get("dbg"):
            A("s_waitcnt vmcnt(0)")
            A("s_memrealtime s[76:77]")
            A("s_memtime s[68:69]")
            A("s_waitcnt lgkmcnt(0)")
            A("s_sub_u32 s68, s68, s78")
            A("v_mov_b32 v16, v23")
            A("v_mov_b32 v17, s76")
            A("v_mov_b32 v18, s68")
            A("s_getreg_b32 s69, hwreg(HW_REG_XCC_ID)")
            A("v_mov_b32 v19, s69")
            A("s_lshl_b32 s70, s2, 4")
            A("s_add_u32 s70, s70, 0x4000000")
            A("v_mov_b32 v21, s70")
            A(f"s_cmp_eq_u32 s3, {4 if self.fuse else 0}")
            A("s_cbranch_scc0 L_end")
            A("s_mov_b64 exec, 1")
            A("global_store_dwordx4 v21, v[16:19], s[54:55]")
        if opt.get("stamps"):
            A("s_waitcnt vmcnt(0)")
            self.stamp(11)
            self.srd(SRD_AUX, sWs, 268435456)
            A(f"s_lshl_b32 {sr(sT0)}, s2, 3")
            A(f"s_add_u32 {sr(sT0)}, {sr(sT0)}, {sr(sW)}")
            A(f"s_lshl_b32 {sr(sT0)}, {sr(sT0)}, 8")
            A(f"s_add_u32 {sr(sT0)}, {sr(sT0)}, {64*1024*1024}")
            self.lane(vT)
            A(f"v_lshlrev_b32 {vr(vT)}, 2, {vr(vT)}")
            A(f"buffer_store_dword {vr(23)}, {vr(vT)}, {sr(SRD_AUX,4)}, {sr(sT0)} offen")
        lab("L_end")
        A("s_endpgm")

        sc = vLq[0] + 1

        def sub_delta(sg):
            for n in range(3):
                for r in range(8):
                    b = sa(sg, n, 0) + r
                    A(f"v_sub_f32 {vr(b)}, {vr(b)}, {vr(vDl+n)}")

        def allmax(sg):
            for n in range(3):
                self.emit(self.maxn(vDl + n, [sa(sg, n, 0) + r for r in range(8)]))
                for sw in ("v_permlane32_swap_b32", "v_permlane16_swap_b32"):
                    A(f"v_mov_b32 {vr(sc)}, {vr(vDl+n)}")
                    A("s_nop 1")
                    A(f"{sw} {vr(vDl+n)}, {vr(sc)}")
                    A("s_nop 1")
                    A(f"v_max_f32 {vr(vDl+n)}, {vr(vDl+n)}, {vr(sc)}")

        def scale_state(with_p0):
            for n in range(3):
                A(f"v_max_f32 {vr(vDl+n)}, 0, {vr(vDl+n)}")
                A(f"v_exp_f32 {vr(sc)}, -{vr(vDl+n)}")
                A("s_nop 0")
                A(f"v_mul_f32 {vr(vLq[n])}, {vr(vLq[n])}, {vr(sc)}")
                for mt in range(8):
                    for r in range(4):
                        o = vO + (mt * 3 + n) * 4 + r
                        A(f"v_mul_f32 {vr(o)}, {vr(o)}, {vr(sc)}")
                if with_p0:
                    b = sa(0, n, 0)
                    for r in range(4):
                        A(f"v_lshlrev_b32 {vr(b+4)}, 16, {vr(b+r)}")
                        A(f"v_and_b32 {vr(b+5)}, 0xffff0000, {vr(b+r)}")
                        A(f"v_mul_f32 {vr(b+4)}, {vr(b+4)}, {vr(sc)}")
                        A(f"v_mul_f32 {vr(b+5)}, {vr(b+5)}, {vr(sc)}")
                        A(f"v_cvt_pk_bf16_f32 {vr(b+r)}, {vr(b+4)}, {vr(b+5)}")

        lab("L_r0first")
        allmax(0)
        sub_delta(0)
        A(f"s_mov_b32 {sr(sFix)}, 1")
        A("s_branch L_n0f")
        lab("L_r0")
        allmax(0)
        scale_state(False)
        sub_delta(0)
        A(f"s_mov_b32 {sr(sFix)}, 1")
        A("s_branch L_n0l")
        for u in "fl":
            lab(f"L_r0b{u}")
            A(f"s_call_b64 {sr(LINK_S,2)}, L_fix1")
            A(f"s_branch L_n0b{u}")
            lab(f"L_r1{u}")
            A(f"s_call_b64 {sr(LINK_S,2)}, L_scale1")
            A(f"s_branch L_n1{u}")
        lab("L_scale1")
        allmax(1)
        scale_state(True)
        lab("L_fix1")
        sub_delta(1)
        for n in range(3):
            for r in range(4):
                A(f"v_sub_f32 {vr(vNm[n]+r)}, {vr(vNm[n]+r)}, {vr(vDl+n)}")
        A(f"s_mov_b32 {sr(sFix)}, 0")
        A(f"s_setpc_b64 {sr(LINK_S,2)}")

        self.L += self.cold
        rf, sm, st, p_write = self.bsm

        def repack(regs, f, lo, hi):
            for r in regs:
                A(f"v_lshlrev_b32 {vr(lo)}, 16, {vr(r)}")
                A(f"v_and_b32 {vr(hi)}, 0xffff0000, {vr(r)}")
                A(f"v_mul_f32 {vr(lo)}, {vr(lo)}, {vr(f)}")
                A(f"v_mul_f32 {vr(hi)}, {vr(hi)}, {vr(f)}")
                A(f"v_cvt_pk_bf16_f32 {vr(r)}, {vr(lo)}, {vr(hi)}")

        for t in range(1, 4):
            lab(f"L_rb{t}")
            d, f = vT + 5, vT + 6
            for n in range(3):
                self.emit(self.maxn(d, [st(t, n) + r for r in range(4)]))
                for sw in ("v_permlane32_swap_b32", "v_permlane16_swap_b32"):
                    A(f"v_mov_b32 {vr(f)}, {vr(d)}")
                    A("s_nop 1")
                    A(f"{sw} {vr(d)}, {vr(f)}")
                    A("s_nop 1")
                    A(f"v_max_f32 {vr(d)}, {vr(d)}, {vr(f)}")
                A(f"v_max_f32 {vr(d)}, 0, {vr(d)}")
                A(f"v_exp_f32 {vr(f)}, -{vr(d)}")
                A(f"v_add_f32 {vr(rf[n])}, {vr(rf[n])}, {vr(d)}")
                for r in range(4):
                    A(f"v_sub_f32 {vr(st(t,n)+r)}, {vr(st(t,n)+r)}, {vr(d)}")
                repack([st(u, n) + k for u in range(t) for k in range(2)], f, st(0, n) + 2, st(0, n) + 3)
            A(f"s_lshl_b32 {sr(sT0)}, {sr(sW)}, 2")
            A(f"v_add_u32 {vr(d)}, {sr(sT0)}, {vr(vSTr)}")
            for n in range(3):
                A(f"ds_write_b32 {vr(d)}, {vr(rf[n])} offset:{n*512}")
            A(f"v_mov_b32 {vr(d)}, {FLAG}")
            A(f"v_mov_b32 {vr(f)}, 1")
            A(f"ds_write_b32 {vr(d)}, {vr(f)}")
            A(f"s_branch L_nb{t}")
        lab("L_bfix")
        A("s_waitcnt lgkmcnt(0)")
        for n in range(3):
            A(f"ds_read_b128 {vr(vFr,4)}, {vr(vSTr)} offset:{n*512}")
            A(f"ds_read_b128 {vr(vFr+4,4)}, {vr(vSTr)} offset:{n*512+16}")
            A("s_waitcnt lgkmcnt(0)")
            self.emit(self.maxn(rf[n] + 1, [rf[n]] + [vFr + r for r in range(8)]))
            A(f"v_sub_f32 {vr(rf[n])}, {vr(rf[n])}, {vr(rf[n]+1)}")
            A(f"v_exp_f32 {vr(rf[n])}, {vr(rf[n])}")
            A("s_nop 0")
            repack([st(u, n) + k for u in range(4) for k in range(2)], rf[n], st(0, n) + 2, st(0, n) + 3)
        A(f"s_mov_b32 {sr(sFix)}, 1")
        A(f"s_cmp_eq_u32 {sr(sHead)}, 3")
        A("s_cbranch_scc1 L_bfix_ret")
        A("s_barrier")
        for t in range(4):
            self.emit(p_write(t))
        self.head(None)
        lab("L_bfix_ret")
        A(f"s_setpc_b64 {sr(LINK_S,2)}")

        if self.fuse:
            self.reduce_sub()
        lab("L_qproj")
        A(f"s_mov_b32 {sr(sBlkEnd)}, 0")
        self.is_loader("L_load")
        self.narrow()
        A(f"v_mov_b32 {vr(vT)}, {sr(sScale)}")
        A("s_nop 6")
        for k in range(6):
            a = vAcc + 4 * k
            A(self.pkmul(a, vT))
            A(self.pkmul(a + 2, vT))
            A(f"v_cvt_pk_bf16_f32 {vr(vAcc+2*k)}, {vr(a)}, {vr(a+1)}")
            A(f"v_cvt_pk_bf16_f32 {vr(vAcc+2*k+1)}, {vr(a+2)}, {vr(a+3)}")
        A(f"s_setpc_b64 {sr(LINK_S,2)}")

        def af(j, p):
            return vFr + 4 * (j + 2 * p if j >= 6 else j)

        def wb(n, p):
            return vAcc + (p * 3 + n) * 4

        def wide_rd(j, p):
            a = vT + 1 + (j % 2)
            A(f"v_xor_b32 {vr(a)}, {j*32}, {vr(vT+3+3*p)}")
            self.tr_pair(af(j, p), a, 0)

        def wide_addr(t):
            return [[f"s_add_u32 {sr(sT0)}, {sr(sC)}, {sr(sT1)}"],
                    [f"v_add_u32 {vr(vT+3+3*(t%2))}, {sr(sT0)}, {vr(vTR0)}"],
                    [f"s_and_b32 {sr(sT3)}, {sr(sBlk)}, 3"], [f"s_lshl_b32 {sr(sT3)}, {sr(sT3)}, 6"],
                    [f"s_lshr_b32 {sr(sT5)}, {sr(sBlk)}, 2"], [f"s_mul_i32 {sr(sT5)}, {sr(sT5)}, {BLK}"],
                    [f"v_xor_b32 {vr(vT+5)}, {sr(sT3)}, {vr(vXB)}"], [f"v_add_u32 {vr(vT+5)}, {sr(sT5)}, {vr(vT+5)}"]]

        def wide_step(t, pending, reads=True, zero=False):
            p = t % 2
            if reads:
                self.head(None)
            else:
                A("s_waitcnt lgkmcnt(0)")
            prim = []
            for j in range(8):
                if pending and not opt.get("nomfma"):
                    for n in range(3):
                        prim.append(self.M(vY + (j * 3 + n) * 4, af(j, 1 - p), wb(n, 1 - p), 0 if zero else None))
                if reads and not opt.get("nords"):
                    if j == 0:
                        prim.append(("r", [f"  ds_read_b128 {vr(wb(n,p),4)}, {vr(vT+5)} offset:{n*XN}" for n in range(3)]))
                    if j < 6:
                        prim.append(("r", self.cap(wide_rd, j, p)))
                    if j < 2:
                        prim.append(("r", self.cap(wide_rd, 6 + j, p)))
            fill = []
            if reads:
                fill = self.rot()
                if t == 3:
                    fill.append([f"s_add_u32 {sr(sT4)}, {sr(sT4)}, {BLK}"])
                fill += [[f"s_add_u32 {sr(sBlk)}, {sr(sBlk)}, 1"], [f"s_and_b32 {sr(sBlk)}, {sr(sBlk)}, {sr(sT2)}"]]
                fill += wide_addr((t + 1) % 4)
            self.weave(prim, fill, per=1, start=5)

        lab("L_wide")
        self.is_loader("L_load")
        A(f"s_lshl_b32 {sr(sT1)}, {sr(sW)}, 13")
        A(f"s_mov_b32 {sr(sT4)}, 0")
        A(f"s_cmp_eq_u32 {sr(sBlkEnd)}, 0")
        A(f"s_cselect_b32 {sr(sT2)}, 31, 15")
        self.weave([], wide_addr(0))
        wide_step(0, False)
        A(f"s_cmp_eq_u32 {sr(sZero)}, 0")
        A("s_cbranch_scc1 L_wide_loop")
        A(f"s_mov_b32 {sr(sZero)}, 0")
        wide_step(1, True, zero=True)
        A("s_branch L_wide_s2")
        lab("L_wide_loop")
        wide_step(1, True)
        lab("L_wide_s2")
        wide_step(2, True)
        wide_step(3, True)
        A(f"s_cmp_gt_u32 {sr(sT4)}, {sr(sBlkEnd)}")
        A("s_cbranch_scc1 L_wide_drain")
        wide_step(0, True)
        A("s_branch L_wide_loop")
        lab("L_wide_drain")
        A("s_waitcnt lgkmcnt(0)")
        A(f"s_setpc_b64 {sr(LINK_S,2)}")

        def ld_step(p, vm, prep=True, xblk=None):
            self.head(vm)
            l1, l2 = self.new("kv"), self.new("dd")
            variants = [self.wf] if self.kvf == self.wf else [self.wf, self.kvf]
            if len(variants) > 1:
                A(f"s_bitcmp1_b32 6, {sr(sTy[p])}")
                A(f"s_cbranch_scc1 {l1}")
            for vi, fl in enumerate(variants):
                if vi:
                    A(f"s_branch {l2}")
                    lab(l1)
                prim = []
                for k in range(8):
                    ins = [f"  s_add_u32 m0, {sr(sI[p])}, {k*4096}"]
                    if k % 2:
                        ins.append(f"  s_add_u32 {sr(sOff2)}, {sr(sOff[p])}, {sr(sHalf[p])}")
                    elif k:
                        ins.append(f"  s_add_u32 {sr(sOff[p])}, {sr(sOff[p])}, {sr(sStr[p])}")
                    else:
                        ins.append("  s_nop 0")
                    ins.append(f"  buffer_load_dwordx4 {vr(vCur[p])}, {sr(SRD_CUR[p],4)}, {sr(sOff2 if k % 2 else sOff[p])} offen{fl} lds")
                    if vi and k == 6:
                        ins = self.ev() + ins
                    prim.append(("m", ins))
                self.weave(prim, self.prep(1 - p) if prep else [], per=2)
            lab(l2)
            if xblk is not None:
                l3 = self.new("hk")
                A(f"s_cmp_eq_u32 {sr(sHook)}, 1")
                A(f"s_cbranch_scc0 {l3}")
                self.x_block(vY, 0)
                A(f"s_add_u32 {sr(sT1)}, {sr(sT1)}, 256")
                A(f"s_add_u32 {sr(sT2)}, {sr(sT2)}, {BLK}")
                lab(l3)

        lab("L_load")
        A(f"s_mov_b32 {sr(sT4)}, 0")
        A(f"s_cmp_eq_u32 {sr(sIdx)}, 3")
        A("s_cbranch_scc0 L_load1")
        self.head(3)
        self.first_tile(1)
        self.x_rot(vY, 2)
        self.first_tile(2)
        if not opt.get("x3late", 1):
            self.x_rot(vY, 3)
        else:
            A(f"s_add_u32 {sr(sP0)}, {sr(sOff2)}, 3")
            A(f"s_and_b32 {sr(sP0)}, {sr(sP0)}, 3")
            A(f"s_cmp_eq_u32 {sr(sOrd)}, 1")
            A(f"s_cselect_b32 {sr(sP1)}, {sr(sP0)}, 3")
            A(f"s_mul_i32 {sr(sP1)}, {sr(sP1)}, {BLK}")
            A(f"s_add_u32 {sr(sT2)}, {sr(sP1)}, {sr(sHalf[1])}")
            A(f"s_lshl_b32 {sr(sP0)}, {sr(sP0)}, 8")
            A(f"s_add_u32 {sr(sT1)}, {sr(sP0)}, {sr(sHalf[0])}")
        A("s_branch L_load2")
        lab("L_load1")
        self.head(16)
        lab("L_load2")
        self.weave([], self.prep(1))
        lab("L_ldloop")
        ld_step(1, 8)
        if opt.get("x3late", 1):
            A(f"s_cmp_eq_u32 {sr(sIdx)}, 5")
            A("s_cbranch_scc0 L_ldh1")
            self.x_block(vY, 0)
            lab("L_ldh1")
        A(f"s_cmp_eq_u32 {sr(sHook)}, 2")
        A("s_cbranch_scc0 L_ldh2")
        self.x_setup(vY)
        self.x_rot(vY, 0, True)
        self.x_rot(vY, 1, True)
        lab("L_ldh2")
        ld_step(0, 8)
        A(f"s_cmp_eq_u32 {sr(sLate)}, 3")
        A("s_cbranch_scc0 L_ld3")
        A(f"s_cmp_eq_u32 {sr(sT4)}, {sr(sBlkEnd)}")
        A("s_cbranch_scc0 L_ld3")
        self.head(8)
        self.weave([], self.prep(0))
        A("s_barrier")
        for k in range(4):
            self.dma(k, 1, True, guard=False)
        A(f"s_setpc_b64 {sr(LINK_S,2)}")
        lab("L_ld3")
        ld_step(1, 8)
        A(f"s_add_u32 {sr(sT4)}, {sr(sT4)}, {BLK}")
        A(f"s_cmp_gt_u32 {sr(sT4)}, {sr(sBlkEnd)}")
        A("s_cbranch_scc1 L_lddrain")
        ld_step(0, 8, xblk=0)
        A("s_branch L_ldloop")
        lab("L_lddrain")
        A(f"s_cmp_eq_u32 {sr(sLate)}, 2")
        A("s_cbranch_scc1 L_ldret")
        ld_step(0, None, prep=False, xblk=3)
        A(f"s_cmp_eq_u32 {sr(sHook)}, 2")
        A("s_cbranch_scc0 L_ldret")
        self.x_rot(vY, 2, True)
        self.x_rot(vY, 3, True)
        lab("L_ldret")
        A(f"s_setpc_b64 {sr(LINK_S,2)}")

    def reduce_kernel(self):
        A, lab = self.A, self.lab
        K2 = "reduce_partials_kernel"
        self.L += [f".globl {K2}", ".p2align 8", f".type {K2},@function"]
        lab(K2)
        A("s_cmp_ge_u32 s2, 384")
        A("s_cbranch_scc1 L_r_end")
        A("s_load_dwordx2 s[4:5], s[0:1], 80")
        A("s_load_dwordx2 s[6:7], s[0:1], 96")
        if self.opt.get("dbg") == 2:
            A("s_cmp_eq_u32 s2, 0")
            A("s_cbranch_scc0 L_r_nod")
            A("s_load_dwordx2 s[26:27], s[0:1], 88")
            A("s_memrealtime s[28:29]")
            A("s_waitcnt lgkmcnt(0)")
            A("v_lshlrev_b32 v1, 4, v0")
            A("v_add_u32 v1, 0x4000000, v1")
            A("global_load_dwordx4 v[8:11], v1, s[6:7]")
            A("s_waitcnt vmcnt(0)")
            A("v_not_b32 v12, v8")
            A("v_sub_u32 v13, v9, v8")
            A("v_mov_b32 v14, 0")
            A("v_lshrrev_b32 v15, 7, v0")
            A("v_lshlrev_b32 v15, 3, v15")
            A("v_mov_b32 v7, s28")
            A("global_atomic_umax v14, v12, s[26:27]")
            A("global_atomic_umax v14, v9, s[26:27] offset:4")
            A("global_atomic_umax v15, v13, s[26:27] offset:8")
            A("global_atomic_umax v15, v10, s[26:27] offset:12")
            A("global_atomic_umax v14, v8, s[26:27] offset:24")
            A("global_atomic_umax v14, v7, s[26:27] offset:28")
            lab("L_r_nod")
        A("s_mul_i32 s3, s2, 43691")
        A("s_lshr_b32 s3, s3, 19")
        A("s_mul_i32 s16, s3, 12")
        A("s_sub_u32 s16, s2, s16")
        A("s_and_b32 s17, s3, 15")
        A("s_lshr_b32 s18, s3, 4")
        A("s_lshl_b32 s19, s16, 12")
        A("v_lshlrev_b32 v2, 4, v0")
        A("v_add_u32 v2, s19, v2")
        A("s_mul_i32 s23, s16, 86")
        A("s_lshr_b32 s23, s23, 8")
        A("s_mul_i32 s24, s23, 3")
        A("s_sub_u32 s24, s16, s24")
        A("s_lshl_b32 s24, s24, 15")
        A("s_lshl_b32 s23, s23, 8")
        A("s_add_u32 s24, s24, s23")
        A("v_and_b32 v6, 15, v0")
        A("v_lshlrev_b32 v6, 11, v6")
        A("v_lshrrev_b32 v7, 6, v0")
        A("v_lshl_add_u32 v6, v7, 6, v6")
        A("v_bfe_u32 v7, v0, 4, 1")
        A("v_lshl_add_u32 v6, v7, 5, v6")
        A("v_bfe_u32 v7, v0, 5, 1")
        A("v_lshl_add_u32 v6, v7, 4, v6")
        A("s_waitcnt lgkmcnt(0)")
        A("s_mov_b32 s8, s4"); A("s_mov_b32 s9, s5"); A("s_mov_b32 s10, 1572864"); A("s_mov_b32 s11, 0x20000")
        A("s_mov_b32 s12, s6"); A("s_mov_b32 s13, s7"); A("s_mov_b32 s14, 268435456"); A("s_mov_b32 s15, 0x20000")
        A("s_mul_i32 s20, s17, 98304")
        A("s_add_u32 s20, s20, s24")
        A("s_mov_b32 s22, 0xffff0000")
        A("s_cmp_eq_u32 s18, 1")
        A("s_cbranch_scc1 L_r_A")

        def body(np_):
            for p in range(np_):
                A(f"buffer_load_dwordx4 v[{16+4*p}:{19+4*p}], v2, s[12:15], s21 offen" + self.opt.get("rdflag", ""))
                if p + 1 < np_:
                    A(f"s_add_u32 s21, s21, {PART}")
            for p in range(np_):
                A(f"s_waitcnt vmcnt({np_-1-p})")
                for k in range(4):
                    r = 16 + 4 * p + k
                    if p == 0:
                        A(f"v_lshlrev_b32 v{8+2*k}, 16, v{r}")
                        A(f"v_and_b32 v{9+2*k}, s22, v{r}")
                    else:
                        A(f"v_lshlrev_b32 v4, 16, v{r}")
                        A(f"v_and_b32 v5, s22, v{r}")
                        A(f"v_pk_add_f32 v[{8+2*k}:{9+2*k}], v[{8+2*k}:{9+2*k}], v[4:5]")

        A(f"s_mul_i32 s21, s17, {16*PART}")
        A("s_add_u32 s20, s20, 1024")
        body(16)
        A("s_branch L_r_st")
        lab("L_r_A")
        A(f"s_mul_i32 s21, s17, {8*PART}")
        A(f"s_add_u32 s21, s21, {PART_A_BASE}")
        body(8)
        lab("L_r_st")
        for k in range(4):
            A(f"v_cvt_pk_bf16_f32 v{16+k}, v{8+2*k}, v{9+2*k}")
        A("buffer_store_dwordx4 v[16:19], v6, s[8:11], s20 offen" + self.opt.get("outflag", ""))
        if self.opt.get("dbg"):
            A("s_waitcnt vmcnt(0)")
            A("s_memrealtime s[28:29]")
            A("s_waitcnt lgkmcnt(0)")
            A("v_mov_b32 v16, s28")
            A("s_lshl_b32 s30, s2, 2")
            A("s_add_u32 s30, s30, 0x4100000")
            A("v_mov_b32 v17, s30")
            A("v_cmp_eq_u32 vcc, 0, v0")
            A("s_and_saveexec_b64 s[26:27], vcc")
            A("s_cbranch_execz L_r_end")
            A("global_store_dword v17, v16, s[6:7]")
        lab("L_r_end")
        A("s_endpgm")

    def desc(self, name, nv, ns):
        self.L += [".p2align 6", f".amdhsa_kernel {name}", f"  .amdhsa_next_free_vgpr {nv}",
                   f"  .amdhsa_next_free_sgpr {ns}", f"  .amdhsa_accum_offset {nv}",
                   "  .amdhsa_group_segment_fixed_size 0", "  .amdhsa_kernarg_size 104",
                   "  .amdhsa_user_sgpr_count 2", "  .amdhsa_user_sgpr_kernarg_segment_ptr 1",
                   "  .amdhsa_system_sgpr_workgroup_id_x 1", ".end_amdhsa_kernel"]

    def place_pads(self):
        want = self.opt["pads"].split("+") if isinstance(self.opt["pads"], str) else None
        spots = []
        for i, l in enumerate(self.L):
            if l.endswith(":") and not l.startswith(" "):
                j = i - 1
                while self.L[j].strip().startswith(";"):
                    j -= 1
                prev = self.L[j].strip()
                if prev.startswith(("s_branch", "s_setpc", "s_endpgm")) and l[:-1] in PAD_TARGETS:
                    spots.append(i)
        chains = [spots[w::4] for w in range(4)]
        name = {}
        for w, ch in enumerate(chains):
            for k, i in enumerate(ch):
                name[i] = (f"L_pad{w}_{k}", f"L_pad{w}_{k+1}" if k + 1 < len(ch) else "L_padend")
        out = []
        for i, l in enumerate(self.L):
            if i in name:
                out += [name[i][0] + ":"] + ["  s_nop 0"] * self.opt.get("padnop", 0) + [f"  s_branch {name[i][1]}"]
            out.append(l)
        self.L = out

    def table_data(self):
        self.L += [".p2align 2", ".type L_table,@object"]
        self.lab("L_table")
        for k in range(0, 192, 8):
            self.A(".long " + ", ".join(hex(x) for x in self.table[k:k+8]))

    def build(self):
        K1 = NAME + "_kernel"
        if self.fuse:
            head = HEADER + f"; @launch grid=(256,1,1) block=(512,1,1) lds={LDS_BYTES}\n"
        else:
            head = HEADER + f"; @launch kernel={K1} grid=(256,1,1) block=(512,1,1) lds={LDS_BYTES}\n"
            head += "; @launch kernel=reduce_partials_kernel grid=(384,1,1) block=(256,1,1) lds=0\n"
        self.L += ['.amdgcn_target "amdgcn-amd-amdhsa--gfx950"', ".text"]
        self.main_kernel()
        if not self.fuse:
            self.reduce_kernel()
        if self.opt.get("pads"):
            self.place_pads()
        self.table_data()
        self.L += ['.section .rodata,"a"']
        self.desc(K1, 256, 102)
        if not self.fuse:
            self.desc("reduce_partials_kernel", 80, 32)
        return head + "\n".join(self.L) + "\n"


def gen(**opt):
    return G(opt).build()


if __name__ == "__main__":
    out = sys.argv[1] if len(sys.argv) > 1 else f"cdna_kernels/{NAME}.s"
    opt = {}
    for a in sys.argv[2:]:
        k, v = a.split("=", 1)
        opt[k] = int(v) if v.lstrip("-").isdigit() else v
    open(out, "w").write(gen(**opt))
    print("wrote", out)
```

```python
import sys, math, struct

NAME = "concat_heads__gqa_block_cached__mha_block_cached__near_ridge"

HEADER = """; Kernarg layout for this problem (104 bytes, ptrs only, base s[0:1]):
"""

TILE = 32768
NSLOT = 3
XB = NSLOT * TILE
XROW = 256
XN = 16 * XROW
BLK = 48 * XROW
XK = XB + BLK
ST = XB + 5 * BLK
FLAG = ST + 3072
RELAY = FLAG + 8
STORED = FLAG + 12
ENTRY = FLAG + 256
WS_FLAGS = 32 * 1024 * 1024
FULL = 0xffffff
POLL_LIMIT = 2000
LDS_BYTES = 163840
PART = 49152
PART_A_BASE = 16 * 16 * PART
NULL_OFF = 0x40000000
IDX_AFTER_ATT = (27, 43)

T_WQ, T_K, T_V, T_WO, T_WQW = 0, 1, 2, 3, 4
ROWSH = [13, 8, 8, 10, 13]
SLABSH = [18, 13, 13, 8, 8]

sW, sC, sIdx, sE = 3, 4, 6, 7
SRD_WQ, SRD_K, SRD_V, SRD_WO, SRD_WQW, SRD_AUX = 8, 12, 16, 20, 24, 28
sAx, sAk, sAv, sAwq, sAwo = 32, 34, 36, 38, 40
sP0, sP1 = 42, 43
sBx, sBk, sBv, sBwq, sBwo = 44, 46, 48, 50, 52
sWs = 54
sB, sG, sRole, sHead, _unused, sScale, sW1024, sBlk, sThr, sIter = 56, 57, 58, 59, 60, 61, 62, 63, 64, 65
sT0, sT1, sT2, sT3, sT4, sT5 = 66, 67, 68, 69, 70, 71
sBlkEnd = 75
sStamp = 76
sFix = 79
sQKi = 99
sOrd = 60
sThrot = 100
sHook = 101
sK0x, sPendOff = 98, 70
sLate = 65
sZero = 91
SRD_CUR = [80, 84]
sOff, sTy, sStr, sI, sHalf = [72, 94], [73, 95], [74, 96], [5, 97], [88, 89]
sOff2 = 90
LINK_S = 92

rOut, rWs, rDbg, rKb, rMode, rF, rDone, rNew, rCnt, rOffB, rOffA, rOffO, rAb, rK = 8, 12, 16, 18, 19, 20, 21, 22, 23, 24, 25, 26, 27, 28

vTab, vRow, vChunk, vTRw, vTR0, vKb = 1, 2, 3, 5, 6, 7
vCur = [4, 0]
vXB = 8
vQW, vPW, vSTw, vSTr = 12, 13, 14, 15
vT = 16
vAcc = 24
vQs = 48
vFr = 72
vS = 112
vY = 160
QF = [24, 28, 32, 36, 40, 44, 72, 76, 80, 84, 88, 92]
vKf = 96
vKa, vTRa = 5, 7
vNm = [12, 56, 60]
vDl = 20
vOne = 8
vLq = [44, 48, 52]
NFA = 5
vO = 160
vAfA = 24
QA = [64 + 4 * k for k in range(12)]
sQ = [98, 99, 100, 101]


def vr(a, n=1):
    return f"v{a}" if n == 1 else f"v[{a}:{a+n-1}]"


def sr(a, n=1):
    return f"s{a}" if n == 1 else f"s[{a}:{a+n-1}]"


def f32(x):
    return hex(struct.unpack('<I', struct.pack('<f', x))[0])


PAD_TARGETS = {"L_apath", "L_qa_ld", "L_attlast", "L_bpath", "L_first", "L_pv_ld", "L_last", "L_bpk", "L_r0first", "L_r0bf",
               "L_scale1", "L_reduce", "L_qproj", "L_wide", "L_load", "L_load1", "L_ld3", "L_q0ld", "L_pfc", "L_wide_loop",
               "L_wide_drain", "L_lddrain", "L_attdone", "L_bdone", "L_f_ld", "L_mw0", "L_xs", "L_rd_lds"}


class G:
    def __init__(self, opt):
        self.L = []
        self.opt = opt
        self.uid = 0
        self.cold = []
        self.touches = []
        self.fuse = opt.get("fuse", 1)
        if self.fuse:
            opt.setdefault("stflag", " sc1")
        self.kvf = opt.get("kvflag", " nt")
        self.wf = opt.get("wflag", "")

    def A(self, s):
        self.L.append("  " + s)

    def lab(self, s):
        self.L.append(s + ":")

    def c(self, s):
        self.L.append("  ; " + s)

    def new(self, p):
        self.uid += 1
        return f"L_{p}{self.uid}"

    def mfma(self, d, a, b, c=None):
        cs = "0" if c == 0 else vr(d if c is None else c, 4)
        self.A(f"v_mfma_f32_16x16x32_bf16 {vr(d,4)}, {vr(a,4)}, {vr(b,4)}, {cs}")

    def M(self, d, a, b, c=None):
        return ("m", self.cap(self.mfma, d, a, b, c))

    def lane(self, v):
        self.A(f"v_mbcnt_lo_u32_b32 {vr(v)}, -1, 0")
        self.A(f"v_mbcnt_hi_u32_b32 {vr(v)}, -1, {vr(v)}")

    def rot(self):
        return [[f"s_add_u32 {sr(sC)}, {sr(sC)}, {TILE}"],
                [f"s_cmp_eq_u32 {sr(sC)}, {NSLOT*TILE}", f"s_cselect_b32 {sr(sC)}, 0, {sr(sC)}"]]

    def prep(self, p, slots=True):
        k1 = sum(v << (5 * i) for i, v in enumerate(ROWSH))
        k2 = sum(v << (5 * i) for i, v in enumerate(SLABSH))
        pre = [[f"s_add_u32 {sr(sI[p])}, {sr(sC)}, {sr(sW1024)}"]] + self.rot() if slots else []
        return pre + [
            [f"s_and_b32 {sr(sOff[p])}, {sr(sE)}, 0xffffff00"],
            [f"s_and_b32 {sr(sTy[p])}, {sr(sE)}, 7"],
            [f"s_add_u32 {sr(sIdx)}, {sr(sIdx)}, 1"],
            [f"s_lshl_b32 m0, {sr(sTy[p])}, 2", f"s_mul_i32 {sr(sP0)}, {sr(sTy[p])}, 5",
             f"s_movrels_b64 {sr(SRD_CUR[p],2)}, {sr(SRD_WQ,2)}", f"s_movrels_b32 {sr(SRD_CUR[p]+2)}, {sr(SRD_WQ+2)}"],
            [f"v_readlane_b32 {sr(sE)}, {vr(vTab)}, {sr(sIdx)}"],
            [f"s_lshr_b32 {sr(sP1)}, {hex(k1)}, {sr(sP0)}"],
            [f"s_lshr_b32 {sr(sP0)}, {hex(k2)}, {sr(sP0)}"],
            [f"v_lshl_add_u32 {vr(vCur[p])}, {vr(vRow)}, {sr(sP1)}, {vr(vChunk)}"],
            [f"s_lshl_b32 {sr(sStr[p])}, 1, {sr(sP0)}"],
            [f"s_lshl_b32 {sr(sHalf[p])}, 16, {sr(sP1)}"],
        ]

    def weave(self, prim, fill, per=2, start=0):
        fill = list(fill)
        for idx, (kind, ins) in enumerate(prim):
            self.L += ins
            if kind == "m" and idx >= start:
                k = 0
                while fill and k < per:
                    f = fill[0]
                    if isinstance(f, tuple):
                        if f[0] > idx:
                            break
                        f = f[1]
                    self.emit(f)
                    fill.pop(0)
                    k += 1
        for f in fill:
            self.emit(f[1] if isinstance(f, tuple) else f)

    def emit(self, f):
        for x in f:
            if x.endswith(":"):
                self.L.append(x)
            else:
                self.A(x)

    def cap(self, fn, *a, **k):
        keep, self.L = self.L, []
        fn(*a, **k)
        out, self.L = self.L, keep
        return out

    def head(self, vm):
        self.A("s_waitcnt " + (f"vmcnt({vm}) " if vm is not None else "") + "lgkmcnt(0)")
        if self.opt.get("allsteps") == 2:
            self.stamp(15)
        self.A("s_barrier")
        if self.opt.get("allsteps") == 1:
            self.stamp(14)

    def early_head(self, vm, reads, xonly=None):
        if not self.opt.get("early", 1):
            self.head(vm)
            if xonly:
                l = self.new("x")
                self.is_loader(l)
                xonly()
                self.lab(l)
            reads()
            return
        ly, ld = self.new("ey"), self.new("ed")
        self.is_loader(ly)
        self.head(vm)
        if xonly:
            xonly()
        reads()
        self.A(f"s_branch {ld}")
        self.lab(ly)
        self.A("s_waitcnt lgkmcnt(0)")
        reads()
        self.A(f"s_waitcnt vmcnt({vm})")
        self.A("s_barrier")
        self.lab(ld)

    def dma(self, k, p, kv, guard=True, who=sW):
        A = self.A
        skip = self.new("sk")
        if guard:
            A(f"s_bitcmp1_b32 {sr(who)}, 2")
            A(f"s_cbranch_scc0 {skip}")
        if k:
            A(f"s_add_u32 {sr(sOff[p])}, {sr(sOff[p])}, {sr(sStr[p])}")
        A(f"s_add_u32 m0, {sr(sI[p])}, {k*8192}")
        A(f"s_add_u32 {sr(sOff2)}, {sr(sOff[p])}, {sr(sHalf[p])}")

        def pair(fl):
            if k == 3 and fl == self.kvf and self.opt.get("evst"):
                self.L += self.ev()
                A(f"s_add_u32 m0, {sr(sI[p])}, {k*8192}")
                A("s_nop 0")
            A(f"buffer_load_dwordx4 {vr(vCur[p])}, {sr(SRD_CUR[p],4)}, {sr(sOff[p])} offen{fl} lds")
            A("s_add_u32 m0, m0, 4096")
            A("s_nop 0")
            A(f"buffer_load_dwordx4 {vr(vCur[p])}, {sr(SRD_CUR[p],4)}, {sr(sOff2)} offen{fl} lds")

        if self.kvf == self.wf:
            kv = False
        if kv is not None:
            pair(self.kvf if kv else self.wf)
        else:
            l1 = self.new("kv")
            A(f"s_bitcmp1_b32 6, {sr(sTy[p])}")
            A(f"s_cbranch_scc1 {l1}")
            pair(self.wf)
            A(f"s_branch {skip}")
            self.lab(l1)
            pair(self.kvf)
        self.lab(skip)

    def tile_dma(self, p, kv, who):
        A = self.A
        skip, l1 = self.new("sk"), self.new("kv")
        A(f"s_bitcmp1_b32 {sr(who)}, 2")
        A(f"s_cbranch_scc0 {skip}")
        if kv is None and self.kvf != self.wf:
            A(f"s_bitcmp1_b32 6, {sr(sTy[p])}")
            A(f"s_cbranch_scc1 {l1}")
            for k in range(4):
                self.dma(k, p, False, guard=False)
            A(f"s_branch {skip}")
            self.lab(l1)
        for k in range(4):
            self.dma(k, p, True if kv is None else kv, guard=False)
        self.lab(skip)

    def split_dma(self, p, kv, skip_reg=None):
        A = self.A
        skip, l1 = self.new("sk"), self.new("kv")
        if skip_reg is not None:
            A(f"s_cmp_eq_u32 {sr(skip_reg)}, 0")
            A(f"s_cbranch_scc0 {skip}")
        A(f"s_bitcmp1_b32 {sr(sW)}, 2")
        A(f"s_cselect_b32 {sr(sOff2)}, {sr(sHalf[p])}, 0")
        A(f"s_cselect_b32 {sr(sP0)}, 4096, 0")
        A(f"s_add_u32 {sr(sOff2)}, {sr(sOff2)}, {sr(sOff[p])}")
        A(f"s_add_u32 {sr(sP0)}, {sr(sP0)}, {sr(sI[p])}")

        def four(fl):
            for k in range(4):
                A(f"s_add_u32 m0, {sr(sP0)}, {k*8192}")
                A(f"s_add_u32 {sr(sOff2)}, {sr(sOff2)}, {sr(sStr[p])}" if k else "s_nop 0")
                A(f"buffer_load_dwordx4 {vr(vCur[p])}, {sr(SRD_CUR[p],4)}, {sr(sOff2)} offen{fl} lds")
                if k == 3 and fl == self.kvf:
                    self.L += self.ev()

        if kv is None and self.kvf != self.wf:
            A(f"s_bitcmp1_b32 6, {sr(sTy[p])}")
            A(f"s_cbranch_scc1 {l1}")
            four(self.wf)
            A(f"s_branch {skip}")
            self.lab(l1)
        four(self.kvf)
        self.lab(skip)

    def D1(self, k, p, guard=False):
        l1, l2 = self.new("w"), self.new("d")
        ld = f"  buffer_load_dwordx4 {vr(vCur[p])}, {sr(SRD_CUR[p],4)}, {sr(sOff[p])} offen"
        ins = [f"  s_bitcmp1_b32 {sr(sW)}, 2", f"  s_cbranch_scc0 {l2}"] if guard else []
        ins.append(f"  s_add_u32 m0, {sr(sI[p])}, {k*8192}")
        adv = f"  s_add_u32 {sr(sOff[p])}, {sr(sOff[p])}, {sr(sStr[p])}"
        ins += [f"  s_bitcmp1_b32 6, {sr(sTy[p])}", f"  s_cbranch_scc0 {l1}", adv, f"{ld}{self.kvf} lds"]
        if k == 3:
            ins += self.ev()
        self.cold += [l1 + ":"] + ([adv] if k else []) + [f"{ld}{self.wf} lds", f"  s_branch {l2}"]
        return ("d", ins + [l2 + ":"])

    def D(self, k, p, kv, who=sW):
        return ("d", self.cap(self.dma, k, p, kv, True, who))

    def tr_pair(self, dst, addr, off):
        self.A(f"ds_read_b64_tr_b16 {vr(dst,2)}, {vr(addr)} offset:{off}")
        self.A(f"ds_read_b64_tr_b16 {vr(dst+2,2)}, {vr(addr)} offset:{off+1024}")

    def narrow(self, pre=None, extra=None, early=None, body=None, check=None, ones=None, vm1=None):
        A = self.A

        def fr(st, k):
            return vFr + (st * 5 + k) * 4

        def reads(T, s):
            p = T % 2
            for m in range(2):
                self.tr_pair(fr(s % 2, m), vT + 2 * p + m, s * 8192)
            for n in range(3):
                A(f"ds_read_b128 {vr(fr(s%2,2+n),4)}, {vr(vXB+s)} offset:{n*XN+T*BLK}")

        def addr(p):
            return [[f"v_add_u32 {vr(vT+2*p)}, {sr(sC)}, {vr(vTRw)}"], [f"v_xor_b32 {vr(vT+2*p+1)}, 32, {vr(vT+2*p)}"]]

        def mf(s, zero=False):
            out = [self.M(vAcc + (m * 3 + n) * 4, fr(s % 2, m), fr(s % 2, 2 + n), 0 if zero else None)
                   for m in range(2) for n in range(3)]
            if ones:
                out += [self.M(ones + 4 + 4 * n, ones, fr(s % 2, 2 + n), 0 if zero else None) for n in range(3)]
            return out

        for T in range(4):
            if T or not body:
                self.head(vm1 if T == 1 else None)
            if T == 0:
                if body:
                    self.lab(body)
                self.weave([], addr(0))
            self.emit((pre or {}).get(T, []))
            prim = [("r", self.cap(reads, T, 0))]
            if T:
                prim += mf(3)
            prim.append(("r", self.cap(reads, T, 1)))
            for s in range(3):
                prim.append(("w", ["  s_waitcnt lgkmcnt(7)"] + (check if (check and T == 0 and s == 0) else [])))
                prim += mf(s, T == 0 and s == 0)
                if s < 2:
                    prim.append(("r", self.cap(reads, T, s + 2)))
            late = [(13, g) for g in (extra or {}).get(T, [])]
            self.weave(prim, self.rot() + (addr(1 - T % 2) if T < 3 else []) + late, per=1 + bool(late))
        A("s_waitcnt lgkmcnt(0)")
        if early is True:
            A("s_barrier")
        elif early is None:
            l = self.new("e")
            A(f"s_cmp_eq_u32 {sr(sLate)}, 0")
            A(f"s_cbranch_scc0 {l}")
            A("s_barrier")
            self.lab(l)
        self.weave(mf(3), [])

    def load_bfrags_dyn(self, tmp, quads):
        for s in range(4):
            self.A(f"v_add_u32 {vr(tmp+s)}, {sr(sBlk)}, {vr(vXB+s)}")
        for s in range(4):
            for n in range(3):
                self.A(f"ds_read_b128 {vr(quads[n*4+s],4)}, {vr(tmp+s)} offset:{n*XN}")

    def is_loader(self, label):
        self.A(f"s_bitcmp1_b32 {sr(sW)}, 2")
        self.A(f"s_cbranch_scc1 {label}")

    def x_setup(self, va, sT1=sT1, sT2=sT2):
        A = self.A
        self.lane(va + 2)
        A(f"v_lshrrev_b32 {vr(va+1)}, 4, {vr(va+2)}")
        A(f"v_and_b32 {vr(va+2)}, 15, {vr(va+2)}")
        A(f"v_xor_b32 {vr(va+2)}, {vr(va+2)}, {vr(va+1)}")
        A(f"v_lshlrev_b32 {vr(va+2)}, 4, {vr(va+2)}")
        A(f"v_lshl_or_b32 {vr(va+2)}, {vr(va+1)}, 10, {vr(va+2)}")
        A(f"s_mul_i32 {sr(sT0)}, {sr(sW1024)}, 3")
        A(f"s_add_u32 {sr(sT2)}, {sr(sT0)}, {XB}")
        A(f"s_mul_i32 {sr(sT1)}, {sr(sB)}, 49152")
        A(f"s_lshl_b32 {sr(sT3)}, {sr(sT0)}, 2")
        A(f"s_add_u32 {sr(sT1)}, {sr(sT1)}, {sr(sT3)}")
        A(f"s_lshr_b32 {sr(sT0)}, {sr(sT0)}, 4")
        for j in range(3):
            A(f"s_add_u32 {sr(sT3)}, {sr(sT0)}, {j*64}")
            A(f"s_and_b32 {sr(sT3)}, {sr(sT3)}, 0xc0")
            A(f"v_xor_b32 {vr(va+j)}, {sr(sT3)}, {vr(va+2)}")

    def x_rot(self, va, j, late=False):
        A = self.A
        sHalf = [sT1, sT2] if late else globals()["sHalf"]
        if late:
            A(f"s_lshr_b32 {sr(sOff2)}, {sr(sB)}, 2")
        A(f"s_add_u32 {sr(sP0)}, {sr(sOff2)}, {j}")
        A(f"s_and_b32 {sr(sP0)}, {sr(sP0)}, 3")
        if late:
            A(f"s_mul_i32 {sr(sP1)}, {sr(sP0)}, {BLK}")
        else:
            A(f"s_cmp_eq_u32 {sr(sOrd)}, 1")
            A(f"s_cselect_b32 {sr(sP1)}, {sr(sP0)}, {j}")
            A(f"s_mul_i32 {sr(sP1)}, {sr(sP1)}, {BLK}")
        A(f"s_add_u32 {sr(sP1)}, {sr(sP1)}, {sr(sHalf[1])}")
        A(f"s_lshl_b32 {sr(sP0)}, {sr(sP0)}, 8")
        A(f"s_add_u32 {sr(sP0)}, {sr(sP0)}, {sr(sHalf[0])}")
        for k in range(3):
            A(f"s_add_u32 m0, {sr(sP1)}, {k*1024}")
            if k:
                A(f"s_add_u32 {sr(sP0)}, {sr(sP0)}, 4096")
            else:
                A("s_nop 0")
            A(f"buffer_load_dwordx4 {vr(va+k)}, {sr(SRD_AUX,4)}, {sr(sP0)} offen lds")

    def first_tile(self, t):
        A = self.A
        A(f"s_add_u32 {sr(sP0)}, {sr(sB)}, {t}")
        A(f"s_and_b32 {sr(sP0)}, {sr(sP0)}, {sr(sI[0])}")
        A(f"s_mul_i32 {sr(sP0)}, {sr(sP0)}, {sr(sStr[1])}")
        A(f"s_add_u32 {sr(sP0)}, {sr(sP0)}, {sr(sTy[0])}")
        for k in range(8):
            A(f"s_add_u32 m0, {sr(sW1024)}, {t*TILE+k*4096}")
            if k % 2:
                A(f"s_add_u32 {sr(sP1)}, {sr(sP0)}, {16*8192}")
            elif k:
                A(f"s_add_u32 {sr(sP0)}, {sr(sP0)}, {sr(sStr[0])}")
            else:
                A("s_nop 0")
            A(f"buffer_load_dwordx4 {vr(vCur[0])}, {sr(SRD_CUR[0],4)}, {sr(sP1 if k % 2 else sP0)} offen{self.wf} lds")

    def x_block(self, va, blk):
        for j in range(3):
            self.A(f"s_add_u32 m0, {sr(sT2)}, {blk*BLK+j*1024}")
            self.A(f"s_add_u32 {sr(sT3)}, {sr(sT1)}, {blk*256+j*4096}")
            self.A(f"buffer_load_dwordx4 {vr(va+j)}, {sr(SRD_AUX,4)}, {sr(sT3)} offen lds")

    def weight_prefetch(self, items, half=False, dst=156, cur=SRD_CUR[1]):
        A = self.A
        off = sT1
        n = 4 if half else 2
        self.lane(vT + 1)
        A(f"v_lshrrev_b32 {vr(vT)}, 4, {vr(vT+1)}")
        A(f"v_lshlrev_b32 {vr(vT+1)}, 4, {vr(vT+1)}")
        A(f"v_and_b32 {vr(vT+2)}, 0xf0, {vr(vT+1)}")
        A(f"v_lshl_or_b32 {vr(vT)}, {vr(vT)}, 13, {vr(vT+2)}")
        A(f"s_lshl_b32 {sr(sT0)}, {sr(sG)}, 2")
        A(f"s_lshr_b32 {sr(sT2)}, {sr(sB)}, {int(half)}")
        A(f"s_lshl_b32 {sr(sT2)}, {sr(sT2)}, 2")
        A(f"s_add_u32 {sr(sT2)}, {sr(sT2)}, {sr(sW)}")
        A(f"s_mov_b32 {sr(cur+2)}, 4194304")
        for ptr, is_wq, h in items:
            A(f"s_add_u32 {sr(sT3)}, {sr(sT0)}, {h}")
            A(f"s_lshl_b32 {sr(sT3)}, {sr(sT3)}, {8 if is_wq else 17}")
            A(f"s_lshl_b32 {sr(off)}, {sr(sT2)}, {(16 if is_wq else 11) + int(half)}")
            A(f"s_add_u32 {sr(off)}, {sr(off)}, {sr(sT3)}")
            A(f"s_mov_b64 {sr(cur,2)}, {sr(ptr,2)}")
            for k in range(n):
                if k:
                    A(f"s_add_u32 {sr(off)}, {sr(off)}, {32768 if is_wq else 1024}")
                A(f"buffer_load_dwordx4 {vr(dst,4)}, {vr(vT if is_wq else vT+1)}, {sr(cur,4)}, {sr(off)} offen")

    def code_refresh(self, dst, tmp=vT):
        if not self.opt.get("refresh", 1):
            return
        A = self.A
        l = self.new("pc")
        A(f"s_getpc_b64 {sr(sT2,2)}")
        self.lab(l)
        A(f"s_sub_u32 {sr(sT2)}, {sr(sT2)}, {l}-L_pc0")
        A(f"s_subb_u32 {sr(sT3)}, {sr(sT3)}, 0")
        A(f"s_lshr_b32 {sr(sT0)}, s2, 3")
        A(f"s_lshl_b32 {sr(sT0)}, {sr(sT0)}, 2")
        A(f"s_add_u32 {sr(sT0)}, {sr(sT0)}, {sr(sW)}")
        A(f"s_lshl_b32 {sr(sT0)}, {sr(sT0)}, 9")
        self.lane(tmp)
        A(f"v_lshl_add_u32 {vr(tmp)}, {vr(tmp)}, 3, {sr(sT0)}")
        A(f"v_min_u32 {vr(tmp)}, L_table-L_pc0, {vr(tmp)}")
        A(f"global_load_dwordx2 {vr(dst,2)}, {vr(tmp)}, {sr(sT2,2)}")

    def code_touch(self, first, last, n, dst, tmp=vT):
        if not self.opt.get("touch", 0):
            return
        A = self.A
        l = self.new("pc")
        A(f"s_getpc_b64 {sr(sT2,2)}")
        self.lab(l)
        A(f"s_sub_u32 {sr(sT2)}, {sr(sT2)}, {l}-L_pc0")
        A(f"s_subb_u32 {sr(sT3)}, {sr(sT3)}, 0")
        A(f"s_lshl_b32 {sr(sT0)}, {sr(sW)}, 9")
        A(f"s_add_u32 {sr(sT0)}, {sr(sT0)}, {first}-L_pc0")
        self.touches.append((first, last, n))
        self.lane(tmp)
        A(f"v_lshl_add_u32 {vr(tmp)}, {vr(tmp)}, 3, {sr(sT0)}")
        for k in range(n):
            if k:
                A(f"v_add_u32 {vr(tmp)}, 2048, {vr(tmp)}")
            A(f"v_min_u32 {vr(tmp+1)}, {last}-L_pc0, {vr(tmp)}")
            A(f"global_load_dwordx2 {vr(dst,2)}, {vr(tmp+1)}, {sr(sT2,2)}")

    def srd(self, d, p, size):
        self.A(f"s_mov_b32 {sr(d)}, {sr(p)}")
        self.A(f"s_mov_b32 {sr(d+1)}, {sr(p+1)}")
        self.A(f"s_mov_b32 {sr(d+2)}, {size}")
        self.A(f"s_mov_b32 {sr(d+3)}, 0x20000")

    def reduce4(self, x, op):
        self.A(f"v_mov_b32 {vr(x+3)}, {vr(x+2)}")
        self.A("s_nop 1")
        self.A(f"v_permlane32_swap_b32 {vr(x)}, {vr(x+1)}")
        self.A(f"v_permlane32_swap_b32 {vr(x+2)}, {vr(x+3)}")
        self.A("s_nop 1")
        self.A(f"{op} {vr(x)}, {vr(x)}, {vr(x+1)}")
        self.A(f"{op} {vr(x+2)}, {vr(x+2)}, {vr(x+3)}")
        self.A("s_nop 1")
        self.A(f"v_permlane16_swap_b32 {vr(x)}, {vr(x+2)}")
        self.A("s_nop 1")
        self.A(f"{op} {vr(x)}, {vr(x)}, {vr(x+2)}")

    def allreduce3(self, x, t, op):
        for sw in ("v_permlane32_swap_b32", "v_permlane16_swap_b32"):
            for n in range(3):
                self.A(f"v_mov_b32 {vr(t+n)}, {vr(x+n)}")
            self.A("s_nop 1")
            for n in range(3):
                self.A(f"{sw} {vr(x+n)}, {vr(t+n)}")
            self.A("s_nop 1")
            for n in range(3):
                self.A(f"{op} {vr(x+n)}, {vr(x+n)}, {vr(t+n)}")

    def maxn(self, dst, regs):
        out = [f"v_max3_f32 {vr(dst)}, {vr(regs[0])}, {vr(regs[1])}, {vr(regs[2])}"]
        k = 3
        while k + 1 < len(regs):
            out.append(f"v_max3_f32 {vr(dst)}, {vr(dst)}, {vr(regs[k])}, {vr(regs[k+1])}")
            k += 2
        if k < len(regs):
            out.append(f"v_max_f32 {vr(dst)}, {vr(dst)}, {vr(regs[k])}")
        return out

    def pkmul(self, a, f):
        sel = "op_sel_hi:[1,0]" if f % 2 == 0 else "op_sel:[0,1] op_sel_hi:[1,1]"
        return f"v_pk_mul_f32 {vr(a,2)}, {vr(a,2)}, {vr(f - f % 2,2)} {sel}"

    def ev(self):
        if not self.opt.get("evst"):
            return []
        return self.cap(self.stamp, 0, True)

    def stamp(self, idx, force=False):
        if not self.opt.get("stamps") or (self.opt.get("evst") and not force and idx != 11):
            return
        if self.opt.get("tailst") and idx not in (0, 6, 7, 8, 11, 16, 17, 18):
            return
        self.A(("s_memtime" if self.opt.get("cyc") else "s_memrealtime") + f" {sr(sStamp,2)}")
        self.A("s_waitcnt lgkmcnt(0)")
        self.A(f"s_and_b32 {sr(sStamp)}, {sr(sStamp)}, 0xffffff")
        self.A(f"s_or_b32 {sr(sStamp)}, {sr(sStamp)}, {(idx+1) << 24}")
        self.A("s_mov_b32 m0, s78")
        if self.opt.get("skip"):
            l = self.new("st")
            self.A(f"s_cmp_lt_i32 s78, 0")
            self.A(f"s_cbranch_scc1 {l}")
            self.A(f"s_cmp_ge_i32 s78, 63")
            self.A(f"s_cbranch_scc1 {l}")
            self.A(f"v_writelane_b32 {vr(23)}, {sr(sStamp)}, m0")
            self.lab(l)
        else:
            self.A(f"v_writelane_b32 {vr(23)}, {sr(sStamp)}, m0")
        self.A("s_add_u32 s78, s78, 1")

    def ks(self, idx=15):
        if self.opt.get("kst"):
            self.A(f"s_memtime s[{76}:{77}]")
            self.A("s_waitcnt lgkmcnt(0)")
            self.A(f"s_and_b32 s76, s76, 0xffffff")
            self.A(f"s_or_b32 s76, s76, {(idx+1) << 24}")
            self.A("s_mov_b32 m0, s78")
            self.A(f"v_writelane_b32 v23, s76, m0")
            self.A("s_add_u32 s78, s78, 1")

    def pack_y(self, barrier, store=False):
        def pack(jp):
            g = []
            for n in range(3):
                q = vY + (2 * jp * 3 + n) * 4
                for h in range(2):
                    y = vY + ((2 * jp + h) * 3 + n) * 4
                    g.append([f"v_cvt_pk_bf16_f32 {vr(q+2*h)}, {vr(y)}, {vr(y+1)}"])
                    g.append([f"v_cvt_pk_bf16_f32 {vr(q+2*h+1)}, {vr(y+2)}, {vr(y+3)}"])
            if store:
                g.append(["s_nop 1"])
                for n in range(3):
                    q = vY + (2 * jp * 3 + n) * 4
                    g.append([f"v_permlane16_swap_b32 {vr(q)}, {vr(q+2)}", f"v_permlane16_swap_b32 {vr(q+1)}, {vr(q+3)}",
                              f"buffer_store_dwordx4 {vr(q,4)}, {vr(vT+n)}, {sr(SRD_AUX,4)}, {sr(sPendOff)} offen offset:{jp*1024}"
                              + self.opt.get("stflag", "")])
            return g

        if store:
            self.lane(vT)
            self.A(f"v_lshlrev_b32 {vr(vT)}, 4, {vr(vT)}")
            self.A(f"v_add_u32 {vr(vT+1)}, 4096, {vr(vT)}")
            self.A(f"v_add_u32 {vr(vT+2)}, 8192, {vr(vT)}")
        self.srd(SRD_AUX, sWs, 268435456)
        self.A(f"s_mul_i32 {sr(sT1)}, {sr(sW)}, 12288")
        self.A(f"s_add_u32 {sr(sPendOff)}, {sr(sT0)}, {sr(sT1)}")
        self.wide_drain(pack)
        if barrier:
            self.A("s_barrier")
        else:
            self.A("s_nop 1")

    def store_y(self, n, va):
        A = self.A
        self.lane(va)
        A(f"v_lshlrev_b32 {vr(va)}, 4, {vr(va)}")
        for jp in range(4):
            q = vY + (2 * jp * 3 + n) * 4
            A(f"v_permlane16_swap_b32 {vr(q)}, {vr(q+2)}")
            A(f"v_permlane16_swap_b32 {vr(q+1)}, {vr(q+3)}")
            A(f"buffer_store_dwordx4 {vr(q,4)}, {vr(va)}, {sr(SRD_AUX,4)}, {sr(sPendOff)} offen offset:{jp*1024}" + self.opt.get("stflag", ""))
        A(f"s_add_u32 {sr(sPendOff)}, {sr(sPendOff)}, 4096")

    def wide_drain(self, per_pair=None):
        prim = [self.M(vY + (j * 3 + n) * 4, vFr + 4 * (j + 2 if j >= 6 else j), vAcc + (3 + n) * 4) for j in range(8) for n in range(3)]
        fill = []
        if per_pair:
            for jp in range(4):
                g = per_pair(jp)
                fill += [(6 * jp + 13, x) for x in g]
        self.weave(prim, fill, per=4)

    def dma_only(self):
        A, lab = self.A, self.lab
        self.is_loader("L_do_ld")
        A(f"s_cmp_eq_u32 {sr(sOrd)}, 0")
        A("s_cbranch_scc0 L_fin")
        self.weight_prefetch([(sBwq, True, 2), (sBwq, True, 3), (sBwq, True, 0)] + [(sBwo, False, h) for h in range(4)] + [(sAwo, False, h) for h in range(4)])
        A("s_branch L_fin")
        lab("L_do_ld")
        self.first_tile(1)
        self.x_rot(vY, 2)
        self.first_tile(2)
        self.x_rot(vY, 3)
        self.weave([], self.prep(1))
        lab("L_do_loop")
        for p in (1, 0):
            for sw, (cond, k, v, wo) in {27: (1, sBk, sBv, None), 41: (1, None, None, sBwo), 14: (2, sAk, sAv, None), 18: (2, None, None, sAwo)}.items():
                l = self.new("sw")
                A(f"s_cmp_eq_u32 {sr(sIdx)}, {sw}")
                A(f"s_cbranch_scc0 {l}")
                A(f"s_cmp_eq_u32 {sr(sOrd)}, {cond}")
                A(f"s_cbranch_scc0 {l}")
                if k:
                    self.srd(SRD_K, k, 67108864 if k == sBk else 16777216)
                    self.srd(SRD_V, v, 67108864 if k == sBk else 16777216)
                if wo:
                    self.srd(SRD_WO, wo, 4194304)
                lab(l)
            A(f"s_waitcnt vmcnt({self.opt['dmaonly']})")
            for k in range(4):
                self.dma(k, p, None, guard=False)
            self.weave([], self.prep(1 - p))
        A(f"s_cmp_lt_u32 {sr(sIdx)}, 57")
        A("s_cbranch_scc1 L_do_loop")
        A("s_branch L_fin")

    def reduce_setup(self):
        A = self.A
        A(f"s_load_dwordx4 {sr(rOut,4)}, s[0:1], 80")
        A("s_waitcnt lgkmcnt(0)")
        A(f"s_mov_b64 {sr(rDbg,2)}, {sr(rOut+2,2)}")
        A(f"s_mov_b32 {sr(rOut+2)}, 1572864")
        A(f"s_mov_b32 {sr(rOut+3)}, 0x20000")
        self.srd(rWs, sWs, 268435456)

    def publish(self):
        A, lab = self.A, self.lab
        A(f"v_mov_b32 {vr(vT)}, {STORED}")
        A(f"v_mov_b32 {vr(vT+1)}, 1")
        self.reduce_setup()
        A("s_waitcnt vmcnt(0)")
        self.stamp(7)
        A("s_mov_b64 exec, 1")
        A(f"ds_add_rtn_u32 {vr(vT+1)}, {vr(vT)}, {vr(vT+1)}")
        A(f"s_lshl_b32 {sr(sT0)}, {sr(sRole)}, 3")
        A(f"s_add_u32 {sr(sT0)}, {sr(sT0)}, {sr(sG)}")
        A(f"s_lshl_b32 {sr(sT2)}, {sr(sT0)}, 2")
        A(f"s_add_u32 {sr(sT3)}, {sr(sT2)}, {ENTRY}")
        A(f"v_mov_b32 {vr(vT+4)}, {sr(sT3)}")
        A(f"ds_read_b32 {vr(vT+4)}, {vr(vT+4)}")
        A(f"s_lshl_b32 {sr(sT3)}, {sr(sB)}, 8")
        A(f"s_add_u32 {sr(sT2)}, {sr(sT2)}, {sr(sT3)}")
        A(f"s_add_u32 {sr(sT2)}, {sr(sT2)}, {WS_FLAGS}")
        A(f"s_lshl_b32 {sr(sT0)}, 1, {sr(sT0)}")
        A(f"s_add_u32 {sr(sT1)}, {sr(sG)}, 16")
        A(f"s_lshl_b32 {sr(sT1)}, {sr(sRole)}, {sr(sT1)}")
        A(f"s_or_b32 {sr(sT0)}, {sr(sT0)}, {sr(sT1)}")
        A(f"s_lshl_b32 {sr(sT1)}, {sr(sB)}, 4")
        A(f"v_mov_b32 {vr(vT)}, {sr(sT1)}")
        A(f"v_mov_b32 {vr(vT+2)}, {sr(sT0)}")
        A(f"v_mov_b32 {vr(vT+3)}, 0")
        A("s_waitcnt lgkmcnt(0)")
        A(f"v_readfirstlane_b32 {sr(sT1)}, {vr(vT+1)}")
        A(f"v_add_u32 {vr(vT+4)}, 1, {vr(vT+4)}")
        A("s_mov_b64 exec, -1")
        A("s_nop 2")
        A(f"s_cmp_eq_u32 {sr(sT1)}, 3")
        A("s_cbranch_scc0 L_fin")
        A("s_mov_b64 exec, 1")
        A(f"buffer_store_dword {vr(vT+4)}, off, {sr(rWs,4)}, {sr(sT2)} sc1")
        A(f"global_atomic_or_x2 {vr(vT+4,2)}, {vr(vT)}, {vr(vT+2,2)}, {sr(rDbg,2)} sc0 sc1")
        A("s_waitcnt vmcnt(0)")
        A(f"v_readfirstlane_b32 {sr(sT1)}, {vr(vT+4)}")
        A(f"v_readfirstlane_b32 {sr(rAb)}, {vr(vT+5)}")
        A("s_mov_b64 exec, -1")
        A("s_nop 2")
        A(f"s_or_b32 {sr(sT1)}, {sr(sT1)}, {sr(sT0)}")
        A(f"s_cmp_eq_u32 {sr(sT1)}, {FULL}")
        A("s_cbranch_scc0 L_fin")
        self.c("last arrival of this batch: take over the slices of workgroups that gave up waiting")
        lab("L_ab_loop")
        A(f"s_cmp_eq_u32 {sr(rAb)}, 0")
        A("s_cbranch_scc1 L_fin")
        A(f"s_ff1_i32_b32 {sr(rK)}, {sr(rAb)}")
        A(f"s_bitset0_b32 {sr(rAb)}, {sr(rK)}")
        A(f"s_mul_i32 {sr(rKb)}, {sr(rK)}, 3")
        for k in range(3):
            A(f"s_mov_b32 {sr(rMode)}, 2")
            A(f"s_call_b64 {sr(LINK_S,2)}, L_reduce")
            A(f"s_add_u32 {sr(rKb)}, {sr(rKb)}, 1")
        A("s_branch L_ab_loop")

    def reduce_sub(self):
        A, lab = self.A, self.lab
        dat = lambda g, q: 64 + (g * 4 + q) * 4
        acc = lambda g: 160 + g * 8
        lab("L_reduce")
        A(f"s_lshl_b32 {sr(rOffA)}, {sr(rKb)}, 10")
        A(f"s_mul_i32 {sr(rOffB)}, {sr(sB)}, {16*PART}")
        A(f"s_add_u32 {sr(rOffB)}, {sr(rOffB)}, {sr(rOffA)}")
        A(f"s_mul_i32 {sr(rOffO)}, {sr(sB)}, {8*PART}")
        A(f"s_add_u32 {sr(rOffA)}, {sr(rOffA)}, {sr(rOffO)}")
        A(f"s_add_u32 {sr(rOffA)}, {sr(rOffA)}, {PART_A_BASE}")
        A(f"s_mul_i32 {sr(sT0)}, {sr(rKb)}, 171")
        A(f"s_lshr_b32 {sr(sT0)}, {sr(sT0)}, 11")
        A(f"s_mul_i32 {sr(sT1)}, {sr(sT0)}, 12")
        A(f"s_sub_u32 {sr(sT1)}, {sr(rKb)}, {sr(sT1)}")
        A(f"s_lshr_b32 {sr(sT2)}, {sr(sT1)}, 2")
        A(f"s_and_b32 {sr(sT1)}, {sr(sT1)}, 3")
        A(f"s_mul_i32 {sr(rOffO)}, {sr(sB)}, 98304")
        A(f"s_lshl_b32 {sr(sT2)}, {sr(sT2)}, 15")
        A(f"s_lshl_b32 {sr(sT0)}, {sr(sT0)}, 8")
        A(f"s_lshl_b32 {sr(sT1)}, {sr(sT1)}, 6")
        A(f"s_add_u32 {sr(rOffO)}, {sr(rOffO)}, {sr(sT2)}")
        A(f"s_add_u32 {sr(rOffO)}, {sr(rOffO)}, {sr(sT0)}")
        A(f"s_add_u32 {sr(rOffO)}, {sr(rOffO)}, {sr(sT1)}")
        self.lane(24)
        A("v_lshlrev_b32 v25, 4, v24")
        A("v_and_b32 v26, 15, v24")
        A("v_lshlrev_b32 v26, 11, v26")
        A("v_bfe_u32 v27, v24, 4, 1")
        A("v_lshl_add_u32 v26, v27, 5, v26")
        A("v_bfe_u32 v27, v24, 5, 1")
        A("v_lshl_add_u32 v26, v27, 4, v26")
        A(f"v_mov_b32 v27, {RELAY}")
        A(f"s_lshl_b32 {sr(sT0)}, {sr(sB)}, 4")
        A(f"v_mov_b32 v28, {sr(sT0)}")
        A("v_and_b32 v40, 15, v24")
        A("v_lshlrev_b32 v40, 2, v40")
        A(f"v_add_u32 v41, {ENTRY}, v40")
        A("ds_read_b32 v41, v41")
        A(f"s_lshl_b32 {sr(sT2)}, {sr(sB)}, 8")
        A(f"s_add_u32 {sr(sT2)}, {sr(sT2)}, {WS_FLAGS}")
        A(f"v_mov_b32 v42, {STORED}")
        A("s_waitcnt lgkmcnt(0)")
        A("v_add_u32 v41, 1, v41")
        A(f"s_mov_b32 {sr(sT3)}, 0xffff0000")
        A(f"s_mov_b32 {sr(rDone)}, 0")
        A(f"s_mov_b32 {sr(rCnt)}, 0")
        lab("L_rd_poll")
        A(f"s_mov_b32 {sr(rF)}, {FULL}")
        A(f"s_cmp_eq_u32 {sr(rMode)}, 2")
        A("s_cbranch_scc1 L_rd_have")
        A(f"s_cmp_eq_u32 {sr(rMode)}, 1")
        A("s_cbranch_scc1 L_rd_lds")
        A(f"s_cmp_eq_u32 {sr(rCnt)}, 1")
        A("s_cbranch_scc0 L_rd_go")
        self.c("after the first look, stay off the memory path until this workgroup's own stores are out")
        lab("L_rd_own")
        A("ds_read_b32 v29, v42")
        A("s_waitcnt lgkmcnt(0)")
        A("v_cmp_gt_u32 vcc, 4, v29")
        A("s_cbranch_vccz L_rd_go")
        A("s_sleep 2")
        A("s_branch L_rd_own")
        lab("L_rd_go")
        A(f"s_add_u32 {sr(rCnt)}, {sr(rCnt)}, 1")
        A(f"buffer_load_dword v29, v40, {sr(rWs,4)}, {sr(sT2)} offen sc1")
        A("s_waitcnt vmcnt(0)")
        A("v_cmp_eq_u32 vcc, v29, v41")
        A("s_nop 3")
        A(f"s_and_b32 {sr(rF)}, vcc_lo, 0xffff")
        A(f"s_and_b32 {sr(sT0)}, {sr(rF)}, 0xff00")
        A(f"s_lshl_b32 {sr(sT0)}, {sr(sT0)}, 8")
        A(f"s_or_b32 {sr(rF)}, {sr(rF)}, {sr(sT0)}")
        A(f"v_mov_b32 v29, {sr(rF)}")
        A("ds_write_b32 v27, v29")
        A("s_branch L_rd_have")
        lab("L_rd_lds")
        A("ds_read_b32 v29, v27")
        A("s_waitcnt lgkmcnt(0)")
        A(f"v_readfirstlane_b32 {sr(rF)}, v29")
        A("s_nop 3")
        A(f"s_cmp_lt_i32 {sr(rF)}, 0")
        A("s_cbranch_scc1 L_rd_ret")
        lab("L_rd_have")
        A(f"s_lshr_b32 {sr(rNew)}, {sr(rF)}, 1")
        A(f"s_and_b32 {sr(rNew)}, {sr(rNew)}, {sr(rF)}")
        A(f"s_lshr_b32 {sr(sT0)}, {sr(rNew)}, 2")
        A(f"s_and_b32 {sr(rNew)}, {sr(rNew)}, {sr(sT0)}")
        A(f"s_and_b32 {sr(rNew)}, {sr(rNew)}, 0x111111")
        A(f"s_andn2_b32 {sr(rNew)}, {sr(rNew)}, {sr(rDone)}")
        A("s_cbranch_scc1 L_rd_work")
        A(f"s_sleep {self.opt.get('sleep', 8)}")
        A(f"s_cmp_eq_u32 {sr(rMode)}, 0")
        A("s_cbranch_scc0 L_rd_poll")
        A(f"s_cmp_lt_u32 {sr(rCnt)}, {self.opt.get('polls', POLL_LIMIT)}")
        A("s_cbranch_scc1 L_rd_poll")
        self.c("gave up waiting: leave the slice to the last arrival unless that has happened meanwhile")
        A(f"s_lshl_b32 {sr(sT0)}, {sr(sRole)}, 3")
        A(f"s_add_u32 {sr(sT0)}, {sr(sT0)}, {sr(sG)}")
        A(f"s_lshl_b32 {sr(sT0)}, 1, {sr(sT0)}")
        A("v_mov_b32 v30, 0")
        A(f"v_mov_b32 v31, {sr(sT0)}")
        A("s_mov_b64 exec, 1")
        A(f"global_atomic_or_x2 v[32:33], v28, v[30:31], {sr(rDbg,2)} sc0 sc1")
        A("s_waitcnt vmcnt(0)")
        A(f"v_readfirstlane_b32 {sr(rF)}, v32")
        A("s_mov_b64 exec, -1")
        A("s_nop 3")
        A(f"s_cmp_eq_u32 {sr(rF)}, {FULL}")
        A(f"s_cselect_b32 {sr(rF)}, {sr(rF)}, -1")
        A(f"v_mov_b32 v29, {sr(rF)}")
        A("ds_write_b32 v27, v29")
        A("s_cbranch_scc0 L_rd_ret")
        A(f"s_mov_b32 {sr(rMode)}, 2")
        A("s_branch L_rd_poll")
        lab("L_rd_work")
        self.stamp(17)
        for g in range(6):
            l = self.new("rg")
            A(f"s_bitcmp1_b32 {sr(rNew)}, {4*g}")
            A(f"s_cbranch_scc0 {l}")
            base, first = (rOffB, 4 * g) if g < 4 else (rOffA, 4 * (g - 4))
            for q in range(4):
                A(f"s_add_u32 {sr(sT0)}, {sr(base)}, {(first+q)*PART}")
                A(f"buffer_load_dwordx4 {vr(dat(g,q),4)}, v25, {sr(rWs,4)}, {sr(sT0)} offen sc1")
            lab(l)
        A("s_waitcnt vmcnt(0)")
        self.stamp(18)
        for g in range(6):
            l = self.new("rs")
            A(f"s_bitcmp1_b32 {sr(rNew)}, {4*g}")
            A(f"s_cbranch_scc0 {l}")
            for q in range(4):
                for k in range(4):
                    r, t = dat(g, q) + k, (acc(g) + 2 * k if q == 0 else 30 + 2 * (k % 2))
                    A(f"v_lshlrev_b32 {vr(t)}, 16, {vr(r)}")
                    A(f"v_and_b32 {vr(t+1)}, {sr(sT3)}, {vr(r)}")
                    if q:
                        A(f"v_pk_add_f32 {vr(acc(g)+2*k,2)}, {vr(acc(g)+2*k,2)}, {vr(t,2)}")
            lab(l)
        A(f"s_or_b32 {sr(rDone)}, {sr(rDone)}, {sr(rNew)}")
        A(f"s_cmp_eq_u32 {sr(rDone)}, 0x111111")
        A("s_cbranch_scc0 L_rd_poll")
        for x, y in ((0, 1), (2, 3), (4, 5), (0, 2)):
            for k in range(4):
                A(f"v_pk_add_f32 {vr(acc(x)+2*k,2)}, {vr(acc(x)+2*k,2)}, {vr(acc(y)+2*k,2)}")
        for g, d in ((4, 32), (0, 36)):
            for k in range(4):
                A(f"v_cvt_pk_bf16_f32 {vr(d+k)}, {vr(acc(g)+2*k)}, {vr(acc(g)+2*k+1)}")
        A(f"buffer_store_dwordx4 v[32:35], v26, {sr(rOut,4)}, {sr(rOffO)} offen")
        A(f"buffer_store_dwordx4 v[36:39], v26, {sr(rOut,4)}, {sr(rOffO)} offen offset:1024")
        lab("L_rd_ret")
        A(f"s_setpc_b64 {sr(LINK_S,2)}")

    def zero(self, base, n):
        for k in range(0, n, 2):
            self.A(f"v_mov_b64 {vr(base+k,2)}, 0")

    def act_write_addr(self, sblk, stile):
        A = self.A
        self.lane(vT + 1)
        A(f"v_lshrrev_b32 {vr(vT)}, 4, {vr(vT+1)}")
        A(f"v_and_b32 {vr(vT+1)}, 15, {vr(vT+1)}")
        A(f"v_lshrrev_b32 {vr(vT+2)}, 1, {vr(vT)}")
        if stile is not None:
            A(f"v_add_u32 {vr(vT+2)}, {sr(stile)}, {vr(vT+2)}")
        A(f"v_xor_b32 {vr(vT+2)}, {vr(vT+2)}, {vr(vT+1)}")
        A(f"v_lshlrev_b32 {vr(vT+2)}, 4, {vr(vT+2)}")
        A(f"v_and_b32 {vr(vT)}, 1, {vr(vT)}")
        A(f"v_lshl_or_b32 {vr(vT+2)}, {vr(vT)}, 3, {vr(vT+2)}")
        A(f"v_mul_u32_u24 {vr(vT+1)}, {XROW}, {vr(vT+1)}")
        A(f"s_add_u32 {sr(sT5)}, {sr(sblk)}, {XB}")
        A(f"v_add3_u32 {vr(vT+1)}, {vr(vT+1)}, {sr(sT5)}, {vr(vT+2)}")

    def frag_addrs(self):
        A = self.A
        t0, t1, t2, t3, t4, t5, vL = vT, vT + 1, vT + 2, vT + 3, vT + 4, vT + 5, vT + 6
        self.lane(vL)
        A(f"v_lshrrev_b32 {vr(t0)}, 4, {vr(vL)}")
        A(f"v_and_b32 {vr(t1)}, 15, {vr(vL)}")
        A(f"v_bfe_u32 {vr(t2)}, {vr(vL)}, 2, 2")
        A(f"v_and_b32 {vr(t3)}, 3, {vr(vL)}")
        A(f"v_lshl_add_u32 {vr(t4)}, {vr(t0)}, 3, {vr(t2)}")
        A(f"v_lshlrev_b32 {vr(t4)}, 8, {vr(t4)}")
        A(f"v_and_b32 {vr(t5)}, 1, {vr(t0)}")
        A(f"v_lshl_or_b32 {vr(t5)}, {vr(t5)}, 2, {vr(t2)}")
        A(f"v_lshl_or_b32 {vr(t4)}, {vr(t5)}, 5, {vr(t4)}")
        A(f"v_lshl_or_b32 {vr(vTR0)}, {vr(t3)}, 3, {vr(t4)}")
        A(f"s_lshr_b32 {sr(sT0)}, {sr(sW1024)}, 4")
        A(f"v_xor_b32 {vr(vTRw)}, {sr(sT0)}, {vr(vTR0)}")
        A(f"s_lshr_b32 {sr(sT1)}, {sr(sW)}, 1")
        A(f"s_lshl_b32 {sr(sT1)}, {sr(sT1)}, 13")
        A(f"v_lshrrev_b32 {vr(t4)}, 2, {vr(t1)}")
        A(f"v_lshl_or_b32 {vr(t4)}, {vr(t4)}, 3, {vr(t3)}")
        A(f"v_lshlrev_b32 {vr(t4)}, 8, {vr(t4)}")
        A(f"v_lshrrev_b32 {vr(t5)}, 1, {vr(t0)}")
        A(f"v_and_b32 {vr(vKb)}, 7, {vr(t1)}")
        A(f"v_xor_b32 {vr(t5)}, {vr(t5)}, {vr(vKb)}")
        A(f"v_lshl_or_b32 {vr(t4)}, {vr(t5)}, 5, {vr(t4)}")
        A(f"v_and_b32 {vr(t5)}, 1, {vr(t0)}")
        A(f"v_lshl_or_b32 {vr(t4)}, {vr(t5)}, 4, {vr(t4)}")
        A(f"s_and_b32 {sr(sT0)}, {sr(sW)}, 1")
        A(f"s_lshl_b32 {sr(sT0)}, {sr(sT0)}, 10")
        A(f"s_add_u32 {sr(sT0)}, {sr(sT0)}, {sr(sT1)}")
        A(f"v_add_u32 {vr(vKb)}, {sr(sT0)}, {vr(t4)}")
        A(f"v_mul_u32_u24 {vr(t4)}, {XROW}, {vr(t1)}")
        A(f"v_add_u32 {vr(t4)}, {XB}, {vr(t4)}")
        A(f"v_xor_b32 {vr(t5)}, {vr(t0)}, {vr(t1)}")
        A(f"v_lshlrev_b32 {vr(t5)}, 4, {vr(t5)}")
        for s in range(4):
            A(f"v_xor_b32 {vr(vXB+s)}, {s*64}, {vr(t5)}")
            A(f"v_add_u32 {vr(vXB+s)}, {vr(vXB+s)}, {vr(t4)}")
        A(f"v_lshrrev_b32 {vr(t5)}, 1, {vr(t0)}")
        A(f"s_lshr_b32 {sr(sT0)}, {sr(sW1024)}, 8")
        A(f"v_add_u32 {vr(t5)}, {sr(sT0)}, {vr(t5)}")
        A(f"v_xor_b32 {vr(t5)}, {vr(t5)}, {vr(t1)}")
        A(f"v_lshl_add_u32 {vr(vQW)}, {vr(t5)}, 4, {vr(t4)}")
        A(f"v_and_b32 {vr(t5)}, 1, {vr(t0)}")
        A(f"v_lshl_add_u32 {vr(vQW)}, {vr(t5)}, 3, {vr(vQW)}")
        A(f"s_lshr_b32 {sr(sT0)}, {sr(sW)}, 1")
        A(f"s_lshl_b32 {sr(sT0)}, {sr(sT0)}, 2")
        A(f"v_add_u32 {vr(t5)}, {sr(sT0)}, {vr(t0)}")
        A(f"v_xor_b32 {vr(t5)}, {vr(t5)}, {vr(t1)}")
        A(f"v_lshl_add_u32 {vr(vPW)}, {vr(t5)}, 4, {vr(t4)}")
        A(f"s_and_b32 {sr(sT0)}, {sr(sW)}, 1")
        A(f"s_lshl_b32 {sr(sT0)}, {sr(sT0)}, 3")
        A(f"v_add_u32 {vr(vPW)}, {sr(sT0)}, {vr(vPW)}")
        A(f"v_lshlrev_b32 {vr(vSTr)}, 5, {vr(t1)}")
        A(f"v_add_u32 {vr(vSTr)}, {ST}, {vr(vSTr)}")
        A(f"v_lshlrev_b32 {vr(t5)}, 1, {vr(t0)}")
        A(f"v_mov_b32 {vr(t4)}, 0x98")
        A(f"v_lshrrev_b32 {vr(t5)}, {vr(t5)}, {vr(t4)}")
        A(f"v_and_b32 {vr(t5)}, 3, {vr(t5)}")
        A(f"v_lshl_add_u32 {vr(vSTw)}, {vr(t5)}, 9, {vr(vSTr)}")
        A(f"s_lshl_b32 {sr(sT0)}, {sr(sW)}, 2")
        A(f"v_add_u32 {vr(vSTw)}, {sr(sT0)}, {vr(vSTw)}")

    def main_kernel(self):
        A, lab, c = self.A, self.lab, self.c
        opt = self.opt
        K1 = NAME + "_kernel"
        self.L += [f".globl {K1}", ".p2align 8", f".type {K1},@function"]
        lab(K1)
        if opt.get("prost"):
            A("s_memtime s[88:89]")
        A("s_cmp_ge_u32 s2, 256")
        A("s_cbranch_scc1 L_end")
        if opt.get("only"):
            A("s_bitcmp1_b32 s2, 7")
            A("s_cbranch_scc%d L_end" % (1 if opt["only"] == "B" else 0))
        if opt.get("dbg"):
            A("s_memrealtime s[76:77]")
            A("s_waitcnt lgkmcnt(0)")
            A("v_mov_b32 v23, s76")
            A("s_memtime s[76:77]")
            A("s_waitcnt lgkmcnt(0)")
            A("s_mov_b32 s78, s76")
        A(f"s_load_dwordx8 {sr(44,8)}, s[0:1], 40")
        A(f"s_load_dwordx2 {sr(52,2)}, s[0:1], 72")
        A(f"s_load_dwordx8 {sr(32,8)}, s[0:1], 0")
        A(f"s_load_dwordx2 {sr(40,2)}, s[0:1], 32")
        A(f"s_load_dwordx2 {sr(54,2)}, s[0:1], 96")
        if opt.get("stamps"):
            A(f"v_mov_b32 {vr(23)}, 0")
            A(f"s_mov_b32 s78, {-(opt.get('skip', 1) - 1)}")
        if opt.get("prost"):
            A("s_waitcnt lgkmcnt(0)")
            A("s_and_b32 s88, s88, 0xffffff")
            A(f"s_or_b32 s88, s88, {1 << 24}")
            A("v_writelane_b32 v23, s88, 0")
            A("s_mov_b32 s78, 1")
            self.stamp(15)
        vL = vT + 6
        A(f"v_lshrrev_b32 {vr(vT)}, 6, v0")
        A(f"v_and_b32 {vr(vL)}, 63, v0")
        A(f"v_readfirstlane_b32 {sr(sW)}, {vr(vT)}")
        A(f"s_and_b32 {sr(sG)}, s2, 7")
        A(f"s_lshr_b32 {sr(sT0)}, s2, 3")
        A(f"s_and_b32 {sr(sB)}, {sr(sT0)}, 15")
        A(f"s_lshr_b32 {sr(sRole)}, {sr(sT0)}, 4")
        A(f"s_bitcmp1_b32 {hex(opt.get('cbits', 0xaaaa))}, {sr(sB)}")
        A(f"s_cselect_b32 {sr(sOrd)}, 2, 1")
        A(f"s_mul_i32 {sr(sOrd)}, {sr(sOrd)}, {sr(sRole)}")
        A(f"s_and_b32 {sr(sT1)}, {sr(sW)}, 3")
        A(f"s_lshl_b32 {sr(sW1024)}, {sr(sT1)}, 10")
        c("DMA lane offsets: row = 4(w&3) + (l>>4) (+16), 32-byte chunk XOR key(row)")
        t0, t1, t2, t3, t4, t5 = vT, vT + 1, vT + 2, vT + 3, vT + 4, vT + 5
        A(f"v_lshrrev_b32 {vr(t0)}, 4, {vr(vL)}")
        A(f"s_lshl_b32 {sr(sT0)}, {sr(sW)}, 1")
        A(f"s_and_b32 {sr(sT0)}, {sr(sT0)}, 4")
        A(f"v_or_b32 {vr(t1)}, {sr(sT0)}, {vr(t0)}")
        A(f"v_bfe_u32 {vr(t2)}, {vr(vL)}, 1, 3")
        A(f"v_xor_b32 {vr(t1)}, {vr(t1)}, {vr(t2)}")
        A(f"v_lshlrev_b32 {vr(t1)}, 5, {vr(t1)}")
        A(f"v_and_b32 {vr(t2)}, 1, {vr(vL)}")
        A(f"v_lshl_or_b32 {vr(vChunk)}, {vr(t2)}, 4, {vr(t1)}")
        A(f"s_lshl_b32 {sr(sT0)}, {sr(sT1)}, 2")
        A(f"v_add_u32 {vr(vRow)}, {sr(sT0)}, {vr(t0)}")
        A(f"v_lshl_add_u32 {vr(vCur[0])}, {vr(vRow)}, {ROWSH[T_WQ]}, {vr(vChunk)}")
        c("first B head: 4g for the A role, 4g+1 for the B role")
        A(f"s_lshl_b32 {sr(sT4)}, {sr(sG)}, 2")
        A(f"s_add_u32 {sr(sT4)}, {sr(sT4)}, 1")
        A(f"s_sub_u32 {sr(sT4)}, {sr(sT4)}, {sr(sRole)}")
        A(f"s_lshl_b32 {sr(sE)}, {sr(sT4)}, 8")
        A(f"s_getpc_b64 {sr(sT2,2)}")
        lab("L_pc0")
        A(f"s_lshl_b32 {sr(sT0)}, {sr(sOrd)}, 8")
        A(f"s_add_u32 {sr(sT0)}, {sr(sT0)}, L_table-L_pc0")
        A(f"v_lshl_add_u32 {vr(vTab)}, {vr(vL)}, 2, {sr(sT0)}")
        A(f"global_load_dword {vr(vTab)}, {vr(vTab)}, {sr(sT2,2)}")
        if opt.get("codepf", 1):
            c("waves 0-3 pull the code into L2: 64 KiB window, 512 bytes per wave and workgroup of the head group")
            self.is_loader("L_nocp")
            A(f"s_lshr_b32 {sr(sT0)}, s2, 3")
            A(f"s_lshl_b32 {sr(sT0)}, {sr(sT0)}, 2")
            A(f"s_add_u32 {sr(sT0)}, {sr(sT0)}, {sr(sW)}")
            A(f"s_lshl_b32 {sr(sT0)}, {sr(sT0)}, 9")
            A(f"v_lshl_add_u32 {vr(vT)}, {vr(vL)}, 3, {sr(sT0)}")
            A(f"v_min_u32 {vr(vT)}, L_table-L_pc0, {vr(vT)}")
            A(f"global_load_dwordx2 v[156:157], {vr(vT)}, {sr(sT2,2)}")
            lab("L_nocp")
        self.x_setup(vY, sHalf[0], sHalf[1])
        if opt.get("prost"):
            self.stamp(15)
        A(f"s_bitcmp1_b32 {sr(sW)}, 2")
        A("s_waitcnt lgkmcnt(0)")
        self.srd(SRD_AUX, sBx, 786432)
        self.srd(SRD_WQW, sAwq, 4194304)
        self.srd(SRD_WQ, sBwq, 4194304)
        self.srd(SRD_CUR[0], sBwq, 4194304)
        self.srd(SRD_CUR[1], sBwq, 4194304)
        A("s_cbranch_scc1 L_pro_ld")
        if opt.get("pf1", 0):
            A(f"s_cmp_eq_u32 {sr(sRole)}, 1")
            A("s_cbranch_scc1 L_pro_done")
            self.weight_prefetch([(sBwq, True, 1)])
        A("s_branch L_pro_done")
        lab("L_pro_ld")
        A(f"s_cmp_eq_u32 {sr(sOrd)}, 1")
        A(f"s_cselect_b64 {sr(SRD_AUX,2)}, {sr(sAx,2)}, {sr(sBx,2)}")
        A(f"s_cselect_b64 {sr(SRD_CUR[0],2)}, {sr(sAwq,2)}, {sr(sBwq,2)}")
        A(f"s_mov_b32 {sr(sStr[1])}, {32*8192}")
        A(f"s_cselect_b32 {sr(sStr[0])}, 256, {sr(sStr[1])}")
        A(f"s_cselect_b32 {sr(sStr[1])}, {sr(sStr[1])}, {128*8192}")
        A(f"s_cselect_b32 {sr(sI[0])}, 15, 3")
        A(f"s_cselect_b32 {sr(sOff2)}, 2, 0")
        A(f"s_lshr_b32 {sr(sOff2)}, {sr(sB)}, {sr(sOff2)}")
        A(f"s_mov_b32 {sr(sTy[0])}, {sr(sE)}")
        self.x_rot(vY, 0)
        self.first_tile(0)
        self.x_rot(vY, 1)
        if opt.get("prost"):
            self.stamp(15)
        lab("L_pro_done")
        self.frag_addrs()
        A(f"s_cmp_eq_u32 {sr(sOrd)}, 1")
        for d, pa, pb, za, zb in ((SRD_K, sAk, sBk, 16777216, 67108864), (SRD_V, sAv, sBv, 16777216, 67108864), (SRD_WO, sAwo, sBwo, 4194304, 4194304)):
            A(f"s_cselect_b64 {sr(d,2)}, {sr(pa,2)}, {sr(pb,2)}")
            A(f"s_mov_b32 {sr(d+2)}, {zb}")
            if za != zb:
                A(f"s_cselect_b32 {sr(d+2)}, {za}, {sr(d+2)}")
            A(f"s_mov_b32 {sr(d+3)}, 0x20000")
        c("tile table: entry = constant + base selected by bits 4:3 (Wq head, B K/V unit, Wo head, A K/V unit)")
        bq, bkv, bo, bka = sT0, sT1, sT2, sT3
        A(f"s_lshl_b32 {sr(bq)}, {sr(sT4)}, 8")
        A(f"s_lshl_b32 {sr(bkv)}, {sr(sB)}, 5")
        A(f"s_add_u32 {sr(bkv)}, {sr(bkv)}, {sr(sT4)}")
        A(f"s_lshl_b32 {sr(bkv)}, {sr(bkv)}, 17")
        A(f"s_lshl_b32 {sr(bo)}, {sr(sT4)}, 17")
        A(f"s_lshl_b32 {sr(bka)}, {sr(sB)}, 3")
        A(f"s_add_u32 {sr(bka)}, {sr(bka)}, {sr(sG)}")
        A(f"s_lshl_b32 {sr(bka)}, {sr(bka)}, 17")
        A(f"s_cmp_eq_u32 {sr(sRole)}, 1")
        A(f"s_cselect_b32 {sr(sHead)}, 1, 3")
        A(f"v_mov_b32 {vr(vT+1)}, {sr(bq)}")
        self.is_loader("L_tabw")
        if self.fuse:
            self.srd(SRD_CUR[1], sWs, 268435456)
            self.lane(vT + 3)
            A(f"v_lshlrev_b32 {vr(vT+3)}, 2, {vr(vT+3)}")
            A(f"s_lshl_b32 {sr(sT5)}, {sr(sB)}, 8")
            A(f"s_add_u32 {sr(sT5)}, {sr(sT5)}, {WS_FLAGS}")
            A(f"s_mov_b32 m0, {ENTRY}")
            A(f"s_cmp_eq_u32 {sr(sW)}, 3")
            A("s_cbranch_scc0 L_tabw0")
            A(f"buffer_load_dword {vr(vT+3)}, {sr(SRD_CUR[1],4)}, {sr(sT5)} offen sc1 lds")
            lab("L_tabw0")
        A("s_waitcnt vmcnt(0)")
        lab("L_tabw")
        A("s_waitcnt vmcnt(14)")
        A(f"v_bfe_u32 {vr(vT)}, {vr(vTab)}, 3, 2")
        for k, base in ((1, bkv), (2, bo), (3, bka)):
            A(f"v_cmp_eq_u32 vcc, {k}, {vr(vT)}")
            A(f"v_mov_b32 {vr(vT+2)}, {sr(base)}")
            A("s_nop 0")
            A(f"v_cndmask_b32 {vr(vT+1)}, {vr(vT+1)}, {vr(vT+2)}, vcc")
        c("projections that use the initial x take their k blocks in an order rotated by the batch")
        A(f"s_lshl_b32 {sr(sT5)}, {sr(sB)}, 20")
        A(f"s_cmp_eq_u32 {sr(sOrd)}, 1")
        A(f"s_cselect_b32 {sr(sT5)}, 0, {sr(sT5)}")
        A(f"v_and_b32 {vr(vT)}, 31, {vr(vTab)}")
        A(f"v_cmp_eq_u32 vcc, {T_WQ}, {vr(vT)}")
        A(f"v_add_u32 {vr(vT+2)}, {sr(sT5)}, {vr(vTab)}")
        A(f"s_mov_b32 {sr(sT5)}, 0x300000")
        A(f"v_bfi_b32 {vr(vT+2)}, {sr(sT5)}, {vr(vT+2)}, {vr(vTab)}")
        A(f"v_cndmask_b32 {vr(vTab)}, {vr(vTab)}, {vr(vT+2)}, vcc")
        A(f"s_lshl_b32 {sr(sT5)}, {sr(sB)}, 18")
        A(f"v_and_b32 {vr(vT)}, 7, {vr(vTab)}")
        A(f"v_cmp_eq_u32 vcc, {T_WQW}, {vr(vT)}")
        A(f"v_add_u32 {vr(vT+2)}, {sr(sT5)}, {vr(vTab)}")
        A(f"v_and_b32 {vr(vT+2)}, 0x3fffff, {vr(vT+2)}")
        A(f"v_cndmask_b32 {vr(vTab)}, {vr(vTab)}, {vr(vT+2)}, vcc")
        A(f"v_add_u32 {vr(vTab)}, {vr(vTab)}, {vr(vT+1)}")
        A(f"s_mov_b32 {sr(sIdx)}, 3")
        A(f"s_mov_b32 {sr(sC)}, 0")
        A(f"v_readlane_b32 {sr(sE)}, {vr(vTab)}, 3")

        def const(ty, hh, t, a_unit=False):
            if ty == T_WQ:
                return t * 128 * 8192 + hh * 256 + ty
            if ty == T_WQW:
                return t * 32 * 8192 + ty
            if ty in (T_K, T_V):
                return hh * 131072 + t * 32768 + ty + (24 if a_unit else 8)
            return (hh * 128 + 32 * t) * 1024 + ty + 16

        tb = [const(T_WQ, 0, t) for t in range(4)] + [const(T_K, 0, t) for t in range(4)]
        tb += [const(T_WQ, hh, t) for hh in (1, 2) for t in range(4)]
        tb += [const(ty, 0, t) for ty in (T_V, T_WO) for t in range(4)]
        tb += [const(ty, hh, t) for hh in (1, 2) for ty in (T_K, T_V, T_WO) for t in range(4)]
        for pos in (23, 35):
            tb[pos], tb[pos + 1] = tb[pos + 1], tb[pos]
        ta = [const(T_WQW, 0, t) for t in range(16)]
        ta += [const(ty, 0, t, True) for t in range(4) for ty in (T_K, T_V)]
        ta += [const(T_WO, hh, t) for hh in range(4) for t in range(4)]
        ta += [const(ty, 0, t) for ty in (T_WQ, T_K, T_V, T_WO) for t in range(4)]
        tc = ta[40:] + ta[:40]
        self.table = sum((t + [NULL_OFF] * (64 - len(t)) for t in (tb, ta, tc)), [])
        A(f"s_mov_b32 {sr(sScale)}, {f32(math.log2(math.e) / math.sqrt(128.0))}")
        A(f"s_mov_b32 {sr(sThr)}, 0x41000000")
        A(f"s_or_b32 {sr(sZero)}, {sr(sRole)}, 1")
        A(f"s_and_b32 {sr(sBlkEnd)}, {sr(sRole)}, 2")
        A(f"s_and_b32 {sr(sFix)}, {sr(sRole)}, 2")
        A(f"v_mov_b32 {vr(vT)}, {RELAY}")
        A(f"v_mov_b64 {vr(vT+2,2)}, 0")
        A(f"ds_write_b64 {vr(vT)}, {vr(vT+2,2)}")
        self.stamp(0)

        if opt.get("pads"):
            self.is_loader("L_padend")
            for w in range(3):
                A(f"s_cmp_eq_u32 {sr(sW)}, {w}")
                A(f"s_cbranch_scc1 L_pad{w}_0")
            A("s_branch L_pad3_0")
            lab("L_padend")
        if opt.get("dmaonly"):
            self.dma_only()
        A(f"s_mov_b32 {sr(sHook)}, 0")
        A(f"s_cmp_eq_u32 {sr(sOrd)}, 1")
        A("s_cbranch_scc1 L_apath")
        lab("L_q0")
        c("Q projection of the first B head (scaled by log2(e)/sqrt(128))")
        A(f"s_mov_b32 {sr(sLate)}, 2")
        A(f"s_call_b64 {sr(LINK_S,2)}, L_qproj")
        def q_write(src, blk):
            A(f"v_xor_b32 {vr(vT+6)}, 32, {vr(vQW)}")
            for m in range(2):
                for n in range(3):
                    A(f"ds_write_b64 {vr(vT+6 if m else vQW)}, {vr(src+(m*3+n)*2,2)} offset:{n*XN+blk*BLK}")

        self.is_loader("L_q0ld")
        q_write(vAcc, 4)
        allpf = {"q0": (sBwq, True, 0), "q2": (sBwq, True, 2), "q3": (sBwq, True, 3)}
        allpf.update({f"b{h}": (sBwo, False, h) for h in range(4)})
        allpf.update({f"a{h}": (sAwo, False, h) for h in range(4)})
        pick = lambda key, dflt: [allpf[x] for x in opt.get(key, dflt).split("+") if x]
        self.pick = pick
        self.pf_a = pick("pfa", "q0+b2+b3")
        A(f"s_cmp_eq_u32 {sr(sOrd)}, 1")
        A("s_cbranch_scc1 L_q0done")
        A(f"s_cmp_eq_u32 {sr(sOrd)}, 2")
        A("s_cbranch_scc1 L_pfc")
        self.weight_prefetch(pick("pfb", "q2+q3+b0+b1"))
        A("s_branch L_q0done")
        lab("L_pfc")
        if pick("pfc", "a0+a1+a2+a3"):
            self.weight_prefetch(pick("pfc", "a0+a1+a2+a3"), half=True)
        A("s_branch L_q0done")
        lab("L_q0ld")
        self.frag_addrs()
        lab("L_q0done")
        self.stamp(1)
        A("s_branch L_bpath")
        lab("L_apath")
        c("GQA group: four query heads sharing one K/V")
        self.is_loader("L_ct1")
        self.code_touch("L_qa_done", "L_attdone2", 4, 156)
        self.code_touch("L_r0first", "L_rb1", 2, 156)
        lab("L_ct1")
        A(f"s_mov_b32 {sr(sHook)}, 0")
        A(f"s_mov_b32 {sr(sBlk)}, {sr(sB)}")
        A(f"s_mov_b32 {sr(sBlkEnd)}, {3*BLK}")
        A(f"s_mov_b32 {sr(sLate)}, 3")
        A(f"s_call_b64 {sr(LINK_S,2)}, L_wide")
        c("wave c < 4 holds Q of head c; x is dead after the drain barrier")
        self.is_loader("L_qa_ld")
        A("s_barrier")
        A("s_waitcnt vmcnt(0)")
        self.code_refresh(vLq[1] + 2)
        self.code_touch("L_attdone2", "L_head", 2, vLq[1] + 2)
        A(f"s_mul_i32 {sr(sT0)}, {sr(sW)}, {BLK}")
        self.act_write_addr(sT0, None)
        A(f"v_mov_b32 {vr(vT+4)}, {sr(sScale)}")

        def qpack(jp):
            g = []
            for j in (2 * jp, 2 * jp + 1):
                g.append([f"v_xor_b32 {vr(vT+2+j%2)}, {j*32}, {vr(vT+1)}"])
                for n in range(3):
                    y = vY + (j * 3 + n) * 4
                    g += [[self.pkmul(y, vT + 4)], [self.pkmul(y + 2, vT + 4)],
                          [f"v_cvt_pk_bf16_f32 {vr(y)}, {vr(y)}, {vr(y+1)}"], [f"v_cvt_pk_bf16_f32 {vr(y+1)}, {vr(y+2)}, {vr(y+3)}"],
                          [f"ds_write_b64 {vr(vT+2+j%2)}, {vr(y,2)} offset:{n*XN}"]]
            return g

        self.wide_drain(qpack)
        A("s_branch L_qa_done")
        lab("L_qa_ld")
        self.head(8)
        for k in range(4):
            self.dma(k, 0, True, guard=False)
        lab("L_qa_done")
        self.stamp(7)
        c("wave = (head w>>1, key half w&1); O slot j holds d tile j ^ 4(w&1)")
        A(f"s_and_b32 {sr(sT0)}, {sr(sW)}, 1")
        A(f"s_lshl_b32 {sr(sT2)}, {sr(sT0)}, 14")
        A(f"s_lshl_b32 {sr(sT3)}, {sr(sT0)}, 7")
        A(f"s_lshl_b32 {sr(sT0)}, {sr(sT0)}, 10")
        A(f"s_lshr_b32 {sr(sT1)}, {sr(sW)}, 1")
        A(f"s_mul_i32 {sr(sBlk)}, {sr(sT1)}, {BLK}")
        A(f"s_lshl_b32 {sr(sT1)}, {sr(sT1)}, 13")
        A(f"s_add_u32 {sr(sT0)}, {sr(sT0)}, {sr(sT1)}")
        A(f"s_sub_u32 {sr(sT0)}, {sr(sT2)}, {sr(sT0)}")
        A(f"v_add_u32 {vr(vKa)}, {sr(sT0)}, {vr(vKb)}")
        A(f"v_xor_b32 {vr(vTRa)}, {sr(sT3)}, {vr(vTR0)}")
        A(f"v_add_u32 {vr(vTRa)}, {sr(sT2)}, {vr(vTRa)}")
        c("tiles alternate over four slots: the three ring slots and the activation region")
        sKs, sVs, sXa, sXb, sX, sEv = sQ[0], sQ[1], sQ[2], sQ[3], [sT1, sT2], sT0
        A(f"s_mov_b32 {sr(sKs)}, {sr(sC)}")
        self.weave([], self.rot())
        A(f"s_mov_b32 {sr(sVs)}, {sr(sC)}")
        self.weave([], self.rot())
        A(f"s_xor_b32 {sr(sXa)}, {sr(sKs)}, {sr(sC)}")
        A(f"s_xor_b32 {sr(sXb)}, {sr(sVs)}, {XB}")
        A(f"v_add_u32 {vr(vT)}, {sr(sKs)}, {vr(vKa)}")
        for s in range(1, 4):
            A(f"v_xor_b32 {vr(vT+s)}, {s*64}, {vr(vT)}")
        c("load parameters: set pv carries V tiles, set pk carries K tiles (waves 0-3: pv = 0, waves 4-7: pv = 1)")
        A(f"s_lshl_b32 {sr(sT3)}, {sr(sB)}, 3")
        A(f"s_add_u32 {sr(sT3)}, {sr(sT3)}, {sr(sG)}")
        A(f"s_lshl_b32 {sr(sT3)}, {sr(sT3)}, 17")
        A(f"s_lshl_b32 {sr(sT4)}, {sr(sW)}, 10")
        A(f"s_and_b32 {sr(sT5)}, {sr(sT4)}, 4096")
        A(f"s_add_u32 {sr(sT3)}, {sr(sT3)}, {sr(sT5)}")
        A(f"s_add_u32 {sr(sT5)}, {sr(sVs)}, {sr(sT4)}")
        A(f"s_add_u32 {sr(sT4)}, {sr(sC)}, {sr(sT4)}")
        self.weave([], self.rot())
        A(f"s_add_u32 {sr(sP0)}, {sr(sT3)}, {32768-8192}")
        A(f"s_add_u32 {sr(sP1)}, {sr(sT3)}, {65536-8192}")
        A(f"s_bitcmp1_b32 {sr(sW)}, 2")
        for q in range(2):
            lo = ("%s, %s" if q else "%s, %s")
            def sel(y, x):
                return (y, x) if q else (x, y)
            A(f"s_cselect_b64 {sr(SRD_CUR[q],2)}, " + ", ".join(sel(sr(SRD_V, 2), sr(SRD_K, 2))))
            A(f"s_mov_b32 {sr(SRD_CUR[q]+2)}, 16777216")
            A(f"s_cselect_b32 {sr(sOff[q])}, " + ", ".join(sel(sr(sP0), sr(sP1))))
            A(f"s_cselect_b32 {sr(sI[q])}, " + ", ".join(sel(sr(sT5), sr(sT4))))
            A(f"s_cselect_b32 {sr(sX[q])}, " + ", ".join(sel(sr(sXb), sr(sXa))))
            A(f"s_mov_b32 {sr(sStr[q])}, 8192")
            A(f"s_mov_b32 {sr(sTy[q])}, {T_K}")
            A(f"v_lshl_add_u32 {vr(vCur[q])}, {vr(vRow)}, 8, {vr(vChunk)}")
        A(f"s_mov_b32 {sr(sEv)}, 0")
        for n in range(3):
            self.zero(vNm[n], 4)
        A(f"s_mov_b32 {sr(sFix)}, 0")
        A(f"s_mov_b32 {sr(sIter)}, 4")

        def sa(sg, n, t):
            return vS + ((sg * 3 + n) * 2 + t) * 4

        def fa(f):
            return vAfA + (f % NFA) * 4

        def kread(f):
            j, s = f // 4, f % 4
            A(f"ds_read_b128 {vr(fa(f),4)}, {vr(vT+s)} offset:{(j//2)*8192+(j%2)*1024}")

        def sm_check(sg, lr, ln):
            f = [[x] for x in self.maxn(vDl, [sa(sg, 0, 0) + r for r in range(24)])]
            return f + [[f"v_cmp_lt_f32 vcc, {sr(sThr)}, {vr(vDl)}", f"s_cbranch_vccnz {lr}", ln + ":"]]

        def sm_exp(sg):
            f = []
            for n in range(3):
                b = sa(sg, n, 0)
                for r in range(8):
                    f.append([f"v_exp_f32 {vr(b+r)}, {vr(b+r)}"])
                    if r in (3, 5, 7):
                        f.append([f"v_cvt_pk_bf16_f32 {vr(b+(r-3)//2)}, {vr(b+r-3)}, {vr(b+r-2)}"])
                f.append(["s_nop 0", f"v_cvt_pk_bf16_f32 {vr(b+3)}, {vr(b+6)}, {vr(b+7)}"] if n == 2 else
                         [f"v_exp_f32 {vr(b+8)}, {vr(b+8)}", f"v_cvt_pk_bf16_f32 {vr(b+3)}, {vr(b+6)}, {vr(b+7)}"])
            out, skip = [], set()
            for n in (1, 2):
                skip.add(f"v_exp_f32 {vr(sa(sg,n,0))}, {vr(sa(sg,n,0))}")
            for g in f:
                if len(g) == 1 and g[0] in skip:
                    continue
                out.append(g)
            return out

        def aprep(q):
            l1, l2 = self.new("wo"), self.new("wb")
            self.cold += [l1 + ":",
                          f"  s_mov_b64 {sr(SRD_CUR[q],2)}, {sr(SRD_WO,2)}", f"  s_mov_b32 {sr(SRD_CUR[q]+2)}, 4194304",
                          f"  s_mov_b32 {sr(sStr[q])}, 256", f"  s_mov_b32 {sr(sTy[q])}, {T_WO}",
                          f"  v_lshl_add_u32 {vr(vCur[q])}, {vr(vRow)}, 10, {vr(vChunk)}",
                          f"  s_lshl_b32 {sr(sOff[q])}, {sr(sG)}, 4", f"  s_add_u32 {sr(sOff[q])}, {sr(sOff[q])}, {sr(sEv)}",
                          f"  s_sub_u32 {sr(sOff[q])}, {sr(sOff[q])}, 6", f"  s_lshl_b32 {sr(sOff[q])}, {sr(sOff[q])}, 15",
                          f"  s_and_b32 {sr(sP0)}, {sr(sW)}, 4", f"  s_lshl_b32 {sr(sP0)}, {sr(sP0)}, 12",
                          f"  s_add_u32 {sr(sOff[q])}, {sr(sOff[q])}, {sr(sP0)}",
                          f"  s_branch {l2}"]
            return [[f"s_xor_b32 {sr(sI[q])}, {sr(sI[q])}, {sr(sX[q])}"],
                    [f"s_add_u32 {sr(sEv)}, {sr(sEv)}, 1", f"s_cmp_ge_u32 {sr(sEv)}, 6", f"s_cbranch_scc1 {l1}", l2 + ":"]]

        def kstep(first):
            u = "f" if first else "l"
            self.early_head(8 if first else 4, lambda: [kread(f) for f in range(NFA)],
                            (lambda: self.load_bfrags_dyn(vLq[0], QA)) if first else None)
            self.ks(2)
            prim = []
            for f in range(16):
                j, s = f // 4, f % 4
                if s == 0:
                    prim.append(self.D1(j, 1, first))
                if f % 2 == 0:
                    prim.append(("w", [f"  s_waitcnt lgkmcnt({max(0, min(f + NFA, 16) - (f + 2))})"]))
                for n in range(3):
                    prim.append(self.M(sa(j // 2, n, j % 2), fa(f), QA[n * 4 + s], vNm[n] if s == 0 else None))
                if f + NFA < 16:
                    prim.append(("r", self.cap(kread, f + NFA)))
                if f == 7:
                    half = len(prim)
            zf = []
            if first:
                zf = [[f"v_mov_b32 {vr(vOne+k)}, 0x3f803f80"] for k in range(4)]
            self.weave(prim[:half], aprep(0) + [[f"s_xor_b32 {sr(sKs)}, {sr(sKs)}, {sr(sXa)}"]] + zf, per=1)
            self.ks()
            if opt.get("prio", 1) == 1:
                A("s_setprio 1")
            fill = [[f"s_branch L_r0first", "L_n0f:"]] if first else sm_check(0, "L_r0", "L_n0l")
            fill += sm_exp(0)
            self.weave(prim[half:], fill, per=opt.get('kper', 3), start=10)
            self.ks()
            A(f"s_cmp_eq_u32 {sr(sFix)}, 0")
            A(f"v_add_u32 {vr(vT)}, {sr(sVs)}, {vr(vTRa)}")
            A("s_nop 5")
            A(f"s_cbranch_scc0 L_r0b{u}")
            lab(f"L_n0b{u}")
            self.weave([], sm_check(1, f"L_r1{u}", f"L_n1{u}"))
            self.ks(13)

        def va(mt):
            return vT if mt == 0 else sa(0, (mt - 1) // 4, 0) + 4 + (mt - 1) % 4

        def vread(q):
            sg, mt = q // 8, q % 8
            if mt and not sg:
                A(f"v_xor_b32 {vr(va(mt))}, {mt*32}, {vr(vT)}")
            self.tr_pair(fa(q), va(mt), sg * 8192)

        c("waves 4-7 run one interval behind waves 0-3")
        A(f"s_bitcmp1_b32 {sr(sW)}, 2")
        A("s_cbranch_scc0 L_att0")
        if opt.get("prio", 1) == 2:
            A("s_setprio 1")
        self.weave([], aprep(1))
        self.load_bfrags_dyn(vLq[0], QA)
        lab("L_att0")
        def vstep(first):
            self.early_head(4, lambda: [vread(q) for q in range(NFA)])
            self.ks(4)
            prim = []
            for q in range(16):
                sg, mt = q // 8, q % 8
                z = 0 if (first and sg == 0) else None
                if q % 2 == 0 and q < 8:
                    prim.append(self.D1(q // 2, 0))
                if mt == 0:
                    for n in range(3):
                        prim.append(self.M(vLq[n], vOne, sa(sg, n, 0), z))
                if q % 2 == 0:
                    prim.append(("w", [f"  s_waitcnt lgkmcnt({2 * max(0, min(q + NFA, 16) - (q + 2))})"]))
                for n in range(3):
                    prim.append(self.M(vO + (mt * 3 + n) * 4, fa(q), sa(sg, n, 0), z))
                if q + NFA < 16:
                    prim.append(("r", self.cap(vread, q + NFA)))
                    lastr = len(prim)
                if q == 7:
                    half = len(prim)
            self.weave(prim[:half], sm_exp(1), per=opt.get('vper', 2))
            if opt.get("prio", 1) == 1:
                A("s_setprio 0")
            self.ks()
            if first:
                A("s_nop 1")
            else:
                A(f"s_cmp_eq_u32 {sr(sIter)}, 1")
                A("s_cbranch_scc1 L_attlast")
            fill = aprep(1) + [[f"s_xor_b32 {sr(sVs)}, {sr(sVs)}, {sr(sXb)}"]]
            fill.append((lastr - half, [f"v_add_u32 {vr(vT)}, {sr(sKs)}, {vr(vKa)}"]))
            for s in range(1, 4):
                fill.append([f"v_xor_b32 {vr(vT+s)}, {s*64}, {vr(vT)}"])
            self.weave(prim[half:], fill, per=1)
            self.stamp(13)
            return prim[half:]

        kstep(True)
        vstep(True)
        lab("L_attA")
        A(f"s_sub_u32 {sr(sIter)}, {sr(sIter)}, 1")
        kstep(False)
        tail = vstep(False)
        A("s_branch L_attA")
        lab("L_attlast")
        self.weave(tail, aprep(1), per=1)
        self.is_loader("L_attdone")
        self.head(None)
        for k in range(4):
            self.L += self.D1(k, 1)[1]
        self.code_refresh(QA[0])
        self.code_touch("L_head", "L_end", 5, QA[0])
        self.code_touch("L_reduce", "L_wide", 3, QA[0])
        A(f"s_cmp_eq_u32 {sr(sOrd)}, 1")
        A("s_cbranch_scc0 L_nopfa")
        if self.pf_a:
            self.weight_prefetch(self.pf_a, half=True, dst=QA[0])
        lab("L_nopfa")
        A(f"v_mov_b32 {vr(vNm[1]+1)}, {vr(vNm[0])}")
        self.frag_addrs()
        A("s_branch L_attdone2")
        lab("L_attdone")
        A(f"v_mov_b32 {vr(vNm[1]+1)}, {vr(vNm[0])}")
        lab("L_attdone2")
        nmr = [vNm[1] + 1, vNm[1], vNm[2]]
        A("s_setprio 0")
        A(f"s_cmp_eq_u32 {sr(sOrd)}, 1")
        A(f"s_cselect_b32 {sr(sIdx)}, {IDX_AFTER_ATT[0]}, {IDX_AFTER_ATT[1]}")
        A(f"v_readlane_b32 {sr(sE)}, {vr(vTab)}, {sr(sIdx)}")
        self.stamp(8)
        c("merge the two key halves of each head")
        self.srd(SRD_K, sBk, 67108864)
        self.srd(SRD_V, sBv, 67108864)
        self.lane(vT + 3)
        A(f"v_and_b32 {vr(vT)}, 15, {vr(vT+3)}")
        A(f"v_lshlrev_b32 {vr(vT)}, 3, {vr(vT)}")
        A(f"s_mul_i32 {sr(sT0)}, {sr(sW)}, 384")
        A(f"s_add_u32 {sr(sT0)}, {sr(sT0)}, {ST}")
        A(f"v_add_u32 {vr(vT+1)}, {sr(sT0)}, {vr(vT)}")
        A(f"s_xor_b32 {sr(sT1)}, {sr(sW)}, 1")
        A(f"s_mul_i32 {sr(sT0)}, {sr(sT1)}, 384")
        A(f"s_add_u32 {sr(sT0)}, {sr(sT0)}, {ST}")
        A(f"v_add_u32 {vr(vT+2)}, {sr(sT0)}, {vr(vT)}")
        for n in range(3):
            A(f"v_mov_b32 {vr(vLq[n]+1)}, {vr(nmr[n])}")
            A(f"ds_write_b64 {vr(vT+1)}, {vr(vLq[n],2)} offset:{n*128}")
        self.head(None)
        for n in range(3):
            A(f"ds_read_b64 {vr(vAfA+8+2*n,2)}, {vr(vT+2)} offset:{n*128}")
        A(f"s_mul_i32 {sr(sT0)}, {sr(sW)}, 6144")
        A(f"s_add_u32 {sr(sT0)}, {sr(sT0)}, {XB}")
        A(f"s_mul_i32 {sr(sT1)}, {sr(sT1)}, 6144")
        A(f"s_add_u32 {sr(sT1)}, {sr(sT1)}, {XB}")
        A(f"v_lshlrev_b32 {vr(vT)}, 4, {vr(vT+3)}")
        A(f"v_add_u32 {vr(vT+1)}, {sr(sT0)}, {vr(vT)}")
        A(f"v_add_u32 {vr(vT+2)}, {sr(sT1)}, {vr(vT)}")
        A("s_waitcnt lgkmcnt(0)")
        fr = [vAfA + 2 * n for n in range(3)]
        for n in range(3):
            lo, mo = vAfA + 8 + 2 * n, vAfA + 9 + 2 * n
            m, f, fo = vAfA + 16 + n, fr[n], fr[n] + 1
            A(f"v_min_f32 {vr(m)}, {vr(nmr[n])}, {vr(mo)}")
            A(f"v_sub_f32 {vr(f)}, {vr(m)}, {vr(nmr[n])}")
            A(f"v_sub_f32 {vr(fo)}, {vr(m)}, {vr(mo)}")
            A(f"v_exp_f32 {vr(f)}, {vr(f)}")
            A(f"v_exp_f32 {vr(fo)}, {vr(fo)}")
            A("s_nop 0")
            A(f"v_mul_f32 {vr(m)}, {vr(f)}, {vr(vLq[n])}")
            A(f"v_fma_f32 {vr(m)}, {vr(fo)}, {vr(lo)}, {vr(m)}")
            A(f"v_rcp_f32 {vr(m)}, {vr(m)}")
            A("s_nop 0")
            A(f"v_mul_f32 {vr(f)}, {vr(f)}, {vr(m)}")
        c("slots 4-7 go to the partner wave, scaled and packed to bf16")
        for k in range(24):
            o = vO + 48 + 2 * k
            A(self.pkmul(o, fr[(k // 2) % 3]))
        for k in range(24):
            o = vO + 48 + 2 * k
            A(f"v_cvt_pk_bf16_f32 {vr(vS+k)}, {vr(o)}, {vr(o+1)}")
            if k % 4 == 3:
                A(f"ds_write_b128 {vr(vT+1)}, {vr(vS+k-3,4)} offset:{(k//4)*1024}")
        A(f"s_and_b32 {sr(sT0)}, {sr(sW)}, 1")
        A(f"s_lshl_b32 {sr(sT0)}, {sr(sT0)}, 3")
        A(f"s_mov_b32 {sr(sT2)}, 0xffff0000")
        self.head(None)
        for k in range(6):
            A(f"ds_read_b128 {vr(vS+24+4*k,4)}, {vr(vT+2)} offset:{k*1024}")
        self.act_write_addr(sBlk, sT0)
        c("own share of the first Wo tiles must be in; the warm-up loads behind them need not")
        self.is_loader("L_mw0")
        A(f"s_cmp_eq_u32 {sr(sOrd)}, 1")
        A("s_cbranch_scc0 L_mw0")
        A(f"s_waitcnt vmcnt({4*len(self.pf_a)})")
        A("s_branch L_mw2")
        lab("L_mw0")
        A("s_waitcnt vmcnt(0)")
        lab("L_mw2")
        self.head(None)
        for jj in range(4):
            if jj:
                A(f"v_xor_b32 {vr(vT+3)}, {jj*32}, {vr(vT+1)}")
            for n in range(3):
                k = (jj * 3 + n) * 2
                for h in range(2):
                    x = vS + 2 * h
                    A(f"v_lshlrev_b32 {vr(x)}, 16, {vr(vS+24+k+h)}")
                    A(f"v_and_b32 {vr(x+1)}, {sr(sT2)}, {vr(vS+24+k+h)}")
                    A(f"v_pk_fma_f32 {vr(x,2)}, {vr(vO+2*(k+h),2)}, {vr(fr[n],2)}, {vr(x,2)} op_sel_hi:[1,0,1]")
                    A(f"v_cvt_pk_bf16_f32 {vr(vS+4+(k+h)%8)}, {vr(x)}, {vr(x+1)}")
                A(f"ds_write_b64 {vr(vT+3 if jj else vT+1)}, {vr(vS+4+k%8,2)} offset:{n*XN}")
        A(f"s_mov_b32 {sr(sZero)}, 1")
        c("the loaders stream the B-branch x into the blocks the projection has finished with")
        self.srd(SRD_AUX, sBx, 786432)
        self.is_loader("L_xs")
        A("s_branch L_xs2")
        lab("L_xs")
        self.x_setup(vY)
        lab("L_xs2")
        A(f"s_and_b32 {sr(sHook)}, {sr(sOrd)}, 1")
        A(f"s_mov_b32 {sr(sLate)}, {sr(sOrd)}")
        self.stamp(9)
        A(f"s_mov_b32 {sr(sBlk)}, 0")
        A(f"s_call_b64 {sr(LINK_S,2)}, L_wide")
        A(f"s_lshl_b32 {sr(sT0)}, {sr(sB)}, 3")
        A(f"s_add_u32 {sr(sT0)}, {sr(sT0)}, {sr(sG)}")
        A(f"s_mul_i32 {sr(sT0)}, {sr(sT0)}, {PART}")
        A(f"s_add_u32 {sr(sT0)}, {sr(sT0)}, {PART_A_BASE}")
        A(f"s_cmp_eq_u32 {sr(sOrd)}, 2")
        A("s_cbranch_scc1 L_last")
        self.is_loader("L_apk")
        A("s_barrier")
        A("s_waitcnt vmcnt(0)")
        self.pack_y(False, True)
        lab("L_apk")
        self.srd(SRD_WO, sBwo, 4194304)
        A(f"s_mov_b32 {sr(sZero)}, 1")
        self.stamp(10)
        A(f"s_mov_b32 {sr(sHook)}, 0")
        A("s_branch L_q0")
        lab("L_bpath")
        A(f"s_mov_b32 {sr(sK0x)}, 0")
        A(f"s_lshl_b32 {sr(sQKi)}, {sr(sOrd)}, 3")
        A(f"s_lshr_b32 {sr(sQKi)}, {hex(6 | 46 << 8 | 6 << 16)}, {sr(sQKi)}")
        A(f"s_and_b32 {sr(sQKi)}, {sr(sQKi)}, 0xff")
        A(f"s_mov_b32 {sr(sBlk)}, {4*BLK}")

        lab("L_head")
        c("scores of one B head; waves 0-3 join the loading here and first decode the pending tile")
        self.is_loader("L_qk_sync")
        self.code_refresh(156)
        self.code_touch("L_bdone", "L_end", 2, 156)
        self.code_touch("L_reduce", "L_qproj", 2, 156)
        for hd, key, dflt in ((2, "pfb2", ""), (1, "pfb3", "")):
            items = self.pick(key, dflt)
            if items:
                l = self.new("pf")
                A(f"s_lshl_b32 {sr(sT0)}, {sr(sRole)}, 2")
                A(f"s_or_b32 {sr(sT0)}, {sr(sT0)}, {sr(sHead)}")
                A(f"s_cmp_eq_u32 {sr(sT0)}, {hd}")
                A(f"s_cbranch_scc0 {l}")
                self.weight_prefetch(items)
                lab(l)
        A(f"s_mov_b32 {sr(sIdx)}, {sr(sQKi)}")
        A(f"v_readlane_b32 {sr(sE)}, {vr(vTab)}, {sr(sQKi)}")
        A(f"s_sub_u32 {sr(sI[0])}, {sr(sC)}, {TILE}")
        A(f"s_cselect_b32 {sr(sI[0])}, {(NSLOT-1)*TILE}, {sr(sI[0])}")
        A(f"s_add_u32 {sr(sI[0])}, {sr(sI[0])}, {sr(sW1024)}")
        self.weave([], self.prep(0, False))
        lab("L_qk_sync")
        A(f"s_add_u32 {sr(sQKi)}, {sr(sQKi)}, 12")
        A(f"s_max_u32 {sr(sQKi)}, {sr(sQKi)}, 27")
        A(f"s_cmp_eq_u32 {sr(sK0x)}, 0")
        A(f"s_cselect_b32 {sr(sT0)}, {sr(sC)}, {XK}")
        A(f"v_add_u32 {vr(vT)}, {sr(sT0)}, {vr(vKb)}")
        for s in range(1, 4):
            A(f"v_xor_b32 {vr(vT+s)}, {s*64}, {vr(vT)}")
        rf = [vQs + 12, vQs + 14, vQs + 16]
        sm = [vQs + 18, vQs + 20, vQs + 22]

        def st(t, n):
            return vS + (t * 3 + n) * 4

        def b_sub(t):
            return [[f"v_pk_add_f32 {vr(st(t,n)+r,2)}, {vr(st(t,n)+r,2)}, {vr(rf[n],2)} op_sel_hi:[1,0] neg_lo:[0,1] neg_hi:[0,1]"]
                    for n in range(3) for r in (0, 2)]

        def b_check(t):
            f = [[x] for x in self.maxn(vT + 5, [st(t, 0) + r for r in range(12)])]
            return f + [[f"v_cmp_lt_f32 vcc, {sr(sThr)}, {vr(vT+5)}", f"s_cbranch_vccnz L_rb{t}", f"L_nb{t}:"]]

        def b_exp(t):
            f = [[f"v_exp_f32 {vr(st(t,0)+r)}, {vr(st(t,0)+r)}"] for r in range(12)]
            for n in range(3):
                b = st(t, n)
                f.append([f"v_cvt_pk_bf16_f32 {vr(b)}, {vr(b)}, {vr(b+1)}"])
                f.append([f"v_cvt_pk_bf16_f32 {vr(b+1)}, {vr(b+2)}, {vr(b+3)}"])
            return f

        def p_write(t):
            return [f"ds_write_b64 {vr(vPW)}, {vr(st(t,n),2)} offset:{n*XN+t*BLK}" for n in range(3)]

        def p_early(t):
            l = self.new("pe")
            return [(99, [f"s_cmp_eq_u32 {sr(sHead)}, 3", f"s_cbranch_scc1 {l}"] + p_write(t) + [l + ":"])]

        def b_max0():
            f = []
            for n in range(3):
                f += [[x] for x in self.maxn(sm[0] + n, [st(0, n) + r for r in range(4)])]
            f.append([x.strip() for x in self.cap(self.reduce4, sm[0], "v_max_f32")])
            f.append([f"ds_write_b32 {vr(vSTw)}, {vr(sm[0])}"])
            return f

        def b_ref0():
            f = [[f"v_max_f32 {vr(rf[n])}, {vr(rf[n])}, {vr(rf[n]+1)}" for n in range(3)]]
            for sw in ("v_permlane32_swap_b32", "v_permlane16_swap_b32"):
                f.append([f"v_mov_b32 {vr(rf[n]+1)}, {vr(rf[n])}" for n in range(3)] + ["s_nop 1"] +
                         [f"{sw} {vr(rf[n])}, {vr(rf[n]+1)}" for n in range(3)] + ["s_nop 1"] +
                         [f"v_max_f32 {vr(rf[n])}, {vr(rf[n])}, {vr(rf[n]+1)}" for n in range(3)])
            return f

        for T in range(4):
            p = T % 2
            if opt.get("qst"):
                self.stamp(18)
            if T < 2:
                l1, l2 = self.new("h"), self.new("h")
                A(f"s_cmp_eq_u32 {sr(sK0x)}, 0")
                A(f"s_cbranch_scc1 {l1}")
                A(f"s_waitcnt vmcnt({(16, 12)[T]}) lgkmcnt(0)")
                A(f"s_branch {l2}")
                lab(l1)
                A(f"s_waitcnt vmcnt({(8, 4)[T]}) lgkmcnt(0)")
                lab(l2)
                A("s_barrier")
                if opt.get("allsteps") == 1:
                    self.stamp(14)
            else:
                self.head(4)
            if T == 1:
                for n in range(3):
                    A(f"ds_read_b64 {vr(rf[n],2)}, {vr(vT+5)} offset:{n*512}")
            if T == 0:
                self.load_bfrags_dyn(vKf, QF)
            for s in range(4):
                A(f"ds_read_b128 {vr(vKf+4*s,4)}, {vr(vT+s)}")
            nxt = self.prep(1 - p)
            if T == 0:
                l = self.new("np")
                nxt = [[f"s_cmp_eq_u32 {sr(sK0x)}, 0", f"s_cbranch_scc0 {l}"]] + nxt + [[l + ":"]]
            if T < 3:
                nxt.append([f"v_add_u32 {vr(vT+4)}, {sr(sC)}, {vr(vKb)}"])
                nxt += [[f"v_xor_b32 {vr(vT+s)}, {s*64}, {vr(vT+4)}"] for s in range(4)]
            self.weave([], nxt)
            if opt.get("qst"):
                self.stamp(16)
            if T == 0:
                A(f"v_mov_b32 {vr(vT+5)}, {FLAG}")
                A(f"v_mov_b32 {vr(vT+6)}, 0")
            prim = []
            for s in range(4):
                prim.append(("w", [f"  s_waitcnt lgkmcnt({3-s})"]))
                for n in range(3):
                    prim.append(self.M(st(T, n), vKf + 4 * s, QF[n * 4 + s], 0 if s == 0 else None))
            fill = []
            if T == 1:
                fill = b_ref0() + b_sub(0) + b_exp(0) + p_early(0)
            if T >= 2:
                fill = b_sub(T - 1) + b_check(T - 1) + b_exp(T - 1) + p_early(T - 1)
            self.weave(prim, fill, per=3)
            if T == 0:
                A(f"ds_write_b32 {vr(vT+5)}, {vr(vT+6)}")
                self.lane(vT + 5)
                A(f"v_lshrrev_b32 {vr(vT+5)}, 4, {vr(vT+5)}")
                A(f"v_lshl_add_u32 {vr(vT+5)}, {vr(vT+5)}, 3, {vr(vSTr)}")
                A("s_nop 4")
                self.weave([], b_max0())
            if opt.get("qst"):
                self.stamp(17)
            if T < 3:
                self.split_dma(p, True if T < 2 else None, sK0x if T == 1 else None)
        self.stamp(2)
        c("last score tile; a wave that had to raise its reference left a flag")
        A(f"v_mov_b32 {vr(vT+4)}, {FLAG}")
        A("s_nop 6")
        self.split_dma(1, None)
        self.weave([], b_sub(3) + b_check(3) + b_exp(3))
        self.bsm = (rf, sm, st, p_write)
        A(f"s_and_b32 {sr(sK0x)}, {sr(sHead)}, 2")
        A(f"s_lshl_b32 {sr(sHook)}, {sr(sK0x)}, 1")
        A(f"s_mov_b32 {sr(sBlkEnd)}, 0")
        A(f"s_mov_b32 {sr(sFix)}, 0")
        A(f"s_cmp_eq_u32 {sr(sHead)}, 3")
        A("s_cbranch_scc1 L_first")
        self.emit(p_write(3))
        A(f"s_mov_b32 {sr(sLate)}, 0")
        self.head(4)
        self.stamp(3)
        A(f"s_bitcmp1_b32 {sr(sW)}, 2")
        A("s_cbranch_scc0 L_pv_body")
        A(f"ds_read_b32 {vr(vT+5)}, {vr(vT+4)}")
        A("s_waitcnt lgkmcnt(0)")
        A(f"v_cmp_ne_u32 vcc, 0, {vr(vT+5)}")
        A("s_cbranch_vccz L_ld_ok")
        A(f"s_call_b64 {sr(LINK_S,2)}, L_bfix")
        lab("L_ld_ok")
        for k in range(4):
            self.dma(k, 0, True, False)
        A(f"s_mov_b32 {sr(sT4)}, 0")
        A(f"s_call_b64 {sr(LINK_S,2)}, L_load2")
        A("s_branch L_pv_done")
        lab("L_first")
        c("B role, first head: remaining Q projections while x is still live")
        self.head(None)
        A(f"ds_read_b32 {vr(vT+5)}, {vr(vT+4)}")
        A("s_waitcnt lgkmcnt(0)")
        A(f"v_cmp_ne_u32 vcc, 0, {vr(vT+5)}")
        A("s_cbranch_vccz L_f_ok")
        A(f"s_call_b64 {sr(LINK_S,2)}, L_bfix")
        lab("L_f_ok")
        A(f"s_mov_b32 {sr(sHook)}, 0")
        self.is_loader("L_f_ld")
        A("s_waitcnt vmcnt(0)")
        A("s_branch L_f_go")
        lab("L_f_ld")
        for k in range(4):
            self.dma(k, 0, False, guard=False)
        A("s_waitcnt vmcnt(12)")
        lab("L_f_go")
        for k in range(2):
            A(f"s_mov_b32 {sr(sLate)}, {2*k}")
            A(f"s_call_b64 {sr(LINK_S,2)}, L_qproj")
            for r in range(0, 12, 2):
                A(f"v_mov_b64 {vr(vQs+12*k+r,2)}, {vr(vAcc+r,2)}")
        A("s_barrier")
        self.stamp(12)
        for t in range(4):
            self.emit(p_write(t))
        A(f"s_mov_b32 {sr(sFix)}, 1")
        A(f"s_mov_b32 {sr(sLate)}, 0")
        A(f"s_mov_b32 {sr(sHook)}, 4")
        A(f"v_mov_b32 {vr(vT+4)}, {FLAG}")
        self.head(8)
        self.is_loader("L_ld_ok")
        c("P x V")
        vOn = vY - 16
        pre2 = [x.strip() for x in self.cap(q_write, vQs, 0)]
        ex2 = [[f"v_mov_b64 {vr(vQs+r,2)}, {vr(vQs+12+r,2)}"] for r in range(0, 12, 2)]
        chk = [f"  v_cmp_ne_u32 vcc, 0, {vr(vT+5)}", f"  s_cbranch_vccnz L_pv_fix", "L_pv_go:"]
        chk += [f"  v_mov_b32 {vr(vOn+k)}, 0x3f803f80" for k in range(4)] + ["  s_nop 1"]
        self.cold += ["L_pv_fix:", f"  s_cmp_eq_u32 {sr(sFix)}, 0", "  s_cbranch_scc0 L_pv_go",
                      f"  s_call_b64 {sr(LINK_S,2)}, L_bfix", "  s_branch L_pv_body"]
        self.narrow(pre={0: [f"ds_read_b32 {vr(vT+5)}, {vr(vT+4)}"], 2: pre2},
                    extra={2: ex2}, early=True, body="L_pv_body", check=chk, ones=vOn, vm1=0)
        mreg = [vOn + 4 + 4 * n for n in range(3)]
        A("s_nop 7")
        for n in range(3):
            A(f"v_rcp_f32 {vr(mreg[n])}, {vr(mreg[n])}")
        for k in range(6):
            a = vAcc + 4 * k
            A(self.pkmul(a, mreg[k % 3]))
            A(self.pkmul(a + 2, mreg[k % 3]))
            A(f"v_cvt_pk_bf16_f32 {vr(vAcc+2*k)}, {vr(a)}, {vr(a+1)}")
            A(f"v_cvt_pk_bf16_f32 {vr(vAcc+2*k+1)}, {vr(a+2)}, {vr(a+3)}")
        q_write(vAcc, 4)
        lab("L_pv_done")
        self.stamp(4)
        c("output projection")
        A(f"s_mov_b32 {sr(sHook)}, 0")
        A(f"s_sub_u32 {sr(sHead)}, {sr(sHead)}, 1")
        A(f"s_mov_b32 {sr(sLate)}, 2")
        A(f"s_cmp_eq_u32 {sr(sOrd)}, 2")
        A("s_cbranch_scc0 L_ob")
        A(f"s_mov_b32 {sr(sLate)}, 1")
        A(f"s_mov_b32 {sr(sHook)}, 2")
        self.srd(SRD_K, sAk, 16777216)
        self.srd(SRD_V, sAv, 16777216)
        self.srd(SRD_AUX, sAx, 786432)
        lab("L_ob")
        A(f"s_mov_b32 {sr(sBlk)}, 16")
        A(f"s_call_b64 {sr(LINK_S,2)}, L_wide")
        self.stamp(5)
        A(f"s_mov_b32 {sr(sBlk)}, 0")
        A(f"s_cmp_eq_u32 {sr(sHead)}, 0")
        A("s_cbranch_scc1 L_bdone")
        self.is_loader("L_head")
        self.wide_drain()
        A("s_branch L_head")
        lab("L_bdone")
        c("store the B-branch partial")
        A(f"s_lshl_b32 {sr(sT0)}, {sr(sB)}, 4")
        A(f"s_lshl_b32 {sr(sT1)}, {sr(sRole)}, 3")
        A(f"s_add_u32 {sr(sT0)}, {sr(sT0)}, {sr(sT1)}")
        A(f"s_add_u32 {sr(sT0)}, {sr(sT0)}, {sr(sG)}")
        A(f"s_mul_i32 {sr(sT0)}, {sr(sT0)}, {PART}")
        A(f"s_cmp_eq_u32 {sr(sOrd)}, 2")
        A("s_cbranch_scc0 L_last")
        self.is_loader("L_bpk2")
        A("s_barrier")
        self.pack_y(False, True)
        lab("L_bpk2")
        self.srd(SRD_WO, sAwo, 4194304)
        A(f"s_mov_b32 {sr(sZero)}, 1")
        self.stamp(6)
        A("s_branch L_apath")
        lab("L_last")
        self.stamp(16)
        self.is_loader("L_bpk")
        self.pack_y(False, True)
        self.stamp(6)
        if self.fuse:
            self.publish()
        A("s_branch L_fin")
        lab("L_bpk")
        if self.fuse:
            c("waves 4-6 sum one 1 KiB block each of this workgroup's slice of the output")
            A(f"s_cmp_eq_u32 {sr(sW)}, 7")
            A("s_cbranch_scc1 L_fin")
            self.stamp(8)
            self.reduce_setup()
            A(f"s_lshl_b32 {sr(rKb)}, {sr(sRole)}, 3")
            A(f"s_add_u32 {sr(rKb)}, {sr(rKb)}, {sr(sG)}")
            A(f"s_mul_i32 {sr(rKb)}, {sr(rKb)}, 3")
            A(f"s_add_u32 {sr(rKb)}, {sr(rKb)}, {sr(sW)}")
            A(f"s_sub_u32 {sr(rKb)}, {sr(rKb)}, 4")
            A(f"s_sub_u32 {sr(rMode)}, {sr(sW)}, 4")
            A(f"s_min_u32 {sr(rMode)}, {sr(rMode)}, 1")
            A(f"s_call_b64 {sr(LINK_S,2)}, L_reduce")
        lab("L_fin")
        if opt.get("dbg"):
            A("s_waitcnt vmcnt(0)")
            A("s_memrealtime s[76:77]")
            A("s_memtime s[68:69]")
            A("s_waitcnt lgkmcnt(0)")
            A("s_sub_u32 s68, s68, s78")
            A("v_mov_b32 v16, v23")
            A("v_mov_b32 v17, s76")
            A("v_mov_b32 v18, s68")
            A("s_getreg_b32 s69, hwreg(HW_REG_XCC_ID)")
            A("v_mov_b32 v19, s69")
            A("s_lshl_b32 s70, s2, 4")
            A("s_add_u32 s70, s70, 0x4000000")
            A("v_mov_b32 v21, s70")
            A(f"s_cmp_eq_u32 s3, {4 if self.fuse else 0}")
            A("s_cbranch_scc0 L_end")
            A("s_mov_b64 exec, 1")
            A("global_store_dwordx4 v21, v[16:19], s[54:55]")
        if opt.get("stamps"):
            A("s_waitcnt vmcnt(0)")
            self.stamp(11)
            self.srd(SRD_AUX, sWs, 268435456)
            A(f"s_lshl_b32 {sr(sT0)}, s2, 3")
            A(f"s_add_u32 {sr(sT0)}, {sr(sT0)}, {sr(sW)}")
            A(f"s_lshl_b32 {sr(sT0)}, {sr(sT0)}, 8")
            A(f"s_add_u32 {sr(sT0)}, {sr(sT0)}, {64*1024*1024}")
            self.lane(vT)
            A(f"v_lshlrev_b32 {vr(vT)}, 2, {vr(vT)}")
            A(f"buffer_store_dword {vr(23)}, {vr(vT)}, {sr(SRD_AUX,4)}, {sr(sT0)} offen")
        lab("L_end")
        A("s_endpgm")

        sc = vLq[0] + 1

        def sub_delta(sg):
            for n in range(3):
                for r in range(8):
                    b = sa(sg, n, 0) + r
                    A(f"v_sub_f32 {vr(b)}, {vr(b)}, {vr(vDl+n)}")

        def allmax(sg):
            for n in range(3):
                self.emit(self.maxn(vDl + n, [sa(sg, n, 0) + r for r in range(8)]))
                for sw in ("v_permlane32_swap_b32", "v_permlane16_swap_b32"):
                    A(f"v_mov_b32 {vr(sc)}, {vr(vDl+n)}")
                    A("s_nop 1")
                    A(f"{sw} {vr(vDl+n)}, {vr(sc)}")
                    A("s_nop 1")
                    A(f"v_max_f32 {vr(vDl+n)}, {vr(vDl+n)}, {vr(sc)}")

        def scale_state(with_p0):
            for n in range(3):
                A(f"v_max_f32 {vr(vDl+n)}, 0, {vr(vDl+n)}")
                A(f"v_exp_f32 {vr(sc)}, -{vr(vDl+n)}")
                A("s_nop 0")
                A(f"v_mul_f32 {vr(vLq[n])}, {vr(vLq[n])}, {vr(sc)}")
                for mt in range(8):
                    for r in range(4):
                        o = vO + (mt * 3 + n) * 4 + r
                        A(f"v_mul_f32 {vr(o)}, {vr(o)}, {vr(sc)}")
                if with_p0:
                    b = sa(0, n, 0)
                    for r in range(4):
                        A(f"v_lshlrev_b32 {vr(b+4)}, 16, {vr(b+r)}")
                        A(f"v_and_b32 {vr(b+5)}, 0xffff0000, {vr(b+r)}")
                        A(f"v_mul_f32 {vr(b+4)}, {vr(b+4)}, {vr(sc)}")
                        A(f"v_mul_f32 {vr(b+5)}, {vr(b+5)}, {vr(sc)}")
                        A(f"v_cvt_pk_bf16_f32 {vr(b+r)}, {vr(b+4)}, {vr(b+5)}")

        lab("L_r0first")
        allmax(0)
        sub_delta(0)
        A(f"s_mov_b32 {sr(sFix)}, 1")
        A("s_branch L_n0f")
        lab("L_r0")
        allmax(0)
        scale_state(False)
        sub_delta(0)
        A(f"s_mov_b32 {sr(sFix)}, 1")
        A("s_branch L_n0l")
        for u in "fl":
            lab(f"L_r0b{u}")
            A(f"s_call_b64 {sr(LINK_S,2)}, L_fix1")
            A(f"s_branch L_n0b{u}")
            lab(f"L_r1{u}")
            A(f"s_call_b64 {sr(LINK_S,2)}, L_scale1")
            A(f"s_branch L_n1{u}")
        lab("L_scale1")
        allmax(1)
        scale_state(True)
        lab("L_fix1")
        sub_delta(1)
        for n in range(3):
            for r in range(4):
                A(f"v_sub_f32 {vr(vNm[n]+r)}, {vr(vNm[n]+r)}, {vr(vDl+n)}")
        A(f"s_mov_b32 {sr(sFix)}, 0")
        A(f"s_setpc_b64 {sr(LINK_S,2)}")

        self.L += self.cold
        rf, sm, st, p_write = self.bsm

        def repack(regs, f, lo, hi):
            for r in regs:
                A(f"v_lshlrev_b32 {vr(lo)}, 16, {vr(r)}")
                A(f"v_and_b32 {vr(hi)}, 0xffff0000, {vr(r)}")
                A(f"v_mul_f32 {vr(lo)}, {vr(lo)}, {vr(f)}")
                A(f"v_mul_f32 {vr(hi)}, {vr(hi)}, {vr(f)}")
                A(f"v_cvt_pk_bf16_f32 {vr(r)}, {vr(lo)}, {vr(hi)}")

        for t in range(1, 4):
            lab(f"L_rb{t}")
            d, f = vT + 5, vT + 6
            for n in range(3):
                self.emit(self.maxn(d, [st(t, n) + r for r in range(4)]))
                for sw in ("v_permlane32_swap_b32", "v_permlane16_swap_b32"):
                    A(f"v_mov_b32 {vr(f)}, {vr(d)}")
                    A("s_nop 1")
                    A(f"{sw} {vr(d)}, {vr(f)}")
                    A("s_nop 1")
                    A(f"v_max_f32 {vr(d)}, {vr(d)}, {vr(f)}")
                A(f"v_max_f32 {vr(d)}, 0, {vr(d)}")
                A(f"v_exp_f32 {vr(f)}, -{vr(d)}")
                A(f"v_add_f32 {vr(rf[n])}, {vr(rf[n])}, {vr(d)}")
                for r in range(4):
                    A(f"v_sub_f32 {vr(st(t,n)+r)}, {vr(st(t,n)+r)}, {vr(d)}")
                repack([st(u, n) + k for u in range(t) for k in range(2)], f, st(0, n) + 2, st(0, n) + 3)
            A(f"s_lshl_b32 {sr(sT0)}, {sr(sW)}, 2")
            A(f"v_add_u32 {vr(d)}, {sr(sT0)}, {vr(vSTr)}")
            for n in range(3):
                A(f"ds_write_b32 {vr(d)}, {vr(rf[n])} offset:{n*512}")
            A(f"v_mov_b32 {vr(d)}, {FLAG}")
            A(f"v_mov_b32 {vr(f)}, 1")
            A(f"ds_write_b32 {vr(d)}, {vr(f)}")
            A(f"s_branch L_nb{t}")
        lab("L_bfix")
        A("s_waitcnt lgkmcnt(0)")
        for n in range(3):
            A(f"ds_read_b128 {vr(vFr,4)}, {vr(vSTr)} offset:{n*512}")
            A(f"ds_read_b128 {vr(vFr+4,4)}, {vr(vSTr)} offset:{n*512+16}")
            A("s_waitcnt lgkmcnt(0)")
            self.emit(self.maxn(rf[n] + 1, [rf[n]] + [vFr + r for r in range(8)]))
            A(f"v_sub_f32 {vr(rf[n])}, {vr(rf[n])}, {vr(rf[n]+1)}")
            A(f"v_exp_f32 {vr(rf[n])}, {vr(rf[n])}")
            A("s_nop 0")
            repack([st(u, n) + k for u in range(4) for k in range(2)], rf[n], st(0, n) + 2, st(0, n) + 3)
        A(f"s_mov_b32 {sr(sFix)}, 1")
        A(f"s_cmp_eq_u32 {sr(sHead)}, 3")
        A("s_cbranch_scc1 L_bfix_ret")
        A("s_barrier")
        for t in range(4):
            self.emit(p_write(t))
        self.head(None)
        lab("L_bfix_ret")
        A(f"s_setpc_b64 {sr(LINK_S,2)}")

        if self.fuse:
            self.reduce_sub()
        lab("L_qproj")
        A(f"s_mov_b32 {sr(sBlkEnd)}, 0")
        self.is_loader("L_load")
        self.narrow()
        A(f"v_mov_b32 {vr(vT)}, {sr(sScale)}")
        A("s_nop 6")
        for k in range(6):
            a = vAcc + 4 * k
            A(self.pkmul(a, vT))
            A(self.pkmul(a + 2, vT))
            A(f"v_cvt_pk_bf16_f32 {vr(vAcc+2*k)}, {vr(a)}, {vr(a+1)}")
            A(f"v_cvt_pk_bf16_f32 {vr(vAcc+2*k+1)}, {vr(a+2)}, {vr(a+3)}")
        A(f"s_setpc_b64 {sr(LINK_S,2)}")

        def af(j, p):
            return vFr + 4 * (j + 2 * p if j >= 6 else j)

        def wb(n, p):
            return vAcc + (p * 3 + n) * 4

        def wide_rd(j, p):
            a = vT + 1 + (j % 2)
            A(f"v_xor_b32 {vr(a)}, {j*32}, {vr(vT+3+3*p)}")
            self.tr_pair(af(j, p), a, 0)

        def wide_addr(t):
            return [[f"s_add_u32 {sr(sT0)}, {sr(sC)}, {sr(sT1)}"],
                    [f"v_add_u32 {vr(vT+3+3*(t%2))}, {sr(sT0)}, {vr(vTR0)}"],
                    [f"s_and_b32 {sr(sT3)}, {sr(sBlk)}, 3"], [f"s_lshl_b32 {sr(sT3)}, {sr(sT3)}, 6"],
                    [f"s_lshr_b32 {sr(sT5)}, {sr(sBlk)}, 2"], [f"s_mul_i32 {sr(sT5)}, {sr(sT5)}, {BLK}"],
                    [f"v_xor_b32 {vr(vT+5)}, {sr(sT3)}, {vr(vXB)}"], [f"v_add_u32 {vr(vT+5)}, {sr(sT5)}, {vr(vT+5)}"]]

        def wide_step(t, pending, reads=True, zero=False):
            p = t % 2
            if reads:
                self.head(None)
            else:
                A("s_waitcnt lgkmcnt(0)")
            prim = []
            for j in range(8):
                if pending and not opt.get("nomfma"):
                    for n in range(3):
                        prim.append(self.M(vY + (j * 3 + n) * 4, af(j, 1 - p), wb(n, 1 - p), 0 if zero else None))
                if reads and not opt.get("nords"):
                    if j == 0:
                        prim.append(("r", [f"  ds_read_b128 {vr(wb(n,p),4)}, {vr(vT+5)} offset:{n*XN}" for n in range(3)]))
                    if j < 6:
                        prim.append(("r", self.cap(wide_rd, j, p)))
                    if j < 2:
                        prim.append(("r", self.cap(wide_rd, 6 + j, p)))
            fill = []
            if reads:
                fill = self.rot()
                if t == 3:
                    fill.append([f"s_add_u32 {sr(sT4)}, {sr(sT4)}, {BLK}"])
                fill += [[f"s_add_u32 {sr(sBlk)}, {sr(sBlk)}, 1"], [f"s_and_b32 {sr(sBlk)}, {sr(sBlk)}, {sr(sT2)}"]]
                fill += wide_addr((t + 1) % 4)
            self.weave(prim, fill, per=1, start=5)

        lab("L_wide")
        self.is_loader("L_load")
        A(f"s_lshl_b32 {sr(sT1)}, {sr(sW)}, 13")
        A(f"s_mov_b32 {sr(sT4)}, 0")
        A(f"s_cmp_eq_u32 {sr(sBlkEnd)}, 0")
        A(f"s_cselect_b32 {sr(sT2)}, 31, 15")
        self.weave([], wide_addr(0))
        wide_step(0, False)
        A(f"s_cmp_eq_u32 {sr(sZero)}, 0")
        A("s_cbranch_scc1 L_wide_loop")
        A(f"s_mov_b32 {sr(sZero)}, 0")
        wide_step(1, True, zero=True)
        A("s_branch L_wide_s2")
        lab("L_wide_loop")
        wide_step(1, True)
        lab("L_wide_s2")
        wide_step(2, True)
        wide_step(3, True)
        A(f"s_cmp_gt_u32 {sr(sT4)}, {sr(sBlkEnd)}")
        A("s_cbranch_scc1 L_wide_drain")
        wide_step(0, True)
        A("s_branch L_wide_loop")
        lab("L_wide_drain")
        A("s_waitcnt lgkmcnt(0)")
        A(f"s_setpc_b64 {sr(LINK_S,2)}")

        def ld_step(p, vm, prep=True, xblk=None):
            self.head(vm)
            l1, l2 = self.new("kv"), self.new("dd")
            variants = [self.wf] if self.kvf == self.wf else [self.wf, self.kvf]
            if len(variants) > 1:
                A(f"s_bitcmp1_b32 6, {sr(sTy[p])}")
                A(f"s_cbranch_scc1 {l1}")
            for vi, fl in enumerate(variants):
                if vi:
                    A(f"s_branch {l2}")
                    lab(l1)
                prim = []
                for k in range(8):
                    ins = [f"  s_add_u32 m0, {sr(sI[p])}, {k*4096}"]
                    if k % 2:
                        ins.append(f"  s_add_u32 {sr(sOff2)}, {sr(sOff[p])}, {sr(sHalf[p])}")
                    elif k:
                        ins.append(f"  s_add_u32 {sr(sOff[p])}, {sr(sOff[p])}, {sr(sStr[p])}")
                    else:
                        ins.append("  s_nop 0")
                    ins.append(f"  buffer_load_dwordx4 {vr(vCur[p])}, {sr(SRD_CUR[p],4)}, {sr(sOff2 if k % 2 else sOff[p])} offen{fl} lds")
                    if vi and k == 6:
                        ins = self.ev() + ins
                    prim.append(("m", ins))
                self.weave(prim, self.prep(1 - p) if prep else [], per=2)
            lab(l2)
            if xblk is not None:
                l3 = self.new("hk")
                A(f"s_cmp_eq_u32 {sr(sHook)}, 1")
                A(f"s_cbranch_scc0 {l3}")
                self.x_block(vY, 0)
                A(f"s_add_u32 {sr(sT1)}, {sr(sT1)}, 256")
                A(f"s_add_u32 {sr(sT2)}, {sr(sT2)}, {BLK}")
                lab(l3)

        lab("L_load")
        A(f"s_mov_b32 {sr(sT4)}, 0")
        A(f"s_cmp_eq_u32 {sr(sIdx)}, 3")
        A("s_cbranch_scc0 L_load1")
        self.head(3)
        self.first_tile(1)
        self.x_rot(vY, 2)
        self.first_tile(2)
        if not opt.get("x3late", 1):
            self.x_rot(vY, 3)
        else:
            A(f"s_add_u32 {sr(sP0)}, {sr(sOff2)}, 3")
            A(f"s_and_b32 {sr(sP0)}, {sr(sP0)}, 3")
            A(f"s_cmp_eq_u32 {sr(sOrd)}, 1")
            A(f"s_cselect_b32 {sr(sP1)}, {sr(sP0)}, 3")
            A(f"s_mul_i32 {sr(sP1)}, {sr(sP1)}, {BLK}")
            A(f"s_add_u32 {sr(sT2)}, {sr(sP1)}, {sr(sHalf[1])}")
            A(f"s_lshl_b32 {sr(sP0)}, {sr(sP0)}, 8")
            A(f"s_add_u32 {sr(sT1)}, {sr(sP0)}, {sr(sHalf[0])}")
        A("s_branch L_load2")
        lab("L_load1")
        self.head(16)
        lab("L_load2")
        self.weave([], self.prep(1))
        lab("L_ldloop")
        ld_step(1, 8)
        if opt.get("x3late", 1):
            A(f"s_cmp_eq_u32 {sr(sIdx)}, 5")
            A("s_cbranch_scc0 L_ldh1")
            self.x_block(vY, 0)
            lab("L_ldh1")
        A(f"s_cmp_eq_u32 {sr(sHook)}, 2")
        A("s_cbranch_scc0 L_ldh2")
        self.x_setup(vY)
        self.x_rot(vY, 0, True)
        self.x_rot(vY, 1, True)
        lab("L_ldh2")
        ld_step(0, 8)
        A(f"s_cmp_eq_u32 {sr(sLate)}, 3")
        A("s_cbranch_scc0 L_ld3")
        A(f"s_cmp_eq_u32 {sr(sT4)}, {sr(sBlkEnd)}")
        A("s_cbranch_scc0 L_ld3")
        self.head(8)
        self.weave([], self.prep(0))
        A("s_barrier")
        for k in range(4):
            self.dma(k, 1, True, guard=False)
        A(f"s_setpc_b64 {sr(LINK_S,2)}")
        lab("L_ld3")
        ld_step(1, 8)
        A(f"s_add_u32 {sr(sT4)}, {sr(sT4)}, {BLK}")
        A(f"s_cmp_gt_u32 {sr(sT4)}, {sr(sBlkEnd)}")
        A("s_cbranch_scc1 L_lddrain")
        ld_step(0, 8, xblk=0)
        A("s_branch L_ldloop")
        lab("L_lddrain")
        A(f"s_cmp_eq_u32 {sr(sLate)}, 2")
        A("s_cbranch_scc1 L_ldret")
        ld_step(0, None, prep=False, xblk=3)
        A(f"s_cmp_eq_u32 {sr(sHook)}, 4")
        A("s_cbranch_scc0 L_ldh3")
        self.weave([], self.prep(1, False))
        A(f"s_add_u32 {sr(sI[1])}, {sr(sW1024)}, {XK}")
        for k in range(4):
            self.dma(k, 1, True, guard=False)
        lab("L_ldh3")
        A(f"s_cmp_eq_u32 {sr(sHook)}, 2")
        A("s_cbranch_scc0 L_ldret")
        self.x_rot(vY, 2, True)
        self.x_rot(vY, 3, True)
        lab("L_ldret")
        A(f"s_setpc_b64 {sr(LINK_S,2)}")

    def reduce_kernel(self):
        A, lab = self.A, self.lab
        K2 = "reduce_partials_kernel"
        self.L += [f".globl {K2}", ".p2align 8", f".type {K2},@function"]
        lab(K2)
        A("s_cmp_ge_u32 s2, 384")
        A("s_cbranch_scc1 L_r_end")
        A("s_load_dwordx2 s[4:5], s[0:1], 80")
        A("s_load_dwordx2 s[6:7], s[0:1], 96")
        if self.opt.get("dbg") == 2:
            A("s_cmp_eq_u32 s2, 0")
            A("s_cbranch_scc0 L_r_nod")
            A("s_load_dwordx2 s[26:27], s[0:1], 88")
            A("s_memrealtime s[28:29]")
            A("s_waitcnt lgkmcnt(0)")
            A("v_lshlrev_b32 v1, 4, v0")
            A("v_add_u32 v1, 0x4000000, v1")
            A("global_load_dwordx4 v[8:11], v1, s[6:7]")
            A("s_waitcnt vmcnt(0)")
            A("v_not_b32 v12, v8")
            A("v_sub_u32 v13, v9, v8")
            A("v_mov_b32 v14, 0")
            A("v_lshrrev_b32 v15, 7, v0")
            A("v_lshlrev_b32 v15, 3, v15")
            A("v_mov_b32 v7, s28")
            A("global_atomic_umax v14, v12, s[26:27]")
            A("global_atomic_umax v14, v9, s[26:27] offset:4")
            A("global_atomic_umax v15, v13, s[26:27] offset:8")
            A("global_atomic_umax v15, v10, s[26:27] offset:12")
            A("global_atomic_umax v14, v8, s[26:27] offset:24")
            A("global_atomic_umax v14, v7, s[26:27] offset:28")
            lab("L_r_nod")
        A("s_mul_i32 s3, s2, 43691")
        A("s_lshr_b32 s3, s3, 19")
        A("s_mul_i32 s16, s3, 12")
        A("s_sub_u32 s16, s2, s16")
        A("s_and_b32 s17, s3, 15")
        A("s_lshr_b32 s18, s3, 4")
        A("s_lshl_b32 s19, s16, 12")
        A("v_lshlrev_b32 v2, 4, v0")
        A("v_add_u32 v2, s19, v2")
        A("s_mul_i32 s23, s16, 86")
        A("s_lshr_b32 s23, s23, 8")
        A("s_mul_i32 s24, s23, 3")
        A("s_sub_u32 s24, s16, s24")
        A("s_lshl_b32 s24, s24, 15")
        A("s_lshl_b32 s23, s23, 8")
        A("s_add_u32 s24, s24, s23")
        A("v_and_b32 v6, 15, v0")
        A("v_lshlrev_b32 v6, 11, v6")
        A("v_lshrrev_b32 v7, 6, v0")
        A("v_lshl_add_u32 v6, v7, 6, v6")
        A("v_bfe_u32 v7, v0, 4, 1")
        A("v_lshl_add_u32 v6, v7, 5, v6")
        A("v_bfe_u32 v7, v0, 5, 1")
        A("v_lshl_add_u32 v6, v7, 4, v6")
        A("s_waitcnt lgkmcnt(0)")
        A("s_mov_b32 s8, s4"); A("s_mov_b32 s9, s5"); A("s_mov_b32 s10, 1572864"); A("s_mov_b32 s11, 0x20000")
        A("s_mov_b32 s12, s6"); A("s_mov_b32 s13, s7"); A("s_mov_b32 s14, 268435456"); A("s_mov_b32 s15, 0x20000")
        A("s_mul_i32 s20, s17, 98304")
        A("s_add_u32 s20, s20, s24")
        A("s_mov_b32 s22, 0xffff0000")
        A("s_cmp_eq_u32 s18, 1")
        A("s_cbranch_scc1 L_r_A")

        def body(np_):
            for p in range(np_):
                A(f"buffer_load_dwordx4 v[{16+4*p}:{19+4*p}], v2, s[12:15], s21 offen" + self.opt.get("rdflag", ""))
                if p + 1 < np_:
                    A(f"s_add_u32 s21, s21, {PART}")
            for p in range(np_):
                A(f"s_waitcnt vmcnt({np_-1-p})")
                for k in range(4):
                    r = 16 + 4 * p + k
                    if p == 0:
                        A(f"v_lshlrev_b32 v{8+2*k}, 16, v{r}")
                        A(f"v_and_b32 v{9+2*k}, s22, v{r}")
                    else:
                        A(f"v_lshlrev_b32 v4, 16, v{r}")
                        A(f"v_and_b32 v5, s22, v{r}")
                        A(f"v_pk_add_f32 v[{8+2*k}:{9+2*k}], v[{8+2*k}:{9+2*k}], v[4:5]")

        A(f"s_mul_i32 s21, s17, {16*PART}")
        A("s_add_u32 s20, s20, 1024")
        body(16)
        A("s_branch L_r_st")
        lab("L_r_A")
        A(f"s_mul_i32 s21, s17, {8*PART}")
        A(f"s_add_u32 s21, s21, {PART_A_BASE}")
        body(8)
        lab("L_r_st")
        for k in range(4):
            A(f"v_cvt_pk_bf16_f32 v{16+k}, v{8+2*k}, v{9+2*k}")
        A("buffer_store_dwordx4 v[16:19], v6, s[8:11], s20 offen" + self.opt.get("outflag", ""))
        if self.opt.get("dbg"):
            A("s_waitcnt vmcnt(0)")
            A("s_memrealtime s[28:29]")
            A("s_waitcnt lgkmcnt(0)")
            A("v_mov_b32 v16, s28")
            A("s_lshl_b32 s30, s2, 2")
            A("s_add_u32 s30, s30, 0x4100000")
            A("v_mov_b32 v17, s30")
            A("v_cmp_eq_u32 vcc, 0, v0")
            A("s_and_saveexec_b64 s[26:27], vcc")
            A("s_cbranch_execz L_r_end")
            A("global_store_dword v17, v16, s[6:7]")
        lab("L_r_end")
        A("s_endpgm")

    def desc(self, name, nv, ns):
        self.L += [".p2align 6", f".amdhsa_kernel {name}", f"  .amdhsa_next_free_vgpr {nv}",
                   f"  .amdhsa_next_free_sgpr {ns}", f"  .amdhsa_accum_offset {nv}",
                   "  .amdhsa_group_segment_fixed_size 0", "  .amdhsa_kernarg_size 104",
                   "  .amdhsa_user_sgpr_count 2", "  .amdhsa_user_sgpr_kernarg_segment_ptr 1",
                   "  .amdhsa_system_sgpr_workgroup_id_x 1", ".end_amdhsa_kernel"]

    def place_pads(self):
        want = self.opt["pads"].split("+") if isinstance(self.opt["pads"], str) else None
        spots = []
        for i, l in enumerate(self.L):
            if l.endswith(":") and not l.startswith(" "):
                j = i - 1
                while self.L[j].strip().startswith(";"):
                    j -= 1
                prev = self.L[j].strip()
                if prev.startswith(("s_branch", "s_setpc", "s_endpgm")) and l[:-1] in PAD_TARGETS:
                    spots.append(i)
        chains = [spots[w::4] for w in range(4)]
        name = {}
        for w, ch in enumerate(chains):
            for k, i in enumerate(ch):
                name[i] = (f"L_pad{w}_{k}", f"L_pad{w}_{k+1}" if k + 1 < len(ch) else "L_padend")
        out = []
        for i, l in enumerate(self.L):
            if i in name:
                out += [name[i][0] + ":"] + ["  s_nop 0"] * self.opt.get("padnop", 0) + [f"  s_branch {name[i][1]}"]
            out.append(l)
        self.L = out

    def table_data(self):
        self.L += [".p2align 2", ".type L_table,@object"]
        self.lab("L_table")
        for k in range(0, 192, 8):
            self.A(".long " + ", ".join(hex(x) for x in self.table[k:k+8]))

    def build(self):
        K1 = NAME + "_kernel"
        if self.fuse:
            head = HEADER + f"; @launch grid=(256,1,1) block=(512,1,1) lds={LDS_BYTES}\n"
        else:
            head = HEADER + f"; @launch kernel={K1} grid=(256,1,1) block=(512,1,1) lds={LDS_BYTES}\n"
            head += "; @launch kernel=reduce_partials_kernel grid=(384,1,1) block=(256,1,1) lds=0\n"
        self.L += ['.amdgcn_target "amdgcn-amd-amdhsa--gfx950"', ".text"]
        self.main_kernel()
        if not self.fuse:
            self.reduce_kernel()
        if self.opt.get("pads"):
            self.place_pads()
        self.table_data()
        self.L += ['.section .rodata,"a"']
        self.desc(K1, 256, 102)
        if not self.fuse:
            self.desc("reduce_partials_kernel", 80, 32)
        return head + "\n".join(self.L) + "\n"


def gen(**opt):
    return G(opt).build()


if __name__ == "__main__":
    out = sys.argv[1] if len(sys.argv) > 1 else f"cdna_kernels/{NAME}.s"
    opt = {}
    for a in sys.argv[2:]:
        k, v = a.split("=", 1)
        opt[k] = int(v) if v.lstrip("-").isdigit() else v
    open(out, "w").write(gen(**opt))
    print("wrote", out)
```

```python
import sys, math, struct

NAME = "concat_heads__gqa_block_cached__mha_block_cached__near_ridge"

HEADER = """; Kernarg layout for this problem (104 bytes, ptrs only, base s[0:1]):
"""

TILE = 32768
NSLOT = 3
XB = NSLOT * TILE
XROW = 256
XN = 16 * XROW
BLK = 48 * XROW
XK = XB + BLK
ST = XB + 5 * BLK
FLAG = ST + 3072
RELAY = FLAG + 8
STORED = FLAG + 12
ENTRY = FLAG + 256
WS_FLAGS = 32 * 1024 * 1024
FULL = 0xffffff
POLL_LIMIT = 2000
LDS_BYTES = 163840
PART = 49152
PART_A_BASE = 16 * 16 * PART
NULL_OFF = 0x40000000
IDX_AFTER_ATT = (27, 43)

T_WQ, T_K, T_V, T_WO, T_WQW = 0, 1, 2, 3, 4
ROWSH = [13, 8, 8, 10, 13]
SLABSH = [18, 13, 13, 8, 8]

sW, sC, sIdx, sE = 3, 4, 6, 7
SRD_WQ, SRD_K, SRD_V, SRD_WO, SRD_WQW, SRD_AUX = 8, 12, 16, 20, 24, 28
sAx, sAk, sAv, sAwq, sAwo = 32, 34, 36, 38, 40
sP0, sP1 = 42, 43
sBx, sBk, sBv, sBwq, sBwo = 44, 46, 48, 50, 52
sWs = 54
sB, sG, sRole, sHead, _unused, sScale, sW1024, sBlk, sThr, sIter = 56, 57, 58, 59, 60, 61, 62, 63, 64, 65
sT0, sT1, sT2, sT3, sT4, sT5 = 66, 67, 68, 69, 70, 71
sBlkEnd = 75
sStamp = 76
sFix = 79
sQKi = 99
sOrd = 60
sThrot = 100
sHook = 101
sK0x, sPendOff = 98, 70
sLate = 65
sZero = 91
SRD_CUR = [80, 84]
sOff, sTy, sStr, sI, sHalf = [72, 94], [73, 95], [74, 96], [5, 97], [88, 89]
sOff2 = 90
LINK_S = 92

rOut, rWs, rDbg, rKb, rMode, rF, rDone, rNew, rCnt, rOffB, rOffA, rOffO, rAb, rK = 8, 12, 16, 18, 19, 20, 21, 22, 23, 24, 25, 26, 27, 28

vTab, vRow, vChunk, vTRw, vTR0, vKb = 1, 2, 3, 5, 6, 7
vCur = [4, 0]
vXB = 8
vQW, vPW, vSTw, vSTr = 12, 13, 14, 15
vT = 16
vAcc = 24
vQs = 48
vFr = 72
vS = 112
vY = 160
QF = [24, 28, 32, 36, 40, 44, 72, 76, 80, 84, 88, 92]
vKf = 96
vKa, vTRa = 5, 7
vNm = [12, 56, 60]
vDl = 20
vOne = 8
vLq = [44, 48, 52]
NFA = 5
vO = 160
vAfA = 24
QA = [64 + 4 * k for k in range(12)]
sQ = [98, 99, 100, 101]


def vr(a, n=1):
    return f"v{a}" if n == 1 else f"v[{a}:{a+n-1}]"


def sr(a, n=1):
    return f"s{a}" if n == 1 else f"s[{a}:{a+n-1}]"


def f32(x):
    return hex(struct.unpack('<I', struct.pack('<f', x))[0])


PAD_TARGETS = {"L_apath", "L_qa_ld", "L_attlast", "L_bpath", "L_first", "L_pv_ld", "L_last", "L_bpk", "L_r0first", "L_r0bf",
               "L_scale1", "L_reduce", "L_qproj", "L_wide", "L_load", "L_load1", "L_ld3", "L_q0ld", "L_pfc", "L_wide_loop",
               "L_wide_drain", "L_lddrain", "L_attdone", "L_bdone", "L_f_ld", "L_mw0", "L_xs", "L_rd_lds"}


class G:
    def __init__(self, opt):
        self.L = []
        self.opt = opt
        self.uid = 0
        self.cold = []
        self.touches = []
        self.fuse = opt.get("fuse", 1)
        if self.fuse:
            opt.setdefault("stflag", " sc1")
        self.kvf = opt.get("kvflag", " nt")
        self.wf = opt.get("wflag", "")

    def A(self, s):
        self.L.append("  " + s)

    def lab(self, s):
        self.L.append(s + ":")

    def c(self, s):
        self.L.append("  ; " + s)

    def new(self, p):
        self.uid += 1
        return f"L_{p}{self.uid}"

    def mfma(self, d, a, b, c=None):
        cs = "0" if c == 0 else vr(d if c is None else c, 4)
        self.A(f"v_mfma_f32_16x16x32_bf16 {vr(d,4)}, {vr(a,4)}, {vr(b,4)}, {cs}")

    def M(self, d, a, b, c=None):
        return ("m", self.cap(self.mfma, d, a, b, c))

    def lane(self, v):
        self.A(f"v_mbcnt_lo_u32_b32 {vr(v)}, -1, 0")
        self.A(f"v_mbcnt_hi_u32_b32 {vr(v)}, -1, {vr(v)}")

    def rot(self):
        return [[f"s_add_u32 {sr(sC)}, {sr(sC)}, {TILE}"],
                [f"s_cmp_eq_u32 {sr(sC)}, {NSLOT*TILE}", f"s_cselect_b32 {sr(sC)}, 0, {sr(sC)}"]]

    def prep(self, p, slots=True):
        k1 = sum(v << (5 * i) for i, v in enumerate(ROWSH))
        k2 = sum(v << (5 * i) for i, v in enumerate(SLABSH))
        pre = [[f"s_add_u32 {sr(sI[p])}, {sr(sC)}, {sr(sW1024)}"]] + self.rot() if slots else []
        return pre + [
            [f"s_and_b32 {sr(sOff[p])}, {sr(sE)}, 0xffffff00"],
            [f"s_and_b32 {sr(sTy[p])}, {sr(sE)}, 7"],
            [f"s_add_u32 {sr(sIdx)}, {sr(sIdx)}, 1"],
            [f"s_lshl_b32 m0, {sr(sTy[p])}, 2", f"s_mul_i32 {sr(sP0)}, {sr(sTy[p])}, 5",
             f"s_movrels_b64 {sr(SRD_CUR[p],2)}, {sr(SRD_WQ,2)}", f"s_movrels_b32 {sr(SRD_CUR[p]+2)}, {sr(SRD_WQ+2)}"],
            [f"v_readlane_b32 {sr(sE)}, {vr(vTab)}, {sr(sIdx)}"],
            [f"s_lshr_b32 {sr(sP1)}, {hex(k1)}, {sr(sP0)}"],
            [f"s_lshr_b32 {sr(sP0)}, {hex(k2)}, {sr(sP0)}"],
            [f"v_lshl_add_u32 {vr(vCur[p])}, {vr(vRow)}, {sr(sP1)}, {vr(vChunk)}"],
            [f"s_lshl_b32 {sr(sStr[p])}, 1, {sr(sP0)}"],
            [f"s_lshl_b32 {sr(sHalf[p])}, 16, {sr(sP1)}"],
        ]

    def weave(self, prim, fill, per=2, start=0):
        fill = list(fill)
        for idx, (kind, ins) in enumerate(prim):
            self.L += ins
            if kind == "m" and idx >= start:
                k = 0
                while fill and k < per:
                    f = fill[0]
                    if isinstance(f, tuple):
                        if f[0] > idx:
                            break
                        f = f[1]
                    self.emit(f)
                    fill.pop(0)
                    k += 1
        for f in fill:
            self.emit(f[1] if isinstance(f, tuple) else f)

    def emit(self, f):
        for x in f:
            if x.endswith(":"):
                self.L.append(x)
            else:
                self.A(x)

    def cap(self, fn, *a, **k):
        keep, self.L = self.L, []
        fn(*a, **k)
        out, self.L = self.L, keep
        return out

    def head(self, vm):
        self.A("s_waitcnt " + (f"vmcnt({vm}) " if vm is not None else "") + "lgkmcnt(0)")
        if self.opt.get("allsteps") == 2:
            self.stamp(15)
        self.A("s_barrier")
        if self.opt.get("allsteps") == 1:
            self.stamp(14)

    def early_head(self, vm, reads, xonly=None):
        if not self.opt.get("early", 1):
            self.head(vm)
            if xonly:
                l = self.new("x")
                self.is_loader(l)
                xonly()
                self.lab(l)
            reads()
            return
        ly, ld = self.new("ey"), self.new("ed")
        self.is_loader(ly)
        self.head(vm)
        if xonly:
            xonly()
        reads()
        self.A(f"s_branch {ld}")
        self.lab(ly)
        self.A("s_waitcnt lgkmcnt(0)")
        reads()
        self.A(f"s_waitcnt vmcnt({vm})")
        self.A("s_barrier")
        self.lab(ld)

    def dma(self, k, p, kv, guard=True, who=sW):
        A = self.A
        skip = self.new("sk")
        if guard:
            A(f"s_bitcmp1_b32 {sr(who)}, 2")
            A(f"s_cbranch_scc0 {skip}")
        if k:
            A(f"s_add_u32 {sr(sOff[p])}, {sr(sOff[p])}, {sr(sStr[p])}")
        A(f"s_add_u32 m0, {sr(sI[p])}, {k*8192}")
        A(f"s_add_u32 {sr(sOff2)}, {sr(sOff[p])}, {sr(sHalf[p])}")

        def pair(fl):
            if k == 3 and fl == self.kvf and self.opt.get("evst"):
                self.L += self.ev()
                A(f"s_add_u32 m0, {sr(sI[p])}, {k*8192}")
                A("s_nop 0")
            A(f"buffer_load_dwordx4 {vr(vCur[p])}, {sr(SRD_CUR[p],4)}, {sr(sOff[p])} offen{fl} lds")
            A("s_add_u32 m0, m0, 4096")
            A("s_nop 0")
            A(f"buffer_load_dwordx4 {vr(vCur[p])}, {sr(SRD_CUR[p],4)}, {sr(sOff2)} offen{fl} lds")

        if self.kvf == self.wf:
            kv = False
        if kv is not None:
            pair(self.kvf if kv else self.wf)
        else:
            l1 = self.new("kv")
            A(f"s_bitcmp1_b32 6, {sr(sTy[p])}")
            A(f"s_cbranch_scc1 {l1}")
            pair(self.wf)
            A(f"s_branch {skip}")
            self.lab(l1)
            pair(self.kvf)
        self.lab(skip)

    def tile_dma(self, p, kv, who):
        A = self.A
        skip, l1 = self.new("sk"), self.new("kv")
        A(f"s_bitcmp1_b32 {sr(who)}, 2")
        A(f"s_cbranch_scc0 {skip}")
        if kv is None and self.kvf != self.wf:
            A(f"s_bitcmp1_b32 6, {sr(sTy[p])}")
            A(f"s_cbranch_scc1 {l1}")
            for k in range(4):
                self.dma(k, p, False, guard=False)
            A(f"s_branch {skip}")
            self.lab(l1)
        for k in range(4):
            self.dma(k, p, True if kv is None else kv, guard=False)
        self.lab(skip)

    def split_dma(self, p, kv, skip_reg=None):
        A = self.A
        skip, l1 = self.new("sk"), self.new("kv")
        if skip_reg is not None:
            A(f"s_cmp_eq_u32 {sr(skip_reg)}, 0")
            A(f"s_cbranch_scc0 {skip}")
        A(f"s_bitcmp1_b32 {sr(sW)}, 2")
        A(f"s_cselect_b32 {sr(sOff2)}, {sr(sHalf[p])}, 0")
        A(f"s_cselect_b32 {sr(sP0)}, 4096, 0")
        A(f"s_add_u32 {sr(sOff2)}, {sr(sOff2)}, {sr(sOff[p])}")
        A(f"s_add_u32 {sr(sP0)}, {sr(sP0)}, {sr(sI[p])}")

        def four(fl):
            for k in range(4):
                A(f"s_add_u32 m0, {sr(sP0)}, {k*8192}")
                A(f"s_add_u32 {sr(sOff2)}, {sr(sOff2)}, {sr(sStr[p])}" if k else "s_nop 0")
                A(f"buffer_load_dwordx4 {vr(vCur[p])}, {sr(SRD_CUR[p],4)}, {sr(sOff2)} offen{fl} lds")
                if k == 3 and fl == self.kvf:
                    self.L += self.ev()

        if kv is None and self.kvf != self.wf:
            A(f"s_bitcmp1_b32 6, {sr(sTy[p])}")
            A(f"s_cbranch_scc1 {l1}")
            four(self.wf)
            A(f"s_branch {skip}")
            self.lab(l1)
        four(self.kvf)
        self.lab(skip)

    def D1(self, k, p, guard=False):
        l1, l2 = self.new("w"), self.new("d")
        ld = f"  buffer_load_dwordx4 {vr(vCur[p])}, {sr(SRD_CUR[p],4)}, {sr(sOff[p])} offen"
        ins = [f"  s_bitcmp1_b32 {sr(sW)}, 2", f"  s_cbranch_scc0 {l2}"] if guard else []
        ins.append(f"  s_add_u32 m0, {sr(sI[p])}, {k*8192}")
        adv = f"  s_add_u32 {sr(sOff[p])}, {sr(sOff[p])}, {sr(sStr[p])}"
        ins += [f"  s_bitcmp1_b32 6, {sr(sTy[p])}", f"  s_cbranch_scc0 {l1}", adv, f"{ld}{self.kvf} lds"]
        if k == 3:
            ins += self.ev()
        self.cold += [l1 + ":"] + ([adv] if k else []) + [f"{ld}{self.wf} lds", f"  s_branch {l2}"]
        return ("d", ins + [l2 + ":"])

    def D(self, k, p, kv, who=sW):
        return ("d", self.cap(self.dma, k, p, kv, True, who))

    def tr_pair(self, dst, addr, off):
        self.A(f"ds_read_b64_tr_b16 {vr(dst,2)}, {vr(addr)} offset:{off}")
        self.A(f"ds_read_b64_tr_b16 {vr(dst+2,2)}, {vr(addr)} offset:{off+1024}")

    def narrow(self, pre=None, extra=None, early=None, body=None, check=None, ones=None, vm1=None):
        A = self.A

        def fr(st, k):
            return vFr + (st * 5 + k) * 4

        def reads(T, s):
            p = T % 2
            for m in range(2):
                self.tr_pair(fr(s % 2, m), vT + 2 * p + m, s * 8192)
            for n in range(3):
                A(f"ds_read_b128 {vr(fr(s%2,2+n),4)}, {vr(vXB+s)} offset:{n*XN+T*BLK}")

        def addr(p):
            return [[f"v_add_u32 {vr(vT+2*p)}, {sr(sC)}, {vr(vTRw)}"], [f"v_xor_b32 {vr(vT+2*p+1)}, 32, {vr(vT+2*p)}"]]

        def mf(s, zero=False):
            out = [self.M(vAcc + (m * 3 + n) * 4, fr(s % 2, m), fr(s % 2, 2 + n), 0 if zero else None)
                   for m in range(2) for n in range(3)]
            if ones:
                out += [self.M(ones + 4 + 4 * n, ones, fr(s % 2, 2 + n), 0 if zero else None) for n in range(3)]
            return out

        for T in range(4):
            if T or not body:
                self.head(vm1 if T == 1 else None)
            if T == 0:
                if body:
                    self.lab(body)
                self.weave([], addr(0))
            self.emit((pre or {}).get(T, []))
            prim = [("r", self.cap(reads, T, 0))]
            if T:
                prim += mf(3)
            prim.append(("r", self.cap(reads, T, 1)))
            for s in range(3):
                prim.append(("w", ["  s_waitcnt lgkmcnt(7)"] + (check if (check and T == 0 and s == 0) else [])))
                prim += mf(s, T == 0 and s == 0)
                if s < 2:
                    prim.append(("r", self.cap(reads, T, s + 2)))
            late = [(13, g) for g in (extra or {}).get(T, [])]
            self.weave(prim, self.rot() + (addr(1 - T % 2) if T < 3 else []) + late, per=1 + bool(late))
        A("s_waitcnt lgkmcnt(0)")
        if early is True:
            A("s_barrier")
        elif early is None:
            l = self.new("e")
            A(f"s_cmp_eq_u32 {sr(sLate)}, 0")
            A(f"s_cbranch_scc0 {l}")
            A("s_barrier")
            self.lab(l)
        self.weave(mf(3), [])

    def load_bfrags_dyn(self, tmp, quads):
        for s in range(4):
            self.A(f"v_add_u32 {vr(tmp+s)}, {sr(sBlk)}, {vr(vXB+s)}")
        for s in range(4):
            for n in range(3):
                self.A(f"ds_read_b128 {vr(quads[n*4+s],4)}, {vr(tmp+s)} offset:{n*XN}")

    def is_loader(self, label):
        self.A(f"s_bitcmp1_b32 {sr(sW)}, 2")
        self.A(f"s_cbranch_scc1 {label}")

    def x_setup(self, va, sT1=sT1, sT2=sT2):
        A = self.A
        self.lane(va + 2)
        A(f"v_lshrrev_b32 {vr(va+1)}, 4, {vr(va+2)}")
        A(f"v_and_b32 {vr(va+2)}, 15, {vr(va+2)}")
        A(f"v_xor_b32 {vr(va+2)}, {vr(va+2)}, {vr(va+1)}")
        A(f"v_lshlrev_b32 {vr(va+2)}, 4, {vr(va+2)}")
        A(f"v_lshl_or_b32 {vr(va+2)}, {vr(va+1)}, 10, {vr(va+2)}")
        A(f"s_mul_i32 {sr(sT0)}, {sr(sW1024)}, 3")
        A(f"s_add_u32 {sr(sT2)}, {sr(sT0)}, {XB}")
        A(f"s_mul_i32 {sr(sT1)}, {sr(sB)}, 49152")
        A(f"s_lshl_b32 {sr(sT3)}, {sr(sT0)}, 2")
        A(f"s_add_u32 {sr(sT1)}, {sr(sT1)}, {sr(sT3)}")
        A(f"s_lshr_b32 {sr(sT0)}, {sr(sT0)}, 4")
        for j in range(3):
            A(f"s_add_u32 {sr(sT3)}, {sr(sT0)}, {j*64}")
            A(f"s_and_b32 {sr(sT3)}, {sr(sT3)}, 0xc0")
            A(f"v_xor_b32 {vr(va+j)}, {sr(sT3)}, {vr(va+2)}")

    def x_rot(self, va, j, late=False):
        A = self.A
        sHalf = [sT1, sT2] if late else globals()["sHalf"]
        if late:
            A(f"s_lshr_b32 {sr(sOff2)}, {sr(sB)}, 2")
        A(f"s_add_u32 {sr(sP0)}, {sr(sOff2)}, {j}")
        A(f"s_and_b32 {sr(sP0)}, {sr(sP0)}, 3")
        if late:
            A(f"s_mul_i32 {sr(sP1)}, {sr(sP0)}, {BLK}")
        else:
            A(f"s_cmp_eq_u32 {sr(sOrd)}, 1")
            A(f"s_cselect_b32 {sr(sP1)}, {sr(sP0)}, {j}")
            A(f"s_mul_i32 {sr(sP1)}, {sr(sP1)}, {BLK}")
        A(f"s_add_u32 {sr(sP1)}, {sr(sP1)}, {sr(sHalf[1])}")
        A(f"s_lshl_b32 {sr(sP0)}, {sr(sP0)}, 8")
        A(f"s_add_u32 {sr(sP0)}, {sr(sP0)}, {sr(sHalf[0])}")
        for k in range(3):
            A(f"s_add_u32 m0, {sr(sP1)}, {k*1024}")
            if k:
                A(f"s_add_u32 {sr(sP0)}, {sr(sP0)}, 4096")
            else:
                A("s_nop 0")
            A(f"buffer_load_dwordx4 {vr(va+k)}, {sr(SRD_AUX,4)}, {sr(sP0)} offen lds")

    def first_tile(self, t):
        A = self.A
        A(f"s_add_u32 {sr(sP0)}, {sr(sB)}, {t}")
        A(f"s_and_b32 {sr(sP0)}, {sr(sP0)}, {sr(sI[0])}")
        A(f"s_mul_i32 {sr(sP0)}, {sr(sP0)}, {sr(sStr[1])}")
        A(f"s_add_u32 {sr(sP0)}, {sr(sP0)}, {sr(sTy[0])}")
        for k in range(8):
            A(f"s_add_u32 m0, {sr(sW1024)}, {t*TILE+k*4096}")
            if k % 2:
                A(f"s_add_u32 {sr(sP1)}, {sr(sP0)}, {16*8192}")
            elif k:
                A(f"s_add_u32 {sr(sP0)}, {sr(sP0)}, {sr(sStr[0])}")
            else:
                A("s_nop 0")
            A(f"buffer_load_dwordx4 {vr(vCur[0])}, {sr(SRD_CUR[0],4)}, {sr(sP1 if k % 2 else sP0)} offen{self.wf} lds")

    def x_block(self, va, blk):
        for j in range(3):
            self.A(f"s_add_u32 m0, {sr(sT2)}, {blk*BLK+j*1024}")
            self.A(f"s_add_u32 {sr(sT3)}, {sr(sT1)}, {blk*256+j*4096}")
            self.A(f"buffer_load_dwordx4 {vr(va+j)}, {sr(SRD_AUX,4)}, {sr(sT3)} offen lds")

    def weight_prefetch(self, items, half=False, dst=156, cur=SRD_CUR[1]):
        A = self.A
        off = sT1
        n = 4 if half else 2
        self.lane(vT + 1)
        A(f"v_lshrrev_b32 {vr(vT)}, 4, {vr(vT+1)}")
        A(f"v_lshlrev_b32 {vr(vT+1)}, 4, {vr(vT+1)}")
        A(f"v_and_b32 {vr(vT+2)}, 0xf0, {vr(vT+1)}")
        A(f"v_lshl_or_b32 {vr(vT)}, {vr(vT)}, 13, {vr(vT+2)}")
        A(f"s_lshl_b32 {sr(sT0)}, {sr(sG)}, 2")
        A(f"s_lshr_b32 {sr(sT2)}, {sr(sB)}, {int(half)}")
        A(f"s_lshl_b32 {sr(sT2)}, {sr(sT2)}, 2")
        A(f"s_add_u32 {sr(sT2)}, {sr(sT2)}, {sr(sW)}")
        A(f"s_mov_b32 {sr(cur+2)}, 4194304")
        for ptr, is_wq, h in items:
            A(f"s_add_u32 {sr(sT3)}, {sr(sT0)}, {h}")
            A(f"s_lshl_b32 {sr(sT3)}, {sr(sT3)}, {8 if is_wq else 17}")
            A(f"s_lshl_b32 {sr(off)}, {sr(sT2)}, {(16 if is_wq else 11) + int(half)}")
            A(f"s_add_u32 {sr(off)}, {sr(off)}, {sr(sT3)}")
            A(f"s_mov_b64 {sr(cur,2)}, {sr(ptr,2)}")
            for k in range(n):
                if k:
                    A(f"s_add_u32 {sr(off)}, {sr(off)}, {32768 if is_wq else 1024}")
                A(f"buffer_load_dwordx4 {vr(dst,4)}, {vr(vT if is_wq else vT+1)}, {sr(cur,4)}, {sr(off)} offen")

    def code_refresh(self, dst, tmp=vT):
        if not self.opt.get("refresh", 1):
            return
        A = self.A
        l = self.new("pc")
        A(f"s_getpc_b64 {sr(sT2,2)}")
        self.lab(l)
        A(f"s_sub_u32 {sr(sT2)}, {sr(sT2)}, {l}-L_pc0")
        A(f"s_subb_u32 {sr(sT3)}, {sr(sT3)}, 0")
        A(f"s_lshr_b32 {sr(sT0)}, s2, 3")
        A(f"s_lshl_b32 {sr(sT0)}, {sr(sT0)}, 2")
        A(f"s_add_u32 {sr(sT0)}, {sr(sT0)}, {sr(sW)}")
        A(f"s_lshl_b32 {sr(sT0)}, {sr(sT0)}, 9")
        self.lane(tmp)
        A(f"v_lshl_add_u32 {vr(tmp)}, {vr(tmp)}, 3, {sr(sT0)}")
        A(f"v_min_u32 {vr(tmp)}, L_table-L_pc0, {vr(tmp)}")
        A(f"global_load_dwordx2 {vr(dst,2)}, {vr(tmp)}, {sr(sT2,2)}")

    def code_touch(self, first, last, n, dst, tmp=vT):
        if not self.opt.get("touch", 0):
            return
        A = self.A
        l = self.new("pc")
        A(f"s_getpc_b64 {sr(sT2,2)}")
        self.lab(l)
        A(f"s_sub_u32 {sr(sT2)}, {sr(sT2)}, {l}-L_pc0")
        A(f"s_subb_u32 {sr(sT3)}, {sr(sT3)}, 0")
        A(f"s_lshl_b32 {sr(sT0)}, {sr(sW)}, 9")
        A(f"s_add_u32 {sr(sT0)}, {sr(sT0)}, {first}-L_pc0")
        self.touches.append((first, last, n))
        self.lane(tmp)
        A(f"v_lshl_add_u32 {vr(tmp)}, {vr(tmp)}, 3, {sr(sT0)}")
        for k in range(n):
            if k:
                A(f"v_add_u32 {vr(tmp)}, 2048, {vr(tmp)}")
            A(f"v_min_u32 {vr(tmp+1)}, {last}-L_pc0, {vr(tmp)}")
            A(f"global_load_dwordx2 {vr(dst,2)}, {vr(tmp+1)}, {sr(sT2,2)}")

    def srd(self, d, p, size):
        self.A(f"s_mov_b32 {sr(d)}, {sr(p)}")
        self.A(f"s_mov_b32 {sr(d+1)}, {sr(p+1)}")
        self.A(f"s_mov_b32 {sr(d+2)}, {size}")
        self.A(f"s_mov_b32 {sr(d+3)}, 0x20000")

    def reduce4(self, x, op):
        self.A(f"v_mov_b32 {vr(x+3)}, {vr(x+2)}")
        self.A("s_nop 1")
        self.A(f"v_permlane32_swap_b32 {vr(x)}, {vr(x+1)}")
        self.A(f"v_permlane32_swap_b32 {vr(x+2)}, {vr(x+3)}")
        self.A("s_nop 1")
        self.A(f"{op} {vr(x)}, {vr(x)}, {vr(x+1)}")
        self.A(f"{op} {vr(x+2)}, {vr(x+2)}, {vr(x+3)}")
        self.A("s_nop 1")
        self.A(f"v_permlane16_swap_b32 {vr(x)}, {vr(x+2)}")
        self.A("s_nop 1")
        self.A(f"{op} {vr(x)}, {vr(x)}, {vr(x+2)}")

    def allreduce3(self, x, t, op):
        for sw in ("v_permlane32_swap_b32", "v_permlane16_swap_b32"):
            for n in range(3):
                self.A(f"v_mov_b32 {vr(t+n)}, {vr(x+n)}")
            self.A("s_nop 1")
            for n in range(3):
                self.A(f"{sw} {vr(x+n)}, {vr(t+n)}")
            self.A("s_nop 1")
            for n in range(3):
                self.A(f"{op} {vr(x+n)}, {vr(x+n)}, {vr(t+n)}")

    def maxn(self, dst, regs):
        out = [f"v_max3_f32 {vr(dst)}, {vr(regs[0])}, {vr(regs[1])}, {vr(regs[2])}"]
        k = 3
        while k + 1 < len(regs):
            out.append(f"v_max3_f32 {vr(dst)}, {vr(dst)}, {vr(regs[k])}, {vr(regs[k+1])}")
            k += 2
        if k < len(regs):
            out.append(f"v_max_f32 {vr(dst)}, {vr(dst)}, {vr(regs[k])}")
        return out

    def pkmul(self, a, f):
        sel = "op_sel_hi:[1,0]" if f % 2 == 0 else "op_sel:[0,1] op_sel_hi:[1,1]"
        return f"v_pk_mul_f32 {vr(a,2)}, {vr(a,2)}, {vr(f - f % 2,2)} {sel}"

    def ev(self):
        if not self.opt.get("evst"):
            return []
        return self.cap(self.stamp, 0, True)

    def stamp(self, idx, force=False):
        if not self.opt.get("stamps") or (self.opt.get("evst") and not force and idx != 11):
            return
        if self.opt.get("tailst") and idx not in (0, 6, 7, 8, 11, 16, 17, 18):
            return
        self.A(("s_memtime" if self.opt.get("cyc") else "s_memrealtime") + f" {sr(sStamp,2)}")
        self.A("s_waitcnt lgkmcnt(0)")
        self.A(f"s_and_b32 {sr(sStamp)}, {sr(sStamp)}, 0xffffff")
        self.A(f"s_or_b32 {sr(sStamp)}, {sr(sStamp)}, {(idx+1) << 24}")
        self.A("s_mov_b32 m0, s78")
        if self.opt.get("skip"):
            l = self.new("st")
            self.A(f"s_cmp_lt_i32 s78, 0")
            self.A(f"s_cbranch_scc1 {l}")
            self.A(f"s_cmp_ge_i32 s78, 63")
            self.A(f"s_cbranch_scc1 {l}")
            self.A(f"v_writelane_b32 {vr(23)}, {sr(sStamp)}, m0")
            self.lab(l)
        else:
            self.A(f"v_writelane_b32 {vr(23)}, {sr(sStamp)}, m0")
        self.A("s_add_u32 s78, s78, 1")

    def ks(self, idx=15):
        if self.opt.get("kst"):
            self.A(f"s_memtime s[{76}:{77}]")
            self.A("s_waitcnt lgkmcnt(0)")
            self.A(f"s_and_b32 s76, s76, 0xffffff")
            self.A(f"s_or_b32 s76, s76, {(idx+1) << 24}")
            self.A("s_mov_b32 m0, s78")
            self.A(f"v_writelane_b32 v23, s76, m0")
            self.A("s_add_u32 s78, s78, 1")

    def pack_y(self, barrier, store=False):
        def pack(jp):
            g = []
            for n in range(3):
                q = vY + (2 * jp * 3 + n) * 4
                for h in range(2):
                    y = vY + ((2 * jp + h) * 3 + n) * 4
                    g.append([f"v_cvt_pk_bf16_f32 {vr(q+2*h)}, {vr(y)}, {vr(y+1)}"])
                    g.append([f"v_cvt_pk_bf16_f32 {vr(q+2*h+1)}, {vr(y+2)}, {vr(y+3)}"])
            if store:
                g.append(["s_nop 1"])
                for n in range(3):
                    q = vY + (2 * jp * 3 + n) * 4
                    g.append([f"v_permlane16_swap_b32 {vr(q)}, {vr(q+2)}", f"v_permlane16_swap_b32 {vr(q+1)}, {vr(q+3)}",
                              f"buffer_store_dwordx4 {vr(q,4)}, {vr(vT+n)}, {sr(SRD_AUX,4)}, {sr(sPendOff)} offen offset:{jp*1024}"
                              + self.opt.get("stflag", "")])
            return g

        if store:
            self.lane(vT)
            self.A(f"v_lshlrev_b32 {vr(vT)}, 4, {vr(vT)}")
            self.A(f"v_add_u32 {vr(vT+1)}, 4096, {vr(vT)}")
            self.A(f"v_add_u32 {vr(vT+2)}, 8192, {vr(vT)}")
        self.srd(SRD_AUX, sWs, 268435456)
        self.A(f"s_mul_i32 {sr(sT1)}, {sr(sW)}, 12288")
        self.A(f"s_add_u32 {sr(sPendOff)}, {sr(sT0)}, {sr(sT1)}")
        self.wide_drain(pack)
        if barrier:
            self.A("s_barrier")
        else:
            self.A("s_nop 1")

    def store_y(self, n, va):
        A = self.A
        self.lane(va)
        A(f"v_lshlrev_b32 {vr(va)}, 4, {vr(va)}")
        for jp in range(4):
            q = vY + (2 * jp * 3 + n) * 4
            A(f"v_permlane16_swap_b32 {vr(q)}, {vr(q+2)}")
            A(f"v_permlane16_swap_b32 {vr(q+1)}, {vr(q+3)}")
            A(f"buffer_store_dwordx4 {vr(q,4)}, {vr(va)}, {sr(SRD_AUX,4)}, {sr(sPendOff)} offen offset:{jp*1024}" + self.opt.get("stflag", ""))
        A(f"s_add_u32 {sr(sPendOff)}, {sr(sPendOff)}, 4096")

    def wide_drain(self, per_pair=None):
        prim = [self.M(vY + (j * 3 + n) * 4, vFr + 4 * (j + 2 if j >= 6 else j), vAcc + (3 + n) * 4) for j in range(8) for n in range(3)]
        fill = []
        if per_pair:
            for jp in range(4):
                g = per_pair(jp)
                fill += [(6 * jp + 13, x) for x in g]
        self.weave(prim, fill, per=4)

    def dma_only(self):
        A, lab = self.A, self.lab
        self.is_loader("L_do_ld")
        A(f"s_cmp_eq_u32 {sr(sOrd)}, 0")
        A("s_cbranch_scc0 L_fin")
        self.weight_prefetch([(sBwq, True, 2), (sBwq, True, 3), (sBwq, True, 0)] + [(sBwo, False, h) for h in range(4)] + [(sAwo, False, h) for h in range(4)])
        A("s_branch L_fin")
        lab("L_do_ld")
        self.first_tile(1)
        self.x_rot(vY, 2)
        self.first_tile(2)
        self.x_rot(vY, 3)
        self.weave([], self.prep(1))
        lab("L_do_loop")
        for p in (1, 0):
            for sw, (cond, k, v, wo) in {27: (1, sBk, sBv, None), 41: (1, None, None, sBwo), 14: (2, sAk, sAv, None), 18: (2, None, None, sAwo)}.items():
                l = self.new("sw")
                A(f"s_cmp_eq_u32 {sr(sIdx)}, {sw}")
                A(f"s_cbranch_scc0 {l}")
                A(f"s_cmp_eq_u32 {sr(sOrd)}, {cond}")
                A(f"s_cbranch_scc0 {l}")
                if k:
                    self.srd(SRD_K, k, 67108864 if k == sBk else 16777216)
                    self.srd(SRD_V, v, 67108864 if k == sBk else 16777216)
                if wo:
                    self.srd(SRD_WO, wo, 4194304)
                lab(l)
            A(f"s_waitcnt vmcnt({self.opt['dmaonly']})")
            for k in range(4):
                self.dma(k, p, None, guard=False)
            self.weave([], self.prep(1 - p))
        A(f"s_cmp_lt_u32 {sr(sIdx)}, 57")
        A("s_cbranch_scc1 L_do_loop")
        A("s_branch L_fin")

    def reduce_setup(self):
        A = self.A
        A(f"s_load_dwordx4 {sr(rOut,4)}, s[0:1], 80")
        A("s_waitcnt lgkmcnt(0)")
        A(f"s_mov_b64 {sr(rDbg,2)}, {sr(rOut+2,2)}")
        A(f"s_mov_b32 {sr(rOut+2)}, 1572864")
        A(f"s_mov_b32 {sr(rOut+3)}, 0x20000")
        self.srd(rWs, sWs, 268435456)

    def publish(self):
        A, lab = self.A, self.lab
        A(f"v_mov_b32 {vr(vT)}, {STORED}")
        A(f"v_mov_b32 {vr(vT+1)}, 1")
        self.reduce_setup()
        A("s_waitcnt vmcnt(0)")
        self.stamp(7)
        A("s_mov_b64 exec, 1")
        A(f"ds_add_rtn_u32 {vr(vT+1)}, {vr(vT)}, {vr(vT+1)}")
        A(f"s_lshl_b32 {sr(sT0)}, {sr(sRole)}, 3")
        A(f"s_add_u32 {sr(sT0)}, {sr(sT0)}, {sr(sG)}")
        A(f"s_lshl_b32 {sr(sT2)}, {sr(sT0)}, 2")
        A(f"s_add_u32 {sr(sT3)}, {sr(sT2)}, {ENTRY}")
        A(f"v_mov_b32 {vr(vT+4)}, {sr(sT3)}")
        A(f"ds_read_b32 {vr(vT+4)}, {vr(vT+4)}")
        A(f"s_lshl_b32 {sr(sT3)}, {sr(sB)}, 8")
        A(f"s_add_u32 {sr(sT2)}, {sr(sT2)}, {sr(sT3)}")
        A(f"s_add_u32 {sr(sT2)}, {sr(sT2)}, {WS_FLAGS}")
        A(f"s_lshl_b32 {sr(sT0)}, 1, {sr(sT0)}")
        A(f"s_add_u32 {sr(sT1)}, {sr(sG)}, 16")
        A(f"s_lshl_b32 {sr(sT1)}, {sr(sRole)}, {sr(sT1)}")
        A(f"s_or_b32 {sr(sT0)}, {sr(sT0)}, {sr(sT1)}")
        A(f"s_lshl_b32 {sr(sT1)}, {sr(sB)}, 4")
        A(f"v_mov_b32 {vr(vT)}, {sr(sT1)}")
        A(f"v_mov_b32 {vr(vT+2)}, {sr(sT0)}")
        A(f"v_mov_b32 {vr(vT+3)}, 0")
        A("s_waitcnt lgkmcnt(0)")
        A(f"v_readfirstlane_b32 {sr(sT1)}, {vr(vT+1)}")
        A(f"v_add_u32 {vr(vT+4)}, 1, {vr(vT+4)}")
        A("s_mov_b64 exec, -1")
        A("s_nop 2")
        A(f"s_cmp_eq_u32 {sr(sT1)}, 3")
        A("s_cbranch_scc0 L_fin")
        A("s_mov_b64 exec, 1")
        A(f"buffer_store_dword {vr(vT+4)}, off, {sr(rWs,4)}, {sr(sT2)} sc1")
        A(f"global_atomic_or_x2 {vr(vT+4,2)}, {vr(vT)}, {vr(vT+2,2)}, {sr(rDbg,2)} sc0 sc1")
        A("s_waitcnt vmcnt(0)")
        A(f"v_readfirstlane_b32 {sr(sT1)}, {vr(vT+4)}")
        A(f"v_readfirstlane_b32 {sr(rAb)}, {vr(vT+5)}")
        A("s_mov_b64 exec, -1")
        A("s_nop 2")
        A(f"s_or_b32 {sr(sT1)}, {sr(sT1)}, {sr(sT0)}")
        A(f"s_cmp_eq_u32 {sr(sT1)}, {FULL}")
        A("s_cbranch_scc0 L_fin")
        self.c("last arrival of this batch: take over the slices of workgroups that gave up waiting")
        lab("L_ab_loop")
        A(f"s_cmp_eq_u32 {sr(rAb)}, 0")
        A("s_cbranch_scc1 L_fin")
        A(f"s_ff1_i32_b32 {sr(rK)}, {sr(rAb)}")
        A(f"s_bitset0_b32 {sr(rAb)}, {sr(rK)}")
        A(f"s_mul_i32 {sr(rKb)}, {sr(rK)}, 3")
        for k in range(3):
            A(f"s_mov_b32 {sr(rMode)}, 2")
            A(f"s_call_b64 {sr(LINK_S,2)}, L_reduce")
            A(f"s_add_u32 {sr(rKb)}, {sr(rKb)}, 1")
        A("s_branch L_ab_loop")

    def reduce_sub(self):
        A, lab = self.A, self.lab
        dat = lambda g, q: 64 + (g * 4 + q) * 4
        acc = lambda g: 160 + g * 8
        lab("L_reduce")
        A(f"s_lshl_b32 {sr(rOffA)}, {sr(rKb)}, 10")
        A(f"s_mul_i32 {sr(rOffB)}, {sr(sB)}, {16*PART}")
        A(f"s_add_u32 {sr(rOffB)}, {sr(rOffB)}, {sr(rOffA)}")
        A(f"s_mul_i32 {sr(rOffO)}, {sr(sB)}, {8*PART}")
        A(f"s_add_u32 {sr(rOffA)}, {sr(rOffA)}, {sr(rOffO)}")
        A(f"s_add_u32 {sr(rOffA)}, {sr(rOffA)}, {PART_A_BASE}")
        A(f"s_mul_i32 {sr(sT0)}, {sr(rKb)}, 171")
        A(f"s_lshr_b32 {sr(sT0)}, {sr(sT0)}, 11")
        A(f"s_mul_i32 {sr(sT1)}, {sr(sT0)}, 12")
        A(f"s_sub_u32 {sr(sT1)}, {sr(rKb)}, {sr(sT1)}")
        A(f"s_lshr_b32 {sr(sT2)}, {sr(sT1)}, 2")
        A(f"s_and_b32 {sr(sT1)}, {sr(sT1)}, 3")
        A(f"s_mul_i32 {sr(rOffO)}, {sr(sB)}, 98304")
        A(f"s_lshl_b32 {sr(sT2)}, {sr(sT2)}, 15")
        A(f"s_lshl_b32 {sr(sT0)}, {sr(sT0)}, 8")
        A(f"s_lshl_b32 {sr(sT1)}, {sr(sT1)}, 6")
        A(f"s_add_u32 {sr(rOffO)}, {sr(rOffO)}, {sr(sT2)}")
        A(f"s_add_u32 {sr(rOffO)}, {sr(rOffO)}, {sr(sT0)}")
        A(f"s_add_u32 {sr(rOffO)}, {sr(rOffO)}, {sr(sT1)}")
        self.lane(24)
        A("v_lshlrev_b32 v25, 4, v24")
        A("v_and_b32 v26, 15, v24")
        A("v_lshlrev_b32 v26, 11, v26")
        A("v_bfe_u32 v27, v24, 4, 1")
        A("v_lshl_add_u32 v26, v27, 5, v26")
        A("v_bfe_u32 v27, v24, 5, 1")
        A("v_lshl_add_u32 v26, v27, 4, v26")
        A(f"v_mov_b32 v27, {RELAY}")
        A(f"s_lshl_b32 {sr(sT0)}, {sr(sB)}, 4")
        A(f"v_mov_b32 v28, {sr(sT0)}")
        A("v_and_b32 v40, 15, v24")
        A("v_lshlrev_b32 v40, 2, v40")
        A(f"v_add_u32 v41, {ENTRY}, v40")
        A("ds_read_b32 v41, v41")
        A(f"s_lshl_b32 {sr(sT2)}, {sr(sB)}, 8")
        A(f"s_add_u32 {sr(sT2)}, {sr(sT2)}, {WS_FLAGS}")
        A(f"v_mov_b32 v42, {STORED}")
        A("s_waitcnt lgkmcnt(0)")
        A("v_add_u32 v41, 1, v41")
        A(f"s_mov_b32 {sr(sT3)}, 0xffff0000")
        A(f"s_mov_b32 {sr(rDone)}, 0")
        A(f"s_mov_b32 {sr(rCnt)}, 0")
        lab("L_rd_poll")
        A(f"s_mov_b32 {sr(rF)}, {FULL}")
        A(f"s_cmp_eq_u32 {sr(rMode)}, 2")
        A("s_cbranch_scc1 L_rd_have")
        A(f"s_cmp_eq_u32 {sr(rMode)}, 1")
        A("s_cbranch_scc1 L_rd_lds")
        A(f"s_cmp_eq_u32 {sr(rCnt)}, 1")
        A("s_cbranch_scc0 L_rd_go")
        self.c("after the first look, stay off the memory path until this workgroup's own stores are out")
        lab("L_rd_own")
        A("ds_read_b32 v29, v42")
        A("s_waitcnt lgkmcnt(0)")
        A("v_cmp_gt_u32 vcc, 4, v29")
        A("s_cbranch_vccz L_rd_go")
        A("s_sleep 2")
        A("s_branch L_rd_own")
        lab("L_rd_go")
        A(f"s_add_u32 {sr(rCnt)}, {sr(rCnt)}, 1")
        A(f"buffer_load_dword v29, v40, {sr(rWs,4)}, {sr(sT2)} offen sc1")
        A("s_waitcnt vmcnt(0)")
        A("v_cmp_eq_u32 vcc, v29, v41")
        A("s_nop 3")
        A(f"s_and_b32 {sr(rF)}, vcc_lo, 0xffff")
        A(f"s_and_b32 {sr(sT0)}, {sr(rF)}, 0xff00")
        A(f"s_lshl_b32 {sr(sT0)}, {sr(sT0)}, 8")
        A(f"s_or_b32 {sr(rF)}, {sr(rF)}, {sr(sT0)}")
        A(f"v_mov_b32 v29, {sr(rF)}")
        A("ds_write_b32 v27, v29")
        A("s_branch L_rd_have")
        lab("L_rd_lds")
        A("ds_read_b32 v29, v27")
        A("s_waitcnt lgkmcnt(0)")
        A(f"v_readfirstlane_b32 {sr(rF)}, v29")
        A("s_nop 3")
        A(f"s_cmp_lt_i32 {sr(rF)}, 0")
        A("s_cbranch_scc1 L_rd_ret")
        lab("L_rd_have")
        A(f"s_lshr_b32 {sr(rNew)}, {sr(rF)}, 1")
        A(f"s_and_b32 {sr(rNew)}, {sr(rNew)}, {sr(rF)}")
        A(f"s_lshr_b32 {sr(sT0)}, {sr(rNew)}, 2")
        A(f"s_and_b32 {sr(rNew)}, {sr(rNew)}, {sr(sT0)}")
        A(f"s_and_b32 {sr(rNew)}, {sr(rNew)}, 0x111111")
        A(f"s_andn2_b32 {sr(rNew)}, {sr(rNew)}, {sr(rDone)}")
        A("s_cbranch_scc1 L_rd_work")
        A(f"s_sleep {self.opt.get('sleep', 8)}")
        A(f"s_cmp_eq_u32 {sr(rMode)}, 0")
        A("s_cbranch_scc0 L_rd_poll")
        A(f"s_cmp_lt_u32 {sr(rCnt)}, {self.opt.get('polls', POLL_LIMIT)}")
        A("s_cbranch_scc1 L_rd_poll")
        self.c("gave up waiting: leave the slice to the last arrival unless that has happened meanwhile")
        A(f"s_lshl_b32 {sr(sT0)}, {sr(sRole)}, 3")
        A(f"s_add_u32 {sr(sT0)}, {sr(sT0)}, {sr(sG)}")
        A(f"s_lshl_b32 {sr(sT0)}, 1, {sr(sT0)}")
        A("v_mov_b32 v30, 0")
        A(f"v_mov_b32 v31, {sr(sT0)}")
        A("s_mov_b64 exec, 1")
        A(f"global_atomic_or_x2 v[32:33], v28, v[30:31], {sr(rDbg,2)} sc0 sc1")
        A("s_waitcnt vmcnt(0)")
        A(f"v_readfirstlane_b32 {sr(rF)}, v32")
        A("s_mov_b64 exec, -1")
        A("s_nop 3")
        A(f"s_cmp_eq_u32 {sr(rF)}, {FULL}")
        A(f"s_cselect_b32 {sr(rF)}, {sr(rF)}, -1")
        A(f"v_mov_b32 v29, {sr(rF)}")
        A("ds_write_b32 v27, v29")
        A("s_cbranch_scc0 L_rd_ret")
        A(f"s_mov_b32 {sr(rMode)}, 2")
        A("s_branch L_rd_poll")
        lab("L_rd_work")
        self.stamp(17)
        for g in range(6):
            l = self.new("rg")
            A(f"s_bitcmp1_b32 {sr(rNew)}, {4*g}")
            A(f"s_cbranch_scc0 {l}")
            base, first = (rOffB, 4 * g) if g < 4 else (rOffA, 4 * (g - 4))
            for q in range(4):
                A(f"s_add_u32 {sr(sT0)}, {sr(base)}, {(first+q)*PART}")
                A(f"buffer_load_dwordx4 {vr(dat(g,q),4)}, v25, {sr(rWs,4)}, {sr(sT0)} offen sc1")
            lab(l)
        A("s_waitcnt vmcnt(0)")
        self.stamp(18)
        for g in range(6):
            l = self.new("rs")
            A(f"s_bitcmp1_b32 {sr(rNew)}, {4*g}")
            A(f"s_cbranch_scc0 {l}")
            for q in range(4):
                for k in range(4):
                    r, t = dat(g, q) + k, (acc(g) + 2 * k if q == 0 else 30 + 2 * (k % 2))
                    A(f"v_lshlrev_b32 {vr(t)}, 16, {vr(r)}")
                    A(f"v_and_b32 {vr(t+1)}, {sr(sT3)}, {vr(r)}")
                    if q:
                        A(f"v_pk_add_f32 {vr(acc(g)+2*k,2)}, {vr(acc(g)+2*k,2)}, {vr(t,2)}")
            lab(l)
        A(f"s_or_b32 {sr(rDone)}, {sr(rDone)}, {sr(rNew)}")
        A(f"s_cmp_eq_u32 {sr(rDone)}, 0x111111")
        A("s_cbranch_scc0 L_rd_poll")
        for x, y in ((0, 1), (2, 3), (4, 5), (0, 2)):
            for k in range(4):
                A(f"v_pk_add_f32 {vr(acc(x)+2*k,2)}, {vr(acc(x)+2*k,2)}, {vr(acc(y)+2*k,2)}")
        for g, d in ((4, 32), (0, 36)):
            for k in range(4):
                A(f"v_cvt_pk_bf16_f32 {vr(d+k)}, {vr(acc(g)+2*k)}, {vr(acc(g)+2*k+1)}")
        A(f"buffer_store_dwordx4 v[32:35], v26, {sr(rOut,4)}, {sr(rOffO)} offen")
        A(f"buffer_store_dwordx4 v[36:39], v26, {sr(rOut,4)}, {sr(rOffO)} offen offset:1024")
        lab("L_rd_ret")
        A(f"s_setpc_b64 {sr(LINK_S,2)}")

    def zero(self, base, n):
        for k in range(0, n, 2):
            self.A(f"v_mov_b64 {vr(base+k,2)}, 0")

    def act_write_addr(self, sblk, stile):
        A = self.A
        self.lane(vT + 1)
        A(f"v_lshrrev_b32 {vr(vT)}, 4, {vr(vT+1)}")
        A(f"v_and_b32 {vr(vT+1)}, 15, {vr(vT+1)}")
        A(f"v_lshrrev_b32 {vr(vT+2)}, 1, {vr(vT)}")
        if stile is not None:
            A(f"v_add_u32 {vr(vT+2)}, {sr(stile)}, {vr(vT+2)}")
        A(f"v_xor_b32 {vr(vT+2)}, {vr(vT+2)}, {vr(vT+1)}")
        A(f"v_lshlrev_b32 {vr(vT+2)}, 4, {vr(vT+2)}")
        A(f"v_and_b32 {vr(vT)}, 1, {vr(vT)}")
        A(f"v_lshl_or_b32 {vr(vT+2)}, {vr(vT)}, 3, {vr(vT+2)}")
        A(f"v_mul_u32_u24 {vr(vT+1)}, {XROW}, {vr(vT+1)}")
        A(f"s_add_u32 {sr(sT5)}, {sr(sblk)}, {XB}")
        A(f"v_add3_u32 {vr(vT+1)}, {vr(vT+1)}, {sr(sT5)}, {vr(vT+2)}")

    def frag_addrs(self):
        A = self.A
        t0, t1, t2, t3, t4, t5, vL = vT, vT + 1, vT + 2, vT + 3, vT + 4, vT + 5, vT + 6
        self.lane(vL)
        A(f"v_lshrrev_b32 {vr(t0)}, 4, {vr(vL)}")
        A(f"v_and_b32 {vr(t1)}, 15, {vr(vL)}")
        A(f"v_bfe_u32 {vr(t2)}, {vr(vL)}, 2, 2")
        A(f"v_and_b32 {vr(t3)}, 3, {vr(vL)}")
        A(f"v_lshl_add_u32 {vr(t4)}, {vr(t0)}, 3, {vr(t2)}")
        A(f"v_lshlrev_b32 {vr(t4)}, 8, {vr(t4)}")
        A(f"v_and_b32 {vr(t5)}, 1, {vr(t0)}")
        A(f"v_lshl_or_b32 {vr(t5)}, {vr(t5)}, 2, {vr(t2)}")
        A(f"v_lshl_or_b32 {vr(t4)}, {vr(t5)}, 5, {vr(t4)}")
        A(f"v_lshl_or_b32 {vr(vTR0)}, {vr(t3)}, 3, {vr(t4)}")
        A(f"s_lshr_b32 {sr(sT0)}, {sr(sW1024)}, 4")
        A(f"v_xor_b32 {vr(vTRw)}, {sr(sT0)}, {vr(vTR0)}")
        A(f"s_lshr_b32 {sr(sT1)}, {sr(sW)}, 1")
        A(f"s_lshl_b32 {sr(sT1)}, {sr(sT1)}, 13")
        A(f"v_lshrrev_b32 {vr(t4)}, 2, {vr(t1)}")
        A(f"v_lshl_or_b32 {vr(t4)}, {vr(t4)}, 3, {vr(t3)}")
        A(f"v_lshlrev_b32 {vr(t4)}, 8, {vr(t4)}")
        A(f"v_lshrrev_b32 {vr(t5)}, 1, {vr(t0)}")
        A(f"v_and_b32 {vr(vKb)}, 7, {vr(t1)}")
        A(f"v_xor_b32 {vr(t5)}, {vr(t5)}, {vr(vKb)}")
        A(f"v_lshl_or_b32 {vr(t4)}, {vr(t5)}, 5, {vr(t4)}")
        A(f"v_and_b32 {vr(t5)}, 1, {vr(t0)}")
        A(f"v_lshl_or_b32 {vr(t4)}, {vr(t5)}, 4, {vr(t4)}")
        A(f"s_and_b32 {sr(sT0)}, {sr(sW)}, 1")
        A(f"s_lshl_b32 {sr(sT0)}, {sr(sT0)}, 10")
        A(f"s_add_u32 {sr(sT0)}, {sr(sT0)}, {sr(sT1)}")
        A(f"v_add_u32 {vr(vKb)}, {sr(sT0)}, {vr(t4)}")
        A(f"v_mul_u32_u24 {vr(t4)}, {XROW}, {vr(t1)}")
        A(f"v_add_u32 {vr(t4)}, {XB}, {vr(t4)}")
        A(f"v_xor_b32 {vr(t5)}, {vr(t0)}, {vr(t1)}")
        A(f"v_lshlrev_b32 {vr(t5)}, 4, {vr(t5)}")
        for s in range(4):
            A(f"v_xor_b32 {vr(vXB+s)}, {s*64}, {vr(t5)}")
            A(f"v_add_u32 {vr(vXB+s)}, {vr(vXB+s)}, {vr(t4)}")
        A(f"v_lshrrev_b32 {vr(t5)}, 1, {vr(t0)}")
        A(f"s_lshr_b32 {sr(sT0)}, {sr(sW1024)}, 8")
        A(f"v_add_u32 {vr(t5)}, {sr(sT0)}, {vr(t5)}")
        A(f"v_xor_b32 {vr(t5)}, {vr(t5)}, {vr(t1)}")
        A(f"v_lshl_add_u32 {vr(vQW)}, {vr(t5)}, 4, {vr(t4)}")
        A(f"v_and_b32 {vr(t5)}, 1, {vr(t0)}")
        A(f"v_lshl_add_u32 {vr(vQW)}, {vr(t5)}, 3, {vr(vQW)}")
        A(f"s_lshr_b32 {sr(sT0)}, {sr(sW)}, 1")
        A(f"s_lshl_b32 {sr(sT0)}, {sr(sT0)}, 2")
        A(f"v_add_u32 {vr(t5)}, {sr(sT0)}, {vr(t0)}")
        A(f"v_xor_b32 {vr(t5)}, {vr(t5)}, {vr(t1)}")
        A(f"v_lshl_add_u32 {vr(vPW)}, {vr(t5)}, 4, {vr(t4)}")
        A(f"s_and_b32 {sr(sT0)}, {sr(sW)}, 1")
        A(f"s_lshl_b32 {sr(sT0)}, {sr(sT0)}, 3")
        A(f"v_add_u32 {vr(vPW)}, {sr(sT0)}, {vr(vPW)}")
        A(f"v_lshlrev_b32 {vr(vSTr)}, 5, {vr(t1)}")
        A(f"v_add_u32 {vr(vSTr)}, {ST}, {vr(vSTr)}")
        A(f"v_lshlrev_b32 {vr(t5)}, 1, {vr(t0)}")
        A(f"v_mov_b32 {vr(t4)}, 0x98")
        A(f"v_lshrrev_b32 {vr(t5)}, {vr(t5)}, {vr(t4)}")
        A(f"v_and_b32 {vr(t5)}, 3, {vr(t5)}")
        A(f"v_lshl_add_u32 {vr(vSTw)}, {vr(t5)}, 9, {vr(vSTr)}")
        A(f"s_lshl_b32 {sr(sT0)}, {sr(sW)}, 2")
        A(f"v_add_u32 {vr(vSTw)}, {sr(sT0)}, {vr(vSTw)}")

    def main_kernel(self):
        A, lab, c = self.A, self.lab, self.c
        opt = self.opt
        K1 = NAME + "_kernel"
        self.L += [f".globl {K1}", ".p2align 8", f".type {K1},@function"]
        lab(K1)
        if opt.get("prost"):
            A("s_memtime s[88:89]")
        A("s_cmp_ge_u32 s2, 256")
        A("s_cbranch_scc1 L_end")
        if opt.get("only"):
            A("s_bitcmp1_b32 s2, 7")
            A("s_cbranch_scc%d L_end" % (1 if opt["only"] == "B" else 0))
        if opt.get("dbg"):
            A("s_memrealtime s[76:77]")
            A("s_waitcnt lgkmcnt(0)")
            A("v_mov_b32 v23, s76")
            A("s_memtime s[76:77]")
            A("s_waitcnt lgkmcnt(0)")
            A("s_mov_b32 s78, s76")
        A(f"s_load_dwordx8 {sr(44,8)}, s[0:1], 40")
        A(f"s_load_dwordx2 {sr(52,2)}, s[0:1], 72")
        A(f"s_load_dwordx8 {sr(32,8)}, s[0:1], 0")
        A(f"s_load_dwordx2 {sr(40,2)}, s[0:1], 32")
        A(f"s_load_dwordx2 {sr(54,2)}, s[0:1], 96")
        if opt.get("stamps"):
            A(f"v_mov_b32 {vr(23)}, 0")
            A(f"s_mov_b32 s78, {-(opt.get('skip', 1) - 1)}")
        if opt.get("prost"):
            A("s_waitcnt lgkmcnt(0)")
            A("s_and_b32 s88, s88, 0xffffff")
            A(f"s_or_b32 s88, s88, {1 << 24}")
            A("v_writelane_b32 v23, s88, 0")
            A("s_mov_b32 s78, 1")
            self.stamp(15)
        vL = vT + 6
        A(f"v_lshrrev_b32 {vr(vT)}, 6, v0")
        A(f"v_and_b32 {vr(vL)}, 63, v0")
        A(f"v_readfirstlane_b32 {sr(sW)}, {vr(vT)}")
        A(f"s_and_b32 {sr(sG)}, s2, 7")
        A(f"s_lshr_b32 {sr(sT0)}, s2, 3")
        A(f"s_and_b32 {sr(sB)}, {sr(sT0)}, 15")
        A(f"s_lshr_b32 {sr(sRole)}, {sr(sT0)}, 4")
        A(f"s_bitcmp1_b32 {hex(opt.get('cbits', 0xaaaa))}, {sr(sB)}")
        A(f"s_cselect_b32 {sr(sOrd)}, 2, 1")
        A(f"s_mul_i32 {sr(sOrd)}, {sr(sOrd)}, {sr(sRole)}")
        A(f"s_and_b32 {sr(sT1)}, {sr(sW)}, 3")
        A(f"s_lshl_b32 {sr(sW1024)}, {sr(sT1)}, 10")
        c("DMA lane offsets: row = 4(w&3) + (l>>4) (+16), 32-byte chunk XOR key(row)")
        t0, t1, t2, t3, t4, t5 = vT, vT + 1, vT + 2, vT + 3, vT + 4, vT + 5
        A(f"v_lshrrev_b32 {vr(t0)}, 4, {vr(vL)}")
        A(f"s_lshl_b32 {sr(sT0)}, {sr(sW)}, 1")
        A(f"s_and_b32 {sr(sT0)}, {sr(sT0)}, 4")
        A(f"v_or_b32 {vr(t1)}, {sr(sT0)}, {vr(t0)}")
        A(f"v_bfe_u32 {vr(t2)}, {vr(vL)}, 1, 3")
        A(f"v_xor_b32 {vr(t1)}, {vr(t1)}, {vr(t2)}")
        A(f"v_lshlrev_b32 {vr(t1)}, 5, {vr(t1)}")
        A(f"v_and_b32 {vr(t2)}, 1, {vr(vL)}")
        A(f"v_lshl_or_b32 {vr(vChunk)}, {vr(t2)}, 4, {vr(t1)}")
        A(f"s_lshl_b32 {sr(sT0)}, {sr(sT1)}, 2")
        A(f"v_add_u32 {vr(vRow)}, {sr(sT0)}, {vr(t0)}")
        A(f"v_lshl_add_u32 {vr(vCur[0])}, {vr(vRow)}, {ROWSH[T_WQ]}, {vr(vChunk)}")
        c("first B head: 4g for the A role, 4g+1 for the B role")
        A(f"s_lshl_b32 {sr(sT4)}, {sr(sG)}, 2")
        A(f"s_add_u32 {sr(sT4)}, {sr(sT4)}, 1")
        A(f"s_sub_u32 {sr(sT4)}, {sr(sT4)}, {sr(sRole)}")
        A(f"s_lshl_b32 {sr(sE)}, {sr(sT4)}, 8")
        A(f"s_getpc_b64 {sr(sT2,2)}")
        lab("L_pc0")
        A(f"s_lshl_b32 {sr(sT0)}, {sr(sOrd)}, 8")
        A(f"s_add_u32 {sr(sT0)}, {sr(sT0)}, L_table-L_pc0")
        A(f"v_lshl_add_u32 {vr(vTab)}, {vr(vL)}, 2, {sr(sT0)}")
        A(f"global_load_dword {vr(vTab)}, {vr(vTab)}, {sr(sT2,2)}")
        if opt.get("codepf", 1):
            c("waves 0-3 pull the code into L2: 64 KiB window, 512 bytes per wave and workgroup of the head group")
            self.is_loader("L_nocp")
            A(f"s_lshr_b32 {sr(sT0)}, s2, 3")
            A(f"s_lshl_b32 {sr(sT0)}, {sr(sT0)}, 2")
            A(f"s_add_u32 {sr(sT0)}, {sr(sT0)}, {sr(sW)}")
            A(f"s_lshl_b32 {sr(sT0)}, {sr(sT0)}, 9")
            A(f"v_lshl_add_u32 {vr(vT)}, {vr(vL)}, 3, {sr(sT0)}")
            A(f"v_min_u32 {vr(vT)}, L_table-L_pc0, {vr(vT)}")
            A(f"global_load_dwordx2 v[156:157], {vr(vT)}, {sr(sT2,2)}")
            lab("L_nocp")
        self.x_setup(vY, sHalf[0], sHalf[1])
        if opt.get("prost"):
            self.stamp(15)
        A(f"s_bitcmp1_b32 {sr(sW)}, 2")
        A("s_waitcnt lgkmcnt(0)")
        self.srd(SRD_AUX, sBx, 786432)
        self.srd(SRD_WQW, sAwq, 4194304)
        self.srd(SRD_WQ, sBwq, 4194304)
        self.srd(SRD_CUR[0], sBwq, 4194304)
        self.srd(SRD_CUR[1], sBwq, 4194304)
        A("s_cbranch_scc1 L_pro_ld")
        if opt.get("pf1", 0):
            A(f"s_cmp_eq_u32 {sr(sRole)}, 1")
            A("s_cbranch_scc1 L_pro_done")
            self.weight_prefetch([(sBwq, True, 1)])
        A("s_branch L_pro_done")
        lab("L_pro_ld")
        A(f"s_cmp_eq_u32 {sr(sOrd)}, 1")
        A(f"s_cselect_b64 {sr(SRD_AUX,2)}, {sr(sAx,2)}, {sr(sBx,2)}")
        A(f"s_cselect_b64 {sr(SRD_CUR[0],2)}, {sr(sAwq,2)}, {sr(sBwq,2)}")
        A(f"s_mov_b32 {sr(sStr[1])}, {32*8192}")
        A(f"s_cselect_b32 {sr(sStr[0])}, 256, {sr(sStr[1])}")
        A(f"s_cselect_b32 {sr(sStr[1])}, {sr(sStr[1])}, {128*8192}")
        A(f"s_cselect_b32 {sr(sI[0])}, 15, 3")
        A(f"s_cselect_b32 {sr(sOff2)}, 2, 0")
        A(f"s_lshr_b32 {sr(sOff2)}, {sr(sB)}, {sr(sOff2)}")
        A(f"s_mov_b32 {sr(sTy[0])}, {sr(sE)}")
        self.x_rot(vY, 0)
        self.first_tile(0)
        self.x_rot(vY, 1)
        if opt.get("prost"):
            self.stamp(15)
        lab("L_pro_done")
        self.frag_addrs()
        A(f"s_cmp_eq_u32 {sr(sOrd)}, 1")
        for d, pa, pb, za, zb in ((SRD_K, sAk, sBk, 16777216, 67108864), (SRD_V, sAv, sBv, 16777216, 67108864), (SRD_WO, sAwo, sBwo, 4194304, 4194304)):
            A(f"s_cselect_b64 {sr(d,2)}, {sr(pa,2)}, {sr(pb,2)}")
            A(f"s_mov_b32 {sr(d+2)}, {zb}")
            if za != zb:
                A(f"s_cselect_b32 {sr(d+2)}, {za}, {sr(d+2)}")
            A(f"s_mov_b32 {sr(d+3)}, 0x20000")
        c("tile table: entry = constant + base selected by bits 4:3 (Wq head, B K/V unit, Wo head, A K/V unit)")
        bq, bkv, bo, bka = sT0, sT1, sT2, sT3
        A(f"s_lshl_b32 {sr(bq)}, {sr(sT4)}, 8")
        A(f"s_lshl_b32 {sr(bkv)}, {sr(sB)}, 5")
        A(f"s_add_u32 {sr(bkv)}, {sr(bkv)}, {sr(sT4)}")
        A(f"s_lshl_b32 {sr(bkv)}, {sr(bkv)}, 17")
        A(f"s_lshl_b32 {sr(bo)}, {sr(sT4)}, 17")
        A(f"s_lshl_b32 {sr(bka)}, {sr(sB)}, 3")
        A(f"s_add_u32 {sr(bka)}, {sr(bka)}, {sr(sG)}")
        A(f"s_lshl_b32 {sr(bka)}, {sr(bka)}, 17")
        A(f"s_cmp_eq_u32 {sr(sRole)}, 1")
        A(f"s_cselect_b32 {sr(sHead)}, 1, 3")
        A(f"v_mov_b32 {vr(vT+1)}, {sr(bq)}")
        self.is_loader("L_tabw")
        if self.fuse:
            self.srd(SRD_CUR[1], sWs, 268435456)
            self.lane(vT + 3)
            A(f"v_lshlrev_b32 {vr(vT+3)}, 2, {vr(vT+3)}")
            A(f"s_lshl_b32 {sr(sT5)}, {sr(sB)}, 8")
            A(f"s_add_u32 {sr(sT5)}, {sr(sT5)}, {WS_FLAGS}")
            A(f"s_mov_b32 m0, {ENTRY}")
            A(f"s_cmp_eq_u32 {sr(sW)}, 3")
            A("s_cbranch_scc0 L_tabw0")
            A(f"buffer_load_dword {vr(vT+3)}, {sr(SRD_CUR[1],4)}, {sr(sT5)} offen sc1 lds")
            lab("L_tabw0")
        A("s_waitcnt vmcnt(0)")
        lab("L_tabw")
        A("s_waitcnt vmcnt(14)")
        A(f"v_bfe_u32 {vr(vT)}, {vr(vTab)}, 3, 2")
        for k, base in ((1, bkv), (2, bo), (3, bka)):
            A(f"v_cmp_eq_u32 vcc, {k}, {vr(vT)}")
            A(f"v_mov_b32 {vr(vT+2)}, {sr(base)}")
            A("s_nop 0")
            A(f"v_cndmask_b32 {vr(vT+1)}, {vr(vT+1)}, {vr(vT+2)}, vcc")
        c("projections that use the initial x take their k blocks in an order rotated by the batch")
        A(f"s_lshl_b32 {sr(sT5)}, {sr(sB)}, 20")
        A(f"s_cmp_eq_u32 {sr(sOrd)}, 1")
        A(f"s_cselect_b32 {sr(sT5)}, 0, {sr(sT5)}")
        A(f"v_and_b32 {vr(vT)}, 31, {vr(vTab)}")
        A(f"v_cmp_eq_u32 vcc, {T_WQ}, {vr(vT)}")
        A(f"v_add_u32 {vr(vT+2)}, {sr(sT5)}, {vr(vTab)}")
        A(f"s_mov_b32 {sr(sT5)}, 0x300000")
        A(f"v_bfi_b32 {vr(vT+2)}, {sr(sT5)}, {vr(vT+2)}, {vr(vTab)}")
        A(f"v_cndmask_b32 {vr(vTab)}, {vr(vTab)}, {vr(vT+2)}, vcc")
        A(f"s_lshl_b32 {sr(sT5)}, {sr(sB)}, 18")
        A(f"v_and_b32 {vr(vT)}, 7, {vr(vTab)}")
        A(f"v_cmp_eq_u32 vcc, {T_WQW}, {vr(vT)}")
        A(f"v_add_u32 {vr(vT+2)}, {sr(sT5)}, {vr(vTab)}")
        A(f"v_and_b32 {vr(vT+2)}, 0x3fffff, {vr(vT+2)}")
        A(f"v_cndmask_b32 {vr(vTab)}, {vr(vTab)}, {vr(vT+2)}, vcc")
        A(f"v_add_u32 {vr(vTab)}, {vr(vTab)}, {vr(vT+1)}")
        A(f"s_mov_b32 {sr(sIdx)}, 3")
        A(f"s_mov_b32 {sr(sC)}, 0")
        A(f"v_readlane_b32 {sr(sE)}, {vr(vTab)}, 3")

        def const(ty, hh, t, a_unit=False):
            if ty == T_WQ:
                return t * 128 * 8192 + hh * 256 + ty
            if ty == T_WQW:
                return t * 32 * 8192 + ty
            if ty in (T_K, T_V):
                return hh * 131072 + t * 32768 + ty + (24 if a_unit else 8)
            return (hh * 128 + 32 * t) * 1024 + ty + 16

        tb = [const(T_WQ, 0, t) for t in range(4)] + [const(T_K, 0, t) for t in range(4)]
        tb += [const(T_WQ, hh, t) for hh in (1, 2) for t in range(4)]
        tb += [const(ty, 0, t) for ty in (T_V, T_WO) for t in range(4)]
        tb += [const(ty, hh, t) for hh in (1, 2) for ty in (T_K, T_V, T_WO) for t in range(4)]
        for pos in (23, 35):
            tb[pos], tb[pos + 1] = tb[pos + 1], tb[pos]
        ta = [const(T_WQW, 0, t) for t in range(16)]
        ta += [const(ty, 0, t, True) for t in range(4) for ty in (T_K, T_V)]
        ta += [const(T_WO, hh, t) for hh in range(4) for t in range(4)]
        ta += [const(ty, 0, t) for ty in (T_WQ, T_K, T_V, T_WO) for t in range(4)]
        tc = ta[40:] + ta[:40]
        self.table = sum((t + [NULL_OFF] * (64 - len(t)) for t in (tb, ta, tc)), [])
        A(f"s_mov_b32 {sr(sScale)}, {f32(math.log2(math.e) / math.sqrt(128.0))}")
        A(f"s_mov_b32 {sr(sThr)}, 0x41000000")
        A(f"s_or_b32 {sr(sZero)}, {sr(sRole)}, 1")
        A(f"s_and_b32 {sr(sBlkEnd)}, {sr(sRole)}, 2")
        A(f"s_and_b32 {sr(sFix)}, {sr(sRole)}, 2")
        A(f"v_mov_b32 {vr(vT)}, {RELAY}")
        A(f"v_mov_b64 {vr(vT+2,2)}, 0")
        A(f"ds_write_b64 {vr(vT)}, {vr(vT+2,2)}")
        self.stamp(0)

        if opt.get("pads"):
            self.is_loader("L_padend")
            for w in range(3):
                A(f"s_cmp_eq_u32 {sr(sW)}, {w}")
                A(f"s_cbranch_scc1 L_pad{w}_0")
            A("s_branch L_pad3_0")
            lab("L_padend")
        if opt.get("dmaonly"):
            self.dma_only()
        A(f"s_mov_b32 {sr(sHook)}, 0")
        A(f"s_cmp_eq_u32 {sr(sOrd)}, 1")
        A("s_cbranch_scc1 L_apath")
        lab("L_q0")
        c("Q projection of the first B head (scaled by log2(e)/sqrt(128))")
        A(f"s_mov_b32 {sr(sLate)}, 2")
        A(f"s_call_b64 {sr(LINK_S,2)}, L_qproj")
        def q_write(src, blk):
            A(f"v_xor_b32 {vr(vT+6)}, 32, {vr(vQW)}")
            for m in range(2):
                for n in range(3):
                    A(f"ds_write_b64 {vr(vT+6 if m else vQW)}, {vr(src+(m*3+n)*2,2)} offset:{n*XN+blk*BLK}")

        self.is_loader("L_q0ld")
        q_write(vAcc, 4)
        allpf = {"q0": (sBwq, True, 0), "q2": (sBwq, True, 2), "q3": (sBwq, True, 3)}
        allpf.update({f"b{h}": (sBwo, False, h) for h in range(4)})
        allpf.update({f"a{h}": (sAwo, False, h) for h in range(4)})
        pick = lambda key, dflt: [allpf[x] for x in opt.get(key, dflt).split("+") if x]
        self.pick = pick
        self.pf_a = pick("pfa", "q0+b2+b3")
        A(f"s_cmp_eq_u32 {sr(sOrd)}, 1")
        A("s_cbranch_scc1 L_q0done")
        A(f"s_cmp_eq_u32 {sr(sOrd)}, 2")
        A("s_cbranch_scc1 L_pfc")
        self.weight_prefetch(pick("pfb", "q2+q3+b0+b1"))
        A("s_branch L_q0done")
        lab("L_pfc")
        if pick("pfc", "a0+a1+a2+a3"):
            self.weight_prefetch(pick("pfc", "a0+a1+a2+a3"), half=True)
        A("s_branch L_q0done")
        lab("L_q0ld")
        self.frag_addrs()
        lab("L_q0done")
        self.stamp(1)
        A("s_branch L_bpath")
        lab("L_apath")
        c("GQA group: four query heads sharing one K/V")
        self.is_loader("L_ct1")
        self.code_touch("L_qa_done", "L_attdone2", 4, 156)
        self.code_touch("L_r0first", "L_rb1", 2, 156)
        lab("L_ct1")
        A(f"s_mov_b32 {sr(sHook)}, 0")
        A(f"s_mov_b32 {sr(sBlk)}, {sr(sB)}")
        A(f"s_mov_b32 {sr(sBlkEnd)}, {3*BLK}")
        A(f"s_mov_b32 {sr(sLate)}, 3")
        A(f"s_call_b64 {sr(LINK_S,2)}, L_wide")
        c("wave c < 4 holds Q of head c; x is dead after the drain barrier")
        self.is_loader("L_qa_ld")
        A("s_barrier")
        A("s_waitcnt vmcnt(0)")
        self.code_refresh(vLq[1] + 2)
        self.code_touch("L_attdone2", "L_head", 2, vLq[1] + 2)
        A(f"s_mul_i32 {sr(sT0)}, {sr(sW)}, {BLK}")
        self.act_write_addr(sT0, None)
        A(f"v_mov_b32 {vr(vT+4)}, {sr(sScale)}")

        def qpack(jp):
            g = []
            for j in (2 * jp, 2 * jp + 1):
                g.append([f"v_xor_b32 {vr(vT+2+j%2)}, {j*32}, {vr(vT+1)}"])
                for n in range(3):
                    y = vY + (j * 3 + n) * 4
                    g += [[self.pkmul(y, vT + 4)], [self.pkmul(y + 2, vT + 4)],
                          [f"v_cvt_pk_bf16_f32 {vr(y)}, {vr(y)}, {vr(y+1)}"], [f"v_cvt_pk_bf16_f32 {vr(y+1)}, {vr(y+2)}, {vr(y+3)}"],
                          [f"ds_write_b64 {vr(vT+2+j%2)}, {vr(y,2)} offset:{n*XN}"]]
            return g

        self.wide_drain(qpack)
        A("s_branch L_qa_done")
        lab("L_qa_ld")
        self.head(8)
        for k in range(4):
            self.dma(k, 0, True, guard=False)
        lab("L_qa_done")
        self.stamp(7)
        c("wave = (head w>>1, key half w&1); O slot j holds d tile j ^ 4(w&1)")
        A(f"s_and_b32 {sr(sT0)}, {sr(sW)}, 1")
        A(f"s_lshl_b32 {sr(sT2)}, {sr(sT0)}, 14")
        A(f"s_lshl_b32 {sr(sT3)}, {sr(sT0)}, 7")
        A(f"s_lshl_b32 {sr(sT0)}, {sr(sT0)}, 10")
        A(f"s_lshr_b32 {sr(sT1)}, {sr(sW)}, 1")
        A(f"s_mul_i32 {sr(sBlk)}, {sr(sT1)}, {BLK}")
        A(f"s_lshl_b32 {sr(sT1)}, {sr(sT1)}, 13")
        A(f"s_add_u32 {sr(sT0)}, {sr(sT0)}, {sr(sT1)}")
        A(f"s_sub_u32 {sr(sT0)}, {sr(sT2)}, {sr(sT0)}")
        A(f"v_add_u32 {vr(vKa)}, {sr(sT0)}, {vr(vKb)}")
        A(f"v_xor_b32 {vr(vTRa)}, {sr(sT3)}, {vr(vTR0)}")
        A(f"v_add_u32 {vr(vTRa)}, {sr(sT2)}, {vr(vTRa)}")
        c("tiles alternate over four slots: the three ring slots and the activation region")
        sKs, sVs, sXa, sXb, sX, sEv = sQ[0], sQ[1], sQ[2], sQ[3], [sT1, sT2], sT0
        A(f"s_mov_b32 {sr(sKs)}, {sr(sC)}")
        self.weave([], self.rot())
        A(f"s_mov_b32 {sr(sVs)}, {sr(sC)}")
        self.weave([], self.rot())
        A(f"s_xor_b32 {sr(sXa)}, {sr(sKs)}, {sr(sC)}")
        A(f"s_xor_b32 {sr(sXb)}, {sr(sVs)}, {XB}")
        A(f"v_add_u32 {vr(vT)}, {sr(sKs)}, {vr(vKa)}")
        for s in range(1, 4):
            A(f"v_xor_b32 {vr(vT+s)}, {s*64}, {vr(vT)}")
        c("load parameters: set pv carries V tiles, set pk carries K tiles (waves 0-3: pv = 0, waves 4-7: pv = 1)")
        A(f"s_lshl_b32 {sr(sT3)}, {sr(sB)}, 3")
        A(f"s_add_u32 {sr(sT3)}, {sr(sT3)}, {sr(sG)}")
        A(f"s_lshl_b32 {sr(sT3)}, {sr(sT3)}, 17")
        A(f"s_lshl_b32 {sr(sT4)}, {sr(sW)}, 10")
        A(f"s_and_b32 {sr(sT5)}, {sr(sT4)}, 4096")
        A(f"s_add_u32 {sr(sT3)}, {sr(sT3)}, {sr(sT5)}")
        A(f"s_add_u32 {sr(sT5)}, {sr(sVs)}, {sr(sT4)}")
        A(f"s_add_u32 {sr(sT4)}, {sr(sC)}, {sr(sT4)}")
        self.weave([], self.rot())
        A(f"s_add_u32 {sr(sP0)}, {sr(sT3)}, {32768-8192}")
        A(f"s_add_u32 {sr(sP1)}, {sr(sT3)}, {65536-8192}")
        A(f"s_bitcmp1_b32 {sr(sW)}, 2")
        for q in range(2):
            lo = ("%s, %s" if q else "%s, %s")
            def sel(y, x):
                return (y, x) if q else (x, y)
            A(f"s_cselect_b64 {sr(SRD_CUR[q],2)}, " + ", ".join(sel(sr(SRD_V, 2), sr(SRD_K, 2))))
            A(f"s_mov_b32 {sr(SRD_CUR[q]+2)}, 16777216")
            A(f"s_cselect_b32 {sr(sOff[q])}, " + ", ".join(sel(sr(sP0), sr(sP1))))
            A(f"s_cselect_b32 {sr(sI[q])}, " + ", ".join(sel(sr(sT5), sr(sT4))))
            A(f"s_cselect_b32 {sr(sX[q])}, " + ", ".join(sel(sr(sXb), sr(sXa))))
            A(f"s_mov_b32 {sr(sStr[q])}, 8192")
            A(f"s_mov_b32 {sr(sTy[q])}, {T_K}")
            A(f"v_lshl_add_u32 {vr(vCur[q])}, {vr(vRow)}, 8, {vr(vChunk)}")
        A(f"s_mov_b32 {sr(sEv)}, 0")
        for n in range(3):
            self.zero(vNm[n], 4)
        A(f"s_mov_b32 {sr(sFix)}, 0")
        A(f"s_mov_b32 {sr(sIter)}, 4")

        def sa(sg, n, t):
            return vS + ((sg * 3 + n) * 2 + t) * 4

        def fa(f):
            return vAfA + (f % NFA) * 4

        def kread(f):
            j, s = f // 4, f % 4
            A(f"ds_read_b128 {vr(fa(f),4)}, {vr(vT+s)} offset:{(j//2)*8192+(j%2)*1024}")

        def sm_check(sg, lr, ln):
            f = [[x] for x in self.maxn(vDl, [sa(sg, 0, 0) + r for r in range(24)])]
            return f + [[f"v_cmp_lt_f32 vcc, {sr(sThr)}, {vr(vDl)}", f"s_cbranch_vccnz {lr}", ln + ":"]]

        def sm_exp(sg):
            f = []
            for n in range(3):
                b = sa(sg, n, 0)
                for r in range(8):
                    f.append([f"v_exp_f32 {vr(b+r)}, {vr(b+r)}"])
                    if r in (3, 5, 7):
                        f.append([f"v_cvt_pk_bf16_f32 {vr(b+(r-3)//2)}, {vr(b+r-3)}, {vr(b+r-2)}"])
                f.append(["s_nop 0", f"v_cvt_pk_bf16_f32 {vr(b+3)}, {vr(b+6)}, {vr(b+7)}"] if n == 2 else
                         [f"v_exp_f32 {vr(b+8)}, {vr(b+8)}", f"v_cvt_pk_bf16_f32 {vr(b+3)}, {vr(b+6)}, {vr(b+7)}"])
            out, skip = [], set()
            for n in (1, 2):
                skip.add(f"v_exp_f32 {vr(sa(sg,n,0))}, {vr(sa(sg,n,0))}")
            for g in f:
                if len(g) == 1 and g[0] in skip:
                    continue
                out.append(g)
            return out

        def aprep(q):
            l1, l2 = self.new("wo"), self.new("wb")
            self.cold += [l1 + ":",
                          f"  s_mov_b64 {sr(SRD_CUR[q],2)}, {sr(SRD_WO,2)}", f"  s_mov_b32 {sr(SRD_CUR[q]+2)}, 4194304",
                          f"  s_mov_b32 {sr(sStr[q])}, 256", f"  s_mov_b32 {sr(sTy[q])}, {T_WO}",
                          f"  v_lshl_add_u32 {vr(vCur[q])}, {vr(vRow)}, 10, {vr(vChunk)}",
                          f"  s_lshl_b32 {sr(sOff[q])}, {sr(sG)}, 4", f"  s_add_u32 {sr(sOff[q])}, {sr(sOff[q])}, {sr(sEv)}",
                          f"  s_sub_u32 {sr(sOff[q])}, {sr(sOff[q])}, 6", f"  s_lshl_b32 {sr(sOff[q])}, {sr(sOff[q])}, 15",
                          f"  s_and_b32 {sr(sP0)}, {sr(sW)}, 4", f"  s_lshl_b32 {sr(sP0)}, {sr(sP0)}, 12",
                          f"  s_add_u32 {sr(sOff[q])}, {sr(sOff[q])}, {sr(sP0)}",
                          f"  s_branch {l2}"]
            return [[f"s_xor_b32 {sr(sI[q])}, {sr(sI[q])}, {sr(sX[q])}"],
                    [f"s_add_u32 {sr(sEv)}, {sr(sEv)}, 1", f"s_cmp_ge_u32 {sr(sEv)}, 6", f"s_cbranch_scc1 {l1}", l2 + ":"]]

        def kstep(first):
            u = "f" if first else "l"
            self.early_head(8 if first else 4, lambda: [kread(f) for f in range(NFA)],
                            (lambda: self.load_bfrags_dyn(vLq[0], QA)) if first else None)
            self.ks(2)
            prim = []
            for f in range(16):
                j, s = f // 4, f % 4
                if opt.get("attd", 0) == 0 and s == 0:
                    prim.append(self.D1(j, 1, first))
                if opt.get("attd", 0) == 1 and f == 0:
                    prim += [self.D1(k, 1, first) for k in range(4)]
                if opt.get("attd", 0) == 2 and f < 8 and f % 2 == 0:
                    prim.append(self.D1(f // 2, 1, first))
                if f % 2 == 0:
                    prim.append(("w", [f"  s_waitcnt lgkmcnt({max(0, min(f + NFA, 16) - (f + 2))})"]))
                for n in range(3):
                    prim.append(self.M(sa(j // 2, n, j % 2), fa(f), QA[n * 4 + s], vNm[n] if s == 0 else None))
                if f + NFA < 16:
                    prim.append(("r", self.cap(kread, f + NFA)))
                if f == 7:
                    half = len(prim)
            zf = []
            if first:
                zf = [[f"v_mov_b32 {vr(vOne+k)}, 0x3f803f80"] for k in range(4)]
            self.weave(prim[:half], aprep(0) + [[f"s_xor_b32 {sr(sKs)}, {sr(sKs)}, {sr(sXa)}"]] + zf, per=1)
            self.ks()
            if opt.get("prio", 1) == 1:
                A("s_setprio 1")
            fill = [[f"s_branch L_r0first", "L_n0f:"]] if first else sm_check(0, "L_r0", "L_n0l")
            fill += sm_exp(0)
            self.weave(prim[half:], fill, per=opt.get('kper', 3), start=10)
            self.ks()
            A(f"s_cmp_eq_u32 {sr(sFix)}, 0")
            A(f"v_add_u32 {vr(vT)}, {sr(sVs)}, {vr(vTRa)}")
            A("s_nop 5")
            A(f"s_cbranch_scc0 L_r0b{u}")
            lab(f"L_n0b{u}")
            self.weave([], sm_check(1, f"L_r1{u}", f"L_n1{u}"))
            self.ks(13)

        def va(mt):
            return vT if mt == 0 else sa(0, (mt - 1) // 4, 0) + 4 + (mt - 1) % 4

        def vread(q):
            sg, mt = q // 8, q % 8
            if mt and not sg:
                A(f"v_xor_b32 {vr(va(mt))}, {mt*32}, {vr(vT)}")
            self.tr_pair(fa(q), va(mt), sg * 8192)

        c("waves 4-7 run one interval behind waves 0-3")
        A(f"s_bitcmp1_b32 {sr(sW)}, 2")
        A("s_cbranch_scc0 L_att0")
        if opt.get("prio", 1) == 2:
            A("s_setprio 1")
        self.weave([], aprep(1))
        self.load_bfrags_dyn(vLq[0], QA)
        lab("L_att0")
        def vstep(first):
            self.early_head(4, lambda: [vread(q) for q in range(NFA)])
            self.ks(4)
            prim = []
            for q in range(16):
                sg, mt = q // 8, q % 8
                z = 0 if (first and sg == 0) else None
                if opt.get("attd", 0) != 1 and q % 2 == 0 and q < 8:
                    prim.append(self.D1(q // 2, 0))
                if opt.get("attd", 0) == 1 and q == 0:
                    prim += [self.D1(k, 0) for k in range(4)]
                if mt == 0:
                    for n in range(3):
                        prim.append(self.M(vLq[n], vOne, sa(sg, n, 0), z))
                if q % 2 == 0:
                    prim.append(("w", [f"  s_waitcnt lgkmcnt({2 * max(0, min(q + NFA, 16) - (q + 2))})"]))
                for n in range(3):
                    prim.append(self.M(vO + (mt * 3 + n) * 4, fa(q), sa(sg, n, 0), z))
                if q + NFA < 16:
                    prim.append(("r", self.cap(vread, q + NFA)))
                    lastr = len(prim)
                if q == 7:
                    half = len(prim)
            self.weave(prim[:half], sm_exp(1), per=opt.get('vper', 2))
            if opt.get("prio", 1) == 1:
                A("s_setprio 0")
            self.ks()
            if first:
                A("s_nop 1")
            else:
                A(f"s_cmp_eq_u32 {sr(sIter)}, 1")
                A("s_cbranch_scc1 L_attlast")
            fill = aprep(1) + [[f"s_xor_b32 {sr(sVs)}, {sr(sVs)}, {sr(sXb)}"]]
            fill.append((lastr - half, [f"v_add_u32 {vr(vT)}, {sr(sKs)}, {vr(vKa)}"]))
            for s in range(1, 4):
                fill.append([f"v_xor_b32 {vr(vT+s)}, {s*64}, {vr(vT)}"])
            self.weave(prim[half:], fill, per=1)
            self.stamp(13)
            return prim[half:]

        kstep(True)
        vstep(True)
        lab("L_attA")
        A(f"s_sub_u32 {sr(sIter)}, {sr(sIter)}, 1")
        kstep(False)
        tail = vstep(False)
        A("s_branch L_attA")
        lab("L_attlast")
        self.weave(tail, aprep(1), per=1)
        self.is_loader("L_attdone")
        self.head(None)
        for k in range(4):
            self.L += self.D1(k, 1)[1]
        self.code_refresh(QA[0])
        self.code_touch("L_head", "L_end", 5, QA[0])
        self.code_touch("L_reduce", "L_wide", 3, QA[0])
        A(f"s_cmp_eq_u32 {sr(sOrd)}, 1")
        A("s_cbranch_scc0 L_nopfa")
        if self.pf_a:
            self.weight_prefetch(self.pf_a, half=True, dst=QA[0])
        lab("L_nopfa")
        A(f"v_mov_b32 {vr(vNm[1]+1)}, {vr(vNm[0])}")
        self.frag_addrs()
        A("s_branch L_attdone2")
        lab("L_attdone")
        A(f"v_mov_b32 {vr(vNm[1]+1)}, {vr(vNm[0])}")
        lab("L_attdone2")
        nmr = [vNm[1] + 1, vNm[1], vNm[2]]
        A("s_setprio 0")
        A(f"s_cmp_eq_u32 {sr(sOrd)}, 1")
        A(f"s_cselect_b32 {sr(sIdx)}, {IDX_AFTER_ATT[0]}, {IDX_AFTER_ATT[1]}")
        A(f"v_readlane_b32 {sr(sE)}, {vr(vTab)}, {sr(sIdx)}")
        self.stamp(8)
        c("merge the two key halves of each head")
        self.srd(SRD_K, sBk, 67108864)
        self.srd(SRD_V, sBv, 67108864)
        self.lane(vT + 3)
        A(f"v_and_b32 {vr(vT)}, 15, {vr(vT+3)}")
        A(f"v_lshlrev_b32 {vr(vT)}, 3, {vr(vT)}")
        A(f"s_mul_i32 {sr(sT0)}, {sr(sW)}, 384")
        A(f"s_add_u32 {sr(sT0)}, {sr(sT0)}, {ST}")
        A(f"v_add_u32 {vr(vT+1)}, {sr(sT0)}, {vr(vT)}")
        A(f"s_xor_b32 {sr(sT1)}, {sr(sW)}, 1")
        A(f"s_mul_i32 {sr(sT0)}, {sr(sT1)}, 384")
        A(f"s_add_u32 {sr(sT0)}, {sr(sT0)}, {ST}")
        A(f"v_add_u32 {vr(vT+2)}, {sr(sT0)}, {vr(vT)}")
        for n in range(3):
            A(f"v_mov_b32 {vr(vLq[n]+1)}, {vr(nmr[n])}")
            A(f"ds_write_b64 {vr(vT+1)}, {vr(vLq[n],2)} offset:{n*128}")
        self.head(None)
        for n in range(3):
            A(f"ds_read_b64 {vr(vAfA+8+2*n,2)}, {vr(vT+2)} offset:{n*128}")
        A(f"s_mul_i32 {sr(sT0)}, {sr(sW)}, 6144")
        A(f"s_add_u32 {sr(sT0)}, {sr(sT0)}, {XB}")
        A(f"s_mul_i32 {sr(sT1)}, {sr(sT1)}, 6144")
        A(f"s_add_u32 {sr(sT1)}, {sr(sT1)}, {XB}")
        A(f"v_lshlrev_b32 {vr(vT)}, 4, {vr(vT+3)}")
        A(f"v_add_u32 {vr(vT+1)}, {sr(sT0)}, {vr(vT)}")
        A(f"v_add_u32 {vr(vT+2)}, {sr(sT1)}, {vr(vT)}")
        A("s_waitcnt lgkmcnt(0)")
        fr = [vAfA + 2 * n for n in range(3)]
        for n in range(3):
            lo, mo = vAfA + 8 + 2 * n, vAfA + 9 + 2 * n
            m, f, fo = vAfA + 16 + n, fr[n], fr[n] + 1
            A(f"v_min_f32 {vr(m)}, {vr(nmr[n])}, {vr(mo)}")
            A(f"v_sub_f32 {vr(f)}, {vr(m)}, {vr(nmr[n])}")
            A(f"v_sub_f32 {vr(fo)}, {vr(m)}, {vr(mo)}")
            A(f"v_exp_f32 {vr(f)}, {vr(f)}")
            A(f"v_exp_f32 {vr(fo)}, {vr(fo)}")
            A("s_nop 0")
            A(f"v_mul_f32 {vr(m)}, {vr(f)}, {vr(vLq[n])}")
            A(f"v_fma_f32 {vr(m)}, {vr(fo)}, {vr(lo)}, {vr(m)}")
            A(f"v_rcp_f32 {vr(m)}, {vr(m)}")
            A("s_nop 0")
            A(f"v_mul_f32 {vr(f)}, {vr(f)}, {vr(m)}")
        c("slots 4-7 go to the partner wave, scaled and packed to bf16")
        for k in range(24):
            o = vO + 48 + 2 * k
            A(self.pkmul(o, fr[(k // 2) % 3]))
        for k in range(24):
            o = vO + 48 + 2 * k
            A(f"v_cvt_pk_bf16_f32 {vr(vS+k)}, {vr(o)}, {vr(o+1)}")
            if k % 4 == 3:
                A(f"ds_write_b128 {vr(vT+1)}, {vr(vS+k-3,4)} offset:{(k//4)*1024}")
        A(f"s_and_b32 {sr(sT0)}, {sr(sW)}, 1")
        A(f"s_lshl_b32 {sr(sT0)}, {sr(sT0)}, 3")
        A(f"s_mov_b32 {sr(sT2)}, 0xffff0000")
        self.head(None)
        for k in range(6):
            A(f"ds_read_b128 {vr(vS+24+4*k,4)}, {vr(vT+2)} offset:{k*1024}")
        self.act_write_addr(sBlk, sT0)
        c("own share of the first Wo tiles must be in; the warm-up loads behind them need not")
        self.is_loader("L_mw0")
        A(f"s_cmp_eq_u32 {sr(sOrd)}, 1")
        A("s_cbranch_scc0 L_mw0")
        A(f"s_waitcnt vmcnt({4*len(self.pf_a)})")
        A("s_branch L_mw2")
        lab("L_mw0")
        A("s_waitcnt vmcnt(0)")
        lab("L_mw2")
        self.head(None)
        for jj in range(4):
            if jj:
                A(f"v_xor_b32 {vr(vT+3)}, {jj*32}, {vr(vT+1)}")
            for n in range(3):
                k = (jj * 3 + n) * 2
                for h in range(2):
                    x = vS + 2 * h
                    A(f"v_lshlrev_b32 {vr(x)}, 16, {vr(vS+24+k+h)}")
                    A(f"v_and_b32 {vr(x+1)}, {sr(sT2)}, {vr(vS+24+k+h)}")
                    A(f"v_pk_fma_f32 {vr(x,2)}, {vr(vO+2*(k+h),2)}, {vr(fr[n],2)}, {vr(x,2)} op_sel_hi:[1,0,1]")
                    A(f"v_cvt_pk_bf16_f32 {vr(vS+4+(k+h)%8)}, {vr(x)}, {vr(x+1)}")
                A(f"ds_write_b64 {vr(vT+3 if jj else vT+1)}, {vr(vS+4+k%8,2)} offset:{n*XN}")
        A(f"s_mov_b32 {sr(sZero)}, 1")
        c("the loaders stream the B-branch x into the blocks the projection has finished with")
        self.srd(SRD_AUX, sBx, 786432)
        self.is_loader("L_xs")
        A("s_branch L_xs2")
        lab("L_xs")
        self.x_setup(vY)
        lab("L_xs2")
        A(f"s_and_b32 {sr(sHook)}, {sr(sOrd)}, 1")
        A(f"s_mov_b32 {sr(sLate)}, {sr(sOrd)}")
        self.stamp(9)
        A(f"s_mov_b32 {sr(sBlk)}, 0")
        A(f"s_call_b64 {sr(LINK_S,2)}, L_wide")
        A(f"s_lshl_b32 {sr(sT0)}, {sr(sB)}, 3")
        A(f"s_add_u32 {sr(sT0)}, {sr(sT0)}, {sr(sG)}")
        A(f"s_mul_i32 {sr(sT0)}, {sr(sT0)}, {PART}")
        A(f"s_add_u32 {sr(sT0)}, {sr(sT0)}, {PART_A_BASE}")
        A(f"s_cmp_eq_u32 {sr(sOrd)}, 2")
        A("s_cbranch_scc1 L_last")
        self.is_loader("L_apk")
        A("s_barrier")
        A("s_waitcnt vmcnt(0)")
        self.pack_y(False, True)
        lab("L_apk")
        self.srd(SRD_WO, sBwo, 4194304)
        A(f"s_mov_b32 {sr(sZero)}, 1")
        self.stamp(10)
        A(f"s_mov_b32 {sr(sHook)}, 0")
        A("s_branch L_q0")
        lab("L_bpath")
        A(f"s_mov_b32 {sr(sK0x)}, 0")
        A(f"s_lshl_b32 {sr(sQKi)}, {sr(sOrd)}, 3")
        A(f"s_lshr_b32 {sr(sQKi)}, {hex(6 | 46 << 8 | 6 << 16)}, {sr(sQKi)}")
        A(f"s_and_b32 {sr(sQKi)}, {sr(sQKi)}, 0xff")
        A(f"s_mov_b32 {sr(sBlk)}, {4*BLK}")

        lab("L_head")
        c("scores of one B head; waves 0-3 join the loading here and first decode the pending tile")
        self.is_loader("L_qk_sync")
        self.code_refresh(156)
        self.code_touch("L_bdone", "L_end", 2, 156)
        self.code_touch("L_reduce", "L_qproj", 2, 156)
        for hd, key, dflt in ((2, "pfb2", ""), (1, "pfb3", "")):
            items = self.pick(key, dflt)
            if items:
                l = self.new("pf")
                A(f"s_lshl_b32 {sr(sT0)}, {sr(sRole)}, 2")
                A(f"s_or_b32 {sr(sT0)}, {sr(sT0)}, {sr(sHead)}")
                A(f"s_cmp_eq_u32 {sr(sT0)}, {hd}")
                A(f"s_cbranch_scc0 {l}")
                self.weight_prefetch(items)
                lab(l)
        A(f"s_mov_b32 {sr(sIdx)}, {sr(sQKi)}")
        A(f"v_readlane_b32 {sr(sE)}, {vr(vTab)}, {sr(sQKi)}")
        A(f"s_sub_u32 {sr(sI[0])}, {sr(sC)}, {TILE}")
        A(f"s_cselect_b32 {sr(sI[0])}, {(NSLOT-1)*TILE}, {sr(sI[0])}")
        A(f"s_add_u32 {sr(sI[0])}, {sr(sI[0])}, {sr(sW1024)}")
        self.weave([], self.prep(0, False))
        lab("L_qk_sync")
        A(f"s_add_u32 {sr(sQKi)}, {sr(sQKi)}, 12")
        A(f"s_max_u32 {sr(sQKi)}, {sr(sQKi)}, 27")
        A(f"s_cmp_eq_u32 {sr(sK0x)}, 0")
        A(f"s_cselect_b32 {sr(sT0)}, {sr(sC)}, {XK}")
        A(f"v_add_u32 {vr(vT)}, {sr(sT0)}, {vr(vKb)}")
        for s in range(1, 4):
            A(f"v_xor_b32 {vr(vT+s)}, {s*64}, {vr(vT)}")
        rf = [vQs + 12, vQs + 14, vQs + 16]
        sm = [vQs + 18, vQs + 20, vQs + 22]

        def st(t, n):
            return vS + (t * 3 + n) * 4

        def b_sub(t):
            return [[f"v_pk_add_f32 {vr(st(t,n)+r,2)}, {vr(st(t,n)+r,2)}, {vr(rf[n],2)} op_sel_hi:[1,0] neg_lo:[0,1] neg_hi:[0,1]"]
                    for n in range(3) for r in (0, 2)]

        def b_check(t):
            f = [[x] for x in self.maxn(vT + 5, [st(t, 0) + r for r in range(12)])]
            return f + [[f"v_cmp_lt_f32 vcc, {sr(sThr)}, {vr(vT+5)}", f"s_cbranch_vccnz L_rb{t}", f"L_nb{t}:"]]

        def b_exp(t):
            f = [[f"v_exp_f32 {vr(st(t,0)+r)}, {vr(st(t,0)+r)}"] for r in range(12)]
            for n in range(3):
                b = st(t, n)
                f.append([f"v_cvt_pk_bf16_f32 {vr(b)}, {vr(b)}, {vr(b+1)}"])
                f.append([f"v_cvt_pk_bf16_f32 {vr(b+1)}, {vr(b+2)}, {vr(b+3)}"])
            return f

        def p_write(t):
            return [f"ds_write_b64 {vr(vPW)}, {vr(st(t,n),2)} offset:{n*XN+t*BLK}" for n in range(3)]

        def p_early(t):
            l = self.new("pe")
            return [(99, [f"s_cmp_eq_u32 {sr(sHead)}, 3", f"s_cbranch_scc1 {l}"] + p_write(t) + [l + ":"])]

        def b_max0():
            f = []
            for n in range(3):
                f += [[x] for x in self.maxn(sm[0] + n, [st(0, n) + r for r in range(4)])]
            f.append([x.strip() for x in self.cap(self.reduce4, sm[0], "v_max_f32")])
            f.append([f"ds_write_b32 {vr(vSTw)}, {vr(sm[0])}"])
            return f

        def b_ref0():
            f = [[f"v_max_f32 {vr(rf[n])}, {vr(rf[n])}, {vr(rf[n]+1)}" for n in range(3)]]
            for sw in ("v_permlane32_swap_b32", "v_permlane16_swap_b32"):
                f.append([f"v_mov_b32 {vr(rf[n]+1)}, {vr(rf[n])}" for n in range(3)] + ["s_nop 1"] +
                         [f"{sw} {vr(rf[n])}, {vr(rf[n]+1)}" for n in range(3)] + ["s_nop 1"] +
                         [f"v_max_f32 {vr(rf[n])}, {vr(rf[n])}, {vr(rf[n]+1)}" for n in range(3)])
            return f

        for T in range(4):
            p = T % 2
            if opt.get("qst"):
                self.stamp(18)
            if T < 2:
                l1, l2 = self.new("h"), self.new("h")
                A(f"s_cmp_eq_u32 {sr(sK0x)}, 0")
                A(f"s_cbranch_scc1 {l1}")
                A(f"s_waitcnt vmcnt({(16, 12)[T]}) lgkmcnt(0)")
                A(f"s_branch {l2}")
                lab(l1)
                A(f"s_waitcnt vmcnt({(8, 4)[T]}) lgkmcnt(0)")
                lab(l2)
                A("s_barrier")
                if opt.get("allsteps") == 1:
                    self.stamp(14)
            else:
                self.head(4)
            if T == 1:
                for n in range(3):
                    A(f"ds_read_b64 {vr(rf[n],2)}, {vr(vT+5)} offset:{n*512}")
            if T == 0:
                self.load_bfrags_dyn(vKf, QF)
            for s in range(4):
                A(f"ds_read_b128 {vr(vKf+4*s,4)}, {vr(vT+s)}")
            nxt = self.prep(1 - p)
            if T == 0:
                l = self.new("np")
                nxt = [[f"s_cmp_eq_u32 {sr(sK0x)}, 0", f"s_cbranch_scc0 {l}"]] + nxt + [[l + ":"]]
            if T < 3:
                nxt.append([f"v_add_u32 {vr(vT+4)}, {sr(sC)}, {vr(vKb)}"])
                nxt += [[f"v_xor_b32 {vr(vT+s)}, {s*64}, {vr(vT+4)}"] for s in range(4)]
            if opt.get("qkearly", 1):
                self.split_dma(p, True if T < 2 else None, sK0x if T == 1 else None)
            self.weave([], nxt)
            if opt.get("qst"):
                self.stamp(16)
            if T == 0:
                A(f"v_mov_b32 {vr(vT+5)}, {FLAG}")
                A(f"v_mov_b32 {vr(vT+6)}, 0")
            prim = []
            for s in range(4):
                prim.append(("w", [f"  s_waitcnt lgkmcnt({3-s})"]))
                for n in range(3):
                    prim.append(self.M(st(T, n), vKf + 4 * s, QF[n * 4 + s], 0 if s == 0 else None))
            fill = []
            if T == 1:
                fill = b_ref0() + b_sub(0) + b_exp(0) + p_early(0)
            if T >= 2:
                fill = b_sub(T - 1) + b_check(T - 1) + b_exp(T - 1) + p_early(T - 1)
            self.weave(prim, fill, per=opt.get('qkper', 3))
            if T == 0:
                A(f"ds_write_b32 {vr(vT+5)}, {vr(vT+6)}")
                self.lane(vT + 5)
                A(f"v_lshrrev_b32 {vr(vT+5)}, 4, {vr(vT+5)}")
                A(f"v_lshl_add_u32 {vr(vT+5)}, {vr(vT+5)}, 3, {vr(vSTr)}")
                A("s_nop 4")
                self.weave([], b_max0())
            if opt.get("qst"):
                self.stamp(17)
            if T < 3 and not opt.get("qkearly", 1):
                self.split_dma(p, True if T < 2 else None, sK0x if T == 1 else None)
        self.stamp(2)
        c("last score tile; a wave that had to raise its reference left a flag")
        A(f"v_mov_b32 {vr(vT+4)}, {FLAG}")
        A("s_nop 6")
        if not opt.get("qkearly", 1):
            self.split_dma(1, None)
        self.weave([], b_sub(3) + b_check(3) + b_exp(3))
        self.bsm = (rf, sm, st, p_write)
        A(f"s_and_b32 {sr(sK0x)}, {sr(sHead)}, 2")
        A(f"s_lshl_b32 {sr(sHook)}, {sr(sK0x)}, 1")
        A(f"s_mov_b32 {sr(sBlkEnd)}, 0")
        A(f"s_mov_b32 {sr(sFix)}, 0")
        A(f"s_cmp_eq_u32 {sr(sHead)}, 3")
        A("s_cbranch_scc1 L_first")
        self.emit(p_write(3))
        A(f"s_mov_b32 {sr(sLate)}, 0")
        self.head(4)
        self.stamp(3)
        A(f"s_bitcmp1_b32 {sr(sW)}, 2")
        A("s_cbranch_scc0 L_pv_body")
        A(f"ds_read_b32 {vr(vT+5)}, {vr(vT+4)}")
        A("s_waitcnt lgkmcnt(0)")
        A(f"v_cmp_ne_u32 vcc, 0, {vr(vT+5)}")
        A("s_cbranch_vccz L_ld_ok")
        A(f"s_call_b64 {sr(LINK_S,2)}, L_bfix")
        lab("L_ld_ok")
        for k in range(4):
            self.dma(k, 0, True, False)
        A(f"s_mov_b32 {sr(sT4)}, 0")
        A(f"s_call_b64 {sr(LINK_S,2)}, L_load2")
        A("s_branch L_pv_done")
        lab("L_first")
        c("B role, first head: remaining Q projections while x is still live")
        self.head(None)
        A(f"ds_read_b32 {vr(vT+5)}, {vr(vT+4)}")
        A("s_waitcnt lgkmcnt(0)")
        A(f"v_cmp_ne_u32 vcc, 0, {vr(vT+5)}")
        A("s_cbranch_vccz L_f_ok")
        A(f"s_call_b64 {sr(LINK_S,2)}, L_bfix")
        lab("L_f_ok")
        A(f"s_mov_b32 {sr(sHook)}, 0")
        self.is_loader("L_f_ld")
        A("s_waitcnt vmcnt(0)")
        A("s_branch L_f_go")
        lab("L_f_ld")
        for k in range(4):
            self.dma(k, 0, False, guard=False)
        A("s_waitcnt vmcnt(12)")
        lab("L_f_go")
        for k in range(2):
            A(f"s_mov_b32 {sr(sLate)}, {2*k}")
            A(f"s_call_b64 {sr(LINK_S,2)}, L_qproj")
            for r in range(0, 12, 2):
                A(f"v_mov_b64 {vr(vQs+12*k+r,2)}, {vr(vAcc+r,2)}")
        A("s_barrier")
        self.stamp(12)
        for t in range(4):
            self.emit(p_write(t))
        A(f"s_mov_b32 {sr(sFix)}, 1")
        A(f"s_mov_b32 {sr(sLate)}, 0")
        A(f"s_mov_b32 {sr(sHook)}, 4")
        A(f"v_mov_b32 {vr(vT+4)}, {FLAG}")
        self.head(8)
        self.is_loader("L_ld_ok")
        c("P x V")
        vOn = vY - 16
        pre2 = [x.strip() for x in self.cap(q_write, vQs, 0)]
        ex2 = [[f"v_mov_b64 {vr(vQs+r,2)}, {vr(vQs+12+r,2)}"] for r in range(0, 12, 2)]
        chk = [f"  v_cmp_ne_u32 vcc, 0, {vr(vT+5)}", f"  s_cbranch_vccnz L_pv_fix", "L_pv_go:"]
        chk += [f"  v_mov_b32 {vr(vOn+k)}, 0x3f803f80" for k in range(4)] + ["  s_nop 1"]
        self.cold += ["L_pv_fix:", f"  s_cmp_eq_u32 {sr(sFix)}, 0", "  s_cbranch_scc0 L_pv_go",
                      f"  s_call_b64 {sr(LINK_S,2)}, L_bfix", "  s_branch L_pv_body"]
        self.narrow(pre={0: [f"ds_read_b32 {vr(vT+5)}, {vr(vT+4)}"], 2: pre2},
                    extra={2: ex2}, early=True, body="L_pv_body", check=chk, ones=vOn, vm1=0)
        mreg = [vOn + 4 + 4 * n for n in range(3)]
        A("s_nop 7")
        for n in range(3):
            A(f"v_rcp_f32 {vr(mreg[n])}, {vr(mreg[n])}")
        for k in range(6):
            a = vAcc + 4 * k
            A(self.pkmul(a, mreg[k % 3]))
            A(self.pkmul(a + 2, mreg[k % 3]))
            A(f"v_cvt_pk_bf16_f32 {vr(vAcc+2*k)}, {vr(a)}, {vr(a+1)}")
            A(f"v_cvt_pk_bf16_f32 {vr(vAcc+2*k+1)}, {vr(a+2)}, {vr(a+3)}")
        q_write(vAcc, 4)
        lab("L_pv_done")
        self.stamp(4)
        c("output projection")
        A(f"s_mov_b32 {sr(sHook)}, 0")
        A(f"s_sub_u32 {sr(sHead)}, {sr(sHead)}, 1")
        A(f"s_mov_b32 {sr(sLate)}, 2")
        A(f"s_cmp_eq_u32 {sr(sOrd)}, 2")
        A("s_cbranch_scc0 L_ob")
        A(f"s_mov_b32 {sr(sLate)}, 1")
        A(f"s_mov_b32 {sr(sHook)}, 2")
        self.srd(SRD_K, sAk, 16777216)
        self.srd(SRD_V, sAv, 16777216)
        self.srd(SRD_AUX, sAx, 786432)
        lab("L_ob")
        A(f"s_mov_b32 {sr(sBlk)}, 16")
        A(f"s_call_b64 {sr(LINK_S,2)}, L_wide")
        self.stamp(5)
        A(f"s_mov_b32 {sr(sBlk)}, 0")
        A(f"s_cmp_eq_u32 {sr(sHead)}, 0")
        A("s_cbranch_scc1 L_bdone")
        self.is_loader("L_head")
        self.wide_drain()
        A("s_branch L_head")
        lab("L_bdone")
        c("store the B-branch partial")
        A(f"s_lshl_b32 {sr(sT0)}, {sr(sB)}, 4")
        A(f"s_lshl_b32 {sr(sT1)}, {sr(sRole)}, 3")
        A(f"s_add_u32 {sr(sT0)}, {sr(sT0)}, {sr(sT1)}")
        A(f"s_add_u32 {sr(sT0)}, {sr(sT0)}, {sr(sG)}")
        A(f"s_mul_i32 {sr(sT0)}, {sr(sT0)}, {PART}")
        A(f"s_cmp_eq_u32 {sr(sOrd)}, 2")
        A("s_cbranch_scc0 L_last")
        self.is_loader("L_bpk2")
        A("s_barrier")
        self.pack_y(False, True)
        lab("L_bpk2")
        self.srd(SRD_WO, sAwo, 4194304)
        A(f"s_mov_b32 {sr(sZero)}, 1")
        self.stamp(6)
        A("s_branch L_apath")
        lab("L_last")
        self.stamp(16)
        self.is_loader("L_bpk")
        if opt.get("finprio"):
            A("s_setprio 3")
        self.pack_y(False, True)
        self.stamp(6)
        if self.fuse:
            self.publish()
        A("s_branch L_fin")
        lab("L_bpk")
        if self.fuse:
            c("waves 4-6 sum one 1 KiB block each of this workgroup's slice of the output")
            A(f"s_cmp_eq_u32 {sr(sW)}, 7")
            A("s_cbranch_scc1 L_fin")
            self.stamp(8)
            self.reduce_setup()
            A(f"s_lshl_b32 {sr(rKb)}, {sr(sRole)}, 3")
            A(f"s_add_u32 {sr(rKb)}, {sr(rKb)}, {sr(sG)}")
            A(f"s_mul_i32 {sr(rKb)}, {sr(rKb)}, 3")
            A(f"s_add_u32 {sr(rKb)}, {sr(rKb)}, {sr(sW)}")
            A(f"s_sub_u32 {sr(rKb)}, {sr(rKb)}, 4")
            A(f"s_sub_u32 {sr(rMode)}, {sr(sW)}, 4")
            A(f"s_min_u32 {sr(rMode)}, {sr(rMode)}, 1")
            A(f"s_call_b64 {sr(LINK_S,2)}, L_reduce")
        lab("L_fin")
        if opt.get("dbg"):
            A("s_waitcnt vmcnt(0)")
            A("s_memrealtime s[76:77]")
            A("s_memtime s[68:69]")
            A("s_waitcnt lgkmcnt(0)")
            A("s_sub_u32 s68, s68, s78")
            A("v_mov_b32 v16, v23")
            A("v_mov_b32 v17, s76")
            A("v_mov_b32 v18, s68")
            A("s_getpc_b64 s[70:71]")
            A("s_mov_b32 s69, s70")
            A("v_mov_b32 v19, s69")
            A("s_lshl_b32 s70, s2, 4")
            A("s_add_u32 s70, s70, 0x4000000")
            A("v_mov_b32 v21, s70")
            A(f"s_cmp_eq_u32 s3, {4 if self.fuse else 0}")
            A("s_cbranch_scc0 L_end")
            A("s_mov_b64 exec, 1")
            A("global_store_dwordx4 v21, v[16:19], s[54:55]")
        if opt.get("stamps"):
            A("s_waitcnt vmcnt(0)")
            self.stamp(11)
            self.srd(SRD_AUX, sWs, 268435456)
            A(f"s_lshl_b32 {sr(sT0)}, s2, 3")
            A(f"s_add_u32 {sr(sT0)}, {sr(sT0)}, {sr(sW)}")
            A(f"s_lshl_b32 {sr(sT0)}, {sr(sT0)}, 8")
            A(f"s_add_u32 {sr(sT0)}, {sr(sT0)}, {64*1024*1024}")
            self.lane(vT)
            A(f"v_lshlrev_b32 {vr(vT)}, 2, {vr(vT)}")
            A(f"buffer_store_dword {vr(23)}, {vr(vT)}, {sr(SRD_AUX,4)}, {sr(sT0)} offen")
        lab("L_end")
        A("s_endpgm")

        sc = vLq[0] + 1

        def sub_delta(sg):
            for n in range(3):
                for r in range(8):
                    b = sa(sg, n, 0) + r
                    A(f"v_sub_f32 {vr(b)}, {vr(b)}, {vr(vDl+n)}")

        def allmax(sg):
            for n in range(3):
                self.emit(self.maxn(vDl + n, [sa(sg, n, 0) + r for r in range(8)]))
                for sw in ("v_permlane32_swap_b32", "v_permlane16_swap_b32"):
                    A(f"v_mov_b32 {vr(sc)}, {vr(vDl+n)}")
                    A("s_nop 1")
                    A(f"{sw} {vr(vDl+n)}, {vr(sc)}")
                    A("s_nop 1")
                    A(f"v_max_f32 {vr(vDl+n)}, {vr(vDl+n)}, {vr(sc)}")

        def scale_state(with_p0):
            for n in range(3):
                A(f"v_max_f32 {vr(vDl+n)}, 0, {vr(vDl+n)}")
                A(f"v_exp_f32 {vr(sc)}, -{vr(vDl+n)}")
                A("s_nop 0")
                A(f"v_mul_f32 {vr(vLq[n])}, {vr(vLq[n])}, {vr(sc)}")
                for mt in range(8):
                    for r in range(4):
                        o = vO + (mt * 3 + n) * 4 + r
                        A(f"v_mul_f32 {vr(o)}, {vr(o)}, {vr(sc)}")
                if with_p0:
                    b = sa(0, n, 0)
                    for r in range(4):
                        A(f"v_lshlrev_b32 {vr(b+4)}, 16, {vr(b+r)}")
                        A(f"v_and_b32 {vr(b+5)}, 0xffff0000, {vr(b+r)}")
                        A(f"v_mul_f32 {vr(b+4)}, {vr(b+4)}, {vr(sc)}")
                        A(f"v_mul_f32 {vr(b+5)}, {vr(b+5)}, {vr(sc)}")
                        A(f"v_cvt_pk_bf16_f32 {vr(b+r)}, {vr(b+4)}, {vr(b+5)}")

        lab("L_r0first")
        allmax(0)
        sub_delta(0)
        A(f"s_mov_b32 {sr(sFix)}, 1")
        A("s_branch L_n0f")
        lab("L_r0")
        allmax(0)
        scale_state(False)
        sub_delta(0)
        A(f"s_mov_b32 {sr(sFix)}, 1")
        A("s_branch L_n0l")
        for u in "fl":
            lab(f"L_r0b{u}")
            A(f"s_call_b64 {sr(LINK_S,2)}, L_fix1")
            A(f"s_branch L_n0b{u}")
            lab(f"L_r1{u}")
            A(f"s_call_b64 {sr(LINK_S,2)}, L_scale1")
            A(f"s_branch L_n1{u}")
        lab("L_scale1")
        allmax(1)
        scale_state(True)
        lab("L_fix1")
        sub_delta(1)
        for n in range(3):
            for r in range(4):
                A(f"v_sub_f32 {vr(vNm[n]+r)}, {vr(vNm[n]+r)}, {vr(vDl+n)}")
        A(f"s_mov_b32 {sr(sFix)}, 0")
        A(f"s_setpc_b64 {sr(LINK_S,2)}")

        self.L += self.cold
        rf, sm, st, p_write = self.bsm

        def repack(regs, f, lo, hi):
            for r in regs:
                A(f"v_lshlrev_b32 {vr(lo)}, 16, {vr(r)}")
                A(f"v_and_b32 {vr(hi)}, 0xffff0000, {vr(r)}")
                A(f"v_mul_f32 {vr(lo)}, {vr(lo)}, {vr(f)}")
                A(f"v_mul_f32 {vr(hi)}, {vr(hi)}, {vr(f)}")
                A(f"v_cvt_pk_bf16_f32 {vr(r)}, {vr(lo)}, {vr(hi)}")

        for t in range(1, 4):
            lab(f"L_rb{t}")
            d, f = vT + 5, vT + 6
            for n in range(3):
                self.emit(self.maxn(d, [st(t, n) + r for r in range(4)]))
                for sw in ("v_permlane32_swap_b32", "v_permlane16_swap_b32"):
                    A(f"v_mov_b32 {vr(f)}, {vr(d)}")
                    A("s_nop 1")
                    A(f"{sw} {vr(d)}, {vr(f)}")
                    A("s_nop 1")
                    A(f"v_max_f32 {vr(d)}, {vr(d)}, {vr(f)}")
                A(f"v_max_f32 {vr(d)}, 0, {vr(d)}")
                A(f"v_exp_f32 {vr(f)}, -{vr(d)}")
                A(f"v_add_f32 {vr(rf[n])}, {vr(rf[n])}, {vr(d)}")
                for r in range(4):
                    A(f"v_sub_f32 {vr(st(t,n)+r)}, {vr(st(t,n)+r)}, {vr(d)}")
                repack([st(u, n) + k for u in range(t) for k in range(2)], f, st(0, n) + 2, st(0, n) + 3)
            A(f"s_lshl_b32 {sr(sT0)}, {sr(sW)}, 2")
            A(f"v_add_u32 {vr(d)}, {sr(sT0)}, {vr(vSTr)}")
            for n in range(3):
                A(f"ds_write_b32 {vr(d)}, {vr(rf[n])} offset:{n*512}")
            A(f"v_mov_b32 {vr(d)}, {FLAG}")
            A(f"v_mov_b32 {vr(f)}, 1")
            A(f"ds_write_b32 {vr(d)}, {vr(f)}")
            A(f"s_branch L_nb{t}")
        lab("L_bfix")
        A("s_waitcnt lgkmcnt(0)")
        for n in range(3):
            A(f"ds_read_b128 {vr(vFr,4)}, {vr(vSTr)} offset:{n*512}")
            A(f"ds_read_b128 {vr(vFr+4,4)}, {vr(vSTr)} offset:{n*512+16}")
            A("s_waitcnt lgkmcnt(0)")
            self.emit(self.maxn(rf[n] + 1, [rf[n]] + [vFr + r for r in range(8)]))
            A(f"v_sub_f32 {vr(rf[n])}, {vr(rf[n])}, {vr(rf[n]+1)}")
            A(f"v_exp_f32 {vr(rf[n])}, {vr(rf[n])}")
            A("s_nop 0")
            repack([st(u, n) + k for u in range(4) for k in range(2)], rf[n], st(0, n) + 2, st(0, n) + 3)
        A(f"s_mov_b32 {sr(sFix)}, 1")
        A(f"s_cmp_eq_u32 {sr(sHead)}, 3")
        A("s_cbranch_scc1 L_bfix_ret")
        A("s_barrier")
        for t in range(4):
            self.emit(p_write(t))
        self.head(None)
        lab("L_bfix_ret")
        A(f"s_setpc_b64 {sr(LINK_S,2)}")

        if self.fuse:
            self.reduce_sub()
        lab("L_qproj")
        A(f"s_mov_b32 {sr(sBlkEnd)}, 0")
        self.is_loader("L_load")
        self.narrow()
        A(f"v_mov_b32 {vr(vT)}, {sr(sScale)}")
        A("s_nop 6")
        for k in range(6):
            a = vAcc + 4 * k
            A(self.pkmul(a, vT))
            A(self.pkmul(a + 2, vT))
            A(f"v_cvt_pk_bf16_f32 {vr(vAcc+2*k)}, {vr(a)}, {vr(a+1)}")
            A(f"v_cvt_pk_bf16_f32 {vr(vAcc+2*k+1)}, {vr(a+2)}, {vr(a+3)}")
        A(f"s_setpc_b64 {sr(LINK_S,2)}")

        def af(j, p):
            return vFr + 4 * (j + 2 * p if j >= 6 else j)

        def wb(n, p):
            return vAcc + (p * 3 + n) * 4

        def wide_rd(j, p):
            a = vT + 1 + (j % 2)
            A(f"v_xor_b32 {vr(a)}, {j*32}, {vr(vT+3+3*p)}")
            self.tr_pair(af(j, p), a, 0)

        def wide_addr(t):
            return [[f"s_add_u32 {sr(sT0)}, {sr(sC)}, {sr(sT1)}"],
                    [f"v_add_u32 {vr(vT+3+3*(t%2))}, {sr(sT0)}, {vr(vTR0)}"],
                    [f"s_and_b32 {sr(sT3)}, {sr(sBlk)}, 3"], [f"s_lshl_b32 {sr(sT3)}, {sr(sT3)}, 6"],
                    [f"s_lshr_b32 {sr(sT5)}, {sr(sBlk)}, 2"], [f"s_mul_i32 {sr(sT5)}, {sr(sT5)}, {BLK}"],
                    [f"v_xor_b32 {vr(vT+5)}, {sr(sT3)}, {vr(vXB)}"], [f"v_add_u32 {vr(vT+5)}, {sr(sT5)}, {vr(vT+5)}"]]

        def wide_step(t, pending, reads=True, zero=False):
            p = t % 2
            if reads:
                self.head(None)
            else:
                A("s_waitcnt lgkmcnt(0)")
            prim = []
            for j in range(8):
                if pending and not opt.get("nomfma"):
                    for n in range(3):
                        prim.append(self.M(vY + (j * 3 + n) * 4, af(j, 1 - p), wb(n, 1 - p), 0 if zero else None))
                if reads and not opt.get("nords"):
                    if j == 0:
                        prim.append(("r", [f"  ds_read_b128 {vr(wb(n,p),4)}, {vr(vT+5)} offset:{n*XN}" for n in range(3)]))
                    if j < 6:
                        prim.append(("r", self.cap(wide_rd, j, p)))
                    if j < 2:
                        prim.append(("r", self.cap(wide_rd, 6 + j, p)))
            fill = []
            if reads:
                fill = self.rot()
                if t == 3:
                    fill.append([f"s_add_u32 {sr(sT4)}, {sr(sT4)}, {BLK}"])
                fill += [[f"s_add_u32 {sr(sBlk)}, {sr(sBlk)}, 1"], [f"s_and_b32 {sr(sBlk)}, {sr(sBlk)}, {sr(sT2)}"]]
                fill += wide_addr((t + 1) % 4)
            self.weave(prim, fill, per=1, start=5)

        lab("L_wide")
        self.is_loader("L_load")
        A(f"s_lshl_b32 {sr(sT1)}, {sr(sW)}, 13")
        A(f"s_mov_b32 {sr(sT4)}, 0")
        A(f"s_cmp_eq_u32 {sr(sBlkEnd)}, 0")
        A(f"s_cselect_b32 {sr(sT2)}, 31, 15")
        self.weave([], wide_addr(0))
        wide_step(0, False)
        A(f"s_cmp_eq_u32 {sr(sZero)}, 0")
        A("s_cbranch_scc1 L_wide_loop")
        A(f"s_mov_b32 {sr(sZero)}, 0")
        wide_step(1, True, zero=True)
        A("s_branch L_wide_s2")
        lab("L_wide_loop")
        wide_step(1, True)
        lab("L_wide_s2")
        wide_step(2, True)
        wide_step(3, True)
        A(f"s_cmp_gt_u32 {sr(sT4)}, {sr(sBlkEnd)}")
        A("s_cbranch_scc1 L_wide_drain")
        wide_step(0, True)
        A("s_branch L_wide_loop")
        lab("L_wide_drain")
        A("s_waitcnt lgkmcnt(0)")
        A(f"s_setpc_b64 {sr(LINK_S,2)}")

        def ld_step(p, vm, prep=True, xblk=None):
            self.head(vm)
            l1, l2 = self.new("kv"), self.new("dd")
            variants = [self.wf] if self.kvf == self.wf else [self.wf, self.kvf]
            if len(variants) > 1:
                A(f"s_bitcmp1_b32 6, {sr(sTy[p])}")
                A(f"s_cbranch_scc1 {l1}")
            for vi, fl in enumerate(variants):
                if vi:
                    A(f"s_branch {l2}")
                    lab(l1)
                prim = []
                for k in range(8):
                    ins = [f"  s_add_u32 m0, {sr(sI[p])}, {k*4096}"]
                    if k % 2:
                        ins.append(f"  s_add_u32 {sr(sOff2)}, {sr(sOff[p])}, {sr(sHalf[p])}")
                    elif k:
                        ins.append(f"  s_add_u32 {sr(sOff[p])}, {sr(sOff[p])}, {sr(sStr[p])}")
                    else:
                        ins.append("  s_nop 0")
                    ins.append(f"  buffer_load_dwordx4 {vr(vCur[p])}, {sr(SRD_CUR[p],4)}, {sr(sOff2 if k % 2 else sOff[p])} offen{fl} lds")
                    if vi and k == 6:
                        ins = self.ev() + ins
                    prim.append(("m", ins))
                self.weave(prim, self.prep(1 - p) if prep else [], per=opt.get('ldper', 2), start=opt.get('ldstart', 0))
            lab(l2)
            if xblk is not None:
                l3 = self.new("hk")
                A(f"s_cmp_eq_u32 {sr(sHook)}, 1")
                A(f"s_cbranch_scc0 {l3}")
                self.x_block(vY, 0)
                A(f"s_add_u32 {sr(sT1)}, {sr(sT1)}, 256")
                A(f"s_add_u32 {sr(sT2)}, {sr(sT2)}, {BLK}")
                lab(l3)

        lab("L_load")
        A(f"s_mov_b32 {sr(sT4)}, 0")
        A(f"s_cmp_eq_u32 {sr(sIdx)}, 3")
        A("s_cbranch_scc0 L_load1")
        self.head(3)
        self.first_tile(1)
        self.x_rot(vY, 2)
        self.first_tile(2)
        if not opt.get("x3late", 1):
            self.x_rot(vY, 3)
        else:
            A(f"s_add_u32 {sr(sP0)}, {sr(sOff2)}, 3")
            A(f"s_and_b32 {sr(sP0)}, {sr(sP0)}, 3")
            A(f"s_cmp_eq_u32 {sr(sOrd)}, 1")
            A(f"s_cselect_b32 {sr(sP1)}, {sr(sP0)}, 3")
            A(f"s_mul_i32 {sr(sP1)}, {sr(sP1)}, {BLK}")
            A(f"s_add_u32 {sr(sT2)}, {sr(sP1)}, {sr(sHalf[1])}")
            A(f"s_lshl_b32 {sr(sP0)}, {sr(sP0)}, 8")
            A(f"s_add_u32 {sr(sT1)}, {sr(sP0)}, {sr(sHalf[0])}")
        A("s_branch L_load2")
        lab("L_load1")
        self.head(16)
        lab("L_load2")
        if opt.get("ldprio", 1):
            A("s_setprio 2")
        self.weave([], self.prep(1))
        lab("L_ldloop")
        ld_step(1, 8)
        if opt.get("x3late", 1):
            A(f"s_cmp_eq_u32 {sr(sIdx)}, 5")
            A("s_cbranch_scc0 L_ldh1")
            self.x_block(vY, 0)
            lab("L_ldh1")
        A(f"s_cmp_eq_u32 {sr(sHook)}, 2")
        A("s_cbranch_scc0 L_ldh2")
        self.x_setup(vY)
        self.x_rot(vY, 0, True)
        self.x_rot(vY, 1, True)
        lab("L_ldh2")
        ld_step(0, 8)
        A(f"s_cmp_eq_u32 {sr(sLate)}, 3")
        A("s_cbranch_scc0 L_ld3")
        A(f"s_cmp_eq_u32 {sr(sT4)}, {sr(sBlkEnd)}")
        A("s_cbranch_scc0 L_ld3")
        self.head(8)
        self.weave([], self.prep(0))
        A("s_barrier")
        for k in range(4):
            self.dma(k, 1, True, guard=False)
        if opt.get("ldprio", 1):
            A("s_setprio 0")
        A(f"s_setpc_b64 {sr(LINK_S,2)}")
        lab("L_ld3")
        ld_step(1, 8)
        A(f"s_add_u32 {sr(sT4)}, {sr(sT4)}, {BLK}")
        A(f"s_cmp_gt_u32 {sr(sT4)}, {sr(sBlkEnd)}")
        A("s_cbranch_scc1 L_lddrain")
        ld_step(0, 8, xblk=0)
        A("s_branch L_ldloop")
        lab("L_lddrain")
        A(f"s_cmp_eq_u32 {sr(sLate)}, 2")
        A("s_cbranch_scc1 L_ldret")
        ld_step(0, None, prep=False, xblk=3)
        A(f"s_cmp_eq_u32 {sr(sHook)}, 4")
        A("s_cbranch_scc0 L_ldh3")
        self.weave([], self.prep(1, False))
        A(f"s_add_u32 {sr(sI[1])}, {sr(sW1024)}, {XK}")
        for k in range(4):
            self.dma(k, 1, True, guard=False)
        lab("L_ldh3")
        A(f"s_cmp_eq_u32 {sr(sHook)}, 2")
        A("s_cbranch_scc0 L_ldret")
        self.x_rot(vY, 2, True)
        self.x_rot(vY, 3, True)
        lab("L_ldret")
        if opt.get("ldprio", 1):
            A(f"s_setprio {opt.get('qkprio', 0)}")
        A(f"s_setpc_b64 {sr(LINK_S,2)}")

    def reduce_kernel(self):
        A, lab = self.A, self.lab
        K2 = "reduce_partials_kernel"
        self.L += [f".globl {K2}", ".p2align 8", f".type {K2},@function"]
        lab(K2)
        A("s_cmp_ge_u32 s2, 384")
        A("s_cbranch_scc1 L_r_end")
        A("s_load_dwordx2 s[4:5], s[0:1], 80")
        A("s_load_dwordx2 s[6:7], s[0:1], 96")
        if self.opt.get("dbg") == 2:
            A("s_cmp_eq_u32 s2, 0")
            A("s_cbranch_scc0 L_r_nod")
            A("s_load_dwordx2 s[26:27], s[0:1], 88")
            A("s_memrealtime s[28:29]")
            A("s_waitcnt lgkmcnt(0)")
            A("v_lshlrev_b32 v1, 4, v0")
            A("v_add_u32 v1, 0x4000000, v1")
            A("global_load_dwordx4 v[8:11], v1, s[6:7]")
            A("s_waitcnt vmcnt(0)")
            A("v_not_b32 v12, v8")
            A("v_sub_u32 v13, v9, v8")
            A("v_mov_b32 v14, 0")
            A("v_lshrrev_b32 v15, 7, v0")
            A("v_lshlrev_b32 v15, 3, v15")
            A("v_mov_b32 v7, s28")
            A("global_atomic_umax v14, v12, s[26:27]")
            A("global_atomic_umax v14, v9, s[26:27] offset:4")
            A("global_atomic_umax v15, v13, s[26:27] offset:8")
            A("global_atomic_umax v15, v10, s[26:27] offset:12")
            A("global_atomic_umax v14, v8, s[26:27] offset:24")
            A("global_atomic_umax v14, v7, s[26:27] offset:28")
            lab("L_r_nod")
        A("s_mul_i32 s3, s2, 43691")
        A("s_lshr_b32 s3, s3, 19")
        A("s_mul_i32 s16, s3, 12")
        A("s_sub_u32 s16, s2, s16")
        A("s_and_b32 s17, s3, 15")
        A("s_lshr_b32 s18, s3, 4")
        A("s_lshl_b32 s19, s16, 12")
        A("v_lshlrev_b32 v2, 4, v0")
        A("v_add_u32 v2, s19, v2")
        A("s_mul_i32 s23, s16, 86")
        A("s_lshr_b32 s23, s23, 8")
        A("s_mul_i32 s24, s23, 3")
        A("s_sub_u32 s24, s16, s24")
        A("s_lshl_b32 s24, s24, 15")
        A("s_lshl_b32 s23, s23, 8")
        A("s_add_u32 s24, s24, s23")
        A("v_and_b32 v6, 15, v0")
        A("v_lshlrev_b32 v6, 11, v6")
        A("v_lshrrev_b32 v7, 6, v0")
        A("v_lshl_add_u32 v6, v7, 6, v6")
        A("v_bfe_u32 v7, v0, 4, 1")
        A("v_lshl_add_u32 v6, v7, 5, v6")
        A("v_bfe_u32 v7, v0, 5, 1")
        A("v_lshl_add_u32 v6, v7, 4, v6")
        A("s_waitcnt lgkmcnt(0)")
        A("s_mov_b32 s8, s4"); A("s_mov_b32 s9, s5"); A("s_mov_b32 s10, 1572864"); A("s_mov_b32 s11, 0x20000")
        A("s_mov_b32 s12, s6"); A("s_mov_b32 s13, s7"); A("s_mov_b32 s14, 268435456"); A("s_mov_b32 s15, 0x20000")
        A("s_mul_i32 s20, s17, 98304")
        A("s_add_u32 s20, s20, s24")
        A("s_mov_b32 s22, 0xffff0000")
        A("s_cmp_eq_u32 s18, 1")
        A("s_cbranch_scc1 L_r_A")

        def body(np_):
            for p in range(np_):
                A(f"buffer_load_dwordx4 v[{16+4*p}:{19+4*p}], v2, s[12:15], s21 offen" + self.opt.get("rdflag", ""))
                if p + 1 < np_:
                    A(f"s_add_u32 s21, s21, {PART}")
            for p in range(np_):
                A(f"s_waitcnt vmcnt({np_-1-p})")
                for k in range(4):
                    r = 16 + 4 * p + k
                    if p == 0:
                        A(f"v_lshlrev_b32 v{8+2*k}, 16, v{r}")
                        A(f"v_and_b32 v{9+2*k}, s22, v{r}")
                    else:
                        A(f"v_lshlrev_b32 v4, 16, v{r}")
                        A(f"v_and_b32 v5, s22, v{r}")
                        A(f"v_pk_add_f32 v[{8+2*k}:{9+2*k}], v[{8+2*k}:{9+2*k}], v[4:5]")

        A(f"s_mul_i32 s21, s17, {16*PART}")
        A("s_add_u32 s20, s20, 1024")
        body(16)
        A("s_branch L_r_st")
        lab("L_r_A")
        A(f"s_mul_i32 s21, s17, {8*PART}")
        A(f"s_add_u32 s21, s21, {PART_A_BASE}")
        body(8)
        lab("L_r_st")
        for k in range(4):
            A(f"v_cvt_pk_bf16_f32 v{16+k}, v{8+2*k}, v{9+2*k}")
        A("buffer_store_dwordx4 v[16:19], v6, s[8:11], s20 offen" + self.opt.get("outflag", ""))
        if self.opt.get("dbg"):
            A("s_waitcnt vmcnt(0)")
            A("s_memrealtime s[28:29]")
            A("s_waitcnt lgkmcnt(0)")
            A("v_mov_b32 v16, s28")
            A("s_lshl_b32 s30, s2, 2")
            A("s_add_u32 s30, s30, 0x4100000")
            A("v_mov_b32 v17, s30")
            A("v_cmp_eq_u32 vcc, 0, v0")
            A("s_and_saveexec_b64 s[26:27], vcc")
            A("s_cbranch_execz L_r_end")
            A("global_store_dword v17, v16, s[6:7]")
        lab("L_r_end")
        A("s_endpgm")

    def desc(self, name, nv, ns):
        self.L += [".p2align 6", f".amdhsa_kernel {name}", f"  .amdhsa_next_free_vgpr {nv}",
                   f"  .amdhsa_next_free_sgpr {ns}", f"  .amdhsa_accum_offset {nv}",
                   "  .amdhsa_group_segment_fixed_size 0", "  .amdhsa_kernarg_size 104",
                   "  .amdhsa_user_sgpr_count 2", "  .amdhsa_user_sgpr_kernarg_segment_ptr 1",
                   "  .amdhsa_system_sgpr_workgroup_id_x 1", ".end_amdhsa_kernel"]

    def place_pads(self):
        want = self.opt["pads"].split("+") if isinstance(self.opt["pads"], str) else None
        spots = []
        for i, l in enumerate(self.L):
            if l.endswith(":") and not l.startswith(" "):
                j = i - 1
                while self.L[j].strip().startswith(";"):
                    j -= 1
                prev = self.L[j].strip()
                if prev.startswith(("s_branch", "s_setpc", "s_endpgm")) and l[:-1] in PAD_TARGETS:
                    spots.append(i)
        chains = [spots[w::4] for w in range(4)]
        name = {}
        for w, ch in enumerate(chains):
            for k, i in enumerate(ch):
                name[i] = (f"L_pad{w}_{k}", f"L_pad{w}_{k+1}" if k + 1 < len(ch) else "L_padend")
        out = []
        for i, l in enumerate(self.L):
            if i in name:
                out += [name[i][0] + ":"] + ["  s_nop 0"] * self.opt.get("padnop", 0) + [f"  s_branch {name[i][1]}"]
            out.append(l)
        self.L = out

    def table_data(self):
        self.L += [".p2align 2", ".type L_table,@object"]
        self.lab("L_table")
        for k in range(0, 192, 8):
            self.A(".long " + ", ".join(hex(x) for x in self.table[k:k+8]))

    def build(self):
        K1 = NAME + "_kernel"
        if self.fuse:
            head = HEADER + f"; @launch grid=(256,1,1) block=(512,1,1) lds={LDS_BYTES}\n"
        else:
            head = HEADER + f"; @launch kernel={K1} grid=(256,1,1) block=(512,1,1) lds={LDS_BYTES}\n"
            head += "; @launch kernel=reduce_partials_kernel grid=(384,1,1) block=(256,1,1) lds=0\n"
        self.L += ['.amdgcn_target "amdgcn-amd-amdhsa--gfx950"', ".text"]
        self.main_kernel()
        if not self.fuse:
            self.reduce_kernel()
        if self.opt.get("pads"):
            self.place_pads()
        self.table_data()
        self.L += ['.section .rodata,"a"']
        self.desc(K1, 256, 102)
        if not self.fuse:
            self.desc("reduce_partials_kernel", 80, 32)
        return head + "\n".join(self.L) + "\n"


def gen(**opt):
    return G(opt).build()


if __name__ == "__main__":
    out = sys.argv[1] if len(sys.argv) > 1 else f"cdna_kernels/{NAME}.s"
    opt = {}
    for a in sys.argv[2:]:
        k, v = a.split("=", 1)
        opt[k] = int(v) if v.lstrip("-").isdigit() else v
    open(out, "w").write(gen(**opt))
    print("wrote", out)
```
